```python
import torch

def _softmax(x, axis=-1):
    return torch.softmax(x, dim=axis)
def _gelu(x):
    return torch.nn.functional.gelu(x, approximate="tanh")
def _silu(x):
    return torch.nn.functional.silu(x)
def _sigmoid(x):
    return torch.sigmoid(x)
def _layernorm(x, axis=-1, eps=1e-5):
    m = x.mean(dim=axis, keepdim=True)
    v = x.var(dim=axis, keepdim=True, unbiased=False)
    return (x - m) / torch.sqrt(v + eps)
def _scatter_add(tgt, idx, src, axis=0):
    return tgt.clone().index_add_(axis, idx, src)
def _segment_sum(src, seg, n):
    out = torch.zeros((n,) + src.shape[1:], dtype=src.dtype)
    return out.index_add_(0, seg, src)
def _pad(x, pw):
    flat = tuple(v for pair in reversed(pw) for v in pair)
    return torch.nn.functional.pad(x, flat)

kernel_name = 'parallel_sum__softmax_full_mha__dense_activation_squared_relu__prompt'

def setup_inputs():

    _w = (lambda a: (lambda t: t.to(torch.bfloat16) if t.is_floating_point() else t)(torch.as_tensor(a)))
    def _A_setup():
        B, S, D = 1, 2048, 512
        return {
            "x": _w((lambda *s: torch.randn(*s, dtype=torch.bfloat16) * 0.05)(B, S, D)),
            "wqkv": _w((lambda *s: torch.randn(*s, dtype=torch.bfloat16) * 0.2)(D, 3 * D)),
            "wo": _w((lambda *s: torch.randn(*s, dtype=torch.bfloat16) * 0.1)(D, D)),
        }
    _A_in = _A_setup()

    def _B_setup():
        B, S, D, F = 1, 2048, 512, 1792
        return {
            "x": _w((lambda *s: torch.randn(*s, dtype=torch.bfloat16) * 0.05)(B, S, D)),
            "w1": _w((lambda *s: torch.randn(*s, dtype=torch.bfloat16) * 0.1)(D, F)),
            "b1": _w((lambda *s: torch.randn(*s, dtype=torch.bfloat16) * 0.8)(F)),
            "w2": _w((lambda *s: torch.randn(*s, dtype=torch.bfloat16) * 0.1)(F, D)),
            "b2": _w((lambda *s: torch.randn(*s, dtype=torch.bfloat16) * 12.8)(D)),
        }
    _B_in = _B_setup()

    return {
        "A_x": _A_in["x"],
        "A_wqkv": _A_in["wqkv"],
        "A_wo": _A_in["wo"],
        "B_x": _B_in["x"],
        "B_w1": _B_in["w1"],
        "B_b1": _B_in["b1"],
        "B_w2": _B_in["w2"],
        "B_b2": _B_in["b2"],
    }

def reference(A_x, A_wqkv, A_wo, B_x, B_w1, B_b1, B_w2, B_b2):
    def _A_ref(x, wqkv, wo):
        B, S, D = x.shape
        H = 32; Dh = D // H
        qkv = (lambda x, *d: x.permute(*d))((x @ wqkv).reshape(B, S, 3, H, Dh), 2, 0, 3, 1, 4)
        q, k, v = qkv[0], qkv[1], qkv[2]
        scale = Dh ** -0.5
        scores = torch.einsum("bhqd,bhkd->bhqk", q, k) * scale
        p = _softmax(scores, axis=-1)
        o = torch.einsum("bhqk,bhkd->bhqd", p, v)
        return (lambda x, *d: x.permute(*d))(o, 0, 2, 1, 3).reshape(B, S, D) @ wo

    def _B_ref(x, w1, b1, w2, b2):
        h = torch.einsum("bsd,df->bsf", x, w1) + b1
        zero = torch.zeros_like(h)
        r = torch.where(h > zero, h, zero)
        h = r * r
        out = torch.einsum("bsf,fd->bsd", h, w2) + b2
        return out

    x = A_x
    xn = _layernorm(x, axis=-1)
    return x + _A_ref(xn, A_wqkv, A_wo) + _B_ref(xn, B_w1, B_b1, B_w2, B_b2)
```

```python
import common
from common import *

SA, SB, CI, P, KF, VF0, VF1, QF, OA = 16, 32, 48, 64, 72, 76, 80, 84, 96
V_LANE16, V_CUR, V_NXT, V_KOFF, V_VOFF, V_T0, V_T1, V_OOFF = 1, 2, 3, 4, 5, 6, 7, 8
SLOT = 24576
TILE = 3072
BIAS = 96.0
ONES = 0x3F803F80

S_WS, S_KV, S_HOS, S_W, S_HEAD, S_QB, S_T, S_C, S_SLOT, S_VM, S_TILE = 4, 8, 12, 16, 17, 18, 19, 20, 21, 22, 24
S_QS = 28
S_NSLOT = 32


OPT = set()


def mfma(k, d, A, B, C):
    k("v_mfma_f32_32x32x16_bf16 %s, %s, %s, %s" % (v(d, 16), v(A, 4), v(B, 4), C if isinstance(C, str) else v(C, 16)))


def dma_chunk(k):
    k("s_mul_i32 %s, %s, %d" % (s(S_T), s(S_W), TILE))
    k("s_add_u32 %s, %s, %s" % (s(S_T), s(S_T), s(S_NSLOT)))
    k("s_mov_b32 m0, %s" % s(S_T))
    k("s_lshl_b32 %s, %s, 11" % (s(S_T + 0), s(S_TILE)))
    k("buffer_load_dwordx4 %s, %s, %s offen lds" % (v(V_KOFF), s(S_KV, 4), s(S_T)))
    k("s_add_u32 m0, m0, 1024")
    k("s_mov_b64 exec, %s" % s(S_VM, 2))
    k("buffer_load_dwordx4 %s, %s, %s offen lds" % (v(V_VOFF), s(S_KV, 4), s(S_T)))
    k("s_add_u32 m0, m0, 512")
    k("s_nop 0")
    k("buffer_load_dwordx4 %s, %s, %s offen offset:512 lds" % (v(V_VOFF), s(S_KV, 4), s(S_T)))
    k("s_mov_b64 exec, -1")


def tile_body(k, i, cur, nxt):
    def e(j):
        if "expsep" in OPT:
            k("v_exp_f32 %s, %s" % (v(96 + j), v(cur + j)))
        else:
            k("v_exp_f32 %s, %s" % (v(cur + j), v(cur + j)))

    def c(j):
        k("v_cvt_pk_bf16_f32 %s, %s, %s" % (v(P + j), v(cur + 2 * j), v(cur + 2 * j + 1)))

    def rd(dst, tile, part):
        if "nolds" in OPT:
            return
        base = V_CUR if tile < 8 else V_NXT
        k("ds_read_b128 %s, %s offset:%d" % (v(dst, 4), v(base), (tile % 8) * TILE + part * 1024))

    def w():
        if "nowait" not in OPT:
            k("s_waitcnt lgkmcnt(2)")

    w()
    if "noqk" not in OPT:
        mfma(k, nxt, KF, QF, CI)
    rd(KF, i + 2, 0)
    e(0); e(1); e(2); e(3)
    w()
    if "nopv" not in OPT:
        mfma(k, OA, VF1, P + 4, OA)
    rd(VF1, i, 2)
    c(0); e(4); e(5); c(1); e(6); e(7); c(2); e(8); c(3); e(9); e(10)
    w()
    if "nopv" not in OPT:
        mfma(k, OA, VF0, P, OA)
    rd(VF0, i + 1, 1)
    e(11); c(4); e(12); e(13); c(5); e(14); e(15); c(6); c(7)


def gen_attn(k, name, standalone=True):
    if standalone:
        k.kernel_begin(name)
        k("s_cmp_ge_u32 s2, 256")
        k("s_cbranch_scc1 L_attn_exit")
        prof_start(k)
        k("s_load_dwordx2 %s, s[0:1], %d" % (s(S_WS, 2), KA_WS))
    k("s_and_b32 %s, s2, 7" % s(S_HEAD))
    k("s_lshl_b32 %s, %s, 2" % (s(S_HEAD), s(S_HEAD)))
    k("s_lshr_b32 %s, s2, 3" % s(S_T))
    k("s_and_b32 %s, %s, 3" % (s(S_T), s(S_T)))
    k("s_add_u32 %s, %s, %s" % (s(S_HEAD), s(S_HEAD), s(S_T)))
    k("s_lshr_b32 %s, s2, 5" % s(S_QB))
    k("v_lshrrev_b32 %s, 6, v0" % v(V_T0))
    k("v_and_b32 v0, 63, v0")
    k("v_readfirstlane_b32 %s, %s" % (s(S_W), v(V_T0)))
    k("v_lshlrev_b32 %s, 4, v0" % v(V_LANE16))
    k("v_mov_b32 %s, %s" % (v(V_KOFF), v(V_LANE16)))
    k("v_lshrrev_b32 %s, 5, v0" % v(V_T0))
    k("v_lshlrev_b32 %s, 8, %s" % (v(V_T0), v(V_T0)))
    k("v_and_b32 %s, 15, v0" % v(V_T1))
    k("v_lshlrev_b32 %s, 4, %s" % (v(V_T1), v(V_T1)))
    k("v_add3_u32 %s, %s, %s, 0" % (v(V_VOFF), v(V_T0), v(V_T1)))
    k("v_add_u32 %s, 1024, %s" % (v(V_VOFF), v(V_VOFF)))
    k("s_mov_b32 %s, 0x0000ffff" % s(S_VM))
    k("s_mov_b32 %s, 0x0000ffff" % s(S_VM + 1))
    k("v_mov_b32 %s, 0x%x" % (v(P), ONES))
    k("v_mov_b32 %s, 0x%x" % (v(P + 1), ONES))
    k("v_mov_b32 %s, 0x%x" % (v(P + 2), ONES))
    k("v_mov_b32 %s, 0x%x" % (v(P + 3), ONES))
    k("s_mul_i32 %s, %s, %d" % (s(S_T), s(S_W), TILE))
    k("v_add_u32 %s, %s, %s" % (v(V_T0), s(S_T), v(V_LANE16)))
    if "zeropad" in OPT:
        k("v_and_b32 %s, 31, v0" % v(V_T1))
        k("v_cmp_eq_u32 vcc, 16, %s" % v(V_T1))
        k("s_nop 1")
        for j in range(4):
            k("v_cndmask_b32 %s, 0, %s, vcc" % (v(P + j), v(P + j)))
    k("s_mov_b32 exec_lo, 0xffff0000")
    k("s_mov_b32 exec_hi, 0xffff0000")
    for slot in range(3):
        for part in (1, 2):
            k("ds_write_b128 %s, %s offset:%d" % (v(V_T0), v(P, 4), slot * SLOT + part * 1024))
    k("s_mov_b64 exec, -1")
    k("s_waitcnt lgkmcnt(0)")
    k("s_lshl_b32 %s, %s, 17" % (s(S_T), s(S_HEAD)))
    k("s_add_u32 %s, %s, %s" % (s(S_KV), s(S_WS), s(S_T)))
    k("s_addc_u32 %s, %s, 0" % (s(S_KV + 1), s(S_WS + 1)))
    k("s_add_u32 %s, %s, 0x%x" % (s(S_KV), s(S_KV), WS_KV))
    k("s_addc_u32 %s, %s, 0" % (s(S_KV + 1), s(S_KV + 1)))
    k("s_and_b32 %s, %s, 0xffff" % (s(S_KV + 1), s(S_KV + 1)))
    k("s_mov_b32 %s, 0x20000" % s(S_KV + 2))
    k("s_mov_b32 %s, 0x20000" % s(S_KV + 3))
    k.srd(S_HOS, S_WS, WS_END)
    k("s_lshl_b32 %s, %s, 6" % (s(S_T), s(S_HEAD)))
    k("s_lshl_b32 %s, %s, 3" % (s(S_QS), s(S_QB)))
    k("s_add_u32 %s, %s, %s" % (s(S_QS), s(S_QS), s(S_W)))
    k("s_add_u32 %s, %s, %s" % (s(S_T), s(S_T), s(S_QS)))
    k("s_lshl_b32 %s, %s, 10" % (s(S_T), s(S_T)))
    k("buffer_load_dwordx4 %s, %s, %s, %s offen" % (v(QF, 4), v(V_LANE16), s(S_HOS, 4), s(S_T)))
    k("s_mul_i32 %s, %s, 144" % (s(S_QS), s(S_QS)))
    k("s_add_u32 %s, %s, %s" % (s(S_QS), s(S_QS), s(S_HEAD)))
    k("s_add_u32 %s, %s, 112" % (s(S_QS), s(S_QS)))
    k("s_lshl_b32 %s, %s, 10" % (s(S_QS), s(S_QS)))
    k("s_add_u32 %s, %s, 0x%x" % (s(S_QS), s(S_QS), WS_HO))
    k("s_mov_b32 %s, %s" % (s(S_TILE), s(S_W)))
    k("s_mov_b32 %s, 0" % s(S_NSLOT))
    dma_chunk(k)
    k("s_add_u32 %s, %s, 8" % (s(S_TILE), s(S_TILE)))
    k("s_mov_b32 %s, %d" % (s(S_NSLOT), SLOT))
    dma_chunk(k)
    k("s_waitcnt vmcnt(3)")
    k("s_barrier")
    prof_mark(k, 2)
    bufs = (SA, SB, CI, OA)
    frs = (KF, VF0, VF1, P)
    for t in range(4):
        k("ds_read_b128 %s, %s offset:%d" % (v(frs[t], 4), v(V_LANE16), t * TILE))
    for t in range(4):
        k("s_waitcnt lgkmcnt(%d)" % (3 - t))
        mfma(k, bufs[t], frs[t], QF, "0")
    k("ds_read_b128 %s, %s offset:%d" % (v(KF, 4), v(V_LANE16), 0))
    k("s_nop 7")
    m = V_T0
    k("v_max3_f32 %s, %s, %s, %s" % (v(m), v(SA), v(SA + 1), v(SA + 2)))
    regs = [SA + j for j in range(3, 16)] + [SB + j for j in range(16)]
    for j in range(0, len(regs) - 1, 2):
        k("v_max3_f32 %s, %s, %s, %s" % (v(m), v(m), v(regs[j]), v(regs[j + 1])))
    k("v_max_f32 %s, %s, %s" % (v(m), v(m), v(regs[-1])))
    regs = [CI + j for j in range(16)] + [OA + j for j in range(16)]
    for j in range(0, 32, 2):
        k("v_max3_f32 %s, %s, %s, %s" % (v(m), v(m), v(regs[j]), v(regs[j + 1])))
    k("v_mov_b32 %s, %s" % (v(V_T1), v(m)))
    k("s_nop 1")
    k("v_permlane32_swap_b32 %s, %s" % (v(V_T1), v(m)))
    k("s_nop 1")
    k("v_max_f32 %s, %s, %s" % (v(m), v(m), v(V_T1)))
    k("v_add_f32 %s, 0x%x, %s" % (v(m), f2u(BIAS), v(m)))
    for j in range(16):
        k("v_sub_f32 %s, 0, %s" % (v(CI + j), v(m)))
    for j in range(16):
        k("v_mov_b32 %s, 0" % v(OA + j))
    for j in range(4):
        k("v_mov_b32 %s, 0" % v(P + 4 + j))
        k("v_mov_b32 %s, 0" % v(VF1 + j))
    k("s_waitcnt lgkmcnt(0)")
    mfma(k, SA, KF, QF, CI)
    k("ds_read_b128 %s, %s offset:%d" % (v(KF, 4), v(V_LANE16), TILE))
    k("ds_read_b128 %s, %s offset:%d" % (v(VF0, 4), v(V_LANE16), 1024))
    k("v_mov_b32 %s, %s" % (v(V_CUR), v(V_LANE16)))
    k("v_add_u32 %s, %d, %s" % (v(V_NXT), SLOT, v(V_LANE16)))
    k("s_mov_b32 %s, 0" % s(S_C))
    k("s_mov_b32 %s, %d" % (s(S_NSLOT), 2 * SLOT))
    k("s_waitcnt lgkmcnt(0)")
    k("s_nop 7")
    prof_mark(k, 3)
    k(".p2align 6")
    k.label("L_attn_chunk")
    for i in range(8):
        if i == 4:
            k("s_waitcnt vmcnt(0)")
            if "nobar" not in OPT:
                k("s_barrier")
            k("s_cmp_ge_u32 %s, 6" % s(S_C))
            k("s_cbranch_scc1 L_attn_nodma")
            k("s_add_u32 %s, %s, 8" % (s(S_TILE), s(S_TILE)))
            if "nodma" not in OPT:
                dma_chunk(k)
            k.label("L_attn_nodma")
        if "prio2" in OPT and i % 2 == 0:
            k("s_setprio %d" % (3 - ((i - 4) % 8) // 2))
        if "prio1" in OPT:
            k("s_setprio %d" % (3 - ((i - 4) % 4)))
        if "prio1" in OPT and "bar4" in OPT and i == 0:
            k("s_barrier")
        tile_body(k, i, SA if i % 2 == 0 else SB, SB if i % 2 == 0 else SA)
    k("v_mov_b32 %s, %s" % (v(V_CUR), v(V_NXT)))
    k("v_add_u32 %s, %s, %s" % (v(V_NXT), s(S_NSLOT), v(V_LANE16)))
    k("s_add_u32 %s, %s, %d" % (s(S_NSLOT), s(S_NSLOT), SLOT))
    k("s_cmp_ge_u32 %s, %d" % (s(S_NSLOT), 3 * SLOT))
    k("s_cselect_b32 %s, 0, %s" % (s(S_NSLOT), s(S_NSLOT)))
    k("s_add_u32 %s, %s, 1" % (s(S_C), s(S_C)))
    k("s_cmp_lt_u32 %s, 8" % s(S_C))
    k("s_cbranch_scc1 L_attn_chunk")
    k("s_waitcnt lgkmcnt(0)")
    prof_mark(k, 4)
    mfma(k, OA, VF1, P + 4, OA)
    k("s_nop 15")
    t = V_T0
    k("v_mul_f32 %s, 0, %s" % (v(t), v(OA)))
    for j in range(1, 8):
        k("v_fma_f32 %s, %s, 0, %s" % (v(t), v(OA + j), v(t)))
    k("s_mov_b32 %s, 0x%x" % (s(S_T), f2u(2.0 ** 100)))
    k("v_cmp_ngt_f32 vcc, %s, %s" % (s(S_T), v(OA + 8)))
    k("v_cmp_u_f32 %s, %s, %s" % (s(S_C, 2), v(t), v(t)))
    k("s_nop 1")
    k("s_or_b64 vcc, vcc, %s" % s(S_C, 2))
    k("s_cbranch_vccnz L_attn_slow")
    k.label("L_attn_fin")
    k("v_rcp_f32 %s, %s" % (v(t), v(OA + 8)))
    k("s_nop 0")
    for j in range(8):
        k("v_mul_f32 %s, %s, %s" % (v(OA + j), v(OA + j), v(t)))
    for j in range(4):
        k("v_cvt_pk_bf16_f32 %s, %s, %s" % (v(P + j), v(OA + 2 * j), v(OA + 2 * j + 1)))
    k("buffer_store_dwordx4 %s, %s, %s, %s offen" % (v(P, 4), v(V_LANE16), s(S_HOS, 4), s(S_QS)))
    k("s_waitcnt vmcnt(0)")
    prof_mark(k, 5)
    prof_rt(k, 6)
    prof_store(k, S_WS, S_W, 16)
    k("s_endpgm")
    k.label("L_attn_slow")
    k("v_mov_b32 %s, 0xff800000" % v(m))
    k("s_mov_b32 %s, 0" % s(S_C))
    k.label("L_attn_slow_max")
    k("buffer_load_dwordx4 %s, %s, %s, %s offen" % (v(KF, 4), v(V_KOFF), s(S_KV, 4), s(S_C)))
    k("s_waitcnt vmcnt(0)")
    mfma(k, SA, KF, QF, "0")
    k("s_nop 15")
    for j in range(0, 16, 2):
        k("v_max3_f32 %s, %s, %s, %s" % (v(m), v(m), v(SA + j), v(SA + j + 1)))
    k("s_add_u32 %s, %s, 2048" % (s(S_C), s(S_C)))
    k("s_cmp_lt_u32 %s, 0x20000" % s(S_C))
    k("s_cbranch_scc1 L_attn_slow_max")
    k("v_mov_b32 %s, %s" % (v(V_T1), v(m)))
    k("s_nop 1")
    k("v_permlane32_swap_b32 %s, %s" % (v(V_T1), v(m)))
    k("s_nop 1")
    k("v_max_f32 %s, %s, %s" % (v(m), v(m), v(V_T1)))
    for j in range(16):
        k("v_sub_f32 %s, 0, %s" % (v(CI + j), v(m)))
        k("v_mov_b32 %s, 0" % v(OA + j))
    for j in range(4):
        k("v_mov_b32 %s, 0x%x" % (v(VF0 + j), ONES))
        k("v_mov_b32 %s, 0x%x" % (v(VF1 + j), ONES))
    k("s_mov_b32 %s, 0" % s(S_C))
    k.label("L_attn_slow_pv")
    k("buffer_load_dwordx4 %s, %s, %s, %s offen" % (v(KF, 4), v(V_KOFF), s(S_KV, 4), s(S_C)))
    k("s_mov_b64 exec, %s" % s(S_VM, 2))
    k("buffer_load_dwordx4 %s, %s, %s, %s offen" % (v(VF0, 4), v(V_VOFF), s(S_KV, 4), s(S_C)))
    k("buffer_load_dwordx4 %s, %s, %s, %s offen offset:512" % (v(VF1, 4), v(V_VOFF), s(S_KV, 4), s(S_C)))
    k("s_mov_b64 exec, -1")
    k("s_waitcnt vmcnt(0)")
    mfma(k, SA, KF, QF, CI)
    k("s_nop 15")
    for j in range(16):
        k("v_exp_f32 %s, %s" % (v(SA + j), v(SA + j)))
    k("s_nop 0")
    for j in range(8):
        k("v_cvt_pk_bf16_f32 %s, %s, %s" % (v(P + j), v(SA + 2 * j), v(SA + 2 * j + 1)))
    k("s_nop 1")
    mfma(k, OA, VF0, P, OA)
    mfma(k, OA, VF1, P + 4, OA)
    k("s_add_u32 %s, %s, 2048" % (s(S_C), s(S_C)))
    k("s_cmp_lt_u32 %s, 0x20000" % s(S_C))
    k("s_cbranch_scc1 L_attn_slow_pv")
    k("s_nop 15")
    k("s_branch L_attn_fin")
    if standalone:
        k.label("L_attn_exit")
        k.kernel_end(name, 128 if common.PROF else 112, 128 if common.PROF else 112)


if __name__ == "__main__":
    import sys
    common.PROF = "prof" in sys.argv
    OPT.update(sys.argv[1:])
    k = Asm()
    k.lines.append(HEADER.rstrip())
    k.lines.append("; @launch kernel=attn_kernel grid=(256,1,1) block=(512,1,1) lds=%d" % (3 * SLOT))
    k('.amdgcn_target "amdgcn-amd-amdhsa--gfx950"')
    gen_attn(k, "attn_kernel")
    open("attn_%s.s" % "_".join(["v"] + [x for x in sys.argv[1:] if x != "prof"]), "w").write(k.text())
```

```python
NAME = "parallel_sum__softmax_full_mha__dense_activation_squared_relu__prompt"

KA_X, KA_WQKV, KA_WO, KA_BX, KA_W1, KA_B1, KA_W2, KA_B2, KA_OUT, KA_DBG, KA_WS = [8 * i for i in range(11)]

WS_Q = 0
WS_KV = 2 << 20
WS_HO = 8 << 20
WS_HO_ROW = 144 * 1024
WS_END = WS_HO + 64 * WS_HO_ROW

WS_FLAG = 30 << 20
FLAG_O = 0

LOG2E = 1.4426950408889634


def v(i, n=1):
    return "v%d" % i if n == 1 else "v[%d:%d]" % (i, i + n - 1)


def a(i, n=1):
    return "a%d" % i if n == 1 else "a[%d:%d]" % (i, i + n - 1)


def s(i, n=1):
    return "s%d" % i if n == 1 else "s[%d:%d]" % (i, i + n - 1)


class Asm:
    def __init__(self):
        self.lines = []

    def __call__(self, *txt):
        for t in txt:
            for ln in t.split("\n"):
                ln = ln.strip()
                if not ln:
                    continue
                if ln.endswith(":") or ln.startswith("."):
                    self.lines.append(ln)
                else:
                    self.lines.append("  " + ln)

    def label(self, name):
        self.lines.append(name + ":")

    def c(self, txt):
        self.lines.append("  ; " + txt)

    def text(self):
        return "\n".join(self.lines) + "\n"

    def kernel_begin(self, name):
        self(".text", ".globl %s" % name, ".p2align 8", ".type %s,@function" % name)
        self.label(name)

    def kernel_end(self, name, vgpr, accum, sgpr=96):
        self("s_endpgm")
        self('.section .rodata,"a"', ".p2align 6", ".amdhsa_kernel %s" % name)
        self.lines += [
            "  .amdhsa_next_free_vgpr %d" % vgpr,
            "  .amdhsa_next_free_sgpr %d" % sgpr,
            "  .amdhsa_accum_offset %d" % accum,
            "  .amdhsa_group_segment_fixed_size 0",
            "  .amdhsa_kernarg_size 88",
            "  .amdhsa_user_sgpr_count 2",
            "  .amdhsa_user_sgpr_kernarg_segment_ptr 1",
            "  .amdhsa_system_sgpr_workgroup_id_x 1",
            "  .amdhsa_float_denorm_mode_32 3",
            ".end_amdhsa_kernel",
        ]
        self(".text")

    def srd(self, d, base, nbytes):
        self("s_mov_b32 %s, %s" % (s(d), s(base)))
        self("s_and_b32 %s, %s, 0xffff" % (s(d + 1), s(base + 1)))
        self("s_mov_b32 %s, 0x%x" % (s(d + 2), nbytes))
        self("s_mov_b32 %s, 0x20000" % s(d + 3))


HEADER = """\
"""


def f2u(x):
    import struct
    return struct.unpack("<I", struct.pack("<f", x))[0]


WS_PROF = 200 << 20
PROF = False
NMARK = 8


def prof_mark(k, idx):
    import common
    if common.PROF:
        k("s_memtime s[88:89]")
        k("s_waitcnt lgkmcnt(0)")
        k("s_mov_b32 s%d, s88" % (80 + idx))


def prof_rt(k, idx):
    import common
    if common.PROF:
        k("s_memrealtime s[88:89]")
        k("s_waitcnt lgkmcnt(0)")
        k("s_mov_b32 s%d, s88" % (80 + idx))


def prof_store(k, s_ws, s_wave, vtmp):
    import common
    if common.PROF:
        k("s_lshl_b32 s89, s2, 4")
        k("s_add_u32 s89, s89, %s" % s(s_wave))
        k("s_lshl_b32 s89, s89, 5")
        k("s_add_u32 s89, s89, 0x%x" % WS_PROF)
        for i in range(8):
            k("v_mov_b32 %s, s%d" % (v(vtmp + i), 80 + i))
        k("v_mov_b32 %s, s89" % v(vtmp + 8))
        k("global_store_dwordx4 %s, %s, %s" % (v(vtmp + 8), v(vtmp, 4), s(s_ws, 2)))
        k("global_store_dwordx4 %s, %s, %s offset:16" % (v(vtmp + 8), v(vtmp + 4, 4), s(s_ws, 2)))
        k("s_waitcnt vmcnt(0)")


def prof_start(k):
    import common
    if common.PROF:
        prof_rt(k, 0)
        prof_mark(k, 1)
        for i in range(2, 6):
            k("s_mov_b32 s%d, s81" % (80 + i))
```

```python
import common
from common import *

S_X, S_W2, S_WOP, S_B2, S_OUT, S_WS = 4, 6, 8, 10, 12, 14
S_HD, S_W2D, S_WOD, S_XD, S_OD = 16, 20, 24, 28, 32
S_W, S_RB, S_CB, S_T, S_T2, S_K, S_KE, S_HO0, S_HO1, S_WOFF, S_LB, S_RS, S_WR = 36, 37, 38, 39, 40, 41, 42, 43, 44, 45, 46, 47, 48
S_BD = 52
D = 4
WSLOT = 2048
RING = D * WSLOT


def gen_final(k, name, pre):
    k.kernel_begin(name)
    k("s_cmp_ge_u32 s2, 256")
    k("s_cbranch_scc1 %s_exit" % pre)
    prof_start(k)
    for r, off in ((S_X, KA_X), (S_W2, KA_W2), (S_WOP, KA_WO), (S_B2, KA_B2), (S_OUT, KA_OUT), (S_WS, KA_WS)):
        k("s_load_dwordx2 %s, s[0:1], %d" % (s(r, 2), off))
    k("s_and_b32 %s, s2, 7" % s(S_RB))
    k("s_lshl_b32 %s, %s, 2" % (s(S_RB), s(S_RB)))
    k("s_lshr_b32 %s, s2, 3" % s(S_T))
    k("s_and_b32 %s, %s, 3" % (s(S_T), s(S_T)))
    k("s_add_u32 %s, %s, %s" % (s(S_RB), s(S_RB), s(S_T)))
    k("s_lshr_b32 %s, s2, 5" % s(S_CB))
    k("v_lshrrev_b32 v1, 6, v0")
    k("v_and_b32 v0, 63, v0")
    k("v_readfirstlane_b32 %s, v1" % s(S_W))
    k("v_and_b32 v1, 31, v0")
    k("v_lshrrev_b32 v2, 5, v0")
    k("v_lshlrev_b32 v3, 4, v0")
    k("v_lshrrev_b32 v4, 3, v0")
    k("v_bfe_u32 v5, v0, 2, 1")
    k("v_bfe_u32 v6, v0, 4, 1")
    k("v_xor_b32 v5, v5, v6")
    k("v_and_b32 v6, 3, v0")
    k("v_lshlrev_b32 v6, 4, v6")
    k("v_lshl_add_u32 v5, v5, 6, v6")
    k("v_lshl_add_u32 v4, v4, 10, v5")
    k("v_bfe_u32 v12, v0, 2, 2")
    k("v_and_b32 v13, 3, v0")
    k("v_bfe_u32 v14, v0, 4, 1")
    k("v_lshl_add_u32 v13, v14, 2, v13")
    k("v_and_b32 v14, 1, v13")
    k("v_lshrrev_b32 v15, 1, v13")
    k("v_lshrrev_b32 v16, 1, v15")
    k("v_and_b32 v15, 1, v15")
    k("v_lshl_add_u32 v15, v14, 1, v15")
    k("v_lshl_add_u32 v13, v16, 2, v15")
    k("v_lshl_add_u32 v14, v2, 3, v12")
    k("v_lshlrev_b32 v14, 7, v14")
    k("v_lshl_add_u32 v14, v13, 3, v14")
    k("v_lshrrev_b32 v12, 1, v12")
    k("s_mul_i32 %s, %s, %d" % (s(S_LB), s(S_W), RING))
    k("v_add_u32 v14, %s, v14" % s(S_LB))
    for ft in range(2):
        k("v_xor_b32 v15, %d, v12" % ft)
        k("v_lshl_add_u32 %s, v15, 6, v14" % v(6 + ft))
    k("s_waitcnt lgkmcnt(0)")
    k.srd(S_HD, S_WS, WS_END)
    k.srd(S_W2D, S_W2, 1792 * 1024)
    k.srd(S_WOD, S_WOP, 512 * 1024)
    k.srd(S_XD, S_X, 2048 * 1024)
    k.srd(S_OD, S_OUT, 2048 * 1024)
    k.srd(S_BD, S_B2, 1024)
    k("s_mul_i32 %s, %s, 36" % (s(S_K), s(S_W)))
    k("s_add_u32 %s, %s, 36" % (s(S_KE), s(S_K)))
    k("s_lshl_b32 %s, %s, 1" % (s(S_T), s(S_RB)))
    k("s_mul_i32 %s, %s, %d" % (s(S_HO0), s(S_T), WS_HO_ROW))
    k("s_add_u32 %s, %s, 0x%x" % (s(S_HO0), s(S_HO0), WS_HO))
    k("s_lshl_b32 %s, %s, 10" % (s(S_T), s(S_K)))
    k("s_add_u32 %s, %s, %s" % (s(S_HO0), s(S_HO0), s(S_T)))
    k("s_add_u32 %s, %s, %d" % (s(S_HO1), s(S_HO0), WS_HO_ROW))
    XF = 16
    WF = 48
    ACC = 64
    for j in range(64):
        k("v_mov_b32 %s, 0" % v(ACC + j))

    def issue(slot, guard_label):
        k("s_cmp_ge_u32 %s, %s" % (s(S_WR), s(S_KE)))
        k("s_cbranch_scc1 %s" % guard_label)
        k("buffer_load_dwordx4 %s, v3, %s, %s offen" % (v(XF + 8 * slot, 4), s(S_HD, 4), s(S_HO0)))
        k("buffer_load_dwordx4 %s, v3, %s, %s offen" % (v(XF + 8 * slot + 4, 4), s(S_HD, 4), s(S_HO1)))
        k("s_add_u32 m0, %s, %d" % (s(S_LB), slot * WSLOT))
        k("s_lshl_b32 %s, %s, 7" % (s(S_T), s(S_CB)))
        k("s_cmp_ge_u32 %s, 112" % s(S_WR))
        k("s_cbranch_scc1 %s_o" % guard_label)
        k("s_lshl_b32 %s, %s, 14" % (s(S_T2), s(S_WR)))
        k("s_add_u32 %s, %s, %s" % (s(S_T), s(S_T), s(S_T2)))
        k("buffer_load_dwordx4 v4, %s, %s offen lds" % (s(S_W2D, 4), s(S_T)))
        k("s_add_u32 m0, m0, 1024")
        k("s_add_u32 %s, %s, 8192" % (s(S_T), s(S_T)))
        k("buffer_load_dwordx4 v4, %s, %s offen lds" % (s(S_W2D, 4), s(S_T)))
        k("s_branch %s_j" % guard_label)
        k.label(guard_label + "_o")
        k("s_sub_u32 %s, %s, 112" % (s(S_T2), s(S_WR)))
        k("s_lshl_b32 %s, %s, 14" % (s(S_T2), s(S_T2)))
        k("s_add_u32 %s, %s, %s" % (s(S_T), s(S_T), s(S_T2)))
        k("buffer_load_dwordx4 v4, %s, %s offen lds" % (s(S_WOD, 4), s(S_T)))
        k("s_add_u32 m0, m0, 1024")
        k("s_add_u32 %s, %s, 8192" % (s(S_T), s(S_T)))
        k("buffer_load_dwordx4 v4, %s, %s offen lds" % (s(S_WOD, 4), s(S_T)))
        k.label(guard_label + "_j")
        k("s_add_u32 %s, %s, 1024" % (s(S_HO0), s(S_HO0)))
        k("s_add_u32 %s, %s, 1024" % (s(S_HO1), s(S_HO1)))
        k.label(guard_label)
        k("s_add_u32 %s, %s, 1" % (s(S_WR), s(S_WR)))

    k("s_mov_b32 %s, %s" % (s(S_WR), s(S_K)))
    for d in range(D - 1):
        issue(d, "%s_p%d" % (pre, d))
    prof_mark(k, 2)
    k("s_mov_b32 %s, 0" % s(S_RS))
    k.label(pre + "_loop")
    for d in range(D):
        k("s_sub_u32 %s, %s, %s" % (s(S_T), s(S_KE), s(S_WR)))
        k("s_waitcnt vmcnt(%d)" % (4 * (D - 2)))
        k("s_cmp_gt_i32 %s, 0" % s(S_T))
        k("s_cbranch_scc1 %s_w%d" % (pre, d))
        k("s_waitcnt vmcnt(0)")
        k.label("%s_w%d" % (pre, d))
        for ft in range(2):
            for u in range(2):
                k("ds_read_b64_tr_b16 %s, %s offset:%d" % (v(WF + 4 * ft + 2 * u, 2), v(6 + ft), d * WSLOT + u * 512))
        k("s_waitcnt lgkmcnt(0)")
        for tt in range(2):
            for ft in range(2):
                dd = v(ACC + 16 * (2 * tt + ft), 16)
                k("v_mfma_f32_32x32x16_bf16 %s, %s, %s, %s" % (dd, v(WF + 4 * ft, 4), v(XF + 8 * d + 4 * tt, 4), dd))
        issue((d + D - 1) % D, "%s_l%d" % (pre, d))
    k("s_add_u32 %s, %s, 1" % (s(S_RS), s(S_RS)))
    k("s_cmp_lt_u32 %s, 9" % s(S_RS))
    k("s_cbranch_scc1 %s_loop" % pre)
    prof_mark(k, 3)
    k("s_nop 15")
    k("s_barrier")
    for q in range(4):
        k("s_cmp_eq_u32 %s, %d" % (s(S_W), q))
        k("s_cbranch_scc1 %s_nw%d" % (pre, q))
        k("s_mul_i32 %s, %s, 16384" % (s(S_T), s(S_W)))
        k("v_add_u32 v8, %s, v3" % s(S_T))
        for g in range(4):
            k("ds_write_b128 v8, %s offset:%d" % (v(ACC + 16 * q + 4 * g, 4), q * 4096 + g * 1024))
        k.label("%s_nw%d" % (pre, q))
    for q in range(4):
        k("s_cmp_lg_u32 %s, %d" % (s(S_W), q))
        k("s_cbranch_scc1 %s_no%d" % (pre, q))
        for r in range(16):
            k("v_mov_b32 %s, %s" % (v(16 + r), v(ACC + 16 * q + r)))
        k.label("%s_no%d" % (pre, q))
    k("s_lshr_b32 %s, %s, 1" % (s(S_T), s(S_W)))
    k("s_lshl_b32 %s, %s, 1" % (s(S_T2), s(S_RB)))
    k("s_add_u32 %s, %s, %s" % (s(S_T), s(S_T), s(S_T2)))
    k("s_lshl_b32 %s, %s, 15" % (s(S_T), s(S_T)))
    k("s_and_b32 %s, %s, 1" % (s(S_T2), s(S_W)))
    k("s_lshl_b32 %s, %s, 6" % (s(S_T2), s(S_T2)))
    k("s_lshl_b32 %s, %s, 7" % (s(S_K), s(S_CB)))
    k("s_add_u32 %s, %s, %s" % (s(S_T2), s(S_T2), s(S_K)))
    k("s_add_u32 %s, %s, %s" % (s(S_T), s(S_T), s(S_T2)))
    k("v_lshlrev_b32 v9, 10, v1")
    k("v_lshl_add_u32 v9, v2, 4, v9")
    k("v_lshlrev_b32 v10, 4, v2")
    k("buffer_load_dwordx4 v[32:35], v9, %s, %s offen" % (s(S_XD, 4), s(S_T)))
    k("buffer_load_dwordx4 v[36:39], v9, %s, %s offen offset:32" % (s(S_XD, 4), s(S_T)))
    k("buffer_load_dwordx4 v[40:43], v10, %s, %s offen" % (s(S_BD, 4), s(S_T2)))
    k("buffer_load_dwordx4 v[44:47], v10, %s, %s offen offset:32" % (s(S_BD, 4), s(S_T2)))
    k("s_waitcnt lgkmcnt(0)")
    k("s_barrier")
    k("s_lshl_b32 %s, %s, 12" % (s(S_K), s(S_W)))
    k("v_add_u32 v8, %s, v3" % s(S_K))
    for q in range(4):
        k("s_cmp_eq_u32 %s, %d" % (s(S_W), q))
        k("s_cbranch_scc1 %s_nr%d" % (pre, q))
        for g in range(4):
            k("ds_read_b128 %s, v8 offset:%d" % (v(64 + 4 * g, 4), q * 16384 + g * 1024))
        k("s_waitcnt lgkmcnt(0)")
        for r in range(16):
            k("v_add_f32 %s, %s, %s" % (v(16 + r), v(16 + r), v(64 + r)))
        k.label("%s_nr%d" % (pre, q))
    k("s_waitcnt vmcnt(0)")
    for half in range(2):
        for j in range(4):
            for src in (32, 40):
                r = src + 4 * half + j
                k("v_lshlrev_b32 v80, 16, %s" % v(r))
                k("v_and_b32 v81, 0xffff0000, %s" % v(r))
                k("v_add_f32 %s, %s, v80" % (v(16 + 8 * half + 2 * j), v(16 + 8 * half + 2 * j)))
                k("v_add_f32 %s, %s, v81" % (v(16 + 8 * half + 2 * j + 1), v(16 + 8 * half + 2 * j + 1)))
    for r in range(8):
        k("v_cvt_pk_bf16_f32 %s, %s, %s" % (v(16 + r), v(16 + 2 * r), v(17 + 2 * r)))
    k("buffer_store_dwordx4 v[16:19], v9, %s, %s offen" % (s(S_OD, 4), s(S_T)))
    k("buffer_store_dwordx4 v[20:23], v9, %s, %s offen offset:32" % (s(S_OD, 4), s(S_T)))
    k("s_waitcnt vmcnt(0)")
    prof_mark(k, 5)
    prof_rt(k, 6)
    prof_store(k, S_WS, S_W, 24)
    k.label(pre + "_exit")
    k.kernel_end(name, 128, 128)
    return 256, 65536
```

```python
import common
from common import *

XB = 16384

S_X, S_WM, S_WS, S_B1 = 4, 6, 8, 10
S_XD, S_WD, S_OD = 12, 16, 20
S_W, S_RB, S_CT, S_T, S_T2, S_C, S_SLOT, S_XO, S_WO, S_LD = 24, 25, 26, 27, 28, 29, 30, 31, 32, 33
S_ONE = 34
S_RSLOT = 35
S_T3 = 36


def gen_gemm1(k, name, F, pre):
    qkv = F == 3
    RB = F * 64
    WB = 64 * RB
    SLOT = XB + WB
    R = 5 if qkv else 4
    SLOT0 = 2048
    SLOTE = SLOT0 + R * SLOT
    L_RS, L_RM, L_CS, L_BI = 0, 512, 1024, 1536
    lds = SLOTE
    NW = 3 if qkv else 4
    NPC = 4 + NW
    ncol = 16 if qkv else 14
    nwg = 16 * ncol
    wrow = 3072 if qkv else 3584

    k.kernel_begin(name)
    k("s_cmp_ge_u32 s2, %d" % nwg)
    k("s_cbranch_scc1 %s_exit" % pre)
    prof_start(k)
    k("s_load_dwordx2 %s, s[0:1], %d" % (s(S_X, 2), KA_X))
    k("s_load_dwordx2 %s, s[0:1], %d" % (s(S_WM, 2), KA_WQKV if qkv else KA_W1))
    k("s_load_dwordx2 %s, s[0:1], %d" % (s(S_WS, 2), KA_WS))
    k("s_load_dwordx2 %s, s[0:1], %d" % (s(S_B1, 2), KA_B1))
    if qkv:
        k("s_and_b32 %s, s2, 7" % s(S_CT))
        k("s_lshl_b32 %s, %s, 1" % (s(S_CT), s(S_CT)))
        k("s_lshr_b32 %s, s2, 7" % s(S_T))
        k("s_add_u32 %s, %s, %s" % (s(S_CT), s(S_CT), s(S_T)))
        k("s_lshr_b32 %s, s2, 3" % s(S_RB))
        k("s_and_b32 %s, %s, 15" % (s(S_RB), s(S_RB)))
    else:
        k("s_and_b32 %s, s2, 7" % s(S_RB))
        k("s_lshl_b32 %s, %s, 1" % (s(S_RB), s(S_RB)))
        k("s_lshr_b32 %s, s2, 3" % s(S_T))
        k("s_and_b32 %s, %s, 1" % (s(S_T), s(S_T)))
        k("s_add_u32 %s, %s, %s" % (s(S_RB), s(S_RB), s(S_T)))
        k("s_lshr_b32 %s, s2, 4" % s(S_CT))
    k("v_lshrrev_b32 v1, 6, v0")
    k("v_and_b32 v0, 63, v0")
    k("v_readfirstlane_b32 %s, v1" % s(S_W))
    k("s_mov_b32 %s, 0x3f803f80" % s(S_ONE))
    k("s_waitcnt lgkmcnt(0)")
    k.srd(S_XD, S_X, 2048 * 1024)
    k.srd(S_WD, S_WM, 512 * wrow)
    k.srd(S_OD, S_WS, WS_END)
    k("v_and_b32 v1, 31, v0")
    k("v_lshrrev_b32 v2, 5, v0")
    VXA = 4
    k("s_and_b32 %s, %s, 3" % (s(S_T), s(S_W)))
    k("s_lshl_b32 %s, %s, 12" % (s(S_T), s(S_T)))
    k("v_lshrrev_b32 v3, 1, v1")
    k("v_and_b32 v3, 7, v3")
    k("v_xor_b32 v3, v3, v2")
    k("v_lshlrev_b32 v8, 7, v1")
    k("v_add_u32 v8, %s, v8" % s(S_T))
    for st in range(4):
        k("v_xor_b32 v9, %d, v3" % (2 * st))
        k("v_lshl_add_u32 %s, v9, 4, v8" % v(VXA + st))
    VWA = 8
    k("v_bfe_u32 v12, v0, 2, 2")
    k("v_and_b32 v13, 3, v0")
    k("v_bfe_u32 v14, v0, 4, 1")
    k("v_lshl_add_u32 v13, v14, 2, v13")
    k("v_and_b32 v14, 1, v13")
    k("v_lshrrev_b32 v15, 1, v13")
    if qkv:
        k("v_lshl_add_u32 v13, v14, 2, v15")
    else:
        k("v_lshrrev_b32 v16, 1, v15")
        k("v_and_b32 v15, 1, v15")
        k("v_lshl_add_u32 v15, v14, 1, v15")
        k("v_lshl_add_u32 v13, v16, 2, v15")
    k("v_lshl_add_u32 v14, v2, 3, v12")
    k("v_mul_u32_u24 v14, %d, v14" % RB)
    k("v_lshl_add_u32 v14, v13, 3, v14")
    k("v_add_u32 v14, %d, v14" % XB)
    if qkv:
        k("v_mov_b32 %s, v14" % v(VWA))
    else:
        for ft in range(4):
            k("v_xor_b32 v15, %d, v12" % ft)
            k("v_lshl_add_u32 %s, v15, 6, v14" % v(VWA + ft))
    k("s_cmp_ge_u32 %s, 4" % s(S_W))
    k("s_cbranch_scc1 %s_loader" % pre)

    ACC = 64
    XF = [16, 20]
    WF = [24, 40]
    CA = 12
    VX2, VW2 = 56, 60
    for j in range(F * 16):
        k("v_mov_b32 %s, 0" % v(ACC + j))
    k("s_mov_b32 %s, 0" % s(S_C))
    k("s_mov_b32 %s, %d" % (s(S_SLOT), SLOT0))

    def frag_reads(step, buf, xa, wa):
        k("ds_read_b128 %s, %s" % (v(XF[buf], 4), v(xa + step)))
        for ft in range(F):
            for u in range(2):
                if qkv:
                    k("ds_read_b64_tr_b16 %s, %s offset:%d" % (v(WF[buf] + 4 * ft + 2 * u, 2), v(wa), step * 16 * RB + u * 4 * RB + ft * 64))
                else:
                    k("ds_read_b64_tr_b16 %s, %s offset:%d" % (v(WF[buf] + 4 * ft + 2 * u, 2), v(wa + ft), step * 16 * RB + u * 4 * RB))

    def mfmas(buf):
        for ft in range(F):
            d = v(ACC + 16 * ft, 16)
            if qkv and ft == 2:
                k("v_mfma_f32_32x32x16_bf16 %s, %s, %s, %s" % (d, v(XF[buf], 4), v(WF[buf] + 4 * ft, 4), d))
            else:
                k("v_mfma_f32_32x32x16_bf16 %s, %s, %s, %s" % (d, v(WF[buf] + 4 * ft, 4), v(XF[buf], 4), d))

    NA = 1 if qkv else 4
    nrd = 1 + 2 * F

    def set_slot(dx, dw):
        for st in range(4):
            k("v_add_u32 %s, %s, %s" % (v(dx + st), s(S_SLOT), v(VXA + st)))
        for j in range(NA):
            k("v_add_u32 %s, %s, %s" % (v(dw + j), s(S_SLOT), v(VWA + j)))

    k("s_barrier")
    set_slot(VX2, VW2)
    frag_reads(0, 0, VX2, VW2)
    k.label(pre + "_cloop")
    for st in range(4):
        if st < 3:
            frag_reads(st + 1, (st + 1) & 1, VX2, VW2)
        else:
            k("s_add_u32 %s, %s, %d" % (s(S_SLOT), s(S_SLOT), SLOT))
            k("s_cmp_ge_u32 %s, %d" % (s(S_SLOT), SLOTE))
            k("s_cselect_b32 %s, %d, %s" % (s(S_SLOT), SLOT0, s(S_SLOT)))
            set_slot(VX2, VW2)
            frag_reads(0, 0, VX2, VW2)
        k("s_waitcnt lgkmcnt(%d)" % nrd)
        mfmas(st & 1)
    k("s_add_u32 %s, %s, 1" % (s(S_C), s(S_C)))
    k("s_cmp_ge_u32 %s, 8" % s(S_C))
    k("s_cbranch_scc1 %s_cdone" % pre)
    k("s_waitcnt lgkmcnt(0)")
    k("s_barrier")
    k("s_branch %s_cloop" % pre)
    k.label(pre + "_cdone")
    k("s_waitcnt lgkmcnt(0)")
    k("s_barrier")
    prof_mark(k, 3)
    RS, RM = 16, 17
    k("s_and_b32 %s, %s, 3" % (s(S_T), s(S_W)))
    k("s_lshl_b32 %s, %s, 7" % (s(S_T), s(S_T)))
    k("v_lshl_add_u32 v3, v1, 2, %s" % s(S_T))
    k("ds_read_b32 %s, v3 offset:%d" % (v(RS), L_RS))
    k("ds_read_b32 %s, v3 offset:%d" % (v(RM), L_RM))
    k("v_lshlrev_b32 v12, 4, v2")
    T0 = 24
    k("s_lshl_b32 %s, %s, 2" % (s(S_T2), s(S_RB)))
    k("s_and_b32 %s, %s, 3" % (s(S_T), s(S_W)))
    k("s_add_u32 %s, %s, %s" % (s(S_T2), s(S_T2), s(S_T)))
    k("v_lshlrev_b32 v13, 4, v0")
    if qkv:
        cq = 0.25 * LOG2E
        k("s_lshl_b32 %s, %s, 1" % (s(S_T), s(S_CT)))
        k("v_add_u32 v14, %s, v2" % s(S_T))
        k("v_lshlrev_b32 v15, 4, v1")
        k("v_lshl_add_u32 v18, v14, 16, v15")
        k("s_lshl_b32 %s, %s, 10" % (s(S_T), s(S_T2)))
        k("v_add_u32 v18, %s, v18" % s(S_T))
        k("v_lshl_add_u32 v19, v14, 17, v15")
        k("s_lshl_b32 %s, %s, 11" % (s(S_T), s(S_T2)))
        k("s_add_u32 %s, %s, 0x%x" % (s(S_T), s(S_T), WS_KV))
        k("v_add_u32 v19, %s, v19" % s(S_T))
        for ft, dst, scale in ((0, 18, cq), (1, 19, None)):
            for g in range(4):
                k("ds_read_b128 %s, v12 offset:%d" % (v(T0 + 4 * g, 4), L_CS + ft * 128 + g * 32))
            k("s_waitcnt lgkmcnt(0)")
            if scale:
                k("v_mul_f32 v20, 0x%x, %s" % (f2u(scale), v(RS)))
                k("v_mul_f32 v21, 0x%x, %s" % (f2u(scale), v(RM)))
            else:
                k("v_mov_b32 v20, %s" % v(RS))
                k("v_mov_b32 v21, %s" % v(RM))
            A = ACC + 16 * ft
            for r in range(16):
                k("v_mul_f32 %s, %s, v21" % (v(T0 + r), v(T0 + r)))
            for r in range(16):
                k("v_fma_f32 %s, %s, v20, -%s" % (v(A + r), v(A + r), v(T0 + r)))
            for r in range(8):
                k("v_cvt_pk_bf16_f32 %s, %s, %s" % (v(A + r), v(A + 2 * r), v(A + 2 * r + 1)))
            k("buffer_store_dwordx4 %s, %s, %s, 0 offen" % (v(A, 4), v(dst), s(S_OD, 4)))
            k("buffer_store_dwordx4 %s, %s, %s, 0 offen offset:512" % (v(A + 4, 4), v(dst), s(S_OD, 4)))
        A = ACC + 32
        k("s_and_b32 %s, %s, 3" % (s(S_T), s(S_W)))
        k("s_lshl_b32 %s, %s, 7" % (s(S_T), s(S_T)))
        k("v_add_u32 v3, %s, v12" % s(S_T))
        for g in range(4):
            k("ds_read_b128 %s, v3 offset:%d" % (v(T0 + 4 * g, 4), L_RS + g * 32))
            k("ds_read_b128 %s, v3 offset:%d" % (v(T0 + 16 + 4 * g, 4), L_RM + g * 32))
        k("v_lshlrev_b32 v3, 2, v1")
        k("ds_read_b32 v20, v3 offset:%d" % (L_CS + 2 * 128))
        k("v_bfe_u32 v14, v1, 2, 1")
        k("v_lshrrev_b32 v15, 3, v1")
        k("v_and_b32 v21, 3, v1")
        k("v_and_b32 v22, 1, v15")
        k("v_lshrrev_b32 v15, 1, v15")
        k("v_lshl_add_u32 v21, v15, 2, v21")
        k("v_lshl_add_u32 v21, v22, 3, v21")
        k("v_lshlrev_b32 v21, 4, v21")
        k("s_lshl_b32 %s, %s, 1" % (s(S_T), s(S_CT)))
        k("v_add_u32 v14, %s, v14" % s(S_T))
        k("v_lshl_add_u32 v21, v14, 17, v21")
        k("v_lshl_add_u32 v21, v2, 8, v21")
        k("s_lshl_b32 %s, %s, 11" % (s(S_T), s(S_T2)))
        k("s_add_u32 %s, %s, 0x%x" % (s(S_T), s(S_T), WS_KV + 1024))
        k("v_add_u32 v21, %s, v21" % s(S_T))
        k("s_waitcnt lgkmcnt(0)")
        for r in range(16):
            k("v_mul_f32 %s, %s, v20" % (v(T0 + 16 + r), v(T0 + 16 + r)))
        for r in range(16):
            k("v_fma_f32 %s, %s, %s, -%s" % (v(A + r), v(A + r), v(T0 + r), v(T0 + 16 + r)))
        for r in range(8):
            k("v_cvt_pk_bf16_f32 %s, %s, %s" % (v(A + r), v(A + 2 * r), v(A + 2 * r + 1)))
        k("buffer_store_dwordx4 %s, v21, %s, 0 offen" % (v(A, 4), s(S_OD, 4)))
        k("buffer_store_dwordx4 %s, v21, %s, 0 offen offset:512" % (v(A + 4, 4), s(S_OD, 4)))
    else:
        k("s_mul_i32 %s, %s, %d" % (s(S_T), s(S_T2), WS_HO_ROW))
        k("s_lshl_b32 %s, %s, 13" % (s(S_T3), s(S_CT)))
        k("s_add_u32 %s, %s, %s" % (s(S_T), s(S_T), s(S_T3)))
        k("s_add_u32 %s, %s, 0x%x" % (s(S_T), s(S_T), WS_HO))
        k("v_add_u32 v18, %s, v13" % s(S_T))
        for ft in range(4):
            for g in range(4):
                k("ds_read_b128 %s, v12 offset:%d" % (v(T0 + 4 * g, 4), L_CS + ft * 128 + g * 32))
                k("ds_read_b128 %s, v12 offset:%d" % (v(T0 + 16 + 4 * g, 4), L_BI + ft * 128 + g * 32))
            k("s_waitcnt lgkmcnt(0)")
            A = ACC + 16 * ft
            for r in range(16):
                k("v_fma_f32 %s, -%s, %s, %s" % (v(T0 + r), v(T0 + r), v(RM), v(T0 + 16 + r)))
            for r in range(16):
                k("v_fma_f32 %s, %s, %s, %s" % (v(A + r), v(A + r), v(RS), v(T0 + r)))
            for r in range(16):
                k("v_max_f32 %s, 0, %s" % (v(A + r), v(A + r)))
            for r in range(16):
                k("v_mul_f32 %s, %s, %s" % (v(A + r), v(A + r), v(A + r)))
            for r in range(8):
                k("v_cvt_pk_bf16_f32 %s, %s, %s" % (v(A + r), v(A + 2 * r), v(A + 2 * r + 1)))
            k("buffer_store_dwordx4 %s, v18, %s, 0 offen offset:%d" % (v(A, 4), s(S_OD, 4), 2048 * (ft & 1)))
            k("buffer_store_dwordx4 %s, v18, %s, 0 offen offset:%d" % (v(A + 4, 4), s(S_OD, 4), 2048 * (ft & 1) + 1024))
            if ft == 1:
                k("v_add_u32 v18, 4096, v18")
    k("s_waitcnt vmcnt(0)")
    prof_mark(k, 5)
    prof_rt(k, 6)
    prof_store(k, S_WS, S_W, 24)
    k("s_endpgm")

    k.label(pre + "_loader")
    k("s_sub_u32 %s, %s, 4" % (s(S_LD), s(S_W)))
    VXO = 16
    k("v_lshrrev_b32 v12, 3, v0")
    k("v_and_b32 v13, 7, v0")
    for p in range(2):
        k("v_lshrrev_b32 v14, 1, v12")
        k("v_add_u32 v14, %d, v14" % (4 * p))
        k("v_and_b32 v14, 7, v14")
        k("v_xor_b32 v14, v14, v13")
        k("v_lshlrev_b32 v14, 4, v14")
        k("v_lshl_add_u32 %s, v12, 10, v14" % v(VXO + p))
    VWO = 18
    if qkv:
        for j in range(3):
            k("v_lshlrev_b32 v12, 4, v0")
            k("v_add_u32 v12, %d, v12" % (1024 * j))
            k("s_mov_b32 %s, 0x%x" % (s(S_T), (2 ** 32 + 191) // 192))
            k("v_mul_hi_u32 v13, v12, %s" % s(S_T))
            k("v_mul_u32_u24 v14, 192, v13")
            k("v_sub_u32 v14, v12, v14")
            k("v_lshrrev_b32 v15, 6, v14")
            k("v_and_b32 v14, 63, v14")
            k("v_mul_u32_u24 v13, 3072, v13")
            k("v_lshl_add_u32 v13, v15, 10, v13")
            k("v_add_u32 %s, v13, v14" % v(VWO + j))
    else:
        k("v_lshrrev_b32 v12, 4, v0")
        k("v_bfe_u32 v13, v0, 2, 2")
        k("v_xor_b32 v13, v13, v12")
        k("v_lshlrev_b32 v13, 6, v13")
        k("v_and_b32 v14, 3, v0")
        k("v_lshl_add_u32 v13, v14, 4, v13")
        k("v_mul_u32_u24 v12, 3584, v12")
        k("v_add_u32 %s, v12, v13" % v(VWO))
    k("s_lshl_b32 %s, %s, 2" % (s(S_XO), s(S_RB)))
    k("s_add_u32 %s, %s, %s" % (s(S_XO), s(S_XO), s(S_LD)))
    k("s_lshl_b32 %s, %s, 15" % (s(S_XO), s(S_XO)))
    k("s_mul_i32 %s, %s, %d" % (s(S_WO), s(S_LD), 16 * wrow))
    k("s_lshl_b32 %s, %s, %d" % (s(S_T), s(S_CT), 6 if qkv else 8))
    k("s_add_u32 %s, %s, %s" % (s(S_WO), s(S_WO), s(S_T)))

    def issue_chunk():
        k("s_lshl_b32 %s, %s, 12" % (s(S_T), s(S_LD)))
        k("s_add_u32 %s, %s, %s" % (s(S_T), s(S_T), s(S_RSLOT)))
        k("s_mov_b32 m0, %s" % s(S_T))
        k("s_mov_b32 %s, %s" % (s(S_T2), s(S_XO)))
        for i in range(4):
            k("buffer_load_dwordx4 %s, %s, %s offen lds" % (v(VXO + (i & 1)), s(S_XD, 4), s(S_T2)))
            if i < 3:
                k("s_add_u32 m0, m0, 1024")
                k("s_add_u32 %s, %s, 8192" % (s(S_T2), s(S_T2)))
        k("s_mul_i32 %s, %s, %d" % (s(S_T), s(S_LD), NW * 1024))
        k("s_add_u32 %s, %s, %s" % (s(S_T), s(S_T), s(S_RSLOT)))
        k("s_add_u32 m0, %s, %d" % (s(S_T), XB))
        k("s_mov_b32 %s, %s" % (s(S_T2), s(S_WO)))
        for i in range(NW):
            k("buffer_load_dwordx4 %s, %s, %s offen lds" % (v(VWO + (i if qkv else 0)), s(S_WD, 4), s(S_T2)))
            if i < NW - 1:
                k("s_add_u32 m0, m0, 1024")
                if qkv:
                    k("s_nop 0")
                else:
                    k("s_add_u32 %s, %s, %d" % (s(S_T2), s(S_T2), 4 * wrow))
        k("s_add_u32 %s, %s, 128" % (s(S_XO), s(S_XO)))
        k("s_add_u32 %s, %s, %d" % (s(S_WO), s(S_WO), 64 * wrow))
        k("s_add_u32 %s, %s, %d" % (s(S_RSLOT), s(S_RSLOT), SLOT))
        k("s_cmp_ge_u32 %s, %d" % (s(S_RSLOT), SLOTE))
        k("s_cselect_b32 %s, %d, %s" % (s(S_RSLOT), SLOT0, s(S_RSLOT)))

    if not qkv:
        k("v_lshrrev_b32 v12, 3, v1")
        k("v_bfe_u32 v13, v1, 2, 1")
        k("v_and_b32 v14, 3, v1")
        k("v_lshrrev_b32 v15, 1, v12")
        k("v_and_b32 v12, 1, v12")
        k("v_lshl_add_u32 v14, v12, 2, v14")
        k("v_lshl_add_u32 v14, v13, 3, v14")
        k("v_lshl_add_u32 v14, v15, 4, v14")
        k("s_lshl_b32 %s, %s, 7" % (s(S_T), s(S_CT)))
        k("s_lshl_b32 %s, %s, 5" % (s(S_T2), s(S_LD)))
        k("s_add_u32 %s, %s, %s" % (s(S_T), s(S_T), s(S_T2)))
        k("v_add_u32 v14, %s, v14" % s(S_T))
        k("v_lshlrev_b32 v14, 1, v14")
        k("global_load_ushort v27, v14, %s" % s(S_B1, 2))
    k("s_mov_b32 %s, %d" % (s(S_RSLOT), SLOT0))
    for c in range(R - 1):
        issue_chunk()
    SUM, SQ, CSA = 24, 25, 26
    k("v_mov_b32 %s, 0" % v(SUM))
    k("v_mov_b32 %s, 0" % v(SQ))
    k("v_mov_b32 %s, 0" % v(CSA))
    k("s_mov_b32 %s, %d" % (s(S_SLOT), SLOT0))
    LX, LW = 32, 48
    VX2, VW2, VWL = 28, 64, 65
    if qkv:
        k("s_lshl_b32 %s, %s, 6" % (s(S_T), s(S_LD)))
        k("v_add_u32 %s, %s, %s" % (v(VWL), s(S_T), v(VWA)))
    else:
        k("v_bfe_u32 v12, v0, 2, 2")
        k("v_xor_b32 v15, %s, v12" % s(S_LD))
        k("v_sub_u32 v15, v15, v12")
        k("v_lshlrev_b32 v15, 6, v15")
        k("v_add_u32 %s, %s, v15" % (v(VWL), v(VWA)))
    for c in range(8):
        issued = min(8, c + R - 1)
        need = min(8, c + 2)
        extra = 0
        k("s_waitcnt vmcnt(%d)" % ((issued - need) * NPC + extra))
        k("s_barrier")
        if c == 0:
            prof_mark(k, 2)
        if c + R - 1 < 8:
            issue_chunk()
        for st in range(4):
            k("v_add_u32 %s, %s, %s" % (v(VX2 + st), s(S_SLOT), v(VXA + st)))
            k("ds_read_b128 %s, %s" % (v(LX + 4 * st, 4), v(VX2 + st)))
        skip = qkv
        if skip:
            k("s_cmp_eq_u32 %s, 3" % s(S_LD))
            k("s_cbranch_scc1 %s_nocs%d" % (pre, c))
        k("v_add_u32 %s, %s, %s" % (v(VW2), s(S_SLOT), v(VWL)))
        for st in range(4):
            for u in range(2):
                k("ds_read_b64_tr_b16 %s, %s offset:%d" % (v(LW + 4 * st + 2 * u, 2), v(VW2), st * 16 * RB + u * 4 * RB))
        k("s_waitcnt lgkmcnt(0)")
        for j in range(16):
            k("v_dot2c_f32_bf16 %s, %s, %s" % (v(CSA), s(S_ONE), v(LW + j)))
        if skip:
            k.label("%s_nocs%d" % (pre, c))
        k("s_waitcnt lgkmcnt(0)")
        for j in range(16):
            k("v_dot2c_f32_bf16 %s, %s, %s" % (v(SUM), s(S_ONE), v(LX + j)))
            k("v_dot2c_f32_bf16 %s, %s, %s" % (v(SQ), v(LX + j), v(LX + j)))
        k("s_add_u32 %s, %s, %d" % (s(S_SLOT), s(S_SLOT), SLOT))
        k("s_cmp_ge_u32 %s, %d" % (s(S_SLOT), SLOTE))
        k("s_cselect_b32 %s, %d, %s" % (s(S_SLOT), SLOT0, s(S_SLOT)))
    for r in (SUM, SQ, CSA):
        k("v_mov_b32 v12, %s" % v(r))
        k("s_nop 1")
        k("v_permlane32_swap_b32 v12, %s" % v(r))
        k("s_nop 1")
        k("v_add_f32 %s, %s, v12" % (v(r), v(r)))
    k("v_mul_f32 %s, 0x%x, %s" % (v(SUM), f2u(1.0 / 512), v(SUM)))
    k("v_mul_f32 %s, 0x%x, %s" % (v(SQ), f2u(1.0 / 512), v(SQ)))
    k("v_fma_f32 %s, -%s, %s, %s" % (v(SQ), v(SUM), v(SUM), v(SQ)))
    k("v_max_f32 %s, 0, %s" % (v(SQ), v(SQ)))
    k("v_add_f32 %s, 0x%x, %s" % (v(SQ), f2u(1e-5), v(SQ)))
    k("v_rsq_f32 %s, %s" % (v(SQ), v(SQ)))
    k("s_nop 0")
    k("v_mul_f32 %s, %s, %s" % (v(SUM), v(SUM), v(SQ)))
    k("s_lshl_b32 %s, %s, 7" % (s(S_T), s(S_LD)))
    k("v_lshl_add_u32 v12, v1, 2, %s" % s(S_T))
    k("ds_write_b32 v12, %s offset:%d" % (v(SQ), L_RS))
    k("ds_write_b32 v12, %s offset:%d" % (v(SUM), L_RM))
    k("ds_write_b32 v12, %s offset:%d" % (v(CSA), L_CS))
    if not qkv:
        k("s_waitcnt vmcnt(0)")
        k("v_lshlrev_b32 v27, 16, v27")
        k("ds_write_b32 v12, v27 offset:%d" % L_BI)
    k("s_waitcnt lgkmcnt(0)")
    k("s_barrier")
    prof_mark(k, 3)
    prof_mark(k, 5)
    prof_rt(k, 6)
    prof_store(k, S_WS, S_W, 24)
    k.label(pre + "_exit")
    k.kernel_end(name, 128, 128)
    return nwg, lds
```

```python
import sys
import common
from common import *
import attn, gemm1, final

def build(path, which=("qkv", "ffn1", "attn", "final")):
    k = Asm()
    body = Asm()
    launches = []
    if "qkv" in which:
        n, lds = gemm1.gen_gemm1(body, "qkv_kernel", 3, "L_qkv")
        launches.append("; @launch kernel=qkv_kernel grid=(%d,1,1) block=(512,1,1) lds=%d" % (n, lds))
    if "ffn1" in which:
        n, lds = gemm1.gen_gemm1(body, "ffn1_kernel", 4, "L_ffn1")
        launches.append("; @launch kernel=ffn1_kernel grid=(%d,1,1) block=(512,1,1) lds=%d" % (n, lds))
    if "attn" in which:
        attn.gen_attn(body, "attn_kernel")
        launches.append("; @launch kernel=attn_kernel grid=(256,1,1) block=(512,1,1) lds=%d" % (3 * attn.SLOT))
    if "final" in which:
        n, lds = final.gen_final(body, "final_kernel", "L_fin")
        launches.append("; @launch kernel=final_kernel grid=(%d,1,1) block=(256,1,1) lds=%d" % (n, lds))
    txt = HEADER + "\n".join(launches) + "\n" + '.amdgcn_target "amdgcn-amd-amdhsa--gfx950"\n' + body.text()
    open(path, "w").write(txt)

if __name__ == "__main__":
    common.PROF = "prof" in sys.argv
    out = [a for a in sys.argv[1:] if a.endswith(".s")][0]
    which = [a for a in sys.argv[1:] if a in ("qkv", "ffn1", "attn", "final")] or ("qkv", "ffn1", "attn", "final")
    build(out, which)
```

```python
import common
from common import *

OPT = set()
XB = 16384
R = 4
SLOT = 32768
SLOT0 = 2048
SLOTE = SLOT0 + R * SLOT
L_RS, L_RM, L_CS, L_BI = 0, 512, 1024, 1536
LDS_BYTES = SLOTE

S_X, S_WQ, S_WS, S_B1, S_W1 = 4, 6, 8, 10, 40
S_XD, S_WD, S_OD = 12, 16, 20
S_W, S_RB, S_CT, S_T, S_T2, S_C, S_SLOT, S_XO, S_WO, S_LD = 24, 25, 26, 27, 28, 29, 30, 31, 32, 33
S_ONE, S_RSLOT, S_T3, S_ROT, S_CK, S_CTL = 34, 35, 36, 37, 38, 39

VXA = 4
VWA = 8
SUM, SQ = 12, 14
RS, RM = 16, 17
XF = [18, 22]
WF = [26, 42]
VX2, VW2 = 58, 62
ACC = 66
VXO, VWO, CSA, VBI, VWL, VWL2, LW = 16, 18, 22, 24, 25, 26, 28


class Phase:
    def __init__(self, F):
        self.F = F
        self.qkv = F == 3
        self.RB = F * 64
        self.NW = 3 if self.qkv else 4
        self.NPC = 4 + self.NW
        self.wrow = 3072 if self.qkv else 3584
        self.nh = 8 if self.qkv else 7
        self.pre = "Q" if self.qkv else "F"


def entry(k, pre, nwg, phases):
    k("s_cmp_ge_u32 s2, %d" % nwg)
    k("s_cbranch_scc1 %s_exit" % pre)
    prof_start(k)
    k("s_load_dwordx2 %s, s[0:1], %d" % (s(S_X, 2), KA_X))
    k("s_load_dwordx2 %s, s[0:1], %d" % (s(S_WQ, 2), KA_WQKV))
    k("s_load_dwordx2 %s, s[0:1], %d" % (s(S_WS, 2), KA_WS))
    k("s_load_dwordx2 %s, s[0:1], %d" % (s(S_B1, 2), KA_B1))
    k("s_load_dwordx2 %s, s[0:1], %d" % (s(S_W1, 2), KA_W1))
    k("v_lshrrev_b32 v1, 6, v0")
    k("v_and_b32 v0, 63, v0")
    k("v_readfirstlane_b32 %s, v1" % s(S_W))
    k("s_lshr_b32 %s, s2, 3" % s(S_T))
    k("s_and_b32 %s, %s, 3" % (s(S_T2), s(S_T)))
    k("s_lshr_b32 %s, %s, 2" % (s(S_CTL), s(S_T)))
    k("s_lshl_b32 %s, %s, 1" % (s(S_ROT), s(S_T2)))
    k("s_add_u32 %s, %s, %s" % (s(S_ROT), s(S_ROT), s(S_CTL)))
    k("s_and_b32 %s, %s, 7" % (s(S_ROT), s(S_ROT)))
    k("s_bfe_u32 %s, s2, 0x20001" % s(S_RB))
    k("s_lshl_b32 %s, %s, 2" % (s(S_RB), s(S_RB)))
    k("s_add_u32 %s, %s, %s" % (s(S_RB), s(S_RB), s(S_T2)))
    k("s_mov_b32 %s, 0x3f803f80" % s(S_ONE))
    k("s_cmp_ge_u32 %s, 4" % s(S_W))
    k("s_cbranch_scc1 %s_loader" % pre)


def col_tile(k, ph):
    k("s_and_b32 %s, s2, 1" % s(S_CT))
    k("s_mul_i32 %s, %s, %d" % (s(S_CT), s(S_CT), ph.nh))
    k("s_add_u32 %s, %s, %s" % (s(S_CT), s(S_CT), s(S_CTL)))


def lane_helpers(k):
    k("v_and_b32 v1, 31, v0")
    k("v_lshrrev_b32 v2, 5, v0")


def wfrag_addr(k, ph, dst):
    k("v_bfe_u32 v12, v0, 2, 2")
    k("v_and_b32 v13, 3, v0")
    k("v_bfe_u32 v14, v0, 4, 1")
    k("v_lshl_add_u32 v13, v14, 2, v13")
    k("v_and_b32 v14, 1, v13")
    k("v_lshrrev_b32 v15, 1, v13")
    if ph.qkv:
        k("v_lshl_add_u32 v13, v14, 2, v15")
    else:
        k("v_lshrrev_b32 v3, 1, v15")
        k("v_and_b32 v15, 1, v15")
        k("v_lshl_add_u32 v15, v14, 1, v15")
        k("v_lshl_add_u32 v13, v3, 2, v15")
    k("v_lshl_add_u32 v14, v2, 3, v12")
    k("v_mul_u32_u24 v14, %d, v14" % ph.RB)
    k("v_lshl_add_u32 v14, v13, 3, v14")
    k("v_add_u32 v14, %d, v14" % XB)
    if ph.qkv:
        k("v_mov_b32 %s, v14" % v(dst))
    else:
        for ft in range(4):
            k("v_xor_b32 v15, %d, v12" % ft)
            k("v_lshl_add_u32 %s, v15, 6, v14" % v(dst + ft))


def next_slot(k, r):
    k("s_add_u32 %s, %s, %d" % (s(r), s(r), SLOT))
    k("s_cmp_ge_u32 %s, %d" % (s(r), SLOTE))
    k("s_cselect_b32 %s, %d, %s" % (s(r), SLOT0, s(r)))


def compute_setup(k):
    k("s_waitcnt lgkmcnt(0)")
    k.srd(S_OD, S_WS, WS_END)
    lane_helpers(k)
    k("s_lshl_b32 %s, %s, 12" % (s(S_T), s(S_W)))
    k("v_lshrrev_b32 v3, 1, v1")
    k("v_and_b32 v3, 7, v3")
    k("v_xor_b32 v3, v3, v2")
    k("v_lshlrev_b32 v8, 7, v1")
    k("v_add_u32 v8, %s, v8" % s(S_T))
    for st in range(4):
        k("v_xor_b32 v9, %d, v3" % (2 * st))
        k("v_lshl_add_u32 %s, v9, 4, v8" % v(VXA + st))
    k("s_mov_b32 %s, %d" % (s(S_SLOT), SLOT0))


def compute_phase(k, ph, pre, first):
    F, RB = ph.F, ph.RB
    p = pre + ph.pre
    NA = 1 if ph.qkv else 4
    col_tile(k, ph)
    wfrag_addr(k, ph, VWA)
    for j in range(F * 16):
        k("v_mov_b32 %s, 0" % v(ACC + j))
    if first:
        for r in range(4):
            k("v_mov_b32 %s, 0" % v(SUM + r))
    k("s_mov_b32 %s, 0" % s(S_C))

    def rd_x(step, buf):
        k("ds_read_b128 %s, %s" % (v(XF[buf], 4), v(VX2 + step)))

    def rd_w(step, buf, ft):
        for u in range(2):
            if ph.qkv:
                k("ds_read_b64_tr_b16 %s, %s offset:%d" % (v(WF[buf] + 4 * ft + 2 * u, 2), v(VW2), step * 16 * RB + u * 4 * RB + ft * 64))
            else:
                k("ds_read_b64_tr_b16 %s, %s offset:%d" % (v(WF[buf] + 4 * ft + 2 * u, 2), v(VW2 + ft), step * 16 * RB + u * 4 * RB))

    def mfma(buf, ft):
        d = v(ACC + 16 * ft, 16)
        if ph.qkv and ft == 2:
            k("v_mfma_f32_32x32x16_bf16 %s, %s, %s, %s" % (d, v(XF[buf], 4), v(WF[buf] + 4 * ft, 4), d))
        else:
            k("v_mfma_f32_32x32x16_bf16 %s, %s, %s, %s" % (d, v(WF[buf] + 4 * ft, 4), v(XF[buf], 4), d))

    def stat(buf, r):
        k("v_dot2c_f32_bf16 %s, %s, %s" % (v(SUM + (r & 1)), s(S_ONE), v(XF[buf] + r)))
        k("v_dot2c_f32_bf16 %s, %s, %s" % (v(SQ + (r & 1)), v(XF[buf] + r), v(XF[buf] + r)))

    def set_slot():
        for st in range(4):
            k("v_add_u32 %s, %s, %s" % (v(VX2 + st), s(S_SLOT), v(VXA + st)))
        for j in range(NA):
            k("v_add_u32 %s, %s, %s" % (v(VW2 + j), s(S_SLOT), v(VWA + j)))

    k("s_barrier")
    if first:
        prof_mark(k, 2)
    set_slot()
    rd_x(0, 0)
    for ft in range(F):
        rd_w(0, 0, ft)
    k.label(p + "_cloop")
    for st in range(4):
        b, nb, ns = st & 1, (st + 1) & 1, (st + 1) & 3
        if st == 3:
            k("s_barrier")
            next_slot(k, S_SLOT)
            set_slot()
        for ft in range(F):
            newer = 2 * (F - 1 - ft) + (0 if ft == 0 else 1 + 2 * ft)
            k("s_waitcnt lgkmcnt(%d)" % newer)
            mfma(b, ft)
            if ft == 0:
                rd_x(ns, nb)
            rd_w(ns, nb, ft)
            if first:
                for r in range(4):
                    if r * F // 4 == ft:
                        stat(b, r)
    k("s_add_u32 %s, %s, 1" % (s(S_C), s(S_C)))
    k("s_cmp_lt_u32 %s, 8" % s(S_C))
    k("s_cbranch_scc1 %s_cloop" % p)
    k("s_waitcnt lgkmcnt(0)")
    if first:
        for r in (SUM, SQ):
            k("v_add_f32 %s, %s, %s" % (v(r), v(r), v(r + 1)))
            k("v_mov_b32 %s, %s" % (v(r + 1), v(r)))
            k("s_nop 1")
            k("v_permlane32_swap_b32 %s, %s" % (v(r + 1), v(r)))
            k("s_nop 1")
            k("v_add_f32 %s, %s, %s" % (v(r), v(r), v(r + 1)))
        k("v_mul_f32 %s, 0x%x, %s" % (v(SUM), f2u(1.0 / 512), v(SUM)))
        k("v_mul_f32 %s, 0x%x, %s" % (v(SQ), f2u(1.0 / 512), v(SQ)))
        k("v_fma_f32 %s, -%s, %s, %s" % (v(SQ), v(SUM), v(SUM), v(SQ)))
        k("v_max_f32 %s, 0, %s" % (v(SQ), v(SQ)))
        k("v_add_f32 %s, 0x%x, %s" % (v(SQ), f2u(1e-5), v(SQ)))
        k("v_rsq_f32 %s, %s" % (v(RS), v(SQ)))
        k("s_nop 0")
        k("v_mul_f32 %s, %s, %s" % (v(RM), v(SUM), v(RS)))
    if first:
        prof_mark(k, 3)
    epilogue(k, ph)


def epilogue(k, ph):
    T0 = 26
    k("v_lshlrev_b32 v12, 4, v2")
    k("s_lshl_b32 %s, %s, 2" % (s(S_T2), s(S_RB)))
    k("s_add_u32 %s, %s, %s" % (s(S_T2), s(S_T2), s(S_W)))
    if ph.qkv:
        cq = 0.25 * LOG2E
        k("s_lshl_b32 %s, %s, 7" % (s(S_T), s(S_W)))
        k("v_lshl_add_u32 v3, v1, 2, %s" % s(S_T))
        k("ds_write_b32 v3, %s offset:%d" % (v(RS), L_RS))
        k("ds_write_b32 v3, %s offset:%d" % (v(RM), L_RM))
        for ft in range(2):
            for g in range(4):
                k("ds_read_b128 %s, v12 offset:%d" % (v(T0 + 16 * ft + 4 * g, 4), L_CS + ft * 128 + g * 32))
        k("s_lshl_b32 %s, %s, 1" % (s(S_T), s(S_CT)))
        k("v_add_u32 v14, %s, v2" % s(S_T))
        k("v_lshlrev_b32 v15, 4, v1")
        k("v_lshl_add_u32 v18, v14, 16, v15")
        k("s_lshl_b32 %s, %s, 10" % (s(S_T), s(S_T2)))
        k("v_add_u32 v18, %s, v18" % s(S_T))
        k("v_lshl_add_u32 v19, v14, 17, v15")
        k("s_lshl_b32 %s, %s, 11" % (s(S_T), s(S_T2)))
        k("s_add_u32 %s, %s, 0x%x" % (s(S_T), s(S_T), WS_KV))
        k("v_add_u32 v19, %s, v19" % s(S_T))
        k("v_mul_f32 v20, 0x%x, %s" % (f2u(cq), v(RS)))
        k("v_mul_f32 v21, 0x%x, %s" % (f2u(cq), v(RM)))
        for ft, dst in ((0, 18), (1, 19)):
            k("s_waitcnt lgkmcnt(%d)" % (4 if ft == 0 else 0))
            A, T = ACC + 16 * ft, T0 + 16 * ft
            a_rs, a_rm = ("v20", "v21") if ft == 0 else (v(RS), v(RM))
            for r in range(16):
                k("v_mul_f32 %s, %s, %s" % (v(T + r), v(T + r), a_rm))
            for r in range(16):
                k("v_fma_f32 %s, %s, %s, -%s" % (v(A + r), v(A + r), a_rs, v(T + r)))
            for r in range(8):
                k("v_cvt_pk_bf16_f32 %s, %s, %s" % (v(A + r), v(A + 2 * r), v(A + 2 * r + 1)))
            k("buffer_store_dwordx4 %s, %s, %s, 0 offen" % (v(A, 4), v(dst), s(S_OD, 4)))
            k("buffer_store_dwordx4 %s, %s, %s, 0 offen offset:512" % (v(A + 4, 4), v(dst), s(S_OD, 4)))
            if ft == 0:
                k("s_lshl_b32 %s, %s, 7" % (s(S_T), s(S_W)))
                k("v_add_u32 v3, %s, v12" % s(S_T))
                for g in range(4):
                    k("ds_read_b128 %s, v3 offset:%d" % (v(T0 + 4 * g, 4), L_RS + g * 32))
        A = ACC + 32
        for g in range(4):
            k("ds_read_b128 %s, v3 offset:%d" % (v(T0 + 16 + 4 * g, 4), L_RM + g * 32))
        k("v_lshlrev_b32 v3, 2, v1")
        k("ds_read_b32 v20, v3 offset:%d" % (L_CS + 2 * 128))
        k("v_bfe_u32 v14, v1, 2, 1")
        k("v_lshrrev_b32 v15, 3, v1")
        k("v_and_b32 v21, 3, v1")
        k("v_and_b32 v22, 1, v15")
        k("v_lshrrev_b32 v15, 1, v15")
        k("v_lshl_add_u32 v21, v15, 2, v21")
        k("v_lshl_add_u32 v21, v22, 3, v21")
        k("v_lshlrev_b32 v21, 4, v21")
        k("s_lshl_b32 %s, %s, 1" % (s(S_T), s(S_CT)))
        k("v_add_u32 v14, %s, v14" % s(S_T))
        k("v_lshl_add_u32 v21, v14, 17, v21")
        k("v_lshl_add_u32 v21, v2, 8, v21")
        k("s_lshl_b32 %s, %s, 11" % (s(S_T), s(S_T2)))
        k("s_add_u32 %s, %s, 0x%x" % (s(S_T), s(S_T), WS_KV + 1024))
        k("v_add_u32 v21, %s, v21" % s(S_T))
        k("s_waitcnt lgkmcnt(0)")
        for r in range(16):
            k("v_mul_f32 %s, %s, v20" % (v(T0 + 16 + r), v(T0 + 16 + r)))
        for r in range(16):
            k("v_fma_f32 %s, %s, %s, -%s" % (v(A + r), v(A + r), v(T0 + r), v(T0 + 16 + r)))
        for r in range(8):
            k("v_cvt_pk_bf16_f32 %s, %s, %s" % (v(A + r), v(A + 2 * r), v(A + 2 * r + 1)))
        k("buffer_store_dwordx4 %s, v21, %s, 0 offen" % (v(A, 4), s(S_OD, 4)))
        k("buffer_store_dwordx4 %s, v21, %s, 0 offen offset:512" % (v(A + 4, 4), s(S_OD, 4)))
    else:
        k("v_lshlrev_b32 v13, 4, v0")
        k("s_mul_i32 %s, %s, %d" % (s(S_T), s(S_T2), WS_HO_ROW))
        k("s_lshl_b32 %s, %s, 13" % (s(S_T3), s(S_CT)))
        k("s_add_u32 %s, %s, %s" % (s(S_T), s(S_T), s(S_T3)))
        k("s_add_u32 %s, %s, 0x%x" % (s(S_T), s(S_T), WS_HO))
        k("v_add_u32 v18, %s, v13" % s(S_T))
        for ft in range(4):
            for g in range(4):
                k("ds_read_b128 %s, v12 offset:%d" % (v(T0 + 4 * g, 4), L_CS + ft * 128 + g * 32))
                k("ds_read_b128 %s, v12 offset:%d" % (v(T0 + 16 + 4 * g, 4), L_BI + ft * 128 + g * 32))
            k("s_waitcnt lgkmcnt(0)")
            A = ACC + 16 * ft
            for r in range(16):
                k("v_fma_f32 %s, -%s, %s, %s" % (v(T0 + r), v(T0 + r), v(RM), v(T0 + 16 + r)))
            for r in range(16):
                k("v_fma_f32 %s, %s, %s, %s" % (v(A + r), v(A + r), v(RS), v(T0 + r)))
            for r in range(16):
                k("v_max_f32 %s, 0, %s" % (v(A + r), v(A + r)))
            for r in range(16):
                k("v_mul_f32 %s, %s, %s" % (v(A + r), v(A + r), v(A + r)))
            for r in range(8):
                k("v_cvt_pk_bf16_f32 %s, %s, %s" % (v(A + r), v(A + 2 * r), v(A + 2 * r + 1)))
            k("buffer_store_dwordx4 %s, v18, %s, 0 offen offset:%d" % (v(A, 4), s(S_OD, 4), 2048 * (ft & 1)))
            k("buffer_store_dwordx4 %s, v18, %s, 0 offen offset:%d" % (v(A + 4, 4), s(S_OD, 4), 2048 * (ft & 1) + 1024))
            if ft == 1:
                k("v_add_u32 v18, 4096, v18")


def loader_setup(k):
    k("s_setprio 3")
    k("s_sub_u32 %s, %s, 4" % (s(S_LD), s(S_W)))
    k("v_lshrrev_b32 v12, 3, v0")
    k("v_and_b32 v13, 7, v0")
    k("v_lshrrev_b32 v3, 1, v12")
    for p in range(2):
        k("v_add_u32 v14, %d, v3" % (4 * p))
        k("v_and_b32 v14, 7, v14")
        k("v_xor_b32 v14, v14, v13")
        k("v_lshlrev_b32 v14, 4, v14")
        k("v_lshl_add_u32 %s, v12, 10, v14" % v(VXO + p))
    k("s_lshl_b32 %s, %s, 2" % (s(S_XO), s(S_RB)))
    k("s_add_u32 %s, %s, %s" % (s(S_XO), s(S_XO), s(S_LD)))
    k("s_lshl_b32 %s, %s, 15" % (s(S_XO), s(S_XO)))
    k("s_mov_b32 %s, %d" % (s(S_RSLOT), SLOT0))
    k("s_mov_b32 %s, %d" % (s(S_SLOT), SLOT0))
    k("s_waitcnt lgkmcnt(0)")
    k.srd(S_XD, S_X, 2048 * 1024)


def issue_x(k):
    k("s_lshl_b32 %s, %s, 12" % (s(S_T), s(S_LD)))
    k("s_add_u32 m0, %s, %s" % (s(S_T), s(S_RSLOT)))
    k("s_lshl_b32 %s, %s, 7" % (s(S_T2), s(S_CK)))
    k("s_add_u32 %s, %s, %s" % (s(S_T2), s(S_T2), s(S_XO)))
    for i in range(4):
        k("buffer_load_dwordx4 %s, %s, %s offen lds" % (v(VXO + (i & 1)), s(S_XD, 4), s(S_T2)))
        if i < 3:
            k("s_add_u32 m0, m0, 1024")
            k("s_add_u32 %s, %s, 8192" % (s(S_T2), s(S_T2)))


def issue_w(k, ph):
    k("s_mul_i32 %s, %s, %d" % (s(S_T), s(S_LD), ph.NW * 1024))
    k("s_add_u32 %s, %s, %s" % (s(S_T), s(S_T), s(S_RSLOT)))
    k("s_add_u32 m0, %s, %d" % (s(S_T), XB))
    k("s_mul_i32 %s, %s, %d" % (s(S_T2), s(S_CK), 64 * ph.wrow))
    k("s_add_u32 %s, %s, %s" % (s(S_T2), s(S_T2), s(S_WO)))
    for i in range(ph.NW):
        k("buffer_load_dwordx4 %s, %s, %s offen lds" % (v(VWO + (i if ph.qkv else 0)), s(S_WD, 4), s(S_T2)))
        if i < ph.NW - 1:
            k("s_add_u32 m0, m0, 1024")
            if ph.qkv:
                k("s_nop 0")
            else:
                k("s_add_u32 %s, %s, %d" % (s(S_T2), s(S_T2), 4 * ph.wrow))


def advance(k):
    k("s_add_u32 %s, %s, 1" % (s(S_CK), s(S_CK)))
    k("s_and_b32 %s, %s, 7" % (s(S_CK), s(S_CK)))
    next_slot(k, S_RSLOT)


def loader_w_setup(k, ph):
    col_tile(k, ph)
    k.srd(S_WD, S_WQ if ph.qkv else S_W1, 512 * ph.wrow)
    if ph.qkv:
        k("s_mov_b32 %s, 0x%x" % (s(S_T), (2 ** 32 + 191) // 192))
        for j in range(3):
            k("v_lshlrev_b32 v12, 4, v0")
            k("v_add_u32 v12, %d, v12" % (1024 * j))
            k("v_mul_hi_u32 v13, v12, %s" % s(S_T))
            k("v_mul_u32_u24 v14, 192, v13")
            k("v_sub_u32 v14, v12, v14")
            k("v_lshrrev_b32 v15, 6, v14")
            k("v_and_b32 v14, 63, v14")
            k("v_mul_u32_u24 v13, 3072, v13")
            k("v_lshl_add_u32 v13, v15, 10, v13")
            k("v_add_u32 %s, v13, v14" % v(VWO + j))
    else:
        k("v_lshrrev_b32 v12, 4, v0")
        k("v_bfe_u32 v13, v0, 2, 2")
        k("v_xor_b32 v13, v13, v12")
        k("v_lshlrev_b32 v13, 6, v13")
        k("v_and_b32 v14, 3, v0")
        k("v_lshl_add_u32 v13, v14, 4, v13")
        k("v_mul_u32_u24 v12, 3584, v12")
        k("v_add_u32 %s, v12, v13" % v(VWO))
    k("s_mul_i32 %s, %s, %d" % (s(S_WO), s(S_LD), 16 * ph.wrow))
    k("s_lshl_b32 %s, %s, %d" % (s(S_T), s(S_CT), 6 if ph.qkv else 8))
    k("s_add_u32 %s, %s, %s" % (s(S_WO), s(S_WO), s(S_T)))


def loader_prologue(k, ph):
    k("s_mov_b32 %s, %s" % (s(S_CK), s(S_ROT)))
    issue_x(k)
    loader_w_setup(k, ph)
    issue_w(k, ph)
    advance(k)
    issue_x(k)
    issue_w(k, ph)
    advance(k)


def loader_phase(k, ph, pre, nxt=None):
    F, RB = ph.F, ph.RB
    p = pre + ph.pre
    if not ph.qkv:
        k("v_and_b32 v3, 31, v0")
        k("v_lshrrev_b32 v12, 3, v3")
        k("v_bfe_u32 v13, v3, 2, 1")
        k("v_and_b32 v14, 3, v3")
        k("v_lshrrev_b32 v15, 1, v12")
        k("v_and_b32 v12, 1, v12")
        k("v_lshl_add_u32 v14, v12, 2, v14")
        k("v_lshl_add_u32 v14, v13, 3, v14")
        k("v_lshl_add_u32 v14, v15, 4, v14")
        k("s_lshl_b32 %s, %s, 7" % (s(S_T), s(S_CT)))
        k("s_lshl_b32 %s, %s, 5" % (s(S_T2), s(S_LD)))
        k("s_add_u32 %s, %s, %s" % (s(S_T), s(S_T), s(S_T2)))
        k("v_add_u32 v14, %s, v14" % s(S_T))
        k("v_lshlrev_b32 v14, 1, v14")
        k("global_load_ushort %s, v14, %s" % (v(VBI), s(S_B1, 2)))
    lane_helpers(k)
    wfrag_addr(k, ph, 8)
    if ph.qkv:
        k("s_lshl_b32 %s, %s, 6" % (s(S_T), s(S_LD)))
        k("v_add_u32 %s, %s, v8" % (v(VWL), s(S_T)))
    else:
        k("v_xor_b32 v15, %s, v12" % s(S_LD))
        k("v_sub_u32 v15, v15, v12")
        k("v_lshlrev_b32 v15, 6, v15")
        k("v_add_u32 %s, v8, v15" % v(VWL))
    k("v_mov_b32 %s, 0" % v(CSA))
    k("v_mov_b32 %s, 0" % v(CSA + 1))
    k("s_mov_b32 %s, 0" % s(S_C))
    extra = 0 if ph.qkv else 1
    k.label(p + "_lloop")
    k("s_cmp_ge_u32 %s, 7" % s(S_C))
    k("s_cbranch_scc1 %s_llast" % p)
    if extra:
        k("s_cmp_eq_u32 %s, 0" % s(S_C))
        k("s_cbranch_scc0 %s_lw" % p)
        k("s_waitcnt vmcnt(%d)" % (ph.NPC + extra))
        k("s_branch %s_lbar" % p)
        k.label(p + "_lw")
    k("s_waitcnt vmcnt(%d)" % ph.NPC)
    k("s_branch %s_lbar" % p)
    k.label(p + "_llast")
    k("s_waitcnt vmcnt(0)")
    k.label(p + "_lbar")
    k("s_barrier")
    k("s_cmp_ge_u32 %s, 6" % s(S_C))
    k("s_cbranch_scc1 %s_lnoissue" % p)
    issue_x(k)
    issue_w(k, ph)
    advance(k)
    k.label(p + "_lnoissue")
    if ph.qkv:
        k("s_cmp_eq_u32 %s, 3" % s(S_LD))
        k("s_cbranch_scc1 %s_nocs" % p)
    k("v_add_u32 %s, %s, %s" % (v(VWL2), s(S_SLOT), v(VWL)))
    for st in range(4):
        for u in range(2):
            k("ds_read_b64_tr_b16 %s, %s offset:%d" % (v(LW + 4 * st + 2 * u, 2), v(VWL2), st * 16 * RB + u * 4 * RB))
    k("s_waitcnt lgkmcnt(0)")
    for j in range(16):
        k("v_dot2c_f32_bf16 %s, %s, %s" % (v(CSA + (j & 1)), s(S_ONE), v(LW + j)))
    if ph.qkv:
        k.label(p + "_nocs")
    next_slot(k, S_SLOT)
    k("s_add_u32 %s, %s, 1" % (s(S_C), s(S_C)))
    k("s_cmp_lt_u32 %s, 8" % s(S_C))
    k("s_cbranch_scc1 %s_lloop" % p)
    k("v_add_f32 %s, %s, %s" % (v(CSA), v(CSA), v(CSA + 1)))
    k("v_mov_b32 v12, %s" % v(CSA))
    k("s_nop 1")
    k("v_permlane32_swap_b32 v12, %s" % v(CSA))
    k("s_nop 1")
    k("v_add_f32 %s, %s, v12" % (v(CSA), v(CSA)))
    k("s_lshl_b32 %s, %s, 7" % (s(S_T), s(S_LD)))
    k("v_lshl_add_u32 v12, v1, 2, %s" % s(S_T))
    k("ds_write_b32 v12, %s offset:%d" % (v(CSA), L_CS))
    if not ph.qkv:
        k("v_lshlrev_b32 %s, 16, %s" % (v(VBI), v(VBI)))
        k("ds_write_b32 v12, %s offset:%d" % (v(VBI), L_BI))
    k("s_waitcnt lgkmcnt(0)")
    k("s_barrier")


def finish(k, wave_reg):
    k("s_waitcnt vmcnt(0)")
    prof_mark(k, 5)
    prof_rt(k, 6)
    prof_store(k, S_WS, wave_reg, 26)
    k("s_endpgm")


def gen(k, name, pre, which):
    ph = Phase(3 if which == "qkv" else 4)
    nwg = 16 * (16 if ph.qkv else 14)
    k.kernel_begin(name)
    entry(k, pre, nwg, [ph])
    compute_setup(k)
    compute_phase(k, ph, pre, True)
    finish(k, S_W)
    k.label(pre + "_loader")
    loader_setup(k)
    prof_mark(k, 2)
    loader_prologue(k, ph)
    prof_mark(k, 3)
    loader_phase(k, ph, pre)
    prof_mark(k, 4)
    finish(k, S_W)
    k.label(pre + "_exit")
    k.kernel_end(name, 136, 136)
    return nwg, LDS_BYTES
```

```python
import common
from common import *

XB = 16384
OPT = set()

S_X, S_WM, S_WS, S_B1 = 4, 6, 8, 10
S_XD, S_WD, S_OD = 12, 16, 20
S_W, S_RB, S_CT, S_T, S_T2, S_C, S_SLOT, S_XO, S_WO, S_LD = 24, 25, 26, 27, 28, 29, 30, 31, 32, 33
S_ONE = 34
S_RSLOT = 35
S_T3 = 36
S_ROT = 37
S_CK = 38


def gen_gemm1(k, name, F, pre):
    qkv = F == 3
    RB = F * 64
    WB = 64 * RB
    SLOT = XB + WB
    R = 4
    SLOT0 = 2048
    SLOTE = SLOT0 + R * SLOT
    L_RS, L_RM, L_CS, L_BI = 0, 512, 1024, 1536
    lds = SLOTE
    NW = 3 if qkv else 4
    NPC = 4 + NW
    ncol = 16 if qkv else 14
    nwg = 16 * ncol
    wrow = 3072 if qkv else 3584

    k.kernel_begin(name)
    k("s_cmp_ge_u32 s2, %d" % nwg)
    k("s_cbranch_scc1 %s_exit" % pre)
    prof_start(k)
    k("s_load_dwordx2 %s, s[0:1], %d" % (s(S_X, 2), KA_X))
    k("s_load_dwordx2 %s, s[0:1], %d" % (s(S_WM, 2), KA_WQKV if qkv else KA_W1))
    k("s_load_dwordx2 %s, s[0:1], %d" % (s(S_WS, 2), KA_WS))
    k("s_load_dwordx2 %s, s[0:1], %d" % (s(S_B1, 2), KA_B1))
    nh = 8 if qkv else 7
    k("s_lshr_b32 %s, s2, 3" % s(S_T))
    k("s_and_b32 %s, %s, 3" % (s(S_T2), s(S_T)))
    k("s_lshr_b32 %s, %s, 2" % (s(S_T), s(S_T)))
    k("s_lshl_b32 %s, %s, 1" % (s(S_ROT), s(S_T2)))
    k("s_add_u32 %s, %s, %s" % (s(S_ROT), s(S_ROT), s(S_T)))
    k("s_and_b32 %s, %s, 7" % (s(S_ROT), s(S_ROT)))
    k("s_bfe_u32 %s, s2, 0x20001" % s(S_RB))
    k("s_lshl_b32 %s, %s, 2" % (s(S_RB), s(S_RB)))
    k("s_add_u32 %s, %s, %s" % (s(S_RB), s(S_RB), s(S_T2)))
    k("s_and_b32 %s, s2, 1" % s(S_CT))
    k("s_mul_i32 %s, %s, %d" % (s(S_CT), s(S_CT), nh))
    k("s_add_u32 %s, %s, %s" % (s(S_CT), s(S_CT), s(S_T)))
    k("v_lshrrev_b32 v1, 6, v0")
    k("v_and_b32 v0, 63, v0")
    k("v_readfirstlane_b32 %s, v1" % s(S_W))
    k("s_mov_b32 %s, 0x3f803f80" % s(S_ONE))
    k("s_waitcnt lgkmcnt(0)")
    k.srd(S_XD, S_X, 2048 * 1024)
    k.srd(S_WD, S_WM, 512 * wrow)
    k.srd(S_OD, S_WS, WS_END)
    k("v_and_b32 v1, 31, v0")
    k("v_lshrrev_b32 v2, 5, v0")
    VXA = 4
    k("s_and_b32 %s, %s, 3" % (s(S_T), s(S_W)))
    k("s_lshl_b32 %s, %s, 12" % (s(S_T), s(S_T)))
    k("v_lshrrev_b32 v3, 1, v1")
    k("v_and_b32 v3, 7, v3")
    k("v_xor_b32 v3, v3, v2")
    k("v_lshlrev_b32 v8, 7, v1")
    k("v_add_u32 v8, %s, v8" % s(S_T))
    for st in range(4):
        k("v_xor_b32 v9, %d, v3" % (2 * st))
        k("v_lshl_add_u32 %s, v9, 4, v8" % v(VXA + st))
    VWA = 8
    k("v_bfe_u32 v12, v0, 2, 2")
    k("v_and_b32 v13, 3, v0")
    k("v_bfe_u32 v14, v0, 4, 1")
    k("v_lshl_add_u32 v13, v14, 2, v13")
    k("v_and_b32 v14, 1, v13")
    k("v_lshrrev_b32 v15, 1, v13")
    if qkv:
        k("v_lshl_add_u32 v13, v14, 2, v15")
    else:
        k("v_lshrrev_b32 v16, 1, v15")
        k("v_and_b32 v15, 1, v15")
        k("v_lshl_add_u32 v15, v14, 1, v15")
        k("v_lshl_add_u32 v13, v16, 2, v15")
    k("v_lshl_add_u32 v14, v2, 3, v12")
    k("v_mul_u32_u24 v14, %d, v14" % RB)
    k("v_lshl_add_u32 v14, v13, 3, v14")
    k("v_add_u32 v14, %d, v14" % XB)
    if qkv:
        k("v_mov_b32 %s, v14" % v(VWA))
    else:
        for ft in range(4):
            k("v_xor_b32 v15, %d, v12" % ft)
            k("v_lshl_add_u32 %s, v15, 6, v14" % v(VWA + ft))
    k("s_cmp_ge_u32 %s, 4" % s(S_W))
    k("s_cbranch_scc1 %s_loader" % pre)

    ACC = 64
    XF = [16, 20]
    WF = [24, 40]
    CA = 12
    VX2, VW2 = 56, 60
    for j in range(F * 16):
        k("v_mov_b32 %s, 0" % v(ACC + j))
    k("s_mov_b32 %s, 0" % s(S_C))
    k("s_mov_b32 %s, %d" % (s(S_SLOT), SLOT0))

    def frag_reads(step, buf, xa, wa):
        if "noread" in OPT:
            return
        k("ds_read_b128 %s, %s" % (v(XF[buf], 4), v(xa + step)))
        if "notr" in OPT:
            return
        for ft in range(F):
            for u in range(2):
                if qkv:
                    k("ds_read_b64_tr_b16 %s, %s offset:%d" % (v(WF[buf] + 4 * ft + 2 * u, 2), v(wa), step * 16 * RB + u * 4 * RB + ft * 64))
                else:
                    k("ds_read_b64_tr_b16 %s, %s offset:%d" % (v(WF[buf] + 4 * ft + 2 * u, 2), v(wa + ft), step * 16 * RB + u * 4 * RB))

    def mfmas(buf):
        for ft in range(F):
            d = v(ACC + 16 * ft, 16)
            if qkv and ft == 2:
                k("v_mfma_f32_32x32x16_bf16 %s, %s, %s, %s" % (d, v(XF[buf], 4), v(WF[buf] + 4 * ft, 4), d))
            else:
                k("v_mfma_f32_32x32x16_bf16 %s, %s, %s, %s" % (d, v(WF[buf] + 4 * ft, 4), v(XF[buf], 4), d))

    NA = 1 if qkv else 4
    nrd = 1 + 2 * F

    def set_slot(dx, dw):
        for st in range(4):
            k("v_add_u32 %s, %s, %s" % (v(dx + st), s(S_SLOT), v(VXA + st)))
        for j in range(NA):
            k("v_add_u32 %s, %s, %s" % (v(dw + j), s(S_SLOT), v(VWA + j)))

    SUM, SQ = 12, 14
    for r in range(4):
        k("v_mov_b32 %s, 0" % v(SUM + r))
    k("s_mov_b32 %s, 0x3f803f80" % s(S_ONE))

    def xstats(buf):
        for r in range(4):
            k("v_dot2c_f32_bf16 %s, %s, %s" % (v(SUM + (r & 1)), s(S_ONE), v(XF[buf] + r)))
            k("v_dot2c_f32_bf16 %s, %s, %s" % (v(SQ + (r & 1)), v(XF[buf] + r), v(XF[buf] + r)))

    k("s_barrier")
    prof_mark(k, 2)
    set_slot(VX2, VW2)
    frag_reads(0, 0, VX2, VW2)
    k.label(pre + "_cloop")
    for st in range(4):
        if st < 3:
            frag_reads(st + 1, (st + 1) & 1, VX2, VW2)
        else:
            k("s_barrier")
            k("s_add_u32 %s, %s, %d" % (s(S_SLOT), s(S_SLOT), SLOT))
            k("s_cmp_ge_u32 %s, %d" % (s(S_SLOT), SLOTE))
            k("s_cselect_b32 %s, %d, %s" % (s(S_SLOT), SLOT0, s(S_SLOT)))
            set_slot(VX2, VW2)
            frag_reads(0, 0, VX2, VW2)
        k("s_waitcnt lgkmcnt(%d)" % nrd)
        if "nomfma" not in OPT:
            mfmas(st & 1)
        if "noxs" not in OPT:
            xstats(st & 1)
    k("s_add_u32 %s, %s, 1" % (s(S_C), s(S_C)))
    k("s_cmp_lt_u32 %s, 8" % s(S_C))
    k("s_cbranch_scc1 %s_cloop" % pre)
    k("s_waitcnt lgkmcnt(0)")
    for r in (SUM, SQ):
        k("v_add_f32 %s, %s, %s" % (v(r), v(r), v(r + 1)))
        k("v_mov_b32 %s, %s" % (v(r + 1), v(r)))
        k("s_nop 1")
        k("v_permlane32_swap_b32 %s, %s" % (v(r + 1), v(r)))
        k("s_nop 1")
        k("v_add_f32 %s, %s, %s" % (v(r), v(r), v(r + 1)))
    k("v_mul_f32 %s, 0x%x, %s" % (v(SUM), f2u(1.0 / 512), v(SUM)))
    k("v_mul_f32 %s, 0x%x, %s" % (v(SQ), f2u(1.0 / 512), v(SQ)))
    k("v_fma_f32 %s, -%s, %s, %s" % (v(SQ), v(SUM), v(SUM), v(SQ)))
    k("v_max_f32 %s, 0, %s" % (v(SQ), v(SQ)))
    k("v_add_f32 %s, 0x%x, %s" % (v(SQ), f2u(1e-5), v(SQ)))
    k("v_rsq_f32 v16, %s" % v(SQ))
    k("s_nop 0")
    k("v_mul_f32 v17, %s, v16" % v(SUM))
    prof_mark(k, 3)
    RS, RM = 16, 17
    if qkv:
        k("s_and_b32 %s, %s, 3" % (s(S_T), s(S_W)))
        k("s_lshl_b32 %s, %s, 7" % (s(S_T), s(S_T)))
        k("v_lshl_add_u32 v3, v1, 2, %s" % s(S_T))
        k("ds_write_b32 v3, %s offset:%d" % (v(RS), L_RS))
        k("ds_write_b32 v3, %s offset:%d" % (v(RM), L_RM))
    k("v_lshlrev_b32 v12, 4, v2")
    T0 = 24
    k("s_lshl_b32 %s, %s, 2" % (s(S_T2), s(S_RB)))
    k("s_and_b32 %s, %s, 3" % (s(S_T), s(S_W)))
    k("s_add_u32 %s, %s, %s" % (s(S_T2), s(S_T2), s(S_T)))
    k("v_lshlrev_b32 v13, 4, v0")
    if qkv:
        cq = 0.25 * LOG2E
        k("s_lshl_b32 %s, %s, 1" % (s(S_T), s(S_CT)))
        k("v_add_u32 v14, %s, v2" % s(S_T))
        k("v_lshlrev_b32 v15, 4, v1")
        k("v_lshl_add_u32 v18, v14, 16, v15")
        k("s_lshl_b32 %s, %s, 10" % (s(S_T), s(S_T2)))
        k("v_add_u32 v18, %s, v18" % s(S_T))
        k("v_lshl_add_u32 v19, v14, 17, v15")
        k("s_lshl_b32 %s, %s, 11" % (s(S_T), s(S_T2)))
        k("s_add_u32 %s, %s, 0x%x" % (s(S_T), s(S_T), WS_KV))
        k("v_add_u32 v19, %s, v19" % s(S_T))
        for ft, dst, scale in ((0, 18, cq), (1, 19, None)):
            for g in range(4):
                k("ds_read_b128 %s, v12 offset:%d" % (v(T0 + 4 * g, 4), L_CS + ft * 128 + g * 32))
            k("s_waitcnt lgkmcnt(0)")
            if scale:
                k("v_mul_f32 v20, 0x%x, %s" % (f2u(scale), v(RS)))
                k("v_mul_f32 v21, 0x%x, %s" % (f2u(scale), v(RM)))
            else:
                k("v_mov_b32 v20, %s" % v(RS))
                k("v_mov_b32 v21, %s" % v(RM))
            A = ACC + 16 * ft
            for r in range(16):
                k("v_mul_f32 %s, %s, v21" % (v(T0 + r), v(T0 + r)))
            for r in range(16):
                k("v_fma_f32 %s, %s, v20, -%s" % (v(A + r), v(A + r), v(T0 + r)))
            for r in range(8):
                k("v_cvt_pk_bf16_f32 %s, %s, %s" % (v(A + r), v(A + 2 * r), v(A + 2 * r + 1)))
            k("buffer_store_dwordx4 %s, %s, %s, 0 offen" % (v(A, 4), v(dst), s(S_OD, 4)))
            k("buffer_store_dwordx4 %s, %s, %s, 0 offen offset:512" % (v(A + 4, 4), v(dst), s(S_OD, 4)))
        A = ACC + 32
        k("s_and_b32 %s, %s, 3" % (s(S_T), s(S_W)))
        k("s_lshl_b32 %s, %s, 7" % (s(S_T), s(S_T)))
        k("v_add_u32 v3, %s, v12" % s(S_T))
        for g in range(4):
            k("ds_read_b128 %s, v3 offset:%d" % (v(T0 + 4 * g, 4), L_RS + g * 32))
            k("ds_read_b128 %s, v3 offset:%d" % (v(T0 + 16 + 4 * g, 4), L_RM + g * 32))
        k("v_lshlrev_b32 v3, 2, v1")
        k("ds_read_b32 v20, v3 offset:%d" % (L_CS + 2 * 128))
        k("v_bfe_u32 v14, v1, 2, 1")
        k("v_lshrrev_b32 v15, 3, v1")
        k("v_and_b32 v21, 3, v1")
        k("v_and_b32 v22, 1, v15")
        k("v_lshrrev_b32 v15, 1, v15")
        k("v_lshl_add_u32 v21, v15, 2, v21")
        k("v_lshl_add_u32 v21, v22, 3, v21")
        k("v_lshlrev_b32 v21, 4, v21")
        k("s_lshl_b32 %s, %s, 1" % (s(S_T), s(S_CT)))
        k("v_add_u32 v14, %s, v14" % s(S_T))
        k("v_lshl_add_u32 v21, v14, 17, v21")
        k("v_lshl_add_u32 v21, v2, 8, v21")
        k("s_lshl_b32 %s, %s, 11" % (s(S_T), s(S_T2)))
        k("s_add_u32 %s, %s, 0x%x" % (s(S_T), s(S_T), WS_KV + 1024))
        k("v_add_u32 v21, %s, v21" % s(S_T))
        k("s_waitcnt lgkmcnt(0)")
        for r in range(16):
            k("v_mul_f32 %s, %s, v20" % (v(T0 + 16 + r), v(T0 + 16 + r)))
        for r in range(16):
            k("v_fma_f32 %s, %s, %s, -%s" % (v(A + r), v(A + r), v(T0 + r), v(T0 + 16 + r)))
        for r in range(8):
            k("v_cvt_pk_bf16_f32 %s, %s, %s" % (v(A + r), v(A + 2 * r), v(A + 2 * r + 1)))
        k("buffer_store_dwordx4 %s, v21, %s, 0 offen" % (v(A, 4), s(S_OD, 4)))
        k("buffer_store_dwordx4 %s, v21, %s, 0 offen offset:512" % (v(A + 4, 4), s(S_OD, 4)))
    else:
        k("s_mul_i32 %s, %s, %d" % (s(S_T), s(S_T2), WS_HO_ROW))
        k("s_lshl_b32 %s, %s, 13" % (s(S_T3), s(S_CT)))
        k("s_add_u32 %s, %s, %s" % (s(S_T), s(S_T), s(S_T3)))
        k("s_add_u32 %s, %s, 0x%x" % (s(S_T), s(S_T), WS_HO))
        k("v_add_u32 v18, %s, v13" % s(S_T))
        for ft in range(4):
            for g in range(4):
                k("ds_read_b128 %s, v12 offset:%d" % (v(T0 + 4 * g, 4), L_CS + ft * 128 + g * 32))
                k("ds_read_b128 %s, v12 offset:%d" % (v(T0 + 16 + 4 * g, 4), L_BI + ft * 128 + g * 32))
            k("s_waitcnt lgkmcnt(0)")
            A = ACC + 16 * ft
            for r in range(16):
                k("v_fma_f32 %s, -%s, %s, %s" % (v(T0 + r), v(T0 + r), v(RM), v(T0 + 16 + r)))
            for r in range(16):
                k("v_fma_f32 %s, %s, %s, %s" % (v(A + r), v(A + r), v(RS), v(T0 + r)))
            for r in range(16):
                k("v_max_f32 %s, 0, %s" % (v(A + r), v(A + r)))
            for r in range(16):
                k("v_mul_f32 %s, %s, %s" % (v(A + r), v(A + r), v(A + r)))
            for r in range(8):
                k("v_cvt_pk_bf16_f32 %s, %s, %s" % (v(A + r), v(A + 2 * r), v(A + 2 * r + 1)))
            k("buffer_store_dwordx4 %s, v18, %s, 0 offen offset:%d" % (v(A, 4), s(S_OD, 4), 2048 * (ft & 1)))
            k("buffer_store_dwordx4 %s, v18, %s, 0 offen offset:%d" % (v(A + 4, 4), s(S_OD, 4), 2048 * (ft & 1) + 1024))
            if ft == 1:
                k("v_add_u32 v18, 4096, v18")
    k("s_waitcnt vmcnt(0)")
    prof_mark(k, 5)
    prof_rt(k, 6)
    prof_store(k, S_WS, S_W, 24)
    k("s_endpgm")

    k.label(pre + "_loader")
    k("s_sub_u32 %s, %s, 4" % (s(S_LD), s(S_W)))
    VXO = 16
    k("v_lshrrev_b32 v12, 3, v0")
    k("v_and_b32 v13, 7, v0")
    for p in range(2):
        k("v_lshrrev_b32 v14, 1, v12")
        k("v_add_u32 v14, %d, v14" % (4 * p))
        k("v_and_b32 v14, 7, v14")
        k("v_xor_b32 v14, v14, v13")
        k("v_lshlrev_b32 v14, 4, v14")
        k("v_lshl_add_u32 %s, v12, 10, v14" % v(VXO + p))
    VWO = 18
    if qkv:
        for j in range(3):
            k("v_lshlrev_b32 v12, 4, v0")
            k("v_add_u32 v12, %d, v12" % (1024 * j))
            k("s_mov_b32 %s, 0x%x" % (s(S_T), (2 ** 32 + 191) // 192))
            k("v_mul_hi_u32 v13, v12, %s" % s(S_T))
            k("v_mul_u32_u24 v14, 192, v13")
            k("v_sub_u32 v14, v12, v14")
            k("v_lshrrev_b32 v15, 6, v14")
            k("v_and_b32 v14, 63, v14")
            k("v_mul_u32_u24 v13, 3072, v13")
            k("v_lshl_add_u32 v13, v15, 10, v13")
            k("v_add_u32 %s, v13, v14" % v(VWO + j))
    else:
        k("v_lshrrev_b32 v12, 4, v0")
        k("v_bfe_u32 v13, v0, 2, 2")
        k("v_xor_b32 v13, v13, v12")
        k("v_lshlrev_b32 v13, 6, v13")
        k("v_and_b32 v14, 3, v0")
        k("v_lshl_add_u32 v13, v14, 4, v13")
        k("v_mul_u32_u24 v12, 3584, v12")
        k("v_add_u32 %s, v12, v13" % v(VWO))
    k("s_lshl_b32 %s, %s, 2" % (s(S_XO), s(S_RB)))
    k("s_add_u32 %s, %s, %s" % (s(S_XO), s(S_XO), s(S_LD)))
    k("s_lshl_b32 %s, %s, 15" % (s(S_XO), s(S_XO)))
    k("s_mul_i32 %s, %s, %d" % (s(S_WO), s(S_LD), 16 * wrow))
    k("s_lshl_b32 %s, %s, %d" % (s(S_T), s(S_CT), 6 if qkv else 8))
    k("s_add_u32 %s, %s, %s" % (s(S_WO), s(S_WO), s(S_T)))

    def issue_chunk():
        k("s_lshl_b32 %s, %s, 12" % (s(S_T), s(S_LD)))
        k("s_add_u32 %s, %s, %s" % (s(S_T), s(S_T), s(S_RSLOT)))
        k("s_mov_b32 m0, %s" % s(S_T))
        k("s_lshl_b32 %s, %s, 7" % (s(S_T2), s(S_CK)))
        k("s_add_u32 %s, %s, %s" % (s(S_T2), s(S_T2), s(S_XO)))
        for i in range(4):
            k("buffer_load_dwordx4 %s, %s, %s offen lds" % (v(VXO + (i & 1)), s(S_XD, 4), s(S_T2)))
            if i < 3:
                k("s_add_u32 m0, m0, 1024")
                k("s_add_u32 %s, %s, 8192" % (s(S_T2), s(S_T2)))
        k("s_mul_i32 %s, %s, %d" % (s(S_T), s(S_LD), NW * 1024))
        k("s_add_u32 %s, %s, %s" % (s(S_T), s(S_T), s(S_RSLOT)))
        k("s_add_u32 m0, %s, %d" % (s(S_T), XB))
        k("s_mul_i32 %s, %s, %d" % (s(S_T2), s(S_CK), 64 * wrow))
        k("s_add_u32 %s, %s, %s" % (s(S_T2), s(S_T2), s(S_WO)))
        for i in range(NW):
            k("buffer_load_dwordx4 %s, %s, %s offen lds" % (v(VWO + (i if qkv else 0)), s(S_WD, 4), s(S_T2)))
            if i < NW - 1:
                k("s_add_u32 m0, m0, 1024")
                if qkv:
                    k("s_nop 0")
                else:
                    k("s_add_u32 %s, %s, %d" % (s(S_T2), s(S_T2), 4 * wrow))
        k("s_add_u32 %s, %s, 1" % (s(S_CK), s(S_CK)))
        k("s_and_b32 %s, %s, 7" % (s(S_CK), s(S_CK)))
        k("s_add_u32 %s, %s, %d" % (s(S_RSLOT), s(S_RSLOT), SLOT))
        k("s_cmp_ge_u32 %s, %d" % (s(S_RSLOT), SLOTE))
        k("s_cselect_b32 %s, %d, %s" % (s(S_RSLOT), SLOT0, s(S_RSLOT)))

    if not qkv:
        k("v_lshrrev_b32 v12, 3, v1")
        k("v_bfe_u32 v13, v1, 2, 1")
        k("v_and_b32 v14, 3, v1")
        k("v_lshrrev_b32 v15, 1, v12")
        k("v_and_b32 v12, 1, v12")
        k("v_lshl_add_u32 v14, v12, 2, v14")
        k("v_lshl_add_u32 v14, v13, 3, v14")
        k("v_lshl_add_u32 v14, v15, 4, v14")
        k("s_lshl_b32 %s, %s, 7" % (s(S_T), s(S_CT)))
        k("s_lshl_b32 %s, %s, 5" % (s(S_T2), s(S_LD)))
        k("s_add_u32 %s, %s, %s" % (s(S_T), s(S_T), s(S_T2)))
        k("v_add_u32 v14, %s, v14" % s(S_T))
        k("v_lshlrev_b32 v14, 1, v14")
        k("global_load_ushort v27, v14, %s" % s(S_B1, 2))
    k("s_mov_b32 %s, %d" % (s(S_RSLOT), SLOT0))
    k("s_mov_b32 %s, %s" % (s(S_CK), s(S_ROT)))
    for c in range(2):
        issue_chunk()
    CSA = 24
    k("v_mov_b32 %s, 0" % v(CSA))
    k("v_mov_b32 %s, 0" % v(CSA + 1))
    k("s_mov_b32 %s, %d" % (s(S_SLOT), SLOT0))
    LX, LW = 32, 48
    VX2, VW2, VWL = 28, 64, 65
    if qkv:
        k("s_lshl_b32 %s, %s, 6" % (s(S_T), s(S_LD)))
        k("v_add_u32 %s, %s, %s" % (v(VWL), s(S_T), v(VWA)))
    else:
        k("v_bfe_u32 v12, v0, 2, 2")
        k("v_xor_b32 v15, %s, v12" % s(S_LD))
        k("v_sub_u32 v15, v15, v12")
        k("v_lshlrev_b32 v15, 6, v15")
        k("v_add_u32 %s, %s, v15" % (v(VWL), v(VWA)))
    k("s_mov_b32 %s, 0" % s(S_C))
    k.label(pre + "_lloop")
    k("s_cmp_ge_u32 %s, 7" % s(S_C))
    k("s_cbranch_scc1 %s_llast" % pre)
    k("s_waitcnt vmcnt(%d)" % NPC)
    k("s_branch %s_lbar" % pre)
    k.label(pre + "_llast")
    k("s_waitcnt vmcnt(0)")
    k.label(pre + "_lbar")
    k("s_barrier")
    k("s_cmp_ge_u32 %s, 6" % s(S_C))
    k("s_cbranch_scc1 %s_lnoissue" % pre)
    if "nodma" not in OPT:
        issue_chunk()
    k.label(pre + "_lnoissue")
    if qkv:
        k("s_cmp_eq_u32 %s, 3" % s(S_LD))
        k("s_cbranch_scc1 %s_nocs" % pre)
    if "nocs" in OPT:
        k("s_branch %s_nocs2" % pre)
    k("v_add_u32 %s, %s, %s" % (v(VW2), s(S_SLOT), v(VWL)))
    for st in range(4):
        for u in range(2):
            k("ds_read_b64_tr_b16 %s, %s offset:%d" % (v(LW + 4 * st + 2 * u, 2), v(VW2), st * 16 * RB + u * 4 * RB))
    k("s_waitcnt lgkmcnt(0)")
    for j in range(16):
        k("v_dot2c_f32_bf16 %s, %s, %s" % (v(CSA + (j & 1)), s(S_ONE), v(LW + j)))
    if qkv:
        k.label(pre + "_nocs")
    k.label(pre + "_nocs2")
    k("s_add_u32 %s, %s, %d" % (s(S_SLOT), s(S_SLOT), SLOT))
    k("s_cmp_ge_u32 %s, %d" % (s(S_SLOT), SLOTE))
    k("s_cselect_b32 %s, %d, %s" % (s(S_SLOT), SLOT0, s(S_SLOT)))
    k("s_add_u32 %s, %s, 1" % (s(S_C), s(S_C)))
    k("s_cmp_lt_u32 %s, 8" % s(S_C))
    k("s_cbranch_scc1 %s_lloop" % pre)
    k("v_add_f32 %s, %s, %s" % (v(CSA), v(CSA), v(CSA + 1)))
    k("v_mov_b32 v12, %s" % v(CSA))
    k("s_nop 1")
    k("v_permlane32_swap_b32 v12, %s" % v(CSA))
    k("s_nop 1")
    k("v_add_f32 %s, %s, v12" % (v(CSA), v(CSA)))
    k("s_lshl_b32 %s, %s, 7" % (s(S_T), s(S_LD)))
    k("v_lshl_add_u32 v12, v1, 2, %s" % s(S_T))
    k("ds_write_b32 v12, %s offset:%d" % (v(CSA), L_CS))
    if not qkv:
        k("v_lshlrev_b32 v27, 16, v27")
        k("ds_write_b32 v12, v27 offset:%d" % L_BI)
    k("s_waitcnt lgkmcnt(0)")
    k("s_barrier")
    prof_mark(k, 3)
    prof_mark(k, 5)
    prof_rt(k, 6)
    prof_store(k, S_WS, S_W, 24)
    k.label(pre + "_exit")
    k.kernel_end(name, 128, 128)
    return nwg, lds
```

```python
import common
from common import *

OPT = set()
F = 7
XB, WQB, WFB = 16384, 12288, 16384
OFF_WQ, OFF_WF = XB, XB + WQB
SLOT = XB + WQB + WFB
R = 3
SLOT0 = 3072
SLOTE = SLOT0 + R * SLOT
L_RS, L_RM, L_CS, L_BI = 0, 512, 1024, 2048
LDS_BYTES = SLOTE
NPC = 11

S_X, S_WQ, S_WS, S_B1, S_W1 = 4, 6, 8, 10, 40
S_XD, S_WQD, S_OD, S_W1D = 12, 16, 20, 44
S_W, S_RB, S_CT, S_T, S_T2, S_C, S_SLOT, S_XO, S_WO, S_LD = 24, 25, 26, 27, 28, 29, 30, 31, 32, 33
S_RSLOT, S_T3, S_ROT, S_CK, S_CTL, S_CF, S_WO1, S_MASK = 35, 36, 37, 38, 39, 42, 43, 48

VXA, VWQ, VWF = 4, 8, 9
VX2, VQ2, VF2 = 13, 17, 18
SEL = 22
CSA = 26
RS, RM = 34, 35
XF = [36, 40]
WF = [44, 72]
ACC = 100
NV = 216


def entry(k, pre):
    k("s_cmp_ge_u32 s2, 256")
    k("s_cbranch_scc1 %s_exit" % pre)
    prof_start(k)
    k("s_load_dwordx2 %s, s[0:1], %d" % (s(S_X, 2), KA_X))
    k("s_load_dwordx2 %s, s[0:1], %d" % (s(S_WQ, 2), KA_WQKV))
    k("s_load_dwordx2 %s, s[0:1], %d" % (s(S_W1, 2), KA_W1))
    k("s_load_dwordx2 %s, s[0:1], %d" % (s(S_WS, 2), KA_WS))
    k("s_load_dwordx2 %s, s[0:1], %d" % (s(S_B1, 2), KA_B1))
    k("v_lshrrev_b32 v1, 6, v0")
    k("v_and_b32 v0, 63, v0")
    k("v_readfirstlane_b32 %s, v1" % s(S_W))
    k("s_lshr_b32 %s, s2, 3" % s(S_T))
    k("s_and_b32 %s, %s, 3" % (s(S_T2), s(S_T)))
    k("s_lshr_b32 %s, %s, 2" % (s(S_CTL), s(S_T)))
    k("s_lshl_b32 %s, %s, 1" % (s(S_ROT), s(S_T2)))
    k("s_add_u32 %s, %s, %s" % (s(S_ROT), s(S_ROT), s(S_CTL)))
    k("s_and_b32 %s, %s, 7" % (s(S_ROT), s(S_ROT)))
    k("s_bfe_u32 %s, s2, 0x20001" % s(S_RB))
    k("s_lshl_b32 %s, %s, 2" % (s(S_RB), s(S_RB)))
    k("s_add_u32 %s, %s, %s" % (s(S_RB), s(S_RB), s(S_T2)))
    k("s_and_b32 %s, s2, 1" % s(S_T))
    k("s_lshl_b32 %s, %s, 3" % (s(S_CT), s(S_T)))
    k("s_add_u32 %s, %s, %s" % (s(S_CT), s(S_CT), s(S_CTL)))
    k("s_mul_i32 %s, %s, 7" % (s(S_CF), s(S_T)))
    k("s_min_u32 %s, %s, 6" % (s(S_T), s(S_CTL)))
    k("s_add_u32 %s, %s, %s" % (s(S_CF), s(S_CF), s(S_T)))
    k("s_cmp_ge_u32 %s, 4" % s(S_W))
    k("s_cbranch_scc1 %s_loader" % pre)


def lane_helpers(k):
    k("v_and_b32 v1, 31, v0")
    k("v_lshrrev_b32 v2, 5, v0")


def xfrag_addr(k, dst, s_tile):
    k("s_lshl_b32 %s, %s, 12" % (s(S_T), s(s_tile)))
    k("v_lshrrev_b32 v3, 1, v1")
    k("v_and_b32 v3, 7, v3")
    k("v_xor_b32 v3, v3, v2")
    for st in range(4):
        k("v_xor_b32 %s, %d, v3" % (v(dst + st), 2 * st))
        k("v_lshlrev_b32 %s, 4, %s" % (v(dst + st), v(dst + st)))
        k("v_lshl_add_u32 %s, v1, 7, %s" % (v(dst + st), v(dst + st)))
        k("v_add_u32 %s, %s, %s" % (v(dst + st), s(S_T), v(dst + st)))


def wfrag_addr(k, t):
    r, b, h, g, x, y = t, t + 1, t + 2, t + 3, t + 4, t + 5
    k("v_bfe_u32 %s, v0, 2, 2" % v(r))
    k("v_and_b32 %s, 3, v0" % v(b))
    k("v_bfe_u32 %s, v0, 4, 1" % v(h))
    k("v_lshl_add_u32 %s, %s, 2, %s" % (v(b), v(h), v(b)))
    k("v_and_b32 %s, 1, %s" % (v(h), v(b)))
    k("v_lshrrev_b32 %s, 1, %s" % (v(g), v(b)))
    k("v_lshl_add_u32 %s, v2, 3, %s" % (v(x), v(r)))
    k("v_lshl_add_u32 %s, %s, 2, %s" % (v(b), v(h), v(g)))
    k("v_mul_u32_u24 %s, 192, %s" % (v(y), v(x)))
    k("v_lshl_add_u32 %s, %s, 3, %s" % (v(y), v(b), v(y)))
    k("v_add_u32 %s, %d, %s" % (v(VWQ), OFF_WQ, v(y)))
    k("v_lshrrev_b32 %s, 1, %s" % (v(b), v(g)))
    k("v_and_b32 %s, 1, %s" % (v(g), v(g)))
    k("v_lshl_add_u32 %s, %s, 1, %s" % (v(g), v(h), v(g)))
    k("v_lshl_add_u32 %s, %s, 2, %s" % (v(b), v(b), v(g)))
    k("v_lshlrev_b32 %s, 8, %s" % (v(y), v(x)))
    k("v_lshl_add_u32 %s, %s, 3, %s" % (v(y), v(b), v(y)))
    k("v_add_u32 %s, %d, %s" % (v(y), OFF_WF, v(y)))
    for ft in range(4):
        k("v_xor_b32 %s, %d, %s" % (v(b), ft, v(r)))
        k("v_lshl_add_u32 %s, %s, 6, %s" % (v(VWF + ft), v(b), v(y)))


def next_slot(k, r):
    k("s_add_u32 %s, %s, %d" % (s(r), s(r), SLOT))
    k("s_cmp_ge_u32 %s, %d" % (s(r), SLOTE))
    k("s_cselect_b32 %s, %d, %s" % (s(r), SLOT0, s(r)))


def compute(k, pre):
    lane_helpers(k)
    xfrag_addr(k, VXA, S_W)
    wfrag_addr(k, XF[0])
    k("v_and_b32 v3, 15, v0")
    k("v_bfe_u32 %s, v0, 4, 1" % v(SEL))
    k("v_cmp_eq_u32 vcc, v3, %s" % v(SEL))
    k("v_mov_b32 %s, 0x3f803f80" % v(SEL + 1))
    k("s_nop 0")
    k("v_cndmask_b32 %s, 0, %s, vcc" % (v(SEL), v(SEL + 1)))
    for r in range(1, 4):
        k("v_mov_b32 %s, %s" % (v(SEL + r), v(SEL)))
    for j in range(8):
        k("v_mov_b32 %s, 0" % v(CSA + j))
    for j in range(F * 16):
        k("v_mov_b32 %s, 0" % v(ACC + j))
    k("s_mov_b32 %s, %d" % (s(S_SLOT), SLOT0))
    k("s_mov_b32 %s, 0" % s(S_C))
    k("s_waitcnt lgkmcnt(0)")
    k.srd(S_OD, S_WS, WS_END)

    def rd_x(step, buf):
        k("ds_read_b128 %s, %s" % (v(XF[buf], 4), v(VX2 + step)))

    def rd_w(step, buf, ft):
        for u in range(2):
            d = v(WF[buf] + 4 * ft + 2 * u, 2)
            if ft < 3:
                k("ds_read_b64_tr_b16 %s, %s offset:%d" % (d, v(VQ2), step * 16 * 192 + u * 4 * 192 + ft * 64))
            else:
                k("ds_read_b64_tr_b16 %s, %s offset:%d" % (d, v(VF2 + ft - 3), step * 16 * 256 + u * 4 * 256))

    def mfma(buf, ft):
        d = v(ACC + 16 * ft, 16)
        if ft == 2:
            k("v_mfma_f32_32x32x16_bf16 %s, %s, %s, %s" % (d, v(XF[buf], 4), v(WF[buf] + 4 * ft, 4), d))
        else:
            k("v_mfma_f32_32x32x16_bf16 %s, %s, %s, %s" % (d, v(WF[buf] + 4 * ft, 4), v(XF[buf], 4), d))

    def set_slot():
        for st in range(4):
            k("v_add_u32 %s, %s, %s" % (v(VX2 + st), s(S_SLOT), v(VXA + st)))
        k("v_add_u32 %s, %s, %s" % (v(VQ2), s(S_SLOT), v(VWQ)))
        for j in range(4):
            k("v_add_u32 %s, %s, %s" % (v(VF2 + j), s(S_SLOT), v(VWF + j)))

    k("s_barrier")
    prof_mark(k, 2)
    set_slot()
    rd_x(0, 0)
    for ft in range(F):
        rd_w(0, 0, ft)
    for w in range(1, 4):
        k("s_cmp_eq_u32 %s, %d" % (s(S_W), w))
        k("s_cbranch_scc1 %s_cloop%d" % (pre, w))
    for w in range(4):
        k(".p2align 3")
        k.label("%s_cloop%d" % (pre, w))
        for st in range(4):
            b, nb, ns = st & 1, (st + 1) & 1, (st + 1) & 3
            k("s_waitcnt lgkmcnt(0)")
            if st == 3:
                k("s_barrier")
                next_slot(k, S_SLOT)
                set_slot()
            plan = {0: [("x",), (0,), (1,)], 1: [(2,), (3,)], 2: [(4,), (5,)], 3: [(6,)]}
            for ft in range(F):
                mfma(b, ft)
                for item in plan.get(ft, []):
                    if item[0] == "x":
                        rd_x(ns, nb)
                    else:
                        rd_w(ns, nb, item[0])
                if ft == 4:
                    k("v_mfma_f32_16x16x32_bf16 %s, %s, %s, %s" % (v(CSA, 4), v(WF[b] + 4 * w, 4), v(SEL, 4), v(CSA, 4)))
                if ft == 5 and w + 4 < F:
                    k("v_mfma_f32_16x16x32_bf16 %s, %s, %s, %s" % (v(CSA + 4, 4), v(WF[b] + 4 * (w + 4), 4), v(SEL, 4), v(CSA + 4, 4)))
        k("s_add_u32 %s, %s, 1" % (s(S_C), s(S_C)))
        k("s_cmp_lt_u32 %s, 8" % s(S_C))
        k("s_cbranch_scc1 %s_cloop%d" % (pre, w))
        if w < 3:
            k("s_branch %s_cdone" % pre)
    k.label(pre + "_cdone")
    prof_mark(k, 3)
    k("s_waitcnt lgkmcnt(0)")
    k("v_and_b32 v3, 1, v0")
    k("v_lshlrev_b32 v3, 6, v3")
    k("v_lshrrev_b32 %s, 4, v0" % v(XF[0]))
    k("v_lshl_add_u32 v3, %s, 4, v3" % v(XF[0]))
    k("s_lshl_b32 %s, %s, 7" % (s(S_T), s(S_W)))
    k("v_add_u32 v3, %s, v3" % s(S_T))
    k("s_mov_b32 exec_lo, 0x00030003")
    k("s_mov_b32 exec_hi, 0x00030003")
    k("s_nop 4")
    k("ds_write_b128 v3, %s offset:%d" % (v(CSA, 4), L_CS))
    k("s_cmp_eq_u32 %s, 3" % s(S_W))
    k("s_cbranch_scc1 %s_cs1" % pre)
    k("ds_write_b128 v3, %s offset:%d" % (v(CSA + 4, 4), L_CS + 512))
    k.label(pre + "_cs1")
    k("s_mov_b64 exec, -1")
    k("s_waitcnt lgkmcnt(0)")
    k("s_barrier")
    epilogue(k, pre)


def epilogue(k, pre):
    T0 = WF[0]
    k("s_lshl_b32 %s, %s, 7" % (s(S_T), s(S_W)))
    k("v_lshl_add_u32 v3, v1, 2, %s" % s(S_T))
    k("ds_read_b32 %s, v3 offset:%d" % (v(RS), L_RS))
    k("ds_read_b32 %s, v3 offset:%d" % (v(RM), L_RM))
    h16, a1, a2, a3, t1, t2 = 4, 5, 6, 7, 8, 9
    k("v_lshlrev_b32 %s, 4, v2" % v(h16))
    for ft in range(2):
        for g in range(4):
            k("ds_read_b128 %s, %s offset:%d" % (v(T0 + 16 * ft + 4 * g, 4), v(h16), L_CS + ft * 128 + g * 32))
    k("s_lshl_b32 %s, %s, 2" % (s(S_T2), s(S_RB)))
    k("s_add_u32 %s, %s, %s" % (s(S_T2), s(S_T2), s(S_W)))
    cq = 0.25 * LOG2E
    k("s_lshl_b32 %s, %s, 1" % (s(S_T), s(S_CT)))
    k("v_add_u32 %s, %s, v2" % (v(t1), s(S_T)))
    k("v_lshlrev_b32 %s, 4, v1" % v(t2))
    k("v_lshl_add_u32 %s, %s, 16, %s" % (v(a1), v(t1), v(t2)))
    k("s_lshl_b32 %s, %s, 10" % (s(S_T), s(S_T2)))
    k("v_add_u32 %s, %s, %s" % (v(a1), s(S_T), v(a1)))
    k("v_lshl_add_u32 %s, %s, 17, %s" % (v(a2), v(t1), v(t2)))
    k("s_lshl_b32 %s, %s, 11" % (s(S_T), s(S_T2)))
    k("s_add_u32 %s, %s, 0x%x" % (s(S_T), s(S_T), WS_KV))
    k("v_add_u32 %s, %s, %s" % (v(a2), s(S_T), v(a2)))
    k("s_waitcnt lgkmcnt(8)")
    k("v_mul_f32 v10, 0x%x, %s" % (f2u(cq), v(RS)))
    k("v_mul_f32 v11, 0x%x, %s" % (f2u(cq), v(RM)))
    for ft, dst in ((0, a1), (1, a2)):
        k("s_waitcnt lgkmcnt(%d)" % (4 if ft == 0 else 0))
        A, T = ACC + 16 * ft, T0 + 16 * ft
        a_rs, a_rm = ("v10", "v11") if ft == 0 else (v(RS), v(RM))
        for r in range(16):
            k("v_mul_f32 %s, %s, %s" % (v(T + r), v(T + r), a_rm))
        for r in range(16):
            k("v_fma_f32 %s, %s, %s, -%s" % (v(A + r), v(A + r), a_rs, v(T + r)))
        for r in range(8):
            k("v_cvt_pk_bf16_f32 %s, %s, %s" % (v(A + r), v(A + 2 * r), v(A + 2 * r + 1)))
        k("buffer_store_dwordx4 %s, %s, %s, 0 offen" % (v(A, 4), v(dst), s(S_OD, 4)))
        k("buffer_store_dwordx4 %s, %s, %s, 0 offen offset:512" % (v(A + 4, 4), v(dst), s(S_OD, 4)))
        if ft == 0:
            k("s_lshl_b32 %s, %s, 7" % (s(S_T), s(S_W)))
            k("v_add_u32 v3, %s, %s" % (s(S_T), v(h16)))
            for g in range(4):
                k("ds_read_b128 %s, v3 offset:%d" % (v(T0 + 32 + 4 * g, 4), L_RS + g * 32))
    A = ACC + 32
    for g in range(4):
        k("ds_read_b128 %s, v3 offset:%d" % (v(T0 + 4 * g, 4), L_RM + g * 32))
    k("v_lshlrev_b32 v3, 2, v1")
    k("ds_read_b32 v10, v3 offset:%d" % (L_CS + 2 * 128))
    k("v_bfe_u32 %s, v1, 2, 1" % v(t1))
    k("v_lshrrev_b32 %s, 3, v1" % v(t2))
    k("v_and_b32 %s, 3, v1" % v(a3))
    k("v_and_b32 v11, 1, %s" % v(t2))
    k("v_lshrrev_b32 %s, 1, %s" % (v(t2), v(t2)))
    k("v_lshl_add_u32 %s, %s, 2, %s" % (v(a3), v(t2), v(a3)))
    k("v_lshl_add_u32 %s, v11, 3, %s" % (v(a3), v(a3)))
    k("v_lshlrev_b32 %s, 4, %s" % (v(a3), v(a3)))
    k("s_lshl_b32 %s, %s, 1" % (s(S_T), s(S_CT)))
    k("v_add_u32 %s, %s, %s" % (v(t1), s(S_T), v(t1)))
    k("v_lshl_add_u32 %s, %s, 17, %s" % (v(a3), v(t1), v(a3)))
    k("v_lshl_add_u32 %s, v2, 8, %s" % (v(a3), v(a3)))
    k("s_lshl_b32 %s, %s, 11" % (s(S_T), s(S_T2)))
    k("s_add_u32 %s, %s, 0x%x" % (s(S_T), s(S_T), WS_KV + 1024))
    k("v_add_u32 %s, %s, %s" % (v(a3), s(S_T), v(a3)))
    k("s_waitcnt lgkmcnt(0)")
    for r in range(16):
        k("v_mul_f32 %s, %s, v10" % (v(T0 + r), v(T0 + r)))
    FT0 = T0 + 16
    for r in range(16):
        k("v_fma_f32 %s, %s, %s, -%s" % (v(A + r), v(A + r), v(T0 + 32 + r), v(T0 + r)))
    for r in range(8):
        k("v_cvt_pk_bf16_f32 %s, %s, %s" % (v(A + r), v(A + 2 * r), v(A + 2 * r + 1)))
    k("buffer_store_dwordx4 %s, %s, %s, 0 offen" % (v(A, 4), v(a3), s(S_OD, 4)))
    k("buffer_store_dwordx4 %s, %s, %s, 0 offen offset:512" % (v(A + 4, 4), v(a3), s(S_OD, 4)))
    k("s_cmp_ge_u32 %s, 7" % s(S_CTL))
    k("s_cbranch_scc1 %s_noh" % pre)
    k("v_lshlrev_b32 %s, 4, v0" % v(a1))
    k("s_mul_i32 %s, %s, %d" % (s(S_T), s(S_T2), WS_HO_ROW))
    k("s_lshl_b32 %s, %s, 13" % (s(S_T3), s(S_CF)))
    k("s_add_u32 %s, %s, %s" % (s(S_T), s(S_T), s(S_T3)))
    k("s_add_u32 %s, %s, 0x%x" % (s(S_T), s(S_T), WS_HO))
    k("v_add_u32 %s, %s, %s" % (v(a1), s(S_T), v(a1)))

    def rd_cs(ft):
        B = T0 + (ft & 1) * 28
        for g in range(4):
            k("ds_read_b128 %s, %s offset:%d" % (v(B + 4 * g, 4), v(h16), L_CS + (3 + ft) * 128 + g * 32))

    rd_cs(0)
    for ft in range(4):
        B = T0 + (ft & 1) * 28
        for g in range(4):
            k("ds_read_b128 %s, %s offset:%d" % (v(10 + 4 * g, 4), v(h16), L_BI + ft * 128 + g * 32))
        k("s_waitcnt lgkmcnt(0)")
        if ft < 3:
            rd_cs(ft + 1)
        A = ACC + 48 + 16 * ft
        for r in range(16):
            k("v_fma_f32 %s, -%s, %s, %s" % (v(B + r), v(B + r), v(RM), v(10 + r)))
        for r in range(16):
            k("v_fma_f32 %s, %s, %s, %s" % (v(A + r), v(A + r), v(RS), v(B + r)))
        for r in range(16):
            k("v_max_f32 %s, 0, %s" % (v(B + r), v(A + r)))
        for r in range(16):
            k("v_mul_f32 %s, %s, %s" % (v(A + r), v(A + r), v(B + r)))
        for r in range(8):
            k("v_cvt_pk_bf16_f32 %s, %s, %s" % (v(A + r), v(A + 2 * r), v(A + 2 * r + 1)))
        k("buffer_store_dwordx4 %s, %s, %s, 0 offen offset:%d" % (v(A, 4), v(a1), s(S_OD, 4), 2048 * (ft & 1)))
        k("buffer_store_dwordx4 %s, %s, %s, 0 offen offset:%d" % (v(A + 4, 4), v(a1), s(S_OD, 4), 2048 * (ft & 1) + 1024))
        if ft == 1:
            k("v_add_u32 %s, 4096, %s" % (v(a1), v(a1)))
    k.label(pre + "_noh")


VXO, VWO, VWO1, VBI, LXA, LX2, LX, LSUM, LSQ, LT = 4, 6, 9, 10, 12, 16, 20, 36, 38, 40


class Groups:
    def __init__(self):
        self.groups = [[]]

    def __call__(self, txt):
        self.groups[-1].append(txt)
        if txt.startswith("buffer_load"):
            self.groups.append([])


def issue_x(k):
    k("s_lshl_b32 %s, %s, 12" % (s(S_T), s(S_LD)))
    k("s_add_u32 m0, %s, %s" % (s(S_T), s(S_RSLOT)))
    k("s_lshl_b32 %s, %s, 7" % (s(S_T2), s(S_CK)))
    k("s_add_u32 %s, %s, %s" % (s(S_T2), s(S_T2), s(S_XO)))
    for i in range(4):
        k("buffer_load_dwordx4 %s, %s, %s offen lds" % (v(VXO + (i & 1)), s(S_XD, 4), s(S_T2)))
        if i < 3:
            k("s_add_u32 m0, m0, 1024")
            k("s_add_u32 %s, %s, 8192" % (s(S_T2), s(S_T2)))


def issue_w(k):
    k("s_mul_i32 %s, %s, 3072" % (s(S_T), s(S_LD)))
    k("s_add_u32 %s, %s, %s" % (s(S_T), s(S_T), s(S_RSLOT)))
    k("s_add_u32 m0, %s, %d" % (s(S_T), OFF_WQ))
    k("s_mul_i32 %s, %s, %d" % (s(S_T2), s(S_CK), 64 * 3072))
    k("s_add_u32 %s, %s, %s" % (s(S_T2), s(S_T2), s(S_WO)))
    for i in range(3):
        k("buffer_load_dwordx4 %s, %s, %s offen lds" % (v(VWO + i), s(S_WQD, 4), s(S_T2)))
        if i < 2:
            k("s_add_u32 m0, m0, 1024")
            k("s_nop 0")
    k("s_lshl_b32 %s, %s, 12" % (s(S_T), s(S_LD)))
    k("s_add_u32 %s, %s, %s" % (s(S_T), s(S_T), s(S_RSLOT)))
    k("s_add_u32 m0, %s, %d" % (s(S_T), OFF_WF))
    k("s_mul_i32 %s, %s, %d" % (s(S_T2), s(S_CK), 64 * 3584))
    k("s_add_u32 %s, %s, %s" % (s(S_T2), s(S_T2), s(S_WO1)))
    for i in range(4):
        k("buffer_load_dwordx4 %s, %s, %s offen lds" % (v(VWO1), s(S_W1D, 4), s(S_T2)))
        if i < 3:
            k("s_add_u32 m0, m0, 1024")
            k("s_add_u32 %s, %s, %d" % (s(S_T2), s(S_T2), 4 * 3584))


def advance(k):
    k("s_add_u32 %s, %s, 1" % (s(S_CK), s(S_CK)))
    k("s_and_b32 %s, %s, 7" % (s(S_CK), s(S_CK)))
    next_slot(k, S_RSLOT)


def loader(k, pre):
    k("s_setprio 3")
    k("s_sub_u32 %s, %s, 4" % (s(S_LD), s(S_W)))
    k("v_lshrrev_b32 v12, 3, v0")
    k("v_and_b32 v13, 7, v0")
    k("v_lshrrev_b32 v3, 1, v12")
    for p in range(2):
        k("v_add_u32 v14, %d, v3" % (4 * p))
        k("v_and_b32 v14, 7, v14")
        k("v_xor_b32 v14, v14, v13")
        k("v_lshlrev_b32 v14, 4, v14")
        k("v_lshl_add_u32 %s, v12, 10, v14" % v(VXO + p))
    k("s_lshl_b32 %s, %s, 2" % (s(S_XO), s(S_RB)))
    k("s_add_u32 %s, %s, %s" % (s(S_XO), s(S_XO), s(S_LD)))
    k("s_lshl_b32 %s, %s, 15" % (s(S_XO), s(S_XO)))
    k("s_mov_b32 %s, %d" % (s(S_RSLOT), SLOT0))
    k("s_mov_b32 %s, %d" % (s(S_SLOT), SLOT0))
    k("s_mov_b32 %s, %s" % (s(S_CK), s(S_ROT)))
    k("s_waitcnt lgkmcnt(0)")
    k.srd(S_XD, S_X, 2048 * 1024)
    prof_mark(k, 2)
    issue_x(k)
    k.srd(S_WQD, S_WQ, 512 * 3072)
    k.srd(S_W1D, S_W1, 512 * 3584)
    k("s_mov_b32 %s, 0x%x" % (s(S_T), (2 ** 32 + 191) // 192))
    for j in range(3):
        k("v_lshlrev_b32 v12, 4, v0")
        k("v_add_u32 v12, %d, v12" % (1024 * j))
        k("v_mul_hi_u32 v13, v12, %s" % s(S_T))
        k("v_mul_u32_u24 v14, 192, v13")
        k("v_sub_u32 v14, v12, v14")
        k("v_lshrrev_b32 v15, 6, v14")
        k("v_and_b32 v14, 63, v14")
        k("v_mul_u32_u24 v13, 3072, v13")
        k("v_lshl_add_u32 v13, v15, 10, v13")
        k("v_add_u32 %s, v13, v14" % v(VWO + j))
    k("v_lshrrev_b32 v12, 4, v0")
    k("v_bfe_u32 v13, v0, 2, 2")
    k("v_xor_b32 v13, v13, v12")
    k("v_lshlrev_b32 v13, 6, v13")
    k("v_and_b32 v14, 3, v0")
    k("v_lshl_add_u32 v13, v14, 4, v13")
    k("v_mul_u32_u24 v12, 3584, v12")
    k("v_add_u32 %s, v12, v13" % v(VWO1))
    k("s_mul_i32 %s, %s, %d" % (s(S_WO), s(S_LD), 16 * 3072))
    k("s_lshl_b32 %s, %s, 6" % (s(S_T), s(S_CT)))
    k("s_add_u32 %s, %s, %s" % (s(S_WO), s(S_WO), s(S_T)))
    k("s_mul_i32 %s, %s, %d" % (s(S_WO1), s(S_LD), 16 * 3584))
    k("s_lshl_b32 %s, %s, 8" % (s(S_T), s(S_CF)))
    k("s_add_u32 %s, %s, %s" % (s(S_WO1), s(S_WO1), s(S_T)))
    issue_w(k)
    advance(k)
    issue_x(k)
    issue_w(k)
    advance(k)
    prof_mark(k, 3)
    lane_helpers(k)
    k("v_lshrrev_b32 v12, 3, v1")
    k("v_bfe_u32 v13, v1, 2, 1")
    k("v_and_b32 v14, 3, v1")
    k("v_lshrrev_b32 v15, 1, v12")
    k("v_and_b32 v12, 1, v12")
    k("v_lshl_add_u32 v14, v12, 2, v14")
    k("v_lshl_add_u32 v14, v13, 3, v14")
    k("v_lshl_add_u32 v14, v15, 4, v14")
    k("s_lshl_b32 %s, %s, 7" % (s(S_T), s(S_CF)))
    k("s_lshl_b32 %s, %s, 5" % (s(S_T2), s(S_LD)))
    k("s_add_u32 %s, %s, %s" % (s(S_T), s(S_T), s(S_T2)))
    k("v_add_u32 v14, %s, v14" % s(S_T))
    k("v_lshlrev_b32 v14, 1, v14")
    k("global_load_ushort %s, v14, %s" % (v(VBI), s(S_B1, 2)))
    xfrag_addr(k, LXA, S_LD)
    for r in range(4):
        k("v_mov_b32 %s, 0" % v(LSUM + r))
    k("v_mov_b32 %s, 0xffff0000" % v(LT + 1))
    k("s_mov_b32 %s, 0" % s(S_C))
    k.label(pre + "_lloop")
    k("s_cmp_ge_u32 %s, 7" % s(S_C))
    k("s_cbranch_scc1 %s_llast" % pre)
    k("s_cmp_eq_u32 %s, 0" % s(S_C))
    k("s_cbranch_scc0 %s_lw" % pre)
    k("s_waitcnt vmcnt(%d)" % (NPC + 1))
    k("s_branch %s_lbar" % pre)
    k.label(pre + "_lw")
    k("s_waitcnt vmcnt(%d)" % NPC)
    k("s_branch %s_lbar" % pre)
    k.label(pre + "_llast")
    k("s_waitcnt vmcnt(0)")
    k.label(pre + "_lbar")
    k("s_barrier")
    for st in range(4):
        k("v_add_u32 %s, %s, %s" % (v(LX2 + st), s(S_SLOT), v(LXA + st)))
        k("ds_read_b128 %s, %s" % (v(LX + 4 * st, 4), v(LX2 + st)))
    stats = []
    for st in range(4):
        stats.append("s_waitcnt lgkmcnt(%d)" % (3 - st))
        for r in range(4):
            x = LX + 4 * st + r
            stats.append("v_lshlrev_b32 %s, 16, %s" % (v(LT), v(x)))
            stats.append("v_and_b32 %s, %s, %s" % (v(x), v(LT + 1), v(x)))
            stats.append("v_add_f32 %s, %s, %s" % (v(LSUM), v(LSUM), v(LT)))
            stats.append("v_add_f32 %s, %s, %s" % (v(LSUM + 1), v(LSUM + 1), v(x)))
            stats.append("v_fmac_f32 %s, %s, %s" % (v(LSQ), v(LT), v(LT)))
            stats.append("v_fmac_f32 %s, %s, %s" % (v(LSQ + 1), v(x), v(x)))
    k("s_cmp_ge_u32 %s, 6" % s(S_C))
    k("s_cbranch_scc1 %s_lnoissue" % pre)
    g = Groups()
    issue_x(g)
    issue_w(g)
    advance(g)
    ng = len(g.groups) - 1
    per = (len(stats) + ng - 1) // ng
    pos = 0
    for gi, grp in enumerate(g.groups):
        for ins in grp:
            k(ins)
        if gi < ng:
            for ins in stats[pos:pos + per]:
                k(ins)
            pos += per
    assert pos >= len(stats)
    k("s_branch %s_lnext" % pre)
    k.label(pre + "_lnoissue")
    for ins in stats:
        k(ins)
    k.label(pre + "_lnext")
    next_slot(k, S_SLOT)
    k("s_add_u32 %s, %s, 1" % (s(S_C), s(S_C)))
    k("s_cmp_lt_u32 %s, 8" % s(S_C))
    k("s_cbranch_scc1 %s_lloop" % pre)
    k("s_barrier")
    for r in (LSUM, LSQ):
        k("v_add_f32 %s, %s, %s" % (v(r), v(r), v(r + 1)))
        k("v_mov_b32 %s, %s" % (v(r + 1), v(r)))
        k("s_nop 1")
        k("v_permlane32_swap_b32 %s, %s" % (v(r + 1), v(r)))
        k("s_nop 1")
        k("v_add_f32 %s, %s, %s" % (v(r), v(r), v(r + 1)))
    k("v_mul_f32 %s, 0x%x, %s" % (v(LSUM), f2u(1.0 / 512), v(LSUM)))
    k("v_mul_f32 %s, 0x%x, %s" % (v(LSQ), f2u(1.0 / 512), v(LSQ)))
    k("v_fma_f32 %s, -%s, %s, %s" % (v(LSQ), v(LSUM), v(LSUM), v(LSQ)))
    k("v_max_f32 %s, 0, %s" % (v(LSQ), v(LSQ)))
    k("v_add_f32 %s, 0x%x, %s" % (v(LSQ), f2u(1e-5), v(LSQ)))
    k("v_rsq_f32 %s, %s" % (v(LSQ), v(LSQ)))
    k("s_nop 0")
    k("v_mul_f32 %s, %s, %s" % (v(LSUM), v(LSUM), v(LSQ)))
    k("s_lshl_b32 %s, %s, 7" % (s(S_T), s(S_LD)))
    k("v_lshl_add_u32 v12, v1, 2, %s" % s(S_T))
    k("ds_write_b32 v12, %s offset:%d" % (v(LSQ), L_RS))
    k("ds_write_b32 v12, %s offset:%d" % (v(LSUM), L_RM))
    k("v_lshlrev_b32 %s, 16, %s" % (v(VBI), v(VBI)))
    k("ds_write_b32 v12, %s offset:%d" % (v(VBI), L_BI))
    k("s_waitcnt lgkmcnt(0)")
    k("s_barrier")


def finish(k):
    k("s_waitcnt vmcnt(0)")
    prof_mark(k, 5)
    prof_rt(k, 6)
    prof_store(k, S_WS, S_W, 44)
    k("s_endpgm")


def gen(k, name, pre):
    k.kernel_begin(name)
    entry(k, pre)
    compute(k, pre)
    finish(k)
    k.label(pre + "_loader")
    loader(k, pre)
    prof_mark(k, 4)
    finish(k)
    k.label(pre + "_exit")
    k.kernel_end(name, NV, NV)
    return 256, LDS_BYTES
```

```python
import sys
import common
from common import *
import attn, gemm1, final, g1, k1

def build(path, which=("qkv", "ffn1", "attn", "final")):
    k = Asm()
    body = Asm()
    launches = []
    if "qkv" in which:
        n, lds = g1.gen(body, "qkv_kernel", "L_qkv", "qkv")
        launches.append("; @launch kernel=qkv_kernel grid=(%d,1,1) block=(512,1,1) lds=%d" % (n, lds))
    if "k1" in which:
        n, lds = k1.gen(body, "k1_kernel", "L_k1")
        launches.append("; @launch kernel=k1_kernel grid=(%d,1,1) block=(512,1,1) lds=%d" % (n, lds))
    if "ffn1" in which:
        n, lds = g1.gen(body, "ffn1_kernel", "L_ffn1", "ffn1")
        launches.append("; @launch kernel=ffn1_kernel grid=(%d,1,1) block=(512,1,1) lds=%d" % (n, lds))
    if "attn" in which:
        attn.gen_attn(body, "attn_kernel")
        launches.append("; @launch kernel=attn_kernel grid=(256,1,1) block=(512,1,1) lds=%d" % (3 * attn.SLOT))
    if "final" in which:
        n, lds = final.gen_final(body, "final_kernel", "L_fin")
        launches.append("; @launch kernel=final_kernel grid=(%d,1,1) block=(256,1,1) lds=%d" % (n, lds))
    if "empty" in which:
        body.kernel_begin("empty_kernel")
        body.kernel_end("empty_kernel", 32, 32)
        n = [int(a[5:]) for a in which if a.startswith("empty") and len(a) > 5]
    for a in which:
        if a.startswith("nempty"):
            if "empty_kernel:" not in body.text():
                body.kernel_begin("empty_kernel")
                body.kernel_end("empty_kernel", 32, 32)
            for i in range(int(a[6:])):
                launches.append("; @launch kernel=empty_kernel grid=(256,1,1) block=(256,1,1) lds=0")
    txt = HEADER + "\n".join(launches) + "\n" + '.amdgcn_target "amdgcn-amd-amdhsa--gfx950"\n' + body.text()
    open(path, "w").write(txt)

if __name__ == "__main__":
    common.PROF = "prof" in sys.argv
    for a in sys.argv[1:]:
        if a.startswith("g1:"):
            g1.OPT.add(a[3:])
        if a.startswith("at:"):
            attn.OPT.add(a[3:])
    out = [a for a in sys.argv[1:] if a.endswith(".s")][0]
    which = [a for a in sys.argv[1:] if a in ("qkv", "ffn1", "attn", "final", "k1") or a.startswith("nempty")] or ("qkv", "ffn1", "attn", "final")
    build(out, which)
```

```python
import common
from common import *

SA, SB, CI, P, KF, VF0, VF1, QF, OA = 16, 32, 48, 64, 72, 76, 80, 84, 96
V_LANE16, V_CUR, V_NXT, V_KOFF, V_VOFF, V_T0, V_T1, V_OOFF = 1, 2, 3, 4, 5, 6, 7, 8
SLOT = 24576
TILE = 3072
BIAS = 96.0
ONES = 0x3F803F80

S_WS, S_KV, S_HOS, S_W, S_HEAD, S_QB, S_T, S_C, S_SLOT, S_VM, S_TILE = 4, 8, 12, 16, 17, 18, 19, 20, 21, 22, 24
S_QS = 28
S_NSLOT = 32


OPT = set()


def mfma(k, d, A, B, C):
    k("v_mfma_f32_32x32x16_bf16 %s, %s, %s, %s" % (v(d, 16), v(A, 4), v(B, 4), C if isinstance(C, str) else v(C, 16)))


def dma_chunk(k):
    k("s_mul_i32 %s, %s, %d" % (s(S_T), s(S_W), TILE))
    k("s_add_u32 %s, %s, %s" % (s(S_T), s(S_T), s(S_NSLOT)))
    k("s_mov_b32 m0, %s" % s(S_T))
    k("s_lshl_b32 %s, %s, 11" % (s(S_T + 0), s(S_TILE)))
    k("buffer_load_dwordx4 %s, %s, %s offen lds" % (v(V_KOFF), s(S_KV, 4), s(S_T)))
    k("s_add_u32 m0, m0, 1024")
    k("s_mov_b64 exec, %s" % s(S_VM, 2))
    k("buffer_load_dwordx4 %s, %s, %s offen lds" % (v(V_VOFF), s(S_KV, 4), s(S_T)))
    k("s_add_u32 m0, m0, 512")
    k("s_nop 0")
    k("buffer_load_dwordx4 %s, %s, %s offen offset:512 lds" % (v(V_VOFF), s(S_KV, 4), s(S_T)))
    k("s_mov_b64 exec, -1")


def tile_body(k, i, cur, nxt):
    def e(j):
        if "expsep" in OPT:
            k("v_exp_f32 %s, %s" % (v(96 + j), v(cur + j)))
        else:
            k("v_exp_f32 %s, %s" % (v(cur + j), v(cur + j)))

    def c(j):
        k("v_cvt_pk_bf16_f32 %s, %s, %s" % (v(P + j), v(cur + 2 * j), v(cur + 2 * j + 1)))

    def rd(dst, tile, part):
        if "nolds" in OPT:
            return
        base = V_CUR if tile < 8 else V_NXT
        k("ds_read_b128 %s, %s offset:%d" % (v(dst, 4), v(base), (tile % 8) * TILE + part * 1024))

    def w():
        if "nowait" not in OPT:
            k("s_waitcnt lgkmcnt(2)")

    w()
    if "noqk" not in OPT:
        mfma(k, nxt, KF, QF, CI)
    rd(KF, i + 2, 0)
    e(0); e(1); e(2); e(3)
    w()
    if "nopv" not in OPT:
        mfma(k, OA, VF1, P + 4, OA)
    rd(VF1, i, 2)
    c(0); e(4); e(5); c(1); e(6); e(7); c(2); e(8); c(3); e(9); e(10)
    w()
    if "nopv" not in OPT:
        mfma(k, OA, VF0, P, OA)
    rd(VF0, i + 1, 1)
    e(11); c(4); e(12); e(13); c(5); e(14); e(15); c(6); c(7)


def gen_attn(k, name, standalone=True, second_role=None):
    if standalone:
        k.kernel_begin(name)
        k("s_cmp_ge_u32 s2, %d" % (512 if second_role else 256))
        k("s_cbranch_scc1 L_attn_exit")
        prof_start(k)
        if second_role:
            k("s_cmp_ge_u32 s2, 256")
            k("s_cbranch_scc1 L_attn_role2")
        k("s_load_dwordx2 %s, s[0:1], %d" % (s(S_WS, 2), KA_WS))
    k("s_and_b32 %s, s2, 7" % s(S_HEAD))
    k("s_lshl_b32 %s, %s, 2" % (s(S_HEAD), s(S_HEAD)))
    k("s_lshr_b32 %s, s2, 3" % s(S_T))
    k("s_and_b32 %s, %s, 3" % (s(S_T), s(S_T)))
    k("s_add_u32 %s, %s, %s" % (s(S_HEAD), s(S_HEAD), s(S_T)))
    k("s_lshr_b32 %s, s2, 5" % s(S_QB))
    k("v_lshrrev_b32 %s, 6, v0" % v(V_T0))
    k("v_and_b32 v0, 63, v0")
    k("v_readfirstlane_b32 %s, %s" % (s(S_W), v(V_T0)))
    k("v_lshlrev_b32 %s, 4, v0" % v(V_LANE16))
    k("v_mov_b32 %s, %s" % (v(V_KOFF), v(V_LANE16)))
    k("v_lshrrev_b32 %s, 5, v0" % v(V_T0))
    k("v_lshlrev_b32 %s, 8, %s" % (v(V_T0), v(V_T0)))
    k("v_and_b32 %s, 15, v0" % v(V_T1))
    k("v_lshlrev_b32 %s, 4, %s" % (v(V_T1), v(V_T1)))
    k("v_add3_u32 %s, %s, %s, 0" % (v(V_VOFF), v(V_T0), v(V_T1)))
    k("v_add_u32 %s, 1024, %s" % (v(V_VOFF), v(V_VOFF)))
    k("s_mov_b32 %s, 0x0000ffff" % s(S_VM))
    k("s_mov_b32 %s, 0x0000ffff" % s(S_VM + 1))
    k("s_waitcnt lgkmcnt(0)")
    k("s_lshl_b32 %s, %s, 17" % (s(S_T), s(S_HEAD)))
    k("s_add_u32 %s, %s, %s" % (s(S_KV), s(S_WS), s(S_T)))
    k("s_addc_u32 %s, %s, 0" % (s(S_KV + 1), s(S_WS + 1)))
    k("s_add_u32 %s, %s, 0x%x" % (s(S_KV), s(S_KV), WS_KV))
    k("s_addc_u32 %s, %s, 0" % (s(S_KV + 1), s(S_KV + 1)))
    k("s_and_b32 %s, %s, 0xffff" % (s(S_KV + 1), s(S_KV + 1)))
    k("s_mov_b32 %s, 0x20000" % s(S_KV + 2))
    k("s_mov_b32 %s, 0x20000" % s(S_KV + 3))
    k("s_mov_b32 %s, %s" % (s(S_TILE), s(S_W)))
    k("s_mov_b32 %s, 0" % s(S_NSLOT))
    dma_chunk(k)
    k.srd(S_HOS, S_WS, WS_END)
    k("s_lshl_b32 %s, %s, 6" % (s(S_T), s(S_HEAD)))
    k("s_lshl_b32 %s, %s, 3" % (s(S_QS), s(S_QB)))
    k("s_add_u32 %s, %s, %s" % (s(S_QS), s(S_QS), s(S_W)))
    k("s_add_u32 %s, %s, %s" % (s(S_T), s(S_T), s(S_QS)))
    k("s_lshl_b32 %s, %s, 10" % (s(S_T), s(S_T)))
    k("buffer_load_dwordx4 %s, %s, %s, %s offen" % (v(QF, 4), v(V_LANE16), s(S_HOS, 4), s(S_T)))
    k("s_mul_i32 %s, %s, 144" % (s(S_QS), s(S_QS)))
    k("s_add_u32 %s, %s, %s" % (s(S_QS), s(S_QS), s(S_HEAD)))
    k("s_add_u32 %s, %s, 112" % (s(S_QS), s(S_QS)))
    k("s_lshl_b32 %s, %s, 10" % (s(S_QS), s(S_QS)))
    k("s_add_u32 %s, %s, 0x%x" % (s(S_QS), s(S_QS), WS_HO))
    k("v_mov_b32 %s, 0x%x" % (v(P), ONES))
    k("v_mov_b32 %s, 0x%x" % (v(P + 1), ONES))
    k("v_mov_b32 %s, 0x%x" % (v(P + 2), ONES))
    k("v_mov_b32 %s, 0x%x" % (v(P + 3), ONES))
    k("s_mul_i32 %s, %s, %d" % (s(S_T), s(S_W), TILE))
    k("v_add_u32 %s, %s, %s" % (v(V_T0), s(S_T), v(V_LANE16)))
    if "zeropad" in OPT:
        k("v_and_b32 %s, 27, v0" % v(V_T1))
        k("v_cmp_eq_u32 vcc, 16, %s" % v(V_T1))
        k("s_nop 1")
        for j in range(4):
            k("v_cndmask_b32 %s, 0, %s, vcc" % (v(P + j), v(P + j)))
    k("s_mov_b32 exec_lo, 0xffff0000")
    k("s_mov_b32 exec_hi, 0xffff0000")
    for slot in range(3):
        for part in (1, 2):
            k("ds_write_b128 %s, %s offset:%d" % (v(V_T0), v(P, 4), slot * SLOT + part * 1024))
    k("s_mov_b64 exec, -1")
    k("s_add_u32 %s, %s, 8" % (s(S_TILE), s(S_TILE)))
    k("s_mov_b32 %s, %d" % (s(S_NSLOT), SLOT))
    dma_chunk(k)
    k("s_waitcnt vmcnt(3) lgkmcnt(0)")
    k("s_barrier")
    prof_mark(k, 2)
    bufs = (SA, SB, CI, OA)
    frs = (KF, VF0, VF1, P)
    for t in range(4):
        k("ds_read_b128 %s, %s offset:%d" % (v(frs[t], 4), v(V_LANE16), t * TILE))
    for t in range(4):
        k("s_waitcnt lgkmcnt(%d)" % (3 - t))
        mfma(k, bufs[t], frs[t], QF, "0")
    k("ds_read_b128 %s, %s offset:%d" % (v(KF, 4), v(V_LANE16), 0))
    k("s_nop 7")
    m = V_T0
    k("v_max3_f32 %s, %s, %s, %s" % (v(m), v(SA), v(SA + 1), v(SA + 2)))
    regs = [SA + j for j in range(3, 16)] + [SB + j for j in range(16)]
    for j in range(0, len(regs) - 1, 2):
        k("v_max3_f32 %s, %s, %s, %s" % (v(m), v(m), v(regs[j]), v(regs[j + 1])))
    k("v_max_f32 %s, %s, %s" % (v(m), v(m), v(regs[-1])))
    regs = [CI + j for j in range(16)] + [OA + j for j in range(16)]
    for j in range(0, 32, 2):
        k("v_max3_f32 %s, %s, %s, %s" % (v(m), v(m), v(regs[j]), v(regs[j + 1])))
    k("v_mov_b32 %s, %s" % (v(V_T1), v(m)))
    k("s_nop 1")
    k("v_permlane32_swap_b32 %s, %s" % (v(V_T1), v(m)))
    k("s_nop 1")
    k("v_max_f32 %s, %s, %s" % (v(m), v(m), v(V_T1)))
    k("v_add_f32 %s, 0x%x, %s" % (v(m), f2u(BIAS), v(m)))
    for j in range(16):
        k("v_sub_f32 %s, 0, %s" % (v(CI + j), v(m)))
    for j in range(16):
        k("v_mov_b32 %s, 0" % v(OA + j))
    for j in range(4):
        k("v_mov_b32 %s, 0" % v(P + 4 + j))
        k("v_mov_b32 %s, 0" % v(VF1 + j))
    k("s_waitcnt lgkmcnt(0)")
    mfma(k, SA, KF, QF, CI)
    k("ds_read_b128 %s, %s offset:%d" % (v(KF, 4), v(V_LANE16), TILE))
    k("ds_read_b128 %s, %s offset:%d" % (v(VF0, 4), v(V_LANE16), 1024))
    k("v_mov_b32 %s, %s" % (v(V_CUR), v(V_LANE16)))
    k("v_add_u32 %s, %d, %s" % (v(V_NXT), SLOT, v(V_LANE16)))
    k("s_mov_b32 %s, 0" % s(S_C))
    k("s_mov_b32 %s, %d" % (s(S_NSLOT), 2 * SLOT))
    k("s_waitcnt lgkmcnt(0)")
    k("s_nop 7")
    prof_mark(k, 3)
    k(".p2align 6")
    k.label("L_attn_chunk")
    for i in range(8):
        if i == 4:
            k("s_waitcnt vmcnt(0)")
            if "nobar" not in OPT:
                k("s_barrier")
            k("s_cmp_ge_u32 %s, 6" % s(S_C))
            k("s_cbranch_scc1 L_attn_nodma")
            k("s_add_u32 %s, %s, 8" % (s(S_TILE), s(S_TILE)))
            if "nodma" not in OPT:
                dma_chunk(k)
            k.label("L_attn_nodma")
        if "prio2" in OPT and i % 2 == 0:
            k("s_setprio %d" % (3 - ((i - 4) % 8) // 2))
        if "prio3" in OPT and ((i - 4) % 8) in (0, 3, 6):
            k("s_setprio %d" % {0: 2, 3: 1, 6: 0}[(i - 4) % 8])
        if "prio1" in OPT:
            k("s_setprio %d" % (3 - ((i - 4) % 4)))
        if "prio1" in OPT and "bar4" in OPT and i == 0:
            k("s_barrier")
        tile_body(k, i, SA if i % 2 == 0 else SB, SB if i % 2 == 0 else SA)
    k("v_mov_b32 %s, %s" % (v(V_CUR), v(V_NXT)))
    k("v_add_u32 %s, %s, %s" % (v(V_NXT), s(S_NSLOT), v(V_LANE16)))
    k("s_add_u32 %s, %s, %d" % (s(S_NSLOT), s(S_NSLOT), SLOT))
    k("s_cmp_ge_u32 %s, %d" % (s(S_NSLOT), 3 * SLOT))
    k("s_cselect_b32 %s, 0, %s" % (s(S_NSLOT), s(S_NSLOT)))
    k("s_add_u32 %s, %s, 1" % (s(S_C), s(S_C)))
    k("s_cmp_lt_u32 %s, 8" % s(S_C))
    k("s_cbranch_scc1 L_attn_chunk")
    k("s_waitcnt lgkmcnt(0)")
    prof_mark(k, 4)
    mfma(k, OA, VF1, P + 4, OA)
    k("s_nop 15")
    t = V_T0
    k("v_mul_f32 %s, 0, %s" % (v(t), v(OA)))
    for j in range(1, 8):
        k("v_fma_f32 %s, %s, 0, %s" % (v(t), v(OA + j), v(t)))
    k("s_mov_b32 %s, 0x%x" % (s(S_T), f2u(2.0 ** 100)))
    k("v_cmp_ngt_f32 vcc, %s, %s" % (s(S_T), v(OA + 8)))
    k("v_cmp_u_f32 %s, %s, %s" % (s(S_C, 2), v(t), v(t)))
    k("s_nop 1")
    k("s_or_b64 vcc, vcc, %s" % s(S_C, 2))
    k("s_cbranch_vccnz L_attn_slow")
    k.label("L_attn_fin")
    k("v_rcp_f32 %s, %s" % (v(t), v(OA + 8)))
    k("s_nop 0")
    for j in range(8):
        k("v_mul_f32 %s, %s, %s" % (v(OA + j), v(OA + j), v(t)))
    for j in range(4):
        k("v_cvt_pk_bf16_f32 %s, %s, %s" % (v(P + j), v(OA + 2 * j), v(OA + 2 * j + 1)))
    k("buffer_store_dwordx4 %s, %s, %s, %s offen" % (v(P, 4), v(V_LANE16), s(S_HOS, 4), s(S_QS)))
    k("s_waitcnt vmcnt(0)")
    prof_mark(k, 5)
    prof_rt(k, 6)
    prof_store(k, S_WS, S_W, 16)
    k("s_endpgm")
    k.label("L_attn_slow")
    k("v_mov_b32 %s, 0xff800000" % v(m))
    k("s_mov_b32 %s, 0" % s(S_C))
    k.label("L_attn_slow_max")
    k("buffer_load_dwordx4 %s, %s, %s, %s offen" % (v(KF, 4), v(V_KOFF), s(S_KV, 4), s(S_C)))
    k("s_waitcnt vmcnt(0)")
    mfma(k, SA, KF, QF, "0")
    k("s_nop 15")
    for j in range(0, 16, 2):
        k("v_max3_f32 %s, %s, %s, %s" % (v(m), v(m), v(SA + j), v(SA + j + 1)))
    k("s_add_u32 %s, %s, 2048" % (s(S_C), s(S_C)))
    k("s_cmp_lt_u32 %s, 0x20000" % s(S_C))
    k("s_cbranch_scc1 L_attn_slow_max")
    k("v_mov_b32 %s, %s" % (v(V_T1), v(m)))
    k("s_nop 1")
    k("v_permlane32_swap_b32 %s, %s" % (v(V_T1), v(m)))
    k("s_nop 1")
    k("v_max_f32 %s, %s, %s" % (v(m), v(m), v(V_T1)))
    for j in range(16):
        k("v_sub_f32 %s, 0, %s" % (v(CI + j), v(m)))
        k("v_mov_b32 %s, 0" % v(OA + j))
    for j in range(4):
        k("v_mov_b32 %s, 0x%x" % (v(VF0 + j), ONES))
        k("v_mov_b32 %s, 0x%x" % (v(VF1 + j), ONES))
    k("s_mov_b32 %s, 0" % s(S_C))
    k.label("L_attn_slow_pv")
    k("buffer_load_dwordx4 %s, %s, %s, %s offen" % (v(KF, 4), v(V_KOFF), s(S_KV, 4), s(S_C)))
    k("s_mov_b64 exec, %s" % s(S_VM, 2))
    k("buffer_load_dwordx4 %s, %s, %s, %s offen" % (v(VF0, 4), v(V_VOFF), s(S_KV, 4), s(S_C)))
    k("buffer_load_dwordx4 %s, %s, %s, %s offen offset:512" % (v(VF1, 4), v(V_VOFF), s(S_KV, 4), s(S_C)))
    k("s_mov_b64 exec, -1")
    k("s_waitcnt vmcnt(0)")
    mfma(k, SA, KF, QF, CI)
    k("s_nop 15")
    for j in range(16):
        k("v_exp_f32 %s, %s" % (v(SA + j), v(SA + j)))
    k("s_nop 0")
    for j in range(8):
        k("v_cvt_pk_bf16_f32 %s, %s, %s" % (v(P + j), v(SA + 2 * j), v(SA + 2 * j + 1)))
    k("s_nop 1")
    mfma(k, OA, VF0, P, OA)
    mfma(k, OA, VF1, P + 4, OA)
    k("s_add_u32 %s, %s, 2048" % (s(S_C), s(S_C)))
    k("s_cmp_lt_u32 %s, 0x20000" % s(S_C))
    k("s_cbranch_scc1 L_attn_slow_pv")
    k("s_nop 15")
    k("s_branch L_attn_fin")
    if second_role:
        k.label("L_attn_role2")
        second_role(k)
    if standalone:
        k.label("L_attn_exit")
        nv = 128 if (common.PROF or second_role) else 112
        k.kernel_end(name, nv, nv)


if __name__ == "__main__":
    import sys
    common.PROF = "prof" in sys.argv
    OPT.update(sys.argv[1:])
    k = Asm()
    k.lines.append(HEADER.rstrip())
    k.lines.append("; @launch kernel=attn_kernel grid=(256,1,1) block=(512,1,1) lds=%d" % (3 * SLOT))
    k('.amdgcn_target "amdgcn-amd-amdhsa--gfx950"')
    gen_attn(k, "attn_kernel")
    open("attn_%s.s" % "_".join(["v"] + [x for x in sys.argv[1:] if x != "prof"]), "w").write(k.text())
```

```python
import common
from common import *

OPT = set()
XB = 16384
R = 4
SLOT = 32768
SLOT0 = 2048
SLOTE = SLOT0 + R * SLOT
L_RS, L_RM, L_CS, L_BI = 0, 512, 1024, 1536
LDS_BYTES = SLOTE

S_X, S_WQ, S_WS, S_B1, S_W1 = 4, 6, 8, 10, 40
S_XD, S_WD, S_OD = 12, 16, 20
S_W, S_RB, S_CT, S_T, S_T2, S_C, S_SLOT, S_XO, S_WO, S_LD = 24, 25, 26, 27, 28, 29, 30, 31, 32, 33
S_ONE, S_RSLOT, S_T3, S_ROT, S_CK, S_CTL = 34, 35, 36, 37, 38, 39

VXA = 4
VWA = 8
SEL, CSA = 12, 16
RS, RM = 20, 21
XF = [22, 26]
WF = [30, 46]
VX2, VW2 = 62, 66
ACC = 78
VXO, VWO, VBI, LXA, LX2, LX, LSUM, LSQ, LT = 16, 18, 21, 22, 26, 30, 46, 48, 50


class Phase:
    def __init__(self, F):
        self.F = F
        self.qkv = F == 3
        self.RB = F * 64
        self.NW = 3 if self.qkv else 4
        self.NPC = 4 + self.NW
        self.wrow = 3072 if self.qkv else 3584
        self.nh = 8 if self.qkv else 7
        self.pre = "Q" if self.qkv else "F"


def entry(k, pre, nwg, phases):
    k("s_cmp_ge_u32 s2, %d" % nwg)
    k("s_cbranch_scc1 %s_exit" % pre)
    prof_start(k)
    k("s_load_dwordx2 %s, s[0:1], %d" % (s(S_X, 2), KA_X))
    k("s_load_dwordx2 %s, s[0:1], %d" % (s(S_WQ, 2), KA_WQKV))
    k("s_load_dwordx2 %s, s[0:1], %d" % (s(S_WS, 2), KA_WS))
    k("s_load_dwordx2 %s, s[0:1], %d" % (s(S_B1, 2), KA_B1))
    k("s_load_dwordx2 %s, s[0:1], %d" % (s(S_W1, 2), KA_W1))
    k("v_lshrrev_b32 v1, 6, v0")
    k("v_and_b32 v0, 63, v0")
    k("v_readfirstlane_b32 %s, v1" % s(S_W))
    k("s_lshr_b32 %s, s2, 3" % s(S_T))
    k("s_and_b32 %s, %s, 3" % (s(S_T2), s(S_T)))
    k("s_lshr_b32 %s, %s, 2" % (s(S_CTL), s(S_T)))
    k("s_lshl_b32 %s, %s, 1" % (s(S_ROT), s(S_T2)))
    k("s_add_u32 %s, %s, %s" % (s(S_ROT), s(S_ROT), s(S_CTL)))
    k("s_and_b32 %s, %s, %d" % (s(S_ROT), s(S_ROT), 7 if "rot8" in OPT else (0 if "rot1" in OPT else (4 if "rot2" in OPT else 6))))
    k("s_bfe_u32 %s, s2, 0x20001" % s(S_RB))
    k("s_lshl_b32 %s, %s, 2" % (s(S_RB), s(S_RB)))
    k("s_add_u32 %s, %s, %s" % (s(S_RB), s(S_RB), s(S_T2)))
    k("s_mov_b32 %s, 0x3f803f80" % s(S_ONE))
    k("s_cmp_ge_u32 %s, 4" % s(S_W))
    k("s_cbranch_scc1 %s_loader" % pre)


def col_tile(k, ph):
    k("s_and_b32 %s, s2, 1" % s(S_CT))
    k("s_mul_i32 %s, %s, %d" % (s(S_CT), s(S_CT), ph.nh))
    k("s_add_u32 %s, %s, %s" % (s(S_CT), s(S_CT), s(S_CTL)))


def lane_helpers(k):
    k("v_and_b32 v1, 31, v0")
    k("v_lshrrev_b32 v2, 5, v0")


def wfrag_addr(k, ph, dst):
    k("v_bfe_u32 v12, v0, 2, 2")
    k("v_and_b32 v13, 3, v0")
    k("v_bfe_u32 v14, v0, 4, 1")
    k("v_lshl_add_u32 v13, v14, 2, v13")
    k("v_and_b32 v14, 1, v13")
    k("v_lshrrev_b32 v15, 1, v13")
    if ph.qkv:
        k("v_lshl_add_u32 v13, v14, 2, v15")
    else:
        k("v_lshrrev_b32 v3, 1, v15")
        k("v_and_b32 v15, 1, v15")
        k("v_lshl_add_u32 v15, v14, 1, v15")
        k("v_lshl_add_u32 v13, v3, 2, v15")
    k("v_lshl_add_u32 v14, v2, 3, v12")
    k("v_mul_u32_u24 v14, %d, v14" % ph.RB)
    k("v_lshl_add_u32 v14, v13, 3, v14")
    k("v_add_u32 v14, %d, v14" % XB)
    if ph.qkv:
        k("v_mov_b32 %s, v14" % v(dst))
    else:
        for ft in range(4):
            k("v_xor_b32 v15, %d, v12" % ft)
            k("v_lshl_add_u32 %s, v15, 6, v14" % v(dst + ft))


def next_slot(k, r):
    k("s_add_u32 %s, %s, %d" % (s(r), s(r), SLOT))
    k("s_cmp_ge_u32 %s, %d" % (s(r), SLOTE))
    k("s_cselect_b32 %s, %d, %s" % (s(r), SLOT0, s(r)))


def compute_setup(k):
    k("s_waitcnt lgkmcnt(0)")
    k.srd(S_OD, S_WS, WS_END)
    lane_helpers(k)
    k("s_lshl_b32 %s, %s, 12" % (s(S_T), s(S_W)))
    k("v_lshrrev_b32 v3, 1, v1")
    k("v_and_b32 v3, 7, v3")
    k("v_xor_b32 v3, v3, v2")
    k("v_lshlrev_b32 v8, 7, v1")
    k("v_add_u32 v8, %s, v8" % s(S_T))
    for st in range(4):
        k("v_xor_b32 v9, %d, v3" % (2 * st))
        k("v_lshl_add_u32 %s, v9, 4, v8" % v(VXA + st))
    k("s_mov_b32 %s, %d" % (s(S_SLOT), SLOT0))


def compute_phase(k, ph, pre, first):
    F, RB = ph.F, ph.RB
    p = pre + ph.pre
    NA = 1 if ph.qkv else 4
    col_tile(k, ph)
    wfrag_addr(k, ph, VWA)
    k("v_and_b32 v3, 15, v0")
    k("v_bfe_u32 %s, v0, 4, 1" % v(SEL))
    k("v_cmp_eq_u32 vcc, v3, %s" % v(SEL))
    k("v_mov_b32 %s, 0x3f803f80" % v(SEL + 1))
    k("s_nop 0")
    k("v_cndmask_b32 %s, 0, %s, vcc" % (v(SEL), v(SEL + 1)))
    for r in range(1, 4):
        k("v_mov_b32 %s, %s" % (v(SEL + r), v(SEL)))
    for j in range(4):
        k("v_mov_b32 %s, 0" % v(CSA + j))
    for j in range(F * 16):
        k("v_mov_b32 %s, 0" % v(ACC + j))
    k("s_mov_b32 %s, 0" % s(S_C))
    k("s_setprio 2")

    def xa(par, step):
        return VX2 + 8 * par + step

    def wa(par, ft):
        return VW2 + 8 * par + (0 if ph.qkv else ft)

    def rd_x(par, step, buf):
        return ["ds_read_b128 %s, %s" % (v(XF[buf], 4), v(xa(par, step)))]

    def rd_w(par, step, buf, ft):
        off = step * 16 * RB + (ft * 64 if ph.qkv else 0)
        return ["ds_read_b64_tr_b16 %s, %s offset:%d" % (v(WF[buf] + 4 * ft + 2 * u, 2), v(wa(par, ft)), off + u * 4 * RB) for u in range(2)]

    def mfma(buf, ft):
        d = v(ACC + 16 * ft, 16)
        if ph.qkv and ft == 2:
            k("v_mfma_f32_32x32x16_bf16 %s, %s, %s, %s" % (d, v(XF[buf], 4), v(WF[buf] + 4 * ft, 4), d))
        else:
            k("v_mfma_f32_32x32x16_bf16 %s, %s, %s, %s" % (d, v(WF[buf] + 4 * ft, 4), v(XF[buf], 4), d))

    def slot_ops(par):
        ops = ["v_add_u32 %s, %s, %s" % (v(xa(par, st)), s(S_SLOT), v(VXA + st)) for st in range(4)]
        ops += ["v_add_u32 %s, %s, %s" % (v(VW2 + 8 * par + j), s(S_SLOT), v(VWA + j)) for j in range(NA)]
        return ops

    k("s_barrier")
    if first:
        prof_mark(k, 2)
    for ins in slot_ops(0) + rd_x(0, 0, 0) + sum((rd_w(0, 0, 0, ft) for ft in range(F)), []):
        k(ins)
    for w in range(1, 4):
        k("s_cmp_eq_u32 %s, %d" % (s(S_W), w))
        k("s_cbranch_scc1 %s_cloop%d" % (p, w))
    for w in range(4):
        k(".p2align 3")
        k.label("%s_cloop%d" % (p, w))
        for par in range(2):
            for st in range(4):
                b, nb, ns = st & 1, (st + 1) & 1, (st + 1) & 3
                npar = par if st < 3 else 1 - par
                for ft in range(F):
                    newer = 2 * (F - 1 - ft) + (0 if ft == 0 else 1 + 2 * ft)
                    k("s_waitcnt lgkmcnt(%d)" % newer)
                    if "nomfma" not in OPT:
                        mfma(b, ft)
                    if st == 2 and ft == F - 1:
                        next_slot(k, S_SLOT)
                    if st == 3 and ft == 0:
                        for ins in slot_ops(npar):
                            k(ins)
                        k("s_barrier")
                    if ft == 0 and "noread" not in OPT:
                        for ins in rd_x(npar, ns, nb):
                            k(ins)
                    for ins in (rd_w(npar, ns, nb, ft) if "noread" not in OPT else []):
                        k(ins)
                    if ft == F - 1 and w < F and "nocs" not in OPT:
                        k("v_mfma_f32_16x16x32_bf16 %s, %s, %s, %s" % (v(CSA, 4), v(WF[b] + 4 * w, 4), v(SEL, 4), v(CSA, 4)))
        k("s_add_u32 %s, %s, 1" % (s(S_C), s(S_C)))
        k("s_cmp_lt_u32 %s, 4" % s(S_C))
        k("s_cbranch_scc1 %s_cloop%d" % (p, w))
        if w < 3:
            k("s_branch %s_cdone" % p)
    k.label(p + "_cdone")
    if first:
        prof_mark(k, 3)
    k("s_waitcnt lgkmcnt(0)")
    k("v_and_b32 v3, 1, v0")
    k("v_lshlrev_b32 v3, 6, v3")
    k("v_lshrrev_b32 %s, 4, v0" % v(XF[0]))
    k("v_lshl_add_u32 v3, %s, 4, v3" % v(XF[0]))
    k("s_lshl_b32 %s, %s, 7" % (s(S_T), s(S_W)))
    k("v_add_u32 v3, %s, v3" % s(S_T))
    k("s_mov_b32 exec_lo, 0x00030003")
    k("s_mov_b32 exec_hi, 0x00030003")
    k("ds_write_b128 v3, %s offset:%d" % (v(CSA, 4), L_CS))
    k("s_mov_b64 exec, -1")
    k("s_waitcnt lgkmcnt(0)")
    k("s_barrier")
    if first:
        k("s_lshl_b32 %s, %s, 7" % (s(S_T), s(S_W)))
        k("v_lshl_add_u32 v3, v1, 2, %s" % s(S_T))
        k("ds_read_b32 %s, v3 offset:%d" % (v(RS), L_RS))
        k("ds_read_b32 %s, v3 offset:%d" % (v(RM), L_RM))
        k("s_waitcnt lgkmcnt(0)")
    epilogue(k, ph)


def epilogue(k, ph):
    T0 = WF[0]
    k("v_lshlrev_b32 v12, 4, v2")
    k("s_lshl_b32 %s, %s, 2" % (s(S_T2), s(S_RB)))
    k("s_add_u32 %s, %s, %s" % (s(S_T2), s(S_T2), s(S_W)))
    if ph.qkv:
        cq = 0.25 * LOG2E
        for ft in range(2):
            for g in range(4):
                k("ds_read_b128 %s, v12 offset:%d" % (v(T0 + 16 * ft + 4 * g, 4), L_CS + ft * 128 + g * 32))
        k("s_lshl_b32 %s, %s, 1" % (s(S_T), s(S_CT)))
        k("v_add_u32 v14, %s, v2" % s(S_T))
        k("v_lshlrev_b32 v15, 4, v1")
        k("v_lshl_add_u32 v4, v14, 16, v15")
        k("s_lshl_b32 %s, %s, 10" % (s(S_T), s(S_T2)))
        k("v_add_u32 v4, %s, v4" % s(S_T))
        k("v_lshl_add_u32 v5, v14, 17, v15")
        k("s_lshl_b32 %s, %s, 11" % (s(S_T), s(S_T2)))
        k("s_add_u32 %s, %s, 0x%x" % (s(S_T), s(S_T), WS_KV))
        k("v_add_u32 v5, %s, v5" % s(S_T))
        k("v_mul_f32 v6, 0x%x, %s" % (f2u(cq), v(RS)))
        k("v_mul_f32 v7, 0x%x, %s" % (f2u(cq), v(RM)))
        for ft, dst in ((0, 4), (1, 5)):
            k("s_waitcnt lgkmcnt(%d)" % (4 if ft == 0 else 0))
            A, T = ACC + 16 * ft, T0 + 16 * ft
            a_rs, a_rm = ("v6", "v7") if ft == 0 else (v(RS), v(RM))
            for r in range(16):
                k("v_mul_f32 %s, %s, %s" % (v(T + r), v(T + r), a_rm))
            for r in range(16):
                k("v_fma_f32 %s, %s, %s, -%s" % (v(A + r), v(A + r), a_rs, v(T + r)))
            for r in range(8):
                k("v_cvt_pk_bf16_f32 %s, %s, %s" % (v(A + r), v(A + 2 * r), v(A + 2 * r + 1)))
            k("buffer_store_dwordx4 %s, %s, %s, 0 offen" % (v(A, 4), v(dst), s(S_OD, 4)))
            k("buffer_store_dwordx4 %s, %s, %s, 0 offen offset:512" % (v(A + 4, 4), v(dst), s(S_OD, 4)))
            if ft == 0:
                k("s_lshl_b32 %s, %s, 7" % (s(S_T), s(S_W)))
                k("v_add_u32 v3, %s, v12" % s(S_T))
                for g in range(4):
                    k("ds_read_b128 %s, v3 offset:%d" % (v(T0 + 4 * g, 4), L_RS + g * 32))
        A = ACC + 32
        for g in range(4):
            k("ds_read_b128 %s, v3 offset:%d" % (v(T0 + 16 + 4 * g, 4), L_RM + g * 32))
        k("v_lshlrev_b32 v3, 2, v1")
        k("ds_read_b32 v6, v3 offset:%d" % (L_CS + 2 * 128))
        k("v_bfe_u32 v14, v1, 2, 1")
        k("v_lshrrev_b32 v15, 3, v1")
        k("v_and_b32 v7, 3, v1")
        k("v_and_b32 v8, 1, v15")
        k("v_lshrrev_b32 v15, 1, v15")
        k("v_lshl_add_u32 v7, v15, 2, v7")
        k("v_lshl_add_u32 v7, v8, 3, v7")
        k("v_lshlrev_b32 v7, 4, v7")
        k("s_lshl_b32 %s, %s, 1" % (s(S_T), s(S_CT)))
        k("v_add_u32 v14, %s, v14" % s(S_T))
        k("v_lshl_add_u32 v7, v14, 17, v7")
        k("v_lshl_add_u32 v7, v2, 8, v7")
        k("s_lshl_b32 %s, %s, 11" % (s(S_T), s(S_T2)))
        k("s_add_u32 %s, %s, 0x%x" % (s(S_T), s(S_T), WS_KV + 1024))
        k("v_add_u32 v7, %s, v7" % s(S_T))
        k("s_waitcnt lgkmcnt(0)")
        for r in range(16):
            k("v_mul_f32 %s, %s, v6" % (v(T0 + 16 + r), v(T0 + 16 + r)))
        for r in range(16):
            k("v_fma_f32 %s, %s, %s, -%s" % (v(A + r), v(A + r), v(T0 + r), v(T0 + 16 + r)))
        for r in range(8):
            k("v_cvt_pk_bf16_f32 %s, %s, %s" % (v(A + r), v(A + 2 * r), v(A + 2 * r + 1)))
        k("buffer_store_dwordx4 %s, v7, %s, 0 offen" % (v(A, 4), s(S_OD, 4)))
        k("buffer_store_dwordx4 %s, v7, %s, 0 offen offset:512" % (v(A + 4, 4), s(S_OD, 4)))
    else:
        k("v_lshlrev_b32 v13, 4, v0")
        k("s_mul_i32 %s, %s, %d" % (s(S_T), s(S_T2), WS_HO_ROW))
        k("s_lshl_b32 %s, %s, 13" % (s(S_T3), s(S_CT)))
        k("s_add_u32 %s, %s, %s" % (s(S_T), s(S_T), s(S_T3)))
        k("s_add_u32 %s, %s, 0x%x" % (s(S_T), s(S_T), WS_HO))
        k("v_add_u32 v4, %s, v13" % s(S_T))
        for ft in range(4):
            for g in range(4):
                k("ds_read_b128 %s, v12 offset:%d" % (v(T0 + 4 * g, 4), L_CS + ft * 128 + g * 32))
                k("ds_read_b128 %s, v12 offset:%d" % (v(T0 + 16 + 4 * g, 4), L_BI + ft * 128 + g * 32))
            k("s_waitcnt lgkmcnt(0)")
            A = ACC + 16 * ft
            for r in range(16):
                k("v_fma_f32 %s, -%s, %s, %s" % (v(T0 + r), v(T0 + r), v(RM), v(T0 + 16 + r)))
            for r in range(16):
                k("v_fma_f32 %s, %s, %s, %s" % (v(A + r), v(A + r), v(RS), v(T0 + r)))
            for r in range(16):
                k("v_max_f32 %s, 0, %s" % (v(A + r), v(A + r)))
            for r in range(16):
                k("v_mul_f32 %s, %s, %s" % (v(A + r), v(A + r), v(A + r)))
            for r in range(8):
                k("v_cvt_pk_bf16_f32 %s, %s, %s" % (v(A + r), v(A + 2 * r), v(A + 2 * r + 1)))
            k("buffer_store_dwordx4 %s, v4, %s, 0 offen offset:%d" % (v(A, 4), s(S_OD, 4), 2048 * (ft & 1)))
            k("buffer_store_dwordx4 %s, v4, %s, 0 offen offset:%d" % (v(A + 4, 4), s(S_OD, 4), 2048 * (ft & 1) + 1024))
            if ft == 1:
                k("v_add_u32 v4, 4096, v4")


def loader_setup(k):
    k("s_setprio 3")
    k("s_sub_u32 %s, %s, 4" % (s(S_LD), s(S_W)))
    k("v_lshrrev_b32 v12, 3, v0")
    k("v_and_b32 v13, 7, v0")
    k("v_lshrrev_b32 v3, 1, v12")
    for p in range(2):
        k("v_add_u32 v14, %d, v3" % (4 * p))
        k("v_and_b32 v14, 7, v14")
        k("v_xor_b32 v14, v14, v13")
        k("v_lshlrev_b32 v14, 4, v14")
        k("v_lshl_add_u32 %s, v12, 10, v14" % v(VXO + p))
    k("s_lshl_b32 %s, %s, 2" % (s(S_XO), s(S_RB)))
    k("s_add_u32 %s, %s, %s" % (s(S_XO), s(S_XO), s(S_LD)))
    k("s_lshl_b32 %s, %s, 15" % (s(S_XO), s(S_XO)))
    k("s_mov_b32 %s, %d" % (s(S_RSLOT), SLOT0))
    k("s_mov_b32 %s, %d" % (s(S_SLOT), SLOT0))
    k("s_waitcnt lgkmcnt(0)")
    k.srd(S_XD, S_X, 2048 * 1024)


def issue_x(k):
    k("s_lshl_b32 %s, %s, 12" % (s(S_T), s(S_LD)))
    k("s_add_u32 m0, %s, %s" % (s(S_T), s(S_RSLOT)))
    k("s_lshl_b32 %s, %s, 7" % (s(S_T2), s(S_CK)))
    k("s_add_u32 %s, %s, %s" % (s(S_T2), s(S_T2), s(S_XO)))
    for i in range(4):
        k("buffer_load_dwordx4 %s, %s, %s offen lds" % (v(VXO + (i & 1)), s(S_XD, 4), s(S_T2)))
        if i < 3:
            k("s_add_u32 m0, m0, 1024")
            k("s_add_u32 %s, %s, 8192" % (s(S_T2), s(S_T2)))


def issue_w(k, ph):
    k("s_mul_i32 %s, %s, %d" % (s(S_T), s(S_LD), ph.NW * 1024))
    k("s_add_u32 %s, %s, %s" % (s(S_T), s(S_T), s(S_RSLOT)))
    k("s_add_u32 m0, %s, %d" % (s(S_T), XB))
    k("s_mul_i32 %s, %s, %d" % (s(S_T2), s(S_CK), 64 * ph.wrow))
    k("s_add_u32 %s, %s, %s" % (s(S_T2), s(S_T2), s(S_WO)))
    for i in range(ph.NW):
        k("buffer_load_dwordx4 %s, %s, %s offen lds" % (v(VWO + (i if ph.qkv else 0)), s(S_WD, 4), s(S_T2)))
        if i < ph.NW - 1:
            k("s_add_u32 m0, m0, 1024")
            if ph.qkv:
                k("s_nop 0")
            else:
                k("s_add_u32 %s, %s, %d" % (s(S_T2), s(S_T2), 4 * ph.wrow))


def advance(k):
    k("s_add_u32 %s, %s, 1" % (s(S_CK), s(S_CK)))
    k("s_and_b32 %s, %s, 7" % (s(S_CK), s(S_CK)))
    next_slot(k, S_RSLOT)


def loader_w_setup(k, ph):
    col_tile(k, ph)
    k.srd(S_WD, S_WQ if ph.qkv else S_W1, 512 * ph.wrow)
    if ph.qkv:
        k("s_mov_b32 %s, 0x%x" % (s(S_T), (2 ** 32 + 191) // 192))
        for j in range(3):
            k("v_lshlrev_b32 v12, 4, v0")
            k("v_add_u32 v12, %d, v12" % (1024 * j))
            k("v_mul_hi_u32 v13, v12, %s" % s(S_T))
            k("v_mul_u32_u24 v14, 192, v13")
            k("v_sub_u32 v14, v12, v14")
            k("v_lshrrev_b32 v15, 6, v14")
            k("v_and_b32 v14, 63, v14")
            k("v_mul_u32_u24 v13, 3072, v13")
            k("v_lshl_add_u32 v13, v15, 10, v13")
            k("v_add_u32 %s, v13, v14" % v(VWO + j))
    else:
        k("v_lshrrev_b32 v12, 4, v0")
        k("v_bfe_u32 v13, v0, 2, 2")
        k("v_xor_b32 v13, v13, v12")
        k("v_lshlrev_b32 v13, 6, v13")
        k("v_and_b32 v14, 3, v0")
        k("v_lshl_add_u32 v13, v14, 4, v13")
        k("v_mul_u32_u24 v12, 3584, v12")
        k("v_add_u32 %s, v12, v13" % v(VWO))
    k("s_mul_i32 %s, %s, %d" % (s(S_WO), s(S_LD), 16 * ph.wrow))
    k("s_lshl_b32 %s, %s, %d" % (s(S_T), s(S_CT), 6 if ph.qkv else 8))
    k("s_add_u32 %s, %s, %s" % (s(S_WO), s(S_WO), s(S_T)))


def loader_prologue(k, ph):
    k("s_mov_b32 %s, %s" % (s(S_CK), s(S_ROT)))
    issue_x(k)
    loader_w_setup(k, ph)
    issue_w(k, ph)
    advance(k)


class Groups:
    def __init__(self):
        self.groups = [[]]

    def __call__(self, txt):
        self.groups[-1].append(txt)
        if txt.startswith("buffer_load"):
            self.groups.append([])


def loader_phase(k, ph, pre, first):
    p = pre + ph.pre
    dostat = first and "nostat" not in OPT

    def stat_reads():
        for st in range(4):
            k("v_add_u32 %s, %s, %s" % (v(LX2 + st), s(S_SLOT), v(LXA + st)))
            k("ds_read_b128 %s, %s" % (v(LX + 4 * st, 4), v(LX2 + st)))

    def stat_dots():
        k("s_waitcnt lgkmcnt(0)")
        k("s_setprio 3")
        for j in range(16):
            k("v_dot2c_f32_bf16 %s, %s, %s" % (v(LSUM + (j & 1)), v(LT), v(LX + j)))
            k("v_dot2c_f32_bf16 %s, %s, %s" % (v(LSQ + (j & 1)), v(LX + j), v(LX + j)))
        k("s_setprio 1")

    if dostat:
        lane_helpers(k)
        k("s_lshl_b32 %s, %s, 12" % (s(S_T), s(S_LD)))
        k("v_lshrrev_b32 v3, 1, v1")
        k("v_and_b32 v3, 7, v3")
        k("v_xor_b32 v3, v3, v2")
        for st in range(4):
            k("v_xor_b32 %s, %d, v3" % (v(LXA + st), 2 * st))
            k("v_lshlrev_b32 %s, 4, %s" % (v(LXA + st), v(LXA + st)))
            k("v_lshl_add_u32 %s, v1, 7, %s" % (v(LXA + st), v(LXA + st)))
            k("v_add_u32 %s, %s, %s" % (v(LXA + st), s(S_T), v(LXA + st)))
        for r in range(4):
            k("v_mov_b32 %s, 0" % v(LSUM + r))
        k("v_mov_b32 %s, 0x3f803f80" % v(LT))
    k("s_waitcnt vmcnt(0)")
    k("s_barrier")
    k("s_setprio 1")
    for c in range(2):
        issue_x(k)
        issue_w(k, ph)
        advance(k)
    if not ph.qkv:
        k("v_and_b32 v3, 31, v0")
        k("v_lshrrev_b32 v12, 3, v3")
        k("v_bfe_u32 v13, v3, 2, 1")
        k("v_and_b32 v14, 3, v3")
        k("v_lshrrev_b32 v15, 1, v12")
        k("v_and_b32 v12, 1, v12")
        k("v_lshl_add_u32 v14, v12, 2, v14")
        k("v_lshl_add_u32 v14, v13, 3, v14")
        k("v_lshl_add_u32 v14, v15, 4, v14")
        k("s_lshl_b32 %s, %s, 7" % (s(S_T), s(S_CT)))
        k("s_lshl_b32 %s, %s, 5" % (s(S_T2), s(S_LD)))
        k("s_add_u32 %s, %s, %s" % (s(S_T), s(S_T), s(S_T2)))
        k("v_add_u32 v14, %s, v14" % s(S_T))
        k("v_lshlrev_b32 v14, 1, v14")
        k("global_load_ushort %s, v14, %s" % (v(VBI), s(S_B1, 2)))
    if dostat:
        stat_reads()
        stat_dots()
    next_slot(k, S_SLOT)
    k("s_mov_b32 %s, 1" % s(S_C))
    extra = 0 if ph.qkv else 1
    k.label(p + "_lloop")
    k("s_cmp_ge_u32 %s, 7" % s(S_C))
    k("s_cbranch_scc1 %s_llast" % p)
    if extra:
        k("s_cmp_eq_u32 %s, 1" % s(S_C))
        k("s_cbranch_scc0 %s_lw" % p)
        k("s_waitcnt vmcnt(%d)" % (ph.NPC + extra))
        k("s_branch %s_lbar" % p)
        k.label(p + "_lw")
    k("s_waitcnt vmcnt(%d)" % ph.NPC)
    k("s_branch %s_lbar" % p)
    k.label(p + "_llast")
    k("s_waitcnt vmcnt(0)")
    k.label(p + "_lbar")
    if "lprof" in OPT:
        k("s_cmp_eq_u32 %s, 4" % s(S_C))
        k("s_cbranch_scc0 %s_npa" % p)
        prof_mark(k, 5)
        k.label(p + "_npa")
    k("s_barrier")
    if "lprof" in OPT:
        k("s_cmp_eq_u32 %s, 3" % s(S_C))
        k("s_cbranch_scc0 %s_npb" % p)
        prof_mark(k, 2)
        k.label(p + "_npb")
    if dostat:
        stat_reads()
    k("s_cmp_ge_u32 %s, 6" % s(S_C))
    k("s_cbranch_scc1 %s_lnoissue" % p)
    if "nodma" not in OPT:
        issue_x(k)
        issue_w(k, ph)
        advance(k)
    k.label(p + "_lnoissue")
    if "lprof" in OPT:
        k("s_cmp_eq_u32 %s, 3" % s(S_C))
        k("s_cbranch_scc0 %s_npc" % p)
        prof_mark(k, 3)
        k.label(p + "_npc")
    if dostat:
        stat_dots()
    if "lprof" in OPT:
        k("s_cmp_eq_u32 %s, 3" % s(S_C))
        k("s_cbranch_scc0 %s_npd" % p)
        prof_mark(k, 4)
        k.label(p + "_npd")
    next_slot(k, S_SLOT)
    k("s_add_u32 %s, %s, 1" % (s(S_C), s(S_C)))
    k("s_cmp_lt_u32 %s, 8" % s(S_C))
    k("s_cbranch_scc1 %s_lloop" % p)
    k("s_barrier")
    k("s_lshl_b32 %s, %s, 7" % (s(S_T), s(S_LD)))
    k("v_and_b32 v1, 31, v0")
    k("v_lshl_add_u32 v12, v1, 2, %s" % s(S_T))
    if first:
        for r in (LSUM, LSQ):
            k("v_add_f32 %s, %s, %s" % (v(r), v(r), v(r + 1)))
            k("v_mov_b32 %s, %s" % (v(r + 1), v(r)))
            k("s_nop 1")
            k("v_permlane32_swap_b32 %s, %s" % (v(r + 1), v(r)))
            k("s_nop 1")
            k("v_add_f32 %s, %s, %s" % (v(r), v(r), v(r + 1)))
        k("v_mul_f32 %s, 0x%x, %s" % (v(LSUM), f2u(1.0 / 512), v(LSUM)))
        k("v_mul_f32 %s, 0x%x, %s" % (v(LSQ), f2u(1.0 / 512), v(LSQ)))
        k("v_fma_f32 %s, -%s, %s, %s" % (v(LSQ), v(LSUM), v(LSUM), v(LSQ)))
        k("v_max_f32 %s, 0, %s" % (v(LSQ), v(LSQ)))
        k("v_add_f32 %s, 0x%x, %s" % (v(LSQ), f2u(1e-5), v(LSQ)))
        k("v_rsq_f32 %s, %s" % (v(LSQ), v(LSQ)))
        k("s_nop 0")
        k("v_mul_f32 %s, %s, %s" % (v(LSUM), v(LSUM), v(LSQ)))
        k("ds_write_b32 v12, %s offset:%d" % (v(LSQ), L_RS))
        k("ds_write_b32 v12, %s offset:%d" % (v(LSUM), L_RM))
    if not ph.qkv:
        k("v_lshlrev_b32 %s, 16, %s" % (v(VBI), v(VBI)))
        k("ds_write_b32 v12, %s offset:%d" % (v(VBI), L_BI))
    k("s_waitcnt lgkmcnt(0)")
    k("s_barrier")


def finish(k, wave_reg):
    k("s_waitcnt vmcnt(0)")
    if "lprof" not in OPT:
        prof_mark(k, 5)
    prof_rt(k, 6)
    prof_store(k, S_WS, wave_reg, 30)
    k("s_endpgm")


def gen(k, name, pre, which):
    ph = Phase(3 if which == "qkv" else 4)
    nwg = 16 * (16 if ph.qkv else 14)
    k.kernel_begin(name)
    entry(k, pre, nwg, [ph])
    compute_setup(k)
    compute_phase(k, ph, pre, True)
    finish(k, S_W)
    k.label(pre + "_loader")
    loader_setup(k)
    if "lprof" not in OPT:
        prof_mark(k, 2)
    loader_prologue(k, ph)
    if "lprof" not in OPT:
        prof_mark(k, 3)
    loader_phase(k, ph, pre, True)
    if "lprof" not in OPT:
        prof_mark(k, 4)
    finish(k, S_W)
    k.label(pre + "_exit")
    k.kernel_end(name, 144, 144)
    return nwg, LDS_BYTES
```

```python
import common
from common import *

OPT = set()
S_X, S_W2, S_WOP, S_B2, S_OUT, S_WS = 4, 6, 8, 10, 12, 14
S_HD, S_WD, S_XD, S_OD, S_BD = 16, 20, 28, 32, 52
S_W, S_RB, S_CB, S_T, S_T2, S_LB = 36, 37, 38, 39, 40, 41
S_XO0, S_XO1, S_WO, S_WRAP, S_LEFT, S_N, S_TRIP, S_RL = 42, 43, 44, 45, 46, 47, 48, 49
S_BX, S_BW, S_BWRAP = 56, 57, 58
D = 4
WSLOT = 2048
RING = D * WSLOT
VWS, VWR, VL16 = 4, 6, 3
XF, WF, ACC = 16, 48, 64
NA, NB = 28, 8


def setup(k):
    k("v_and_b32 v1, 31, v0")
    k("v_lshrrev_b32 v2, 5, v0")
    k("v_lshlrev_b32 v3, 4, v0")
    k("v_lshrrev_b32 v4, 3, v0")
    k("v_bfe_u32 v5, v0, 2, 1")
    k("v_bfe_u32 v6, v0, 4, 1")
    k("v_xor_b32 v5, v5, v6")
    k("v_and_b32 v6, 3, v0")
    k("v_lshlrev_b32 v6, 4, v6")
    k("v_lshl_add_u32 v5, v5, 6, v6")
    k("v_lshl_add_u32 v4, v4, 10, v5")
    k("v_bfe_u32 v12, v0, 2, 2")
    k("v_and_b32 v13, 3, v0")
    k("v_bfe_u32 v14, v0, 4, 1")
    k("v_lshl_add_u32 v13, v14, 2, v13")
    k("v_and_b32 v14, 1, v13")
    k("v_lshrrev_b32 v15, 1, v13")
    k("v_lshrrev_b32 v8, 1, v15")
    k("v_and_b32 v15, 1, v15")
    k("v_lshl_add_u32 v15, v14, 1, v15")
    k("v_lshl_add_u32 v13, v8, 2, v15")
    k("v_lshl_add_u32 v14, v2, 3, v12")
    k("v_lshlrev_b32 v14, 7, v14")
    k("v_lshl_add_u32 v14, v13, 3, v14")
    k("v_lshrrev_b32 v12, 1, v12")
    k("v_add_u32 v14, %s, v14" % s(S_LB))
    for ft in range(2):
        k("v_xor_b32 v15, %d, v12" % ft)
        k("v_lshl_add_u32 %s, v15, 6, v14" % v(VWR + ft))
    for j in range(64):
        k("v_mov_b32 %s, 0" % v(ACC + j))


def seg_params(k, n, kbase, dx, dw, dwrap):
    k("s_mul_i32 %s, %s, %d" % (s(S_T), s(S_RL), n // 4))
    k("s_mul_i32 %s, %s, %d" % (s(S_T2), s(S_CB), n))
    k("s_lshr_b32 %s, %s, 3" % (s(S_T2), s(S_T2)))
    k("s_add_u32 %s, %s, %s" % (s(S_T), s(S_T), s(S_T2)))
    k("s_cmp_ge_u32 %s, %d" % (s(S_T), n))
    k("s_cselect_b32 %s, %d, 0" % (s(S_T2), n))
    k("s_sub_u32 %s, %s, %s" % (s(S_T), s(S_T), s(S_T2)))
    k("s_sub_u32 %s, %d, %s" % (s(dwrap), n, s(S_T)))
    k("s_mul_i32 %s, %s, %d" % (s(S_T2), s(S_W), n))
    k("s_add_u32 %s, %s, %s" % (s(S_T), s(S_T), s(S_T2)))
    k("s_lshl_b32 %s, %s, 14" % (s(dw), s(S_T)))
    k("s_lshl_b32 %s, %s, 7" % (s(S_T2), s(S_CB)))
    k("s_add_u32 %s, %s, %s" % (s(dw), s(dw), s(S_T2)))
    k("s_add_u32 %s, %s, %d" % (s(S_T), s(S_T), kbase))
    k("s_lshl_b32 %s, %s, 10" % (s(S_T), s(S_T)))
    k("s_lshl_b32 %s, %s, 1" % (s(S_T2), s(S_RB)))
    k("s_mul_i32 %s, %s, %d" % (s(dx), s(S_T2), WS_HO_ROW))
    k("s_add_u32 %s, %s, %s" % (s(dx), s(dx), s(S_T)))
    k("s_add_u32 %s, %s, 0x%x" % (s(dx), s(dx), WS_HO))


def issue_groups(slot):
    g = []
    g.append(["buffer_load_dwordx4 %s, v3, %s, %s offen" % (v(XF + 8 * slot, 4), s(S_HD, 4), s(S_XO0))])
    g.append(["s_add_u32 %s, %s, %d" % (s(S_XO1), s(S_XO0), WS_HO_ROW),
              "buffer_load_dwordx4 %s, v3, %s, %s offen" % (v(XF + 8 * slot + 4, 4), s(S_HD, 4), s(S_XO1))])
    g.append(["s_add_u32 m0, %s, %d" % (s(S_LB), slot * WSLOT),
              "s_add_u32 %s, %s, 8192" % (s(S_T), s(S_WO)),
              "buffer_load_dwordx4 v4, %s, %s offen lds" % (s(S_WD, 4), s(S_WO))])
    g.append(["s_add_u32 m0, m0, 1024", "s_nop 0",
              "buffer_load_dwordx4 v4, %s, %s offen lds" % (s(S_WD, 4), s(S_T))])
    return g


def advance(k, lab, two_segments):
    k("s_add_u32 %s, %s, 1024" % (s(S_XO0), s(S_XO0)))
    k("s_add_u32 %s, %s, 16384" % (s(S_WO), s(S_WO)))
    k("s_sub_u32 %s, %s, 1" % (s(S_WRAP), s(S_WRAP)))
    k("s_cmp_lg_u32 %s, 0" % s(S_WRAP))
    k("s_cbranch_scc1 %s_nw" % lab)
    k("s_lshl_b32 %s, %s, 10" % (s(S_T), s(S_N)))
    k("s_sub_u32 %s, %s, %s" % (s(S_XO0), s(S_XO0), s(S_T)))
    k("s_lshl_b32 %s, %s, 14" % (s(S_T), s(S_N)))
    k("s_sub_u32 %s, %s, %s" % (s(S_WO), s(S_WO), s(S_T)))
    k("s_mov_b32 %s, %s" % (s(S_WRAP), s(S_N)))
    k.label(lab + "_nw")
    if two_segments:
        k("s_sub_u32 %s, %s, 1" % (s(S_LEFT), s(S_LEFT)))
        k("s_cmp_lg_u32 %s, 0" % s(S_LEFT))
        k("s_cbranch_scc1 %s_ns" % lab)
        k("s_mov_b32 %s, %s" % (s(S_XO0), s(S_BX)))
        k("s_mov_b32 %s, %s" % (s(S_WO), s(S_BW)))
        k("s_mov_b32 %s, %s" % (s(S_WRAP), s(S_BWRAP)))
        k("s_mov_b32 %s, %d" % (s(S_N), NB))
        k("s_mov_b32 %s, %s" % (s(S_WD), s(S_WOP)))
        k("s_and_b32 %s, %s, 0xffff" % (s(S_WD + 1), s(S_WOP + 1)))
        k("s_mov_b32 %s, 0x%x" % (s(S_WD + 2), 512 * 1024))
        k.label(lab + "_ns")


def rd_w(k, slot, buf):
    for ft in range(2):
        for u in range(2):
            k("ds_read_b64_tr_b16 %s, %s offset:%d" % (v(WF + 8 * buf + 4 * ft + 2 * u, 2), v(VWR + ft), slot * WSLOT + u * 512))


def step(k, d, lab, issue, vm, two_segments, last=False):
    if not last:
        k("s_waitcnt vmcnt(%d)" % vm)
        rd_w(k, (d + 1) % D, (d + 1) & 1)
        k("s_waitcnt lgkmcnt(4)")
    else:
        k("s_waitcnt lgkmcnt(0)")
    g = issue_groups((d + D - 1) % D) if issue else [[], [], [], []]
    j = 0
    for tt in range(2):
        for ft in range(2):
            dd = v(ACC + 16 * (2 * tt + ft), 16)
            k("v_mfma_f32_32x32x16_bf16 %s, %s, %s, %s" % (dd, v(WF + 8 * (d & 1) + 4 * ft, 4), v(XF + 8 * d + 4 * tt, 4), dd))
            for ins in g[j]:
                k(ins)
            j += 1
    if issue:
        advance(k, lab, two_segments)


def stream(k, pre, nsteps, two_segments, prio=None):
    for d in range(D - 1):
        for grp in issue_groups(d):
            for ins in grp:
                k(ins)
        advance(k, "%s_p%d" % (pre, d), two_segments)
    k("s_waitcnt vmcnt(8)")
    if prio:
        k("s_setprio %d" % prio)
    rd_w(k, 0, 0)
    ntrip = nsteps // D - 1
    k("s_mov_b32 %s, 0" % s(S_TRIP))
    k.label(pre + "_loop")
    for d in range(D):
        step(k, d, "%s_l%d" % (pre, d), True, 4, two_segments)
    k("s_add_u32 %s, %s, 1" % (s(S_TRIP), s(S_TRIP)))
    k("s_cmp_lt_u32 %s, %d" % (s(S_TRIP), ntrip))
    k("s_cbranch_scc1 %s_loop" % pre)
    step(k, 0, pre + "_t0", True, 4, two_segments)
    step(k, 1, pre + "_t1", False, 4, two_segments)
    step(k, 2, pre + "_t2", False, 0, two_segments)
    step(k, 3, pre + "_t3", False, 0, two_segments, last=True)


def reduce_and_store(k, pre):
    k("s_nop 15")
    k("s_barrier")
    for q in range(4):
        k("s_cmp_eq_u32 %s, %d" % (s(S_W), q))
        k("s_cbranch_scc1 %s_nw%d" % (pre, q))
        k("s_lshl_b32 %s, %s, 14" % (s(S_T), s(S_W)))
        k("v_add_u32 v8, %s, v3" % s(S_T))
        for g in range(4):
            k("ds_write_b128 v8, %s offset:%d" % (v(ACC + 16 * q + 4 * g, 4), q * 4096 + g * 1024))
        k.label("%s_nw%d" % (pre, q))
    for q in range(4):
        k("s_cmp_lg_u32 %s, %d" % (s(S_W), q))
        k("s_cbranch_scc1 %s_no%d" % (pre, q))
        for r in range(16):
            k("v_mov_b32 %s, %s" % (v(16 + r), v(ACC + 16 * q + r)))
        k.label("%s_no%d" % (pre, q))
    k("s_waitcnt lgkmcnt(0)")
    k("s_barrier")
    k("s_lshl_b32 %s, %s, 12" % (s(S_T2), s(S_W)))
    k("v_add_u32 v8, %s, v3" % s(S_T2))
    first = True
    for dq in range(1, 4):
        k("s_add_u32 %s, %s, %d" % (s(S_T2), s(S_W), dq))
        k("s_and_b32 %s, %s, 3" % (s(S_T2), s(S_T2)))
        k("s_lshl_b32 %s, %s, 14" % (s(S_T2), s(S_T2)))
        k("v_add_u32 v9, %s, v8" % s(S_T2))
        for g in range(4):
            k("ds_read_b128 %s, v9 offset:%d" % (v(64 + 16 * (dq - 1) + 4 * g, 4), g * 1024))
    for dq in range(1, 4):
        k("s_waitcnt lgkmcnt(%d)" % (4 * (3 - dq)))
        for r in range(16):
            k("v_add_f32 %s, %s, %s" % (v(16 + r), v(16 + r), v(64 + 16 * (dq - 1) + r)))


def resid_loads(k):
    k("s_lshr_b32 %s, %s, 1" % (s(S_T), s(S_W)))
    k("s_lshl_b32 %s, %s, 1" % (s(S_T2), s(S_RB)))
    k("s_add_u32 %s, %s, %s" % (s(S_T), s(S_T), s(S_T2)))
    k("s_lshl_b32 %s, %s, 15" % (s(S_T), s(S_T)))
    k("s_and_b32 %s, %s, 1" % (s(S_T2), s(S_W)))
    k("s_lshl_b32 %s, %s, 6" % (s(S_T2), s(S_T2)))
    k("s_lshl_b32 %s, %s, 7" % (s(S_N), s(S_CB)))
    k("s_add_u32 %s, %s, %s" % (s(S_BW), s(S_T2), s(S_N)))
    k("s_add_u32 %s, %s, %s" % (s(S_BX), s(S_T), s(S_BW)))
    k("v_lshlrev_b32 v10, 10, v1")
    k("v_lshl_add_u32 v10, v2, 4, v10")
    k("v_lshlrev_b32 v11, 4, v2")
    k("buffer_load_dwordx4 v[32:35], v10, %s, %s offen" % (s(S_XD, 4), s(S_BX)))
    k("buffer_load_dwordx4 v[36:39], v10, %s, %s offen offset:32" % (s(S_XD, 4), s(S_BX)))
    k("buffer_load_dwordx4 v[40:43], v11, %s, %s offen" % (s(S_BD, 4), s(S_BW)))
    k("buffer_load_dwordx4 v[44:47], v11, %s, %s offen offset:32" % (s(S_BD, 4), s(S_BW)))


def finish_tile(k):
    k("s_waitcnt vmcnt(0)")
    for half in range(2):
        for j in range(4):
            for src in (32, 40):
                r = src + 4 * half + j
                k("v_lshlrev_b32 v12, 16, %s" % v(r))
                k("v_and_b32 v13, 0xffff0000, %s" % v(r))
                k("v_add_f32 %s, %s, v12" % (v(16 + 8 * half + 2 * j), v(16 + 8 * half + 2 * j)))
                k("v_add_f32 %s, %s, v13" % (v(16 + 8 * half + 2 * j + 1), v(16 + 8 * half + 2 * j + 1)))
    for r in range(8):
        k("v_cvt_pk_bf16_f32 %s, %s, %s" % (v(16 + r), v(16 + 2 * r), v(17 + 2 * r)))
    k("buffer_store_dwordx4 v[16:19], v10, %s, %s offen" % (s(S_OD, 4), s(S_BX)))
    k("buffer_store_dwordx4 v[20:23], v10, %s, %s offen offset:32" % (s(S_OD, 4), s(S_BX)))


WS_BASE = 24 << 20


def ids(k, s_id):
    k("s_bfe_u32 %s, %s, 0x20003" % (s(S_RL), s_id))
    k("s_and_b32 %s, %s, 7" % (s(S_RB), s_id))
    k("s_lshl_b32 %s, %s, 2" % (s(S_RB), s(S_RB)))
    k("s_add_u32 %s, %s, %s" % (s(S_RB), s(S_RB), s(S_RL)))
    k("s_lshr_b32 %s, %s, 5" % (s(S_CB), s_id))


def add_resid(k):
    k("s_waitcnt vmcnt(0)")
    for half in range(2):
        for j in range(4):
            for src in (32, 40):
                r = src + 4 * half + j
                k("v_lshlrev_b32 v12, 16, %s" % v(r))
                k("v_and_b32 v13, 0xffff0000, %s" % v(r))
                k("v_add_f32 %s, %s, v12" % (v(16 + 8 * half + 2 * j), v(16 + 8 * half + 2 * j)))
                k("v_add_f32 %s, %s, v13" % (v(16 + 8 * half + 2 * j + 1), v(16 + 8 * half + 2 * j + 1)))


def gen_ffn2_role(k, pre, s_ws_size):
    k("v_lshrrev_b32 v1, 6, v0")
    k("v_and_b32 v0, 63, v0")
    k("v_readfirstlane_b32 %s, v1" % s(S_W))
    for r, off in ((S_WS, KA_WS), (S_W2, KA_W2), (S_X, KA_X), (S_B2, KA_B2)):
        k("s_load_dwordx2 %s, s[0:1], %d" % (s(r, 2), off))
    k("s_sub_u32 s3, s2, 256")
    k("s_cmp_ge_u32 %s, 4" % s(S_W))
    k("s_cbranch_scc1 %s_exit" % pre)
    ids(k, "s3")
    k("s_mul_i32 %s, %s, %d" % (s(S_LB), s(S_W), RING))
    seg_params(k, NA, 0, S_XO0, S_WO, S_WRAP)
    k("s_mov_b32 %s, %d" % (s(S_N), NA))
    setup(k)
    k("s_waitcnt lgkmcnt(0)")
    k.srd(S_HD, S_WS, s_ws_size)
    k.srd(S_WD, S_W2, 1792 * 1024)
    k.srd(S_XD, S_X, 2048 * 1024)
    k.srd(S_BD, S_B2, 1024)
    prof_mark(k, 2)
    stream(k, pre, NA, False, prio=(3 if "gp3" in OPT else (1 if "gp1" in OPT else 0)))
    prof_mark(k, 3)
    resid_loads(k)
    reduce_and_store(k, pre)
    add_resid(k)
    k("s_lshl_b32 %s, s3, 14" % s(S_T))
    k("s_lshl_b32 %s, %s, 12" % (s(S_T2), s(S_W)))
    k("s_add_u32 %s, %s, %s" % (s(S_T), s(S_T), s(S_T2)))
    k("s_add_u32 %s, %s, 0x%x" % (s(S_T), s(S_T), WS_BASE))
    for g in range(4):
        k("buffer_store_dwordx4 %s, v3, %s, %s offen offset:%d" % (v(16 + 4 * g, 4), s(S_HD, 4), s(S_T), 1024 * g))
    if "nopf" not in OPT:
        k("s_load_dwordx2 %s, s[0:1], %d" % (s(S_WOP, 2), KA_WO))
        k("s_waitcnt lgkmcnt(0)")
        k.srd(S_WD, S_WOP, 512 * 1024)
        k("s_lshl_b32 %s, %s, 17" % (s(S_T), s(S_W)))
        k("s_lshl_b32 %s, %s, 7" % (s(S_T2), s(S_CB)))
        k("s_add_u32 %s, %s, %s" % (s(S_T), s(S_T), s(S_T2)))
        for i in range(16):
            k("buffer_load_dwordx4 %s, v4, %s, %s offen" % (v(64 + 4 * i, 4), s(S_WD, 4), s(S_T)))
            k("s_add_u32 %s, %s, 8192" % (s(S_T), s(S_T)))
    k("s_waitcnt vmcnt(0)")
    prof_mark(k, 5)
    prof_rt(k, 6)
    prof_store(k, S_WS, S_W, 24)
    k.label(pre + "_exit")
    k("s_endpgm")


def gen_wo(k, name, pre):
    k.kernel_begin(name)
    k("s_cmp_ge_u32 s2, 256")
    k("s_cbranch_scc1 %s_exit" % pre)
    prof_start(k)
    for r, off in ((S_WS, KA_WS), (S_WOP, KA_WO), (S_OUT, KA_OUT)):
        k("s_load_dwordx2 %s, s[0:1], %d" % (s(r, 2), off))
    ids(k, "s2")
    k("v_lshrrev_b32 v1, 6, v0")
    k("v_and_b32 v0, 63, v0")
    k("v_readfirstlane_b32 %s, v1" % s(S_W))
    k("s_nop 0")
    k("s_mul_i32 %s, %s, %d" % (s(S_LB), s(S_W), RING))
    seg_params(k, NB, 112, S_XO0, S_WO, S_WRAP)
    k("s_mov_b32 %s, %d" % (s(S_N), NB))
    setup(k)
    k("s_waitcnt lgkmcnt(0)")
    k.srd(S_HD, S_WS, WS_BASE + (4 << 20))
    k.srd(S_WD, S_WOP, 512 * 1024)
    k.srd(S_OD, S_OUT, 2048 * 1024)
    k("s_lshl_b32 %s, s2, 14" % s(S_T))
    k("s_lshl_b32 %s, %s, 12" % (s(S_T2), s(S_W)))
    k("s_add_u32 %s, %s, %s" % (s(S_T), s(S_T), s(S_T2)))
    k("s_add_u32 %s, %s, 0x%x" % (s(S_T), s(S_T), WS_BASE))
    for q in range(4):
        k("s_cmp_lg_u32 %s, %d" % (s(S_W), q))
        k("s_cbranch_scc1 %s_nb%d" % (pre, q))
        for g in range(4):
            k("buffer_load_dwordx4 %s, v3, %s, %s offen offset:%d" % (v(ACC + 16 * q + 4 * g, 4), s(S_HD, 4), s(S_T), 1024 * g))
        k.label("%s_nb%d" % (pre, q))
    prof_mark(k, 2)
    stream(k, pre, NB, False)
    prof_mark(k, 3)
    reduce_and_store(k, pre)
    k("s_lshr_b32 %s, %s, 1" % (s(S_T), s(S_W)))
    k("s_lshl_b32 %s, %s, 1" % (s(S_T2), s(S_RB)))
    k("s_add_u32 %s, %s, %s" % (s(S_T), s(S_T), s(S_T2)))
    k("s_lshl_b32 %s, %s, 15" % (s(S_T), s(S_T)))
    k("s_and_b32 %s, %s, 1" % (s(S_T2), s(S_W)))
    k("s_lshl_b32 %s, %s, 6" % (s(S_T2), s(S_T2)))
    k("s_add_u32 %s, %s, %s" % (s(S_T), s(S_T), s(S_T2)))
    k("s_lshl_b32 %s, %s, 7" % (s(S_T2), s(S_CB)))
    k("s_add_u32 %s, %s, %s" % (s(S_T), s(S_T), s(S_T2)))
    k("v_lshlrev_b32 v10, 10, v1")
    k("v_lshl_add_u32 v10, v2, 4, v10")
    for r in range(8):
        k("v_cvt_pk_bf16_f32 %s, %s, %s" % (v(16 + r), v(16 + 2 * r), v(17 + 2 * r)))
    k("buffer_store_dwordx4 v[16:19], v10, %s, %s offen" % (s(S_OD, 4), s(S_T)))
    k("buffer_store_dwordx4 v[20:23], v10, %s, %s offen offset:32" % (s(S_OD, 4), s(S_T)))
    k("s_waitcnt vmcnt(0)")
    prof_mark(k, 5)
    prof_rt(k, 6)
    prof_store(k, S_WS, S_W, 24)
    k.label(pre + "_exit")
    k.kernel_end(name, 128, 128)
    return 256, 65536


def gen_final(k, name, pre):
    k.kernel_begin(name)
    k("s_cmp_ge_u32 s2, 256")
    k("s_cbranch_scc1 %s_exit" % pre)
    prof_start(k)
    for r, off in ((S_WS, KA_WS), (S_W2, KA_W2), (S_WOP, KA_WO), (S_X, KA_X), (S_B2, KA_B2), (S_OUT, KA_OUT)):
        k("s_load_dwordx2 %s, s[0:1], %d" % (s(r, 2), off))
    k("s_bfe_u32 %s, s2, 0x20003" % s(S_RL))
    k("s_and_b32 %s, s2, 7" % s(S_RB))
    k("s_lshl_b32 %s, %s, 2" % (s(S_RB), s(S_RB)))
    k("s_add_u32 %s, %s, %s" % (s(S_RB), s(S_RB), s(S_RL)))
    k("s_lshr_b32 %s, s2, 5" % s(S_CB))
    k("v_lshrrev_b32 v1, 6, v0")
    k("v_and_b32 v0, 63, v0")
    k("v_readfirstlane_b32 %s, v1" % s(S_W))
    k("s_nop 0")
    k("s_mul_i32 %s, %s, %d" % (s(S_LB), s(S_W), RING))
    seg_params(k, NA, 0, S_XO0, S_WO, S_WRAP)
    seg_params(k, NB, 112, S_BX, S_BW, S_BWRAP)
    k("s_mov_b32 %s, %d" % (s(S_N), NA))
    k("s_mov_b32 %s, %d" % (s(S_LEFT), NA))
    setup(k)
    k("s_waitcnt lgkmcnt(0)")
    k.srd(S_HD, S_WS, WS_END)
    k.srd(S_WD, S_W2, 1792 * 1024)
    k.srd(S_XD, S_X, 2048 * 1024)
    k.srd(S_OD, S_OUT, 2048 * 1024)
    k.srd(S_BD, S_B2, 1024)
    prof_mark(k, 2)
    stream(k, pre, NA + NB, True)
    prof_mark(k, 3)
    resid_loads(k)
    reduce_and_store(k, pre)
    finish_tile(k)
    k("s_waitcnt vmcnt(0)")
    prof_mark(k, 5)
    prof_rt(k, 6)
    prof_store(k, S_WS, S_W, 24)
    k.label(pre + "_exit")
    k.kernel_end(name, 128, 128)
    return 256, 65536
```

```python
import common
from common import *

OPT = set()
F = 7
XB, WQB, WFB = 16384, 12288, 16384
OFF_WQ, OFF_WF = XB, XB + WQB
SLOT = XB + WQB + WFB
R = 3
SLOT0 = 3072
SLOTE = SLOT0 + R * SLOT
L_RS, L_RM, L_CS, L_BI = 0, 512, 1024, 2048
LDS_BYTES = SLOTE
NPC = 11

S_X, S_WQ, S_WS, S_B1, S_W1 = 4, 6, 8, 10, 40
S_XD, S_WQD, S_OD, S_W1D = 12, 16, 20, 44
S_W, S_RB, S_CT, S_T, S_T2, S_C, S_SLOT, S_XO, S_WO, S_LD = 24, 25, 26, 27, 28, 29, 30, 31, 32, 33
S_RSLOT, S_T3, S_ROT, S_CK, S_CTL, S_CF, S_WO1, S_MASK = 35, 36, 37, 38, 39, 42, 43, 48

VXA, VWQ, VWF = 4, 8, 9
VX2, VQ2, VF2 = 13, 17, 18
SEL = 22
CSA = 26
RS, RM = 34, 35
XF = [36, 40]
WF = [44, 72]
ACC = 100
NV = 216


def entry(k, pre):
    k("s_cmp_ge_u32 s2, 256")
    k("s_cbranch_scc1 %s_exit" % pre)
    prof_start(k)
    k("s_load_dwordx2 %s, s[0:1], %d" % (s(S_X, 2), KA_X))
    k("s_load_dwordx2 %s, s[0:1], %d" % (s(S_WQ, 2), KA_WQKV))
    k("s_load_dwordx2 %s, s[0:1], %d" % (s(S_W1, 2), KA_W1))
    k("s_load_dwordx2 %s, s[0:1], %d" % (s(S_WS, 2), KA_WS))
    k("s_load_dwordx2 %s, s[0:1], %d" % (s(S_B1, 2), KA_B1))
    k("v_lshrrev_b32 v1, 6, v0")
    k("v_and_b32 v0, 63, v0")
    k("v_readfirstlane_b32 %s, v1" % s(S_W))
    k("s_lshr_b32 %s, s2, 3" % s(S_T))
    k("s_and_b32 %s, %s, 3" % (s(S_T2), s(S_T)))
    k("s_lshr_b32 %s, %s, 2" % (s(S_CTL), s(S_T)))
    k("s_lshl_b32 %s, %s, 1" % (s(S_ROT), s(S_T2)))
    k("s_add_u32 %s, %s, %s" % (s(S_ROT), s(S_ROT), s(S_CTL)))
    k("s_and_b32 %s, %s, 7" % (s(S_ROT), s(S_ROT)))
    k("s_bfe_u32 %s, s2, 0x20001" % s(S_RB))
    k("s_lshl_b32 %s, %s, 2" % (s(S_RB), s(S_RB)))
    k("s_add_u32 %s, %s, %s" % (s(S_RB), s(S_RB), s(S_T2)))
    k("s_and_b32 %s, s2, 1" % s(S_T))
    k("s_lshl_b32 %s, %s, 3" % (s(S_CT), s(S_T)))
    k("s_add_u32 %s, %s, %s" % (s(S_CT), s(S_CT), s(S_CTL)))
    k("s_mul_i32 %s, %s, 7" % (s(S_CF), s(S_T)))
    k("s_min_u32 %s, %s, 6" % (s(S_T), s(S_CTL)))
    k("s_add_u32 %s, %s, %s" % (s(S_CF), s(S_CF), s(S_T)))
    k("s_cmp_ge_u32 %s, 4" % s(S_W))
    k("s_cbranch_scc1 %s_loader" % pre)


def lane_helpers(k):
    k("v_and_b32 v1, 31, v0")
    k("v_lshrrev_b32 v2, 5, v0")


def xfrag_addr(k, dst, s_tile):
    k("s_lshl_b32 %s, %s, 12" % (s(S_T), s(s_tile)))
    k("v_lshrrev_b32 v3, 1, v1")
    k("v_and_b32 v3, 7, v3")
    k("v_xor_b32 v3, v3, v2")
    for st in range(4):
        k("v_xor_b32 %s, %d, v3" % (v(dst + st), 2 * st))
        k("v_lshlrev_b32 %s, 4, %s" % (v(dst + st), v(dst + st)))
        k("v_lshl_add_u32 %s, v1, 7, %s" % (v(dst + st), v(dst + st)))
        k("v_add_u32 %s, %s, %s" % (v(dst + st), s(S_T), v(dst + st)))


def wfrag_addr(k, t):
    r, b, h, g, x, y = t, t + 1, t + 2, t + 3, t + 4, t + 5
    k("v_bfe_u32 %s, v0, 2, 2" % v(r))
    k("v_and_b32 %s, 3, v0" % v(b))
    k("v_bfe_u32 %s, v0, 4, 1" % v(h))
    k("v_lshl_add_u32 %s, %s, 2, %s" % (v(b), v(h), v(b)))
    k("v_and_b32 %s, 1, %s" % (v(h), v(b)))
    k("v_lshrrev_b32 %s, 1, %s" % (v(g), v(b)))
    k("v_lshl_add_u32 %s, v2, 3, %s" % (v(x), v(r)))
    k("v_lshl_add_u32 %s, %s, 2, %s" % (v(b), v(h), v(g)))
    k("v_mul_u32_u24 %s, 192, %s" % (v(y), v(x)))
    k("v_lshl_add_u32 %s, %s, 3, %s" % (v(y), v(b), v(y)))
    k("v_add_u32 %s, %d, %s" % (v(VWQ), OFF_WQ, v(y)))
    k("v_lshrrev_b32 %s, 1, %s" % (v(b), v(g)))
    k("v_and_b32 %s, 1, %s" % (v(g), v(g)))
    k("v_lshl_add_u32 %s, %s, 1, %s" % (v(g), v(h), v(g)))
    k("v_lshl_add_u32 %s, %s, 2, %s" % (v(b), v(b), v(g)))
    k("v_lshlrev_b32 %s, 8, %s" % (v(y), v(x)))
    k("v_lshl_add_u32 %s, %s, 3, %s" % (v(y), v(b), v(y)))
    k("v_add_u32 %s, %d, %s" % (v(y), OFF_WF, v(y)))
    for ft in range(4):
        k("v_xor_b32 %s, %d, %s" % (v(b), ft, v(r)))
        k("v_lshl_add_u32 %s, %s, 6, %s" % (v(VWF + ft), v(b), v(y)))


def next_slot(k, r):
    k("s_add_u32 %s, %s, %d" % (s(r), s(r), SLOT))
    k("s_cmp_ge_u32 %s, %d" % (s(r), SLOTE))
    k("s_cselect_b32 %s, %d, %s" % (s(r), SLOT0, s(r)))


def compute(k, pre):
    lane_helpers(k)
    xfrag_addr(k, VXA, S_W)
    wfrag_addr(k, XF[0])
    k("v_and_b32 v3, 15, v0")
    k("v_bfe_u32 %s, v0, 4, 1" % v(SEL))
    k("v_cmp_eq_u32 vcc, v3, %s" % v(SEL))
    k("v_mov_b32 %s, 0x3f803f80" % v(SEL + 1))
    k("s_nop 0")
    k("v_cndmask_b32 %s, 0, %s, vcc" % (v(SEL), v(SEL + 1)))
    for r in range(1, 4):
        k("v_mov_b32 %s, %s" % (v(SEL + r), v(SEL)))
    for j in range(8):
        k("v_mov_b32 %s, 0" % v(CSA + j))
    for j in range(F * 16):
        k("v_mov_b32 %s, 0" % v(ACC + j))
    k("s_mov_b32 %s, %d" % (s(S_SLOT), SLOT0))
    k("s_mov_b32 %s, 0" % s(S_C))
    k("s_waitcnt lgkmcnt(0)")
    k.srd(S_OD, S_WS, WS_END)

    def rd_x(step, buf):
        k("ds_read_b128 %s, %s" % (v(XF[buf], 4), v(VX2 + step)))

    def rd_w(step, buf, ft):
        for u in range(2):
            d = v(WF[buf] + 4 * ft + 2 * u, 2)
            if ft < 3:
                k("ds_read_b64_tr_b16 %s, %s offset:%d" % (d, v(VQ2), step * 16 * 192 + u * 4 * 192 + ft * 64))
            else:
                k("ds_read_b64_tr_b16 %s, %s offset:%d" % (d, v(VF2 + ft - 3), step * 16 * 256 + u * 4 * 256))

    def mfma(buf, ft):
        d = v(ACC + 16 * ft, 16)
        if ft == 2:
            k("v_mfma_f32_32x32x16_bf16 %s, %s, %s, %s" % (d, v(XF[buf], 4), v(WF[buf] + 4 * ft, 4), d))
        else:
            k("v_mfma_f32_32x32x16_bf16 %s, %s, %s, %s" % (d, v(WF[buf] + 4 * ft, 4), v(XF[buf], 4), d))

    def set_slot():
        for st in range(4):
            k("v_add_u32 %s, %s, %s" % (v(VX2 + st), s(S_SLOT), v(VXA + st)))
        k("v_add_u32 %s, %s, %s" % (v(VQ2), s(S_SLOT), v(VWQ)))
        for j in range(4):
            k("v_add_u32 %s, %s, %s" % (v(VF2 + j), s(S_SLOT), v(VWF + j)))

    k("s_barrier")
    prof_mark(k, 2)
    set_slot()
    rd_x(0, 0)
    for ft in range(F):
        rd_w(0, 0, ft)
    for w in range(1, 4):
        k("s_cmp_eq_u32 %s, %d" % (s(S_W), w))
        k("s_cbranch_scc1 %s_cloop%d" % (pre, w))
    for w in range(4):
        k(".p2align 3")
        k.label("%s_cloop%d" % (pre, w))
        for st in range(4):
            b, nb, ns = st & 1, (st + 1) & 1, (st + 1) & 3
            k("s_waitcnt lgkmcnt(0)")
            if st == 3:
                k("s_barrier")
                next_slot(k, S_SLOT)
                set_slot()
            plan = {0: [("x",), (0,), (1,)], 1: [(2,), (3,)], 2: [(4,), (5,)], 3: [(6,)]}
            for ft in range(F):
                if "nomfma" not in OPT:
                    mfma(b, ft)
                for item in (plan.get(ft, []) if "noread" not in OPT else []):
                    if item[0] == "x":
                        rd_x(ns, nb)
                    else:
                        rd_w(ns, nb, item[0])
                if ft == 4 and "nocs" not in OPT:
                    k("v_mfma_f32_16x16x32_bf16 %s, %s, %s, %s" % (v(CSA, 4), v(WF[b] + 4 * w, 4), v(SEL, 4), v(CSA, 4)))
                if ft == 5 and w + 4 < F and "nocs" not in OPT:
                    k("v_mfma_f32_16x16x32_bf16 %s, %s, %s, %s" % (v(CSA + 4, 4), v(WF[b] + 4 * (w + 4), 4), v(SEL, 4), v(CSA + 4, 4)))
        k("s_add_u32 %s, %s, 1" % (s(S_C), s(S_C)))
        k("s_cmp_lt_u32 %s, 8" % s(S_C))
        k("s_cbranch_scc1 %s_cloop%d" % (pre, w))
        if w < 3:
            k("s_branch %s_cdone" % pre)
    k.label(pre + "_cdone")
    prof_mark(k, 3)
    k("s_waitcnt lgkmcnt(0)")
    k("v_and_b32 v3, 1, v0")
    k("v_lshlrev_b32 v3, 6, v3")
    k("v_lshrrev_b32 %s, 4, v0" % v(XF[0]))
    k("v_lshl_add_u32 v3, %s, 4, v3" % v(XF[0]))
    k("s_lshl_b32 %s, %s, 7" % (s(S_T), s(S_W)))
    k("v_add_u32 v3, %s, v3" % s(S_T))
    k("s_mov_b32 exec_lo, 0x00030003")
    k("s_mov_b32 exec_hi, 0x00030003")
    k("s_nop 4")
    k("ds_write_b128 v3, %s offset:%d" % (v(CSA, 4), L_CS))
    k("s_cmp_eq_u32 %s, 3" % s(S_W))
    k("s_cbranch_scc1 %s_cs1" % pre)
    k("ds_write_b128 v3, %s offset:%d" % (v(CSA + 4, 4), L_CS + 512))
    k.label(pre + "_cs1")
    k("s_mov_b64 exec, -1")
    k("s_waitcnt lgkmcnt(0)")
    k("s_barrier")
    epilogue(k, pre)


def epilogue(k, pre):
    T0 = WF[0]
    k("s_lshl_b32 %s, %s, 7" % (s(S_T), s(S_W)))
    k("v_lshl_add_u32 v3, v1, 2, %s" % s(S_T))
    k("ds_read_b32 %s, v3 offset:%d" % (v(RS), L_RS))
    k("ds_read_b32 %s, v3 offset:%d" % (v(RM), L_RM))
    h16, a1, a2, a3, t1, t2 = 4, 5, 6, 7, 8, 9
    k("v_lshlrev_b32 %s, 4, v2" % v(h16))
    for ft in range(2):
        for g in range(4):
            k("ds_read_b128 %s, %s offset:%d" % (v(T0 + 16 * ft + 4 * g, 4), v(h16), L_CS + ft * 128 + g * 32))
    k("s_lshl_b32 %s, %s, 2" % (s(S_T2), s(S_RB)))
    k("s_add_u32 %s, %s, %s" % (s(S_T2), s(S_T2), s(S_W)))
    cq = 0.25 * LOG2E
    k("s_lshl_b32 %s, %s, 1" % (s(S_T), s(S_CT)))
    k("v_add_u32 %s, %s, v2" % (v(t1), s(S_T)))
    k("v_lshlrev_b32 %s, 4, v1" % v(t2))
    k("v_lshl_add_u32 %s, %s, 16, %s" % (v(a1), v(t1), v(t2)))
    k("s_lshl_b32 %s, %s, 10" % (s(S_T), s(S_T2)))
    k("v_add_u32 %s, %s, %s" % (v(a1), s(S_T), v(a1)))
    k("v_lshl_add_u32 %s, %s, 17, %s" % (v(a2), v(t1), v(t2)))
    k("s_lshl_b32 %s, %s, 11" % (s(S_T), s(S_T2)))
    k("s_add_u32 %s, %s, 0x%x" % (s(S_T), s(S_T), WS_KV))
    k("v_add_u32 %s, %s, %s" % (v(a2), s(S_T), v(a2)))
    k("s_waitcnt lgkmcnt(8)")
    k("v_mul_f32 v10, 0x%x, %s" % (f2u(cq), v(RS)))
    k("v_mul_f32 v11, 0x%x, %s" % (f2u(cq), v(RM)))
    for ft, dst in ((0, a1), (1, a2)):
        k("s_waitcnt lgkmcnt(%d)" % (4 if ft == 0 else 0))
        A, T = ACC + 16 * ft, T0 + 16 * ft
        a_rs, a_rm = ("v10", "v11") if ft == 0 else (v(RS), v(RM))
        for r in range(16):
            k("v_mul_f32 %s, %s, %s" % (v(T + r), v(T + r), a_rm))
        for r in range(16):
            k("v_fma_f32 %s, %s, %s, -%s" % (v(A + r), v(A + r), a_rs, v(T + r)))
        for r in range(8):
            k("v_cvt_pk_bf16_f32 %s, %s, %s" % (v(A + r), v(A + 2 * r), v(A + 2 * r + 1)))
        k("buffer_store_dwordx4 %s, %s, %s, 0 offen" % (v(A, 4), v(dst), s(S_OD, 4)))
        k("buffer_store_dwordx4 %s, %s, %s, 0 offen offset:512" % (v(A + 4, 4), v(dst), s(S_OD, 4)))
        if ft == 0:
            k("s_lshl_b32 %s, %s, 7" % (s(S_T), s(S_W)))
            k("v_add_u32 v3, %s, %s" % (s(S_T), v(h16)))
            for g in range(4):
                k("ds_read_b128 %s, v3 offset:%d" % (v(T0 + 32 + 4 * g, 4), L_RS + g * 32))
    A = ACC + 32
    for g in range(4):
        k("ds_read_b128 %s, v3 offset:%d" % (v(T0 + 4 * g, 4), L_RM + g * 32))
    k("v_lshlrev_b32 v3, 2, v1")
    k("ds_read_b32 v10, v3 offset:%d" % (L_CS + 2 * 128))
    k("v_bfe_u32 %s, v1, 2, 1" % v(t1))
    k("v_lshrrev_b32 %s, 3, v1" % v(t2))
    k("v_and_b32 %s, 3, v1" % v(a3))
    k("v_and_b32 v11, 1, %s" % v(t2))
    k("v_lshrrev_b32 %s, 1, %s" % (v(t2), v(t2)))
    k("v_lshl_add_u32 %s, %s, 2, %s" % (v(a3), v(t2), v(a3)))
    k("v_lshl_add_u32 %s, v11, 3, %s" % (v(a3), v(a3)))
    k("v_lshlrev_b32 %s, 4, %s" % (v(a3), v(a3)))
    k("s_lshl_b32 %s, %s, 1" % (s(S_T), s(S_CT)))
    k("v_add_u32 %s, %s, %s" % (v(t1), s(S_T), v(t1)))
    k("v_lshl_add_u32 %s, %s, 17, %s" % (v(a3), v(t1), v(a3)))
    k("v_lshl_add_u32 %s, v2, 8, %s" % (v(a3), v(a3)))
    k("s_lshl_b32 %s, %s, 11" % (s(S_T), s(S_T2)))
    k("s_add_u32 %s, %s, 0x%x" % (s(S_T), s(S_T), WS_KV + 1024))
    k("v_add_u32 %s, %s, %s" % (v(a3), s(S_T), v(a3)))
    k("s_waitcnt lgkmcnt(0)")
    for r in range(16):
        k("v_mul_f32 %s, %s, v10" % (v(T0 + r), v(T0 + r)))
    FT0 = T0 + 16
    for r in range(16):
        k("v_fma_f32 %s, %s, %s, -%s" % (v(A + r), v(A + r), v(T0 + 32 + r), v(T0 + r)))
    for r in range(8):
        k("v_cvt_pk_bf16_f32 %s, %s, %s" % (v(A + r), v(A + 2 * r), v(A + 2 * r + 1)))
    k("buffer_store_dwordx4 %s, %s, %s, 0 offen" % (v(A, 4), v(a3), s(S_OD, 4)))
    k("buffer_store_dwordx4 %s, %s, %s, 0 offen offset:512" % (v(A + 4, 4), v(a3), s(S_OD, 4)))
    k("s_cmp_ge_u32 %s, 7" % s(S_CTL))
    k("s_cbranch_scc1 %s_noh" % pre)
    k("v_lshlrev_b32 %s, 4, v0" % v(a1))
    k("s_mul_i32 %s, %s, %d" % (s(S_T), s(S_T2), WS_HO_ROW))
    k("s_lshl_b32 %s, %s, 13" % (s(S_T3), s(S_CF)))
    k("s_add_u32 %s, %s, %s" % (s(S_T), s(S_T), s(S_T3)))
    k("s_add_u32 %s, %s, 0x%x" % (s(S_T), s(S_T), WS_HO))
    k("v_add_u32 %s, %s, %s" % (v(a1), s(S_T), v(a1)))

    def rd_cs(ft):
        B = T0 + (ft & 1) * 28
        for g in range(4):
            k("ds_read_b128 %s, %s offset:%d" % (v(B + 4 * g, 4), v(h16), L_CS + (3 + ft) * 128 + g * 32))

    rd_cs(0)
    for ft in range(4):
        B = T0 + (ft & 1) * 28
        for g in range(4):
            k("ds_read_b128 %s, %s offset:%d" % (v(10 + 4 * g, 4), v(h16), L_BI + ft * 128 + g * 32))
        k("s_waitcnt lgkmcnt(0)")
        if ft < 3:
            rd_cs(ft + 1)
        A = ACC + 48 + 16 * ft
        for r in range(16):
            k("v_fma_f32 %s, -%s, %s, %s" % (v(B + r), v(B + r), v(RM), v(10 + r)))
        for r in range(16):
            k("v_fma_f32 %s, %s, %s, %s" % (v(A + r), v(A + r), v(RS), v(B + r)))
        for r in range(16):
            k("v_max_f32 %s, 0, %s" % (v(B + r), v(A + r)))
        for r in range(16):
            k("v_mul_f32 %s, %s, %s" % (v(A + r), v(A + r), v(B + r)))
        for r in range(8):
            k("v_cvt_pk_bf16_f32 %s, %s, %s" % (v(A + r), v(A + 2 * r), v(A + 2 * r + 1)))
        k("buffer_store_dwordx4 %s, %s, %s, 0 offen offset:%d" % (v(A, 4), v(a1), s(S_OD, 4), 2048 * (ft & 1)))
        k("buffer_store_dwordx4 %s, %s, %s, 0 offen offset:%d" % (v(A + 4, 4), v(a1), s(S_OD, 4), 2048 * (ft & 1) + 1024))
        if ft == 1:
            k("v_add_u32 %s, 4096, %s" % (v(a1), v(a1)))
    k.label(pre + "_noh")


VXO, VWO, VWO1, VBI, LXA, LX2, LX, LSUM, LSQ, LT = 4, 6, 9, 10, 12, 16, 20, 36, 38, 40


class Groups:
    def __init__(self):
        self.groups = [[]]

    def __call__(self, txt):
        self.groups[-1].append(txt)
        if txt.startswith("buffer_load"):
            self.groups.append([])


def issue_x(k):
    k("s_lshl_b32 %s, %s, 12" % (s(S_T), s(S_LD)))
    k("s_add_u32 m0, %s, %s" % (s(S_T), s(S_RSLOT)))
    k("s_lshl_b32 %s, %s, 7" % (s(S_T2), s(S_CK)))
    k("s_add_u32 %s, %s, %s" % (s(S_T2), s(S_T2), s(S_XO)))
    for i in range(4):
        k("buffer_load_dwordx4 %s, %s, %s offen lds" % (v(VXO + (i & 1)), s(S_XD, 4), s(S_T2)))
        if i < 3:
            k("s_add_u32 m0, m0, 1024")
            k("s_add_u32 %s, %s, 8192" % (s(S_T2), s(S_T2)))


def issue_w(k):
    k("s_mul_i32 %s, %s, 3072" % (s(S_T), s(S_LD)))
    k("s_add_u32 %s, %s, %s" % (s(S_T), s(S_T), s(S_RSLOT)))
    k("s_add_u32 m0, %s, %d" % (s(S_T), OFF_WQ))
    k("s_mul_i32 %s, %s, %d" % (s(S_T2), s(S_CK), 64 * 3072))
    k("s_add_u32 %s, %s, %s" % (s(S_T2), s(S_T2), s(S_WO)))
    for i in range(3):
        k("buffer_load_dwordx4 %s, %s, %s offen lds" % (v(VWO + i), s(S_WQD, 4), s(S_T2)))
        if i < 2:
            k("s_add_u32 m0, m0, 1024")
            k("s_nop 0")
    k("s_lshl_b32 %s, %s, 12" % (s(S_T), s(S_LD)))
    k("s_add_u32 %s, %s, %s" % (s(S_T), s(S_T), s(S_RSLOT)))
    k("s_add_u32 m0, %s, %d" % (s(S_T), OFF_WF))
    k("s_mul_i32 %s, %s, %d" % (s(S_T2), s(S_CK), 64 * 3584))
    k("s_add_u32 %s, %s, %s" % (s(S_T2), s(S_T2), s(S_WO1)))
    for i in range(4):
        k("buffer_load_dwordx4 %s, %s, %s offen lds" % (v(VWO1), s(S_W1D, 4), s(S_T2)))
        if i < 3:
            k("s_add_u32 m0, m0, 1024")
            k("s_add_u32 %s, %s, %d" % (s(S_T2), s(S_T2), 4 * 3584))


def advance(k):
    k("s_add_u32 %s, %s, 1" % (s(S_CK), s(S_CK)))
    k("s_and_b32 %s, %s, 7" % (s(S_CK), s(S_CK)))
    next_slot(k, S_RSLOT)


def loader(k, pre):
    k("s_setprio 3")
    k("s_sub_u32 %s, %s, 4" % (s(S_LD), s(S_W)))
    k("v_lshrrev_b32 v12, 3, v0")
    k("v_and_b32 v13, 7, v0")
    k("v_lshrrev_b32 v3, 1, v12")
    for p in range(2):
        k("v_add_u32 v14, %d, v3" % (4 * p))
        k("v_and_b32 v14, 7, v14")
        k("v_xor_b32 v14, v14, v13")
        k("v_lshlrev_b32 v14, 4, v14")
        k("v_lshl_add_u32 %s, v12, 10, v14" % v(VXO + p))
    k("s_lshl_b32 %s, %s, 2" % (s(S_XO), s(S_RB)))
    k("s_add_u32 %s, %s, %s" % (s(S_XO), s(S_XO), s(S_LD)))
    k("s_lshl_b32 %s, %s, 15" % (s(S_XO), s(S_XO)))
    k("s_mov_b32 %s, %d" % (s(S_RSLOT), SLOT0))
    k("s_mov_b32 %s, %d" % (s(S_SLOT), SLOT0))
    k("s_mov_b32 %s, %s" % (s(S_CK), s(S_ROT)))
    k("s_waitcnt lgkmcnt(0)")
    k.srd(S_XD, S_X, 2048 * 1024)
    prof_mark(k, 2)
    issue_x(k)
    k.srd(S_WQD, S_WQ, 512 * 3072)
    k.srd(S_W1D, S_W1, 512 * 3584)
    k("s_mov_b32 %s, 0x%x" % (s(S_T), (2 ** 32 + 191) // 192))
    for j in range(3):
        k("v_lshlrev_b32 v12, 4, v0")
        k("v_add_u32 v12, %d, v12" % (1024 * j))
        k("v_mul_hi_u32 v13, v12, %s" % s(S_T))
        k("v_mul_u32_u24 v14, 192, v13")
        k("v_sub_u32 v14, v12, v14")
        k("v_lshrrev_b32 v15, 6, v14")
        k("v_and_b32 v14, 63, v14")
        k("v_mul_u32_u24 v13, 3072, v13")
        k("v_lshl_add_u32 v13, v15, 10, v13")
        k("v_add_u32 %s, v13, v14" % v(VWO + j))
    k("v_lshrrev_b32 v12, 4, v0")
    k("v_bfe_u32 v13, v0, 2, 2")
    k("v_xor_b32 v13, v13, v12")
    k("v_lshlrev_b32 v13, 6, v13")
    k("v_and_b32 v14, 3, v0")
    k("v_lshl_add_u32 v13, v14, 4, v13")
    k("v_mul_u32_u24 v12, 3584, v12")
    k("v_add_u32 %s, v12, v13" % v(VWO1))
    k("s_mul_i32 %s, %s, %d" % (s(S_WO), s(S_LD), 16 * 3072))
    k("s_lshl_b32 %s, %s, 6" % (s(S_T), s(S_CT)))
    k("s_add_u32 %s, %s, %s" % (s(S_WO), s(S_WO), s(S_T)))
    k("s_mul_i32 %s, %s, %d" % (s(S_WO1), s(S_LD), 16 * 3584))
    k("s_lshl_b32 %s, %s, 8" % (s(S_T), s(S_CF)))
    k("s_add_u32 %s, %s, %s" % (s(S_WO1), s(S_WO1), s(S_T)))
    issue_w(k)
    advance(k)
    issue_x(k)
    issue_w(k)
    advance(k)
    prof_mark(k, 3)
    lane_helpers(k)
    k("v_lshrrev_b32 v12, 3, v1")
    k("v_bfe_u32 v13, v1, 2, 1")
    k("v_and_b32 v14, 3, v1")
    k("v_lshrrev_b32 v15, 1, v12")
    k("v_and_b32 v12, 1, v12")
    k("v_lshl_add_u32 v14, v12, 2, v14")
    k("v_lshl_add_u32 v14, v13, 3, v14")
    k("v_lshl_add_u32 v14, v15, 4, v14")
    k("s_lshl_b32 %s, %s, 7" % (s(S_T), s(S_CF)))
    k("s_lshl_b32 %s, %s, 5" % (s(S_T2), s(S_LD)))
    k("s_add_u32 %s, %s, %s" % (s(S_T), s(S_T), s(S_T2)))
    k("v_add_u32 v14, %s, v14" % s(S_T))
    k("v_lshlrev_b32 v14, 1, v14")
    k("global_load_ushort %s, v14, %s" % (v(VBI), s(S_B1, 2)))
    xfrag_addr(k, LXA, S_LD)
    for r in range(4):
        k("v_mov_b32 %s, 0" % v(LSUM + r))
    k("v_mov_b32 %s, 0xffff0000" % v(LT + 1))
    k("s_mov_b32 %s, 0" % s(S_C))
    k.label(pre + "_lloop")
    k("s_cmp_ge_u32 %s, 7" % s(S_C))
    k("s_cbranch_scc1 %s_llast" % pre)
    k("s_cmp_eq_u32 %s, 0" % s(S_C))
    k("s_cbranch_scc0 %s_lw" % pre)
    k("s_waitcnt vmcnt(%d)" % (NPC + 1))
    k("s_branch %s_lbar" % pre)
    k.label(pre + "_lw")
    k("s_waitcnt vmcnt(%d)" % NPC)
    k("s_branch %s_lbar" % pre)
    k.label(pre + "_llast")
    k("s_waitcnt vmcnt(0)")
    k.label(pre + "_lbar")
    k("s_barrier")
    for st in range(4):
        k("v_add_u32 %s, %s, %s" % (v(LX2 + st), s(S_SLOT), v(LXA + st)))
        k("ds_read_b128 %s, %s" % (v(LX + 4 * st, 4), v(LX2 + st)))
    stats = []
    for st in range(4 if "nostat" not in OPT else 0):
        stats.append("s_waitcnt lgkmcnt(%d)" % (3 - st))
        for r in range(4):
            x = LX + 4 * st + r
            stats.append("v_lshlrev_b32 %s, 16, %s" % (v(LT), v(x)))
            stats.append("v_and_b32 %s, %s, %s" % (v(x), v(LT + 1), v(x)))
            stats.append("v_add_f32 %s, %s, %s" % (v(LSUM), v(LSUM), v(LT)))
            stats.append("v_add_f32 %s, %s, %s" % (v(LSUM + 1), v(LSUM + 1), v(x)))
            stats.append("v_fmac_f32 %s, %s, %s" % (v(LSQ), v(LT), v(LT)))
            stats.append("v_fmac_f32 %s, %s, %s" % (v(LSQ + 1), v(x), v(x)))
    k("s_cmp_ge_u32 %s, 6" % s(S_C))
    k("s_cbranch_scc1 %s_lnoissue" % pre)
    g = Groups()
    issue_x(g)
    issue_w(g)
    advance(g)
    ng = len(g.groups) - 1
    if "nodma" in OPT:
        g.groups = [[], ["s_nop 0"]]
        ng = 1
    per = (len(stats) + ng - 1) // ng
    pos = 0
    for gi, grp in enumerate(g.groups):
        for ins in grp:
            k(ins)
        if gi < ng:
            for ins in stats[pos:pos + per]:
                k(ins)
            pos += per
    assert pos >= len(stats)
    k("s_branch %s_lnext" % pre)
    k.label(pre + "_lnoissue")
    for ins in stats:
        k(ins)
    k.label(pre + "_lnext")
    next_slot(k, S_SLOT)
    k("s_add_u32 %s, %s, 1" % (s(S_C), s(S_C)))
    k("s_cmp_lt_u32 %s, 8" % s(S_C))
    k("s_cbranch_scc1 %s_lloop" % pre)
    k("s_barrier")
    for r in (LSUM, LSQ):
        k("v_add_f32 %s, %s, %s" % (v(r), v(r), v(r + 1)))
        k("v_mov_b32 %s, %s" % (v(r + 1), v(r)))
        k("s_nop 1")
        k("v_permlane32_swap_b32 %s, %s" % (v(r + 1), v(r)))
        k("s_nop 1")
        k("v_add_f32 %s, %s, %s" % (v(r), v(r), v(r + 1)))
    k("v_mul_f32 %s, 0x%x, %s" % (v(LSUM), f2u(1.0 / 512), v(LSUM)))
    k("v_mul_f32 %s, 0x%x, %s" % (v(LSQ), f2u(1.0 / 512), v(LSQ)))
    k("v_fma_f32 %s, -%s, %s, %s" % (v(LSQ), v(LSUM), v(LSUM), v(LSQ)))
    k("v_max_f32 %s, 0, %s" % (v(LSQ), v(LSQ)))
    k("v_add_f32 %s, 0x%x, %s" % (v(LSQ), f2u(1e-5), v(LSQ)))
    k("v_rsq_f32 %s, %s" % (v(LSQ), v(LSQ)))
    k("s_nop 0")
    k("v_mul_f32 %s, %s, %s" % (v(LSUM), v(LSUM), v(LSQ)))
    k("s_lshl_b32 %s, %s, 7" % (s(S_T), s(S_LD)))
    k("v_lshl_add_u32 v12, v1, 2, %s" % s(S_T))
    k("ds_write_b32 v12, %s offset:%d" % (v(LSQ), L_RS))
    k("ds_write_b32 v12, %s offset:%d" % (v(LSUM), L_RM))
    k("v_lshlrev_b32 %s, 16, %s" % (v(VBI), v(VBI)))
    k("ds_write_b32 v12, %s offset:%d" % (v(VBI), L_BI))
    k("s_waitcnt lgkmcnt(0)")
    k("s_barrier")


def finish(k):
    k("s_waitcnt vmcnt(0)")
    prof_mark(k, 5)
    prof_rt(k, 6)
    prof_store(k, S_WS, S_W, 44)
    k("s_endpgm")


def gen(k, name, pre):
    k.kernel_begin(name)
    entry(k, pre)
    compute(k, pre)
    finish(k)
    k.label(pre + "_loader")
    loader(k, pre)
    prof_mark(k, 4)
    finish(k)
    k.label(pre + "_exit")
    k.kernel_end(name, NV, NV)
    return 256, LDS_BYTES
```

```python
import common
from common import *

OPT = set()
XBYTES = 65536
L_PART = XBYTES
L_BI = L_PART + 2048
SLOT0 = XBYTES + 3072
SLOT = 16384
R = 5
SLOTE = SLOT0 + R * SLOT
LDS_BYTES = SLOTE
WS_XN = 20 << 20

S_X, S_WQ, S_WS, S_B1, S_W1 = 4, 6, 8, 10, 40
S_XD, S_WD, S_OD = 12, 16, 20
S_W, S_RB, S_CT, S_T, S_T2, S_C, S_SLOT, S_WO, S_LD = 24, 25, 26, 27, 28, 29, 30, 32, 33
S_RSLOT, S_T3, S_ROT, S_CK, S_KC, S_U, S_NCH, S_WEND, S_LD3, S_LD4 = 35, 36, 37, 38, 39, 42, 43, 44, 45, 46

VA0, VXA, NX, NS, NQ, NT = 4, 5, 16, 48, 50, 52
VWQ, VWF = 6, 7
VW2 = 11
VX = 19
XF = [20, 24]
WF = [28, 44]
ACC = 60
NV = 128
VQO, VFO = 6, 9


def entry(k, pre):
    k("s_cmp_ge_u32 s2, 256")
    k("s_cbranch_scc1 %s_exit" % pre)
    prof_start(k)
    k("s_load_dwordx2 %s, s[0:1], %d" % (s(S_X, 2), KA_X))
    k("s_load_dwordx2 %s, s[0:1], %d" % (s(S_WQ, 2), KA_WQKV))
    k("s_load_dwordx2 %s, s[0:1], %d" % (s(S_W1, 2), KA_W1))
    k("s_load_dwordx2 %s, s[0:1], %d" % (s(S_WS, 2), KA_WS))
    k("s_load_dwordx2 %s, s[0:1], %d" % (s(S_B1, 2), KA_B1))
    k("v_lshrrev_b32 v1, 6, v0")
    k("v_and_b32 v0, 63, v0")
    k("v_readfirstlane_b32 %s, v1" % s(S_W))
    k("s_lshr_b32 %s, s2, 3" % s(S_T))
    k("s_and_b32 %s, %s, 7" % (s(S_ROT), s(S_T)))
    k("s_and_b32 %s, s2, 3" % s(S_RB))
    k("s_lshl_b32 %s, %s, 3" % (s(S_RB), s(S_RB)))
    k("s_add_u32 %s, %s, %s" % (s(S_RB), s(S_RB), s(S_ROT)))
    k("s_lshr_b32 %s, %s, 3" % (s(S_T), s(S_T)))
    k("s_bfe_u32 %s, s2, 0x10002" % s(S_CT))
    k("s_lshl_b32 %s, %s, 2" % (s(S_CT), s(S_CT)))
    k("s_add_u32 %s, %s, %s" % (s(S_CT), s(S_CT), s(S_T)))
    k("s_lshl_b32 %s, %s, 1" % (s(S_ROT), s(S_ROT)))
    k("s_lshl_b32 %s, %s, 1" % (s(S_T), s(S_T)))
    k("s_add_u32 %s, %s, %s" % (s(S_T), s(S_T), s(S_W)))
    k("s_and_b32 %s, %s, 7" % (s(S_T), s(S_T)))
    k("s_lshl_b32 %s, %s, 3" % (s(S_T3), s(S_T)))
    k("v_lshlrev_b32 v3, 4, v0")
    k("s_lshl_b32 %s, %s, 6" % (s(S_T), s(S_RB)))
    k("s_add_u32 %s, %s, %s" % (s(S_T), s(S_T), s(S_T3)))
    k("s_lshl_b32 %s, %s, 10" % (s(S_T2), s(S_T)))
    k("s_lshl_b32 m0, %s, 10" % s(S_T3))
    k("s_and_b32 %s, %s, 8" % (s(S_T3), s(S_T3)))
    k("s_waitcnt lgkmcnt(0)")
    k.srd(S_XD, S_X, 2048 * 1024)
    for i in range(8):
        k("s_add_u32 %s, %s, %d" % (s(S_T), s(S_T3), i))
        k("s_lshl_b32 %s, %s, 4" % (s(S_T), s(S_T)))
        k("v_xor_b32 v4, %s, v3" % s(S_T))
        k("buffer_load_dwordx4 v4, %s, %s offen lds" % (s(S_XD, 4), s(S_T2)))
        if i < 7:
            k("s_add_u32 m0, m0, 1024")
            k("s_add_u32 %s, %s, 1024" % (s(S_T2), s(S_T2)))
    if "p2" not in OPT and "p3" not in OPT:
        prof_mark(k, 2)
    k("v_and_b32 v1, 31, v0")
    k("v_lshrrev_b32 v2, 5, v0")
    k.srd(S_OD, S_WS, WS_END if "xn" not in OPT else WS_XN + (2 << 20))
    k("s_cmp_ge_u32 %s, 4" % s(S_W))
    k("s_cbranch_scc1 %s_loader" % pre)


def xaddr_base(k, s_tile):
    k("s_lshl_b32 %s, %s, 15" % (s(S_T), s(s_tile)))
    k("v_and_b32 v3, 15, v1")
    k("v_xor_b32 v3, v3, v2")
    k("v_lshlrev_b32 v3, 4, v3")
    k("v_lshl_add_u32 v3, v1, 10, v3")
    k("v_add_u32 %s, %s, v3" % (v(VA0), s(S_T)))


def normalise(k, pre, dma, younger=0):
    k("s_and_b32 %s, %s, 1" % (s(S_T2), s(S_W)))
    xaddr_base(k, S_T2)
    k("s_lshr_b32 %s, %s, 1" % (s(S_T3), s(S_W)))
    k("s_lshl_b32 %s, %s, 8" % (s(S_U), s(S_T3)))
    k("v_xor_b32 %s, %s, %s" % (v(VXA), s(S_U), v(VA0)))
    k("s_waitcnt vmcnt(%d)" % younger)
    k("s_barrier")
    if "p2" not in OPT:
        prof_mark(k, 3)
    for i in range(8):
        k("v_xor_b32 %s, %d, %s" % (v(6 + i) if dma is None else v(NT + 8 + i), 32 * i, v(VXA)))
    AD = 6 if dma is None else NT + 8
    for i in range(8):
        k("ds_read_b128 %s, %s" % (v(NX + 4 * i, 4), v(AD + i)))
    for r in range(4):
        k("v_mov_b32 %s, 0" % v(NS + r))
    k("v_mov_b32 %s, 0x3f803f80" % v(NT))
    for i in range(8):
        k("s_waitcnt lgkmcnt(%d)" % (7 - i))
        for r in range(4):
            k("v_dot2c_f32_bf16 %s, %s, %s" % (v(NS + (r & 1)), v(NT), v(NX + 4 * i + r)))
            k("v_dot2c_f32_bf16 %s, %s, %s" % (v(NQ + (r & 1)), v(NX + 4 * i + r), v(NX + 4 * i + r)))
    k("s_nop 2")
    for r in (NS, NQ):
        k("v_add_f32 %s, %s, %s" % (v(r), v(r), v(r + 1)))
        k("v_mov_b32 %s, %s" % (v(r + 1), v(r)))
        k("s_nop 1")
        k("v_permlane32_swap_b32 %s, %s" % (v(r + 1), v(r)))
        k("s_nop 1")
        k("v_add_f32 %s, %s, %s" % (v(r), v(r), v(r + 1)))
    if "p3" in OPT:
        prof_mark(k, 2)
    for grp in (dma or []):
        for ins in grp:
            k(ins)
    k("v_mov_b32 %s, %s" % (v(NS + 1), v(NQ)))
    k("s_lshl_b32 %s, %s, 8" % (s(S_T), s(S_W)))
    k("s_add_u32 %s, %s, %d" % (s(S_T), s(S_T), L_PART))
    k("v_lshl_add_u32 v3, v1, 3, %s" % s(S_T))
    k("ds_write_b64 v3, %s" % v(NS, 2))
    k("s_waitcnt lgkmcnt(0)")
    k("s_barrier")
    if "p3" in OPT:
        prof_mark(k, 4)
    k("s_and_b32 %s, %s, 1" % (s(S_T), s(S_W)))
    k("s_lshl_b32 %s, %s, 8" % (s(S_T), s(S_T)))
    k("s_add_u32 %s, %s, %d" % (s(S_T), s(S_T), L_PART))
    k("v_lshl_add_u32 v3, v1, 3, %s" % s(S_T))
    PT = NT + 16
    for q in range(4):
        k("ds_read_b64 %s, v3 offset:%d" % (v(PT + 2 * q, 2), q * 512))
    k("s_waitcnt lgkmcnt(0)")
    k("v_add_f32 %s, %s, %s" % (v(PT), v(PT), v(PT + 2)))
    k("v_add_f32 %s, %s, %s" % (v(PT + 1), v(PT + 1), v(PT + 3)))
    k("v_add_f32 %s, %s, %s" % (v(PT + 4), v(PT + 4), v(PT + 6)))
    k("v_add_f32 %s, %s, %s" % (v(PT + 5), v(PT + 5), v(PT + 7)))
    k("v_add_f32 %s, %s, %s" % (v(NS), v(PT), v(PT + 4)))
    k("v_add_f32 %s, %s, %s" % (v(NQ), v(PT + 1), v(PT + 5)))
    k("v_mul_f32 %s, 0x%x, %s" % (v(NS), f2u(1.0 / 512), v(NS)))
    k("v_mul_f32 %s, 0x%x, %s" % (v(NQ), f2u(1.0 / 512), v(NQ)))
    k("v_fma_f32 %s, -%s, %s, %s" % (v(NQ), v(NS), v(NS), v(NQ)))
    k("v_max_f32 %s, 0, %s" % (v(NQ), v(NQ)))
    k("v_add_f32 %s, 0x%x, %s" % (v(NQ), f2u(1e-5), v(NQ)))
    k("v_rsq_f32 %s, %s" % (v(NQ), v(NQ)))
    MK, TP = NT + 24, NT + 26
    k("v_mov_b32 %s, 0xffff0000" % v(MK))
    k("v_mul_f32 %s, %s, %s" % (v(NS), v(NS), v(NQ)))
    k("v_mov_b32 %s, %s" % (v(NQ + 1), v(NQ)))
    k("v_sub_f32 %s, 0, %s" % (v(NS), v(NS)))
    k("v_mov_b32 %s, %s" % (v(NS + 1), v(NS)))
    for i in range(8):
        for r in range(4):
            x = NX + 4 * i + r
            t = TP + 2 * (r & 1)
            k("v_lshlrev_b32 %s, 16, %s" % (v(t), v(x)))
            k("v_and_b32 %s, %s, %s" % (v(t + 1), v(MK), v(x)))
            if r > 0:
                tp = TP + 2 * ((r - 1) & 1)
                k("v_cvt_pk_bf16_f32 %s, %s, %s" % (v(x - 1), v(tp), v(tp + 1)))
            k("v_pk_fma_f32 %s, %s, %s, %s" % (v(t, 2), v(t, 2), v(NQ, 2), v(NS, 2)))
        tp = TP + 2
        k("v_cvt_pk_bf16_f32 %s, %s, %s" % (v(NX + 4 * i + 3), v(tp), v(tp + 1)))
        k("ds_write_b128 %s, %s" % (v(AD + i), v(NX + 4 * i, 4)))
    if "p3" in OPT:
        prof_mark(k, 5)
    if "xn" in OPT:
        k("s_lshr_b32 %s, %s, 1" % (s(S_T), s(S_CT)))
        k("s_lshr_b32 %s, %s, 1" % (s(S_T2), s(S_W)))
        k("s_cmp_eq_u32 %s, %s" % (s(S_T), s(S_T2)))
        k("s_cbranch_scc0 %s_noxn%s" % (pre, "L" if dma else "C"))
        k("s_and_b32 %s, %s, 1" % (s(S_T), s(S_W)))
        k("s_lshl_b32 %s, %s, 1" % (s(S_T2), s(S_RB)))
        k("s_add_u32 %s, %s, %s" % (s(S_T), s(S_T), s(S_T2)))
        k("s_lshl_b32 %s, %s, 15" % (s(S_T), s(S_T)))
        k("s_lshl_b32 %s, %s, 12" % (s(S_T2), s(S_CT)))
        k("s_add_u32 %s, %s, %s" % (s(S_T), s(S_T), s(S_T2)))
        k("s_add_u32 %s, %s, 0x%x" % (s(S_T), s(S_T), WS_XN))
        k("v_lshlrev_b32 v3, 4, v0")
        k("s_bitcmp1_b32 %s, 0" % s(S_CT))
        k("s_cbranch_scc1 %s_xnhi%s" % (pre, "L" if dma else "C"))
        for i in range(4):
            k("buffer_store_dwordx4 %s, v3, %s, %s offen offset:%d" % (v(NX + 4 * i, 4), s(S_OD, 4), s(S_T), 1024 * i))
        k("s_branch %s_noxn%s" % (pre, "L" if dma else "C"))
        k.label("%s_xnhi%s" % (pre, "L" if dma else "C"))
        for i in range(4):
            k("buffer_store_dwordx4 %s, v3, %s, %s offen offset:%d" % (v(NX + 16 + 4 * i, 4), s(S_OD, 4), s(S_T), 1024 * i))
        k.label("%s_noxn%s" % (pre, "L" if dma else "C"))
    k("s_waitcnt lgkmcnt(0)")


def next_slot(k, r):
    k("s_add_u32 %s, %s, %d" % (s(r), s(r), SLOT))
    k("s_cmp_ge_u32 %s, %d" % (s(r), SLOTE))
    k("s_cselect_b32 %s, %d, %s" % (s(r), SLOT0, s(r)))


def wfrag_addr(k):
    t = ACC
    r, b, h, g, x, y = t, t + 1, t + 2, t + 3, t + 4, t + 5
    k("s_lshr_b32 %s, %s, 1" % (s(S_T), s(S_W)))
    k("v_bfe_u32 %s, v0, 2, 2" % v(r))
    k("v_and_b32 %s, 3, v0" % v(b))
    k("v_bfe_u32 %s, v0, 4, 1" % v(h))
    k("v_lshl_add_u32 %s, %s, 2, %s" % (v(b), v(h), v(b)))
    k("v_and_b32 %s, 1, %s" % (v(h), v(b)))
    k("v_lshrrev_b32 %s, 1, %s" % (v(g), v(b)))
    k("v_lshl_add_u32 %s, v2, 3, %s" % (v(x), v(r)))
    k("v_lshl_add_u32 %s, %s, 2, %s" % (v(b), v(h), v(g)))
    k("v_mul_u32_u24 %s, 384, %s" % (v(y), v(x)))
    k("v_lshl_add_u32 %s, %s, 3, %s" % (v(y), v(b), v(y)))
    k("v_lshrrev_b32 %s, 1, %s" % (v(b), v(r)))
    k("v_xor_b32 %s, %s, %s" % (v(b), s(S_T), v(b)))
    k("v_lshl_add_u32 %s, %s, 6, %s" % (v(VWQ), v(b), v(y)))
    k("v_lshrrev_b32 %s, 1, %s" % (v(b), v(g)))
    k("v_and_b32 %s, 1, %s" % (v(g), v(g)))
    k("v_lshl_add_u32 %s, %s, 1, %s" % (v(g), v(h), v(g)))
    k("v_lshl_add_u32 %s, %s, 2, %s" % (v(b), v(b), v(g)))
    k("v_lshlrev_b32 %s, 9, %s" % (v(y), v(x)))
    k("v_lshl_add_u32 %s, %s, 3, %s" % (v(y), v(b), v(y)))
    k("s_lshl_b32 %s, %s, 8" % (s(S_T), s(S_T)))
    k("v_add_u32 %s, %s, %s" % (v(y), s(S_T), v(y)))
    for ft in range(4):
        k("v_xor_b32 %s, %d, %s" % (v(b), ft, v(r)))
        k("v_lshl_add_u32 %s, %s, 6, %s" % (v(VWF + ft), v(b), v(y)))


def compute_phase(k, pre, F):
    q = F == 3
    RB = 384 if q else 512
    NA = 1 if q else 4
    base = VWQ if q else VWF
    p = pre + ("Q" if q else "F")

    def wa(par, ft):
        return VW2 + 4 * par + (0 if q else ft)

    def slot_ops(par):
        return ["v_add_u32 %s, %s, %s" % (v(VW2 + 4 * par + j), s(S_SLOT), v(base + j)) for j in range(NA)]

    def x_ops(st):
        return ["v_xor_b32 %s, %s, %s" % (v(VX), s(S_U), v(VA0))] if st == 0 else ["v_xor_b32 %s, 32, %s" % (v(VX), v(VX))]

    def u_ops():
        return ["s_lshl_b32 %s, %s, 6" % (s(S_U), s(S_KC))]

    def kc_next():
        return ["s_add_u32 %s, %s, 1" % (s(S_KC), s(S_KC)), "s_and_b32 %s, %s, 15" % (s(S_KC), s(S_KC))]

    def rd_x(buf):
        return ["ds_read_b128 %s, %s" % (v(XF[buf], 4), v(VX))]

    def rd_w(par, st, buf, ft):
        off = st * 16 * RB + (ft * 128 if q else 0)
        return ["ds_read_b64_tr_b16 %s, %s offset:%d" % (v(WF[buf] + 4 * ft + 2 * u, 2), v(wa(par, ft)), off + u * 4 * RB) for u in range(2)]

    def mfma(buf, ft):
        d = v(ACC + 16 * ft, 16)
        if q and ft == 2:
            k("v_mfma_f32_32x32x16_bf16 %s, %s, %s, %s" % (d, v(XF[buf], 4), v(WF[buf] + 4 * ft, 4), d))
        else:
            k("v_mfma_f32_32x32x16_bf16 %s, %s, %s, %s" % (d, v(WF[buf] + 4 * ft, 4), v(XF[buf], 4), d))

    k("s_mov_b32 %s, %s" % (s(S_KC), s(S_ROT)))
    for ins in u_ops() + slot_ops(0) + x_ops(0) + rd_x(0) + sum((rd_w(0, 0, 0, ft) for ft in range(F)), []) + x_ops(1):
        k(ins)
    k("s_mov_b32 %s, 0" % s(S_C))
    k(".p2align 3")
    k.label(p + "_loop")
    VXN = VX + 0
    for par in range(2):
        for st in range(2):
            b, nb = st, 1 - st
            npar = par if st == 0 else 1 - par
            for ft in range(F):
                newer = 2 * (F - 1 - ft) + (0 if ft == 0 else 1 + 2 * ft)
                k("s_waitcnt lgkmcnt(%d)" % newer)
                mfma(b, ft)
                if ft == 0:
                    if st == 1:
                        k("s_barrier")
                    for ins in rd_x(nb):
                        k(ins)
                for ins in rd_w(npar, 1 - st, nb, ft):
                    k(ins)
                if ft == 0:
                    if st == 0:
                        for ins in kc_next() + u_ops() + x_ops(0):
                            k(ins)
                    else:
                        for ins in x_ops(1):
                            k(ins)
                if st == 0 and ft == 1:
                    next_slot(k, S_SLOT)
                if st == 0 and ft == F - 1:
                    for ins in slot_ops(1 - par):
                        k(ins)
    k("s_add_u32 %s, %s, 1" % (s(S_C), s(S_C)))
    k("s_cmp_lt_u32 %s, 8" % s(S_C))
    k("s_cbranch_scc1 %s_loop" % p)
    k("s_waitcnt lgkmcnt(0)")


def epilogue_q(k):
    cq = 0.25 * LOG2E
    a1, a2, a3, t1, t2 = 12, 13, 14, 15, 16
    k("s_lshl_b32 %s, %s, 1" % (s(S_T2), s(S_RB)))
    k("s_and_b32 %s, %s, 1" % (s(S_T), s(S_W)))
    k("s_add_u32 %s, %s, %s" % (s(S_T2), s(S_T2), s(S_T)))
    k("s_lshl_b32 %s, %s, 2" % (s(S_T3), s(S_CT)))
    k("s_and_b32 %s, %s, 2" % (s(S_T), s(S_W)))
    k("s_add_u32 %s, %s, %s" % (s(S_T3), s(S_T3), s(S_T)))
    k("v_add_u32 %s, %s, v2" % (v(t1), s(S_T3)))
    k("v_lshlrev_b32 %s, 4, v1" % v(t2))
    k("v_lshl_add_u32 %s, %s, 16, %s" % (v(a1), v(t1), v(t2)))
    k("s_lshl_b32 %s, %s, 10" % (s(S_T), s(S_T2)))
    k("v_add_u32 %s, %s, %s" % (v(a1), s(S_T), v(a1)))
    k("v_lshl_add_u32 %s, %s, 17, %s" % (v(a2), v(t1), v(t2)))
    k("s_lshl_b32 %s, %s, 11" % (s(S_T), s(S_T2)))
    k("s_add_u32 %s, %s, 0x%x" % (s(S_T), s(S_T), WS_KV))
    k("v_add_u32 %s, %s, %s" % (v(a2), s(S_T), v(a2)))
    k("v_bfe_u32 %s, v1, 2, 1" % v(t1))
    k("v_lshrrev_b32 %s, 3, v1" % v(t2))
    k("v_and_b32 %s, 3, v1" % v(a3))
    k("v_and_b32 v17, 1, %s" % v(t2))
    k("v_lshrrev_b32 %s, 1, %s" % (v(t2), v(t2)))
    k("v_lshl_add_u32 %s, %s, 2, %s" % (v(a3), v(t2), v(a3)))
    k("v_lshl_add_u32 %s, v17, 3, %s" % (v(a3), v(a3)))
    k("v_lshlrev_b32 %s, 4, %s" % (v(a3), v(a3)))
    k("v_add_u32 %s, %s, %s" % (v(t1), s(S_T3), v(t1)))
    k("v_lshl_add_u32 %s, %s, 17, %s" % (v(a3), v(t1), v(a3)))
    k("v_lshl_add_u32 %s, v2, 8, %s" % (v(a3), v(a3)))
    k("s_add_u32 %s, %s, 1024" % (s(S_T), s(S_T)))
    k("v_add_u32 %s, %s, %s" % (v(a3), s(S_T), v(a3)))
    sc = " sc1" if "sc1" in OPT else ""
    for ft, dst in ((1, a2), (2, a3), (0, a1)):
        A = ACC + 16 * ft
        if ft == 0:
            for r in range(16):
                k("v_mul_f32 %s, 0x%x, %s" % (v(A + r), f2u(cq), v(A + r)))
        for r in range(8):
            k("v_cvt_pk_bf16_f32 %s, %s, %s" % (v(A + r), v(A + 2 * r), v(A + 2 * r + 1)))
        k("buffer_store_dwordx4 %s, %s, %s, 0 offen%s" % (v(A, 4), v(dst), s(S_OD, 4), sc))
        k("buffer_store_dwordx4 %s, %s, %s, 0 offen offset:512%s" % (v(A + 4, 4), v(dst), s(S_OD, 4), sc))


def epilogue_f(k):
    a1 = 12
    k("s_lshl_b32 %s, %s, 1" % (s(S_T2), s(S_RB)))
    k("s_and_b32 %s, %s, 1" % (s(S_T), s(S_W)))
    k("s_add_u32 %s, %s, %s" % (s(S_T2), s(S_T2), s(S_T)))
    k("s_mul_i32 %s, %s, %d" % (s(S_T), s(S_T2), WS_HO_ROW))
    k("s_lshl_b32 %s, %s, 14" % (s(S_T3), s(S_CT)))
    k("s_add_u32 %s, %s, %s" % (s(S_T), s(S_T), s(S_T3)))
    k("s_lshr_b32 %s, %s, 1" % (s(S_T3), s(S_W)))
    k("s_lshl_b32 %s, %s, 13" % (s(S_T3), s(S_T3)))
    k("s_add_u32 %s, %s, %s" % (s(S_T), s(S_T), s(S_T3)))
    k("s_add_u32 %s, %s, 0x%x" % (s(S_T), s(S_T), WS_HO))
    k("v_lshlrev_b32 %s, 4, v0" % v(a1))
    k("v_add_u32 %s, %s, %s" % (v(a1), s(S_T), v(a1)))
    B = WF[0]
    for ft in range(4):
        A = ACC + 16 * ft
        for r in range(16):
            k("v_max_f32 %s, 0, %s" % (v(B + r), v(A + r)))
        for r in range(16):
            k("v_mul_f32 %s, %s, %s" % (v(A + r), v(A + r), v(B + r)))
        for r in range(8):
            k("v_cvt_pk_bf16_f32 %s, %s, %s" % (v(A + r), v(A + 2 * r), v(A + 2 * r + 1)))
        k("buffer_store_dwordx4 %s, %s, %s, 0 offen offset:%d" % (v(A, 4), v(a1), s(S_OD, 4), 2048 * (ft & 1)))
        k("buffer_store_dwordx4 %s, %s, %s, 0 offen offset:%d" % (v(A + 4, 4), v(a1), s(S_OD, 4), 2048 * (ft & 1) + 1024))
        if ft == 1:
            k("v_add_u32 %s, 4096, %s" % (v(a1), v(a1)))


def compute(k, pre, ffn):
    normalise(k, pre, None)
    wfrag_addr(k)
    k("s_and_b32 %s, %s, 1" % (s(S_T2), s(S_W)))
    xaddr_base(k, S_T2)
    for j in range(48):
        k("v_mov_b32 %s, 0" % v(ACC + j))
    k("s_mov_b32 %s, %d" % (s(S_SLOT), SLOT0))
    k("s_setprio 2")
    k("s_barrier")
    if "p3" not in OPT:
        prof_mark(k, 4 if "p2" not in OPT else 2)
    compute_phase(k, pre, 3)
    if "p2" in OPT:
        prof_mark(k, 3)
    k("s_nop 7")
    epilogue_q(k)
    if ffn:
        k("s_cmp_eq_u32 %s, 7" % s(S_CT))
        k("s_cbranch_scc1 %s_cdone" % pre)
        k("s_lshr_b32 %s, %s, 1" % (s(S_T), s(S_W)))
        k("s_lshl_b32 %s, %s, 9" % (s(S_T), s(S_T)))
        k("s_add_u32 %s, %s, %d" % (s(S_T), s(S_T), L_BI))
        k("v_lshl_add_u32 v3, v2, 4, %s" % s(S_T))
        for ft in range(4):
            for g in range(4):
                k("ds_read_b128 %s, v3 offset:%d" % (v(ACC + 16 * ft + 4 * g, 4), ft * 128 + g * 32))
        k("s_waitcnt lgkmcnt(0)")
        if "p2" in OPT:
            prof_mark(k, 4)
        compute_phase(k, pre, 4)
        if "p2" in OPT:
            prof_mark(k, 5)
        k("s_nop 7")
        epilogue_f(k)
        k.label(pre + "_cdone")


class Groups:
    def __init__(self):
        self.groups = [[]]

    def __call__(self, txt):
        self.groups[-1].append(txt)
        if txt.startswith("buffer_load"):
            self.groups.append([])


def issue_chunk(k, q, c):
    n = 3 if q else 4
    wrow = 3072 if q else 3584
    k("s_add_u32 m0, %s, %d" % (s(S_LD3 if q else S_LD4), SLOT0 + (c % R) * SLOT))
    if not q:
        k("s_mov_b32 %s, %s" % (s(S_T2), s(S_WO)))
    else:
        k("s_nop 0")
    for i in range(n):
        k("buffer_load_dwordx4 %s, %s, %s offen lds" % (v(VQO + i) if q else v(VFO + (i & 1)), s(S_WD, 4), s(S_WO if q else S_T2)))
        if i < n - 1:
            k("s_add_u32 m0, m0, 1024")
            if q:
                k("s_nop 0")
            else:
                k("s_add_u32 %s, %s, %d" % (s(S_T2), s(S_T2), 2 * wrow))
    k("s_add_u32 %s, %s, %d" % (s(S_WO), s(S_WO), 32 * wrow))
    k("s_cmp_ge_u32 %s, %s" % (s(S_WO), s(S_WEND)))
    k("s_cselect_b32 %s, %d, 0" % (s(S_T), 512 * wrow))
    k("s_sub_u32 %s, %s, %s" % (s(S_WO), s(S_WO), s(S_T)))


def phase_base(k, q):
    wrow = 3072 if q else 3584
    k("s_mul_i32 %s, %s, %d" % (s(S_WO), s(S_LD), 8 * wrow))
    k("s_lshl_b32 %s, %s, %d" % (s(S_T), s(S_CT), 7 if q else 9))
    k("s_add_u32 %s, %s, %s" % (s(S_WO), s(S_WO), s(S_T)))
    k("s_add_u32 %s, %s, %d" % (s(S_WEND), s(S_WO), 512 * wrow))
    k("s_mul_i32 %s, %s, %d" % (s(S_T), s(S_ROT), 32 * wrow))
    k("s_add_u32 %s, %s, %s" % (s(S_WO), s(S_WO), s(S_T)))


def loader(k, pre, ffn):
    k("s_setprio 3")
    k("s_sub_u32 %s, %s, 4" % (s(S_LD), s(S_W)))
    k.srd(S_WD, S_WQ, 512 * 3072)
    k("s_mov_b32 %s, 0x%x" % (s(S_T), (2 ** 32 + 383) // 384))
    for j in range(3):
        k("v_lshlrev_b32 v12, 4, v0")
        k("v_add_u32 v12, %d, v12" % (1024 * j))
        k("v_mul_hi_u32 v13, v12, %s" % s(S_T))
        k("v_mul_u32_u24 v14, 384, v13")
        k("v_sub_u32 v14, v12, v14")
        k("v_lshrrev_b32 v15, 7, v14")
        k("v_and_b32 v14, 127, v14")
        k("v_bfe_u32 v12, v13, 1, 1")
        k("v_lshlrev_b32 v12, 6, v12")
        k("v_xor_b32 v14, v14, v12")
        k("v_mul_u32_u24 v13, 3072, v13")
        k("v_lshl_add_u32 v13, v15, 10, v13")
        k("v_add_u32 %s, v13, v14" % v(VQO + j))
    k("s_mul_i32 %s, %s, 3072" % (s(S_LD3), s(S_LD)))
    k("s_lshl_b32 %s, %s, 12" % (s(S_LD4), s(S_LD)))
    phase_base(k, True)
    issue_chunk(k, True, 0)
    issue_chunk(k, True, 1)
    for p_ in range(2):
        k("v_lshrrev_b32 v12, 5, v0")
        k("v_add_u32 v12, %d, v12" % (2 * p_))
        k("v_bfe_u32 v13, v0, 2, 3")
        k("v_xor_b32 v13, v13, v12")
        k("v_lshlrev_b32 v13, 6, v13")
        k("v_and_b32 v14, 3, v0")
        k("v_lshl_add_u32 v13, v14, 4, v13")
        k("v_lshrrev_b32 v12, 5, v0")
        k("v_mul_u32_u24 v12, 3584, v12")
        k("v_add_u32 %s, v12, v13" % v(VFO + p_))
    if ffn:
        k("v_lshrrev_b32 v12, 3, v1")
        k("v_bfe_u32 v13, v1, 2, 1")
        k("v_and_b32 v14, 3, v1")
        k("v_lshrrev_b32 v15, 1, v12")
        k("v_and_b32 v12, 1, v12")
        k("v_lshl_add_u32 v14, v12, 2, v14")
        k("v_lshl_add_u32 v14, v13, 3, v14")
        k("v_lshl_add_u32 v14, v15, 4, v14")
        k("v_lshl_add_u32 v14, v2, 5, v14")
        k("s_lshl_b32 %s, %s, 8" % (s(S_T), s(S_CT)))
        k("s_lshl_b32 %s, %s, 6" % (s(S_T2), s(S_LD)))
        k("s_add_u32 %s, %s, %s" % (s(S_T), s(S_T), s(S_T2)))
        k("v_add_u32 v14, %s, v14" % s(S_T))
        k("v_lshlrev_b32 v14, 1, v14")
        k("v_min_u32 v14, 3582, v14")
        k("global_load_ushort v11, v14, %s" % s(S_B1, 2))
    g = Groups()
    issue_chunk(g, True, 2)
    issue_chunk(g, True, 3)
    normalise(k, pre, g.groups, 6 + (1 if ffn else 0))
    k("s_waitcnt vmcnt(%d)" % (6 if ffn else 9))
    if ffn:
        k("v_lshlrev_b32 v11, 16, v11")
        k("s_lshl_b32 %s, %s, 8" % (s(S_T), s(S_LD)))
        k("s_add_u32 %s, %s, %d" % (s(S_T), s(S_T), L_BI))
        k("v_lshl_add_u32 v12, v0, 2, %s" % s(S_T))
        k("ds_write_b32 v12, v11")
        k("s_waitcnt lgkmcnt(0)")
    k("s_barrier")
    k("s_setprio 1")

    def n_of(c):
        return 3 if c < 16 else 4

    def schedule(first, last, total):
        for c in range(first, last + 1):
            younger = sum(n_of(j) for j in (c + 1, c + 2) if j < total)
            k("s_waitcnt vmcnt(%d)" % younger)
            k("s_barrier")
            if c + 3 < total:
                if c + 3 == 16:
                    k.srd(S_WD, S_W1, 512 * 3584)
                    phase_base(k, False)
                issue_chunk(k, c + 3 < 16, c + 3)

    if ffn:
        k("s_cmp_eq_u32 %s, 7" % s(S_CT))
        k("s_cbranch_scc1 %s_lq" % pre)
        schedule(1, 32, 32)
        k("s_branch %s_lend" % pre)
        k.label(pre + "_lq")
    schedule(1, 16, 16)
    k.label(pre + "_lend")


def finish(k):
    k("s_waitcnt vmcnt(0)")
    if "p2" not in OPT and "p3" not in OPT:
        prof_mark(k, 5)
    prof_rt(k, 6)
    prof_store(k, S_WS, S_W, 28)
    k("s_endpgm")


def gen(k, name, pre, ffn=True):
    k.kernel_begin(name)
    entry(k, pre)
    compute(k, pre, ffn)
    finish(k)
    k.label(pre + "_loader")
    loader(k, pre, ffn)
    finish(k)
    k.label(pre + "_exit")
    k.kernel_end(name, NV, NV)
    return 256, LDS_BYTES
```

```python
import sys
import common
from common import *
import attn, gemm1, final, g1, k1, g2, kb

def build(path, which=("qkv", "ffn1", "attn", "final")):
    k = Asm()
    body = Asm()
    launches = []
    if "qkv" in which:
        n, lds = g1.gen(body, "qkv_kernel", "L_qkv", "qkv")
        launches.append("; @launch kernel=qkv_kernel grid=(%d,1,1) block=(512,1,1) lds=%d" % (n, lds))
    if "k1" in which:
        n, lds = k1.gen(body, "k1_kernel", "L_k1")
        launches.append("; @launch kernel=k1_kernel grid=(%d,1,1) block=(512,1,1) lds=%d" % (n, lds))
    if "kb" in which:
        n, lds = kb.gen(body, "kb_kernel", "L_kb", True)
        launches.append("; @launch kernel=kb_kernel grid=(%d,1,1) block=(512,1,1) lds=%d" % (n, lds))
    if "ffn1" in which:
        n, lds = g1.gen(body, "ffn1_kernel", "L_ffn1", "ffn1")
        launches.append("; @launch kernel=ffn1_kernel grid=(%d,1,1) block=(512,1,1) lds=%d" % (n, lds))
    if "attn" in which:
        attn.gen_attn(body, "attn_kernel")
        launches.append("; @launch kernel=attn_kernel grid=(256,1,1) block=(512,1,1) lds=%d" % (3 * attn.SLOT))
    if "k2" in which:
        attn.gen_attn(body, "k2_kernel", True, lambda kk: g2.gen_ffn2_role(kk, "L_g2", g2.WS_BASE + (4 << 20)))
        launches.append("; @launch kernel=k2_kernel grid=(512,1,1) block=(512,1,1) lds=%d" % (3 * attn.SLOT))
    if "wo" in which:
        n, lds = g2.gen_wo(body, "wo_kernel", "L_wo")
        launches.append("; @launch kernel=wo_kernel grid=(%d,1,1) block=(256,1,1) lds=%d" % (n, lds))
    if "final" in which:
        n, lds = g2.gen_final(body, "final_kernel", "L_fin")
        launches.append("; @launch kernel=final_kernel grid=(%d,1,1) block=(256,1,1) lds=%d" % (n, lds))
    if "empty" in which:
        body.kernel_begin("empty_kernel")
        body.kernel_end("empty_kernel", 32, 32)
        n = [int(a[5:]) for a in which if a.startswith("empty") and len(a) > 5]
    for a in which:
        if a.startswith("nempty"):
            if "empty_kernel:" not in body.text():
                body.kernel_begin("empty_kernel")
                body.kernel_end("empty_kernel", 32, 32)
            for i in range(int(a[6:])):
                launches.append("; @launch kernel=empty_kernel grid=(256,1,1) block=(256,1,1) lds=0")
    txt = HEADER + "\n".join(launches) + "\n" + '.amdgcn_target "amdgcn-amd-amdhsa--gfx950"\n' + body.text()
    open(path, "w").write(txt)

if __name__ == "__main__":
    common.PROF = "prof" in sys.argv
    for a in sys.argv[1:]:
        if a.startswith("g1:"):
            g1.OPT.add(a[3:])
        if a.startswith("k1:"):
            k1.OPT.add(a[3:])
        if a.startswith("kb:"):
            kb.OPT.add(a[3:])
        if a.startswith("g2:"):
            g2.OPT.add(a[3:])
        if a.startswith("at:"):
            attn.OPT.add(a[3:])
    out = [a for a in sys.argv[1:] if a.endswith(".s")][0]
    which = [a for a in sys.argv[1:] if a in ("qkv", "ffn1", "attn", "final", "k1", "kb", "k2", "wo") or a.startswith("nempty")] or ("qkv", "ffn1", "attn", "final")
    build(out, which)
```

```python
import common
from common import *

SA, SB, CI, P, KF, VF0, VF1, QF, OA = 16, 32, 48, 64, 72, 76, 80, 84, 96
V_LANE16, V_CUR, V_NXT, V_KOFF, V_VOFF, V_T0, V_T1, V_OOFF = 1, 2, 3, 4, 5, 6, 7, 8
SLOT = 24576
TILE = 3072
BIAS = 96.0
ONES = 0x3F803F80

S_WS, S_KV, S_HOS, S_W, S_HEAD, S_QB, S_T, S_C, S_SLOT, S_VM, S_TILE = 4, 8, 12, 16, 17, 18, 19, 20, 21, 22, 24
S_QS = 28
S_NSLOT = 32
S_DBG = 34


OPT = set()


def mfma(k, d, A, B, C):
    k("v_mfma_f32_32x32x16_bf16 %s, %s, %s, %s" % (v(d, 16), v(A, 4), v(B, 4), C if isinstance(C, str) else v(C, 16)))


def dma_chunk(k):
    k("s_mul_i32 %s, %s, %d" % (s(S_T), s(S_W), TILE))
    k("s_add_u32 %s, %s, %s" % (s(S_T), s(S_T), s(S_NSLOT)))
    k("s_mov_b32 m0, %s" % s(S_T))
    k("s_lshl_b32 %s, %s, 11" % (s(S_T + 0), s(S_TILE)))
    k("buffer_load_dwordx4 %s, %s, %s offen lds" % (v(V_KOFF), s(S_KV, 4), s(S_T)))
    k("s_add_u32 m0, m0, 1024")
    k("s_mov_b64 exec, %s" % s(S_VM, 2))
    k("buffer_load_dwordx4 %s, %s, %s offen lds" % (v(V_VOFF), s(S_KV, 4), s(S_T)))
    k("s_add_u32 m0, m0, 512")
    k("s_nop 0")
    k("buffer_load_dwordx4 %s, %s, %s offen offset:512 lds" % (v(V_VOFF), s(S_KV, 4), s(S_T)))
    k("s_mov_b64 exec, -1")


def tile_body(k, i, cur, nxt):
    def e(j):
        if "expsep" in OPT:
            k("v_exp_f32 %s, %s" % (v(96 + j), v(cur + j)))
        else:
            k("v_exp_f32 %s, %s" % (v(cur + j), v(cur + j)))

    def c(j):
        k("v_cvt_pk_bf16_f32 %s, %s, %s" % (v(P + j), v(cur + 2 * j), v(cur + 2 * j + 1)))

    def rd(dst, tile, part):
        if "nolds" in OPT:
            return
        base = V_CUR if tile < 8 else V_NXT
        k("ds_read_b128 %s, %s offset:%d" % (v(dst, 4), v(base), (tile % 8) * TILE + part * 1024))

    def w():
        if "nowait" not in OPT:
            k("s_waitcnt lgkmcnt(2)")

    w()
    if "noqk" not in OPT:
        mfma(k, nxt, KF, QF, CI)
    rd(KF, i + 2, 0)
    e(0); e(1); e(2); e(3)
    w()
    if "nopv" not in OPT:
        mfma(k, OA, VF1, P + 4, OA)
    rd(VF1, i, 2)
    c(0); e(4); e(5); c(1); e(6); e(7); c(2); e(8); c(3); e(9); e(10)
    w()
    if "nopv" not in OPT:
        mfma(k, OA, VF0, P, OA)
    rd(VF0, i + 1, 1)
    e(11); c(4); e(12); e(13); c(5); e(14); e(15); c(6); c(7)


def gen_attn(k, name, standalone=True, second_role=None):
    if standalone:
        k.kernel_begin(name)
        k("s_cmp_ge_u32 s2, %d" % (512 if second_role else 256))
        k("s_cbranch_scc1 L_attn_exit")
        prof_start(k)
        if second_role:
            k("s_cmp_ge_u32 s2, 256")
            k("s_cbranch_scc1 L_attn_role2")
        k("s_load_dwordx2 %s, s[0:1], %d" % (s(S_WS, 2), KA_WS))
        k("s_load_dwordx2 %s, s[0:1], %d" % (s(S_DBG, 2), KA_DBG))
    k("s_and_b32 %s, s2, 7" % s(S_HEAD))
    k("s_lshl_b32 %s, %s, 2" % (s(S_HEAD), s(S_HEAD)))
    k("s_lshr_b32 %s, s2, 3" % s(S_T))
    k("s_and_b32 %s, %s, 3" % (s(S_T), s(S_T)))
    k("s_add_u32 %s, %s, %s" % (s(S_HEAD), s(S_HEAD), s(S_T)))
    k("s_lshr_b32 %s, s2, 5" % s(S_QB))
    k("v_lshrrev_b32 %s, 6, v0" % v(V_T0))
    k("v_and_b32 v0, 63, v0")
    k("v_readfirstlane_b32 %s, %s" % (s(S_W), v(V_T0)))
    k("v_lshlrev_b32 %s, 4, v0" % v(V_LANE16))
    k("v_mov_b32 %s, %s" % (v(V_KOFF), v(V_LANE16)))
    k("v_lshrrev_b32 %s, 5, v0" % v(V_T0))
    k("v_lshlrev_b32 %s, 8, %s" % (v(V_T0), v(V_T0)))
    k("v_and_b32 %s, 15, v0" % v(V_T1))
    k("v_lshlrev_b32 %s, 4, %s" % (v(V_T1), v(V_T1)))
    k("v_add3_u32 %s, %s, %s, 0" % (v(V_VOFF), v(V_T0), v(V_T1)))
    k("v_add_u32 %s, 1024, %s" % (v(V_VOFF), v(V_VOFF)))
    k("s_mov_b32 %s, 0x0000ffff" % s(S_VM))
    k("s_mov_b32 %s, 0x0000ffff" % s(S_VM + 1))
    k("s_waitcnt lgkmcnt(0)")
    stamp(k, 2, S_WS, S_W)
    k("s_lshl_b32 %s, %s, 17" % (s(S_T), s(S_HEAD)))
    k("s_add_u32 %s, %s, %s" % (s(S_KV), s(S_WS), s(S_T)))
    k("s_addc_u32 %s, %s, 0" % (s(S_KV + 1), s(S_WS + 1)))
    k("s_add_u32 %s, %s, 0x%x" % (s(S_KV), s(S_KV), WS_KV))
    k("s_addc_u32 %s, %s, 0" % (s(S_KV + 1), s(S_KV + 1)))
    k("s_and_b32 %s, %s, 0xffff" % (s(S_KV + 1), s(S_KV + 1)))
    k("s_mov_b32 %s, 0x20000" % s(S_KV + 2))
    k("s_mov_b32 %s, 0x20000" % s(S_KV + 3))
    k("s_mov_b32 %s, %s" % (s(S_TILE), s(S_W)))
    k("s_mov_b32 %s, 0" % s(S_NSLOT))
    dma_chunk(k)
    k.srd(S_HOS, S_WS, WS_END)
    k("s_lshl_b32 %s, %s, 6" % (s(S_T), s(S_HEAD)))
    k("s_lshl_b32 %s, %s, 3" % (s(S_QS), s(S_QB)))
    k("s_add_u32 %s, %s, %s" % (s(S_QS), s(S_QS), s(S_W)))
    k("s_add_u32 %s, %s, %s" % (s(S_T), s(S_T), s(S_QS)))
    k("s_lshl_b32 %s, %s, 10" % (s(S_T), s(S_T)))
    k("buffer_load_dwordx4 %s, %s, %s, %s offen" % (v(QF, 4), v(V_LANE16), s(S_HOS, 4), s(S_T)))
    k("s_mul_i32 %s, %s, 144" % (s(S_QS), s(S_QS)))
    k("s_add_u32 %s, %s, %s" % (s(S_QS), s(S_QS), s(S_HEAD)))
    k("s_add_u32 %s, %s, 112" % (s(S_QS), s(S_QS)))
    k("s_lshl_b32 %s, %s, 10" % (s(S_QS), s(S_QS)))
    k("s_add_u32 %s, %s, 0x%x" % (s(S_QS), s(S_QS), WS_HO))
    k("v_mov_b32 %s, 0x%x" % (v(P), ONES))
    k("v_mov_b32 %s, 0x%x" % (v(P + 1), ONES))
    k("v_mov_b32 %s, 0x%x" % (v(P + 2), ONES))
    k("v_mov_b32 %s, 0x%x" % (v(P + 3), ONES))
    k("s_mul_i32 %s, %s, %d" % (s(S_T), s(S_W), TILE))
    k("v_add_u32 %s, %s, %s" % (v(V_T0), s(S_T), v(V_LANE16)))
    if "zeropad" in OPT:
        k("v_and_b32 %s, 27, v0" % v(V_T1))
        k("v_cmp_eq_u32 vcc, 16, %s" % v(V_T1))
        k("s_nop 1")
        for j in range(4):
            k("v_cndmask_b32 %s, 0, %s, vcc" % (v(P + j), v(P + j)))
    k("s_mov_b32 exec_lo, 0xffff0000")
    k("s_mov_b32 exec_hi, 0xffff0000")
    for slot in range(3):
        for part in (1, 2):
            k("ds_write_b128 %s, %s offset:%d" % (v(V_T0), v(P, 4), slot * SLOT + part * 1024))
    k("s_mov_b64 exec, -1")
    k("s_add_u32 %s, %s, 8" % (s(S_TILE), s(S_TILE)))
    k("s_mov_b32 %s, %d" % (s(S_NSLOT), SLOT))
    dma_chunk(k)
    k("s_waitcnt vmcnt(3) lgkmcnt(0)")
    k("s_barrier")
    prof_mark(k, 2)
    bufs = (SA, SB, CI, OA)
    frs = (KF, VF0, VF1, P)
    for t in range(4):
        k("ds_read_b128 %s, %s offset:%d" % (v(frs[t], 4), v(V_LANE16), t * TILE))
    for t in range(4):
        k("s_waitcnt lgkmcnt(%d)" % (3 - t))
        mfma(k, bufs[t], frs[t], QF, "0")
    k("ds_read_b128 %s, %s offset:%d" % (v(KF, 4), v(V_LANE16), 0))
    k("s_nop 7")
    m = V_T0
    k("v_max3_f32 %s, %s, %s, %s" % (v(m), v(SA), v(SA + 1), v(SA + 2)))
    regs = [SA + j for j in range(3, 16)] + [SB + j for j in range(16)]
    for j in range(0, len(regs) - 1, 2):
        k("v_max3_f32 %s, %s, %s, %s" % (v(m), v(m), v(regs[j]), v(regs[j + 1])))
    k("v_max_f32 %s, %s, %s" % (v(m), v(m), v(regs[-1])))
    regs = [CI + j for j in range(16)] + [OA + j for j in range(16)]
    for j in range(0, 32, 2):
        k("v_max3_f32 %s, %s, %s, %s" % (v(m), v(m), v(regs[j]), v(regs[j + 1])))
    k("v_mov_b32 %s, %s" % (v(V_T1), v(m)))
    k("s_nop 1")
    k("v_permlane32_swap_b32 %s, %s" % (v(V_T1), v(m)))
    k("s_nop 1")
    k("v_max_f32 %s, %s, %s" % (v(m), v(m), v(V_T1)))
    k("v_add_f32 %s, 0x%x, %s" % (v(m), f2u(BIAS), v(m)))
    for j in range(16):
        k("v_sub_f32 %s, 0, %s" % (v(CI + j), v(m)))
    for j in range(16):
        k("v_mov_b32 %s, 0" % v(OA + j))
    for j in range(4):
        k("v_mov_b32 %s, 0" % v(P + 4 + j))
        k("v_mov_b32 %s, 0" % v(VF1 + j))
    k("s_waitcnt lgkmcnt(0)")
    mfma(k, SA, KF, QF, CI)
    k("ds_read_b128 %s, %s offset:%d" % (v(KF, 4), v(V_LANE16), TILE))
    k("ds_read_b128 %s, %s offset:%d" % (v(VF0, 4), v(V_LANE16), 1024))
    k("v_mov_b32 %s, %s" % (v(V_CUR), v(V_LANE16)))
    k("v_add_u32 %s, %d, %s" % (v(V_NXT), SLOT, v(V_LANE16)))
    k("s_mov_b32 %s, 0" % s(S_C))
    k("s_mov_b32 %s, %d" % (s(S_NSLOT), 2 * SLOT))
    k("s_waitcnt lgkmcnt(0)")
    k("s_nop 7")
    prof_mark(k, 3)
    k(".p2align 6")
    k.label("L_attn_chunk")
    for i in range(8):
        if i == 4:
            k("s_waitcnt vmcnt(0)")
            if "nobar" not in OPT:
                k("s_barrier")
            k("s_cmp_ge_u32 %s, 6" % s(S_C))
            k("s_cbranch_scc1 L_attn_nodma")
            k("s_add_u32 %s, %s, 8" % (s(S_TILE), s(S_TILE)))
            if "nodma" not in OPT:
                dma_chunk(k)
            k.label("L_attn_nodma")
        if "prio2" in OPT and i % 2 == 0:
            k("s_setprio %d" % (3 - ((i - 4) % 8) // 2))
        if "prio3" in OPT and ((i - 4) % 8) in (0, 3, 6):
            k("s_setprio %d" % {0: 2, 3: 1, 6: 0}[(i - 4) % 8])
        if "prio1" in OPT:
            k("s_setprio %d" % (3 - ((i - 4) % 4)))
        if "prio1" in OPT and "bar4" in OPT and i == 0:
            k("s_barrier")
        tile_body(k, i, SA if i % 2 == 0 else SB, SB if i % 2 == 0 else SA)
    k("v_mov_b32 %s, %s" % (v(V_CUR), v(V_NXT)))
    k("v_add_u32 %s, %s, %s" % (v(V_NXT), s(S_NSLOT), v(V_LANE16)))
    k("s_add_u32 %s, %s, %d" % (s(S_NSLOT), s(S_NSLOT), SLOT))
    k("s_cmp_ge_u32 %s, %d" % (s(S_NSLOT), 3 * SLOT))
    k("s_cselect_b32 %s, 0, %s" % (s(S_NSLOT), s(S_NSLOT)))
    k("s_add_u32 %s, %s, 1" % (s(S_C), s(S_C)))
    k("s_cmp_lt_u32 %s, 8" % s(S_C))
    k("s_cbranch_scc1 L_attn_chunk")
    k("s_waitcnt lgkmcnt(0)")
    prof_mark(k, 4)
    mfma(k, OA, VF1, P + 4, OA)
    k("s_nop 15")
    t = V_T0
    k("v_mul_f32 %s, 0, %s" % (v(t), v(OA)))
    for j in range(1, 8):
        k("v_fma_f32 %s, %s, 0, %s" % (v(t), v(OA + j), v(t)))
    k("s_mov_b32 %s, 0x%x" % (s(S_T), f2u(2.0 ** 100)))
    k("v_cmp_ngt_f32 vcc, %s, %s" % (s(S_T), v(OA + 8)))
    k("v_cmp_u_f32 %s, %s, %s" % (s(S_C, 2), v(t), v(t)))
    k("s_nop 1")
    k("s_or_b64 vcc, vcc, %s" % s(S_C, 2))
    k("s_cbranch_vccnz L_attn_slow")
    k.label("L_attn_fin")
    k("v_rcp_f32 %s, %s" % (v(t), v(OA + 8)))
    k("s_nop 0")
    for j in range(8):
        k("v_mul_f32 %s, %s, %s" % (v(OA + j), v(OA + j), v(t)))
    for j in range(4):
        k("v_cvt_pk_bf16_f32 %s, %s, %s" % (v(P + j), v(OA + 2 * j), v(OA + 2 * j + 1)))
    if "signal" in OPT:
        k("buffer_store_dwordx4 %s, %s, %s, %s offen sc1" % (v(P, 4), v(V_LANE16), s(S_HOS, 4), s(S_QS)))
        k("s_waitcnt vmcnt(0)")
        k("s_barrier")
        k("s_cmp_eq_u32 %s, 0" % s(S_W))
        k("s_cbranch_scc0 L_attn_nosig")
        k("s_lshl_b32 %s, %s, 5" % (s(S_T), s(S_QB)))
        k("s_add_u32 %s, %s, %s" % (s(S_T), s(S_T), s(S_HEAD)))
        k("s_lshl_b32 %s, %s, 2" % (s(S_T), s(S_T)))
        k("s_add_u32 %s, %s, 0x%x" % (s(S_T), s(S_T), WS_FLAG + FLAG_O))
        k("v_mov_b32 %s, %s" % (v(V_T0), s(S_T)))
        k("v_mov_b32 %s, 1" % v(V_T1))
        k("s_mov_b64 exec, 1")
        k("global_store_dword %s, %s, %s sc1" % (v(V_T0), v(V_T1), s(S_WS, 2)))
        k("s_mov_b64 exec, -1")
        k.label("L_attn_nosig")
    else:
        k("buffer_store_dwordx4 %s, %s, %s, %s offen" % (v(P, 4), v(V_LANE16), s(S_HOS, 4), s(S_QS)))
    k("s_waitcnt vmcnt(0)")
    stamp(k, 3, S_WS, S_W)
    prof_mark(k, 5)
    prof_rt(k, 6)
    prof_store(k, S_WS, S_W, 16)
    k("s_endpgm")
    k.label("L_attn_slow")
    k("v_mov_b32 %s, 0xff800000" % v(m))
    k("s_mov_b32 %s, 0" % s(S_C))
    k.label("L_attn_slow_max")
    k("buffer_load_dwordx4 %s, %s, %s, %s offen" % (v(KF, 4), v(V_KOFF), s(S_KV, 4), s(S_C)))
    k("s_waitcnt vmcnt(0)")
    mfma(k, SA, KF, QF, "0")
    k("s_nop 15")
    for j in range(0, 16, 2):
        k("v_max3_f32 %s, %s, %s, %s" % (v(m), v(m), v(SA + j), v(SA + j + 1)))
    k("s_add_u32 %s, %s, 2048" % (s(S_C), s(S_C)))
    k("s_cmp_lt_u32 %s, 0x20000" % s(S_C))
    k("s_cbranch_scc1 L_attn_slow_max")
    k("v_mov_b32 %s, %s" % (v(V_T1), v(m)))
    k("s_nop 1")
    k("v_permlane32_swap_b32 %s, %s" % (v(V_T1), v(m)))
    k("s_nop 1")
    k("v_max_f32 %s, %s, %s" % (v(m), v(m), v(V_T1)))
    for j in range(16):
        k("v_sub_f32 %s, 0, %s" % (v(CI + j), v(m)))
        k("v_mov_b32 %s, 0" % v(OA + j))
    for j in range(4):
        k("v_mov_b32 %s, 0x%x" % (v(VF0 + j), ONES))
        k("v_mov_b32 %s, 0x%x" % (v(VF1 + j), ONES))
    k("s_mov_b32 %s, 0" % s(S_C))
    k.label("L_attn_slow_pv")
    k("buffer_load_dwordx4 %s, %s, %s, %s offen" % (v(KF, 4), v(V_KOFF), s(S_KV, 4), s(S_C)))
    k("s_mov_b64 exec, %s" % s(S_VM, 2))
    k("buffer_load_dwordx4 %s, %s, %s, %s offen" % (v(VF0, 4), v(V_VOFF), s(S_KV, 4), s(S_C)))
    k("buffer_load_dwordx4 %s, %s, %s, %s offen offset:512" % (v(VF1, 4), v(V_VOFF), s(S_KV, 4), s(S_C)))
    k("s_mov_b64 exec, -1")
    k("s_waitcnt vmcnt(0)")
    mfma(k, SA, KF, QF, CI)
    k("s_nop 15")
    for j in range(16):
        k("v_exp_f32 %s, %s" % (v(SA + j), v(SA + j)))
    k("s_nop 0")
    for j in range(8):
        k("v_cvt_pk_bf16_f32 %s, %s, %s" % (v(P + j), v(SA + 2 * j), v(SA + 2 * j + 1)))
    k("s_nop 1")
    mfma(k, OA, VF0, P, OA)
    mfma(k, OA, VF1, P + 4, OA)
    k("s_add_u32 %s, %s, 2048" % (s(S_C), s(S_C)))
    k("s_cmp_lt_u32 %s, 0x20000" % s(S_C))
    k("s_cbranch_scc1 L_attn_slow_pv")
    k("s_nop 15")
    k("s_branch L_attn_fin")
    if second_role:
        k.label("L_attn_role2")
        second_role(k)
    if standalone:
        k.label("L_attn_exit")
        nv = 128 if (common.PROF or second_role) else 112
        k.kernel_end(name, nv, nv)


if __name__ == "__main__":
    import sys
    common.PROF = "prof" in sys.argv
    OPT.update(sys.argv[1:])
    k = Asm()
    k.lines.append(HEADER.rstrip())
    k.lines.append("; @launch kernel=attn_kernel grid=(256,1,1) block=(512,1,1) lds=%d" % (3 * SLOT))
    k('.amdgcn_target "amdgcn-amd-amdhsa--gfx950"')
    gen_attn(k, "attn_kernel")
    open("attn_%s.s" % "_".join(["v"] + [x for x in sys.argv[1:] if x != "prof"]), "w").write(k.text())
```

```python
import common
from common import *

OPT = set()
S_X, S_W2, S_WOP, S_B2, S_OUT, S_WS = 4, 6, 8, 10, 12, 14
S_HD, S_WD, S_XD, S_OD, S_BD = 16, 20, 28, 32, 52
S_W, S_RB, S_CB, S_T, S_T2, S_LB = 36, 37, 38, 39, 40, 41
S_XO0, S_XO1, S_WO, S_WRAP, S_LEFT, S_N, S_TRIP, S_RL = 42, 43, 44, 45, 46, 47, 48, 49
S_BX, S_BW, S_BWRAP = 56, 57, 58
D = 4
WSLOT = 2048
RING = D * WSLOT
VWS, VWR, VL16 = 4, 6, 3
XF, WF, ACC = 16, 48, 64
NA, NB = 28, 8


def setup(k):
    k("v_and_b32 v1, 31, v0")
    k("v_lshrrev_b32 v2, 5, v0")
    k("v_lshlrev_b32 v3, 4, v0")
    k("v_lshrrev_b32 v4, 3, v0")
    k("v_bfe_u32 v5, v0, 2, 1")
    k("v_bfe_u32 v6, v0, 4, 1")
    k("v_xor_b32 v5, v5, v6")
    k("v_and_b32 v6, 3, v0")
    k("v_lshlrev_b32 v6, 4, v6")
    k("v_lshl_add_u32 v5, v5, 6, v6")
    k("v_lshl_add_u32 v4, v4, 10, v5")
    k("v_bfe_u32 v12, v0, 2, 2")
    k("v_and_b32 v13, 3, v0")
    k("v_bfe_u32 v14, v0, 4, 1")
    k("v_lshl_add_u32 v13, v14, 2, v13")
    k("v_and_b32 v14, 1, v13")
    k("v_lshrrev_b32 v15, 1, v13")
    k("v_lshrrev_b32 v8, 1, v15")
    k("v_and_b32 v15, 1, v15")
    k("v_lshl_add_u32 v15, v14, 1, v15")
    k("v_lshl_add_u32 v13, v8, 2, v15")
    k("v_lshl_add_u32 v14, v2, 3, v12")
    k("v_lshlrev_b32 v14, 7, v14")
    k("v_lshl_add_u32 v14, v13, 3, v14")
    k("v_lshrrev_b32 v12, 1, v12")
    k("v_add_u32 v14, %s, v14" % s(S_LB))
    for ft in range(2):
        k("v_xor_b32 v15, %d, v12" % ft)
        k("v_lshl_add_u32 %s, v15, 6, v14" % v(VWR + ft))
    for j in range(64):
        k("v_mov_b32 %s, 0" % v(ACC + j))


def seg_params(k, n, kbase, dx, dw, dwrap):
    k("s_mul_i32 %s, %s, %d" % (s(S_T), s(S_RL), n // 4))
    k("s_mul_i32 %s, %s, %d" % (s(S_T2), s(S_CB), n))
    k("s_lshr_b32 %s, %s, 3" % (s(S_T2), s(S_T2)))
    k("s_add_u32 %s, %s, %s" % (s(S_T), s(S_T), s(S_T2)))
    k("s_cmp_ge_u32 %s, %d" % (s(S_T), n))
    k("s_cselect_b32 %s, %d, 0" % (s(S_T2), n))
    k("s_sub_u32 %s, %s, %s" % (s(S_T), s(S_T), s(S_T2)))
    k("s_sub_u32 %s, %d, %s" % (s(dwrap), n, s(S_T)))
    k("s_mul_i32 %s, %s, %d" % (s(S_T2), s(S_W), n))
    k("s_add_u32 %s, %s, %s" % (s(S_T), s(S_T), s(S_T2)))
    k("s_lshl_b32 %s, %s, 14" % (s(dw), s(S_T)))
    k("s_lshl_b32 %s, %s, 7" % (s(S_T2), s(S_CB)))
    k("s_add_u32 %s, %s, %s" % (s(dw), s(dw), s(S_T2)))
    k("s_add_u32 %s, %s, %d" % (s(S_T), s(S_T), kbase))
    k("s_lshl_b32 %s, %s, 10" % (s(S_T), s(S_T)))
    k("s_lshl_b32 %s, %s, 1" % (s(S_T2), s(S_RB)))
    k("s_mul_i32 %s, %s, %d" % (s(dx), s(S_T2), WS_HO_ROW))
    k("s_add_u32 %s, %s, %s" % (s(dx), s(dx), s(S_T)))
    k("s_add_u32 %s, %s, 0x%x" % (s(dx), s(dx), WS_HO))


XSC = [""]


def issue_groups(slot):
    g = []
    g.append(["buffer_load_dwordx4 %s, v3, %s, %s offen%s" % (v(XF + 8 * slot, 4), s(S_HD, 4), s(S_XO0), XSC[0])])
    g.append(["s_add_u32 %s, %s, %d" % (s(S_XO1), s(S_XO0), WS_HO_ROW),
              "buffer_load_dwordx4 %s, v3, %s, %s offen%s" % (v(XF + 8 * slot + 4, 4), s(S_HD, 4), s(S_XO1), XSC[0])])
    g.append(["s_add_u32 m0, %s, %d" % (s(S_LB), slot * WSLOT),
              "s_add_u32 %s, %s, 8192" % (s(S_T), s(S_WO)),
              "buffer_load_dwordx4 v4, %s, %s offen lds" % (s(S_WD, 4), s(S_WO))])
    g.append(["s_add_u32 m0, m0, 1024", "s_nop 0",
              "buffer_load_dwordx4 v4, %s, %s offen lds" % (s(S_WD, 4), s(S_T))])
    return g


def advance(k, lab, two_segments):
    k("s_add_u32 %s, %s, 1024" % (s(S_XO0), s(S_XO0)))
    k("s_add_u32 %s, %s, 16384" % (s(S_WO), s(S_WO)))
    k("s_sub_u32 %s, %s, 1" % (s(S_WRAP), s(S_WRAP)))
    k("s_cmp_lg_u32 %s, 0" % s(S_WRAP))
    k("s_cbranch_scc1 %s_nw" % lab)
    k("s_lshl_b32 %s, %s, 10" % (s(S_T), s(S_N)))
    k("s_sub_u32 %s, %s, %s" % (s(S_XO0), s(S_XO0), s(S_T)))
    k("s_lshl_b32 %s, %s, 14" % (s(S_T), s(S_N)))
    k("s_sub_u32 %s, %s, %s" % (s(S_WO), s(S_WO), s(S_T)))
    k("s_mov_b32 %s, %s" % (s(S_WRAP), s(S_N)))
    k.label(lab + "_nw")
    if two_segments:
        k("s_sub_u32 %s, %s, 1" % (s(S_LEFT), s(S_LEFT)))
        k("s_cmp_lg_u32 %s, 0" % s(S_LEFT))
        k("s_cbranch_scc1 %s_ns" % lab)
        k("s_mov_b32 %s, %s" % (s(S_XO0), s(S_BX)))
        k("s_mov_b32 %s, %s" % (s(S_WO), s(S_BW)))
        k("s_mov_b32 %s, %s" % (s(S_WRAP), s(S_BWRAP)))
        k("s_mov_b32 %s, %d" % (s(S_N), NB))
        k("s_mov_b32 %s, %s" % (s(S_WD), s(S_WOP)))
        k("s_and_b32 %s, %s, 0xffff" % (s(S_WD + 1), s(S_WOP + 1)))
        k("s_mov_b32 %s, 0x%x" % (s(S_WD + 2), 512 * 1024))
        k.label(lab + "_ns")


def rd_w(k, slot, buf):
    for ft in range(2):
        for u in range(2):
            k("ds_read_b64_tr_b16 %s, %s offset:%d" % (v(WF + 8 * buf + 4 * ft + 2 * u, 2), v(VWR + ft), slot * WSLOT + u * 512))


def step(k, d, lab, issue, vm, two_segments, last=False):
    if not last:
        k("s_waitcnt vmcnt(%d)" % vm)
        rd_w(k, (d + 1) % D, (d + 1) & 1)
        k("s_waitcnt lgkmcnt(4)")
    else:
        k("s_waitcnt lgkmcnt(0)")
    g = issue_groups((d + D - 1) % D) if issue else [[], [], [], []]
    j = 0
    for tt in range(2):
        for ft in range(2):
            dd = v(ACC + 16 * (2 * tt + ft), 16)
            k("v_mfma_f32_32x32x16_bf16 %s, %s, %s, %s" % (dd, v(WF + 8 * (d & 1) + 4 * ft, 4), v(XF + 8 * d + 4 * tt, 4), dd))
            for ins in g[j]:
                k(ins)
            j += 1
    if issue:
        advance(k, lab, two_segments)


def stream(k, pre, nsteps, two_segments, prio=None):
    for d in range(D - 1):
        for grp in issue_groups(d):
            for ins in grp:
                k(ins)
        advance(k, "%s_p%d" % (pre, d), two_segments)
    k("s_waitcnt vmcnt(8)")
    if prio:
        k("s_setprio %d" % prio)
    rd_w(k, 0, 0)
    ntrip = nsteps // D - 1
    k("s_mov_b32 %s, 0" % s(S_TRIP))
    k.label(pre + "_loop")
    for d in range(D):
        step(k, d, "%s_l%d" % (pre, d), True, 4, two_segments)
    k("s_add_u32 %s, %s, 1" % (s(S_TRIP), s(S_TRIP)))
    k("s_cmp_lt_u32 %s, %d" % (s(S_TRIP), ntrip))
    k("s_cbranch_scc1 %s_loop" % pre)
    step(k, 0, pre + "_t0", True, 4, two_segments)
    step(k, 1, pre + "_t1", False, 4, two_segments)
    step(k, 2, pre + "_t2", False, 0, two_segments)
    step(k, 3, pre + "_t3", False, 0, two_segments, last=True)


def reduce_and_store(k, pre):
    k("s_nop 15")
    k("s_barrier")
    for q in range(4):
        k("s_cmp_eq_u32 %s, %d" % (s(S_W), q))
        k("s_cbranch_scc1 %s_nw%d" % (pre, q))
        k("s_lshl_b32 %s, %s, 14" % (s(S_T), s(S_W)))
        k("v_add_u32 v8, %s, v3" % s(S_T))
        for g in range(4):
            k("ds_write_b128 v8, %s offset:%d" % (v(ACC + 16 * q + 4 * g, 4), q * 4096 + g * 1024))
        k.label("%s_nw%d" % (pre, q))
    for q in range(4):
        k("s_cmp_lg_u32 %s, %d" % (s(S_W), q))
        k("s_cbranch_scc1 %s_no%d" % (pre, q))
        for r in range(16):
            k("v_mov_b32 %s, %s" % (v(16 + r), v(ACC + 16 * q + r)))
        k.label("%s_no%d" % (pre, q))
    k("s_waitcnt lgkmcnt(0)")
    k("s_barrier")
    k("s_lshl_b32 %s, %s, 12" % (s(S_T2), s(S_W)))
    k("v_add_u32 v8, %s, v3" % s(S_T2))
    first = True
    for dq in range(1, 4):
        k("s_add_u32 %s, %s, %d" % (s(S_T2), s(S_W), dq))
        k("s_and_b32 %s, %s, 3" % (s(S_T2), s(S_T2)))
        k("s_lshl_b32 %s, %s, 14" % (s(S_T2), s(S_T2)))
        k("v_add_u32 v9, %s, v8" % s(S_T2))
        for g in range(4):
            k("ds_read_b128 %s, v9 offset:%d" % (v(64 + 16 * (dq - 1) + 4 * g, 4), g * 1024))
    for dq in range(1, 4):
        k("s_waitcnt lgkmcnt(%d)" % (4 * (3 - dq)))
        for r in range(16):
            k("v_add_f32 %s, %s, %s" % (v(16 + r), v(16 + r), v(64 + 16 * (dq - 1) + r)))


def resid_loads(k):
    k("s_lshr_b32 %s, %s, 1" % (s(S_T), s(S_W)))
    k("s_lshl_b32 %s, %s, 1" % (s(S_T2), s(S_RB)))
    k("s_add_u32 %s, %s, %s" % (s(S_T), s(S_T), s(S_T2)))
    k("s_lshl_b32 %s, %s, 15" % (s(S_T), s(S_T)))
    k("s_and_b32 %s, %s, 1" % (s(S_T2), s(S_W)))
    k("s_lshl_b32 %s, %s, 6" % (s(S_T2), s(S_T2)))
    k("s_lshl_b32 %s, %s, 7" % (s(S_N), s(S_CB)))
    k("s_add_u32 %s, %s, %s" % (s(S_BW), s(S_T2), s(S_N)))
    k("s_add_u32 %s, %s, %s" % (s(S_BX), s(S_T), s(S_BW)))
    k("v_lshlrev_b32 v10, 10, v1")
    k("v_lshl_add_u32 v10, v2, 4, v10")
    k("v_lshlrev_b32 v11, 4, v2")
    k("buffer_load_dwordx4 v[32:35], v10, %s, %s offen" % (s(S_XD, 4), s(S_BX)))
    k("buffer_load_dwordx4 v[36:39], v10, %s, %s offen offset:32" % (s(S_XD, 4), s(S_BX)))
    k("buffer_load_dwordx4 v[40:43], v11, %s, %s offen" % (s(S_BD, 4), s(S_BW)))
    k("buffer_load_dwordx4 v[44:47], v11, %s, %s offen offset:32" % (s(S_BD, 4), s(S_BW)))


def finish_tile(k):
    k("s_waitcnt vmcnt(0)")
    for half in range(2):
        for j in range(4):
            for src in (32, 40):
                r = src + 4 * half + j
                k("v_lshlrev_b32 v12, 16, %s" % v(r))
                k("v_and_b32 v13, 0xffff0000, %s" % v(r))
                k("v_add_f32 %s, %s, v12" % (v(16 + 8 * half + 2 * j), v(16 + 8 * half + 2 * j)))
                k("v_add_f32 %s, %s, v13" % (v(16 + 8 * half + 2 * j + 1), v(16 + 8 * half + 2 * j + 1)))
    for r in range(8):
        k("v_cvt_pk_bf16_f32 %s, %s, %s" % (v(16 + r), v(16 + 2 * r), v(17 + 2 * r)))
    k("buffer_store_dwordx4 v[16:19], v10, %s, %s offen" % (s(S_OD, 4), s(S_BX)))
    k("buffer_store_dwordx4 v[20:23], v10, %s, %s offen offset:32" % (s(S_OD, 4), s(S_BX)))


WS_BASE = 24 << 20


def ids(k, s_id):
    k("s_bfe_u32 %s, %s, 0x20003" % (s(S_RL), s_id))
    k("s_and_b32 %s, %s, 7" % (s(S_RB), s_id))
    k("s_lshl_b32 %s, %s, 2" % (s(S_RB), s(S_RB)))
    k("s_add_u32 %s, %s, %s" % (s(S_RB), s(S_RB), s(S_RL)))
    k("s_lshr_b32 %s, %s, 5" % (s(S_CB), s_id))


def add_resid(k):
    k("s_waitcnt vmcnt(0)")
    for half in range(2):
        for j in range(4):
            for src in (32, 40):
                r = src + 4 * half + j
                k("v_lshlrev_b32 v12, 16, %s" % v(r))
                k("v_and_b32 v13, 0xffff0000, %s" % v(r))
                k("v_add_f32 %s, %s, v12" % (v(16 + 8 * half + 2 * j), v(16 + 8 * half + 2 * j)))
                k("v_add_f32 %s, %s, v13" % (v(16 + 8 * half + 2 * j + 1), v(16 + 8 * half + 2 * j + 1)))


def gen_ffn2_role(k, pre, s_ws_size):
    k("v_lshrrev_b32 v1, 6, v0")
    k("v_and_b32 v0, 63, v0")
    k("v_readfirstlane_b32 %s, v1" % s(S_W))
    for r, off in ((S_WS, KA_WS), (S_W2, KA_W2), (S_X, KA_X), (S_B2, KA_B2)):
        k("s_load_dwordx2 %s, s[0:1], %d" % (s(r, 2), off))
    k("s_sub_u32 s3, s2, 256")
    k("s_cmp_ge_u32 %s, 4" % s(S_W))
    k("s_cbranch_scc1 %s_exit" % pre)
    ids(k, "s3")
    k("s_mul_i32 %s, %s, %d" % (s(S_LB), s(S_W), RING))
    seg_params(k, NA, 0, S_XO0, S_WO, S_WRAP)
    k("s_mov_b32 %s, %d" % (s(S_N), NA))
    setup(k)
    k("s_waitcnt lgkmcnt(0)")
    k.srd(S_HD, S_WS, s_ws_size)
    k.srd(S_WD, S_W2, 1792 * 1024)
    k.srd(S_XD, S_X, 2048 * 1024)
    k.srd(S_BD, S_B2, 1024)
    prof_mark(k, 2)
    stream(k, pre, NA, False, prio=(3 if "gp3" in OPT else (1 if "gp1" in OPT else 0)))
    prof_mark(k, 3)
    resid_loads(k)
    reduce_and_store(k, pre)
    add_resid(k)
    k("s_lshl_b32 %s, s3, 14" % s(S_T))
    k("s_lshl_b32 %s, %s, 12" % (s(S_T2), s(S_W)))
    k("s_add_u32 %s, %s, %s" % (s(S_T), s(S_T), s(S_T2)))
    k("s_add_u32 %s, %s, 0x%x" % (s(S_T), s(S_T), WS_BASE))
    for g in range(4):
        k("buffer_store_dwordx4 %s, v3, %s, %s offen offset:%d" % (v(16 + 4 * g, 4), s(S_HD, 4), s(S_T), 1024 * g))
    if "nopf" not in OPT:
        k("s_load_dwordx2 %s, s[0:1], %d" % (s(S_WOP, 2), KA_WO))
        k("s_waitcnt lgkmcnt(0)")
        k.srd(S_WD, S_WOP, 512 * 1024)
        k("s_lshl_b32 %s, %s, 17" % (s(S_T), s(S_W)))
        k("s_lshl_b32 %s, %s, 7" % (s(S_T2), s(S_CB)))
        k("s_add_u32 %s, %s, %s" % (s(S_T), s(S_T), s(S_T2)))
        for i in range(16):
            k("buffer_load_dwordx4 %s, v4, %s, %s offen" % (v(64 + 4 * i, 4), s(S_WD, 4), s(S_T)))
            k("s_add_u32 %s, %s, 8192" % (s(S_T), s(S_T)))
    k("s_waitcnt vmcnt(0)")
    prof_mark(k, 5)
    prof_rt(k, 6)
    prof_store(k, S_WS, S_W, 24)
    k.label(pre + "_exit")
    k("s_endpgm")


S_DBG = 60


def wait_flags(k, lab, s_off, n):
    k("s_cmp_eq_u32 %s, 0" % s(S_W))
    k("s_cbranch_scc0 %s_go" % lab)
    k("v_min_u32 v8, %d, v0" % (n - 1))
    k("v_lshl_add_u32 v8, v8, 2, %s" % s(s_off))
    k("s_mov_b32 %s, 0" % s(S_TRIP))
    k.label(lab + "_poll")
    k("global_load_dword v9, v8, %s sc1" % s(S_WS, 2))
    k("s_add_u32 %s, %s, 1" % (s(S_TRIP), s(S_TRIP)))
    k("s_waitcnt vmcnt(0)")
    k("v_cmp_eq_u32 vcc, 0, v9")
    k("s_nop 1")
    k("s_cmp_eq_u64 vcc, 0")
    k("s_cbranch_scc1 %s_go" % lab)
    k("s_cmp_eq_u64 vcc, exec")
    k("s_cbranch_scc0 %s_near" % lab)
    k("s_sleep %d" % (24 if "sl24" in OPT else 12))
    k.label(lab + "_near")
    k("s_sleep %d" % (8 if "sn8" in OPT else 3))
    k("s_cmp_lt_u32 %s, 0x40000" % s(S_TRIP))
    k("s_cbranch_scc1 %s_poll" % lab)
    k.label(lab + "_go")
    k("s_barrier")


def gen_g_role(k, pre):
    k("v_lshrrev_b32 v1, 6, v0")
    k("v_and_b32 v0, 63, v0")
    k("v_readfirstlane_b32 %s, v1" % s(S_W))
    for r, off in ((S_WS, KA_WS), (S_W2, KA_W2), (S_WOP, KA_WO), (S_X, KA_X), (S_B2, KA_B2), (S_OUT, KA_OUT), (S_DBG, KA_DBG)):
        k("s_load_dwordx2 %s, s[0:1], %d" % (s(r, 2), off))
    k("s_sub_u32 s3, s2, 256")
    k("s_cmp_ge_u32 %s, 4" % s(S_W))
    k("s_cbranch_scc1 %s_exit" % pre)
    ids(k, "s3")
    k("s_mul_i32 %s, %s, %d" % (s(S_LB), s(S_W), RING))
    seg_params(k, NA, 0, S_XO0, S_WO, S_WRAP)
    seg_params(k, NB, 112, S_BX, S_BW, S_BWRAP)
    k("s_mov_b32 %s, %d" % (s(S_N), NA))
    setup(k)
    k("s_waitcnt lgkmcnt(0)")
    k.srd(S_HD, S_WS, WS_END)
    k.srd(S_WD, S_W2, 1792 * 1024)
    k.srd(S_XD, S_X, 2048 * 1024)
    k.srd(S_OD, S_OUT, 2048 * 1024)
    k.srd(S_BD, S_B2, 1024)
    prof_mark(k, 2)
    stream(k, pre + "a", NA, False)
    prof_mark(k, 3)
    k("s_mov_b32 %s, %s" % (s(S_XO0), s(S_BX)))
    k("s_mov_b32 %s, %s" % (s(S_WO), s(S_BW)))
    k("s_mov_b32 %s, %s" % (s(S_WRAP), s(S_BWRAP)))
    k("s_mov_b32 %s, %d" % (s(S_N), NB))
    k.srd(S_WD, S_WOP, 512 * 1024)
    k("s_lshr_b32 %s, %s, 2" % (s(S_LEFT), s(S_RB)))
    k("s_lshl_b32 %s, %s, 7" % (s(S_LEFT), s(S_LEFT)))
    k("s_add_u32 %s, %s, 0x%x" % (s(S_LEFT), s(S_LEFT), WS_FLAG + FLAG_O))
    wait_flags(k, pre + "_w", S_LEFT, 32)
    prof_mark(k, 4)
    k("s_setprio 3")
    XSC[0] = " sc1"
    stream(k, pre + "b", NB, False)
    XSC[0] = ""
    resid_loads(k)
    reduce_and_store(k, pre)
    finish_tile(k)
    k("s_waitcnt vmcnt(0)")
    prof_mark(k, 5)
    prof_rt(k, 6)
    prof_store(k, S_WS, S_W, 24)
    k.label(pre + "_exit")
    k("s_endpgm")


def gen_wo(k, name, pre):
    k.kernel_begin(name)
    k("s_cmp_ge_u32 s2, 256")
    k("s_cbranch_scc1 %s_exit" % pre)
    prof_start(k)
    for r, off in ((S_WS, KA_WS), (S_WOP, KA_WO), (S_OUT, KA_OUT)):
        k("s_load_dwordx2 %s, s[0:1], %d" % (s(r, 2), off))
    ids(k, "s2")
    k("v_lshrrev_b32 v1, 6, v0")
    k("v_and_b32 v0, 63, v0")
    k("v_readfirstlane_b32 %s, v1" % s(S_W))
    k("s_nop 0")
    k("s_mul_i32 %s, %s, %d" % (s(S_LB), s(S_W), RING))
    seg_params(k, NB, 112, S_XO0, S_WO, S_WRAP)
    k("s_mov_b32 %s, %d" % (s(S_N), NB))
    setup(k)
    k("s_waitcnt lgkmcnt(0)")
    k.srd(S_HD, S_WS, WS_BASE + (4 << 20))
    k.srd(S_WD, S_WOP, 512 * 1024)
    k.srd(S_OD, S_OUT, 2048 * 1024)
    k("s_lshl_b32 %s, s2, 14" % s(S_T))
    k("s_lshl_b32 %s, %s, 12" % (s(S_T2), s(S_W)))
    k("s_add_u32 %s, %s, %s" % (s(S_T), s(S_T), s(S_T2)))
    k("s_add_u32 %s, %s, 0x%x" % (s(S_T), s(S_T), WS_BASE))
    for q in range(4):
        k("s_cmp_lg_u32 %s, %d" % (s(S_W), q))
        k("s_cbranch_scc1 %s_nb%d" % (pre, q))
        for g in range(4):
            k("buffer_load_dwordx4 %s, v3, %s, %s offen offset:%d" % (v(ACC + 16 * q + 4 * g, 4), s(S_HD, 4), s(S_T), 1024 * g))
        k.label("%s_nb%d" % (pre, q))
    prof_mark(k, 2)
    stream(k, pre, NB, False)
    prof_mark(k, 3)
    reduce_and_store(k, pre)
    k("s_lshr_b32 %s, %s, 1" % (s(S_T), s(S_W)))
    k("s_lshl_b32 %s, %s, 1" % (s(S_T2), s(S_RB)))
    k("s_add_u32 %s, %s, %s" % (s(S_T), s(S_T), s(S_T2)))
    k("s_lshl_b32 %s, %s, 15" % (s(S_T), s(S_T)))
    k("s_and_b32 %s, %s, 1" % (s(S_T2), s(S_W)))
    k("s_lshl_b32 %s, %s, 6" % (s(S_T2), s(S_T2)))
    k("s_add_u32 %s, %s, %s" % (s(S_T), s(S_T), s(S_T2)))
    k("s_lshl_b32 %s, %s, 7" % (s(S_T2), s(S_CB)))
    k("s_add_u32 %s, %s, %s" % (s(S_T), s(S_T), s(S_T2)))
    k("v_lshlrev_b32 v10, 10, v1")
    k("v_lshl_add_u32 v10, v2, 4, v10")
    for r in range(8):
        k("v_cvt_pk_bf16_f32 %s, %s, %s" % (v(16 + r), v(16 + 2 * r), v(17 + 2 * r)))
    k("buffer_store_dwordx4 v[16:19], v10, %s, %s offen" % (s(S_OD, 4), s(S_T)))
    k("buffer_store_dwordx4 v[20:23], v10, %s, %s offen offset:32" % (s(S_OD, 4), s(S_T)))
    k("s_waitcnt vmcnt(0)")
    prof_mark(k, 5)
    prof_rt(k, 6)
    prof_store(k, S_WS, S_W, 24)
    k.label(pre + "_exit")
    k.kernel_end(name, 128, 128)
    return 256, 65536


def gen_final(k, name, pre):
    k.kernel_begin(name)
    k("s_cmp_ge_u32 s2, 256")
    k("s_cbranch_scc1 %s_exit" % pre)
    prof_start(k)
    for r, off in ((S_WS, KA_WS), (S_W2, KA_W2), (S_WOP, KA_WO), (S_X, KA_X), (S_B2, KA_B2), (S_OUT, KA_OUT)):
        k("s_load_dwordx2 %s, s[0:1], %d" % (s(r, 2), off))
    k("s_bfe_u32 %s, s2, 0x20003" % s(S_RL))
    k("s_and_b32 %s, s2, 7" % s(S_RB))
    k("s_lshl_b32 %s, %s, 2" % (s(S_RB), s(S_RB)))
    k("s_add_u32 %s, %s, %s" % (s(S_RB), s(S_RB), s(S_RL)))
    k("s_lshr_b32 %s, s2, 5" % s(S_CB))
    k("v_lshrrev_b32 v1, 6, v0")
    k("v_and_b32 v0, 63, v0")
    k("v_readfirstlane_b32 %s, v1" % s(S_W))
    k("s_nop 0")
    k("s_mul_i32 %s, %s, %d" % (s(S_LB), s(S_W), RING))
    seg_params(k, NA, 0, S_XO0, S_WO, S_WRAP)
    seg_params(k, NB, 112, S_BX, S_BW, S_BWRAP)
    k("s_mov_b32 %s, %d" % (s(S_N), NA))
    k("s_mov_b32 %s, %d" % (s(S_LEFT), NA))
    setup(k)
    k("s_waitcnt lgkmcnt(0)")
    k.srd(S_HD, S_WS, WS_END)
    k.srd(S_WD, S_W2, 1792 * 1024)
    k.srd(S_XD, S_X, 2048 * 1024)
    k.srd(S_OD, S_OUT, 2048 * 1024)
    k.srd(S_BD, S_B2, 1024)
    prof_mark(k, 2)
    stream(k, pre, NA + NB, True)
    prof_mark(k, 3)
    resid_loads(k)
    reduce_and_store(k, pre)
    finish_tile(k)
    k("s_waitcnt vmcnt(0)")
    prof_mark(k, 5)
    prof_rt(k, 6)
    prof_store(k, S_WS, S_W, 24)
    k.label(pre + "_exit")
    k.kernel_end(name, 128, 128)
    return 256, 65536
```

```python
import common
from common import *

OPT = set()
XBYTES = 65536
L_PART = XBYTES
L_BI = L_PART + 2048
SLOT0 = XBYTES + 3072
SLOT = 16384
R = 5
SLOTE = SLOT0 + R * SLOT
LDS_BYTES = SLOTE
WS_XN = 20 << 20

S_X, S_WQ, S_WS, S_B1, S_W1 = 4, 6, 8, 10, 40
S_XD, S_WD, S_OD = 12, 16, 20
S_W, S_RB, S_CT, S_T, S_T2, S_C, S_SLOT, S_WO, S_LD = 24, 25, 26, 27, 28, 29, 30, 32, 33
S_RSLOT, S_T3, S_ROT, S_CK, S_KC, S_U, S_NCH, S_WEND, S_LD3, S_LD4 = 35, 36, 37, 38, 39, 42, 43, 44, 45, 46

VA0, VXA, NX, NS, NQ, NT = 4, 5, 16, 48, 50, 52
VWQ, VWF = 6, 7
VW2 = 11
VX = 19
XF = [20, 24]
WF = [28, 44]
ACC = 60
NV = 128
VQO, VFO = 6, 9


def entry(k, pre):
    k("s_cmp_ge_u32 s2, 256")
    k("s_cbranch_scc1 %s_exit" % pre)
    prof_start(k)
    k("s_load_dwordx2 %s, s[0:1], %d" % (s(S_X, 2), KA_X))
    k("s_load_dwordx2 %s, s[0:1], %d" % (s(S_WQ, 2), KA_WQKV))
    k("s_load_dwordx2 %s, s[0:1], %d" % (s(S_W1, 2), KA_W1))
    k("s_load_dwordx2 %s, s[0:1], %d" % (s(S_WS, 2), KA_WS))
    k("s_load_dwordx2 %s, s[0:1], %d" % (s(S_B1, 2), KA_B1))
    k("v_lshrrev_b32 v1, 6, v0")
    k("v_and_b32 v0, 63, v0")
    k("v_readfirstlane_b32 %s, v1" % s(S_W))
    k("s_lshr_b32 %s, s2, 3" % s(S_T))
    k("s_and_b32 %s, %s, 7" % (s(S_ROT), s(S_T)))
    k("s_and_b32 %s, s2, 3" % s(S_RB))
    k("s_lshl_b32 %s, %s, 3" % (s(S_RB), s(S_RB)))
    k("s_add_u32 %s, %s, %s" % (s(S_RB), s(S_RB), s(S_ROT)))
    k("s_lshr_b32 %s, %s, 3" % (s(S_T), s(S_T)))
    k("s_bfe_u32 %s, s2, 0x10002" % s(S_CT))
    k("s_lshl_b32 %s, %s, 2" % (s(S_CT), s(S_CT)))
    k("s_add_u32 %s, %s, %s" % (s(S_CT), s(S_CT), s(S_T)))
    k("s_lshl_b32 %s, %s, 1" % (s(S_ROT), s(S_ROT)))
    k("s_lshl_b32 %s, %s, 1" % (s(S_T), s(S_T)))
    k("s_add_u32 %s, %s, %s" % (s(S_T), s(S_T), s(S_W)))
    k("s_and_b32 %s, %s, 7" % (s(S_T), s(S_T)))
    k("s_lshl_b32 %s, %s, 3" % (s(S_T3), s(S_T)))
    k("v_lshlrev_b32 v3, 4, v0")
    k("s_lshl_b32 %s, %s, 6" % (s(S_T), s(S_RB)))
    k("s_add_u32 %s, %s, %s" % (s(S_T), s(S_T), s(S_T3)))
    k("s_lshl_b32 %s, %s, 10" % (s(S_T2), s(S_T)))
    k("s_lshl_b32 m0, %s, 10" % s(S_T3))
    k("s_and_b32 %s, %s, 8" % (s(S_T3), s(S_T3)))
    k("s_waitcnt lgkmcnt(0)")
    k.srd(S_XD, S_X, 2048 * 1024)
    for i in range(8):
        k("s_add_u32 %s, %s, %d" % (s(S_T), s(S_T3), i))
        k("s_lshl_b32 %s, %s, 4" % (s(S_T), s(S_T)))
        k("v_xor_b32 v4, %s, v3" % s(S_T))
        k("buffer_load_dwordx4 v4, %s, %s offen lds" % (s(S_XD, 4), s(S_T2)))
        if i < 7:
            k("s_add_u32 m0, m0, 1024")
            k("s_add_u32 %s, %s, 1024" % (s(S_T2), s(S_T2)))
    if "p2" not in OPT and "p3" not in OPT:
        prof_mark(k, 2)
    k("v_and_b32 v1, 31, v0")
    k("v_lshrrev_b32 v2, 5, v0")
    k.srd(S_OD, S_WS, WS_END if "xn" not in OPT else WS_XN + (2 << 20))
    k("s_cmp_lt_u32 s2, 32")
    k("s_cbranch_scc0 %s_nz" % pre)
    k("s_cmp_eq_u32 %s, 0" % s(S_W))
    k("s_cbranch_scc0 %s_nz" % pre)
    k("s_lshl_b32 %s, s2, 8" % s(S_T))
    k("s_add_u32 %s, %s, 0x%x" % (s(S_T), s(S_T), WS_FLAG))
    k("v_lshl_add_u32 v4, v0, 2, %s" % s(S_T))
    k("v_mov_b32 v5, 0")
    k("global_store_dword v4, v5, %s" % s(S_WS, 2))
    k.label(pre + "_nz")
    k("s_cmp_ge_u32 %s, 4" % s(S_W))
    k("s_cbranch_scc1 %s_loader" % pre)


def xaddr_base(k, s_tile):
    k("s_lshl_b32 %s, %s, 15" % (s(S_T), s(s_tile)))
    k("v_and_b32 v3, 15, v1")
    k("v_xor_b32 v3, v3, v2")
    k("v_lshlrev_b32 v3, 4, v3")
    k("v_lshl_add_u32 v3, v1, 10, v3")
    k("v_add_u32 %s, %s, v3" % (v(VA0), s(S_T)))


def normalise(k, pre, dma, younger=0):
    k("s_and_b32 %s, %s, 1" % (s(S_T2), s(S_W)))
    xaddr_base(k, S_T2)
    k("s_lshr_b32 %s, %s, 1" % (s(S_T3), s(S_W)))
    k("s_lshl_b32 %s, %s, 8" % (s(S_U), s(S_T3)))
    k("v_xor_b32 %s, %s, %s" % (v(VXA), s(S_U), v(VA0)))
    k("s_waitcnt vmcnt(%d)" % younger)
    k("s_barrier")
    if "p2" not in OPT:
        prof_mark(k, 3)
    for i in range(8):
        k("v_xor_b32 %s, %d, %s" % (v(6 + i) if dma is None else v(NT + 8 + i), 32 * i, v(VXA)))
    AD = 6 if dma is None else NT + 8
    for i in range(8):
        k("ds_read_b128 %s, %s" % (v(NX + 4 * i, 4), v(AD + i)))
    for r in range(4):
        k("v_mov_b32 %s, 0" % v(NS + r))
    k("v_mov_b32 %s, 0x3f803f80" % v(NT))
    for i in range(8):
        k("s_waitcnt lgkmcnt(%d)" % (7 - i))
        for r in range(4):
            k("v_dot2c_f32_bf16 %s, %s, %s" % (v(NS + (r & 1)), v(NT), v(NX + 4 * i + r)))
            k("v_dot2c_f32_bf16 %s, %s, %s" % (v(NQ + (r & 1)), v(NX + 4 * i + r), v(NX + 4 * i + r)))
    k("s_nop 2")
    for r in (NS, NQ):
        k("v_add_f32 %s, %s, %s" % (v(r), v(r), v(r + 1)))
        k("v_mov_b32 %s, %s" % (v(r + 1), v(r)))
        k("s_nop 1")
        k("v_permlane32_swap_b32 %s, %s" % (v(r + 1), v(r)))
        k("s_nop 1")
        k("v_add_f32 %s, %s, %s" % (v(r), v(r), v(r + 1)))
    if "p3" in OPT:
        prof_mark(k, 2)
    for grp in (dma or []):
        for ins in grp:
            k(ins)
    k("v_mov_b32 %s, %s" % (v(NS + 1), v(NQ)))
    k("s_lshl_b32 %s, %s, 8" % (s(S_T), s(S_W)))
    k("s_add_u32 %s, %s, %d" % (s(S_T), s(S_T), L_PART))
    k("v_lshl_add_u32 v3, v1, 3, %s" % s(S_T))
    k("ds_write_b64 v3, %s" % v(NS, 2))
    k("s_waitcnt lgkmcnt(0)")
    k("s_barrier")
    if "p3" in OPT:
        prof_mark(k, 4)
    k("s_and_b32 %s, %s, 1" % (s(S_T), s(S_W)))
    k("s_lshl_b32 %s, %s, 8" % (s(S_T), s(S_T)))
    k("s_add_u32 %s, %s, %d" % (s(S_T), s(S_T), L_PART))
    k("v_lshl_add_u32 v3, v1, 3, %s" % s(S_T))
    PT = NT + 16
    for q in range(4):
        k("ds_read_b64 %s, v3 offset:%d" % (v(PT + 2 * q, 2), q * 512))
    k("s_waitcnt lgkmcnt(0)")
    k("v_add_f32 %s, %s, %s" % (v(PT), v(PT), v(PT + 2)))
    k("v_add_f32 %s, %s, %s" % (v(PT + 1), v(PT + 1), v(PT + 3)))
    k("v_add_f32 %s, %s, %s" % (v(PT + 4), v(PT + 4), v(PT + 6)))
    k("v_add_f32 %s, %s, %s" % (v(PT + 5), v(PT + 5), v(PT + 7)))
    k("v_add_f32 %s, %s, %s" % (v(NS), v(PT), v(PT + 4)))
    k("v_add_f32 %s, %s, %s" % (v(NQ), v(PT + 1), v(PT + 5)))
    k("v_mul_f32 %s, 0x%x, %s" % (v(NS), f2u(1.0 / 512), v(NS)))
    k("v_mul_f32 %s, 0x%x, %s" % (v(NQ), f2u(1.0 / 512), v(NQ)))
    k("v_fma_f32 %s, -%s, %s, %s" % (v(NQ), v(NS), v(NS), v(NQ)))
    k("v_max_f32 %s, 0, %s" % (v(NQ), v(NQ)))
    k("v_add_f32 %s, 0x%x, %s" % (v(NQ), f2u(1e-5), v(NQ)))
    k("v_rsq_f32 %s, %s" % (v(NQ), v(NQ)))
    MK, TP = NT + 24, NT + 26
    k("v_mov_b32 %s, 0xffff0000" % v(MK))
    k("v_mul_f32 %s, %s, %s" % (v(NS), v(NS), v(NQ)))
    k("v_mov_b32 %s, %s" % (v(NQ + 1), v(NQ)))
    k("v_sub_f32 %s, 0, %s" % (v(NS), v(NS)))
    k("v_mov_b32 %s, %s" % (v(NS + 1), v(NS)))
    for i in range(8):
        for r in range(4):
            x = NX + 4 * i + r
            t = TP + 2 * (r & 1)
            k("v_lshlrev_b32 %s, 16, %s" % (v(t), v(x)))
            k("v_and_b32 %s, %s, %s" % (v(t + 1), v(MK), v(x)))
            if r > 0:
                tp = TP + 2 * ((r - 1) & 1)
                k("v_cvt_pk_bf16_f32 %s, %s, %s" % (v(x - 1), v(tp), v(tp + 1)))
            k("v_pk_fma_f32 %s, %s, %s, %s" % (v(t, 2), v(t, 2), v(NQ, 2), v(NS, 2)))
        tp = TP + 2
        k("v_cvt_pk_bf16_f32 %s, %s, %s" % (v(NX + 4 * i + 3), v(tp), v(tp + 1)))
        k("ds_write_b128 %s, %s" % (v(AD + i), v(NX + 4 * i, 4)))
    if "p3" in OPT:
        prof_mark(k, 5)
    if "xn" in OPT:
        k("s_lshr_b32 %s, %s, 1" % (s(S_T), s(S_CT)))
        k("s_lshr_b32 %s, %s, 1" % (s(S_T2), s(S_W)))
        k("s_cmp_eq_u32 %s, %s" % (s(S_T), s(S_T2)))
        k("s_cbranch_scc0 %s_noxn%s" % (pre, "L" if dma else "C"))
        k("s_and_b32 %s, %s, 1" % (s(S_T), s(S_W)))
        k("s_lshl_b32 %s, %s, 1" % (s(S_T2), s(S_RB)))
        k("s_add_u32 %s, %s, %s" % (s(S_T), s(S_T), s(S_T2)))
        k("s_lshl_b32 %s, %s, 15" % (s(S_T), s(S_T)))
        k("s_lshl_b32 %s, %s, 12" % (s(S_T2), s(S_CT)))
        k("s_add_u32 %s, %s, %s" % (s(S_T), s(S_T), s(S_T2)))
        k("s_add_u32 %s, %s, 0x%x" % (s(S_T), s(S_T), WS_XN))
        k("v_lshlrev_b32 v3, 4, v0")
        k("s_bitcmp1_b32 %s, 0" % s(S_CT))
        k("s_cbranch_scc1 %s_xnhi%s" % (pre, "L" if dma else "C"))
        for i in range(4):
            k("buffer_store_dwordx4 %s, v3, %s, %s offen offset:%d" % (v(NX + 4 * i, 4), s(S_OD, 4), s(S_T), 1024 * i))
        k("s_branch %s_noxn%s" % (pre, "L" if dma else "C"))
        k.label("%s_xnhi%s" % (pre, "L" if dma else "C"))
        for i in range(4):
            k("buffer_store_dwordx4 %s, v3, %s, %s offen offset:%d" % (v(NX + 16 + 4 * i, 4), s(S_OD, 4), s(S_T), 1024 * i))
        k.label("%s_noxn%s" % (pre, "L" if dma else "C"))
    k("s_waitcnt lgkmcnt(0)")


def next_slot(k, r):
    k("s_add_u32 %s, %s, %d" % (s(r), s(r), SLOT))
    k("s_cmp_ge_u32 %s, %d" % (s(r), SLOTE))
    k("s_cselect_b32 %s, %d, %s" % (s(r), SLOT0, s(r)))


def wfrag_addr(k):
    t = ACC
    r, b, h, g, x, y = t, t + 1, t + 2, t + 3, t + 4, t + 5
    k("s_lshr_b32 %s, %s, 1" % (s(S_T), s(S_W)))
    k("v_bfe_u32 %s, v0, 2, 2" % v(r))
    k("v_and_b32 %s, 3, v0" % v(b))
    k("v_bfe_u32 %s, v0, 4, 1" % v(h))
    k("v_lshl_add_u32 %s, %s, 2, %s" % (v(b), v(h), v(b)))
    k("v_and_b32 %s, 1, %s" % (v(h), v(b)))
    k("v_lshrrev_b32 %s, 1, %s" % (v(g), v(b)))
    k("v_lshl_add_u32 %s, v2, 3, %s" % (v(x), v(r)))
    k("v_lshl_add_u32 %s, %s, 2, %s" % (v(b), v(h), v(g)))
    k("v_mul_u32_u24 %s, 384, %s" % (v(y), v(x)))
    k("v_lshl_add_u32 %s, %s, 3, %s" % (v(y), v(b), v(y)))
    k("v_lshrrev_b32 %s, 1, %s" % (v(b), v(r)))
    k("v_xor_b32 %s, %s, %s" % (v(b), s(S_T), v(b)))
    k("v_lshl_add_u32 %s, %s, 6, %s" % (v(VWQ), v(b), v(y)))
    k("v_lshrrev_b32 %s, 1, %s" % (v(b), v(g)))
    k("v_and_b32 %s, 1, %s" % (v(g), v(g)))
    k("v_lshl_add_u32 %s, %s, 1, %s" % (v(g), v(h), v(g)))
    k("v_lshl_add_u32 %s, %s, 2, %s" % (v(b), v(b), v(g)))
    k("v_lshlrev_b32 %s, 9, %s" % (v(y), v(x)))
    k("v_lshl_add_u32 %s, %s, 3, %s" % (v(y), v(b), v(y)))
    k("s_lshl_b32 %s, %s, 8" % (s(S_T), s(S_T)))
    k("v_add_u32 %s, %s, %s" % (v(y), s(S_T), v(y)))
    for ft in range(4):
        k("v_xor_b32 %s, %d, %s" % (v(b), ft, v(r)))
        k("v_lshl_add_u32 %s, %s, 6, %s" % (v(VWF + ft), v(b), v(y)))


def compute_phase(k, pre, F):
    q = F == 3
    RB = 384 if q else 512
    NA = 1 if q else 4
    base = VWQ if q else VWF
    p = pre + ("Q" if q else "F")

    def wa(par, ft):
        return VW2 + 4 * par + (0 if q else ft)

    def slot_ops(par):
        return ["v_add_u32 %s, %s, %s" % (v(VW2 + 4 * par + j), s(S_SLOT), v(base + j)) for j in range(NA)]

    def x_ops(st):
        return ["v_xor_b32 %s, %s, %s" % (v(VX), s(S_U), v(VA0))] if st == 0 else ["v_xor_b32 %s, 32, %s" % (v(VX), v(VX))]

    def u_ops():
        return ["s_lshl_b32 %s, %s, 6" % (s(S_U), s(S_KC))]

    def kc_next():
        return ["s_add_u32 %s, %s, 1" % (s(S_KC), s(S_KC)), "s_and_b32 %s, %s, 15" % (s(S_KC), s(S_KC))]

    def rd_x(buf):
        return ["ds_read_b128 %s, %s" % (v(XF[buf], 4), v(VX))]

    def rd_w(par, st, buf, ft):
        off = st * 16 * RB + (ft * 128 if q else 0)
        return ["ds_read_b64_tr_b16 %s, %s offset:%d" % (v(WF[buf] + 4 * ft + 2 * u, 2), v(wa(par, ft)), off + u * 4 * RB) for u in range(2)]

    def mfma(buf, ft):
        d = v(ACC + 16 * ft, 16)
        if q and ft == 2:
            k("v_mfma_f32_32x32x16_bf16 %s, %s, %s, %s" % (d, v(XF[buf], 4), v(WF[buf] + 4 * ft, 4), d))
        else:
            k("v_mfma_f32_32x32x16_bf16 %s, %s, %s, %s" % (d, v(WF[buf] + 4 * ft, 4), v(XF[buf], 4), d))

    k("s_mov_b32 %s, %s" % (s(S_KC), s(S_ROT)))
    for ins in u_ops() + slot_ops(0) + x_ops(0) + rd_x(0) + sum((rd_w(0, 0, 0, ft) for ft in range(F)), []) + x_ops(1):
        k(ins)
    k("s_mov_b32 %s, 0" % s(S_C))
    k(".p2align 3")
    k.label(p + "_loop")
    VXN = VX + 0
    for par in range(2):
        for st in range(2):
            b, nb = st, 1 - st
            npar = par if st == 0 else 1 - par
            for ft in range(F):
                newer = 2 * (F - 1 - ft) + (0 if ft == 0 else 1 + 2 * ft)
                k("s_waitcnt lgkmcnt(%d)" % newer)
                mfma(b, ft)
                if ft == 0:
                    if st == 1:
                        k("s_barrier")
                    for ins in rd_x(nb):
                        k(ins)
                for ins in rd_w(npar, 1 - st, nb, ft):
                    k(ins)
                if ft == 0:
                    if st == 0:
                        for ins in kc_next() + u_ops() + x_ops(0):
                            k(ins)
                    else:
                        for ins in x_ops(1):
                            k(ins)
                if st == 0 and ft == 1:
                    next_slot(k, S_SLOT)
                if st == 0 and ft == F - 1:
                    for ins in slot_ops(1 - par):
                        k(ins)
    k("s_add_u32 %s, %s, 1" % (s(S_C), s(S_C)))
    k("s_cmp_lt_u32 %s, 8" % s(S_C))
    k("s_cbranch_scc1 %s_loop" % p)
    k("s_waitcnt lgkmcnt(0)")


def epilogue_q(k):
    cq = 0.25 * LOG2E
    a1, a2, a3, t1, t2 = 12, 13, 14, 15, 16
    k("s_lshl_b32 %s, %s, 1" % (s(S_T2), s(S_RB)))
    k("s_and_b32 %s, %s, 1" % (s(S_T), s(S_W)))
    k("s_add_u32 %s, %s, %s" % (s(S_T2), s(S_T2), s(S_T)))
    k("s_lshl_b32 %s, %s, 2" % (s(S_T3), s(S_CT)))
    k("s_and_b32 %s, %s, 2" % (s(S_T), s(S_W)))
    k("s_add_u32 %s, %s, %s" % (s(S_T3), s(S_T3), s(S_T)))
    k("v_add_u32 %s, %s, v2" % (v(t1), s(S_T3)))
    k("v_lshlrev_b32 %s, 4, v1" % v(t2))
    k("v_lshl_add_u32 %s, %s, 16, %s" % (v(a1), v(t1), v(t2)))
    k("s_lshl_b32 %s, %s, 10" % (s(S_T), s(S_T2)))
    k("v_add_u32 %s, %s, %s" % (v(a1), s(S_T), v(a1)))
    k("v_lshl_add_u32 %s, %s, 17, %s" % (v(a2), v(t1), v(t2)))
    k("s_lshl_b32 %s, %s, 11" % (s(S_T), s(S_T2)))
    k("s_add_u32 %s, %s, 0x%x" % (s(S_T), s(S_T), WS_KV))
    k("v_add_u32 %s, %s, %s" % (v(a2), s(S_T), v(a2)))
    k("v_bfe_u32 %s, v1, 2, 1" % v(t1))
    k("v_lshrrev_b32 %s, 3, v1" % v(t2))
    k("v_and_b32 %s, 3, v1" % v(a3))
    k("v_and_b32 v17, 1, %s" % v(t2))
    k("v_lshrrev_b32 %s, 1, %s" % (v(t2), v(t2)))
    k("v_lshl_add_u32 %s, %s, 2, %s" % (v(a3), v(t2), v(a3)))
    k("v_lshl_add_u32 %s, v17, 3, %s" % (v(a3), v(a3)))
    k("v_lshlrev_b32 %s, 4, %s" % (v(a3), v(a3)))
    k("v_add_u32 %s, %s, %s" % (v(t1), s(S_T3), v(t1)))
    k("v_lshl_add_u32 %s, %s, 17, %s" % (v(a3), v(t1), v(a3)))
    k("v_lshl_add_u32 %s, v2, 8, %s" % (v(a3), v(a3)))
    k("s_add_u32 %s, %s, 1024" % (s(S_T), s(S_T)))
    k("v_add_u32 %s, %s, %s" % (v(a3), s(S_T), v(a3)))
    sc = " sc1" if "sc1" in OPT else ""
    for ft, dst in ((1, a2), (2, a3), (0, a1)):
        A = ACC + 16 * ft
        if ft == 0:
            for r in range(16):
                k("v_mul_f32 %s, 0x%x, %s" % (v(A + r), f2u(cq), v(A + r)))
        for r in range(8):
            k("v_cvt_pk_bf16_f32 %s, %s, %s" % (v(A + r), v(A + 2 * r), v(A + 2 * r + 1)))
        k("buffer_store_dwordx4 %s, %s, %s, 0 offen%s" % (v(A, 4), v(dst), s(S_OD, 4), sc))
        k("buffer_store_dwordx4 %s, %s, %s, 0 offen offset:512%s" % (v(A + 4, 4), v(dst), s(S_OD, 4), sc))


def epilogue_f(k):
    a1 = 12
    k("s_lshl_b32 %s, %s, 1" % (s(S_T2), s(S_RB)))
    k("s_and_b32 %s, %s, 1" % (s(S_T), s(S_W)))
    k("s_add_u32 %s, %s, %s" % (s(S_T2), s(S_T2), s(S_T)))
    k("s_mul_i32 %s, %s, %d" % (s(S_T), s(S_T2), WS_HO_ROW))
    k("s_lshl_b32 %s, %s, 14" % (s(S_T3), s(S_CT)))
    k("s_add_u32 %s, %s, %s" % (s(S_T), s(S_T), s(S_T3)))
    k("s_lshr_b32 %s, %s, 1" % (s(S_T3), s(S_W)))
    k("s_lshl_b32 %s, %s, 13" % (s(S_T3), s(S_T3)))
    k("s_add_u32 %s, %s, %s" % (s(S_T), s(S_T), s(S_T3)))
    k("s_add_u32 %s, %s, 0x%x" % (s(S_T), s(S_T), WS_HO))
    k("v_lshlrev_b32 %s, 4, v0" % v(a1))
    k("v_add_u32 %s, %s, %s" % (v(a1), s(S_T), v(a1)))
    B = WF[0]
    for ft in range(4):
        A = ACC + 16 * ft
        for r in range(16):
            k("v_max_f32 %s, 0, %s" % (v(B + r), v(A + r)))
        for r in range(16):
            k("v_mul_f32 %s, %s, %s" % (v(A + r), v(A + r), v(B + r)))
        for r in range(8):
            k("v_cvt_pk_bf16_f32 %s, %s, %s" % (v(A + r), v(A + 2 * r), v(A + 2 * r + 1)))
        k("buffer_store_dwordx4 %s, %s, %s, 0 offen offset:%d" % (v(A, 4), v(a1), s(S_OD, 4), 2048 * (ft & 1)))
        k("buffer_store_dwordx4 %s, %s, %s, 0 offen offset:%d" % (v(A + 4, 4), v(a1), s(S_OD, 4), 2048 * (ft & 1) + 1024))
        if ft == 1:
            k("v_add_u32 %s, 4096, %s" % (v(a1), v(a1)))


def compute(k, pre, ffn):
    normalise(k, pre, None)
    wfrag_addr(k)
    k("s_and_b32 %s, %s, 1" % (s(S_T2), s(S_W)))
    xaddr_base(k, S_T2)
    for j in range(48):
        k("v_mov_b32 %s, 0" % v(ACC + j))
    k("s_mov_b32 %s, %d" % (s(S_SLOT), SLOT0))
    k("s_setprio 2")
    k("s_barrier")
    if "p3" not in OPT:
        prof_mark(k, 4 if "p2" not in OPT else 2)
    compute_phase(k, pre, 3)
    if "p2" in OPT:
        prof_mark(k, 3)
    k("s_nop 7")
    epilogue_q(k)
    if ffn:
        k("s_cmp_eq_u32 %s, 7" % s(S_CT))
        k("s_cbranch_scc1 %s_cdone" % pre)
        k("s_lshr_b32 %s, %s, 1" % (s(S_T), s(S_W)))
        k("s_lshl_b32 %s, %s, 9" % (s(S_T), s(S_T)))
        k("s_add_u32 %s, %s, %d" % (s(S_T), s(S_T), L_BI))
        k("v_lshl_add_u32 v3, v2, 4, %s" % s(S_T))
        for ft in range(4):
            for g in range(4):
                k("ds_read_b128 %s, v3 offset:%d" % (v(ACC + 16 * ft + 4 * g, 4), ft * 128 + g * 32))
        k("s_waitcnt lgkmcnt(0)")
        if "p2" in OPT:
            prof_mark(k, 4)
        compute_phase(k, pre, 4)
        if "p2" in OPT:
            prof_mark(k, 5)
        k("s_nop 7")
        epilogue_f(k)
        k.label(pre + "_cdone")


class Groups:
    def __init__(self):
        self.groups = [[]]

    def __call__(self, txt):
        self.groups[-1].append(txt)
        if txt.startswith("buffer_load"):
            self.groups.append([])


def issue_chunk(k, q, c):
    n = 3 if q else 4
    wrow = 3072 if q else 3584
    k("s_add_u32 m0, %s, %d" % (s(S_LD3 if q else S_LD4), SLOT0 + (c % R) * SLOT))
    if not q:
        k("s_mov_b32 %s, %s" % (s(S_T2), s(S_WO)))
    else:
        k("s_nop 0")
    for i in range(n):
        k("buffer_load_dwordx4 %s, %s, %s offen lds" % (v(VQO + i) if q else v(VFO + (i & 1)), s(S_WD, 4), s(S_WO if q else S_T2)))
        if i < n - 1:
            k("s_add_u32 m0, m0, 1024")
            if q:
                k("s_nop 0")
            else:
                k("s_add_u32 %s, %s, %d" % (s(S_T2), s(S_T2), 2 * wrow))
    k("s_add_u32 %s, %s, %d" % (s(S_WO), s(S_WO), 32 * wrow))
    k("s_cmp_ge_u32 %s, %s" % (s(S_WO), s(S_WEND)))
    k("s_cselect_b32 %s, %d, 0" % (s(S_T), 512 * wrow))
    k("s_sub_u32 %s, %s, %s" % (s(S_WO), s(S_WO), s(S_T)))


def phase_base(k, q):
    wrow = 3072 if q else 3584
    k("s_mul_i32 %s, %s, %d" % (s(S_WO), s(S_LD), 8 * wrow))
    k("s_lshl_b32 %s, %s, %d" % (s(S_T), s(S_CT), 7 if q else 9))
    k("s_add_u32 %s, %s, %s" % (s(S_WO), s(S_WO), s(S_T)))
    k("s_add_u32 %s, %s, %d" % (s(S_WEND), s(S_WO), 512 * wrow))
    k("s_mul_i32 %s, %s, %d" % (s(S_T), s(S_ROT), 32 * wrow))
    k("s_add_u32 %s, %s, %s" % (s(S_WO), s(S_WO), s(S_T)))


def loader(k, pre, ffn):
    k("s_setprio 3")
    k("s_sub_u32 %s, %s, 4" % (s(S_LD), s(S_W)))
    k.srd(S_WD, S_WQ, 512 * 3072)
    k("s_mov_b32 %s, 0x%x" % (s(S_T), (2 ** 32 + 383) // 384))
    for j in range(3):
        k("v_lshlrev_b32 v12, 4, v0")
        k("v_add_u32 v12, %d, v12" % (1024 * j))
        k("v_mul_hi_u32 v13, v12, %s" % s(S_T))
        k("v_mul_u32_u24 v14, 384, v13")
        k("v_sub_u32 v14, v12, v14")
        k("v_lshrrev_b32 v15, 7, v14")
        k("v_and_b32 v14, 127, v14")
        k("v_bfe_u32 v12, v13, 1, 1")
        k("v_lshlrev_b32 v12, 6, v12")
        k("v_xor_b32 v14, v14, v12")
        k("v_mul_u32_u24 v13, 3072, v13")
        k("v_lshl_add_u32 v13, v15, 10, v13")
        k("v_add_u32 %s, v13, v14" % v(VQO + j))
    k("s_mul_i32 %s, %s, 3072" % (s(S_LD3), s(S_LD)))
    k("s_lshl_b32 %s, %s, 12" % (s(S_LD4), s(S_LD)))
    phase_base(k, True)
    issue_chunk(k, True, 0)
    issue_chunk(k, True, 1)
    for p_ in range(2):
        k("v_lshrrev_b32 v12, 5, v0")
        k("v_add_u32 v12, %d, v12" % (2 * p_))
        k("v_bfe_u32 v13, v0, 2, 3")
        k("v_xor_b32 v13, v13, v12")
        k("v_lshlrev_b32 v13, 6, v13")
        k("v_and_b32 v14, 3, v0")
        k("v_lshl_add_u32 v13, v14, 4, v13")
        k("v_lshrrev_b32 v12, 5, v0")
        k("v_mul_u32_u24 v12, 3584, v12")
        k("v_add_u32 %s, v12, v13" % v(VFO + p_))
    if ffn:
        k("v_lshrrev_b32 v12, 3, v1")
        k("v_bfe_u32 v13, v1, 2, 1")
        k("v_and_b32 v14, 3, v1")
        k("v_lshrrev_b32 v15, 1, v12")
        k("v_and_b32 v12, 1, v12")
        k("v_lshl_add_u32 v14, v12, 2, v14")
        k("v_lshl_add_u32 v14, v13, 3, v14")
        k("v_lshl_add_u32 v14, v15, 4, v14")
        k("v_lshl_add_u32 v14, v2, 5, v14")
        k("s_lshl_b32 %s, %s, 8" % (s(S_T), s(S_CT)))
        k("s_lshl_b32 %s, %s, 6" % (s(S_T2), s(S_LD)))
        k("s_add_u32 %s, %s, %s" % (s(S_T), s(S_T), s(S_T2)))
        k("v_add_u32 v14, %s, v14" % s(S_T))
        k("v_lshlrev_b32 v14, 1, v14")
        k("v_min_u32 v14, 3582, v14")
        k("global_load_ushort v11, v14, %s" % s(S_B1, 2))
    g = Groups()
    issue_chunk(g, True, 2)
    issue_chunk(g, True, 3)
    normalise(k, pre, g.groups, 6 + (1 if ffn else 0))
    k("s_waitcnt vmcnt(%d)" % (6 if ffn else 9))
    if ffn:
        k("v_lshlrev_b32 v11, 16, v11")
        k("s_lshl_b32 %s, %s, 8" % (s(S_T), s(S_LD)))
        k("s_add_u32 %s, %s, %d" % (s(S_T), s(S_T), L_BI))
        k("v_lshl_add_u32 v12, v0, 2, %s" % s(S_T))
        k("ds_write_b32 v12, v11")
        k("s_waitcnt lgkmcnt(0)")
    k("s_barrier")
    k("s_setprio 1")

    def n_of(c):
        return 3 if c < 16 else 4

    def schedule(first, last, total):
        for c in range(first, last + 1):
            younger = sum(n_of(j) for j in (c + 1, c + 2) if j < total)
            k("s_waitcnt vmcnt(%d)" % younger)
            k("s_barrier")
            if c + 3 < total:
                if c + 3 == 16:
                    k.srd(S_WD, S_W1, 512 * 3584)
                    phase_base(k, False)
                issue_chunk(k, c + 3 < 16, c + 3)

    if ffn:
        k("s_cmp_eq_u32 %s, 7" % s(S_CT))
        k("s_cbranch_scc1 %s_lq" % pre)
        schedule(1, 32, 32)
        k("s_branch %s_lend" % pre)
        k.label(pre + "_lq")
    schedule(1, 16, 16)
    k.label(pre + "_lend")


def finish(k):
    k("s_waitcnt vmcnt(0)")
    if "p2" not in OPT and "p3" not in OPT:
        prof_mark(k, 5)
    prof_rt(k, 6)
    prof_store(k, S_WS, S_W, 28)
    k("s_endpgm")


def gen(k, name, pre, ffn=True):
    k.kernel_begin(name)
    entry(k, pre)
    compute(k, pre, ffn)
    finish(k)
    k.label(pre + "_loader")
    loader(k, pre, ffn)
    finish(k)
    k.label(pre + "_exit")
    k.kernel_end(name, NV, NV)
    return 256, LDS_BYTES
```

```python
import sys
import common
from common import *
import attn, gemm1, final, g1, k1, g2, kb

def build(path, which=("qkv", "ffn1", "attn", "final")):
    k = Asm()
    body = Asm()
    launches = []
    if "qkv" in which:
        n, lds = g1.gen(body, "qkv_kernel", "L_qkv", "qkv")
        launches.append("; @launch kernel=qkv_kernel grid=(%d,1,1) block=(512,1,1) lds=%d" % (n, lds))
    if "k1" in which:
        n, lds = k1.gen(body, "k1_kernel", "L_k1")
        launches.append("; @launch kernel=k1_kernel grid=(%d,1,1) block=(512,1,1) lds=%d" % (n, lds))
    if "kb" in which:
        n, lds = kb.gen(body, "kb_kernel", "L_kb", True)
        launches.append("; @launch kernel=kb_kernel grid=(%d,1,1) block=(512,1,1) lds=%d" % (n, lds))
    if "ffn1" in which:
        n, lds = g1.gen(body, "ffn1_kernel", "L_ffn1", "ffn1")
        launches.append("; @launch kernel=ffn1_kernel grid=(%d,1,1) block=(512,1,1) lds=%d" % (n, lds))
    if "attn" in which:
        attn.gen_attn(body, "attn_kernel")
        launches.append("; @launch kernel=attn_kernel grid=(256,1,1) block=(512,1,1) lds=%d" % (3 * attn.SLOT))
    if "k2" in which:
        attn.gen_attn(body, "k2_kernel", True, lambda kk: g2.gen_ffn2_role(kk, "L_g2", g2.WS_BASE + (4 << 20)))
        launches.append("; @launch kernel=k2_kernel grid=(512,1,1) block=(512,1,1) lds=%d" % (3 * attn.SLOT))
    if "k2s" in which:
        attn.OPT.add("signal")
        attn.gen_attn(body, "k2_kernel", True, lambda kk: g2.gen_g_role(kk, "L_g2"))
        launches.append("; @launch kernel=k2_kernel grid=(512,1,1) block=(512,1,1) lds=%d" % (3 * attn.SLOT))
    if "wo" in which:
        n, lds = g2.gen_wo(body, "wo_kernel", "L_wo")
        launches.append("; @launch kernel=wo_kernel grid=(%d,1,1) block=(256,1,1) lds=%d" % (n, lds))
    if "final" in which:
        n, lds = g2.gen_final(body, "final_kernel", "L_fin")
        launches.append("; @launch kernel=final_kernel grid=(%d,1,1) block=(256,1,1) lds=%d" % (n, lds))
    if "empty" in which:
        body.kernel_begin("empty_kernel")
        body.kernel_end("empty_kernel", 32, 32)
        n = [int(a[5:]) for a in which if a.startswith("empty") and len(a) > 5]
    for a in which:
        if a.startswith("nempty"):
            if "empty_kernel:" not in body.text():
                body.kernel_begin("empty_kernel")
                body.kernel_end("empty_kernel", 32, 32)
            for i in range(int(a[6:])):
                launches.append("; @launch kernel=empty_kernel grid=(256,1,1) block=(256,1,1) lds=0")
    body.label("L_text_end")
    txt = HEADER + "\n".join(launches) + "\n" + '.amdgcn_target "amdgcn-amd-amdhsa--gfx950"\n' + body.text()
    open(path, "w").write(txt)

if __name__ == "__main__":
    common.PROF = "prof" in sys.argv
    common.STAMP = "stamp" in sys.argv
    for a in sys.argv[1:]:
        if a.startswith("g1:"):
            g1.OPT.add(a[3:])
        if a.startswith("k1:"):
            k1.OPT.add(a[3:])
        if a.startswith("kb:"):
            kb.OPT.add(a[3:])
        if a.startswith("g2:"):
            g2.OPT.add(a[3:])
        if a.startswith("at:"):
            attn.OPT.add(a[3:])
    out = [a for a in sys.argv[1:] if a.endswith(".s")][0]
    which = [a for a in sys.argv[1:] if a in ("qkv", "ffn1", "attn", "final", "k1", "kb", "k2", "wo", "k2s") or a.startswith("nempty")] or ("qkv", "ffn1", "attn", "final")
    build(out, which)
```

```python
import common
from common import *

OPT = set()
S_X, S_W2, S_WOP, S_B2, S_OUT, S_WS = 4, 6, 8, 10, 12, 14
S_HD, S_WD, S_XD, S_OD, S_BD = 16, 20, 28, 32, 52
S_W, S_RB, S_CB, S_T, S_T2, S_LB = 36, 37, 38, 39, 40, 41
S_XO0, S_XO1, S_WO, S_WRAP, S_LEFT, S_N, S_TRIP, S_RL = 42, 43, 44, 45, 46, 47, 48, 49
S_BX, S_BW, S_BWRAP = 56, 57, 58
D = 4
WSLOT = 2048
RING = D * WSLOT
VWS, VWR, VL16 = 4, 6, 3
XF, WF, ACC = 16, 48, 64
NA, NB = 28, 8


def setup(k):
    k("v_and_b32 v1, 31, v0")
    k("v_lshrrev_b32 v2, 5, v0")
    k("v_lshlrev_b32 v3, 4, v0")
    k("v_lshrrev_b32 v4, 3, v0")
    k("v_bfe_u32 v5, v0, 2, 1")
    k("v_bfe_u32 v6, v0, 4, 1")
    k("v_xor_b32 v5, v5, v6")
    k("v_and_b32 v6, 3, v0")
    k("v_lshlrev_b32 v6, 4, v6")
    k("v_lshl_add_u32 v5, v5, 6, v6")
    k("v_lshl_add_u32 v4, v4, 10, v5")
    k("v_bfe_u32 v12, v0, 2, 2")
    k("v_and_b32 v13, 3, v0")
    k("v_bfe_u32 v14, v0, 4, 1")
    k("v_lshl_add_u32 v13, v14, 2, v13")
    k("v_and_b32 v14, 1, v13")
    k("v_lshrrev_b32 v15, 1, v13")
    k("v_lshrrev_b32 v8, 1, v15")
    k("v_and_b32 v15, 1, v15")
    k("v_lshl_add_u32 v15, v14, 1, v15")
    k("v_lshl_add_u32 v13, v8, 2, v15")
    k("v_lshl_add_u32 v14, v2, 3, v12")
    k("v_lshlrev_b32 v14, 7, v14")
    k("v_lshl_add_u32 v14, v13, 3, v14")
    k("v_lshrrev_b32 v12, 1, v12")
    k("v_add_u32 v14, %s, v14" % s(S_LB))
    for ft in range(2):
        k("v_xor_b32 v15, %d, v12" % ft)
        k("v_lshl_add_u32 %s, v15, 6, v14" % v(VWR + ft))
    for j in range(64):
        k("v_mov_b32 %s, 0" % v(ACC + j))


def seg_params(k, n, kbase, dx, dw, dwrap):
    k("s_mul_i32 %s, %s, %d" % (s(S_T), s(S_RL), n // 4))
    k("s_mul_i32 %s, %s, %d" % (s(S_T2), s(S_CB), n))
    k("s_lshr_b32 %s, %s, 3" % (s(S_T2), s(S_T2)))
    k("s_add_u32 %s, %s, %s" % (s(S_T), s(S_T), s(S_T2)))
    k("s_cmp_ge_u32 %s, %d" % (s(S_T), n))
    k("s_cselect_b32 %s, %d, 0" % (s(S_T2), n))
    k("s_sub_u32 %s, %s, %s" % (s(S_T), s(S_T), s(S_T2)))
    k("s_sub_u32 %s, %d, %s" % (s(dwrap), n, s(S_T)))
    k("s_mul_i32 %s, %s, %d" % (s(S_T2), s(S_W), n))
    k("s_add_u32 %s, %s, %s" % (s(S_T), s(S_T), s(S_T2)))
    k("s_lshl_b32 %s, %s, 14" % (s(dw), s(S_T)))
    k("s_lshl_b32 %s, %s, 7" % (s(S_T2), s(S_CB)))
    k("s_add_u32 %s, %s, %s" % (s(dw), s(dw), s(S_T2)))
    k("s_add_u32 %s, %s, %d" % (s(S_T), s(S_T), kbase))
    k("s_lshl_b32 %s, %s, 10" % (s(S_T), s(S_T)))
    k("s_lshl_b32 %s, %s, 1" % (s(S_T2), s(S_RB)))
    k("s_mul_i32 %s, %s, %d" % (s(dx), s(S_T2), WS_HO_ROW))
    k("s_add_u32 %s, %s, %s" % (s(dx), s(dx), s(S_T)))
    k("s_add_u32 %s, %s, 0x%x" % (s(dx), s(dx), WS_HO))


XSC = [""]


def issue_groups(slot):
    g = []
    g.append(["buffer_load_dwordx4 %s, v3, %s, %s offen%s" % (v(XF + 8 * slot, 4), s(S_HD, 4), s(S_XO0), XSC[0])])
    g.append(["s_add_u32 %s, %s, %d" % (s(S_XO1), s(S_XO0), WS_HO_ROW),
              "buffer_load_dwordx4 %s, v3, %s, %s offen%s" % (v(XF + 8 * slot + 4, 4), s(S_HD, 4), s(S_XO1), XSC[0])])
    g.append(["s_add_u32 m0, %s, %d" % (s(S_LB), slot * WSLOT),
              "s_add_u32 %s, %s, 8192" % (s(S_T), s(S_WO)),
              "buffer_load_dwordx4 v4, %s, %s offen lds" % (s(S_WD, 4), s(S_WO))])
    g.append(["s_add_u32 m0, m0, 1024", "s_nop 0",
              "buffer_load_dwordx4 v4, %s, %s offen lds" % (s(S_WD, 4), s(S_T))])
    return g


def advance(k, lab, two_segments):
    k("s_add_u32 %s, %s, 1024" % (s(S_XO0), s(S_XO0)))
    k("s_add_u32 %s, %s, 16384" % (s(S_WO), s(S_WO)))
    k("s_sub_u32 %s, %s, 1" % (s(S_WRAP), s(S_WRAP)))
    k("s_cmp_lg_u32 %s, 0" % s(S_WRAP))
    k("s_cbranch_scc1 %s_nw" % lab)
    k("s_lshl_b32 %s, %s, 10" % (s(S_T), s(S_N)))
    k("s_sub_u32 %s, %s, %s" % (s(S_XO0), s(S_XO0), s(S_T)))
    k("s_lshl_b32 %s, %s, 14" % (s(S_T), s(S_N)))
    k("s_sub_u32 %s, %s, %s" % (s(S_WO), s(S_WO), s(S_T)))
    k("s_mov_b32 %s, %s" % (s(S_WRAP), s(S_N)))
    k.label(lab + "_nw")
    if two_segments:
        k("s_sub_u32 %s, %s, 1" % (s(S_LEFT), s(S_LEFT)))
        k("s_cmp_lg_u32 %s, 0" % s(S_LEFT))
        k("s_cbranch_scc1 %s_ns" % lab)
        k("s_mov_b32 %s, %s" % (s(S_XO0), s(S_BX)))
        k("s_mov_b32 %s, %s" % (s(S_WO), s(S_BW)))
        k("s_mov_b32 %s, %s" % (s(S_WRAP), s(S_BWRAP)))
        k("s_mov_b32 %s, %d" % (s(S_N), NB))
        k("s_mov_b32 %s, %s" % (s(S_WD), s(S_WOP)))
        k("s_and_b32 %s, %s, 0xffff" % (s(S_WD + 1), s(S_WOP + 1)))
        k("s_mov_b32 %s, 0x%x" % (s(S_WD + 2), 512 * 1024))
        k.label(lab + "_ns")


def rd_w(k, slot, buf):
    for ft in range(2):
        for u in range(2):
            k("ds_read_b64_tr_b16 %s, %s offset:%d" % (v(WF + 8 * buf + 4 * ft + 2 * u, 2), v(VWR + ft), slot * WSLOT + u * 512))


def step(k, d, lab, issue, vm, two_segments, last=False):
    if not last:
        k("s_waitcnt vmcnt(%d)" % vm)
        rd_w(k, (d + 1) % D, (d + 1) & 1)
        k("s_waitcnt lgkmcnt(4)")
    else:
        k("s_waitcnt lgkmcnt(0)")
    g = issue_groups((d + D - 1) % D) if issue else [[], [], [], []]
    j = 0
    for tt in range(2):
        for ft in range(2):
            dd = v(ACC + 16 * (2 * tt + ft), 16)
            k("v_mfma_f32_32x32x16_bf16 %s, %s, %s, %s" % (dd, v(WF + 8 * (d & 1) + 4 * ft, 4), v(XF + 8 * d + 4 * tt, 4), dd))
            for ins in g[j]:
                k(ins)
            j += 1
    if issue:
        advance(k, lab, two_segments)


def stream(k, pre, nsteps, two_segments, prio=None):
    for d in range(D - 1):
        for grp in issue_groups(d):
            for ins in grp:
                k(ins)
        advance(k, "%s_p%d" % (pre, d), two_segments)
    k("s_waitcnt vmcnt(8)")
    if prio:
        k("s_setprio %d" % prio)
    rd_w(k, 0, 0)
    ntrip = nsteps // D - 1
    k("s_mov_b32 %s, 0" % s(S_TRIP))
    k.label(pre + "_loop")
    for d in range(D):
        step(k, d, "%s_l%d" % (pre, d), True, 4, two_segments)
    k("s_add_u32 %s, %s, 1" % (s(S_TRIP), s(S_TRIP)))
    k("s_cmp_lt_u32 %s, %d" % (s(S_TRIP), ntrip))
    k("s_cbranch_scc1 %s_loop" % pre)
    step(k, 0, pre + "_t0", True, 4, two_segments)
    step(k, 1, pre + "_t1", False, 4, two_segments)
    step(k, 2, pre + "_t2", False, 0, two_segments)
    step(k, 3, pre + "_t3", False, 0, two_segments, last=True)


def reduce_and_store(k, pre):
    k("s_nop 15")
    k("s_barrier")
    for q in range(4):
        k("s_cmp_eq_u32 %s, %d" % (s(S_W), q))
        k("s_cbranch_scc1 %s_nw%d" % (pre, q))
        k("s_lshl_b32 %s, %s, 14" % (s(S_T), s(S_W)))
        k("v_add_u32 v8, %s, v3" % s(S_T))
        for g in range(4):
            k("ds_write_b128 v8, %s offset:%d" % (v(ACC + 16 * q + 4 * g, 4), q * 4096 + g * 1024))
        k.label("%s_nw%d" % (pre, q))
    for q in range(4):
        k("s_cmp_lg_u32 %s, %d" % (s(S_W), q))
        k("s_cbranch_scc1 %s_no%d" % (pre, q))
        for r in range(16):
            k("v_mov_b32 %s, %s" % (v(16 + r), v(ACC + 16 * q + r)))
        k.label("%s_no%d" % (pre, q))
    k("s_waitcnt lgkmcnt(0)")
    k("s_barrier")
    k("s_lshl_b32 %s, %s, 12" % (s(S_T2), s(S_W)))
    k("v_add_u32 v8, %s, v3" % s(S_T2))
    first = True
    for dq in range(1, 4):
        k("s_add_u32 %s, %s, %d" % (s(S_T2), s(S_W), dq))
        k("s_and_b32 %s, %s, 3" % (s(S_T2), s(S_T2)))
        k("s_lshl_b32 %s, %s, 14" % (s(S_T2), s(S_T2)))
        k("v_add_u32 v9, %s, v8" % s(S_T2))
        for g in range(4):
            k("ds_read_b128 %s, v9 offset:%d" % (v(64 + 16 * (dq - 1) + 4 * g, 4), g * 1024))
    for dq in range(1, 4):
        k("s_waitcnt lgkmcnt(%d)" % (4 * (3 - dq)))
        for r in range(16):
            k("v_add_f32 %s, %s, %s" % (v(16 + r), v(16 + r), v(64 + 16 * (dq - 1) + r)))


def resid_loads(k):
    k("s_lshr_b32 %s, %s, 1" % (s(S_T), s(S_W)))
    k("s_lshl_b32 %s, %s, 1" % (s(S_T2), s(S_RB)))
    k("s_add_u32 %s, %s, %s" % (s(S_T), s(S_T), s(S_T2)))
    k("s_lshl_b32 %s, %s, 15" % (s(S_T), s(S_T)))
    k("s_and_b32 %s, %s, 1" % (s(S_T2), s(S_W)))
    k("s_lshl_b32 %s, %s, 6" % (s(S_T2), s(S_T2)))
    k("s_lshl_b32 %s, %s, 7" % (s(S_N), s(S_CB)))
    k("s_add_u32 %s, %s, %s" % (s(S_BW), s(S_T2), s(S_N)))
    k("s_add_u32 %s, %s, %s" % (s(S_BX), s(S_T), s(S_BW)))
    k("v_lshlrev_b32 v10, 10, v1")
    k("v_lshl_add_u32 v10, v2, 4, v10")
    k("v_lshlrev_b32 v11, 4, v2")
    k("buffer_load_dwordx4 v[32:35], v10, %s, %s offen" % (s(S_XD, 4), s(S_BX)))
    k("buffer_load_dwordx4 v[36:39], v10, %s, %s offen offset:32" % (s(S_XD, 4), s(S_BX)))
    k("buffer_load_dwordx4 v[40:43], v11, %s, %s offen" % (s(S_BD, 4), s(S_BW)))
    k("buffer_load_dwordx4 v[44:47], v11, %s, %s offen offset:32" % (s(S_BD, 4), s(S_BW)))


def finish_tile(k):
    k("s_waitcnt vmcnt(0)")
    for half in range(2):
        for j in range(4):
            for src in (32, 40):
                r = src + 4 * half + j
                k("v_lshlrev_b32 v12, 16, %s" % v(r))
                k("v_and_b32 v13, 0xffff0000, %s" % v(r))
                k("v_add_f32 %s, %s, v12" % (v(16 + 8 * half + 2 * j), v(16 + 8 * half + 2 * j)))
                k("v_add_f32 %s, %s, v13" % (v(16 + 8 * half + 2 * j + 1), v(16 + 8 * half + 2 * j + 1)))
    for r in range(8):
        k("v_cvt_pk_bf16_f32 %s, %s, %s" % (v(16 + r), v(16 + 2 * r), v(17 + 2 * r)))
    k("buffer_store_dwordx4 v[16:19], v10, %s, %s offen" % (s(S_OD, 4), s(S_BX)))
    k("buffer_store_dwordx4 v[20:23], v10, %s, %s offen offset:32" % (s(S_OD, 4), s(S_BX)))


WS_BASE = 24 << 20


def ids(k, s_id):
    k("s_bfe_u32 %s, %s, 0x20003" % (s(S_RL), s_id))
    k("s_and_b32 %s, %s, 7" % (s(S_RB), s_id))
    k("s_lshl_b32 %s, %s, 2" % (s(S_RB), s(S_RB)))
    k("s_add_u32 %s, %s, %s" % (s(S_RB), s(S_RB), s(S_RL)))
    k("s_lshr_b32 %s, %s, 5" % (s(S_CB), s_id))


def add_resid(k):
    k("s_waitcnt vmcnt(0)")
    for half in range(2):
        for j in range(4):
            for src in (32, 40):
                r = src + 4 * half + j
                k("v_lshlrev_b32 v12, 16, %s" % v(r))
                k("v_and_b32 v13, 0xffff0000, %s" % v(r))
                k("v_add_f32 %s, %s, v12" % (v(16 + 8 * half + 2 * j), v(16 + 8 * half + 2 * j)))
                k("v_add_f32 %s, %s, v13" % (v(16 + 8 * half + 2 * j + 1), v(16 + 8 * half + 2 * j + 1)))


def gen_ffn2_role(k, pre, s_ws_size):
    k("v_lshrrev_b32 v1, 6, v0")
    k("v_and_b32 v0, 63, v0")
    k("v_readfirstlane_b32 %s, v1" % s(S_W))
    for r, off in ((S_WS, KA_WS), (S_W2, KA_W2), (S_X, KA_X), (S_B2, KA_B2)):
        k("s_load_dwordx2 %s, s[0:1], %d" % (s(r, 2), off))
    k("s_sub_u32 s3, s2, 256")
    k("s_cmp_ge_u32 %s, 4" % s(S_W))
    k("s_cbranch_scc1 %s_exit" % pre)
    ids(k, "s3")
    k("s_mul_i32 %s, %s, %d" % (s(S_LB), s(S_W), RING))
    seg_params(k, NA, 0, S_XO0, S_WO, S_WRAP)
    k("s_mov_b32 %s, %d" % (s(S_N), NA))
    setup(k)
    k("s_waitcnt lgkmcnt(0)")
    k.srd(S_HD, S_WS, s_ws_size)
    k.srd(S_WD, S_W2, 1792 * 1024)
    k.srd(S_XD, S_X, 2048 * 1024)
    k.srd(S_BD, S_B2, 1024)
    prof_mark(k, 2)
    stream(k, pre, NA, False, prio=(3 if "gp3" in OPT else (1 if "gp1" in OPT else 0)))
    prof_mark(k, 3)
    resid_loads(k)
    reduce_and_store(k, pre)
    add_resid(k)
    k("s_lshl_b32 %s, s3, 14" % s(S_T))
    k("s_lshl_b32 %s, %s, 12" % (s(S_T2), s(S_W)))
    k("s_add_u32 %s, %s, %s" % (s(S_T), s(S_T), s(S_T2)))
    k("s_add_u32 %s, %s, 0x%x" % (s(S_T), s(S_T), WS_BASE))
    for g in range(4):
        k("buffer_store_dwordx4 %s, v3, %s, %s offen offset:%d" % (v(16 + 4 * g, 4), s(S_HD, 4), s(S_T), 1024 * g))
    if "nopf" not in OPT:
        k("s_load_dwordx2 %s, s[0:1], %d" % (s(S_WOP, 2), KA_WO))
        k("s_waitcnt lgkmcnt(0)")
        k.srd(S_WD, S_WOP, 512 * 1024)
        k("s_lshl_b32 %s, %s, 17" % (s(S_T), s(S_W)))
        k("s_lshl_b32 %s, %s, 7" % (s(S_T2), s(S_CB)))
        k("s_add_u32 %s, %s, %s" % (s(S_T), s(S_T), s(S_T2)))
        for i in range(16):
            k("buffer_load_dwordx4 %s, v4, %s, %s offen" % (v(64 + 4 * i, 4), s(S_WD, 4), s(S_T)))
            k("s_add_u32 %s, %s, 8192" % (s(S_T), s(S_T)))
    k("s_waitcnt vmcnt(0)")
    prof_mark(k, 5)
    prof_rt(k, 6)
    prof_store(k, S_WS, S_W, 24)
    k.label(pre + "_exit")
    k("s_endpgm")


S_DBG = 60


def wait_flags(k, lab, s_off, n):
    k("s_cmp_eq_u32 %s, 0" % s(S_W))
    k("s_cbranch_scc0 %s_go" % lab)
    k("v_min_u32 v8, %d, v0" % (n - 1))
    k("v_lshl_add_u32 v8, v8, 2, %s" % s(s_off))
    k("s_mov_b32 %s, 0" % s(S_TRIP))
    k.label(lab + "_poll")
    k("global_load_dword v9, v8, %s sc1" % s(S_WS, 2))
    k("s_add_u32 %s, %s, 1" % (s(S_TRIP), s(S_TRIP)))
    k("s_waitcnt vmcnt(0)")
    k("v_cmp_eq_u32 vcc, 0, v9")
    k("s_nop 1")
    k("s_cmp_eq_u64 vcc, 0")
    k("s_cbranch_scc1 %s_go" % lab)
    k("s_cmp_eq_u64 vcc, exec")
    k("s_cbranch_scc0 %s_near" % lab)
    k("s_sleep %d" % (24 if "sl24" in OPT else 12))
    k.label(lab + "_near")
    k("s_sleep %d" % (8 if "sn8" in OPT else 3))
    k("s_cmp_lt_u32 %s, 0x40000" % s(S_TRIP))
    k("s_cbranch_scc1 %s_poll" % lab)
    k.label(lab + "_go")
    k("s_barrier")


def wo_tail(k, pre):
    OWN, OTH, XB, WB = 16, 96, 32, 112
    VLO, VHI = 14, 6
    k("s_barrier")
    k.srd(S_WD, S_WOP, 512 * 1024)
    k("s_lshl_b32 %s, %s, 17" % (s(S_T), s(S_W)))
    k("s_lshl_b32 %s, %s, 7" % (s(S_T2), s(S_CB)))
    k("s_add_u32 %s, %s, %s" % (s(S_T), s(S_T), s(S_T2)))
    k("s_lshl_b32 m0, %s, 14" % s(S_W))
    k("s_mov_b32 %s, 16" % s(S_TRIP))
    k.label(pre + "_wst")
    k("buffer_load_dwordx4 v4, %s, %s offen lds" % (s(S_WD, 4), s(S_T)))
    k("s_add_u32 %s, %s, 8192" % (s(S_T), s(S_T)))
    k("s_add_u32 m0, m0, 1024")
    k("s_sub_u32 %s, %s, 1" % (s(S_TRIP), s(S_TRIP)))
    k("s_cmp_lg_u32 %s, 0" % s(S_TRIP))
    k("s_cbranch_scc1 %s_wst" % pre)
    k("s_and_b32 %s, %s, 1" % (s(S_N), s(S_W)))
    k("s_and_b32 %s, %s, 1" % (s(S_WRAP), s(S_CB)))
    k("s_lshl_b32 %s, %s, 3" % (s(S_WRAP), s(S_WRAP)))
    k("v_subrev_u32 v6, %s, v6" % s(S_LB))
    k("v_subrev_u32 v7, %s, v7" % s(S_LB))
    k("s_cmp_eq_u32 %s, 0" % s(S_N))
    k("s_cselect_b64 vcc, -1, 0")
    k("v_cndmask_b32 v12, v7, v6, vcc")
    k("v_cndmask_b32 v13, v6, v7, vcc")
    k("s_lshl_b32 %s, %s, 15" % (s(S_T), s(S_N)))
    k("s_lshl_b32 %s, %s, 11" % (s(S_T2), s(S_WRAP)))
    k("s_add_u32 %s, %s, %s" % (s(S_LEFT), s(S_T), s(S_T2)))
    k("v_add_u32 %s, %s, v12" % (v(VLO), s(S_LEFT)))
    k("v_add_u32 %s, %s, v13" % (v(VLO + 1), s(S_LEFT)))
    k("s_sub_u32 %s, %s, %s" % (s(S_LEFT), s(S_T), s(S_T2)))
    k("s_add_u32 %s, %s, %d" % (s(S_LEFT), s(S_LEFT), 8 * 2048))
    k("v_add_u32 %s, %s, v12" % (v(VHI), s(S_LEFT)))
    k("v_add_u32 %s, %s, v13" % (v(VHI + 1), s(S_LEFT)))
    for r in range(16):
        k("v_mov_b32 %s, 0" % v(OTH + r))
    k("s_lshr_b32 %s, %s, 1" % (s(S_T), s(S_W)))
    k("s_lshl_b32 %s, %s, 1" % (s(S_T2), s(S_RB)))
    k("s_add_u32 %s, %s, %s" % (s(S_T), s(S_T), s(S_T2)))
    k("s_mul_i32 %s, %s, %d" % (s(S_XO0), s(S_T), WS_HO_ROW))
    k("s_lshl_b32 %s, %s, 14" % (s(S_T), s(S_N)))
    k("s_add_u32 %s, %s, %s" % (s(S_XO0), s(S_XO0), s(S_T)))
    k("s_add_u32 %s, %s, 0x%x" % (s(S_XO0), s(S_XO0), WS_HO + 112 * 1024))
    k("s_lshl_b32 %s, %s, 10" % (s(S_T), s(S_WRAP)))
    k("s_add_u32 %s, %s, %s" % (s(S_XO1), s(S_XO0), s(S_T)))
    k("s_sub_u32 %s, %s, %s" % (s(S_XO0), s(S_XO0), s(S_T)))
    k("s_lshr_b32 %s, %s, 2" % (s(S_LEFT), s(S_RB)))
    k("s_lshl_b32 %s, %s, 7" % (s(S_LEFT), s(S_LEFT)))
    k("s_add_u32 %s, %s, 0x%x" % (s(S_LEFT), s(S_LEFT), WS_FLAG + FLAG_O))
    k("s_waitcnt vmcnt(0)")
    k("s_setprio 3")
    wait_flags(k, pre + "_w", S_LEFT, 32)
    prof_mark(k, 4)
    for i in range(16):
        so = S_XO1 if i < 8 else S_XO0
        if i % 4 == 0 and i:
            k("s_add_u32 %s, %s, 4096" % (s(S_XO1), s(S_XO1)) if i < 8 else "s_nop 0")
        k("buffer_load_dwordx4 %s, v3, %s, %s offen offset:%d sc1" % (v(XB + 4 * i, 4), s(S_HD, 4), s(so), (i % 4) * 1024))
        if i == 7:
            k("s_add_u32 %s, %s, 8192" % (s(S_XO0), s(S_XO0)))
        if i == 11:
            k("s_add_u32 %s, %s, 4096" % (s(S_XO0), s(S_XO0)))

    def rd(i):
        base = VLO if i < 8 else VHI
        for j in range(2):
            for u in range(2):
                k("ds_read_b64_tr_b16 %s, %s offset:%d" % (v(WB + 8 * (i & 1) + 4 * j + 2 * u, 2), v(base + j), (i & 7) * 2048 + u * 512))

    rd(0)
    for i in range(16):
        if i < 15:
            rd(i + 1)
        k("s_waitcnt vmcnt(%d) lgkmcnt(%d)" % (15 - i, 4 if i < 15 else 0))
        for j, acc in ((0, OWN), (1, OTH)):
            k("v_mfma_f32_32x32x16_bf16 %s, %s, %s, %s" % (v(acc, 16), v(WB + 8 * (i & 1) + 4 * j, 4), v(XB + 4 * i, 4), v(acc, 16)))
    k("s_barrier")
    k("s_xor_b32 %s, %s, 1" % (s(S_T), s(S_W)))
    k("s_lshl_b32 %s, %s, 12" % (s(S_T), s(S_T)))
    k("v_add_u32 v12, %s, v3" % s(S_T))
    k("s_lshl_b32 %s, %s, 12" % (s(S_T), s(S_W)))
    k("v_add_u32 v13, %s, v3" % s(S_T))
    k("s_nop 7")
    for g in range(4):
        k("ds_write_b128 v12, %s offset:%d" % (v(OTH + 4 * g, 4), g * 1024))
    k("s_waitcnt lgkmcnt(0)")
    k("s_barrier")
    for g in range(4):
        k("ds_read_b128 %s, v13 offset:%d" % (v(XB + 4 * g, 4), g * 1024))
    k("v_lshlrev_b32 v10, 10, v1")
    k("v_lshl_add_u32 v10, v2, 4, v10")
    for g in range(4):
        k("s_waitcnt lgkmcnt(%d)" % (3 - g))
        for r in range(4):
            k("v_add_f32 %s, %s, %s" % (v(OWN + 4 * g + r), v(OWN + 4 * g + r), v(XB + 4 * g + r)))
    for r in range(8):
        k("v_cvt_pk_bf16_f32 %s, %s, %s" % (v(16 + r), v(16 + 2 * r), v(17 + 2 * r)))
    k("buffer_store_dwordx4 v[16:19], v10, %s, %s offen" % (s(S_OD, 4), s(S_BX)))
    k("buffer_store_dwordx4 v[20:23], v10, %s, %s offen offset:32" % (s(S_OD, 4), s(S_BX)))


def gen_g_role(k, pre):
    k("v_lshrrev_b32 v1, 6, v0")
    k("v_and_b32 v0, 63, v0")
    k("v_readfirstlane_b32 %s, v1" % s(S_W))
    for r, off in ((S_WS, KA_WS), (S_W2, KA_W2), (S_WOP, KA_WO), (S_X, KA_X), (S_B2, KA_B2), (S_OUT, KA_OUT)):
        k("s_load_dwordx2 %s, s[0:1], %d" % (s(r, 2), off))
    k("s_sub_u32 s3, s2, 256")
    k("s_cmp_ge_u32 %s, 4" % s(S_W))
    k("s_cbranch_scc1 %s_exit" % pre)
    ids(k, "s3")
    k("s_mul_i32 %s, %s, %d" % (s(S_LB), s(S_W), RING))
    seg_params(k, NA, 0, S_XO0, S_WO, S_WRAP)
    k("s_mov_b32 %s, %d" % (s(S_N), NA))
    setup(k)
    k("s_waitcnt lgkmcnt(0)")
    k.srd(S_HD, S_WS, WS_END)
    k.srd(S_WD, S_W2, 1792 * 1024)
    k.srd(S_XD, S_X, 2048 * 1024)
    k.srd(S_OD, S_OUT, 2048 * 1024)
    k.srd(S_BD, S_B2, 1024)
    prof_mark(k, 2)
    stream(k, pre + "a", NA, False)
    prof_mark(k, 3)
    resid_loads(k)
    reduce_and_store(k, pre)
    add_resid(k)
    wo_tail(k, pre)
    k("s_waitcnt vmcnt(0)")
    prof_mark(k, 5)
    prof_rt(k, 6)
    prof_store(k, S_WS, S_W, 24)
    k.label(pre + "_exit")
    k("s_endpgm")


def gen_wo(k, name, pre):
    k.kernel_begin(name)
    k("s_cmp_ge_u32 s2, 256")
    k("s_cbranch_scc1 %s_exit" % pre)
    prof_start(k)
    for r, off in ((S_WS, KA_WS), (S_WOP, KA_WO), (S_OUT, KA_OUT)):
        k("s_load_dwordx2 %s, s[0:1], %d" % (s(r, 2), off))
    ids(k, "s2")
    k("v_lshrrev_b32 v1, 6, v0")
    k("v_and_b32 v0, 63, v0")
    k("v_readfirstlane_b32 %s, v1" % s(S_W))
    k("s_nop 0")
    k("s_mul_i32 %s, %s, %d" % (s(S_LB), s(S_W), RING))
    seg_params(k, NB, 112, S_XO0, S_WO, S_WRAP)
    k("s_mov_b32 %s, %d" % (s(S_N), NB))
    setup(k)
    k("s_waitcnt lgkmcnt(0)")
    k.srd(S_HD, S_WS, WS_BASE + (4 << 20))
    k.srd(S_WD, S_WOP, 512 * 1024)
    k.srd(S_OD, S_OUT, 2048 * 1024)
    k("s_lshl_b32 %s, s2, 14" % s(S_T))
    k("s_lshl_b32 %s, %s, 12" % (s(S_T2), s(S_W)))
    k("s_add_u32 %s, %s, %s" % (s(S_T), s(S_T), s(S_T2)))
    k("s_add_u32 %s, %s, 0x%x" % (s(S_T), s(S_T), WS_BASE))
    for q in range(4):
        k("s_cmp_lg_u32 %s, %d" % (s(S_W), q))
        k("s_cbranch_scc1 %s_nb%d" % (pre, q))
        for g in range(4):
            k("buffer_load_dwordx4 %s, v3, %s, %s offen offset:%d" % (v(ACC + 16 * q + 4 * g, 4), s(S_HD, 4), s(S_T), 1024 * g))
        k.label("%s_nb%d" % (pre, q))
    prof_mark(k, 2)
    stream(k, pre, NB, False)
    prof_mark(k, 3)
    reduce_and_store(k, pre)
    k("s_lshr_b32 %s, %s, 1" % (s(S_T), s(S_W)))
    k("s_lshl_b32 %s, %s, 1" % (s(S_T2), s(S_RB)))
    k("s_add_u32 %s, %s, %s" % (s(S_T), s(S_T), s(S_T2)))
    k("s_lshl_b32 %s, %s, 15" % (s(S_T), s(S_T)))
    k("s_and_b32 %s, %s, 1" % (s(S_T2), s(S_W)))
    k("s_lshl_b32 %s, %s, 6" % (s(S_T2), s(S_T2)))
    k("s_add_u32 %s, %s, %s" % (s(S_T), s(S_T), s(S_T2)))
    k("s_lshl_b32 %s, %s, 7" % (s(S_T2), s(S_CB)))
    k("s_add_u32 %s, %s, %s" % (s(S_T), s(S_T), s(S_T2)))
    k("v_lshlrev_b32 v10, 10, v1")
    k("v_lshl_add_u32 v10, v2, 4, v10")
    for r in range(8):
        k("v_cvt_pk_bf16_f32 %s, %s, %s" % (v(16 + r), v(16 + 2 * r), v(17 + 2 * r)))
    k("buffer_store_dwordx4 v[16:19], v10, %s, %s offen" % (s(S_OD, 4), s(S_T)))
    k("buffer_store_dwordx4 v[20:23], v10, %s, %s offen offset:32" % (s(S_OD, 4), s(S_T)))
    k("s_waitcnt vmcnt(0)")
    prof_mark(k, 5)
    prof_rt(k, 6)
    prof_store(k, S_WS, S_W, 24)
    k.label(pre + "_exit")
    k.kernel_end(name, 128, 128)
    return 256, 65536


def gen_final(k, name, pre):
    k.kernel_begin(name)
    k("s_cmp_ge_u32 s2, 256")
    k("s_cbranch_scc1 %s_exit" % pre)
    prof_start(k)
    for r, off in ((S_WS, KA_WS), (S_W2, KA_W2), (S_WOP, KA_WO), (S_X, KA_X), (S_B2, KA_B2), (S_OUT, KA_OUT)):
        k("s_load_dwordx2 %s, s[0:1], %d" % (s(r, 2), off))
    k("s_bfe_u32 %s, s2, 0x20003" % s(S_RL))
    k("s_and_b32 %s, s2, 7" % s(S_RB))
    k("s_lshl_b32 %s, %s, 2" % (s(S_RB), s(S_RB)))
    k("s_add_u32 %s, %s, %s" % (s(S_RB), s(S_RB), s(S_RL)))
    k("s_lshr_b32 %s, s2, 5" % s(S_CB))
    k("v_lshrrev_b32 v1, 6, v0")
    k("v_and_b32 v0, 63, v0")
    k("v_readfirstlane_b32 %s, v1" % s(S_W))
    k("s_nop 0")
    k("s_mul_i32 %s, %s, %d" % (s(S_LB), s(S_W), RING))
    seg_params(k, NA, 0, S_XO0, S_WO, S_WRAP)
    seg_params(k, NB, 112, S_BX, S_BW, S_BWRAP)
    k("s_mov_b32 %s, %d" % (s(S_N), NA))
    k("s_mov_b32 %s, %d" % (s(S_LEFT), NA))
    setup(k)
    k("s_waitcnt lgkmcnt(0)")
    k.srd(S_HD, S_WS, WS_END)
    k.srd(S_WD, S_W2, 1792 * 1024)
    k.srd(S_XD, S_X, 2048 * 1024)
    k.srd(S_OD, S_OUT, 2048 * 1024)
    k.srd(S_BD, S_B2, 1024)
    prof_mark(k, 2)
    stream(k, pre, NA + NB, True)
    prof_mark(k, 3)
    resid_loads(k)
    reduce_and_store(k, pre)
    finish_tile(k)
    k("s_waitcnt vmcnt(0)")
    prof_mark(k, 5)
    prof_rt(k, 6)
    prof_store(k, S_WS, S_W, 24)
    k.label(pre + "_exit")
    k.kernel_end(name, 128, 128)
    return 256, 65536
```

```python
import common
from common import *

OPT = set()
XBYTES = 65536
L_PART = XBYTES
L_BI = L_PART + 2048
SLOT0 = XBYTES + 3072
SLOT = 16384
R = 5
SLOTE = SLOT0 + R * SLOT
LDS_BYTES = SLOTE
WS_XN = 20 << 20

S_X, S_WQ, S_WS, S_B1, S_W1 = 4, 6, 8, 10, 40
S_XD, S_WD, S_OD = 12, 16, 20
S_W, S_RB, S_CT, S_T, S_T2, S_C, S_SLOT, S_WO, S_LD = 24, 25, 26, 27, 28, 29, 30, 32, 33
S_RSLOT, S_T3, S_ROT, S_CK, S_KC, S_U, S_NCH, S_WEND, S_LD3, S_LD4 = 35, 36, 37, 38, 39, 42, 43, 44, 45, 46

VA0, VXA, NX, NS, NQ, NT = 4, 5, 16, 48, 50, 52
VWQ, VWF = 6, 7
VW2 = 11
VX = 19
XF = [20, 24]
WF = [28, 44]
ACC = 60
NV = 128
VQO, VFO = 6, 9


def entry(k, pre, name):
    k("s_cmp_ge_u32 s2, 256")
    k("s_cbranch_scc1 %s_exit" % pre)
    prof_start(k)
    k("s_load_dwordx2 %s, s[0:1], %d" % (s(S_X, 2), KA_X))
    k("s_load_dwordx2 %s, s[0:1], %d" % (s(S_WQ, 2), KA_WQKV))
    k("s_load_dwordx2 %s, s[0:1], %d" % (s(S_W1, 2), KA_W1))
    k("s_load_dwordx2 %s, s[0:1], %d" % (s(S_WS, 2), KA_WS))
    k("s_load_dwordx2 %s, s[0:1], %d" % (s(S_B1, 2), KA_B1))
    k("v_lshrrev_b32 v1, 6, v0")
    k("v_and_b32 v0, 63, v0")
    k("v_readfirstlane_b32 %s, v1" % s(S_W))
    if "nopf" not in OPT:
        k("s_getpc_b64 s[50:51]")
        k.label(pre + "_pc")
        k("s_sub_u32 s50, s50, %s_pc-%s" % (pre, name))
        k("s_subb_u32 s51, s51, 0")
        k("s_lshr_b32 s52, s2, 3")
        k("s_lshl_b32 s52, s52, 10")
        k("v_lshl_add_u32 v3, v0, 4, s52")
        k("v_cmp_gt_u32 vcc, L_text_end-%s-16, v3" % name)
        k("s_cmp_eq_u32 %s, 7" % s(S_W))
        k("s_cselect_b64 s[52:53], vcc, 0")
        k("s_and_saveexec_b64 s[54:55], s[52:53]")
        k("s_cbranch_execz %s_npf" % pre)
        k("global_load_dwordx4 v[112:115], v3, s[50:51]")
        k.label(pre + "_npf")
        k("s_mov_b64 exec, s[54:55]")
    k("s_lshr_b32 %s, s2, 3" % s(S_T))
    k("s_and_b32 %s, %s, 7" % (s(S_ROT), s(S_T)))
    k("s_and_b32 %s, s2, 3" % s(S_RB))
    k("s_lshl_b32 %s, %s, 3" % (s(S_RB), s(S_RB)))
    k("s_add_u32 %s, %s, %s" % (s(S_RB), s(S_RB), s(S_ROT)))
    k("s_lshr_b32 %s, %s, 3" % (s(S_T), s(S_T)))
    k("s_bfe_u32 %s, s2, 0x10002" % s(S_CT))
    k("s_lshl_b32 %s, %s, 2" % (s(S_CT), s(S_CT)))
    k("s_add_u32 %s, %s, %s" % (s(S_CT), s(S_CT), s(S_T)))
    k("s_lshl_b32 %s, %s, 1" % (s(S_ROT), s(S_ROT)))
    k("s_lshl_b32 %s, %s, 1" % (s(S_T), s(S_T)))
    k("s_add_u32 %s, %s, %s" % (s(S_T), s(S_T), s(S_W)))
    k("s_and_b32 %s, %s, 7" % (s(S_T), s(S_T)))
    k("s_lshl_b32 %s, %s, 3" % (s(S_T3), s(S_T)))
    k("v_lshlrev_b32 v3, 4, v0")
    k("s_lshl_b32 %s, %s, 6" % (s(S_T), s(S_RB)))
    k("s_add_u32 %s, %s, %s" % (s(S_T), s(S_T), s(S_T3)))
    k("s_lshl_b32 %s, %s, 10" % (s(S_T2), s(S_T)))
    k("s_lshl_b32 m0, %s, 10" % s(S_T3))
    k("s_and_b32 %s, %s, 8" % (s(S_T3), s(S_T3)))
    k("s_waitcnt lgkmcnt(0)")
    stamp(k, 0, S_WS, S_W)
    k.srd(S_XD, S_X, 2048 * 1024)
    for i in range(8):
        k("s_add_u32 %s, %s, %d" % (s(S_T), s(S_T3), i))
        k("s_lshl_b32 %s, %s, 4" % (s(S_T), s(S_T)))
        k("v_xor_b32 v4, %s, v3" % s(S_T))
        k("buffer_load_dwordx4 v4, %s, %s offen lds" % (s(S_XD, 4), s(S_T2)))
        if i < 7:
            k("s_add_u32 m0, m0, 1024")
            k("s_add_u32 %s, %s, 1024" % (s(S_T2), s(S_T2)))
    if "p2" not in OPT and "p3" not in OPT:
        prof_mark(k, 2)
    k("v_and_b32 v1, 31, v0")
    k("v_lshrrev_b32 v2, 5, v0")
    k.srd(S_OD, S_WS, WS_END if "xn" not in OPT else WS_XN + (2 << 20))
    k.srd(S_WD, S_WQ, 512 * 3072)
    for r in range(6, 11):
        k("v_mov_b32 %s, 0" % v(r))
    k("s_cmp_lt_u32 s2, 32")
    k("s_cbranch_scc0 %s_nz" % pre)
    k("s_cmp_eq_u32 %s, 0" % s(S_W))
    k("s_cbranch_scc0 %s_nz" % pre)
    k("s_lshl_b32 %s, s2, 8" % s(S_T))
    k("s_add_u32 %s, %s, 0x%x" % (s(S_T), s(S_T), WS_FLAG))
    k("v_lshl_add_u32 v4, v0, 2, %s" % s(S_T))
    k("v_mov_b32 v5, 0")
    k("global_store_dword v4, v5, %s" % s(S_WS, 2))
    k.label(pre + "_nz")
    k("s_cmp_ge_u32 %s, 4" % s(S_W))
    k("s_cbranch_scc1 %s_loader" % pre)


def xaddr_base(k, s_tile):
    k("s_lshl_b32 %s, %s, 15" % (s(S_T), s(s_tile)))
    k("v_and_b32 v3, 15, v1")
    k("v_xor_b32 v3, v3, v2")
    k("v_lshlrev_b32 v3, 4, v3")
    k("v_lshl_add_u32 v3, v1, 10, v3")
    k("v_add_u32 %s, %s, v3" % (v(VA0), s(S_T)))


def normalise(k, pre, dma, younger):
    k("s_and_b32 %s, %s, 1" % (s(S_T2), s(S_W)))
    xaddr_base(k, S_T2)
    k("s_lshr_b32 %s, %s, 1" % (s(S_T3), s(S_W)))
    k("s_lshl_b32 %s, %s, 8" % (s(S_U), s(S_T3)))
    k("v_xor_b32 %s, %s, %s" % (v(VXA), s(S_U), v(VA0)))
    k("s_cmp_ge_u32 %s, 4" % s(S_W))
    k("s_cbranch_scc1 %s_nwl" % pre)
    k("s_waitcnt vmcnt(0)")
    k.label(pre + "_nwl")
    k("s_waitcnt vmcnt(%d)" % younger)
    k("s_barrier")
    if "p2" not in OPT:
        prof_mark(k, 3)
    for i in range(8):
        k("v_xor_b32 %s, %d, %s" % (v(NT + 8 + i), 32 * i, v(VXA)))
    AD = NT + 8
    for i in range(8):
        k("ds_read_b128 %s, %s" % (v(NX + 4 * i, 4), v(AD + i)))
    for r in range(4):
        k("v_mov_b32 %s, 0" % v(NS + r))
    k("v_mov_b32 %s, 0x3f803f80" % v(NT))
    for i in range(8):
        k("s_waitcnt lgkmcnt(%d)" % (7 - i))
        for r in range(4):
            k("v_dot2c_f32_bf16 %s, %s, %s" % (v(NS + (r & 1)), v(NT), v(NX + 4 * i + r)))
            k("v_dot2c_f32_bf16 %s, %s, %s" % (v(NQ + (r & 1)), v(NX + 4 * i + r), v(NX + 4 * i + r)))
    k("s_nop 2")
    for r in (NS, NQ):
        k("v_add_f32 %s, %s, %s" % (v(r), v(r), v(r + 1)))
        k("v_mov_b32 %s, %s" % (v(r + 1), v(r)))
        k("s_nop 1")
        k("v_permlane32_swap_b32 %s, %s" % (v(r + 1), v(r)))
        k("s_nop 1")
        k("v_add_f32 %s, %s, %s" % (v(r), v(r), v(r + 1)))
    if "p3" in OPT:
        prof_mark(k, 2)
    k("s_cmp_ge_u32 %s, 4" % s(S_W))
    k("s_cbranch_scc0 %s_nnd" % pre)
    for grp in dma:
        for ins in grp:
            k(ins)
    k.label(pre + "_nnd")
    k("v_mov_b32 %s, %s" % (v(NS + 1), v(NQ)))
    k("s_lshl_b32 %s, %s, 8" % (s(S_T), s(S_W)))
    k("s_add_u32 %s, %s, %d" % (s(S_T), s(S_T), L_PART))
    k("v_lshl_add_u32 v3, v1, 3, %s" % s(S_T))
    k("ds_write_b64 v3, %s" % v(NS, 2))
    k("s_waitcnt lgkmcnt(0)")
    k("s_barrier")
    if "p3" in OPT:
        prof_mark(k, 4)
    k("s_and_b32 %s, %s, 1" % (s(S_T), s(S_W)))
    k("s_lshl_b32 %s, %s, 8" % (s(S_T), s(S_T)))
    k("s_add_u32 %s, %s, %d" % (s(S_T), s(S_T), L_PART))
    k("v_lshl_add_u32 v3, v1, 3, %s" % s(S_T))
    PT = NT + 16
    for q in range(4):
        k("ds_read_b64 %s, v3 offset:%d" % (v(PT + 2 * q, 2), q * 512))
    k("s_waitcnt lgkmcnt(0)")
    k("v_add_f32 %s, %s, %s" % (v(PT), v(PT), v(PT + 2)))
    k("v_add_f32 %s, %s, %s" % (v(PT + 1), v(PT + 1), v(PT + 3)))
    k("v_add_f32 %s, %s, %s" % (v(PT + 4), v(PT + 4), v(PT + 6)))
    k("v_add_f32 %s, %s, %s" % (v(PT + 5), v(PT + 5), v(PT + 7)))
    k("v_add_f32 %s, %s, %s" % (v(NS), v(PT), v(PT + 4)))
    k("v_add_f32 %s, %s, %s" % (v(NQ), v(PT + 1), v(PT + 5)))
    k("v_mul_f32 %s, 0x%x, %s" % (v(NS), f2u(1.0 / 512), v(NS)))
    k("v_mul_f32 %s, 0x%x, %s" % (v(NQ), f2u(1.0 / 512), v(NQ)))
    k("v_fma_f32 %s, -%s, %s, %s" % (v(NQ), v(NS), v(NS), v(NQ)))
    k("v_max_f32 %s, 0, %s" % (v(NQ), v(NQ)))
    k("v_add_f32 %s, 0x%x, %s" % (v(NQ), f2u(1e-5), v(NQ)))
    k("v_rsq_f32 %s, %s" % (v(NQ), v(NQ)))
    MK, TP = NT + 24, NT + 26
    k("v_mov_b32 %s, 0xffff0000" % v(MK))
    k("v_mul_f32 %s, %s, %s" % (v(NS), v(NS), v(NQ)))
    k("v_mov_b32 %s, %s" % (v(NQ + 1), v(NQ)))
    k("v_sub_f32 %s, 0, %s" % (v(NS), v(NS)))
    k("v_mov_b32 %s, %s" % (v(NS + 1), v(NS)))
    for i in range(8):
        for r in range(4):
            x = NX + 4 * i + r
            t = TP + 2 * (r & 1)
            k("v_lshlrev_b32 %s, 16, %s" % (v(t), v(x)))
            k("v_and_b32 %s, %s, %s" % (v(t + 1), v(MK), v(x)))
            if r > 0:
                tp = TP + 2 * ((r - 1) & 1)
                k("v_cvt_pk_bf16_f32 %s, %s, %s" % (v(x - 1), v(tp), v(tp + 1)))
            k("v_pk_fma_f32 %s, %s, %s, %s" % (v(t, 2), v(t, 2), v(NQ, 2), v(NS, 2)))
        tp = TP + 2
        k("v_cvt_pk_bf16_f32 %s, %s, %s" % (v(NX + 4 * i + 3), v(tp), v(tp + 1)))
        k("ds_write_b128 %s, %s" % (v(AD + i), v(NX + 4 * i, 4)))
    if "p3" in OPT:
        prof_mark(k, 5)
    if "xn" in OPT:
        k("s_lshr_b32 %s, %s, 1" % (s(S_T), s(S_CT)))
        k("s_lshr_b32 %s, %s, 1" % (s(S_T2), s(S_W)))
        k("s_cmp_eq_u32 %s, %s" % (s(S_T), s(S_T2)))
        k("s_cbranch_scc0 %s_noxn%s" % (pre, ""))
        k("s_and_b32 %s, %s, 1" % (s(S_T), s(S_W)))
        k("s_lshl_b32 %s, %s, 1" % (s(S_T2), s(S_RB)))
        k("s_add_u32 %s, %s, %s" % (s(S_T), s(S_T), s(S_T2)))
        k("s_lshl_b32 %s, %s, 15" % (s(S_T), s(S_T)))
        k("s_lshl_b32 %s, %s, 12" % (s(S_T2), s(S_CT)))
        k("s_add_u32 %s, %s, %s" % (s(S_T), s(S_T), s(S_T2)))
        k("s_add_u32 %s, %s, 0x%x" % (s(S_T), s(S_T), WS_XN))
        k("v_lshlrev_b32 v3, 4, v0")
        k("s_bitcmp1_b32 %s, 0" % s(S_CT))
        k("s_cbranch_scc1 %s_xnhi%s" % (pre, ""))
        for i in range(4):
            k("buffer_store_dwordx4 %s, v3, %s, %s offen offset:%d" % (v(NX + 4 * i, 4), s(S_OD, 4), s(S_T), 1024 * i))
        k("s_branch %s_noxn%s" % (pre, ""))
        k.label("%s_xnhi%s" % (pre, ""))
        for i in range(4):
            k("buffer_store_dwordx4 %s, v3, %s, %s offen offset:%d" % (v(NX + 16 + 4 * i, 4), s(S_OD, 4), s(S_T), 1024 * i))
        k.label("%s_noxn%s" % (pre, ""))
    k("s_waitcnt lgkmcnt(0)")


def next_slot(k, r):
    k("s_add_u32 %s, %s, %d" % (s(r), s(r), SLOT))
    k("s_cmp_ge_u32 %s, %d" % (s(r), SLOTE))
    k("s_cselect_b32 %s, %d, %s" % (s(r), SLOT0, s(r)))


def wfrag_addr(k):
    t = ACC
    r, b, h, g, x, y = t, t + 1, t + 2, t + 3, t + 4, t + 5
    k("s_lshr_b32 %s, %s, 1" % (s(S_T), s(S_W)))
    k("v_bfe_u32 %s, v0, 2, 2" % v(r))
    k("v_and_b32 %s, 3, v0" % v(b))
    k("v_bfe_u32 %s, v0, 4, 1" % v(h))
    k("v_lshl_add_u32 %s, %s, 2, %s" % (v(b), v(h), v(b)))
    k("v_and_b32 %s, 1, %s" % (v(h), v(b)))
    k("v_lshrrev_b32 %s, 1, %s" % (v(g), v(b)))
    k("v_lshl_add_u32 %s, v2, 3, %s" % (v(x), v(r)))
    k("v_lshl_add_u32 %s, %s, 2, %s" % (v(b), v(h), v(g)))
    k("v_mul_u32_u24 %s, 384, %s" % (v(y), v(x)))
    k("v_lshl_add_u32 %s, %s, 3, %s" % (v(y), v(b), v(y)))
    k("v_lshrrev_b32 %s, 1, %s" % (v(b), v(r)))
    k("v_xor_b32 %s, %s, %s" % (v(b), s(S_T), v(b)))
    k("v_lshl_add_u32 %s, %s, 6, %s" % (v(VWQ), v(b), v(y)))
    k("v_lshrrev_b32 %s, 1, %s" % (v(b), v(g)))
    k("v_and_b32 %s, 1, %s" % (v(g), v(g)))
    k("v_lshl_add_u32 %s, %s, 1, %s" % (v(g), v(h), v(g)))
    k("v_lshl_add_u32 %s, %s, 2, %s" % (v(b), v(b), v(g)))
    k("v_lshlrev_b32 %s, 9, %s" % (v(y), v(x)))
    k("v_lshl_add_u32 %s, %s, 3, %s" % (v(y), v(b), v(y)))
    k("s_lshl_b32 %s, %s, 8" % (s(S_T), s(S_T)))
    k("v_add_u32 %s, %s, %s" % (v(y), s(S_T), v(y)))
    for ft in range(4):
        k("v_xor_b32 %s, %d, %s" % (v(b), ft, v(r)))
        k("v_lshl_add_u32 %s, %s, 6, %s" % (v(VWF + ft), v(b), v(y)))


def compute_phase(k, pre, F):
    q = F == 3
    RB = 384 if q else 512
    NA = 1 if q else 4
    base = VWQ if q else VWF
    p = pre + ("Q" if q else "F")

    def wa(par, ft):
        return VW2 + 4 * par + (0 if q else ft)

    def slot_ops(par):
        return ["v_add_u32 %s, %s, %s" % (v(VW2 + 4 * par + j), s(S_SLOT), v(base + j)) for j in range(NA)]

    def x_ops(st):
        return ["v_xor_b32 %s, %s, %s" % (v(VX), s(S_U), v(VA0))] if st == 0 else ["v_xor_b32 %s, 32, %s" % (v(VX), v(VX))]

    def u_ops():
        return ["s_lshl_b32 %s, %s, 6" % (s(S_U), s(S_KC))]

    def kc_next():
        return ["s_add_u32 %s, %s, 1" % (s(S_KC), s(S_KC)), "s_and_b32 %s, %s, 15" % (s(S_KC), s(S_KC))]

    def rd_x(buf):
        return ["ds_read_b128 %s, %s" % (v(XF[buf], 4), v(VX))]

    def rd_w(par, st, buf, ft):
        off = st * 16 * RB + (ft * 128 if q else 0)
        return ["ds_read_b64_tr_b16 %s, %s offset:%d" % (v(WF[buf] + 4 * ft + 2 * u, 2), v(wa(par, ft)), off + u * 4 * RB) for u in range(2)]

    def mfma(buf, ft):
        d = v(ACC + 16 * ft, 16)
        if q and ft == 2:
            k("v_mfma_f32_32x32x16_bf16 %s, %s, %s, %s" % (d, v(XF[buf], 4), v(WF[buf] + 4 * ft, 4), d))
        else:
            k("v_mfma_f32_32x32x16_bf16 %s, %s, %s, %s" % (d, v(WF[buf] + 4 * ft, 4), v(XF[buf], 4), d))

    k("s_mov_b32 %s, %s" % (s(S_KC), s(S_ROT)))
    for ins in u_ops() + slot_ops(0) + x_ops(0) + rd_x(0) + sum((rd_w(0, 0, 0, ft) for ft in range(F)), []) + x_ops(1):
        k(ins)
    k("s_mov_b32 %s, 0" % s(S_C))
    k(".p2align 3")
    k.label(p + "_loop")
    VXN = VX + 0
    for par in range(2):
        for st in range(2):
            b, nb = st, 1 - st
            npar = par if st == 0 else 1 - par
            for ft in range(F):
                newer = 2 * (F - 1 - ft) + (0 if ft == 0 else 1 + 2 * ft)
                k("s_waitcnt lgkmcnt(%d)" % newer)
                mfma(b, ft)
                if ft == 0:
                    if st == 1:
                        k("s_barrier")
                    for ins in rd_x(nb):
                        k(ins)
                for ins in rd_w(npar, 1 - st, nb, ft):
                    k(ins)
                if ft == 0:
                    if st == 0:
                        for ins in kc_next() + u_ops() + x_ops(0):
                            k(ins)
                    else:
                        for ins in x_ops(1):
                            k(ins)
                if st == 0 and ft == 1:
                    next_slot(k, S_SLOT)
                if st == 0 and ft == F - 1:
                    for ins in slot_ops(1 - par):
                        k(ins)
    k("s_add_u32 %s, %s, 1" % (s(S_C), s(S_C)))
    k("s_cmp_lt_u32 %s, 8" % s(S_C))
    k("s_cbranch_scc1 %s_loop" % p)
    k("s_waitcnt lgkmcnt(0)")


def epilogue_q(k):
    cq = 0.25 * LOG2E
    a1, a2, a3, t1, t2 = 12, 13, 14, 15, 16
    k("s_lshl_b32 %s, %s, 1" % (s(S_T2), s(S_RB)))
    k("s_and_b32 %s, %s, 1" % (s(S_T), s(S_W)))
    k("s_add_u32 %s, %s, %s" % (s(S_T2), s(S_T2), s(S_T)))
    k("s_lshl_b32 %s, %s, 2" % (s(S_T3), s(S_CT)))
    k("s_and_b32 %s, %s, 2" % (s(S_T), s(S_W)))
    k("s_add_u32 %s, %s, %s" % (s(S_T3), s(S_T3), s(S_T)))
    k("v_add_u32 %s, %s, v2" % (v(t1), s(S_T3)))
    k("v_lshlrev_b32 %s, 4, v1" % v(t2))
    k("v_lshl_add_u32 %s, %s, 16, %s" % (v(a1), v(t1), v(t2)))
    k("s_lshl_b32 %s, %s, 10" % (s(S_T), s(S_T2)))
    k("v_add_u32 %s, %s, %s" % (v(a1), s(S_T), v(a1)))
    k("v_lshl_add_u32 %s, %s, 17, %s" % (v(a2), v(t1), v(t2)))
    k("s_lshl_b32 %s, %s, 11" % (s(S_T), s(S_T2)))
    k("s_add_u32 %s, %s, 0x%x" % (s(S_T), s(S_T), WS_KV))
    k("v_add_u32 %s, %s, %s" % (v(a2), s(S_T), v(a2)))
    k("v_bfe_u32 %s, v1, 2, 1" % v(t1))
    k("v_lshrrev_b32 %s, 3, v1" % v(t2))
    k("v_and_b32 %s, 3, v1" % v(a3))
    k("v_and_b32 v17, 1, %s" % v(t2))
    k("v_lshrrev_b32 %s, 1, %s" % (v(t2), v(t2)))
    k("v_lshl_add_u32 %s, %s, 2, %s" % (v(a3), v(t2), v(a3)))
    k("v_lshl_add_u32 %s, v17, 3, %s" % (v(a3), v(a3)))
    k("v_lshlrev_b32 %s, 4, %s" % (v(a3), v(a3)))
    k("v_add_u32 %s, %s, %s" % (v(t1), s(S_T3), v(t1)))
    k("v_lshl_add_u32 %s, %s, 17, %s" % (v(a3), v(t1), v(a3)))
    k("v_lshl_add_u32 %s, v2, 8, %s" % (v(a3), v(a3)))
    k("s_add_u32 %s, %s, 1024" % (s(S_T), s(S_T)))
    k("v_add_u32 %s, %s, %s" % (v(a3), s(S_T), v(a3)))
    sc = " sc1" if "sc1" in OPT else ""
    for ft, dst in ((1, a2), (2, a3), (0, a1)):
        A = ACC + 16 * ft
        if ft == 0:
            for r in range(16):
                k("v_mul_f32 %s, 0x%x, %s" % (v(A + r), f2u(cq), v(A + r)))
        for r in range(8):
            k("v_cvt_pk_bf16_f32 %s, %s, %s" % (v(A + r), v(A + 2 * r), v(A + 2 * r + 1)))
        k("buffer_store_dwordx4 %s, %s, %s, 0 offen%s" % (v(A, 4), v(dst), s(S_OD, 4), sc))
        k("buffer_store_dwordx4 %s, %s, %s, 0 offen offset:512%s" % (v(A + 4, 4), v(dst), s(S_OD, 4), sc))


def epilogue_f(k):
    a1 = 12
    k("s_lshl_b32 %s, %s, 1" % (s(S_T2), s(S_RB)))
    k("s_and_b32 %s, %s, 1" % (s(S_T), s(S_W)))
    k("s_add_u32 %s, %s, %s" % (s(S_T2), s(S_T2), s(S_T)))
    k("s_mul_i32 %s, %s, %d" % (s(S_T), s(S_T2), WS_HO_ROW))
    k("s_lshl_b32 %s, %s, 14" % (s(S_T3), s(S_CT)))
    k("s_add_u32 %s, %s, %s" % (s(S_T), s(S_T), s(S_T3)))
    k("s_lshr_b32 %s, %s, 1" % (s(S_T3), s(S_W)))
    k("s_lshl_b32 %s, %s, 13" % (s(S_T3), s(S_T3)))
    k("s_add_u32 %s, %s, %s" % (s(S_T), s(S_T), s(S_T3)))
    k("s_add_u32 %s, %s, 0x%x" % (s(S_T), s(S_T), WS_HO))
    k("v_lshlrev_b32 %s, 4, v0" % v(a1))
    k("v_add_u32 %s, %s, %s" % (v(a1), s(S_T), v(a1)))
    B = WF[0]
    for ft in range(4):
        A = ACC + 16 * ft
        for r in range(16):
            k("v_max_f32 %s, 0, %s" % (v(B + r), v(A + r)))
        for r in range(16):
            k("v_mul_f32 %s, %s, %s" % (v(A + r), v(A + r), v(B + r)))
        for r in range(8):
            k("v_cvt_pk_bf16_f32 %s, %s, %s" % (v(A + r), v(A + 2 * r), v(A + 2 * r + 1)))
        k("buffer_store_dwordx4 %s, %s, %s, 0 offen offset:%d" % (v(A, 4), v(a1), s(S_OD, 4), 2048 * (ft & 1)))
        k("buffer_store_dwordx4 %s, %s, %s, 0 offen offset:%d" % (v(A + 4, 4), v(a1), s(S_OD, 4), 2048 * (ft & 1) + 1024))
        if ft == 1:
            k("v_add_u32 %s, 4096, %s" % (v(a1), v(a1)))


def compute(k, pre, ffn):
    wfrag_addr(k)
    k("s_and_b32 %s, %s, 1" % (s(S_T2), s(S_W)))
    xaddr_base(k, S_T2)
    for j in range(48):
        k("v_mov_b32 %s, 0" % v(ACC + j))
    k("s_mov_b32 %s, %d" % (s(S_SLOT), SLOT0))
    k("s_setprio 2")
    k("s_barrier")
    if "p3" not in OPT:
        prof_mark(k, 4 if "p2" not in OPT else 2)
    compute_phase(k, pre, 3)
    if "p2" in OPT:
        prof_mark(k, 3)
    k("s_nop 7")
    epilogue_q(k)
    if ffn:
        k("s_cmp_eq_u32 %s, 7" % s(S_CT))
        k("s_cbranch_scc1 %s_cdone" % pre)
        k("s_lshr_b32 %s, %s, 1" % (s(S_T), s(S_W)))
        k("s_lshl_b32 %s, %s, 9" % (s(S_T), s(S_T)))
        k("s_add_u32 %s, %s, %d" % (s(S_T), s(S_T), L_BI))
        k("v_lshl_add_u32 v3, v2, 4, %s" % s(S_T))
        for ft in range(4):
            for g in range(4):
                k("ds_read_b128 %s, v3 offset:%d" % (v(ACC + 16 * ft + 4 * g, 4), ft * 128 + g * 32))
        k("s_waitcnt lgkmcnt(0)")
        if "p2" in OPT:
            prof_mark(k, 4)
        compute_phase(k, pre, 4)
        if "p2" in OPT:
            prof_mark(k, 5)
        k("s_nop 7")
        epilogue_f(k)
        k.label(pre + "_cdone")


class Groups:
    def __init__(self):
        self.groups = [[]]

    def __call__(self, txt):
        self.groups[-1].append(txt)
        if txt.startswith("buffer_load"):
            self.groups.append([])


def issue_chunk(k, q, c):
    n = 3 if q else 4
    wrow = 3072 if q else 3584
    k("s_add_u32 m0, %s, %d" % (s(S_LD3 if q else S_LD4), SLOT0 + (c % R) * SLOT))
    if not q:
        k("s_mov_b32 %s, %s" % (s(S_T2), s(S_WO)))
    else:
        k("s_nop 0")
    for i in range(n):
        k("buffer_load_dwordx4 %s, %s, %s offen lds" % (v(VQO + i) if q else v(VFO + (i & 1)), s(S_WD, 4), s(S_WO if q else S_T2)))
        if i < n - 1:
            k("s_add_u32 m0, m0, 1024")
            if q:
                k("s_nop 0")
            else:
                k("s_add_u32 %s, %s, %d" % (s(S_T2), s(S_T2), 2 * wrow))
    k("s_add_u32 %s, %s, %d" % (s(S_WO), s(S_WO), 32 * wrow))
    k("s_cmp_ge_u32 %s, %s" % (s(S_WO), s(S_WEND)))
    k("s_cselect_b32 %s, %d, 0" % (s(S_T), 512 * wrow))
    k("s_sub_u32 %s, %s, %s" % (s(S_WO), s(S_WO), s(S_T)))


def phase_base(k, q):
    wrow = 3072 if q else 3584
    k("s_mul_i32 %s, %s, %d" % (s(S_WO), s(S_LD), 8 * wrow))
    k("s_lshl_b32 %s, %s, %d" % (s(S_T), s(S_CT), 7 if q else 9))
    k("s_add_u32 %s, %s, %s" % (s(S_WO), s(S_WO), s(S_T)))
    k("s_add_u32 %s, %s, %d" % (s(S_WEND), s(S_WO), 512 * wrow))
    k("s_mul_i32 %s, %s, %d" % (s(S_T), s(S_ROT), 32 * wrow))
    k("s_add_u32 %s, %s, %s" % (s(S_WO), s(S_WO), s(S_T)))


def loader_pre(k, pre, ffn):
    k("s_setprio 3")
    k("s_sub_u32 %s, %s, 4" % (s(S_LD), s(S_W)))
    k("s_mov_b32 %s, 0x%x" % (s(S_T), (2 ** 32 + 383) // 384))
    for j in range(3):
        k("v_lshlrev_b32 v12, 4, v0")
        k("v_add_u32 v12, %d, v12" % (1024 * j))
        k("v_mul_hi_u32 v13, v12, %s" % s(S_T))
        k("v_mul_u32_u24 v14, 384, v13")
        k("v_sub_u32 v14, v12, v14")
        k("v_lshrrev_b32 v15, 7, v14")
        k("v_and_b32 v14, 127, v14")
        k("v_bfe_u32 v12, v13, 1, 1")
        k("v_lshlrev_b32 v12, 6, v12")
        k("v_xor_b32 v14, v14, v12")
        k("v_mul_u32_u24 v13, 3072, v13")
        k("v_lshl_add_u32 v13, v15, 10, v13")
        k("v_add_u32 %s, v13, v14" % v(VQO + j))
    k("s_mul_i32 %s, %s, 3072" % (s(S_LD3), s(S_LD)))
    k("s_lshl_b32 %s, %s, 12" % (s(S_LD4), s(S_LD)))
    phase_base(k, True)
    issue_chunk(k, True, 0)
    issue_chunk(k, True, 1)
    for p_ in range(2):
        k("v_lshrrev_b32 v12, 5, v0")
        k("v_add_u32 v12, %d, v12" % (2 * p_))
        k("v_bfe_u32 v13, v0, 2, 3")
        k("v_xor_b32 v13, v13, v12")
        k("v_lshlrev_b32 v13, 6, v13")
        k("v_and_b32 v14, 3, v0")
        k("v_lshl_add_u32 v13, v14, 4, v13")
        k("v_lshrrev_b32 v12, 5, v0")
        k("v_mul_u32_u24 v12, 3584, v12")
        k("v_add_u32 %s, v12, v13" % v(VFO + p_))
    if ffn:
        k("v_lshrrev_b32 v12, 3, v1")
        k("v_bfe_u32 v13, v1, 2, 1")
        k("v_and_b32 v14, 3, v1")
        k("v_lshrrev_b32 v15, 1, v12")
        k("v_and_b32 v12, 1, v12")
        k("v_lshl_add_u32 v14, v12, 2, v14")
        k("v_lshl_add_u32 v14, v13, 3, v14")
        k("v_lshl_add_u32 v14, v15, 4, v14")
        k("v_lshl_add_u32 v14, v2, 5, v14")
        k("s_lshl_b32 %s, %s, 8" % (s(S_T), s(S_CT)))
        k("s_lshl_b32 %s, %s, 6" % (s(S_T2), s(S_LD)))
        k("s_add_u32 %s, %s, %s" % (s(S_T), s(S_T), s(S_T2)))
        k("v_add_u32 v14, %s, v14" % s(S_T))
        k("v_lshlrev_b32 v14, 1, v14")
        k("v_min_u32 v14, 3582, v14")
        k("global_load_ushort v11, v14, %s" % s(S_B1, 2))


def loader_post(k, pre, ffn):
    k("s_waitcnt vmcnt(%d)" % (6 if ffn else 9))
    if ffn:
        k("v_lshlrev_b32 v11, 16, v11")
        k("s_lshl_b32 %s, %s, 8" % (s(S_T), s(S_LD)))
        k("s_add_u32 %s, %s, %d" % (s(S_T), s(S_T), L_BI))
        k("v_lshl_add_u32 v12, v0, 2, %s" % s(S_T))
        k("ds_write_b32 v12, v11")
        k("s_waitcnt lgkmcnt(0)")
    k("s_barrier")
    k("s_setprio 1")

    def n_of(c):
        return 3 if c < 16 else 4

    def schedule(first, last, total):
        for c in range(first, last + 1):
            younger = sum(n_of(j) for j in (c + 1, c + 2) if j < total)
            k("s_waitcnt vmcnt(%d)" % younger)
            k("s_barrier")
            if c + 3 < total:
                if c + 3 == 16:
                    k.srd(S_WD, S_W1, 512 * 3584)
                    phase_base(k, False)
                issue_chunk(k, c + 3 < 16, c + 3)

    if ffn:
        k("s_cmp_eq_u32 %s, 7" % s(S_CT))
        k("s_cbranch_scc1 %s_lq" % pre)
        schedule(1, 32, 32)
        k("s_branch %s_lend" % pre)
        k.label(pre + "_lq")
    schedule(1, 16, 16)
    k.label(pre + "_lend")


def finish(k):
    k("s_waitcnt vmcnt(0)")
    stamp(k, 1, S_WS, S_W)
    if "p2" not in OPT and "p3" not in OPT:
        prof_mark(k, 5)
    prof_rt(k, 6)
    prof_store(k, S_WS, S_W, 28)
    k("s_endpgm")


def gen(k, name, pre, ffn=True):
    k.kernel_begin(name)
    entry(k, pre, name)
    k("s_branch %s_norm" % pre)
    k.label(pre + "_loader")
    loader_pre(k, pre, ffn)
    k.label(pre + "_norm")
    g = Groups()
    issue_chunk(g, True, 2)
    issue_chunk(g, True, 3)
    normalise(k, pre, g.groups, 6 + (1 if ffn else 0))
    k("s_cmp_ge_u32 %s, 4" % s(S_W))
    k("s_cbranch_scc1 %s_lpost" % pre)
    compute(k, pre, ffn)
    finish(k)
    k.label(pre + "_lpost")
    loader_post(k, pre, ffn)
    finish(k)
    k.label(pre + "_exit")
    k.kernel_end(name, NV, NV)
    return 256, LDS_BYTES
```

```python
NAME = "parallel_sum__softmax_full_mha__dense_activation_squared_relu__prompt"

KA_X, KA_WQKV, KA_WO, KA_BX, KA_W1, KA_B1, KA_W2, KA_B2, KA_OUT, KA_DBG, KA_WS = [8 * i for i in range(11)]

WS_Q = 0
WS_KV = 2 << 20
WS_HO = 8 << 20
WS_HO_ROW = 144 * 1024
WS_END = WS_HO + 64 * WS_HO_ROW

WS_FLAG = 30 << 20
FLAG_O = 0

LOG2E = 1.4426950408889634


def v(i, n=1):
    return "v%d" % i if n == 1 else "v[%d:%d]" % (i, i + n - 1)


def a(i, n=1):
    return "a%d" % i if n == 1 else "a[%d:%d]" % (i, i + n - 1)


def s(i, n=1):
    return "s%d" % i if n == 1 else "s[%d:%d]" % (i, i + n - 1)


class Asm:
    def __init__(self):
        self.lines = []

    def __call__(self, *txt):
        for t in txt:
            for ln in t.split("\n"):
                ln = ln.strip()
                if not ln:
                    continue
                if ln.endswith(":") or ln.startswith("."):
                    self.lines.append(ln)
                else:
                    self.lines.append("  " + ln)

    def label(self, name):
        self.lines.append(name + ":")

    def c(self, txt):
        self.lines.append("  ; " + txt)

    def text(self):
        return "\n".join(self.lines) + "\n"

    def kernel_begin(self, name):
        self(".text", ".globl %s" % name, ".p2align 8", ".type %s,@function" % name)
        self.label(name)

    def kernel_end(self, name, vgpr, accum, sgpr=96):
        self("s_endpgm")
        self('.section .rodata,"a"', ".p2align 6", ".amdhsa_kernel %s" % name)
        self.lines += [
            "  .amdhsa_next_free_vgpr %d" % vgpr,
            "  .amdhsa_next_free_sgpr %d" % sgpr,
            "  .amdhsa_accum_offset %d" % accum,
            "  .amdhsa_group_segment_fixed_size 0",
            "  .amdhsa_kernarg_size 88",
            "  .amdhsa_user_sgpr_count 2",
            "  .amdhsa_user_sgpr_kernarg_segment_ptr 1",
            "  .amdhsa_system_sgpr_workgroup_id_x 1",
            "  .amdhsa_float_denorm_mode_32 3",
            ".end_amdhsa_kernel",
        ]
        self(".text")

    def srd(self, d, base, nbytes):
        self("s_mov_b32 %s, %s" % (s(d), s(base)))
        self("s_and_b32 %s, %s, 0xffff" % (s(d + 1), s(base + 1)))
        self("s_mov_b32 %s, 0x%x" % (s(d + 2), nbytes))
        self("s_mov_b32 %s, 0x20000" % s(d + 3))


HEADER = """\
;
;
"""


def f2u(x):
    import struct
    return struct.unpack("<I", struct.pack("<f", x))[0]


WS_PROF = 200 << 20
PROF = False
NMARK = 8


def prof_mark(k, idx):
    import common
    if common.PROF:
        k("s_memtime s[88:89]")
        k("s_waitcnt lgkmcnt(0)")
        k("s_mov_b32 s%d, s88" % (80 + idx))


def prof_rt(k, idx):
    import common
    if common.PROF:
        k("s_memrealtime s[88:89]")
        k("s_waitcnt lgkmcnt(0)")
        k("s_mov_b32 s%d, s88" % (80 + idx))


def prof_store(k, s_ws, s_wave, vtmp):
    import common
    if common.PROF:
        k("s_lshl_b32 s89, s2, 4")
        k("s_add_u32 s89, s89, %s" % s(s_wave))
        k("s_lshl_b32 s89, s89, 5")
        k("s_add_u32 s89, s89, 0x%x" % WS_PROF)
        for i in range(8):
            k("v_mov_b32 %s, s%d" % (v(vtmp + i), 80 + i))
        k("v_mov_b32 %s, s89" % v(vtmp + 8))
        k("global_store_dwordx4 %s, %s, %s" % (v(vtmp + 8), v(vtmp, 4), s(s_ws, 2)))
        k("global_store_dwordx4 %s, %s, %s offset:16" % (v(vtmp + 8), v(vtmp + 4, 4), s(s_ws, 2)))
        k("s_waitcnt vmcnt(0)")


def prof_start(k):
    import common
    if common.PROF:
        prof_rt(k, 0)
        prof_mark(k, 1)
        for i in range(2, 6):
            k("s_mov_b32 s%d, s81" % (80 + i))


STAMP = False
WS_STAMP = 31 << 20


def stamp(k, idx, s_ws, cond_wave_reg=None):
    import common
    if not common.STAMP:
        return
    lab = "L_stamp_%d" % len(k.lines)
    k("s_memrealtime s[88:89]")
    k("s_waitcnt lgkmcnt(0)")
    if cond_wave_reg is not None:
        k("s_cmp_eq_u32 %s, 0" % s(cond_wave_reg))
        k("s_cbranch_scc0 %s" % lab)
    k("s_lshl_b32 s89, s2, 5")
    k("s_add_u32 s89, s89, 0x%x" % (WS_STAMP + idx * 4))
    k("v_mov_b32 v126, s89")
    k("v_mov_b32 v127, s88")
    k("global_store_dword v126, v127, %s" % s(s_ws, 2))
    k.label(lab)
```

```python
import common
from common import *

OPT = set()
S_X, S_W2, S_WOP, S_B2, S_OUT, S_WS = 4, 6, 8, 10, 12, 14
S_HD, S_WD, S_XD, S_OD, S_BD = 16, 20, 28, 32, 52
S_W, S_RB, S_CB, S_T, S_T2, S_LB = 36, 37, 38, 39, 40, 41
S_XO0, S_XO1, S_WO, S_WRAP, S_LEFT, S_N, S_TRIP, S_RL = 42, 43, 44, 45, 46, 47, 48, 49
S_BX, S_BW, S_BWRAP = 56, 57, 58
D = 4
WSLOT = 2048
RING = D * WSLOT
VWS, VWR, VL16 = 4, 6, 3
XF, WF, ACC = 16, 48, 64
NA, NB = 28, 8


def setup(k):
    k("v_and_b32 v1, 31, v0")
    k("v_lshrrev_b32 v2, 5, v0")
    k("v_lshlrev_b32 v3, 4, v0")
    k("v_lshrrev_b32 v4, 3, v0")
    k("v_bfe_u32 v5, v0, 2, 1")
    k("v_bfe_u32 v6, v0, 4, 1")
    k("v_xor_b32 v5, v5, v6")
    k("v_and_b32 v6, 3, v0")
    k("v_lshlrev_b32 v6, 4, v6")
    k("v_lshl_add_u32 v5, v5, 6, v6")
    k("v_lshl_add_u32 v4, v4, 10, v5")
    k("v_bfe_u32 v12, v0, 2, 2")
    k("v_and_b32 v13, 3, v0")
    k("v_bfe_u32 v14, v0, 4, 1")
    k("v_lshl_add_u32 v13, v14, 2, v13")
    k("v_and_b32 v14, 1, v13")
    k("v_lshrrev_b32 v15, 1, v13")
    k("v_lshrrev_b32 v8, 1, v15")
    k("v_and_b32 v15, 1, v15")
    k("v_lshl_add_u32 v15, v14, 1, v15")
    k("v_lshl_add_u32 v13, v8, 2, v15")
    k("v_lshl_add_u32 v14, v2, 3, v12")
    k("v_lshlrev_b32 v14, 7, v14")
    k("v_lshl_add_u32 v14, v13, 3, v14")
    k("v_lshrrev_b32 v12, 1, v12")
    k("v_add_u32 v14, %s, v14" % s(S_LB))
    for ft in range(2):
        k("v_xor_b32 v15, %d, v12" % ft)
        k("v_lshl_add_u32 %s, v15, 6, v14" % v(VWR + ft))
    for j in range(64):
        k("v_mov_b32 %s, 0" % v(ACC + j))


def seg_params(k, n, kbase, dx, dw, dwrap):
    k("s_mul_i32 %s, %s, %d" % (s(S_T), s(S_RL), n // 4))
    k("s_mul_i32 %s, %s, %d" % (s(S_T2), s(S_CB), n))
    k("s_lshr_b32 %s, %s, 3" % (s(S_T2), s(S_T2)))
    k("s_add_u32 %s, %s, %s" % (s(S_T), s(S_T), s(S_T2)))
    k("s_cmp_ge_u32 %s, %d" % (s(S_T), n))
    k("s_cselect_b32 %s, %d, 0" % (s(S_T2), n))
    k("s_sub_u32 %s, %s, %s" % (s(S_T), s(S_T), s(S_T2)))
    k("s_sub_u32 %s, %d, %s" % (s(dwrap), n, s(S_T)))
    k("s_mul_i32 %s, %s, %d" % (s(S_T2), s(S_W), n))
    k("s_add_u32 %s, %s, %s" % (s(S_T), s(S_T), s(S_T2)))
    k("s_lshl_b32 %s, %s, 14" % (s(dw), s(S_T)))
    k("s_lshl_b32 %s, %s, 7" % (s(S_T2), s(S_CB)))
    k("s_add_u32 %s, %s, %s" % (s(dw), s(dw), s(S_T2)))
    k("s_add_u32 %s, %s, %d" % (s(S_T), s(S_T), kbase))
    k("s_lshl_b32 %s, %s, 10" % (s(S_T), s(S_T)))
    k("s_lshl_b32 %s, %s, 1" % (s(S_T2), s(S_RB)))
    k("s_mul_i32 %s, %s, %d" % (s(dx), s(S_T2), WS_HO_ROW))
    k("s_add_u32 %s, %s, %s" % (s(dx), s(dx), s(S_T)))
    k("s_add_u32 %s, %s, 0x%x" % (s(dx), s(dx), WS_HO))


XSC = [""]


def issue_groups(slot):
    g = []
    g.append(["buffer_load_dwordx4 %s, v3, %s, %s offen%s" % (v(XF + 8 * slot, 4), s(S_HD, 4), s(S_XO0), XSC[0])])
    g.append(["s_add_u32 %s, %s, %d" % (s(S_XO1), s(S_XO0), WS_HO_ROW),
              "buffer_load_dwordx4 %s, v3, %s, %s offen%s" % (v(XF + 8 * slot + 4, 4), s(S_HD, 4), s(S_XO1), XSC[0])])
    g.append(["s_add_u32 m0, %s, %d" % (s(S_LB), slot * WSLOT),
              "s_add_u32 %s, %s, 8192" % (s(S_T), s(S_WO)),
              "buffer_load_dwordx4 v4, %s, %s offen lds" % (s(S_WD, 4), s(S_WO))])
    g.append(["s_add_u32 m0, m0, 1024", "s_nop 0",
              "buffer_load_dwordx4 v4, %s, %s offen lds" % (s(S_WD, 4), s(S_T))])
    return g


def advance(k, lab, two_segments):
    k("s_add_u32 %s, %s, 1024" % (s(S_XO0), s(S_XO0)))
    k("s_add_u32 %s, %s, 16384" % (s(S_WO), s(S_WO)))
    k("s_sub_u32 %s, %s, 1" % (s(S_WRAP), s(S_WRAP)))
    k("s_cmp_lg_u32 %s, 0" % s(S_WRAP))
    k("s_cbranch_scc1 %s_nw" % lab)
    k("s_lshl_b32 %s, %s, 10" % (s(S_T), s(S_N)))
    k("s_sub_u32 %s, %s, %s" % (s(S_XO0), s(S_XO0), s(S_T)))
    k("s_lshl_b32 %s, %s, 14" % (s(S_T), s(S_N)))
    k("s_sub_u32 %s, %s, %s" % (s(S_WO), s(S_WO), s(S_T)))
    k("s_mov_b32 %s, %s" % (s(S_WRAP), s(S_N)))
    k.label(lab + "_nw")
    if two_segments:
        k("s_sub_u32 %s, %s, 1" % (s(S_LEFT), s(S_LEFT)))
        k("s_cmp_lg_u32 %s, 0" % s(S_LEFT))
        k("s_cbranch_scc1 %s_ns" % lab)
        k("s_mov_b32 %s, %s" % (s(S_XO0), s(S_BX)))
        k("s_mov_b32 %s, %s" % (s(S_WO), s(S_BW)))
        k("s_mov_b32 %s, %s" % (s(S_WRAP), s(S_BWRAP)))
        k("s_mov_b32 %s, %d" % (s(S_N), NB))
        k("s_mov_b32 %s, %s" % (s(S_WD), s(S_WOP)))
        k("s_and_b32 %s, %s, 0xffff" % (s(S_WD + 1), s(S_WOP + 1)))
        k("s_mov_b32 %s, 0x%x" % (s(S_WD + 2), 512 * 1024))
        k.label(lab + "_ns")


def rd_w(k, slot, buf):
    for ft in range(2):
        for u in range(2):
            k("ds_read_b64_tr_b16 %s, %s offset:%d" % (v(WF + 8 * buf + 4 * ft + 2 * u, 2), v(VWR + ft), slot * WSLOT + u * 512))


def step(k, d, lab, issue, vm, two_segments, last=False):
    if not last:
        k("s_waitcnt vmcnt(%d)" % vm)
        rd_w(k, (d + 1) % D, (d + 1) & 1)
        k("s_waitcnt lgkmcnt(4)")
    else:
        k("s_waitcnt lgkmcnt(0)")
    g = issue_groups((d + D - 1) % D) if issue else [[], [], [], []]
    j = 0
    for tt in range(2):
        for ft in range(2):
            dd = v(ACC + 16 * (2 * tt + ft), 16)
            k("v_mfma_f32_32x32x16_bf16 %s, %s, %s, %s" % (dd, v(WF + 8 * (d & 1) + 4 * ft, 4), v(XF + 8 * d + 4 * tt, 4), dd))
            for ins in g[j]:
                k(ins)
            j += 1
    if issue:
        advance(k, lab, two_segments)


def stream(k, pre, nsteps, two_segments, prio=None):
    for d in range(D - 1):
        for grp in issue_groups(d):
            for ins in grp:
                k(ins)
        advance(k, "%s_p%d" % (pre, d), two_segments)
    k("s_waitcnt vmcnt(8)")
    if prio:
        k("s_setprio %d" % prio)
    rd_w(k, 0, 0)
    ntrip = nsteps // D - 1
    k("s_mov_b32 %s, 0" % s(S_TRIP))
    k.label(pre + "_loop")
    for d in range(D):
        step(k, d, "%s_l%d" % (pre, d), True, 4, two_segments)
    k("s_add_u32 %s, %s, 1" % (s(S_TRIP), s(S_TRIP)))
    k("s_cmp_lt_u32 %s, %d" % (s(S_TRIP), ntrip))
    k("s_cbranch_scc1 %s_loop" % pre)
    step(k, 0, pre + "_t0", True, 4, two_segments)
    step(k, 1, pre + "_t1", False, 4, two_segments)
    step(k, 2, pre + "_t2", False, 0, two_segments)
    step(k, 3, pre + "_t3", False, 0, two_segments, last=True)


def reduce_and_store(k, pre):
    k("s_nop 15")
    k("s_barrier")
    for q in range(4):
        k("s_cmp_eq_u32 %s, %d" % (s(S_W), q))
        k("s_cbranch_scc1 %s_nw%d" % (pre, q))
        k("s_lshl_b32 %s, %s, 14" % (s(S_T), s(S_W)))
        k("v_add_u32 v8, %s, v3" % s(S_T))
        for g in range(4):
            k("ds_write_b128 v8, %s offset:%d" % (v(ACC + 16 * q + 4 * g, 4), q * 4096 + g * 1024))
        k.label("%s_nw%d" % (pre, q))
    for q in range(4):
        k("s_cmp_lg_u32 %s, %d" % (s(S_W), q))
        k("s_cbranch_scc1 %s_no%d" % (pre, q))
        for r in range(16):
            k("v_mov_b32 %s, %s" % (v(16 + r), v(ACC + 16 * q + r)))
        k.label("%s_no%d" % (pre, q))
    k("s_waitcnt lgkmcnt(0)")
    k("s_barrier")
    k("s_lshl_b32 %s, %s, 12" % (s(S_T2), s(S_W)))
    k("v_add_u32 v8, %s, v3" % s(S_T2))
    first = True
    for dq in range(1, 4):
        k("s_add_u32 %s, %s, %d" % (s(S_T2), s(S_W), dq))
        k("s_and_b32 %s, %s, 3" % (s(S_T2), s(S_T2)))
        k("s_lshl_b32 %s, %s, 14" % (s(S_T2), s(S_T2)))
        k("v_add_u32 v9, %s, v8" % s(S_T2))
        for g in range(4):
            k("ds_read_b128 %s, v9 offset:%d" % (v(64 + 16 * (dq - 1) + 4 * g, 4), g * 1024))
    for dq in range(1, 4):
        k("s_waitcnt lgkmcnt(%d)" % (4 * (3 - dq)))
        for r in range(16):
            k("v_add_f32 %s, %s, %s" % (v(16 + r), v(16 + r), v(64 + 16 * (dq - 1) + r)))


def resid_loads(k):
    k("s_lshr_b32 %s, %s, 1" % (s(S_T), s(S_W)))
    k("s_lshl_b32 %s, %s, 1" % (s(S_T2), s(S_RB)))
    k("s_add_u32 %s, %s, %s" % (s(S_T), s(S_T), s(S_T2)))
    k("s_lshl_b32 %s, %s, 15" % (s(S_T), s(S_T)))
    k("s_and_b32 %s, %s, 1" % (s(S_T2), s(S_W)))
    k("s_lshl_b32 %s, %s, 6" % (s(S_T2), s(S_T2)))
    k("s_lshl_b32 %s, %s, 7" % (s(S_N), s(S_CB)))
    k("s_add_u32 %s, %s, %s" % (s(S_BW), s(S_T2), s(S_N)))
    k("s_add_u32 %s, %s, %s" % (s(S_BX), s(S_T), s(S_BW)))
    k("v_lshlrev_b32 v10, 10, v1")
    k("v_lshl_add_u32 v10, v2, 4, v10")
    k("v_lshlrev_b32 v11, 4, v2")
    k("buffer_load_dwordx4 v[32:35], v10, %s, %s offen" % (s(S_XD, 4), s(S_BX)))
    k("buffer_load_dwordx4 v[36:39], v10, %s, %s offen offset:32" % (s(S_XD, 4), s(S_BX)))
    k("buffer_load_dwordx4 v[40:43], v11, %s, %s offen" % (s(S_BD, 4), s(S_BW)))
    k("buffer_load_dwordx4 v[44:47], v11, %s, %s offen offset:32" % (s(S_BD, 4), s(S_BW)))


def finish_tile(k):
    k("s_waitcnt vmcnt(0)")
    for half in range(2):
        for j in range(4):
            for src in (32, 40):
                r = src + 4 * half + j
                k("v_lshlrev_b32 v12, 16, %s" % v(r))
                k("v_and_b32 v13, 0xffff0000, %s" % v(r))
                k("v_add_f32 %s, %s, v12" % (v(16 + 8 * half + 2 * j), v(16 + 8 * half + 2 * j)))
                k("v_add_f32 %s, %s, v13" % (v(16 + 8 * half + 2 * j + 1), v(16 + 8 * half + 2 * j + 1)))
    for r in range(8):
        k("v_cvt_pk_bf16_f32 %s, %s, %s" % (v(16 + r), v(16 + 2 * r), v(17 + 2 * r)))
    k("buffer_store_dwordx4 v[16:19], v10, %s, %s offen" % (s(S_OD, 4), s(S_BX)))
    k("buffer_store_dwordx4 v[20:23], v10, %s, %s offen offset:32" % (s(S_OD, 4), s(S_BX)))


WS_BASE = 24 << 20


def ids(k, s_id):
    k("s_bfe_u32 %s, %s, 0x20003" % (s(S_RL), s_id))
    k("s_and_b32 %s, %s, 7" % (s(S_RB), s_id))
    k("s_lshl_b32 %s, %s, 2" % (s(S_RB), s(S_RB)))
    k("s_add_u32 %s, %s, %s" % (s(S_RB), s(S_RB), s(S_RL)))
    k("s_lshr_b32 %s, %s, 5" % (s(S_CB), s_id))


def add_resid(k):
    k("s_waitcnt vmcnt(0)")
    for half in range(2):
        for j in range(4):
            for src in (32, 40):
                r = src + 4 * half + j
                k("v_lshlrev_b32 v12, 16, %s" % v(r))
                k("v_and_b32 v13, 0xffff0000, %s" % v(r))
                k("v_add_f32 %s, %s, v12" % (v(16 + 8 * half + 2 * j), v(16 + 8 * half + 2 * j)))
                k("v_add_f32 %s, %s, v13" % (v(16 + 8 * half + 2 * j + 1), v(16 + 8 * half + 2 * j + 1)))


def gen_ffn2_role(k, pre, s_ws_size):
    k("v_lshrrev_b32 v1, 6, v0")
    k("v_and_b32 v0, 63, v0")
    k("v_readfirstlane_b32 %s, v1" % s(S_W))
    for r, off in ((S_WS, KA_WS), (S_W2, KA_W2), (S_X, KA_X), (S_B2, KA_B2)):
        k("s_load_dwordx2 %s, s[0:1], %d" % (s(r, 2), off))
    k("s_sub_u32 s3, s2, 256")
    k("s_cmp_ge_u32 %s, 4" % s(S_W))
    k("s_cbranch_scc1 %s_exit" % pre)
    ids(k, "s3")
    k("s_mul_i32 %s, %s, %d" % (s(S_LB), s(S_W), RING))
    seg_params(k, NA, 0, S_XO0, S_WO, S_WRAP)
    k("s_mov_b32 %s, %d" % (s(S_N), NA))
    setup(k)
    k("s_waitcnt lgkmcnt(0)")
    k.srd(S_HD, S_WS, s_ws_size)
    k.srd(S_WD, S_W2, 1792 * 1024)
    k.srd(S_XD, S_X, 2048 * 1024)
    k.srd(S_BD, S_B2, 1024)
    prof_mark(k, 2)
    stream(k, pre, NA, False, prio=(3 if "gp3" in OPT else (1 if "gp1" in OPT else 0)))
    prof_mark(k, 3)
    resid_loads(k)
    reduce_and_store(k, pre)
    add_resid(k)
    k("s_lshl_b32 %s, s3, 14" % s(S_T))
    k("s_lshl_b32 %s, %s, 12" % (s(S_T2), s(S_W)))
    k("s_add_u32 %s, %s, %s" % (s(S_T), s(S_T), s(S_T2)))
    k("s_add_u32 %s, %s, 0x%x" % (s(S_T), s(S_T), WS_BASE))
    for g in range(4):
        k("buffer_store_dwordx4 %s, v3, %s, %s offen offset:%d" % (v(16 + 4 * g, 4), s(S_HD, 4), s(S_T), 1024 * g))
    if "nopf" not in OPT:
        k("s_load_dwordx2 %s, s[0:1], %d" % (s(S_WOP, 2), KA_WO))
        k("s_waitcnt lgkmcnt(0)")
        k.srd(S_WD, S_WOP, 512 * 1024)
        k("s_lshl_b32 %s, %s, 17" % (s(S_T), s(S_W)))
        k("s_lshl_b32 %s, %s, 7" % (s(S_T2), s(S_CB)))
        k("s_add_u32 %s, %s, %s" % (s(S_T), s(S_T), s(S_T2)))
        for i in range(16):
            k("buffer_load_dwordx4 %s, v4, %s, %s offen" % (v(64 + 4 * i, 4), s(S_WD, 4), s(S_T)))
            k("s_add_u32 %s, %s, 8192" % (s(S_T), s(S_T)))
    k("s_waitcnt vmcnt(0)")
    prof_mark(k, 5)
    prof_rt(k, 6)
    prof_store(k, S_WS, S_W, 24)
    k.label(pre + "_exit")
    k("s_endpgm")


S_DBG = 60


def wait_flags(k, lab, s_off, n):
    k("s_cmp_eq_u32 %s, 0" % s(S_W))
    k("s_cbranch_scc0 %s_go" % lab)
    k("v_min_u32 v8, %d, v0" % (n - 1))
    k("v_lshl_add_u32 v8, v8, 2, %s" % s(s_off))
    k("s_mov_b32 %s, 0" % s(S_TRIP))
    k.label(lab + "_poll")
    k("global_load_dword v9, v8, %s sc1" % s(S_WS, 2))
    k("s_add_u32 %s, %s, 1" % (s(S_TRIP), s(S_TRIP)))
    k("s_waitcnt vmcnt(0)")
    k("v_cmp_eq_u32 vcc, 0, v9")
    k("s_nop 1")
    k("s_cmp_eq_u64 vcc, 0")
    k("s_cbranch_scc1 %s_go" % lab)
    k("s_cmp_eq_u64 vcc, exec")
    k("s_cbranch_scc0 %s_near" % lab)
    k("s_sleep %d" % (24 if "sl24" in OPT else 12))
    k.label(lab + "_near")
    k("s_sleep %d" % (8 if "sn8" in OPT else 3))
    k("s_cmp_lt_u32 %s, 0x40000" % s(S_TRIP))
    k("s_cbranch_scc1 %s_poll" % lab)
    k.label(lab + "_go")
    k("s_barrier")


def wo_tail(k, pre):
    OWN, OTH, XB, WB = 16, 96, 32, 112
    VLO, VHI = 14, 6
    k("s_barrier")
    k.srd(S_WD, S_WOP, 512 * 1024)
    k("s_lshl_b32 %s, %s, 17" % (s(S_T), s(S_W)))
    k("s_lshl_b32 %s, %s, 7" % (s(S_T2), s(S_CB)))
    k("s_add_u32 %s, %s, %s" % (s(S_T), s(S_T), s(S_T2)))
    k("s_lshl_b32 m0, %s, 14" % s(S_W))
    k("s_mov_b32 %s, 16" % s(S_TRIP))
    k.label(pre + "_wst")
    k("buffer_load_dwordx4 v4, %s, %s offen lds" % (s(S_WD, 4), s(S_T)))
    k("s_add_u32 %s, %s, 8192" % (s(S_T), s(S_T)))
    k("s_add_u32 m0, m0, 1024")
    k("s_sub_u32 %s, %s, 1" % (s(S_TRIP), s(S_TRIP)))
    k("s_cmp_lg_u32 %s, 0" % s(S_TRIP))
    k("s_cbranch_scc1 %s_wst" % pre)
    k("s_and_b32 %s, %s, 1" % (s(S_N), s(S_W)))
    k("s_and_b32 %s, %s, 1" % (s(S_WRAP), s(S_CB)))
    k("s_lshl_b32 %s, %s, 3" % (s(S_WRAP), s(S_WRAP)))
    k("v_subrev_u32 v6, %s, v6" % s(S_LB))
    k("v_subrev_u32 v7, %s, v7" % s(S_LB))
    k("s_cmp_eq_u32 %s, 0" % s(S_N))
    k("s_cselect_b64 vcc, -1, 0")
    k("v_cndmask_b32 v12, v7, v6, vcc")
    k("v_cndmask_b32 v13, v6, v7, vcc")
    k("s_lshl_b32 %s, %s, 15" % (s(S_T), s(S_N)))
    k("s_lshl_b32 %s, %s, 11" % (s(S_T2), s(S_WRAP)))
    k("s_add_u32 %s, %s, %s" % (s(S_LEFT), s(S_T), s(S_T2)))
    k("v_add_u32 %s, %s, v12" % (v(VLO), s(S_LEFT)))
    k("v_add_u32 %s, %s, v13" % (v(VLO + 1), s(S_LEFT)))
    k("s_sub_u32 %s, %s, %s" % (s(S_LEFT), s(S_T), s(S_T2)))
    k("s_add_u32 %s, %s, %d" % (s(S_LEFT), s(S_LEFT), 8 * 2048))
    k("v_add_u32 %s, %s, v12" % (v(VHI), s(S_LEFT)))
    k("v_add_u32 %s, %s, v13" % (v(VHI + 1), s(S_LEFT)))
    for r in range(16):
        k("v_mov_b32 %s, 0" % v(OTH + r))
    k("s_lshr_b32 %s, %s, 1" % (s(S_T), s(S_W)))
    k("s_lshl_b32 %s, %s, 1" % (s(S_T2), s(S_RB)))
    k("s_add_u32 %s, %s, %s" % (s(S_T), s(S_T), s(S_T2)))
    k("s_mul_i32 %s, %s, %d" % (s(S_XO0), s(S_T), WS_HO_ROW))
    k("s_lshl_b32 %s, %s, 14" % (s(S_T), s(S_N)))
    k("s_add_u32 %s, %s, %s" % (s(S_XO0), s(S_XO0), s(S_T)))
    k("s_add_u32 %s, %s, 0x%x" % (s(S_XO0), s(S_XO0), WS_HO + 112 * 1024))
    k("s_lshl_b32 %s, %s, 10" % (s(S_T), s(S_WRAP)))
    k("s_add_u32 %s, %s, %s" % (s(S_XO1), s(S_XO0), s(S_T)))
    k("s_sub_u32 %s, %s, %s" % (s(S_XO0), s(S_XO0), s(S_T)))
    k("s_lshr_b32 %s, %s, 2" % (s(S_LEFT), s(S_RB)))
    k("s_lshl_b32 %s, %s, 7" % (s(S_LEFT), s(S_LEFT)))
    k("s_add_u32 %s, %s, 0x%x" % (s(S_LEFT), s(S_LEFT), WS_FLAG + FLAG_O))
    k("s_waitcnt vmcnt(0)")
    k("s_setprio 3")
    wait_flags(k, pre + "_w", S_LEFT, 32)
    prof_mark(k, 4)
    for i in range(16):
        so = S_XO1 if i < 8 else S_XO0
        if i % 4 == 0 and i:
            k("s_add_u32 %s, %s, 4096" % (s(S_XO1), s(S_XO1)) if i < 8 else "s_nop 0")
        k("buffer_load_dwordx4 %s, v3, %s, %s offen offset:%d sc1" % (v(XB + 4 * i, 4), s(S_HD, 4), s(so), (i % 4) * 1024))
        if i == 7:
            k("s_add_u32 %s, %s, 8192" % (s(S_XO0), s(S_XO0)))
        if i == 11:
            k("s_add_u32 %s, %s, 4096" % (s(S_XO0), s(S_XO0)))

    def rd(i):
        base = VLO if i < 8 else VHI
        for j in range(2):
            for u in range(2):
                k("ds_read_b64_tr_b16 %s, %s offset:%d" % (v(WB + 8 * (i & 1) + 4 * j + 2 * u, 2), v(base + j), (i & 7) * 2048 + u * 512))

    rd(0)
    for i in range(16):
        if i < 15:
            rd(i + 1)
        k("s_waitcnt vmcnt(%d) lgkmcnt(%d)" % (15 - i, 4 if i < 15 else 0))
        for j, acc in ((0, OWN), (1, OTH)):
            k("v_mfma_f32_32x32x16_bf16 %s, %s, %s, %s" % (v(acc, 16), v(WB + 8 * (i & 1) + 4 * j, 4), v(XB + 4 * i, 4), v(acc, 16)))
    k("s_barrier")
    k("s_xor_b32 %s, %s, 1" % (s(S_T), s(S_W)))
    k("s_lshl_b32 %s, %s, 12" % (s(S_T), s(S_T)))
    k("v_add_u32 v12, %s, v3" % s(S_T))
    k("s_lshl_b32 %s, %s, 12" % (s(S_T), s(S_W)))
    k("v_add_u32 v13, %s, v3" % s(S_T))
    k("s_nop 7")
    for g in range(4):
        k("ds_write_b128 v12, %s offset:%d" % (v(OTH + 4 * g, 4), g * 1024))
    k("s_waitcnt lgkmcnt(0)")
    k("s_barrier")
    for g in range(4):
        k("ds_read_b128 %s, v13 offset:%d" % (v(XB + 4 * g, 4), g * 1024))
    k("v_lshlrev_b32 v10, 10, v1")
    k("v_lshl_add_u32 v10, v2, 4, v10")
    for g in range(4):
        k("s_waitcnt lgkmcnt(%d)" % (3 - g))
        for r in range(4):
            k("v_add_f32 %s, %s, %s" % (v(OWN + 4 * g + r), v(OWN + 4 * g + r), v(XB + 4 * g + r)))
    for r in range(8):
        k("v_cvt_pk_bf16_f32 %s, %s, %s" % (v(16 + r), v(16 + 2 * r), v(17 + 2 * r)))
    k("buffer_store_dwordx4 v[16:19], v10, %s, %s offen" % (s(S_OD, 4), s(S_BX)))
    k("buffer_store_dwordx4 v[20:23], v10, %s, %s offen offset:32" % (s(S_OD, 4), s(S_BX)))


def gen_g_role(k, pre):
    k("v_lshrrev_b32 v1, 6, v0")
    k("v_and_b32 v0, 63, v0")
    k("v_readfirstlane_b32 %s, v1" % s(S_W))
    for r, off in ((S_WS, KA_WS), (S_W2, KA_W2), (S_WOP, KA_WO), (S_X, KA_X), (S_B2, KA_B2), (S_OUT, KA_OUT)):
        k("s_load_dwordx2 %s, s[0:1], %d" % (s(r, 2), off))
    k("s_sub_u32 s3, s2, 256")
    k("s_cmp_ge_u32 %s, 4" % s(S_W))
    k("s_cbranch_scc1 %s_exit" % pre)
    ids(k, "s3")
    k("s_mul_i32 %s, %s, %d" % (s(S_LB), s(S_W), RING))
    seg_params(k, NA, 0, S_XO0, S_WO, S_WRAP)
    k("s_mov_b32 %s, %d" % (s(S_N), NA))
    setup(k)
    k("s_waitcnt lgkmcnt(0)")
    k.srd(S_HD, S_WS, WS_END)
    k.srd(S_WD, S_W2, 1792 * 1024)
    k.srd(S_XD, S_X, 2048 * 1024)
    k.srd(S_OD, S_OUT, 2048 * 1024)
    k.srd(S_BD, S_B2, 1024)
    prof_mark(k, 2)
    stream(k, pre + "a", NA, False)
    prof_mark(k, 3)
    resid_loads(k)
    reduce_and_store(k, pre)
    add_resid(k)
    wo_tail(k, pre)
    k("s_waitcnt vmcnt(0)")
    if common.STAMP:
        k("s_cmp_eq_u32 s2, 256")
        k("s_cbranch_scc0 %s_ng" % pre)
        k("s_cmp_eq_u32 %s, 0" % s(S_W))
        k("s_cbranch_scc0 %s_ng" % pre)
        k("s_load_dwordx2 s[60:61], s[0:1], %d" % KA_DBG)
        k("s_memrealtime s[88:89]")
        k("s_waitcnt lgkmcnt(0)")
        k("v_lshrrev_b32 v8, 2, v0")
        k("v_mul_u32_u24 v8, %d, v8" % (65 * 32))
        k("v_and_b32 v9, 3, v0")
        k("v_lshl_add_u32 v8, v9, 2, v8")
        k("v_add_u32 v8, 0x%x, v8" % WS_STAMP)
        k("v_cmp_gt_u32 vcc, 15, v0")
        k("s_and_saveexec_b64 s[62:63], vcc")
        k("global_load_dword v9, v8, %s sc1" % s(S_WS, 2))
        k("s_waitcnt vmcnt(0)")
        k("s_mov_b64 exec, s[62:63]")
        k("v_mov_b32 v10, s88")
        k("v_cmp_eq_u32 vcc, 15, v0")
        k("s_nop 1")
        k("v_cndmask_b32 v9, v9, v10, vcc")
        k("v_lshlrev_b32 v8, 2, v0")
        k("v_cmp_gt_u32 vcc, 16, v0")
        k("s_and_saveexec_b64 s[62:63], vcc")
        k("global_store_dword v8, v9, s[60:61]")
        k("s_waitcnt vmcnt(0)")
        k("s_mov_b64 exec, s[62:63]")
        k.label(pre + "_ng")
    prof_mark(k, 5)
    prof_rt(k, 6)
    prof_store(k, S_WS, S_W, 24)
    k.label(pre + "_exit")
    k("s_endpgm")


def gen_wo(k, name, pre):
    k.kernel_begin(name)
    k("s_cmp_ge_u32 s2, 256")
    k("s_cbranch_scc1 %s_exit" % pre)
    prof_start(k)
    for r, off in ((S_WS, KA_WS), (S_WOP, KA_WO), (S_OUT, KA_OUT)):
        k("s_load_dwordx2 %s, s[0:1], %d" % (s(r, 2), off))
    ids(k, "s2")
    k("v_lshrrev_b32 v1, 6, v0")
    k("v_and_b32 v0, 63, v0")
    k("v_readfirstlane_b32 %s, v1" % s(S_W))
    k("s_nop 0")
    k("s_mul_i32 %s, %s, %d" % (s(S_LB), s(S_W), RING))
    seg_params(k, NB, 112, S_XO0, S_WO, S_WRAP)
    k("s_mov_b32 %s, %d" % (s(S_N), NB))
    setup(k)
    k("s_waitcnt lgkmcnt(0)")
    k.srd(S_HD, S_WS, WS_BASE + (4 << 20))
    k.srd(S_WD, S_WOP, 512 * 1024)
    k.srd(S_OD, S_OUT, 2048 * 1024)
    k("s_lshl_b32 %s, s2, 14" % s(S_T))
    k("s_lshl_b32 %s, %s, 12" % (s(S_T2), s(S_W)))
    k("s_add_u32 %s, %s, %s" % (s(S_T), s(S_T), s(S_T2)))
    k("s_add_u32 %s, %s, 0x%x" % (s(S_T), s(S_T), WS_BASE))
    for q in range(4):
        k("s_cmp_lg_u32 %s, %d" % (s(S_W), q))
        k("s_cbranch_scc1 %s_nb%d" % (pre, q))
        for g in range(4):
            k("buffer_load_dwordx4 %s, v3, %s, %s offen offset:%d" % (v(ACC + 16 * q + 4 * g, 4), s(S_HD, 4), s(S_T), 1024 * g))
        k.label("%s_nb%d" % (pre, q))
    prof_mark(k, 2)
    stream(k, pre, NB, False)
    prof_mark(k, 3)
    reduce_and_store(k, pre)
    k("s_lshr_b32 %s, %s, 1" % (s(S_T), s(S_W)))
    k("s_lshl_b32 %s, %s, 1" % (s(S_T2), s(S_RB)))
    k("s_add_u32 %s, %s, %s" % (s(S_T), s(S_T), s(S_T2)))
    k("s_lshl_b32 %s, %s, 15" % (s(S_T), s(S_T)))
    k("s_and_b32 %s, %s, 1" % (s(S_T2), s(S_W)))
    k("s_lshl_b32 %s, %s, 6" % (s(S_T2), s(S_T2)))
    k("s_add_u32 %s, %s, %s" % (s(S_T), s(S_T), s(S_T2)))
    k("s_lshl_b32 %s, %s, 7" % (s(S_T2), s(S_CB)))
    k("s_add_u32 %s, %s, %s" % (s(S_T), s(S_T), s(S_T2)))
    k("v_lshlrev_b32 v10, 10, v1")
    k("v_lshl_add_u32 v10, v2, 4, v10")
    for r in range(8):
        k("v_cvt_pk_bf16_f32 %s, %s, %s" % (v(16 + r), v(16 + 2 * r), v(17 + 2 * r)))
    k("buffer_store_dwordx4 v[16:19], v10, %s, %s offen" % (s(S_OD, 4), s(S_T)))
    k("buffer_store_dwordx4 v[20:23], v10, %s, %s offen offset:32" % (s(S_OD, 4), s(S_T)))
    k("s_waitcnt vmcnt(0)")
    prof_mark(k, 5)
    prof_rt(k, 6)
    prof_store(k, S_WS, S_W, 24)
    k.label(pre + "_exit")
    k.kernel_end(name, 128, 128)
    return 256, 65536


def gen_final(k, name, pre):
    k.kernel_begin(name)
    k("s_cmp_ge_u32 s2, 256")
    k("s_cbranch_scc1 %s_exit" % pre)
    prof_start(k)
    for r, off in ((S_WS, KA_WS), (S_W2, KA_W2), (S_WOP, KA_WO), (S_X, KA_X), (S_B2, KA_B2), (S_OUT, KA_OUT)):
        k("s_load_dwordx2 %s, s[0:1], %d" % (s(r, 2), off))
    k("s_bfe_u32 %s, s2, 0x20003" % s(S_RL))
    k("s_and_b32 %s, s2, 7" % s(S_RB))
    k("s_lshl_b32 %s, %s, 2" % (s(S_RB), s(S_RB)))
    k("s_add_u32 %s, %s, %s" % (s(S_RB), s(S_RB), s(S_RL)))
    k("s_lshr_b32 %s, s2, 5" % s(S_CB))
    k("v_lshrrev_b32 v1, 6, v0")
    k("v_and_b32 v0, 63, v0")
    k("v_readfirstlane_b32 %s, v1" % s(S_W))
    k("s_nop 0")
    k("s_mul_i32 %s, %s, %d" % (s(S_LB), s(S_W), RING))
    seg_params(k, NA, 0, S_XO0, S_WO, S_WRAP)
    seg_params(k, NB, 112, S_BX, S_BW, S_BWRAP)
    k("s_mov_b32 %s, %d" % (s(S_N), NA))
    k("s_mov_b32 %s, %d" % (s(S_LEFT), NA))
    setup(k)
    k("s_waitcnt lgkmcnt(0)")
    k.srd(S_HD, S_WS, WS_END)
    k.srd(S_WD, S_W2, 1792 * 1024)
    k.srd(S_XD, S_X, 2048 * 1024)
    k.srd(S_OD, S_OUT, 2048 * 1024)
    k.srd(S_BD, S_B2, 1024)
    prof_mark(k, 2)
    stream(k, pre, NA + NB, True)
    prof_mark(k, 3)
    resid_loads(k)
    reduce_and_store(k, pre)
    finish_tile(k)
    k("s_waitcnt vmcnt(0)")
    prof_mark(k, 5)
    prof_rt(k, 6)
    prof_store(k, S_WS, S_W, 24)
    k.label(pre + "_exit")
    k.kernel_end(name, 128, 128)
    return 256, 65536
```

```python
import common
from common import *

OPT = set()
XBYTES = 65536
L_PART = XBYTES
L_BI = L_PART + 2048
SLOT0 = XBYTES + 3072
SLOT = 16384
R = 5
SLOTE = SLOT0 + R * SLOT
LDS_BYTES = SLOTE
WS_XN = 20 << 20

S_X, S_WQ, S_WS, S_B1, S_W1 = 4, 6, 8, 10, 40
S_XD, S_WD, S_OD = 12, 16, 20
S_W, S_RB, S_CT, S_T, S_T2, S_C, S_SLOT, S_WO, S_LD = 24, 25, 26, 27, 28, 29, 30, 32, 33
S_RSLOT, S_T3, S_ROT, S_CK, S_KC, S_U, S_NCH, S_WEND, S_LD3, S_LD4 = 35, 36, 37, 38, 39, 42, 43, 44, 45, 46

VA0, VXA, NX, NS, NQ, NT = 4, 5, 16, 48, 50, 52
VWQ, VWF = 6, 7
VW2 = 11
VX = 19
XF = [20, 24]
WF = [28, 44]
ACC = 60
NV = 128
VQO, VFO = 6, 9


def entry(k, pre, name):
    k("s_cmp_ge_u32 s2, 256")
    k("s_cbranch_scc1 %s_exit" % pre)
    prof_start(k)
    k("s_load_dwordx2 %s, s[0:1], %d" % (s(S_X, 2), KA_X))
    k("s_load_dwordx2 %s, s[0:1], %d" % (s(S_WQ, 2), KA_WQKV))
    k("s_load_dwordx2 %s, s[0:1], %d" % (s(S_W1, 2), KA_W1))
    k("s_load_dwordx2 %s, s[0:1], %d" % (s(S_WS, 2), KA_WS))
    k("s_load_dwordx2 %s, s[0:1], %d" % (s(S_B1, 2), KA_B1))
    k("v_lshrrev_b32 v1, 6, v0")
    k("v_and_b32 v0, 63, v0")
    k("v_readfirstlane_b32 %s, v1" % s(S_W))
    if "nopf" not in OPT:
        k("s_getpc_b64 s[50:51]")
        k.label(pre + "_pc")
        k("s_sub_u32 s50, s50, %s_pc-%s" % (pre, name))
        k("s_subb_u32 s51, s51, 0")
        k("s_lshr_b32 s52, s2, 3")
        k("s_lshl_b32 s52, s52, 10")
        k("v_lshl_add_u32 v3, v0, 4, s52")
        k("v_cmp_gt_u32 vcc, L_text_end-%s-16, v3" % name)
        k("s_cmp_eq_u32 %s, 7" % s(S_W))
        k("s_cselect_b64 s[52:53], vcc, 0")
        k("s_and_saveexec_b64 s[54:55], s[52:53]")
        k("s_cbranch_execz %s_npf" % pre)
        k("global_load_dwordx4 v[112:115], v3, s[50:51]")
        k.label(pre + "_npf")
        k("s_mov_b64 exec, s[54:55]")
    k("s_lshr_b32 %s, s2, 3" % s(S_T))
    k("s_and_b32 %s, %s, 7" % (s(S_ROT), s(S_T)))
    k("s_and_b32 %s, s2, 3" % s(S_RB))
    k("s_lshl_b32 %s, %s, 3" % (s(S_RB), s(S_RB)))
    k("s_add_u32 %s, %s, %s" % (s(S_RB), s(S_RB), s(S_ROT)))
    k("s_lshr_b32 %s, %s, 3" % (s(S_T), s(S_T)))
    k("s_bfe_u32 %s, s2, 0x10002" % s(S_CT))
    k("s_lshl_b32 %s, %s, 2" % (s(S_CT), s(S_CT)))
    k("s_add_u32 %s, %s, %s" % (s(S_CT), s(S_CT), s(S_T)))
    k("s_lshl_b32 %s, %s, 1" % (s(S_ROT), s(S_ROT)))
    k("s_lshl_b32 %s, %s, 1" % (s(S_T), s(S_T)))
    k("s_add_u32 %s, %s, %s" % (s(S_T), s(S_T), s(S_W)))
    k("s_and_b32 %s, %s, 7" % (s(S_T), s(S_T)))
    k("s_lshl_b32 %s, %s, 3" % (s(S_T3), s(S_T)))
    k("v_lshlrev_b32 v3, 4, v0")
    k("s_lshl_b32 %s, %s, 6" % (s(S_T), s(S_RB)))
    k("s_add_u32 %s, %s, %s" % (s(S_T), s(S_T), s(S_T3)))
    k("s_lshl_b32 %s, %s, 10" % (s(S_T2), s(S_T)))
    k("s_lshl_b32 m0, %s, 10" % s(S_T3))
    k("s_and_b32 %s, %s, 8" % (s(S_T3), s(S_T3)))
    k("s_waitcnt lgkmcnt(0)")
    stamp(k, 0, S_WS, S_W)
    k.srd(S_XD, S_X, 2048 * 1024)
    for i in range(8):
        k("s_add_u32 %s, %s, %d" % (s(S_T), s(S_T3), i))
        k("s_lshl_b32 %s, %s, 4" % (s(S_T), s(S_T)))
        k("v_xor_b32 v4, %s, v3" % s(S_T))
        k("buffer_load_dwordx4 v4, %s, %s offen lds" % (s(S_XD, 4), s(S_T2)))
        if i < 7:
            k("s_add_u32 m0, m0, 1024")
            k("s_add_u32 %s, %s, 1024" % (s(S_T2), s(S_T2)))
    if "p2" not in OPT and "p3" not in OPT:
        prof_mark(k, 2)
    k("v_and_b32 v1, 31, v0")
    k("v_lshrrev_b32 v2, 5, v0")
    k.srd(S_OD, S_WS, WS_END if "xn" not in OPT else WS_XN + (2 << 20))
    k.srd(S_WD, S_WQ, 512 * 3072)
    for r in range(6, 11):
        k("v_mov_b32 %s, 0" % v(r))
    k("s_cmp_lt_u32 s2, 32")
    k("s_cbranch_scc0 %s_nz" % pre)
    k("s_cmp_eq_u32 %s, 0" % s(S_W))
    k("s_cbranch_scc0 %s_nz" % pre)
    k("s_lshl_b32 %s, s2, 8" % s(S_T))
    k("s_add_u32 %s, %s, 0x%x" % (s(S_T), s(S_T), WS_FLAG))
    k("v_lshl_add_u32 v4, v0, 2, %s" % s(S_T))
    k("v_mov_b32 v5, 0")
    k("global_store_dword v4, v5, %s" % s(S_WS, 2))
    k.label(pre + "_nz")
    k("s_cmp_ge_u32 %s, 4" % s(S_W))
    k("s_cbranch_scc1 %s_loader" % pre)


def xaddr_base(k, s_tile):
    k("s_lshl_b32 %s, %s, 15" % (s(S_T), s(s_tile)))
    k("v_and_b32 v3, 15, v1")
    k("v_xor_b32 v3, v3, v2")
    k("v_lshlrev_b32 v3, 4, v3")
    k("v_lshl_add_u32 v3, v1, 10, v3")
    k("v_add_u32 %s, %s, v3" % (v(VA0), s(S_T)))


def normalise(k, pre, dma, younger):
    k("s_and_b32 %s, %s, 1" % (s(S_T2), s(S_W)))
    xaddr_base(k, S_T2)
    k("s_lshr_b32 %s, %s, 1" % (s(S_T3), s(S_W)))
    k("s_lshl_b32 %s, %s, 8" % (s(S_U), s(S_T3)))
    k("v_xor_b32 %s, %s, %s" % (v(VXA), s(S_U), v(VA0)))
    k("s_cmp_ge_u32 %s, 4" % s(S_W))
    k("s_cbranch_scc1 %s_nwl" % pre)
    k("s_waitcnt vmcnt(0)")
    k.label(pre + "_nwl")
    k("s_waitcnt vmcnt(%d)" % younger)
    k("s_barrier")
    if "p2" not in OPT:
        prof_mark(k, 3)
    for i in range(8):
        k("v_xor_b32 %s, %d, %s" % (v(NT + 8 + i), 32 * i, v(VXA)))
    AD = NT + 8
    for i in range(8):
        k("ds_read_b128 %s, %s" % (v(NX + 4 * i, 4), v(AD + i)))
    for r in range(4):
        k("v_mov_b32 %s, 0" % v(NS + r))
    k("v_mov_b32 %s, 0x3f803f80" % v(NT))
    for i in range(8):
        k("s_waitcnt lgkmcnt(%d)" % (7 - i))
        for r in range(4):
            k("v_dot2c_f32_bf16 %s, %s, %s" % (v(NS + (r & 1)), v(NT), v(NX + 4 * i + r)))
            k("v_dot2c_f32_bf16 %s, %s, %s" % (v(NQ + (r & 1)), v(NX + 4 * i + r), v(NX + 4 * i + r)))
    k("s_nop 2")
    for r in (NS, NQ):
        k("v_add_f32 %s, %s, %s" % (v(r), v(r), v(r + 1)))
        k("v_mov_b32 %s, %s" % (v(r + 1), v(r)))
        k("s_nop 1")
        k("v_permlane32_swap_b32 %s, %s" % (v(r + 1), v(r)))
        k("s_nop 1")
        k("v_add_f32 %s, %s, %s" % (v(r), v(r), v(r + 1)))
    if "p3" in OPT:
        prof_mark(k, 2)
    k("s_cmp_ge_u32 %s, 4" % s(S_W))
    k("s_cbranch_scc0 %s_nnd" % pre)
    for grp in dma:
        for ins in grp:
            k(ins)
    k.label(pre + "_nnd")
    k("v_mov_b32 %s, %s" % (v(NS + 1), v(NQ)))
    k("s_lshl_b32 %s, %s, 8" % (s(S_T), s(S_W)))
    k("s_add_u32 %s, %s, %d" % (s(S_T), s(S_T), L_PART))
    k("v_lshl_add_u32 v3, v1, 3, %s" % s(S_T))
    k("ds_write_b64 v3, %s" % v(NS, 2))
    k("s_waitcnt lgkmcnt(0)")
    k("s_barrier")
    if "p3" in OPT:
        prof_mark(k, 4)
    k("s_and_b32 %s, %s, 1" % (s(S_T), s(S_W)))
    k("s_lshl_b32 %s, %s, 8" % (s(S_T), s(S_T)))
    k("s_add_u32 %s, %s, %d" % (s(S_T), s(S_T), L_PART))
    k("v_lshl_add_u32 v3, v1, 3, %s" % s(S_T))
    PT = NT + 16
    for q in range(4):
        k("ds_read_b64 %s, v3 offset:%d" % (v(PT + 2 * q, 2), q * 512))
    k("s_waitcnt lgkmcnt(0)")
    k("v_add_f32 %s, %s, %s" % (v(PT), v(PT), v(PT + 2)))
    k("v_add_f32 %s, %s, %s" % (v(PT + 1), v(PT + 1), v(PT + 3)))
    k("v_add_f32 %s, %s, %s" % (v(PT + 4), v(PT + 4), v(PT + 6)))
    k("v_add_f32 %s, %s, %s" % (v(PT + 5), v(PT + 5), v(PT + 7)))
    k("v_add_f32 %s, %s, %s" % (v(NS), v(PT), v(PT + 4)))
    k("v_add_f32 %s, %s, %s" % (v(NQ), v(PT + 1), v(PT + 5)))
    k("v_mul_f32 %s, 0x%x, %s" % (v(NS), f2u(1.0 / 512), v(NS)))
    k("v_mul_f32 %s, 0x%x, %s" % (v(NQ), f2u(1.0 / 512), v(NQ)))
    k("v_fma_f32 %s, -%s, %s, %s" % (v(NQ), v(NS), v(NS), v(NQ)))
    k("v_max_f32 %s, 0, %s" % (v(NQ), v(NQ)))
    k("v_add_f32 %s, 0x%x, %s" % (v(NQ), f2u(1e-5), v(NQ)))
    k("v_rsq_f32 %s, %s" % (v(NQ), v(NQ)))
    MK, TP = NT + 24, NT + 26
    k("v_mov_b32 %s, 0xffff0000" % v(MK))
    k("v_mul_f32 %s, %s, %s" % (v(NS), v(NS), v(NQ)))
    k("v_mov_b32 %s, %s" % (v(NQ + 1), v(NQ)))
    k("v_sub_f32 %s, 0, %s" % (v(NS), v(NS)))
    k("v_mov_b32 %s, %s" % (v(NS + 1), v(NS)))
    for i in range(8):
        for r in range(4):
            x = NX + 4 * i + r
            t = TP + 2 * (r & 1)
            k("v_lshlrev_b32 %s, 16, %s" % (v(t), v(x)))
            k("v_and_b32 %s, %s, %s" % (v(t + 1), v(MK), v(x)))
            if r > 0:
                tp = TP + 2 * ((r - 1) & 1)
                k("v_cvt_pk_bf16_f32 %s, %s, %s" % (v(x - 1), v(tp), v(tp + 1)))
            k("v_pk_fma_f32 %s, %s, %s, %s" % (v(t, 2), v(t, 2), v(NQ, 2), v(NS, 2)))
        tp = TP + 2
        k("v_cvt_pk_bf16_f32 %s, %s, %s" % (v(NX + 4 * i + 3), v(tp), v(tp + 1)))
        k("ds_write_b128 %s, %s" % (v(AD + i), v(NX + 4 * i, 4)))
    if "p3" in OPT:
        prof_mark(k, 5)
    if "xn" in OPT:
        k("s_lshr_b32 %s, %s, 1" % (s(S_T), s(S_CT)))
        k("s_lshr_b32 %s, %s, 1" % (s(S_T2), s(S_W)))
        k("s_cmp_eq_u32 %s, %s" % (s(S_T), s(S_T2)))
        k("s_cbranch_scc0 %s_noxn%s" % (pre, ""))
        k("s_and_b32 %s, %s, 1" % (s(S_T), s(S_W)))
        k("s_lshl_b32 %s, %s, 1" % (s(S_T2), s(S_RB)))
        k("s_add_u32 %s, %s, %s" % (s(S_T), s(S_T), s(S_T2)))
        k("s_lshl_b32 %s, %s, 15" % (s(S_T), s(S_T)))
        k("s_lshl_b32 %s, %s, 12" % (s(S_T2), s(S_CT)))
        k("s_add_u32 %s, %s, %s" % (s(S_T), s(S_T), s(S_T2)))
        k("s_add_u32 %s, %s, 0x%x" % (s(S_T), s(S_T), WS_XN))
        k("v_lshlrev_b32 v3, 4, v0")
        k("s_bitcmp1_b32 %s, 0" % s(S_CT))
        k("s_cbranch_scc1 %s_xnhi%s" % (pre, ""))
        for i in range(4):
            k("buffer_store_dwordx4 %s, v3, %s, %s offen offset:%d" % (v(NX + 4 * i, 4), s(S_OD, 4), s(S_T), 1024 * i))
        k("s_branch %s_noxn%s" % (pre, ""))
        k.label("%s_xnhi%s" % (pre, ""))
        for i in range(4):
            k("buffer_store_dwordx4 %s, v3, %s, %s offen offset:%d" % (v(NX + 16 + 4 * i, 4), s(S_OD, 4), s(S_T), 1024 * i))
        k.label("%s_noxn%s" % (pre, ""))
    k("s_waitcnt lgkmcnt(0)")


def next_slot(k, r):
    k("s_add_u32 %s, %s, %d" % (s(r), s(r), SLOT))
    k("s_cmp_ge_u32 %s, %d" % (s(r), SLOTE))
    k("s_cselect_b32 %s, %d, %s" % (s(r), SLOT0, s(r)))


def wfrag_addr(k):
    t = ACC
    r, b, h, g, x, y = t, t + 1, t + 2, t + 3, t + 4, t + 5
    k("s_lshr_b32 %s, %s, 1" % (s(S_T), s(S_W)))
    k("v_bfe_u32 %s, v0, 2, 2" % v(r))
    k("v_and_b32 %s, 3, v0" % v(b))
    k("v_bfe_u32 %s, v0, 4, 1" % v(h))
    k("v_lshl_add_u32 %s, %s, 2, %s" % (v(b), v(h), v(b)))
    k("v_and_b32 %s, 1, %s" % (v(h), v(b)))
    k("v_lshrrev_b32 %s, 1, %s" % (v(g), v(b)))
    k("v_lshl_add_u32 %s, v2, 3, %s" % (v(x), v(r)))
    k("v_lshl_add_u32 %s, %s, 2, %s" % (v(b), v(h), v(g)))
    k("v_mul_u32_u24 %s, 384, %s" % (v(y), v(x)))
    k("v_lshl_add_u32 %s, %s, 3, %s" % (v(y), v(b), v(y)))
    k("v_lshrrev_b32 %s, 1, %s" % (v(b), v(r)))
    k("v_xor_b32 %s, %s, %s" % (v(b), s(S_T), v(b)))
    k("v_lshl_add_u32 %s, %s, 6, %s" % (v(VWQ), v(b), v(y)))
    k("v_lshrrev_b32 %s, 1, %s" % (v(b), v(g)))
    k("v_and_b32 %s, 1, %s" % (v(g), v(g)))
    k("v_lshl_add_u32 %s, %s, 1, %s" % (v(g), v(h), v(g)))
    k("v_lshl_add_u32 %s, %s, 2, %s" % (v(b), v(b), v(g)))
    k("v_lshlrev_b32 %s, 9, %s" % (v(y), v(x)))
    k("v_lshl_add_u32 %s, %s, 3, %s" % (v(y), v(b), v(y)))
    k("s_lshl_b32 %s, %s, 8" % (s(S_T), s(S_T)))
    k("v_add_u32 %s, %s, %s" % (v(y), s(S_T), v(y)))
    for ft in range(4):
        k("v_xor_b32 %s, %d, %s" % (v(b), ft, v(r)))
        k("v_lshl_add_u32 %s, %s, 6, %s" % (v(VWF + ft), v(b), v(y)))


def compute_phase(k, pre, F):
    q = F == 3
    RB = 384 if q else 512
    NA = 1 if q else 4
    base = VWQ if q else VWF
    p = pre + ("Q" if q else "F")

    def wa(par, ft):
        return VW2 + 4 * par + (0 if q else ft)

    def slot_ops(par):
        return ["v_add_u32 %s, %s, %s" % (v(VW2 + 4 * par + j), s(S_SLOT), v(base + j)) for j in range(NA)]

    def x_ops(st):
        return ["v_xor_b32 %s, %s, %s" % (v(VX), s(S_U), v(VA0))] if st == 0 else ["v_xor_b32 %s, 32, %s" % (v(VX), v(VX))]

    def u_ops():
        return ["s_lshl_b32 %s, %s, 6" % (s(S_U), s(S_KC))]

    def kc_next():
        return ["s_add_u32 %s, %s, 1" % (s(S_KC), s(S_KC)), "s_and_b32 %s, %s, 15" % (s(S_KC), s(S_KC))]

    def rd_x(buf):
        return ["ds_read_b128 %s, %s" % (v(XF[buf], 4), v(VX))]

    def rd_w(par, st, buf, ft):
        off = st * 16 * RB + (ft * 128 if q else 0)
        return ["ds_read_b64_tr_b16 %s, %s offset:%d" % (v(WF[buf] + 4 * ft + 2 * u, 2), v(wa(par, ft)), off + u * 4 * RB) for u in range(2)]

    def mfma(buf, ft):
        d = v(ACC + 16 * ft, 16)
        if q and ft == 2:
            k("v_mfma_f32_32x32x16_bf16 %s, %s, %s, %s" % (d, v(XF[buf], 4), v(WF[buf] + 4 * ft, 4), d))
        else:
            k("v_mfma_f32_32x32x16_bf16 %s, %s, %s, %s" % (d, v(WF[buf] + 4 * ft, 4), v(XF[buf], 4), d))

    k("s_mov_b32 %s, %s" % (s(S_KC), s(S_ROT)))
    for ins in u_ops() + slot_ops(0) + x_ops(0) + rd_x(0) + sum((rd_w(0, 0, 0, ft) for ft in range(F)), []) + x_ops(1):
        k(ins)
    k("s_mov_b32 %s, 0" % s(S_C))
    k(".p2align 3")
    k.label(p + "_loop")
    VXN = VX + 0
    for par in range(2):
        for st in range(2):
            b, nb = st, 1 - st
            npar = par if st == 0 else 1 - par
            for ft in range(F):
                newer = 2 * (F - 1 - ft) + (0 if ft == 0 else 1 + 2 * ft)
                k("s_waitcnt lgkmcnt(%d)" % newer)
                mfma(b, ft)
                if ft == 0:
                    if st == 1:
                        k("s_barrier")
                    for ins in rd_x(nb):
                        k(ins)
                for ins in rd_w(npar, 1 - st, nb, ft):
                    k(ins)
                if ft == 0:
                    if st == 0:
                        for ins in kc_next() + u_ops() + x_ops(0):
                            k(ins)
                    else:
                        for ins in x_ops(1):
                            k(ins)
                if st == 0 and ft == 1:
                    next_slot(k, S_SLOT)
                if st == 0 and ft == F - 1:
                    for ins in slot_ops(1 - par):
                        k(ins)
    k("s_add_u32 %s, %s, 1" % (s(S_C), s(S_C)))
    k("s_cmp_lt_u32 %s, 8" % s(S_C))
    k("s_cbranch_scc1 %s_loop" % p)
    k("s_waitcnt lgkmcnt(0)")


def epilogue_q(k):
    cq = 0.25 * LOG2E
    a1, a2, a3, t1, t2 = 12, 13, 14, 15, 16
    k("s_lshl_b32 %s, %s, 1" % (s(S_T2), s(S_RB)))
    k("s_and_b32 %s, %s, 1" % (s(S_T), s(S_W)))
    k("s_add_u32 %s, %s, %s" % (s(S_T2), s(S_T2), s(S_T)))
    k("s_lshl_b32 %s, %s, 2" % (s(S_T3), s(S_CT)))
    k("s_and_b32 %s, %s, 2" % (s(S_T), s(S_W)))
    k("s_add_u32 %s, %s, %s" % (s(S_T3), s(S_T3), s(S_T)))
    k("v_add_u32 %s, %s, v2" % (v(t1), s(S_T3)))
    k("v_lshlrev_b32 %s, 4, v1" % v(t2))
    k("v_lshl_add_u32 %s, %s, 16, %s" % (v(a1), v(t1), v(t2)))
    k("s_lshl_b32 %s, %s, 10" % (s(S_T), s(S_T2)))
    k("v_add_u32 %s, %s, %s" % (v(a1), s(S_T), v(a1)))
    k("v_lshl_add_u32 %s, %s, 17, %s" % (v(a2), v(t1), v(t2)))
    k("s_lshl_b32 %s, %s, 11" % (s(S_T), s(S_T2)))
    k("s_add_u32 %s, %s, 0x%x" % (s(S_T), s(S_T), WS_KV))
    k("v_add_u32 %s, %s, %s" % (v(a2), s(S_T), v(a2)))
    k("v_bfe_u32 %s, v1, 2, 1" % v(t1))
    k("v_lshrrev_b32 %s, 3, v1" % v(t2))
    k("v_and_b32 %s, 3, v1" % v(a3))
    k("v_and_b32 v17, 1, %s" % v(t2))
    k("v_lshrrev_b32 %s, 1, %s" % (v(t2), v(t2)))
    k("v_lshl_add_u32 %s, %s, 2, %s" % (v(a3), v(t2), v(a3)))
    k("v_lshl_add_u32 %s, v17, 3, %s" % (v(a3), v(a3)))
    k("v_lshlrev_b32 %s, 4, %s" % (v(a3), v(a3)))
    k("v_add_u32 %s, %s, %s" % (v(t1), s(S_T3), v(t1)))
    k("v_lshl_add_u32 %s, %s, 17, %s" % (v(a3), v(t1), v(a3)))
    k("v_lshl_add_u32 %s, v2, 8, %s" % (v(a3), v(a3)))
    k("s_add_u32 %s, %s, 1024" % (s(S_T), s(S_T)))
    k("v_add_u32 %s, %s, %s" % (v(a3), s(S_T), v(a3)))
    sc = " sc1" if "sc1" in OPT else (" nt" if "nt" in OPT else "")
    for ft, dst in ((1, a2), (2, a3), (0, a1)):
        A = ACC + 16 * ft
        if ft == 0:
            for r in range(16):
                k("v_mul_f32 %s, 0x%x, %s" % (v(A + r), f2u(cq), v(A + r)))
        for r in range(8):
            k("v_cvt_pk_bf16_f32 %s, %s, %s" % (v(A + r), v(A + 2 * r), v(A + 2 * r + 1)))
        k("buffer_store_dwordx4 %s, %s, %s, 0 offen%s" % (v(A, 4), v(dst), s(S_OD, 4), sc))
        k("buffer_store_dwordx4 %s, %s, %s, 0 offen offset:512%s" % (v(A + 4, 4), v(dst), s(S_OD, 4), sc))


def epilogue_f(k):
    a1 = 12
    k("s_lshl_b32 %s, %s, 1" % (s(S_T2), s(S_RB)))
    k("s_and_b32 %s, %s, 1" % (s(S_T), s(S_W)))
    k("s_add_u32 %s, %s, %s" % (s(S_T2), s(S_T2), s(S_T)))
    k("s_mul_i32 %s, %s, %d" % (s(S_T), s(S_T2), WS_HO_ROW))
    k("s_lshl_b32 %s, %s, 14" % (s(S_T3), s(S_CT)))
    k("s_add_u32 %s, %s, %s" % (s(S_T), s(S_T), s(S_T3)))
    k("s_lshr_b32 %s, %s, 1" % (s(S_T3), s(S_W)))
    k("s_lshl_b32 %s, %s, 13" % (s(S_T3), s(S_T3)))
    k("s_add_u32 %s, %s, %s" % (s(S_T), s(S_T), s(S_T3)))
    k("s_add_u32 %s, %s, 0x%x" % (s(S_T), s(S_T), WS_HO))
    k("v_lshlrev_b32 %s, 4, v0" % v(a1))
    k("v_add_u32 %s, %s, %s" % (v(a1), s(S_T), v(a1)))
    B = WF[0]
    for ft in range(4):
        A = ACC + 16 * ft
        for r in range(16):
            k("v_max_f32 %s, 0, %s" % (v(B + r), v(A + r)))
        for r in range(16):
            k("v_mul_f32 %s, %s, %s" % (v(A + r), v(A + r), v(B + r)))
        for r in range(8):
            k("v_cvt_pk_bf16_f32 %s, %s, %s" % (v(A + r), v(A + 2 * r), v(A + 2 * r + 1)))
        sc = " sc1" if "sc1" in OPT else (" nt" if "nt" in OPT else "")
        k("buffer_store_dwordx4 %s, %s, %s, 0 offen offset:%d%s" % (v(A, 4), v(a1), s(S_OD, 4), 2048 * (ft & 1), sc))
        k("buffer_store_dwordx4 %s, %s, %s, 0 offen offset:%d%s" % (v(A + 4, 4), v(a1), s(S_OD, 4), 2048 * (ft & 1) + 1024, sc))
        if ft == 1:
            k("v_add_u32 %s, 4096, %s" % (v(a1), v(a1)))


def compute(k, pre, ffn):
    wfrag_addr(k)
    k("s_and_b32 %s, %s, 1" % (s(S_T2), s(S_W)))
    xaddr_base(k, S_T2)
    for j in range(48):
        k("v_mov_b32 %s, 0" % v(ACC + j))
    k("s_mov_b32 %s, %d" % (s(S_SLOT), SLOT0))
    k("s_setprio 2")
    k("s_barrier")
    if "p3" not in OPT:
        prof_mark(k, 4 if "p2" not in OPT else 2)
    compute_phase(k, pre, 3)
    if "p2" in OPT:
        prof_mark(k, 3)
    k("s_nop 7")
    epilogue_q(k)
    if ffn:
        k("s_cmp_eq_u32 %s, 7" % s(S_CT))
        k("s_cbranch_scc1 %s_cdone" % pre)
        k("s_lshr_b32 %s, %s, 1" % (s(S_T), s(S_W)))
        k("s_lshl_b32 %s, %s, 9" % (s(S_T), s(S_T)))
        k("s_add_u32 %s, %s, %d" % (s(S_T), s(S_T), L_BI))
        k("v_lshl_add_u32 v3, v2, 4, %s" % s(S_T))
        for ft in range(4):
            for g in range(4):
                k("ds_read_b128 %s, v3 offset:%d" % (v(ACC + 16 * ft + 4 * g, 4), ft * 128 + g * 32))
        k("s_waitcnt lgkmcnt(0)")
        if "p2" in OPT:
            prof_mark(k, 4)
        compute_phase(k, pre, 4)
        if "p2" in OPT:
            prof_mark(k, 5)
        k("s_nop 7")
        epilogue_f(k)
        k.label(pre + "_cdone")


class Groups:
    def __init__(self):
        self.groups = [[]]

    def __call__(self, txt):
        self.groups[-1].append(txt)
        if txt.startswith("buffer_load"):
            self.groups.append([])


def issue_chunk(k, q, c):
    n = 3 if q else 4
    wrow = 3072 if q else 3584
    k("s_add_u32 m0, %s, %d" % (s(S_LD3 if q else S_LD4), SLOT0 + (c % R) * SLOT))
    if not q:
        k("s_mov_b32 %s, %s" % (s(S_T2), s(S_WO)))
    else:
        k("s_nop 0")
    for i in range(n):
        k("buffer_load_dwordx4 %s, %s, %s offen lds" % (v(VQO + i) if q else v(VFO + (i & 1)), s(S_WD, 4), s(S_WO if q else S_T2)))
        if i < n - 1:
            k("s_add_u32 m0, m0, 1024")
            if q:
                k("s_nop 0")
            else:
                k("s_add_u32 %s, %s, %d" % (s(S_T2), s(S_T2), 2 * wrow))
    k("s_add_u32 %s, %s, %d" % (s(S_WO), s(S_WO), 32 * wrow))
    k("s_cmp_ge_u32 %s, %s" % (s(S_WO), s(S_WEND)))
    k("s_cselect_b32 %s, %d, 0" % (s(S_T), 512 * wrow))
    k("s_sub_u32 %s, %s, %s" % (s(S_WO), s(S_WO), s(S_T)))


def phase_base(k, q):
    wrow = 3072 if q else 3584
    k("s_mul_i32 %s, %s, %d" % (s(S_WO), s(S_LD), 8 * wrow))
    k("s_lshl_b32 %s, %s, %d" % (s(S_T), s(S_CT), 7 if q else 9))
    k("s_add_u32 %s, %s, %s" % (s(S_WO), s(S_WO), s(S_T)))
    k("s_add_u32 %s, %s, %d" % (s(S_WEND), s(S_WO), 512 * wrow))
    k("s_mul_i32 %s, %s, %d" % (s(S_T), s(S_ROT), 32 * wrow))
    k("s_add_u32 %s, %s, %s" % (s(S_WO), s(S_WO), s(S_T)))


def loader_pre(k, pre, ffn):
    k("s_setprio 3")
    k("s_sub_u32 %s, %s, 4" % (s(S_LD), s(S_W)))
    k("s_mov_b32 %s, 0x%x" % (s(S_T), (2 ** 32 + 383) // 384))
    for j in range(3):
        k("v_lshlrev_b32 v12, 4, v0")
        k("v_add_u32 v12, %d, v12" % (1024 * j))
        k("v_mul_hi_u32 v13, v12, %s" % s(S_T))
        k("v_mul_u32_u24 v14, 384, v13")
        k("v_sub_u32 v14, v12, v14")
        k("v_lshrrev_b32 v15, 7, v14")
        k("v_and_b32 v14, 127, v14")
        k("v_bfe_u32 v12, v13, 1, 1")
        k("v_lshlrev_b32 v12, 6, v12")
        k("v_xor_b32 v14, v14, v12")
        k("v_mul_u32_u24 v13, 3072, v13")
        k("v_lshl_add_u32 v13, v15, 10, v13")
        k("v_add_u32 %s, v13, v14" % v(VQO + j))
    k("s_mul_i32 %s, %s, 3072" % (s(S_LD3), s(S_LD)))
    k("s_lshl_b32 %s, %s, 12" % (s(S_LD4), s(S_LD)))
    phase_base(k, True)
    issue_chunk(k, True, 0)
    issue_chunk(k, True, 1)
    for p_ in range(2):
        k("v_lshrrev_b32 v12, 5, v0")
        k("v_add_u32 v12, %d, v12" % (2 * p_))
        k("v_bfe_u32 v13, v0, 2, 3")
        k("v_xor_b32 v13, v13, v12")
        k("v_lshlrev_b32 v13, 6, v13")
        k("v_and_b32 v14, 3, v0")
        k("v_lshl_add_u32 v13, v14, 4, v13")
        k("v_lshrrev_b32 v12, 5, v0")
        k("v_mul_u32_u24 v12, 3584, v12")
        k("v_add_u32 %s, v12, v13" % v(VFO + p_))
    if ffn:
        k("v_lshrrev_b32 v12, 3, v1")
        k("v_bfe_u32 v13, v1, 2, 1")
        k("v_and_b32 v14, 3, v1")
        k("v_lshrrev_b32 v15, 1, v12")
        k("v_and_b32 v12, 1, v12")
        k("v_lshl_add_u32 v14, v12, 2, v14")
        k("v_lshl_add_u32 v14, v13, 3, v14")
        k("v_lshl_add_u32 v14, v15, 4, v14")
        k("v_lshl_add_u32 v14, v2, 5, v14")
        k("s_lshl_b32 %s, %s, 8" % (s(S_T), s(S_CT)))
        k("s_lshl_b32 %s, %s, 6" % (s(S_T2), s(S_LD)))
        k("s_add_u32 %s, %s, %s" % (s(S_T), s(S_T), s(S_T2)))
        k("v_add_u32 v14, %s, v14" % s(S_T))
        k("v_lshlrev_b32 v14, 1, v14")
        k("v_min_u32 v14, 3582, v14")
        k("global_load_ushort v11, v14, %s" % s(S_B1, 2))


def loader_post(k, pre, ffn):
    k("s_waitcnt vmcnt(%d)" % (6 if ffn else 9))
    if ffn:
        k("v_lshlrev_b32 v11, 16, v11")
        k("s_lshl_b32 %s, %s, 8" % (s(S_T), s(S_LD)))
        k("s_add_u32 %s, %s, %d" % (s(S_T), s(S_T), L_BI))
        k("v_lshl_add_u32 v12, v0, 2, %s" % s(S_T))
        k("ds_write_b32 v12, v11")
        k("s_waitcnt lgkmcnt(0)")
    k("s_barrier")
    k("s_setprio 1")

    def n_of(c):
        return 3 if c < 16 else 4

    def schedule(first, last, total):
        for c in range(first, last + 1):
            younger = sum(n_of(j) for j in (c + 1, c + 2) if j < total)
            k("s_waitcnt vmcnt(%d)" % younger)
            k("s_barrier")
            if c + 3 < total:
                if c + 3 == 16:
                    k.srd(S_WD, S_W1, 512 * 3584)
                    phase_base(k, False)
                issue_chunk(k, c + 3 < 16, c + 3)

    if ffn:
        k("s_cmp_eq_u32 %s, 7" % s(S_CT))
        k("s_cbranch_scc1 %s_lq" % pre)
        schedule(1, 32, 32)
        k("s_branch %s_lend" % pre)
        k.label(pre + "_lq")
    schedule(1, 16, 16)
    k.label(pre + "_lend")


def finish(k):
    k("s_waitcnt vmcnt(0)")
    stamp(k, 1, S_WS, S_W)
    if "p2" not in OPT and "p3" not in OPT:
        prof_mark(k, 5)
    prof_rt(k, 6)
    prof_store(k, S_WS, S_W, 28)
    k("s_endpgm")


def gen(k, name, pre, ffn=True):
    k.kernel_begin(name)
    entry(k, pre, name)
    k("s_branch %s_norm" % pre)
    k.label(pre + "_loader")
    loader_pre(k, pre, ffn)
    k.label(pre + "_norm")
    g = Groups()
    issue_chunk(g, True, 2)
    issue_chunk(g, True, 3)
    normalise(k, pre, g.groups, 6 + (1 if ffn else 0))
    k("s_cmp_ge_u32 %s, 4" % s(S_W))
    k("s_cbranch_scc1 %s_lpost" % pre)
    compute(k, pre, ffn)
    finish(k)
    k.label(pre + "_lpost")
    loader_post(k, pre, ffn)
    finish(k)
    k.label(pre + "_exit")
    k.kernel_end(name, NV, NV)
    return 256, LDS_BYTES
```

```python
import common
from common import *

SA, SB, CI, P, KF, VF0, VF1, QF, OA = 16, 32, 48, 64, 72, 76, 80, 84, 96
V_LANE16, V_CUR, V_NXT, V_KOFF, V_VOFF, V_T0, V_T1, V_OOFF = 1, 2, 3, 4, 5, 6, 7, 8
SLOT = 24576
TILE = 3072
BIAS = 96.0
ONES = 0x3F803F80

S_WS, S_KV, S_HOS, S_W, S_HEAD, S_QB, S_T, S_C, S_SLOT, S_VM, S_TILE = 4, 8, 12, 16, 17, 18, 19, 20, 21, 22, 24
S_QS = 28
S_NSLOT = 32
S_DBG = 34


OPT = set()


def mfma(k, d, A, B, C):
    k("v_mfma_f32_32x32x16_bf16 %s, %s, %s, %s" % (v(d, 16), v(A, 4), v(B, 4), C if isinstance(C, str) else v(C, 16)))


def dma_chunk(k):
    k("s_mul_i32 %s, %s, %d" % (s(S_T), s(S_W), TILE))
    k("s_add_u32 %s, %s, %s" % (s(S_T), s(S_T), s(S_NSLOT)))
    k("s_mov_b32 m0, %s" % s(S_T))
    k("s_lshl_b32 %s, %s, 11" % (s(S_T + 0), s(S_TILE)))
    k("buffer_load_dwordx4 %s, %s, %s offen lds" % (v(V_KOFF), s(S_KV, 4), s(S_T)))
    k("s_add_u32 m0, m0, 1024")
    k("s_mov_b64 exec, %s" % s(S_VM, 2))
    k("buffer_load_dwordx4 %s, %s, %s offen lds" % (v(V_VOFF), s(S_KV, 4), s(S_T)))
    k("s_add_u32 m0, m0, 512")
    k("s_nop 0")
    k("buffer_load_dwordx4 %s, %s, %s offen offset:512 lds" % (v(V_VOFF), s(S_KV, 4), s(S_T)))
    k("s_mov_b64 exec, -1")


KF2, VF02, VF12 = [KF, 88], [VF0, 92], [VF1, 112]


def tile_body2(k, i, cur, nxt):
    p, q = i & 1, (i + 1) & 1

    def e(j):
        k("v_exp_f32 %s, %s" % (v(cur + j), v(cur + j)))

    def c(j):
        k("v_cvt_pk_bf16_f32 %s, %s, %s" % (v(P + j), v(cur + 2 * j), v(cur + 2 * j + 1)))

    def rd(dst, tile, part):
        base = V_CUR if tile < 8 else V_NXT
        k("ds_read_b128 %s, %s offset:%d" % (v(dst, 4), v(base), (tile % 8) * TILE + part * 1024))

    k("s_waitcnt lgkmcnt(0)")
    mfma(k, nxt, KF2[p], QF, CI)
    rd(VF12[q], i, 2)
    e(0); e(1)
    rd(VF02[q], i + 1, 1)
    e(2); e(3)
    mfma(k, OA, VF12[p], P + 4, OA)
    rd(KF2[q], i + 2, 0)
    c(0); e(4); e(5); c(1); e(6); e(7); c(2); e(8); c(3); e(9); e(10)
    mfma(k, OA, VF02[p], P, OA)
    e(11); c(4); e(12); e(13); c(5); e(14); e(15); c(6); c(7)


def tile_body(k, i, cur, nxt):
    def e(j):
        if "expsep" in OPT:
            k("v_exp_f32 %s, %s" % (v(96 + j), v(cur + j)))
        else:
            k("v_exp_f32 %s, %s" % (v(cur + j), v(cur + j)))

    def c(j):
        k("v_cvt_pk_bf16_f32 %s, %s, %s" % (v(P + j), v(cur + 2 * j), v(cur + 2 * j + 1)))

    def rd(dst, tile, part):
        if "nolds" in OPT:
            return
        base = V_CUR if tile < 8 else V_NXT
        k("ds_read_b128 %s, %s offset:%d" % (v(dst, 4), v(base), (tile % 8) * TILE + part * 1024))

    def w():
        if "nowait" not in OPT:
            k("s_waitcnt lgkmcnt(2)")

    w()
    if "noqk" not in OPT:
        mfma(k, nxt, KF, QF, CI)
    rd(KF, i + 2, 0)
    e(0); e(1); e(2); e(3)
    w()
    if "nopv" not in OPT:
        mfma(k, OA, VF1, P + 4, OA)
    rd(VF1, i, 2)
    c(0); e(4); e(5); c(1); e(6); e(7); c(2); e(8); c(3); e(9); e(10)
    w()
    if "nopv" not in OPT:
        mfma(k, OA, VF0, P, OA)
    rd(VF0, i + 1, 1)
    e(11); c(4); e(12); e(13); c(5); e(14); e(15); c(6); c(7)


def gen_attn(k, name, standalone=True, second_role=None):
    if standalone:
        k.kernel_begin(name)
        k("s_cmp_ge_u32 s2, %d" % (512 if second_role else 256))
        k("s_cbranch_scc1 L_attn_exit")
        prof_start(k)
        if second_role:
            k("s_cmp_ge_u32 s2, 256")
            k("s_cbranch_scc1 L_attn_role2")
        k("s_load_dwordx2 %s, s[0:1], %d" % (s(S_WS, 2), KA_WS))
        k("s_load_dwordx2 %s, s[0:1], %d" % (s(S_DBG, 2), KA_DBG))
    k("s_and_b32 %s, s2, 7" % s(S_HEAD))
    k("s_lshl_b32 %s, %s, 2" % (s(S_HEAD), s(S_HEAD)))
    k("s_lshr_b32 %s, s2, 3" % s(S_T))
    k("s_and_b32 %s, %s, 3" % (s(S_T), s(S_T)))
    k("s_add_u32 %s, %s, %s" % (s(S_HEAD), s(S_HEAD), s(S_T)))
    k("s_lshr_b32 %s, s2, 5" % s(S_QB))
    k("v_lshrrev_b32 %s, 6, v0" % v(V_T0))
    k("v_and_b32 v0, 63, v0")
    k("v_readfirstlane_b32 %s, %s" % (s(S_W), v(V_T0)))
    k("v_lshlrev_b32 %s, 4, v0" % v(V_LANE16))
    k("v_mov_b32 %s, %s" % (v(V_KOFF), v(V_LANE16)))
    k("v_lshrrev_b32 %s, 5, v0" % v(V_T0))
    k("v_lshlrev_b32 %s, 8, %s" % (v(V_T0), v(V_T0)))
    k("v_and_b32 %s, 15, v0" % v(V_T1))
    k("v_lshlrev_b32 %s, 4, %s" % (v(V_T1), v(V_T1)))
    k("v_add3_u32 %s, %s, %s, 0" % (v(V_VOFF), v(V_T0), v(V_T1)))
    k("v_add_u32 %s, 1024, %s" % (v(V_VOFF), v(V_VOFF)))
    k("s_mov_b32 %s, 0x0000ffff" % s(S_VM))
    k("s_mov_b32 %s, 0x0000ffff" % s(S_VM + 1))
    k("s_waitcnt lgkmcnt(0)")
    stamp(k, 2, S_WS, S_W)
    k("s_lshl_b32 %s, %s, 17" % (s(S_T), s(S_HEAD)))
    k("s_add_u32 %s, %s, %s" % (s(S_KV), s(S_WS), s(S_T)))
    k("s_addc_u32 %s, %s, 0" % (s(S_KV + 1), s(S_WS + 1)))
    k("s_add_u32 %s, %s, 0x%x" % (s(S_KV), s(S_KV), WS_KV))
    k("s_addc_u32 %s, %s, 0" % (s(S_KV + 1), s(S_KV + 1)))
    k("s_and_b32 %s, %s, 0xffff" % (s(S_KV + 1), s(S_KV + 1)))
    k("s_mov_b32 %s, 0x20000" % s(S_KV + 2))
    k("s_mov_b32 %s, 0x20000" % s(S_KV + 3))
    k("s_mov_b32 %s, %s" % (s(S_TILE), s(S_W)))
    k("s_mov_b32 %s, 0" % s(S_NSLOT))
    dma_chunk(k)
    k.srd(S_HOS, S_WS, WS_END)
    k("s_lshl_b32 %s, %s, 6" % (s(S_T), s(S_HEAD)))
    k("s_lshl_b32 %s, %s, 3" % (s(S_QS), s(S_QB)))
    k("s_add_u32 %s, %s, %s" % (s(S_QS), s(S_QS), s(S_W)))
    k("s_add_u32 %s, %s, %s" % (s(S_T), s(S_T), s(S_QS)))
    k("s_lshl_b32 %s, %s, 10" % (s(S_T), s(S_T)))
    k("buffer_load_dwordx4 %s, %s, %s, %s offen" % (v(QF, 4), v(V_LANE16), s(S_HOS, 4), s(S_T)))
    k("s_mul_i32 %s, %s, 144" % (s(S_QS), s(S_QS)))
    k("s_add_u32 %s, %s, %s" % (s(S_QS), s(S_QS), s(S_HEAD)))
    k("s_add_u32 %s, %s, 112" % (s(S_QS), s(S_QS)))
    k("s_lshl_b32 %s, %s, 10" % (s(S_QS), s(S_QS)))
    k("s_add_u32 %s, %s, 0x%x" % (s(S_QS), s(S_QS), WS_HO))
    k("v_mov_b32 %s, 0x%x" % (v(P), ONES))
    k("v_mov_b32 %s, 0x%x" % (v(P + 1), ONES))
    k("v_mov_b32 %s, 0x%x" % (v(P + 2), ONES))
    k("v_mov_b32 %s, 0x%x" % (v(P + 3), ONES))
    k("s_mul_i32 %s, %s, %d" % (s(S_T), s(S_W), TILE))
    k("v_add_u32 %s, %s, %s" % (v(V_T0), s(S_T), v(V_LANE16)))
    if "zeropad" in OPT:
        k("v_and_b32 %s, 27, v0" % v(V_T1))
        k("v_cmp_eq_u32 vcc, 16, %s" % v(V_T1))
        k("s_nop 1")
        for j in range(4):
            k("v_cndmask_b32 %s, 0, %s, vcc" % (v(P + j), v(P + j)))
    k("s_mov_b32 exec_lo, 0xffff0000")
    k("s_mov_b32 exec_hi, 0xffff0000")
    for slot in range(3):
        for part in (1, 2):
            k("ds_write_b128 %s, %s offset:%d" % (v(V_T0), v(P, 4), slot * SLOT + part * 1024))
    k("s_mov_b64 exec, -1")
    k("s_add_u32 %s, %s, 8" % (s(S_TILE), s(S_TILE)))
    k("s_mov_b32 %s, %d" % (s(S_NSLOT), SLOT))
    dma_chunk(k)
    k("s_waitcnt vmcnt(3) lgkmcnt(0)")
    k("s_barrier")
    prof_mark(k, 2)
    bufs = (SA, SB, CI, OA)
    frs = (KF, VF0, VF1, P)
    for t in range(4):
        k("ds_read_b128 %s, %s offset:%d" % (v(frs[t], 4), v(V_LANE16), t * TILE))
    for t in range(4):
        k("s_waitcnt lgkmcnt(%d)" % (3 - t))
        mfma(k, bufs[t], frs[t], QF, "0")
    k("ds_read_b128 %s, %s offset:%d" % (v(KF, 4), v(V_LANE16), 0))
    k("s_nop 7")
    m = V_T0
    k("v_max3_f32 %s, %s, %s, %s" % (v(m), v(SA), v(SA + 1), v(SA + 2)))
    regs = [SA + j for j in range(3, 16)] + [SB + j for j in range(16)]
    for j in range(0, len(regs) - 1, 2):
        k("v_max3_f32 %s, %s, %s, %s" % (v(m), v(m), v(regs[j]), v(regs[j + 1])))
    k("v_max_f32 %s, %s, %s" % (v(m), v(m), v(regs[-1])))
    regs = [CI + j for j in range(16)] + [OA + j for j in range(16)]
    for j in range(0, 32, 2):
        k("v_max3_f32 %s, %s, %s, %s" % (v(m), v(m), v(regs[j]), v(regs[j + 1])))
    k("v_mov_b32 %s, %s" % (v(V_T1), v(m)))
    k("s_nop 1")
    k("v_permlane32_swap_b32 %s, %s" % (v(V_T1), v(m)))
    k("s_nop 1")
    k("v_max_f32 %s, %s, %s" % (v(m), v(m), v(V_T1)))
    k("v_add_f32 %s, 0x%x, %s" % (v(m), f2u(BIAS), v(m)))
    for j in range(16):
        k("v_sub_f32 %s, 0, %s" % (v(CI + j), v(m)))
    for j in range(16):
        k("v_mov_b32 %s, 0" % v(OA + j))
    for j in range(4):
        k("v_mov_b32 %s, 0" % v(P + 4 + j))
        k("v_mov_b32 %s, 0" % v(VF1 + j))
    k("s_waitcnt lgkmcnt(0)")
    mfma(k, SA, KF, QF, CI)
    k("ds_read_b128 %s, %s offset:%d" % (v(KF, 4), v(V_LANE16), TILE))
    k("ds_read_b128 %s, %s offset:%d" % (v(VF0, 4), v(V_LANE16), 1024))
    k("v_mov_b32 %s, %s" % (v(V_CUR), v(V_LANE16)))
    k("v_add_u32 %s, %d, %s" % (v(V_NXT), SLOT, v(V_LANE16)))
    k("s_mov_b32 %s, 0" % s(S_C))
    k("s_mov_b32 %s, %d" % (s(S_NSLOT), 2 * SLOT))
    k("s_waitcnt lgkmcnt(0)")
    k("s_nop 7")
    prof_mark(k, 3)
    k(".p2align 6")
    k.label("L_attn_chunk")
    for i in range(8):
        if i == 4:
            k("s_waitcnt vmcnt(0)")
            if "nobar" not in OPT:
                k("s_barrier")
            k("s_cmp_ge_u32 %s, 6" % s(S_C))
            k("s_cbranch_scc1 L_attn_nodma")
            k("s_add_u32 %s, %s, 8" % (s(S_TILE), s(S_TILE)))
            if "nodma" not in OPT:
                dma_chunk(k)
            k.label("L_attn_nodma")
        if "prio2" in OPT and i % 2 == 0:
            k("s_setprio %d" % (3 - ((i - 4) % 8) // 2))
        if "prio3" in OPT and ((i - 4) % 8) in (0, 3, 6):
            k("s_setprio %d" % {0: 2, 3: 1, 6: 0}[(i - 4) % 8])
        if "prio1" in OPT:
            k("s_setprio %d" % (3 - ((i - 4) % 4)))
        if "prio1" in OPT and "bar4" in OPT and i == 0:
            k("s_barrier")
        (tile_body2 if "onewait" in OPT else tile_body)(k, i, SA if i % 2 == 0 else SB, SB if i % 2 == 0 else SA)
    k("v_mov_b32 %s, %s" % (v(V_CUR), v(V_NXT)))
    k("v_add_u32 %s, %s, %s" % (v(V_NXT), s(S_NSLOT), v(V_LANE16)))
    k("s_add_u32 %s, %s, %d" % (s(S_NSLOT), s(S_NSLOT), SLOT))
    k("s_cmp_ge_u32 %s, %d" % (s(S_NSLOT), 3 * SLOT))
    k("s_cselect_b32 %s, 0, %s" % (s(S_NSLOT), s(S_NSLOT)))
    k("s_add_u32 %s, %s, 1" % (s(S_C), s(S_C)))
    k("s_cmp_lt_u32 %s, 8" % s(S_C))
    k("s_cbranch_scc1 L_attn_chunk")
    k("s_waitcnt lgkmcnt(0)")
    prof_mark(k, 4)
    mfma(k, OA, VF1, P + 4, OA)
    k("s_nop 15")
    t = V_T0
    k("v_mul_f32 %s, 0, %s" % (v(t), v(OA)))
    for j in range(1, 8):
        k("v_fma_f32 %s, %s, 0, %s" % (v(t), v(OA + j), v(t)))
    k("s_mov_b32 %s, 0x%x" % (s(S_T), f2u(2.0 ** 100)))
    k("v_cmp_ngt_f32 vcc, %s, %s" % (s(S_T), v(OA + 8)))
    k("v_cmp_u_f32 %s, %s, %s" % (s(S_C, 2), v(t), v(t)))
    k("s_nop 1")
    k("s_or_b64 vcc, vcc, %s" % s(S_C, 2))
    k("s_cbranch_vccnz L_attn_slow")
    k.label("L_attn_fin")
    k("v_rcp_f32 %s, %s" % (v(t), v(OA + 8)))
    k("s_nop 0")
    for j in range(8):
        k("v_mul_f32 %s, %s, %s" % (v(OA + j), v(OA + j), v(t)))
    for j in range(4):
        k("v_cvt_pk_bf16_f32 %s, %s, %s" % (v(P + j), v(OA + 2 * j), v(OA + 2 * j + 1)))
    if "signal" in OPT:
        k("buffer_store_dwordx4 %s, %s, %s, %s offen sc1" % (v(P, 4), v(V_LANE16), s(S_HOS, 4), s(S_QS)))
        k("s_lshl_b32 %s, %s, 3" % (s(S_T), s(S_QB)))
        k("s_add_u32 %s, %s, %s" % (s(S_T), s(S_T), s(S_W)))
        k("s_lshl_b32 %s, %s, 5" % (s(S_T), s(S_T)))
        k("s_add_u32 %s, %s, %s" % (s(S_T), s(S_T), s(S_HEAD)))
        k("s_lshl_b32 %s, %s, 2" % (s(S_T), s(S_T)))
        k("s_add_u32 %s, %s, 0x%x" % (s(S_T), s(S_T), WS_FLAG + FLAG_O))
        k("v_mov_b32 %s, %s" % (v(V_T0), s(S_T)))
        k("v_mov_b32 %s, 1" % v(V_T1))
        k("s_waitcnt vmcnt(0)")
        k("s_mov_b64 exec, 1")
        k("global_store_dword %s, %s, %s sc1" % (v(V_T0), v(V_T1), s(S_WS, 2)))
        k("s_mov_b64 exec, -1")
        k.label("L_attn_nosig")
    else:
        k("buffer_store_dwordx4 %s, %s, %s, %s offen" % (v(P, 4), v(V_LANE16), s(S_HOS, 4), s(S_QS)))
    k("s_waitcnt vmcnt(0)")
    stamp(k, 3, S_WS, S_W)
    prof_mark(k, 5)
    prof_rt(k, 6)
    prof_store(k, S_WS, S_W, 16)
    k("s_endpgm")
    k.label("L_attn_slow")
    k("v_mov_b32 %s, 0xff800000" % v(m))
    k("s_mov_b32 %s, 0" % s(S_C))
    k.label("L_attn_slow_max")
    k("buffer_load_dwordx4 %s, %s, %s, %s offen" % (v(KF, 4), v(V_KOFF), s(S_KV, 4), s(S_C)))
    k("s_waitcnt vmcnt(0)")
    mfma(k, SA, KF, QF, "0")
    k("s_nop 15")
    for j in range(0, 16, 2):
        k("v_max3_f32 %s, %s, %s, %s" % (v(m), v(m), v(SA + j), v(SA + j + 1)))
    k("s_add_u32 %s, %s, 2048" % (s(S_C), s(S_C)))
    k("s_cmp_lt_u32 %s, 0x20000" % s(S_C))
    k("s_cbranch_scc1 L_attn_slow_max")
    k("v_mov_b32 %s, %s" % (v(V_T1), v(m)))
    k("s_nop 1")
    k("v_permlane32_swap_b32 %s, %s" % (v(V_T1), v(m)))
    k("s_nop 1")
    k("v_max_f32 %s, %s, %s" % (v(m), v(m), v(V_T1)))
    for j in range(16):
        k("v_sub_f32 %s, 0, %s" % (v(CI + j), v(m)))
        k("v_mov_b32 %s, 0" % v(OA + j))
    for j in range(4):
        k("v_mov_b32 %s, 0x%x" % (v(VF0 + j), ONES))
        k("v_mov_b32 %s, 0x%x" % (v(VF1 + j), ONES))
    k("s_mov_b32 %s, 0" % s(S_C))
    k.label("L_attn_slow_pv")
    k("buffer_load_dwordx4 %s, %s, %s, %s offen" % (v(KF, 4), v(V_KOFF), s(S_KV, 4), s(S_C)))
    k("s_mov_b64 exec, %s" % s(S_VM, 2))
    k("buffer_load_dwordx4 %s, %s, %s, %s offen" % (v(VF0, 4), v(V_VOFF), s(S_KV, 4), s(S_C)))
    k("buffer_load_dwordx4 %s, %s, %s, %s offen offset:512" % (v(VF1, 4), v(V_VOFF), s(S_KV, 4), s(S_C)))
    k("s_mov_b64 exec, -1")
    k("s_waitcnt vmcnt(0)")
    mfma(k, SA, KF, QF, CI)
    k("s_nop 15")
    for j in range(16):
        k("v_exp_f32 %s, %s" % (v(SA + j), v(SA + j)))
    k("s_nop 0")
    for j in range(8):
        k("v_cvt_pk_bf16_f32 %s, %s, %s" % (v(P + j), v(SA + 2 * j), v(SA + 2 * j + 1)))
    k("s_nop 1")
    mfma(k, OA, VF0, P, OA)
    mfma(k, OA, VF1, P + 4, OA)
    k("s_add_u32 %s, %s, 2048" % (s(S_C), s(S_C)))
    k("s_cmp_lt_u32 %s, 0x20000" % s(S_C))
    k("s_cbranch_scc1 L_attn_slow_pv")
    k("s_nop 15")
    k("s_branch L_attn_fin")
    if second_role:
        k.label("L_attn_role2")
        second_role(k)
    if standalone:
        k.label("L_attn_exit")
        nv = 128 if (common.PROF or second_role) else 112
        k.kernel_end(name, nv, nv)


if __name__ == "__main__":
    import sys
    common.PROF = "prof" in sys.argv
    OPT.update(sys.argv[1:])
    k = Asm()
    k.lines.append(HEADER.rstrip())
    k.lines.append("; @launch kernel=attn_kernel grid=(256,1,1) block=(512,1,1) lds=%d" % (3 * SLOT))
    k('.amdgcn_target "amdgcn-amd-amdhsa--gfx950"')
    gen_attn(k, "attn_kernel")
    open("attn_%s.s" % "_".join(["v"] + [x for x in sys.argv[1:] if x != "prof"]), "w").write(k.text())
```

```python
import common
from common import *

OPT = set()
S_X, S_W2, S_WOP, S_B2, S_OUT, S_WS = 4, 6, 8, 10, 12, 14
S_HD, S_WD, S_XD, S_OD, S_BD = 16, 20, 28, 32, 52
S_W, S_RB, S_CB, S_T, S_T2, S_LB = 36, 37, 38, 39, 40, 41
S_XO0, S_XO1, S_WO, S_WRAP, S_LEFT, S_N, S_TRIP, S_RL = 42, 43, 44, 45, 46, 47, 48, 49
S_BX, S_BW, S_BWRAP = 56, 57, 58
D = 4
WSLOT = 2048
RING = D * WSLOT
VWS, VWR, VL16 = 4, 6, 3
XF, WF, ACC = 16, 48, 64
NA, NB = 28, 8


def setup(k):
    k("v_and_b32 v1, 31, v0")
    k("v_lshrrev_b32 v2, 5, v0")
    k("v_lshlrev_b32 v3, 4, v0")
    k("v_lshrrev_b32 v4, 3, v0")
    k("v_bfe_u32 v5, v0, 2, 1")
    k("v_bfe_u32 v6, v0, 4, 1")
    k("v_xor_b32 v5, v5, v6")
    k("v_and_b32 v6, 3, v0")
    k("v_lshlrev_b32 v6, 4, v6")
    k("v_lshl_add_u32 v5, v5, 6, v6")
    k("v_lshl_add_u32 v4, v4, 10, v5")
    k("v_bfe_u32 v12, v0, 2, 2")
    k("v_and_b32 v13, 3, v0")
    k("v_bfe_u32 v14, v0, 4, 1")
    k("v_lshl_add_u32 v13, v14, 2, v13")
    k("v_and_b32 v14, 1, v13")
    k("v_lshrrev_b32 v15, 1, v13")
    k("v_lshrrev_b32 v8, 1, v15")
    k("v_and_b32 v15, 1, v15")
    k("v_lshl_add_u32 v15, v14, 1, v15")
    k("v_lshl_add_u32 v13, v8, 2, v15")
    k("v_lshl_add_u32 v14, v2, 3, v12")
    k("v_lshlrev_b32 v14, 7, v14")
    k("v_lshl_add_u32 v14, v13, 3, v14")
    k("v_lshrrev_b32 v12, 1, v12")
    k("v_add_u32 v14, %s, v14" % s(S_LB))
    for ft in range(2):
        k("v_xor_b32 v15, %d, v12" % ft)
        k("v_lshl_add_u32 %s, v15, 6, v14" % v(VWR + ft))
    for j in range(64):
        k("v_mov_b32 %s, 0" % v(ACC + j))


def seg_params(k, n, kbase, dx, dw, dwrap):
    k("s_mul_i32 %s, %s, %d" % (s(S_T), s(S_RL), n // 4))
    k("s_mul_i32 %s, %s, %d" % (s(S_T2), s(S_CB), n))
    k("s_lshr_b32 %s, %s, 3" % (s(S_T2), s(S_T2)))
    k("s_add_u32 %s, %s, %s" % (s(S_T), s(S_T), s(S_T2)))
    k("s_cmp_ge_u32 %s, %d" % (s(S_T), n))
    k("s_cselect_b32 %s, %d, 0" % (s(S_T2), n))
    k("s_sub_u32 %s, %s, %s" % (s(S_T), s(S_T), s(S_T2)))
    k("s_sub_u32 %s, %d, %s" % (s(dwrap), n, s(S_T)))
    k("s_mul_i32 %s, %s, %d" % (s(S_T2), s(S_W), n))
    k("s_add_u32 %s, %s, %s" % (s(S_T), s(S_T), s(S_T2)))
    k("s_lshl_b32 %s, %s, 14" % (s(dw), s(S_T)))
    k("s_lshl_b32 %s, %s, 7" % (s(S_T2), s(S_CB)))
    k("s_add_u32 %s, %s, %s" % (s(dw), s(dw), s(S_T2)))
    k("s_add_u32 %s, %s, %d" % (s(S_T), s(S_T), kbase))
    k("s_lshl_b32 %s, %s, 10" % (s(S_T), s(S_T)))
    k("s_lshl_b32 %s, %s, 1" % (s(S_T2), s(S_RB)))
    k("s_mul_i32 %s, %s, %d" % (s(dx), s(S_T2), WS_HO_ROW))
    k("s_add_u32 %s, %s, %s" % (s(dx), s(dx), s(S_T)))
    k("s_add_u32 %s, %s, 0x%x" % (s(dx), s(dx), WS_HO))


XSC = [""]


def issue_groups(slot):
    g = []
    g.append(["buffer_load_dwordx4 %s, v3, %s, %s offen%s" % (v(XF + 8 * slot, 4), s(S_HD, 4), s(S_XO0), XSC[0])])
    g.append(["s_add_u32 %s, %s, %d" % (s(S_XO1), s(S_XO0), WS_HO_ROW),
              "buffer_load_dwordx4 %s, v3, %s, %s offen%s" % (v(XF + 8 * slot + 4, 4), s(S_HD, 4), s(S_XO1), XSC[0])])
    g.append(["s_add_u32 m0, %s, %d" % (s(S_LB), slot * WSLOT),
              "s_add_u32 %s, %s, 8192" % (s(S_T), s(S_WO)),
              "buffer_load_dwordx4 v4, %s, %s offen lds" % (s(S_WD, 4), s(S_WO))])
    g.append(["s_add_u32 m0, m0, 1024", "s_nop 0",
              "buffer_load_dwordx4 v4, %s, %s offen lds" % (s(S_WD, 4), s(S_T))])
    return g


def advance(k, lab, two_segments):
    k("s_add_u32 %s, %s, 1024" % (s(S_XO0), s(S_XO0)))
    k("s_add_u32 %s, %s, 16384" % (s(S_WO), s(S_WO)))
    k("s_sub_u32 %s, %s, 1" % (s(S_WRAP), s(S_WRAP)))
    k("s_cmp_lg_u32 %s, 0" % s(S_WRAP))
    k("s_cbranch_scc1 %s_nw" % lab)
    k("s_lshl_b32 %s, %s, 10" % (s(S_T), s(S_N)))
    k("s_sub_u32 %s, %s, %s" % (s(S_XO0), s(S_XO0), s(S_T)))
    k("s_lshl_b32 %s, %s, 14" % (s(S_T), s(S_N)))
    k("s_sub_u32 %s, %s, %s" % (s(S_WO), s(S_WO), s(S_T)))
    k("s_mov_b32 %s, %s" % (s(S_WRAP), s(S_N)))
    k.label(lab + "_nw")
    if two_segments:
        k("s_sub_u32 %s, %s, 1" % (s(S_LEFT), s(S_LEFT)))
        k("s_cmp_lg_u32 %s, 0" % s(S_LEFT))
        k("s_cbranch_scc1 %s_ns" % lab)
        k("s_mov_b32 %s, %s" % (s(S_XO0), s(S_BX)))
        k("s_mov_b32 %s, %s" % (s(S_WO), s(S_BW)))
        k("s_mov_b32 %s, %s" % (s(S_WRAP), s(S_BWRAP)))
        k("s_mov_b32 %s, %d" % (s(S_N), NB))
        k("s_mov_b32 %s, %s" % (s(S_WD), s(S_WOP)))
        k("s_and_b32 %s, %s, 0xffff" % (s(S_WD + 1), s(S_WOP + 1)))
        k("s_mov_b32 %s, 0x%x" % (s(S_WD + 2), 512 * 1024))
        k.label(lab + "_ns")


def rd_w(k, slot, buf):
    for ft in range(2):
        for u in range(2):
            k("ds_read_b64_tr_b16 %s, %s offset:%d" % (v(WF + 8 * buf + 4 * ft + 2 * u, 2), v(VWR + ft), slot * WSLOT + u * 512))


def step(k, d, lab, issue, vm, two_segments, last=False):
    if not last:
        k("s_waitcnt vmcnt(%d)" % vm)
        rd_w(k, (d + 1) % D, (d + 1) & 1)
        k("s_waitcnt lgkmcnt(4)")
    else:
        k("s_waitcnt lgkmcnt(0)")
    g = issue_groups((d + D - 1) % D) if issue else [[], [], [], []]
    j = 0
    for tt in range(2):
        for ft in range(2):
            dd = v(ACC + 16 * (2 * tt + ft), 16)
            k("v_mfma_f32_32x32x16_bf16 %s, %s, %s, %s" % (dd, v(WF + 8 * (d & 1) + 4 * ft, 4), v(XF + 8 * d + 4 * tt, 4), dd))
            for ins in g[j]:
                k(ins)
            j += 1
    if issue:
        advance(k, lab, two_segments)


def stream(k, pre, nsteps, two_segments, prio=None):
    for d in range(D - 1):
        for grp in issue_groups(d):
            for ins in grp:
                k(ins)
        advance(k, "%s_p%d" % (pre, d), two_segments)
    k("s_waitcnt vmcnt(8)")
    if prio:
        k("s_setprio %d" % prio)
    rd_w(k, 0, 0)
    ntrip = nsteps // D - 1
    k("s_mov_b32 %s, 0" % s(S_TRIP))
    k.label(pre + "_loop")
    for d in range(D):
        step(k, d, "%s_l%d" % (pre, d), True, 4, two_segments)
    k("s_add_u32 %s, %s, 1" % (s(S_TRIP), s(S_TRIP)))
    k("s_cmp_lt_u32 %s, %d" % (s(S_TRIP), ntrip))
    k("s_cbranch_scc1 %s_loop" % pre)
    step(k, 0, pre + "_t0", True, 4, two_segments)
    step(k, 1, pre + "_t1", False, 4, two_segments)
    step(k, 2, pre + "_t2", False, 0, two_segments)
    step(k, 3, pre + "_t3", False, 0, two_segments, last=True)


def reduce_and_store(k, pre):
    k("s_nop 15")
    k("s_barrier")
    for q in range(4):
        k("s_cmp_eq_u32 %s, %d" % (s(S_W), q))
        k("s_cbranch_scc1 %s_nw%d" % (pre, q))
        k("s_lshl_b32 %s, %s, 14" % (s(S_T), s(S_W)))
        k("v_add_u32 v8, %s, v3" % s(S_T))
        for g in range(4):
            k("ds_write_b128 v8, %s offset:%d" % (v(ACC + 16 * q + 4 * g, 4), q * 4096 + g * 1024))
        k.label("%s_nw%d" % (pre, q))
    for q in range(4):
        k("s_cmp_lg_u32 %s, %d" % (s(S_W), q))
        k("s_cbranch_scc1 %s_no%d" % (pre, q))
        for r in range(16):
            k("v_mov_b32 %s, %s" % (v(16 + r), v(ACC + 16 * q + r)))
        k.label("%s_no%d" % (pre, q))
    k("s_waitcnt lgkmcnt(0)")
    k("s_barrier")
    k("s_lshl_b32 %s, %s, 12" % (s(S_T2), s(S_W)))
    k("v_add_u32 v8, %s, v3" % s(S_T2))
    first = True
    for dq in range(1, 4):
        k("s_add_u32 %s, %s, %d" % (s(S_T2), s(S_W), dq))
        k("s_and_b32 %s, %s, 3" % (s(S_T2), s(S_T2)))
        k("s_lshl_b32 %s, %s, 14" % (s(S_T2), s(S_T2)))
        k("v_add_u32 v9, %s, v8" % s(S_T2))
        for g in range(4):
            k("ds_read_b128 %s, v9 offset:%d" % (v(64 + 16 * (dq - 1) + 4 * g, 4), g * 1024))
    for dq in range(1, 4):
        k("s_waitcnt lgkmcnt(%d)" % (4 * (3 - dq)))
        for r in range(16):
            k("v_add_f32 %s, %s, %s" % (v(16 + r), v(16 + r), v(64 + 16 * (dq - 1) + r)))


def resid_loads(k):
    k("s_lshr_b32 %s, %s, 1" % (s(S_T), s(S_W)))
    k("s_lshl_b32 %s, %s, 1" % (s(S_T2), s(S_RB)))
    k("s_add_u32 %s, %s, %s" % (s(S_T), s(S_T), s(S_T2)))
    k("s_lshl_b32 %s, %s, 15" % (s(S_T), s(S_T)))
    k("s_and_b32 %s, %s, 1" % (s(S_T2), s(S_W)))
    k("s_lshl_b32 %s, %s, 6" % (s(S_T2), s(S_T2)))
    k("s_lshl_b32 %s, %s, 7" % (s(S_N), s(S_CB)))
    k("s_add_u32 %s, %s, %s" % (s(S_BW), s(S_T2), s(S_N)))
    k("s_add_u32 %s, %s, %s" % (s(S_BX), s(S_T), s(S_BW)))
    k("v_lshlrev_b32 v10, 10, v1")
    k("v_lshl_add_u32 v10, v2, 4, v10")
    k("v_lshlrev_b32 v11, 4, v2")
    k("buffer_load_dwordx4 v[32:35], v10, %s, %s offen" % (s(S_XD, 4), s(S_BX)))
    k("buffer_load_dwordx4 v[36:39], v10, %s, %s offen offset:32" % (s(S_XD, 4), s(S_BX)))
    k("buffer_load_dwordx4 v[40:43], v11, %s, %s offen" % (s(S_BD, 4), s(S_BW)))
    k("buffer_load_dwordx4 v[44:47], v11, %s, %s offen offset:32" % (s(S_BD, 4), s(S_BW)))


def finish_tile(k):
    k("s_waitcnt vmcnt(0)")
    for half in range(2):
        for j in range(4):
            for src in (32, 40):
                r = src + 4 * half + j
                k("v_lshlrev_b32 v12, 16, %s" % v(r))
                k("v_and_b32 v13, 0xffff0000, %s" % v(r))
                k("v_add_f32 %s, %s, v12" % (v(16 + 8 * half + 2 * j), v(16 + 8 * half + 2 * j)))
                k("v_add_f32 %s, %s, v13" % (v(16 + 8 * half + 2 * j + 1), v(16 + 8 * half + 2 * j + 1)))
    for r in range(8):
        k("v_cvt_pk_bf16_f32 %s, %s, %s" % (v(16 + r), v(16 + 2 * r), v(17 + 2 * r)))
    k("buffer_store_dwordx4 v[16:19], v10, %s, %s offen" % (s(S_OD, 4), s(S_BX)))
    k("buffer_store_dwordx4 v[20:23], v10, %s, %s offen offset:32" % (s(S_OD, 4), s(S_BX)))


WS_BASE = 24 << 20


def ids(k, s_id):
    k("s_bfe_u32 %s, %s, 0x20003" % (s(S_RL), s_id))
    k("s_and_b32 %s, %s, 7" % (s(S_RB), s_id))
    k("s_lshl_b32 %s, %s, 2" % (s(S_RB), s(S_RB)))
    k("s_add_u32 %s, %s, %s" % (s(S_RB), s(S_RB), s(S_RL)))
    k("s_lshr_b32 %s, %s, 5" % (s(S_CB), s_id))


def add_resid(k):
    k("s_waitcnt vmcnt(0)")
    for half in range(2):
        for j in range(4):
            for src in (32, 40):
                r = src + 4 * half + j
                k("v_lshlrev_b32 v12, 16, %s" % v(r))
                k("v_and_b32 v13, 0xffff0000, %s" % v(r))
                k("v_add_f32 %s, %s, v12" % (v(16 + 8 * half + 2 * j), v(16 + 8 * half + 2 * j)))
                k("v_add_f32 %s, %s, v13" % (v(16 + 8 * half + 2 * j + 1), v(16 + 8 * half + 2 * j + 1)))


def gen_ffn2_role(k, pre, s_ws_size):
    k("v_lshrrev_b32 v1, 6, v0")
    k("v_and_b32 v0, 63, v0")
    k("v_readfirstlane_b32 %s, v1" % s(S_W))
    for r, off in ((S_WS, KA_WS), (S_W2, KA_W2), (S_X, KA_X), (S_B2, KA_B2)):
        k("s_load_dwordx2 %s, s[0:1], %d" % (s(r, 2), off))
    k("s_sub_u32 s3, s2, 256")
    k("s_cmp_ge_u32 %s, 4" % s(S_W))
    k("s_cbranch_scc1 %s_exit" % pre)
    ids(k, "s3")
    k("s_mul_i32 %s, %s, %d" % (s(S_LB), s(S_W), RING))
    seg_params(k, NA, 0, S_XO0, S_WO, S_WRAP)
    k("s_mov_b32 %s, %d" % (s(S_N), NA))
    setup(k)
    k("s_waitcnt lgkmcnt(0)")
    k.srd(S_HD, S_WS, s_ws_size)
    k.srd(S_WD, S_W2, 1792 * 1024)
    k.srd(S_XD, S_X, 2048 * 1024)
    k.srd(S_BD, S_B2, 1024)
    prof_mark(k, 2)
    stream(k, pre, NA, False, prio=(3 if "gp3" in OPT else (1 if "gp1" in OPT else 0)))
    prof_mark(k, 3)
    resid_loads(k)
    reduce_and_store(k, pre)
    add_resid(k)
    k("s_lshl_b32 %s, s3, 14" % s(S_T))
    k("s_lshl_b32 %s, %s, 12" % (s(S_T2), s(S_W)))
    k("s_add_u32 %s, %s, %s" % (s(S_T), s(S_T), s(S_T2)))
    k("s_add_u32 %s, %s, 0x%x" % (s(S_T), s(S_T), WS_BASE))
    for g in range(4):
        k("buffer_store_dwordx4 %s, v3, %s, %s offen offset:%d" % (v(16 + 4 * g, 4), s(S_HD, 4), s(S_T), 1024 * g))
    if "nopf" not in OPT:
        k("s_load_dwordx2 %s, s[0:1], %d" % (s(S_WOP, 2), KA_WO))
        k("s_waitcnt lgkmcnt(0)")
        k.srd(S_WD, S_WOP, 512 * 1024)
        k("s_lshl_b32 %s, %s, 17" % (s(S_T), s(S_W)))
        k("s_lshl_b32 %s, %s, 7" % (s(S_T2), s(S_CB)))
        k("s_add_u32 %s, %s, %s" % (s(S_T), s(S_T), s(S_T2)))
        for i in range(16):
            k("buffer_load_dwordx4 %s, v4, %s, %s offen" % (v(64 + 4 * i, 4), s(S_WD, 4), s(S_T)))
            k("s_add_u32 %s, %s, 8192" % (s(S_T), s(S_T)))
    k("s_waitcnt vmcnt(0)")
    prof_mark(k, 5)
    prof_rt(k, 6)
    prof_store(k, S_WS, S_W, 24)
    k.label(pre + "_exit")
    k("s_endpgm")


S_DBG = 60


def wait_flags(k, lab, s_off, n):
    k("s_cmp_eq_u32 %s, 0" % s(S_W))
    k("s_cbranch_scc0 %s_go" % lab)
    k("v_min_u32 v8, %d, v0" % (n - 1))
    k("v_lshl_add_u32 v8, v8, 2, %s" % s(s_off))
    k("s_mov_b32 %s, 0" % s(S_TRIP))
    k.label(lab + "_poll")
    k("global_load_dword v9, v8, %s sc1" % s(S_WS, 2))
    k("s_add_u32 %s, %s, 1" % (s(S_TRIP), s(S_TRIP)))
    k("s_waitcnt vmcnt(0)")
    k("v_cmp_eq_u32 vcc, 0, v9")
    k("s_nop 1")
    k("s_cmp_eq_u64 vcc, 0")
    k("s_cbranch_scc1 %s_go" % lab)
    k("s_cmp_eq_u64 vcc, exec")
    k("s_cbranch_scc0 %s_near" % lab)
    k("s_sleep %d" % (24 if "sl24" in OPT else 12))
    k.label(lab + "_near")
    k("s_sleep %d" % (8 if "sn8" in OPT else 3))
    k("s_cmp_lt_u32 %s, 0x40000" % s(S_TRIP))
    k("s_cbranch_scc1 %s_poll" % lab)
    k.label(lab + "_go")
    k("s_barrier")


def wo_tail(k, pre):
    OWN, OTH, XB, WB = 16, 96, 32, 112
    VLO, VHI = 14, 6
    k("s_barrier")
    k.srd(S_WD, S_WOP, 512 * 1024)
    k("s_lshl_b32 %s, %s, 17" % (s(S_T), s(S_W)))
    k("s_lshl_b32 %s, %s, 7" % (s(S_T2), s(S_CB)))
    k("s_add_u32 %s, %s, %s" % (s(S_T), s(S_T), s(S_T2)))
    k("s_lshl_b32 m0, %s, 14" % s(S_W))
    k("s_mov_b32 %s, 16" % s(S_TRIP))
    k.label(pre + "_wst")
    k("buffer_load_dwordx4 v4, %s, %s offen lds" % (s(S_WD, 4), s(S_T)))
    k("s_add_u32 %s, %s, 8192" % (s(S_T), s(S_T)))
    k("s_add_u32 m0, m0, 1024")
    k("s_sub_u32 %s, %s, 1" % (s(S_TRIP), s(S_TRIP)))
    k("s_cmp_lg_u32 %s, 0" % s(S_TRIP))
    k("s_cbranch_scc1 %s_wst" % pre)
    k("s_and_b32 %s, %s, 1" % (s(S_N), s(S_W)))
    k("s_and_b32 %s, %s, 1" % (s(S_WRAP), s(S_CB)))
    k("s_lshl_b32 %s, %s, 3" % (s(S_WRAP), s(S_WRAP)))
    k("v_subrev_u32 v6, %s, v6" % s(S_LB))
    k("v_subrev_u32 v7, %s, v7" % s(S_LB))
    k("s_cmp_eq_u32 %s, 0" % s(S_N))
    k("s_cselect_b64 vcc, -1, 0")
    k("v_cndmask_b32 v12, v7, v6, vcc")
    k("v_cndmask_b32 v13, v6, v7, vcc")
    k("s_lshl_b32 %s, %s, 15" % (s(S_T), s(S_N)))
    k("s_lshl_b32 %s, %s, 11" % (s(S_T2), s(S_WRAP)))
    k("s_add_u32 %s, %s, %s" % (s(S_LEFT), s(S_T), s(S_T2)))
    k("v_add_u32 %s, %s, v12" % (v(VLO), s(S_LEFT)))
    k("v_add_u32 %s, %s, v13" % (v(VLO + 1), s(S_LEFT)))
    k("s_sub_u32 %s, %s, %s" % (s(S_LEFT), s(S_T), s(S_T2)))
    k("s_add_u32 %s, %s, %d" % (s(S_LEFT), s(S_LEFT), 8 * 2048))
    k("v_add_u32 %s, %s, v12" % (v(VHI), s(S_LEFT)))
    k("v_add_u32 %s, %s, v13" % (v(VHI + 1), s(S_LEFT)))
    for r in range(16):
        k("v_mov_b32 %s, 0" % v(OTH + r))
    k("s_lshr_b32 %s, %s, 1" % (s(S_T), s(S_W)))
    k("s_lshl_b32 %s, %s, 1" % (s(S_T2), s(S_RB)))
    k("s_add_u32 %s, %s, %s" % (s(S_T), s(S_T), s(S_T2)))
    k("s_mul_i32 %s, %s, %d" % (s(S_XO0), s(S_T), WS_HO_ROW))
    k("s_lshl_b32 %s, %s, 14" % (s(S_T), s(S_N)))
    k("s_add_u32 %s, %s, %s" % (s(S_XO0), s(S_XO0), s(S_T)))
    k("s_add_u32 %s, %s, 0x%x" % (s(S_XO0), s(S_XO0), WS_HO + 112 * 1024))
    k("s_lshl_b32 %s, %s, 10" % (s(S_T), s(S_WRAP)))
    k("s_add_u32 %s, %s, %s" % (s(S_XO1), s(S_XO0), s(S_T)))
    k("s_sub_u32 %s, %s, %s" % (s(S_XO0), s(S_XO0), s(S_T)))
    def xloads():
        k("s_mov_b32 %s, %s" % (s(S_T), s(S_XO1)))
        k("s_add_u32 %s, %s, 8192" % (s(S_T2), s(S_XO0)))
        for i in range(16):
            so = S_T if i < 8 else S_T2
            if i in (4, 12):
                k("s_add_u32 %s, %s, 4096" % (s(so), s(so)))
            k("buffer_load_dwordx4 %s, v3, %s, %s offen offset:%d sc1" % (v(XB + 4 * i, 4), s(S_HD, 4), s(so), (i % 4) * 1024))

    prof_mark(k, 2)
    if "tagged" in OPT:
        k("s_waitcnt vmcnt(0)")
        k("s_barrier")
        k("s_setprio 0")
        k("s_lshl_b32 %s, %s, 10" % (s(S_T2), s(S_WRAP)))
        k("s_sub_u32 %s, %s, %s" % (s(S_LEFT), s(S_XO1), s(S_T2)))
        k("v_and_b32 v8, 15, v0")
        k("v_lshlrev_b32 v8, 10, v8")
        k("v_add_u32 v8, 1020, v8")
        k("s_mov_b32 %s, 0" % s(S_TRIP))
        k.label(pre + "_lp")
        k("buffer_load_dword v9, v8, %s, %s offen sc1" % (s(S_HD, 4), s(S_LEFT)))
        k("s_add_u32 %s, %s, 1" % (s(S_TRIP), s(S_TRIP)))
        k("s_waitcnt vmcnt(0)")
        k("v_cmp_eq_u32 vcc, -1, v9")
        k("s_nop 1")
        k("s_cmp_eq_u64 vcc, 0")
        k("s_cbranch_scc1 %s_full" % pre)
        k("s_cmp_eq_u64 vcc, exec")
        k("s_cbranch_scc0 %s_lnear" % pre)
        k("s_sleep 24")
        k("s_branch %s_lagain" % pre)
        k.label(pre + "_lnear")
        k("s_setprio 3")
        k("s_sleep 2")
        k.label(pre + "_lagain")
        k("s_cmp_lt_u32 %s, 0x8000" % s(S_TRIP))
        k("s_cbranch_scc1 %s_lp" % pre)
        k.label(pre + "_full")
        k("s_setprio 3")
        xloads()
        k("s_add_u32 %s, %s, 1" % (s(S_TRIP), s(S_TRIP)))
        for g in range(4):
            k("s_waitcnt vmcnt(%d)" % (12 - 4 * g))
            for r in range(0, 16, 2):
                a_, b_ = XB + 16 * g + r, XB + 16 * g + r + 1
                if g == 0 and r == 0:
                    k("v_max_u32 v9, %s, %s" % (v(a_), v(b_)))
                else:
                    k("v_max3_u32 v9, v9, %s, %s" % (v(a_), v(b_)))
        k("v_cmp_eq_u32 vcc, -1, v9")
        k("s_nop 1")
        k("s_cmp_eq_u64 vcc, 0")
        k("s_cbranch_scc1 %s_got" % pre)
        k("s_cmp_lt_u32 %s, 0x8000" % s(S_TRIP))
        k("s_cbranch_scc1 %s_full" % pre)
        k.label(pre + "_got")
        prof_mark(k, 4)
    else:
        k("s_lshl_b32 %s, %s, 8" % (s(S_LEFT), s(S_RB)))
        k("s_add_u32 %s, %s, 0x%x" % (s(S_LEFT), s(S_LEFT), WS_FLAG + FLAG_O))
        k("s_waitcnt vmcnt(0)")
        k("s_setprio 3")
        wait_flags(k, pre + "_w", S_LEFT, 64)
        prof_mark(k, 4)
        xloads()

    def rd(i):
        base = VLO if i < 8 else VHI
        for j in range(2):
            for u in range(2):
                k("ds_read_b64_tr_b16 %s, %s offset:%d" % (v(WB + 8 * (i & 1) + 4 * j + 2 * u, 2), v(base + j), (i & 7) * 2048 + u * 512))

    rd(0)
    for i in range(16):
        if i < 15:
            rd(i + 1)
        if "tagged" in OPT:
            k("s_waitcnt lgkmcnt(%d)" % (4 if i < 15 else 0))
        else:
            k("s_waitcnt vmcnt(%d) lgkmcnt(%d)" % (15 - i, 4 if i < 15 else 0))
        for j, acc in ((0, OWN), (1, OTH)):
            k("v_mfma_f32_32x32x16_bf16 %s, %s, %s, %s" % (v(acc, 16), v(WB + 8 * (i & 1) + 4 * j, 4), v(XB + 4 * i, 4), v(acc, 16)))
    k("s_barrier")
    k("s_xor_b32 %s, %s, 1" % (s(S_T), s(S_W)))
    k("s_lshl_b32 %s, %s, 12" % (s(S_T), s(S_T)))
    k("v_add_u32 v12, %s, v3" % s(S_T))
    k("s_lshl_b32 %s, %s, 12" % (s(S_T), s(S_W)))
    k("v_add_u32 v13, %s, v3" % s(S_T))
    k("s_nop 7")
    for g in range(4):
        k("ds_write_b128 v12, %s offset:%d" % (v(OTH + 4 * g, 4), g * 1024))
    k("s_waitcnt lgkmcnt(0)")
    k("s_barrier")
    for g in range(4):
        k("ds_read_b128 %s, v13 offset:%d" % (v(XB + 4 * g, 4), g * 1024))
    k("v_lshlrev_b32 v10, 10, v1")
    k("v_lshl_add_u32 v10, v2, 4, v10")
    for g in range(4):
        k("s_waitcnt lgkmcnt(%d)" % (3 - g))
        for r in range(4):
            k("v_add_f32 %s, %s, %s" % (v(OWN + 4 * g + r), v(OWN + 4 * g + r), v(XB + 4 * g + r)))
    for r in range(8):
        k("v_cvt_pk_bf16_f32 %s, %s, %s" % (v(16 + r), v(16 + 2 * r), v(17 + 2 * r)))
    k("buffer_store_dwordx4 v[16:19], v10, %s, %s offen" % (s(S_OD, 4), s(S_BX)))
    k("buffer_store_dwordx4 v[20:23], v10, %s, %s offen offset:32" % (s(S_OD, 4), s(S_BX)))


def gen_g_role(k, pre):
    k("v_lshrrev_b32 v1, 6, v0")
    k("v_and_b32 v0, 63, v0")
    k("v_readfirstlane_b32 %s, v1" % s(S_W))
    for r, off in ((S_WS, KA_WS), (S_W2, KA_W2), (S_WOP, KA_WO), (S_X, KA_X), (S_B2, KA_B2), (S_OUT, KA_OUT)):
        k("s_load_dwordx2 %s, s[0:1], %d" % (s(r, 2), off))
    k("s_sub_u32 s3, s2, 256")
    k("s_cmp_ge_u32 %s, 4" % s(S_W))
    k("s_cbranch_scc1 %s_exit" % pre)
    ids(k, "s3")
    k("s_mul_i32 %s, %s, %d" % (s(S_LB), s(S_W), RING))
    seg_params(k, NA, 0, S_XO0, S_WO, S_WRAP)
    k("s_mov_b32 %s, %d" % (s(S_N), NA))
    setup(k)
    k("s_waitcnt lgkmcnt(0)")
    k.srd(S_HD, S_WS, WS_END)
    k.srd(S_WD, S_W2, 1792 * 1024)
    k.srd(S_XD, S_X, 2048 * 1024)
    k.srd(S_OD, S_OUT, 2048 * 1024)
    k.srd(S_BD, S_B2, 1024)
    stream(k, pre + "a", NA, False)
    prof_mark(k, 3)
    for lvl in (1, 2, 3):
        if "rp%d" % lvl in OPT:
            k("s_setprio %d" % lvl)
    resid_loads(k)
    reduce_and_store(k, pre)
    add_resid(k)
    wo_tail(k, pre)
    k("s_waitcnt vmcnt(0)")
    if common.STAMP:
        k("s_cmp_eq_u32 s2, 256")
        k("s_cbranch_scc0 %s_ng" % pre)
        k("s_cmp_eq_u32 %s, 0" % s(S_W))
        k("s_cbranch_scc0 %s_ng" % pre)
        k("s_load_dwordx2 s[60:61], s[0:1], %d" % KA_DBG)
        k("s_memrealtime s[88:89]")
        k("s_waitcnt lgkmcnt(0)")
        k("v_lshrrev_b32 v8, 2, v0")
        k("v_mul_u32_u24 v8, %d, v8" % (65 * 32))
        k("v_and_b32 v9, 3, v0")
        k("v_lshl_add_u32 v8, v9, 2, v8")
        k("v_add_u32 v8, 0x%x, v8" % WS_STAMP)
        k("v_cmp_gt_u32 vcc, 15, v0")
        k("s_and_saveexec_b64 s[62:63], vcc")
        k("global_load_dword v9, v8, %s sc1" % s(S_WS, 2))
        k("s_waitcnt vmcnt(0)")
        k("s_mov_b64 exec, s[62:63]")
        k("v_mov_b32 v10, s88")
        k("v_cmp_eq_u32 vcc, 15, v0")
        k("s_nop 1")
        k("v_cndmask_b32 v9, v9, v10, vcc")
        k("v_lshlrev_b32 v8, 2, v0")
        k("v_cmp_gt_u32 vcc, 16, v0")
        k("s_and_saveexec_b64 s[62:63], vcc")
        k("global_store_dword v8, v9, s[60:61]")
        k("s_waitcnt vmcnt(0)")
        k("s_mov_b64 exec, s[62:63]")
        k.label(pre + "_ng")
    prof_mark(k, 5)
    prof_rt(k, 6)
    prof_store(k, S_WS, S_W, 24)
    k.label(pre + "_exit")
    k("s_endpgm")


def gen_wo(k, name, pre):
    k.kernel_begin(name)
    k("s_cmp_ge_u32 s2, 256")
    k("s_cbranch_scc1 %s_exit" % pre)
    prof_start(k)
    for r, off in ((S_WS, KA_WS), (S_WOP, KA_WO), (S_OUT, KA_OUT)):
        k("s_load_dwordx2 %s, s[0:1], %d" % (s(r, 2), off))
    ids(k, "s2")
    k("v_lshrrev_b32 v1, 6, v0")
    k("v_and_b32 v0, 63, v0")
    k("v_readfirstlane_b32 %s, v1" % s(S_W))
    k("s_nop 0")
    k("s_mul_i32 %s, %s, %d" % (s(S_LB), s(S_W), RING))
    seg_params(k, NB, 112, S_XO0, S_WO, S_WRAP)
    k("s_mov_b32 %s, %d" % (s(S_N), NB))
    setup(k)
    k("s_waitcnt lgkmcnt(0)")
    k.srd(S_HD, S_WS, WS_BASE + (4 << 20))
    k.srd(S_WD, S_WOP, 512 * 1024)
    k.srd(S_OD, S_OUT, 2048 * 1024)
    k("s_lshl_b32 %s, s2, 14" % s(S_T))
    k("s_lshl_b32 %s, %s, 12" % (s(S_T2), s(S_W)))
    k("s_add_u32 %s, %s, %s" % (s(S_T), s(S_T), s(S_T2)))
    k("s_add_u32 %s, %s, 0x%x" % (s(S_T), s(S_T), WS_BASE))
    for q in range(4):
        k("s_cmp_lg_u32 %s, %d" % (s(S_W), q))
        k("s_cbranch_scc1 %s_nb%d" % (pre, q))
        for g in range(4):
            k("buffer_load_dwordx4 %s, v3, %s, %s offen offset:%d" % (v(ACC + 16 * q + 4 * g, 4), s(S_HD, 4), s(S_T), 1024 * g))
        k.label("%s_nb%d" % (pre, q))
    prof_mark(k, 2)
    stream(k, pre, NB, False)
    prof_mark(k, 3)
    reduce_and_store(k, pre)
    k("s_lshr_b32 %s, %s, 1" % (s(S_T), s(S_W)))
    k("s_lshl_b32 %s, %s, 1" % (s(S_T2), s(S_RB)))
    k("s_add_u32 %s, %s, %s" % (s(S_T), s(S_T), s(S_T2)))
    k("s_lshl_b32 %s, %s, 15" % (s(S_T), s(S_T)))
    k("s_and_b32 %s, %s, 1" % (s(S_T2), s(S_W)))
    k("s_lshl_b32 %s, %s, 6" % (s(S_T2), s(S_T2)))
    k("s_add_u32 %s, %s, %s" % (s(S_T), s(S_T), s(S_T2)))
    k("s_lshl_b32 %s, %s, 7" % (s(S_T2), s(S_CB)))
    k("s_add_u32 %s, %s, %s" % (s(S_T), s(S_T), s(S_T2)))
    k("v_lshlrev_b32 v10, 10, v1")
    k("v_lshl_add_u32 v10, v2, 4, v10")
    for r in range(8):
        k("v_cvt_pk_bf16_f32 %s, %s, %s" % (v(16 + r), v(16 + 2 * r), v(17 + 2 * r)))
    k("buffer_store_dwordx4 v[16:19], v10, %s, %s offen" % (s(S_OD, 4), s(S_T)))
    k("buffer_store_dwordx4 v[20:23], v10, %s, %s offen offset:32" % (s(S_OD, 4), s(S_T)))
    k("s_waitcnt vmcnt(0)")
    prof_mark(k, 5)
    prof_rt(k, 6)
    prof_store(k, S_WS, S_W, 24)
    k.label(pre + "_exit")
    k.kernel_end(name, 128, 128)
    return 256, 65536


def gen_final(k, name, pre):
    k.kernel_begin(name)
    k("s_cmp_ge_u32 s2, 256")
    k("s_cbranch_scc1 %s_exit" % pre)
    prof_start(k)
    for r, off in ((S_WS, KA_WS), (S_W2, KA_W2), (S_WOP, KA_WO), (S_X, KA_X), (S_B2, KA_B2), (S_OUT, KA_OUT)):
        k("s_load_dwordx2 %s, s[0:1], %d" % (s(r, 2), off))
    k("s_bfe_u32 %s, s2, 0x20003" % s(S_RL))
    k("s_and_b32 %s, s2, 7" % s(S_RB))
    k("s_lshl_b32 %s, %s, 2" % (s(S_RB), s(S_RB)))
    k("s_add_u32 %s, %s, %s" % (s(S_RB), s(S_RB), s(S_RL)))
    k("s_lshr_b32 %s, s2, 5" % s(S_CB))
    k("v_lshrrev_b32 v1, 6, v0")
    k("v_and_b32 v0, 63, v0")
    k("v_readfirstlane_b32 %s, v1" % s(S_W))
    k("s_nop 0")
    k("s_mul_i32 %s, %s, %d" % (s(S_LB), s(S_W), RING))
    seg_params(k, NA, 0, S_XO0, S_WO, S_WRAP)
    seg_params(k, NB, 112, S_BX, S_BW, S_BWRAP)
    k("s_mov_b32 %s, %d" % (s(S_N), NA))
    k("s_mov_b32 %s, %d" % (s(S_LEFT), NA))
    setup(k)
    k("s_waitcnt lgkmcnt(0)")
    k.srd(S_HD, S_WS, WS_END)
    k.srd(S_WD, S_W2, 1792 * 1024)
    k.srd(S_XD, S_X, 2048 * 1024)
    k.srd(S_OD, S_OUT, 2048 * 1024)
    k.srd(S_BD, S_B2, 1024)
    prof_mark(k, 2)
    stream(k, pre, NA + NB, True)
    prof_mark(k, 3)
    resid_loads(k)
    reduce_and_store(k, pre)
    finish_tile(k)
    k("s_waitcnt vmcnt(0)")
    prof_mark(k, 5)
    prof_rt(k, 6)
    prof_store(k, S_WS, S_W, 24)
    k.label(pre + "_exit")
    k.kernel_end(name, 128, 128)
    return 256, 65536
```

```python
import common
from common import *

OPT = set()
XBYTES = 65536
L_PART = XBYTES
L_BI = L_PART + 2048
SLOT0 = XBYTES + 3072
SLOT = 16384
R = 5
SLOTE = SLOT0 + R * SLOT
LDS_BYTES = SLOTE
WS_XN = 20 << 20

S_X, S_WQ, S_WS, S_B1, S_W1 = 4, 6, 8, 10, 40
S_XD, S_WD, S_OD = 12, 16, 20
S_W, S_RB, S_CT, S_T, S_T2, S_C, S_SLOT, S_WO, S_LD = 24, 25, 26, 27, 28, 29, 30, 32, 33
S_RSLOT, S_T3, S_ROT, S_CK, S_KC, S_U, S_NCH, S_WEND, S_LD3, S_LD4 = 35, 36, 37, 38, 39, 42, 43, 44, 45, 46

VA0, VXA, NX, NS, NQ, NT = 4, 5, 16, 48, 50, 52
VWQ, VWF = 6, 7
VW2 = 11
VX = 19
XF = [20, 24]
WF = [28, 44]
ACC = 60
NV = 128
VQO, VFO = 6, 9


def entry(k, pre, name):
    k("s_cmp_ge_u32 s2, 256")
    k("s_cbranch_scc1 %s_exit" % pre)
    prof_start(k)
    k("s_load_dwordx2 %s, s[0:1], %d" % (s(S_X, 2), KA_X))
    k("s_load_dwordx2 %s, s[0:1], %d" % (s(S_WQ, 2), KA_WQKV))
    k("s_load_dwordx2 %s, s[0:1], %d" % (s(S_W1, 2), KA_W1))
    k("s_load_dwordx2 %s, s[0:1], %d" % (s(S_WS, 2), KA_WS))
    k("s_load_dwordx2 %s, s[0:1], %d" % (s(S_B1, 2), KA_B1))
    k("v_lshrrev_b32 v1, 6, v0")
    k("v_and_b32 v0, 63, v0")
    k("v_readfirstlane_b32 %s, v1" % s(S_W))
    if "nopf" not in OPT:
        k("s_getpc_b64 s[50:51]")
        k.label(pre + "_pc")
        k("s_sub_u32 s50, s50, %s_pc-%s" % (pre, name))
        k("s_subb_u32 s51, s51, 0")
        k("s_lshr_b32 s52, s2, 3")
        k("s_lshl_b32 s52, s52, 10")
        k("v_lshl_add_u32 v3, v0, 4, s52")
        k("v_cmp_gt_u32 vcc, L_text_end-%s-16, v3" % name)
        k("s_cmp_eq_u32 %s, 7" % s(S_W))
        k("s_cselect_b64 s[52:53], vcc, 0")
        k("s_and_saveexec_b64 s[54:55], s[52:53]")
        k("s_cbranch_execz %s_npf" % pre)
        k("global_load_dwordx4 v[112:115], v3, s[50:51]")
        k.label(pre + "_npf")
        k("s_mov_b64 exec, s[54:55]")
    k("s_lshr_b32 %s, s2, 3" % s(S_T))
    k("s_and_b32 %s, %s, 7" % (s(S_ROT), s(S_T)))
    k("s_and_b32 %s, s2, 3" % s(S_RB))
    k("s_lshl_b32 %s, %s, 3" % (s(S_RB), s(S_RB)))
    k("s_add_u32 %s, %s, %s" % (s(S_RB), s(S_RB), s(S_ROT)))
    k("s_lshr_b32 %s, %s, 3" % (s(S_T), s(S_T)))
    k("s_bfe_u32 %s, s2, 0x10002" % s(S_CT))
    k("s_lshl_b32 %s, %s, 2" % (s(S_CT), s(S_CT)))
    k("s_add_u32 %s, %s, %s" % (s(S_CT), s(S_CT), s(S_T)))
    k("s_lshl_b32 %s, %s, 1" % (s(S_ROT), s(S_ROT)))
    k("s_lshl_b32 %s, %s, 1" % (s(S_T), s(S_T)))
    k("s_add_u32 %s, %s, %s" % (s(S_T), s(S_T), s(S_W)))
    k("s_and_b32 %s, %s, 7" % (s(S_T), s(S_T)))
    k("s_lshl_b32 %s, %s, 3" % (s(S_T3), s(S_T)))
    k("v_lshlrev_b32 v3, 4, v0")
    k("s_lshl_b32 %s, %s, 6" % (s(S_T), s(S_RB)))
    k("s_add_u32 %s, %s, %s" % (s(S_T), s(S_T), s(S_T3)))
    k("s_lshl_b32 %s, %s, 10" % (s(S_T2), s(S_T)))
    k("s_lshl_b32 m0, %s, 10" % s(S_T3))
    k("s_and_b32 %s, %s, 8" % (s(S_T3), s(S_T3)))
    k("s_waitcnt lgkmcnt(0)")
    stamp(k, 0, S_WS, S_W)
    k.srd(S_XD, S_X, 2048 * 1024)
    for i in range(8):
        k("s_add_u32 %s, %s, %d" % (s(S_T), s(S_T3), i))
        k("s_lshl_b32 %s, %s, 4" % (s(S_T), s(S_T)))
        k("v_xor_b32 v4, %s, v3" % s(S_T))
        k("buffer_load_dwordx4 v4, %s, %s offen lds" % (s(S_XD, 4), s(S_T2)))
        if i < 7:
            k("s_add_u32 m0, m0, 1024")
            k("s_add_u32 %s, %s, 1024" % (s(S_T2), s(S_T2)))
    if "p2" not in OPT and "p3" not in OPT:
        prof_mark(k, 2)
    k("v_and_b32 v1, 31, v0")
    k("v_lshrrev_b32 v2, 5, v0")
    k.srd(S_OD, S_WS, WS_END if "xn" not in OPT else WS_XN + (2 << 20))
    k.srd(S_WD, S_WQ, 512 * 3072)
    for r in range(6, 11):
        k("v_mov_b32 %s, 0" % v(r))
    if "poison" in OPT:
        k("s_lshr_b32 %s, s2, 2" % s(S_T))
        k("s_mul_i32 %s, %s, %d" % (s(S_T), s(S_T), WS_HO_ROW))
        k("s_and_b32 %s, s2, 3" % s(S_T2))
        k("s_lshl_b32 %s, %s, 3" % (s(S_T2), s(S_T2)))
        k("s_add_u32 %s, %s, %s" % (s(S_T2), s(S_T2), s(S_W)))
        k("s_lshl_b32 %s, %s, 10" % (s(S_T2), s(S_T2)))
        k("s_add_u32 %s, %s, %s" % (s(S_T), s(S_T), s(S_T2)))
        k("s_add_u32 %s, %s, 0x%x" % (s(S_T), s(S_T), WS_HO + 112 * 1024))
        k("v_lshlrev_b32 v4, 4, v0")
        for r in range(4):
            k("v_mov_b32 %s, -1" % v(12 + r))
        k("buffer_store_dwordx4 v[12:15], v4, %s, %s offen" % (s(S_OD, 4), s(S_T)))
    k("s_cmp_lt_u32 s2, 48")
    k("s_cbranch_scc0 %s_nz" % pre)
    k("s_cmp_eq_u32 %s, 0" % s(S_W))
    k("s_cbranch_scc0 %s_nz" % pre)
    k("s_lshl_b32 %s, s2, 8" % s(S_T))
    k("s_add_u32 %s, %s, 0x%x" % (s(S_T), s(S_T), WS_FLAG))
    k("v_lshl_add_u32 v4, v0, 2, %s" % s(S_T))
    k("v_mov_b32 v5, 0")
    k("global_store_dword v4, v5, %s" % s(S_WS, 2))
    k.label(pre + "_nz")
    k("s_cmp_ge_u32 %s, 4" % s(S_W))
    k("s_cbranch_scc1 %s_loader" % pre)


def xaddr_base(k, s_tile):
    k("s_lshl_b32 %s, %s, 15" % (s(S_T), s(s_tile)))
    k("v_and_b32 v3, 15, v1")
    k("v_xor_b32 v3, v3, v2")
    k("v_lshlrev_b32 v3, 4, v3")
    k("v_lshl_add_u32 v3, v1, 10, v3")
    k("v_add_u32 %s, %s, v3" % (v(VA0), s(S_T)))


def normalise(k, pre, dma, younger):
    k("s_and_b32 %s, %s, 1" % (s(S_T2), s(S_W)))
    xaddr_base(k, S_T2)
    k("s_lshr_b32 %s, %s, 1" % (s(S_T3), s(S_W)))
    k("s_lshl_b32 %s, %s, 8" % (s(S_U), s(S_T3)))
    k("v_xor_b32 %s, %s, %s" % (v(VXA), s(S_U), v(VA0)))
    k("s_cmp_ge_u32 %s, 4" % s(S_W))
    k("s_cbranch_scc1 %s_nwl" % pre)
    k("s_waitcnt vmcnt(0)")
    k.label(pre + "_nwl")
    k("s_waitcnt vmcnt(%d)" % younger)
    k("s_barrier")
    if "p2" not in OPT:
        prof_mark(k, 3)
    for i in range(8):
        k("v_xor_b32 %s, %d, %s" % (v(NT + 8 + i), 32 * i, v(VXA)))
    AD = NT + 8
    for i in range(8):
        k("ds_read_b128 %s, %s" % (v(NX + 4 * i, 4), v(AD + i)))
    for r in range(4):
        k("v_mov_b32 %s, 0" % v(NS + r))
    k("v_mov_b32 %s, 0x3f803f80" % v(NT))
    for i in range(8):
        k("s_waitcnt lgkmcnt(%d)" % (7 - i))
        for r in range(4):
            k("v_dot2c_f32_bf16 %s, %s, %s" % (v(NS + (r & 1)), v(NT), v(NX + 4 * i + r)))
            k("v_dot2c_f32_bf16 %s, %s, %s" % (v(NQ + (r & 1)), v(NX + 4 * i + r), v(NX + 4 * i + r)))
    k("s_nop 2")
    for r in (NS, NQ):
        k("v_add_f32 %s, %s, %s" % (v(r), v(r), v(r + 1)))
        k("v_mov_b32 %s, %s" % (v(r + 1), v(r)))
        k("s_nop 1")
        k("v_permlane32_swap_b32 %s, %s" % (v(r + 1), v(r)))
        k("s_nop 1")
        k("v_add_f32 %s, %s, %s" % (v(r), v(r), v(r + 1)))
    if "p3" in OPT:
        prof_mark(k, 2)
    k("s_cmp_ge_u32 %s, 4" % s(S_W))
    k("s_cbranch_scc0 %s_nnd" % pre)
    for grp in dma:
        for ins in grp:
            k(ins)
    k.label(pre + "_nnd")
    k("v_mov_b32 %s, %s" % (v(NS + 1), v(NQ)))
    k("s_lshl_b32 %s, %s, 8" % (s(S_T), s(S_W)))
    k("s_add_u32 %s, %s, %d" % (s(S_T), s(S_T), L_PART))
    k("v_lshl_add_u32 v3, v1, 3, %s" % s(S_T))
    k("ds_write_b64 v3, %s" % v(NS, 2))
    k("s_waitcnt lgkmcnt(0)")
    k("s_barrier")
    if "p3" in OPT:
        prof_mark(k, 4)
    k("s_and_b32 %s, %s, 1" % (s(S_T), s(S_W)))
    k("s_lshl_b32 %s, %s, 8" % (s(S_T), s(S_T)))
    k("s_add_u32 %s, %s, %d" % (s(S_T), s(S_T), L_PART))
    k("v_lshl_add_u32 v3, v1, 3, %s" % s(S_T))
    PT = NT + 16
    for q in range(4):
        k("ds_read_b64 %s, v3 offset:%d" % (v(PT + 2 * q, 2), q * 512))
    k("s_waitcnt lgkmcnt(0)")
    k("v_add_f32 %s, %s, %s" % (v(PT), v(PT), v(PT + 2)))
    k("v_add_f32 %s, %s, %s" % (v(PT + 1), v(PT + 1), v(PT + 3)))
    k("v_add_f32 %s, %s, %s" % (v(PT + 4), v(PT + 4), v(PT + 6)))
    k("v_add_f32 %s, %s, %s" % (v(PT + 5), v(PT + 5), v(PT + 7)))
    k("v_add_f32 %s, %s, %s" % (v(NS), v(PT), v(PT + 4)))
    k("v_add_f32 %s, %s, %s" % (v(NQ), v(PT + 1), v(PT + 5)))
    k("v_mul_f32 %s, 0x%x, %s" % (v(NS), f2u(1.0 / 512), v(NS)))
    k("v_mul_f32 %s, 0x%x, %s" % (v(NQ), f2u(1.0 / 512), v(NQ)))
    k("v_fma_f32 %s, -%s, %s, %s" % (v(NQ), v(NS), v(NS), v(NQ)))
    k("v_max_f32 %s, 0, %s" % (v(NQ), v(NQ)))
    k("v_add_f32 %s, 0x%x, %s" % (v(NQ), f2u(1e-5), v(NQ)))
    k("v_rsq_f32 %s, %s" % (v(NQ), v(NQ)))
    MK, TP = NT + 24, NT + 26
    k("v_mov_b32 %s, 0xffff0000" % v(MK))
    k("v_mul_f32 %s, %s, %s" % (v(NS), v(NS), v(NQ)))
    k("v_mov_b32 %s, %s" % (v(NQ + 1), v(NQ)))
    k("v_sub_f32 %s, 0, %s" % (v(NS), v(NS)))
    k("v_mov_b32 %s, %s" % (v(NS + 1), v(NS)))
    for i in range(8):
        for r in range(4):
            x = NX + 4 * i + r
            t = TP + 2 * (r & 1)
            k("v_lshlrev_b32 %s, 16, %s" % (v(t), v(x)))
            k("v_and_b32 %s, %s, %s" % (v(t + 1), v(MK), v(x)))
            if r > 0:
                tp = TP + 2 * ((r - 1) & 1)
                k("v_cvt_pk_bf16_f32 %s, %s, %s" % (v(x - 1), v(tp), v(tp + 1)))
            k("v_pk_fma_f32 %s, %s, %s, %s" % (v(t, 2), v(t, 2), v(NQ, 2), v(NS, 2)))
        tp = TP + 2
        k("v_cvt_pk_bf16_f32 %s, %s, %s" % (v(NX + 4 * i + 3), v(tp), v(tp + 1)))
        k("ds_write_b128 %s, %s" % (v(AD + i), v(NX + 4 * i, 4)))
    if "p3" in OPT:
        prof_mark(k, 5)
    if "xn" in OPT:
        k("s_lshr_b32 %s, %s, 1" % (s(S_T), s(S_CT)))
        k("s_lshr_b32 %s, %s, 1" % (s(S_T2), s(S_W)))
        k("s_cmp_eq_u32 %s, %s" % (s(S_T), s(S_T2)))
        k("s_cbranch_scc0 %s_noxn%s" % (pre, ""))
        k("s_and_b32 %s, %s, 1" % (s(S_T), s(S_W)))
        k("s_lshl_b32 %s, %s, 1" % (s(S_T2), s(S_RB)))
        k("s_add_u32 %s, %s, %s" % (s(S_T), s(S_T), s(S_T2)))
        k("s_lshl_b32 %s, %s, 15" % (s(S_T), s(S_T)))
        k("s_lshl_b32 %s, %s, 12" % (s(S_T2), s(S_CT)))
        k("s_add_u32 %s, %s, %s" % (s(S_T), s(S_T), s(S_T2)))
        k("s_add_u32 %s, %s, 0x%x" % (s(S_T), s(S_T), WS_XN))
        k("v_lshlrev_b32 v3, 4, v0")
        k("s_bitcmp1_b32 %s, 0" % s(S_CT))
        k("s_cbranch_scc1 %s_xnhi%s" % (pre, ""))
        for i in range(4):
            k("buffer_store_dwordx4 %s, v3, %s, %s offen offset:%d" % (v(NX + 4 * i, 4), s(S_OD, 4), s(S_T), 1024 * i))
        k("s_branch %s_noxn%s" % (pre, ""))
        k.label("%s_xnhi%s" % (pre, ""))
        for i in range(4):
            k("buffer_store_dwordx4 %s, v3, %s, %s offen offset:%d" % (v(NX + 16 + 4 * i, 4), s(S_OD, 4), s(S_T), 1024 * i))
        k.label("%s_noxn%s" % (pre, ""))
    k("s_waitcnt lgkmcnt(0)")


def next_slot(k, r):
    k("s_add_u32 %s, %s, %d" % (s(r), s(r), SLOT))
    k("s_cmp_ge_u32 %s, %d" % (s(r), SLOTE))
    k("s_cselect_b32 %s, %d, %s" % (s(r), SLOT0, s(r)))


def wfrag_addr(k):
    t = ACC
    r, b, h, g, x, y = t, t + 1, t + 2, t + 3, t + 4, t + 5
    k("s_lshr_b32 %s, %s, 1" % (s(S_T), s(S_W)))
    k("v_bfe_u32 %s, v0, 2, 2" % v(r))
    k("v_and_b32 %s, 3, v0" % v(b))
    k("v_bfe_u32 %s, v0, 4, 1" % v(h))
    k("v_lshl_add_u32 %s, %s, 2, %s" % (v(b), v(h), v(b)))
    k("v_and_b32 %s, 1, %s" % (v(h), v(b)))
    k("v_lshrrev_b32 %s, 1, %s" % (v(g), v(b)))
    k("v_lshl_add_u32 %s, v2, 3, %s" % (v(x), v(r)))
    k("v_lshl_add_u32 %s, %s, 2, %s" % (v(b), v(h), v(g)))
    k("v_mul_u32_u24 %s, 384, %s" % (v(y), v(x)))
    k("v_lshl_add_u32 %s, %s, 3, %s" % (v(y), v(b), v(y)))
    k("v_lshrrev_b32 %s, 1, %s" % (v(b), v(r)))
    k("v_xor_b32 %s, %s, %s" % (v(b), s(S_T), v(b)))
    k("v_lshl_add_u32 %s, %s, 6, %s" % (v(VWQ), v(b), v(y)))
    k("v_lshrrev_b32 %s, 1, %s" % (v(b), v(g)))
    k("v_and_b32 %s, 1, %s" % (v(g), v(g)))
    k("v_lshl_add_u32 %s, %s, 1, %s" % (v(g), v(h), v(g)))
    k("v_lshl_add_u32 %s, %s, 2, %s" % (v(b), v(b), v(g)))
    k("v_lshlrev_b32 %s, 9, %s" % (v(y), v(x)))
    k("v_lshl_add_u32 %s, %s, 3, %s" % (v(y), v(b), v(y)))
    k("s_lshl_b32 %s, %s, 8" % (s(S_T), s(S_T)))
    k("v_add_u32 %s, %s, %s" % (v(y), s(S_T), v(y)))
    for ft in range(4):
        k("v_xor_b32 %s, %d, %s" % (v(b), ft, v(r)))
        k("v_lshl_add_u32 %s, %s, 6, %s" % (v(VWF + ft), v(b), v(y)))


def compute_phase(k, pre, F):
    q = F == 3
    RB = 384 if q else 512
    NA = 1 if q else 4
    base = VWQ if q else VWF
    p = pre + ("Q" if q else "F")

    def wa(par, ft):
        return VW2 + 4 * par + (0 if q else ft)

    def slot_ops(par):
        return ["v_add_u32 %s, %s, %s" % (v(VW2 + 4 * par + j), s(S_SLOT), v(base + j)) for j in range(NA)]

    def x_ops(st):
        return ["v_xor_b32 %s, %s, %s" % (v(VX), s(S_U), v(VA0))] if st == 0 else ["v_xor_b32 %s, 32, %s" % (v(VX), v(VX))]

    def u_ops():
        return ["s_lshl_b32 %s, %s, 6" % (s(S_U), s(S_KC))]

    def kc_next():
        return ["s_add_u32 %s, %s, 1" % (s(S_KC), s(S_KC)), "s_and_b32 %s, %s, 15" % (s(S_KC), s(S_KC))]

    def rd_x(buf):
        return ["ds_read_b128 %s, %s" % (v(XF[buf], 4), v(VX))]

    def rd_w(par, st, buf, ft):
        off = st * 16 * RB + (ft * 128 if q else 0)
        return ["ds_read_b64_tr_b16 %s, %s offset:%d" % (v(WF[buf] + 4 * ft + 2 * u, 2), v(wa(par, ft)), off + u * 4 * RB) for u in range(2)]

    def mfma(buf, ft):
        d = v(ACC + 16 * ft, 16)
        if q and ft == 2:
            k("v_mfma_f32_32x32x16_bf16 %s, %s, %s, %s" % (d, v(XF[buf], 4), v(WF[buf] + 4 * ft, 4), d))
        else:
            k("v_mfma_f32_32x32x16_bf16 %s, %s, %s, %s" % (d, v(WF[buf] + 4 * ft, 4), v(XF[buf], 4), d))

    k("s_mov_b32 %s, %s" % (s(S_KC), s(S_ROT)))
    for ins in u_ops() + slot_ops(0) + x_ops(0) + rd_x(0) + sum((rd_w(0, 0, 0, ft) for ft in range(F)), []) + x_ops(1):
        k(ins)
    k("s_mov_b32 %s, 0" % s(S_C))
    k(".p2align 3")
    k.label(p + "_loop")
    VXN = VX + 0
    for par in range(2):
        for st in range(2):
            b, nb = st, 1 - st
            npar = par if st == 0 else 1 - par
            for ft in range(F):
                newer = 2 * (F - 1 - ft) + (0 if ft == 0 else 1 + 2 * ft)
                k("s_waitcnt lgkmcnt(%d)" % newer)
                mfma(b, ft)
                if ft == 0:
                    if st == 1:
                        k("s_barrier")
                    for ins in rd_x(nb):
                        k(ins)
                for ins in rd_w(npar, 1 - st, nb, ft):
                    k(ins)
                if ft == 0:
                    if st == 0:
                        for ins in kc_next() + u_ops() + x_ops(0):
                            k(ins)
                    else:
                        for ins in x_ops(1):
                            k(ins)
                if st == 0 and ft == 1:
                    next_slot(k, S_SLOT)
                if st == 0 and ft == F - 1:
                    for ins in slot_ops(1 - par):
                        k(ins)
    k("s_add_u32 %s, %s, 1" % (s(S_C), s(S_C)))
    k("s_cmp_lt_u32 %s, 8" % s(S_C))
    k("s_cbranch_scc1 %s_loop" % p)
    k("s_waitcnt lgkmcnt(0)")


def epilogue_q(k):
    cq = 0.25 * LOG2E
    a1, a2, a3, t1, t2 = 12, 13, 14, 15, 16
    k("s_lshl_b32 %s, %s, 1" % (s(S_T2), s(S_RB)))
    k("s_and_b32 %s, %s, 1" % (s(S_T), s(S_W)))
    k("s_add_u32 %s, %s, %s" % (s(S_T2), s(S_T2), s(S_T)))
    k("s_lshl_b32 %s, %s, 2" % (s(S_T3), s(S_CT)))
    k("s_and_b32 %s, %s, 2" % (s(S_T), s(S_W)))
    k("s_add_u32 %s, %s, %s" % (s(S_T3), s(S_T3), s(S_T)))
    k("v_add_u32 %s, %s, v2" % (v(t1), s(S_T3)))
    k("v_lshlrev_b32 %s, 4, v1" % v(t2))
    k("v_lshl_add_u32 %s, %s, 16, %s" % (v(a1), v(t1), v(t2)))
    k("s_lshl_b32 %s, %s, 10" % (s(S_T), s(S_T2)))
    k("v_add_u32 %s, %s, %s" % (v(a1), s(S_T), v(a1)))
    k("v_lshl_add_u32 %s, %s, 17, %s" % (v(a2), v(t1), v(t2)))
    k("s_lshl_b32 %s, %s, 11" % (s(S_T), s(S_T2)))
    k("s_add_u32 %s, %s, 0x%x" % (s(S_T), s(S_T), WS_KV))
    k("v_add_u32 %s, %s, %s" % (v(a2), s(S_T), v(a2)))
    k("v_bfe_u32 %s, v1, 2, 1" % v(t1))
    k("v_lshrrev_b32 %s, 3, v1" % v(t2))
    k("v_and_b32 %s, 3, v1" % v(a3))
    k("v_and_b32 v17, 1, %s" % v(t2))
    k("v_lshrrev_b32 %s, 1, %s" % (v(t2), v(t2)))
    k("v_lshl_add_u32 %s, %s, 2, %s" % (v(a3), v(t2), v(a3)))
    k("v_lshl_add_u32 %s, v17, 3, %s" % (v(a3), v(a3)))
    k("v_lshlrev_b32 %s, 4, %s" % (v(a3), v(a3)))
    k("v_add_u32 %s, %s, %s" % (v(t1), s(S_T3), v(t1)))
    k("v_lshl_add_u32 %s, %s, 17, %s" % (v(a3), v(t1), v(a3)))
    k("v_lshl_add_u32 %s, v2, 8, %s" % (v(a3), v(a3)))
    k("s_add_u32 %s, %s, 1024" % (s(S_T), s(S_T)))
    k("v_add_u32 %s, %s, %s" % (v(a3), s(S_T), v(a3)))
    sc = " sc1" if "sc1" in OPT else (" nt" if "nt" in OPT else "")
    for ft, dst in ((1, a2), (2, a3), (0, a1)):
        A = ACC + 16 * ft
        if ft == 0:
            for r in range(16):
                k("v_mul_f32 %s, 0x%x, %s" % (v(A + r), f2u(cq), v(A + r)))
        for r in range(8):
            k("v_cvt_pk_bf16_f32 %s, %s, %s" % (v(A + r), v(A + 2 * r), v(A + 2 * r + 1)))
        k("buffer_store_dwordx4 %s, %s, %s, 0 offen%s" % (v(A, 4), v(dst), s(S_OD, 4), sc))
        k("buffer_store_dwordx4 %s, %s, %s, 0 offen offset:512%s" % (v(A + 4, 4), v(dst), s(S_OD, 4), sc))


def epilogue_f(k):
    a1 = 12
    k("s_lshl_b32 %s, %s, 1" % (s(S_T2), s(S_RB)))
    k("s_and_b32 %s, %s, 1" % (s(S_T), s(S_W)))
    k("s_add_u32 %s, %s, %s" % (s(S_T2), s(S_T2), s(S_T)))
    k("s_mul_i32 %s, %s, %d" % (s(S_T), s(S_T2), WS_HO_ROW))
    k("s_lshl_b32 %s, %s, 14" % (s(S_T3), s(S_CT)))
    k("s_add_u32 %s, %s, %s" % (s(S_T), s(S_T), s(S_T3)))
    k("s_lshr_b32 %s, %s, 1" % (s(S_T3), s(S_W)))
    k("s_lshl_b32 %s, %s, 13" % (s(S_T3), s(S_T3)))
    k("s_add_u32 %s, %s, %s" % (s(S_T), s(S_T), s(S_T3)))
    k("s_add_u32 %s, %s, 0x%x" % (s(S_T), s(S_T), WS_HO))
    k("v_lshlrev_b32 %s, 4, v0" % v(a1))
    k("v_add_u32 %s, %s, %s" % (v(a1), s(S_T), v(a1)))
    B = WF[0]
    for ft in range(4):
        A = ACC + 16 * ft
        for r in range(16):
            k("v_max_f32 %s, 0, %s" % (v(B + r), v(A + r)))
        for r in range(16):
            k("v_mul_f32 %s, %s, %s" % (v(A + r), v(A + r), v(B + r)))
        for r in range(8):
            k("v_cvt_pk_bf16_f32 %s, %s, %s" % (v(A + r), v(A + 2 * r), v(A + 2 * r + 1)))
        sc = " sc1" if "sc1" in OPT else (" nt" if "nt" in OPT else "")
        k("buffer_store_dwordx4 %s, %s, %s, 0 offen offset:%d%s" % (v(A, 4), v(a1), s(S_OD, 4), 2048 * (ft & 1), sc))
        k("buffer_store_dwordx4 %s, %s, %s, 0 offen offset:%d%s" % (v(A + 4, 4), v(a1), s(S_OD, 4), 2048 * (ft & 1) + 1024, sc))
        if ft == 1:
            k("v_add_u32 %s, 4096, %s" % (v(a1), v(a1)))


def compute(k, pre, ffn):
    wfrag_addr(k)
    k("s_and_b32 %s, %s, 1" % (s(S_T2), s(S_W)))
    xaddr_base(k, S_T2)
    for j in range(48):
        k("v_mov_b32 %s, 0" % v(ACC + j))
    k("s_mov_b32 %s, %d" % (s(S_SLOT), SLOT0))
    k("s_setprio 2")
    k("s_barrier")
    if "p3" not in OPT:
        prof_mark(k, 4 if "p2" not in OPT else 2)
    compute_phase(k, pre, 3)
    if "p2" in OPT:
        prof_mark(k, 3)
    k("s_nop 7")
    epilogue_q(k)
    if ffn:
        k("s_cmp_eq_u32 %s, 7" % s(S_CT))
        k("s_cbranch_scc1 %s_cdone" % pre)
        k("s_lshr_b32 %s, %s, 1" % (s(S_T), s(S_W)))
        k("s_lshl_b32 %s, %s, 9" % (s(S_T), s(S_T)))
        k("s_add_u32 %s, %s, %d" % (s(S_T), s(S_T), L_BI))
        k("v_lshl_add_u32 v3, v2, 4, %s" % s(S_T))
        for ft in range(4):
            for g in range(4):
                k("ds_read_b128 %s, v3 offset:%d" % (v(ACC + 16 * ft + 4 * g, 4), ft * 128 + g * 32))
        k("s_waitcnt lgkmcnt(0)")
        if "p2" in OPT:
            prof_mark(k, 4)
        compute_phase(k, pre, 4)
        if "p2" in OPT:
            prof_mark(k, 5)
        k("s_nop 7")
        epilogue_f(k)
        k.label(pre + "_cdone")


class Groups:
    def __init__(self):
        self.groups = [[]]

    def __call__(self, txt):
        self.groups[-1].append(txt)
        if txt.startswith("buffer_load"):
            self.groups.append([])


def issue_chunk(k, q, c):
    n = 3 if q else 4
    wrow = 3072 if q else 3584
    k("s_add_u32 m0, %s, %d" % (s(S_LD3 if q else S_LD4), SLOT0 + (c % R) * SLOT))
    if not q:
        k("s_mov_b32 %s, %s" % (s(S_T2), s(S_WO)))
    else:
        k("s_nop 0")
    for i in range(n):
        k("buffer_load_dwordx4 %s, %s, %s offen lds" % (v(VQO + i) if q else v(VFO + (i & 1)), s(S_WD, 4), s(S_WO if q else S_T2)))
        if i < n - 1:
            k("s_add_u32 m0, m0, 1024")
            if q:
                k("s_nop 0")
            else:
                k("s_add_u32 %s, %s, %d" % (s(S_T2), s(S_T2), 2 * wrow))
    k("s_add_u32 %s, %s, %d" % (s(S_WO), s(S_WO), 32 * wrow))
    k("s_cmp_ge_u32 %s, %s" % (s(S_WO), s(S_WEND)))
    k("s_cselect_b32 %s, %d, 0" % (s(S_T), 512 * wrow))
    k("s_sub_u32 %s, %s, %s" % (s(S_WO), s(S_WO), s(S_T)))


def phase_base(k, q):
    wrow = 3072 if q else 3584
    k("s_mul_i32 %s, %s, %d" % (s(S_WO), s(S_LD), 8 * wrow))
    k("s_lshl_b32 %s, %s, %d" % (s(S_T), s(S_CT), 7 if q else 9))
    k("s_add_u32 %s, %s, %s" % (s(S_WO), s(S_WO), s(S_T)))
    k("s_add_u32 %s, %s, %d" % (s(S_WEND), s(S_WO), 512 * wrow))
    k("s_mul_i32 %s, %s, %d" % (s(S_T), s(S_ROT), 32 * wrow))
    k("s_add_u32 %s, %s, %s" % (s(S_WO), s(S_WO), s(S_T)))


def loader_pre(k, pre, ffn):
    k("s_setprio 3")
    k("s_sub_u32 %s, %s, 4" % (s(S_LD), s(S_W)))
    k("s_mov_b32 %s, 0x%x" % (s(S_T), (2 ** 32 + 383) // 384))
    for j in range(3):
        k("v_lshlrev_b32 v12, 4, v0")
        k("v_add_u32 v12, %d, v12" % (1024 * j))
        k("v_mul_hi_u32 v13, v12, %s" % s(S_T))
        k("v_mul_u32_u24 v14, 384, v13")
        k("v_sub_u32 v14, v12, v14")
        k("v_lshrrev_b32 v15, 7, v14")
        k("v_and_b32 v14, 127, v14")
        k("v_bfe_u32 v12, v13, 1, 1")
        k("v_lshlrev_b32 v12, 6, v12")
        k("v_xor_b32 v14, v14, v12")
        k("v_mul_u32_u24 v13, 3072, v13")
        k("v_lshl_add_u32 v13, v15, 10, v13")
        k("v_add_u32 %s, v13, v14" % v(VQO + j))
    k("s_mul_i32 %s, %s, 3072" % (s(S_LD3), s(S_LD)))
    k("s_lshl_b32 %s, %s, 12" % (s(S_LD4), s(S_LD)))
    phase_base(k, True)
    issue_chunk(k, True, 0)
    issue_chunk(k, True, 1)
    for p_ in range(2):
        k("v_lshrrev_b32 v12, 5, v0")
        k("v_add_u32 v12, %d, v12" % (2 * p_))
        k("v_bfe_u32 v13, v0, 2, 3")
        k("v_xor_b32 v13, v13, v12")
        k("v_lshlrev_b32 v13, 6, v13")
        k("v_and_b32 v14, 3, v0")
        k("v_lshl_add_u32 v13, v14, 4, v13")
        k("v_lshrrev_b32 v12, 5, v0")
        k("v_mul_u32_u24 v12, 3584, v12")
        k("v_add_u32 %s, v12, v13" % v(VFO + p_))
    if ffn:
        k("v_lshrrev_b32 v12, 3, v1")
        k("v_bfe_u32 v13, v1, 2, 1")
        k("v_and_b32 v14, 3, v1")
        k("v_lshrrev_b32 v15, 1, v12")
        k("v_and_b32 v12, 1, v12")
        k("v_lshl_add_u32 v14, v12, 2, v14")
        k("v_lshl_add_u32 v14, v13, 3, v14")
        k("v_lshl_add_u32 v14, v15, 4, v14")
        k("v_lshl_add_u32 v14, v2, 5, v14")
        k("s_lshl_b32 %s, %s, 8" % (s(S_T), s(S_CT)))
        k("s_lshl_b32 %s, %s, 6" % (s(S_T2), s(S_LD)))
        k("s_add_u32 %s, %s, %s" % (s(S_T), s(S_T), s(S_T2)))
        k("v_add_u32 v14, %s, v14" % s(S_T))
        k("v_lshlrev_b32 v14, 1, v14")
        k("v_min_u32 v14, 3582, v14")
        k("global_load_ushort v11, v14, %s" % s(S_B1, 2))


def loader_post(k, pre, ffn):
    k("s_waitcnt vmcnt(%d)" % (6 if ffn else 9))
    if ffn:
        k("v_lshlrev_b32 v11, 16, v11")
        k("s_lshl_b32 %s, %s, 8" % (s(S_T), s(S_LD)))
        k("s_add_u32 %s, %s, %d" % (s(S_T), s(S_T), L_BI))
        k("v_lshl_add_u32 v12, v0, 2, %s" % s(S_T))
        k("ds_write_b32 v12, v11")
        k("s_waitcnt lgkmcnt(0)")
    k("s_barrier")
    k("s_setprio 1")

    def n_of(c):
        return 3 if c < 16 else 4

    def schedule(first, last, total):
        for c in range(first, last + 1):
            younger = sum(n_of(j) for j in (c + 1, c + 2) if j < total)
            k("s_waitcnt vmcnt(%d)" % younger)
            k("s_barrier")
            if c + 3 < total:
                if c + 3 == 16:
                    k.srd(S_WD, S_W1, 512 * 3584)
                    phase_base(k, False)
                issue_chunk(k, c + 3 < 16, c + 3)

    if ffn:
        k("s_cmp_eq_u32 %s, 7" % s(S_CT))
        k("s_cbranch_scc1 %s_lq" % pre)
        schedule(1, 32, 32)
        k("s_branch %s_lend" % pre)
        k.label(pre + "_lq")
    schedule(1, 16, 16)
    k.label(pre + "_lend")


def finish(k):
    k("s_waitcnt vmcnt(0)")
    stamp(k, 1, S_WS, S_W)
    if "p2" not in OPT and "p3" not in OPT:
        prof_mark(k, 5)
    prof_rt(k, 6)
    prof_store(k, S_WS, S_W, 28)
    k("s_endpgm")


def gen(k, name, pre, ffn=True):
    k.kernel_begin(name)
    entry(k, pre, name)
    k("s_branch %s_norm" % pre)
    k.label(pre + "_loader")
    loader_pre(k, pre, ffn)
    k.label(pre + "_norm")
    g = Groups()
    issue_chunk(g, True, 2)
    issue_chunk(g, True, 3)
    normalise(k, pre, g.groups, 6 + (1 if ffn else 0))
    k("s_cmp_ge_u32 %s, 4" % s(S_W))
    k("s_cbranch_scc1 %s_lpost" % pre)
    compute(k, pre, ffn)
    finish(k)
    k.label(pre + "_lpost")
    loader_post(k, pre, ffn)
    finish(k)
    k.label(pre + "_exit")
    k.kernel_end(name, NV, NV)
    return 256, LDS_BYTES
```

```python
import common
from common import *

OPT = set()
S_X, S_W2, S_WOP, S_B2, S_OUT, S_WS = 4, 6, 8, 10, 12, 14
S_HD, S_WD, S_XD, S_OD, S_BD = 16, 20, 28, 32, 52
S_W, S_RB, S_CB, S_T, S_T2, S_LB = 36, 37, 38, 39, 40, 41
S_XO0, S_XO1, S_WO, S_WRAP, S_LEFT, S_N, S_TRIP, S_RL = 42, 43, 44, 45, 46, 47, 48, 49
S_BX, S_BW, S_BWRAP = 56, 57, 58
D = 4
WSLOT = 2048
RING = D * WSLOT
VWS, VWR, VL16 = 4, 6, 3
XF, WF, ACC = 16, 48, 64
NA, NB = 28, 8


def setup(k):
    k("v_and_b32 v1, 31, v0")
    k("v_lshrrev_b32 v2, 5, v0")
    k("v_lshlrev_b32 v3, 4, v0")
    k("v_lshrrev_b32 v4, 3, v0")
    k("v_bfe_u32 v5, v0, 2, 1")
    k("v_bfe_u32 v6, v0, 4, 1")
    k("v_xor_b32 v5, v5, v6")
    k("v_and_b32 v6, 3, v0")
    k("v_lshlrev_b32 v6, 4, v6")
    k("v_lshl_add_u32 v5, v5, 6, v6")
    k("v_lshl_add_u32 v4, v4, 10, v5")
    k("v_bfe_u32 v12, v0, 2, 2")
    k("v_and_b32 v13, 3, v0")
    k("v_bfe_u32 v14, v0, 4, 1")
    k("v_lshl_add_u32 v13, v14, 2, v13")
    k("v_and_b32 v14, 1, v13")
    k("v_lshrrev_b32 v15, 1, v13")
    k("v_lshrrev_b32 v8, 1, v15")
    k("v_and_b32 v15, 1, v15")
    k("v_lshl_add_u32 v15, v14, 1, v15")
    k("v_lshl_add_u32 v13, v8, 2, v15")
    k("v_lshl_add_u32 v14, v2, 3, v12")
    k("v_lshlrev_b32 v14, 7, v14")
    k("v_lshl_add_u32 v14, v13, 3, v14")
    k("v_lshrrev_b32 v12, 1, v12")
    k("v_add_u32 v14, %s, v14" % s(S_LB))
    for ft in range(2):
        k("v_xor_b32 v15, %d, v12" % ft)
        k("v_lshl_add_u32 %s, v15, 6, v14" % v(VWR + ft))
    for j in range(64):
        k("v_mov_b32 %s, 0" % v(ACC + j))


def seg_params(k, n, kbase, dx, dw, dwrap):
    k("s_mul_i32 %s, %s, %d" % (s(S_T), s(S_RL), n // 4))
    k("s_mul_i32 %s, %s, %d" % (s(S_T2), s(S_CB), n))
    k("s_lshr_b32 %s, %s, 3" % (s(S_T2), s(S_T2)))
    k("s_add_u32 %s, %s, %s" % (s(S_T), s(S_T), s(S_T2)))
    k("s_cmp_ge_u32 %s, %d" % (s(S_T), n))
    k("s_cselect_b32 %s, %d, 0" % (s(S_T2), n))
    k("s_sub_u32 %s, %s, %s" % (s(S_T), s(S_T), s(S_T2)))
    k("s_sub_u32 %s, %d, %s" % (s(dwrap), n, s(S_T)))
    k("s_mul_i32 %s, %s, %d" % (s(S_T2), s(S_W), n))
    k("s_add_u32 %s, %s, %s" % (s(S_T), s(S_T), s(S_T2)))
    k("s_lshl_b32 %s, %s, 14" % (s(dw), s(S_T)))
    k("s_lshl_b32 %s, %s, 7" % (s(S_T2), s(S_CB)))
    k("s_add_u32 %s, %s, %s" % (s(dw), s(dw), s(S_T2)))
    k("s_add_u32 %s, %s, %d" % (s(S_T), s(S_T), kbase))
    k("s_lshl_b32 %s, %s, 10" % (s(S_T), s(S_T)))
    k("s_lshl_b32 %s, %s, 1" % (s(S_T2), s(S_RB)))
    k("s_mul_i32 %s, %s, %d" % (s(dx), s(S_T2), WS_HO_ROW))
    k("s_add_u32 %s, %s, %s" % (s(dx), s(dx), s(S_T)))
    k("s_add_u32 %s, %s, 0x%x" % (s(dx), s(dx), WS_HO))


XSC = [""]


def issue_groups(slot):
    g = []
    g.append(["buffer_load_dwordx4 %s, v3, %s, %s offen%s" % (v(XF + 8 * slot, 4), s(S_HD, 4), s(S_XO0), XSC[0])])
    g.append(["s_add_u32 %s, %s, %d" % (s(S_XO1), s(S_XO0), WS_HO_ROW),
              "buffer_load_dwordx4 %s, v3, %s, %s offen%s" % (v(XF + 8 * slot + 4, 4), s(S_HD, 4), s(S_XO1), XSC[0])])
    g.append(["s_add_u32 m0, %s, %d" % (s(S_LB), slot * WSLOT),
              "s_add_u32 %s, %s, 8192" % (s(S_T), s(S_WO)),
              "buffer_load_dwordx4 v4, %s, %s offen lds" % (s(S_WD, 4), s(S_WO))])
    g.append(["s_add_u32 m0, m0, 1024", "s_nop 0",
              "buffer_load_dwordx4 v4, %s, %s offen lds" % (s(S_WD, 4), s(S_T))])
    return g


def advance(k, lab, two_segments):
    k("s_add_u32 %s, %s, 1024" % (s(S_XO0), s(S_XO0)))
    k("s_add_u32 %s, %s, 16384" % (s(S_WO), s(S_WO)))
    k("s_sub_u32 %s, %s, 1" % (s(S_WRAP), s(S_WRAP)))
    k("s_cmp_lg_u32 %s, 0" % s(S_WRAP))
    k("s_cbranch_scc1 %s_nw" % lab)
    k("s_lshl_b32 %s, %s, 10" % (s(S_T), s(S_N)))
    k("s_sub_u32 %s, %s, %s" % (s(S_XO0), s(S_XO0), s(S_T)))
    k("s_lshl_b32 %s, %s, 14" % (s(S_T), s(S_N)))
    k("s_sub_u32 %s, %s, %s" % (s(S_WO), s(S_WO), s(S_T)))
    k("s_mov_b32 %s, %s" % (s(S_WRAP), s(S_N)))
    k.label(lab + "_nw")
    if two_segments:
        k("s_sub_u32 %s, %s, 1" % (s(S_LEFT), s(S_LEFT)))
        k("s_cmp_lg_u32 %s, 0" % s(S_LEFT))
        k("s_cbranch_scc1 %s_ns" % lab)
        k("s_mov_b32 %s, %s" % (s(S_XO0), s(S_BX)))
        k("s_mov_b32 %s, %s" % (s(S_WO), s(S_BW)))
        k("s_mov_b32 %s, %s" % (s(S_WRAP), s(S_BWRAP)))
        k("s_mov_b32 %s, %d" % (s(S_N), NB))
        k("s_mov_b32 %s, %s" % (s(S_WD), s(S_WOP)))
        k("s_and_b32 %s, %s, 0xffff" % (s(S_WD + 1), s(S_WOP + 1)))
        k("s_mov_b32 %s, 0x%x" % (s(S_WD + 2), 512 * 1024))
        k.label(lab + "_ns")


def rd_w(k, slot, buf):
    for ft in range(2):
        for u in range(2):
            k("ds_read_b64_tr_b16 %s, %s offset:%d" % (v(WF + 8 * buf + 4 * ft + 2 * u, 2), v(VWR + ft), slot * WSLOT + u * 512))


def step(k, d, lab, issue, vm, two_segments, last=False):
    if not last:
        k("s_waitcnt vmcnt(%d)" % vm)
        rd_w(k, (d + 1) % D, (d + 1) & 1)
        k("s_waitcnt lgkmcnt(4)")
    else:
        k("s_waitcnt lgkmcnt(0)")
    g = issue_groups((d + D - 1) % D) if issue else [[], [], [], []]
    j = 0
    for tt in range(2):
        for ft in range(2):
            dd = v(ACC + 16 * (2 * tt + ft), 16)
            k("v_mfma_f32_32x32x16_bf16 %s, %s, %s, %s" % (dd, v(WF + 8 * (d & 1) + 4 * ft, 4), v(XF + 8 * d + 4 * tt, 4), dd))
            for ins in g[j]:
                k(ins)
            j += 1
    if issue:
        advance(k, lab, two_segments)


def stream(k, pre, nsteps, two_segments, prio=None):
    for d in range(D - 1):
        for grp in issue_groups(d):
            for ins in grp:
                k(ins)
        advance(k, "%s_p%d" % (pre, d), two_segments)
    k("s_waitcnt vmcnt(8)")
    if prio:
        k("s_setprio %d" % prio)
    rd_w(k, 0, 0)
    ntrip = nsteps // D - 1
    k("s_mov_b32 %s, 0" % s(S_TRIP))
    k.label(pre + "_loop")
    for d in range(D):
        step(k, d, "%s_l%d" % (pre, d), True, 4, two_segments)
    k("s_add_u32 %s, %s, 1" % (s(S_TRIP), s(S_TRIP)))
    k("s_cmp_lt_u32 %s, %d" % (s(S_TRIP), ntrip))
    k("s_cbranch_scc1 %s_loop" % pre)
    step(k, 0, pre + "_t0", True, 4, two_segments)
    step(k, 1, pre + "_t1", False, 4, two_segments)
    step(k, 2, pre + "_t2", False, 0, two_segments)
    step(k, 3, pre + "_t3", False, 0, two_segments, last=True)


def reduce_and_store(k, pre):
    k("s_nop 15")
    k("s_barrier")
    for q in range(4):
        k("s_cmp_eq_u32 %s, %d" % (s(S_W), q))
        k("s_cbranch_scc1 %s_nw%d" % (pre, q))
        k("s_lshl_b32 %s, %s, 14" % (s(S_T), s(S_W)))
        k("v_add_u32 v8, %s, v3" % s(S_T))
        for g in range(4):
            k("ds_write_b128 v8, %s offset:%d" % (v(ACC + 16 * q + 4 * g, 4), q * 4096 + g * 1024))
        k.label("%s_nw%d" % (pre, q))
    for q in range(4):
        k("s_cmp_lg_u32 %s, %d" % (s(S_W), q))
        k("s_cbranch_scc1 %s_no%d" % (pre, q))
        for r in range(16):
            k("v_mov_b32 %s, %s" % (v(16 + r), v(ACC + 16 * q + r)))
        k.label("%s_no%d" % (pre, q))
    k("s_waitcnt lgkmcnt(0)")
    k("s_barrier")
    k("s_lshl_b32 %s, %s, 12" % (s(S_T2), s(S_W)))
    k("v_add_u32 v8, %s, v3" % s(S_T2))
    first = True
    for dq in range(1, 4):
        k("s_add_u32 %s, %s, %d" % (s(S_T2), s(S_W), dq))
        k("s_and_b32 %s, %s, 3" % (s(S_T2), s(S_T2)))
        k("s_lshl_b32 %s, %s, 14" % (s(S_T2), s(S_T2)))
        k("v_add_u32 v9, %s, v8" % s(S_T2))
        for g in range(4):
            k("ds_read_b128 %s, v9 offset:%d" % (v(64 + 16 * (dq - 1) + 4 * g, 4), g * 1024))
    for dq in range(1, 4):
        k("s_waitcnt lgkmcnt(%d)" % (4 * (3 - dq)))
        for r in range(16):
            k("v_add_f32 %s, %s, %s" % (v(16 + r), v(16 + r), v(64 + 16 * (dq - 1) + r)))


def resid_loads(k):
    k("s_lshr_b32 %s, %s, 1" % (s(S_T), s(S_W)))
    k("s_lshl_b32 %s, %s, 1" % (s(S_T2), s(S_RB)))
    k("s_add_u32 %s, %s, %s" % (s(S_T), s(S_T), s(S_T2)))
    k("s_lshl_b32 %s, %s, 15" % (s(S_T), s(S_T)))
    k("s_and_b32 %s, %s, 1" % (s(S_T2), s(S_W)))
    k("s_lshl_b32 %s, %s, 6" % (s(S_T2), s(S_T2)))
    k("s_lshl_b32 %s, %s, 7" % (s(S_N), s(S_CB)))
    k("s_add_u32 %s, %s, %s" % (s(S_BW), s(S_T2), s(S_N)))
    k("s_add_u32 %s, %s, %s" % (s(S_BX), s(S_T), s(S_BW)))
    k("v_lshlrev_b32 v10, 10, v1")
    k("v_lshl_add_u32 v10, v2, 4, v10")
    k("v_lshlrev_b32 v11, 4, v2")
    k("buffer_load_dwordx4 v[32:35], v10, %s, %s offen" % (s(S_XD, 4), s(S_BX)))
    k("buffer_load_dwordx4 v[36:39], v10, %s, %s offen offset:32" % (s(S_XD, 4), s(S_BX)))
    k("buffer_load_dwordx4 v[40:43], v11, %s, %s offen" % (s(S_BD, 4), s(S_BW)))
    k("buffer_load_dwordx4 v[44:47], v11, %s, %s offen offset:32" % (s(S_BD, 4), s(S_BW)))


def finish_tile(k):
    k("s_waitcnt vmcnt(0)")
    for half in range(2):
        for j in range(4):
            for src in (32, 40):
                r = src + 4 * half + j
                k("v_lshlrev_b32 v12, 16, %s" % v(r))
                k("v_and_b32 v13, 0xffff0000, %s" % v(r))
                k("v_add_f32 %s, %s, v12" % (v(16 + 8 * half + 2 * j), v(16 + 8 * half + 2 * j)))
                k("v_add_f32 %s, %s, v13" % (v(16 + 8 * half + 2 * j + 1), v(16 + 8 * half + 2 * j + 1)))
    for r in range(8):
        k("v_cvt_pk_bf16_f32 %s, %s, %s" % (v(16 + r), v(16 + 2 * r), v(17 + 2 * r)))
    k("buffer_store_dwordx4 v[16:19], v10, %s, %s offen" % (s(S_OD, 4), s(S_BX)))
    k("buffer_store_dwordx4 v[20:23], v10, %s, %s offen offset:32" % (s(S_OD, 4), s(S_BX)))


WS_BASE = 24 << 20


def ids(k, s_id):
    k("s_bfe_u32 %s, %s, 0x20003" % (s(S_RL), s_id))
    k("s_and_b32 %s, %s, 7" % (s(S_RB), s_id))
    k("s_lshl_b32 %s, %s, 2" % (s(S_RB), s(S_RB)))
    k("s_add_u32 %s, %s, %s" % (s(S_RB), s(S_RB), s(S_RL)))
    k("s_lshr_b32 %s, %s, 5" % (s(S_CB), s_id))


def add_resid(k):
    k("s_waitcnt vmcnt(0)")
    for half in range(2):
        for j in range(4):
            for src in (32, 40):
                r = src + 4 * half + j
                k("v_lshlrev_b32 v12, 16, %s" % v(r))
                k("v_and_b32 v13, 0xffff0000, %s" % v(r))
                k("v_add_f32 %s, %s, v12" % (v(16 + 8 * half + 2 * j), v(16 + 8 * half + 2 * j)))
                k("v_add_f32 %s, %s, v13" % (v(16 + 8 * half + 2 * j + 1), v(16 + 8 * half + 2 * j + 1)))


def gen_ffn2_role(k, pre, s_ws_size):
    k("v_lshrrev_b32 v1, 6, v0")
    k("v_and_b32 v0, 63, v0")
    k("v_readfirstlane_b32 %s, v1" % s(S_W))
    for r, off in ((S_WS, KA_WS), (S_W2, KA_W2), (S_X, KA_X), (S_B2, KA_B2)):
        k("s_load_dwordx2 %s, s[0:1], %d" % (s(r, 2), off))
    k("s_sub_u32 s3, s2, 256")
    k("s_cmp_ge_u32 %s, 4" % s(S_W))
    k("s_cbranch_scc1 %s_exit" % pre)
    ids(k, "s3")
    k("s_mul_i32 %s, %s, %d" % (s(S_LB), s(S_W), RING))
    seg_params(k, NA, 0, S_XO0, S_WO, S_WRAP)
    k("s_mov_b32 %s, %d" % (s(S_N), NA))
    setup(k)
    k("s_waitcnt lgkmcnt(0)")
    k.srd(S_HD, S_WS, s_ws_size)
    k.srd(S_WD, S_W2, 1792 * 1024)
    k.srd(S_XD, S_X, 2048 * 1024)
    k.srd(S_BD, S_B2, 1024)
    prof_mark(k, 2)
    stream(k, pre, NA, False, prio=(3 if "gp3" in OPT else (1 if "gp1" in OPT else 0)))
    prof_mark(k, 3)
    resid_loads(k)
    reduce_and_store(k, pre)
    add_resid(k)
    k("s_lshl_b32 %s, s3, 14" % s(S_T))
    k("s_lshl_b32 %s, %s, 12" % (s(S_T2), s(S_W)))
    k("s_add_u32 %s, %s, %s" % (s(S_T), s(S_T), s(S_T2)))
    k("s_add_u32 %s, %s, 0x%x" % (s(S_T), s(S_T), WS_BASE))
    for g in range(4):
        k("buffer_store_dwordx4 %s, v3, %s, %s offen offset:%d" % (v(16 + 4 * g, 4), s(S_HD, 4), s(S_T), 1024 * g))
    if "nopf" not in OPT:
        k("s_load_dwordx2 %s, s[0:1], %d" % (s(S_WOP, 2), KA_WO))
        k("s_waitcnt lgkmcnt(0)")
        k.srd(S_WD, S_WOP, 512 * 1024)
        k("s_lshl_b32 %s, %s, 17" % (s(S_T), s(S_W)))
        k("s_lshl_b32 %s, %s, 7" % (s(S_T2), s(S_CB)))
        k("s_add_u32 %s, %s, %s" % (s(S_T), s(S_T), s(S_T2)))
        for i in range(16):
            k("buffer_load_dwordx4 %s, v4, %s, %s offen" % (v(64 + 4 * i, 4), s(S_WD, 4), s(S_T)))
            k("s_add_u32 %s, %s, 8192" % (s(S_T), s(S_T)))
    k("s_waitcnt vmcnt(0)")
    prof_mark(k, 5)
    prof_rt(k, 6)
    prof_store(k, S_WS, S_W, 24)
    k.label(pre + "_exit")
    k("s_endpgm")


S_DBG = 60


def wait_flags(k, lab, s_off, n):
    k("s_cmp_eq_u32 %s, 0" % s(S_W))
    k("s_cbranch_scc0 %s_go" % lab)
    k("v_min_u32 v8, %d, v0" % (n - 1))
    k("v_lshl_add_u32 v8, v8, 2, %s" % s(s_off))
    k("s_mov_b32 %s, 0" % s(S_TRIP))
    k.label(lab + "_poll")
    k("global_load_dword v9, v8, %s sc1" % s(S_WS, 2))
    k("s_add_u32 %s, %s, 1" % (s(S_TRIP), s(S_TRIP)))
    k("s_waitcnt vmcnt(0)")
    k("v_cmp_eq_u32 vcc, 0, v9")
    k("s_nop 1")
    k("s_cmp_eq_u64 vcc, 0")
    k("s_cbranch_scc1 %s_go" % lab)
    k("s_cmp_eq_u64 vcc, exec")
    k("s_cbranch_scc0 %s_near" % lab)
    k("s_sleep %d" % (24 if "sl24" in OPT else 12))
    k.label(lab + "_near")
    k("s_sleep %d" % (8 if "sn8" in OPT else 3))
    k("s_cmp_lt_u32 %s, 0x40000" % s(S_TRIP))
    k("s_cbranch_scc1 %s_poll" % lab)
    k.label(lab + "_go")
    k("s_barrier")


def wo_tail(k, pre):
    OWN, OTH, XB, WB = 16, 96, 32, 112
    VLO, VHI = 14, 6
    k("s_barrier")
    k.srd(S_WD, S_WOP, 512 * 1024)
    k("s_lshl_b32 %s, %s, 17" % (s(S_T), s(S_W)))
    k("s_lshl_b32 %s, %s, 7" % (s(S_T2), s(S_CB)))
    k("s_add_u32 %s, %s, %s" % (s(S_T), s(S_T), s(S_T2)))
    k("s_lshl_b32 m0, %s, 14" % s(S_W))
    k("s_mov_b32 %s, 16" % s(S_TRIP))
    k.label(pre + "_wst")
    k("buffer_load_dwordx4 v4, %s, %s offen lds" % (s(S_WD, 4), s(S_T)))
    k("s_add_u32 %s, %s, 8192" % (s(S_T), s(S_T)))
    k("s_add_u32 m0, m0, 1024")
    k("s_sub_u32 %s, %s, 1" % (s(S_TRIP), s(S_TRIP)))
    k("s_cmp_lg_u32 %s, 0" % s(S_TRIP))
    k("s_cbranch_scc1 %s_wst" % pre)
    k("s_and_b32 %s, %s, 1" % (s(S_N), s(S_W)))
    k("s_and_b32 %s, %s, 1" % (s(S_WRAP), s(S_CB)))
    k("s_lshl_b32 %s, %s, 3" % (s(S_WRAP), s(S_WRAP)))
    k("v_subrev_u32 v6, %s, v6" % s(S_LB))
    k("v_subrev_u32 v7, %s, v7" % s(S_LB))
    k("s_cmp_eq_u32 %s, 0" % s(S_N))
    k("s_cselect_b64 vcc, -1, 0")
    k("v_cndmask_b32 v12, v7, v6, vcc")
    k("v_cndmask_b32 v13, v6, v7, vcc")
    k("s_lshl_b32 %s, %s, 15" % (s(S_T), s(S_N)))
    k("s_lshl_b32 %s, %s, 11" % (s(S_T2), s(S_WRAP)))
    k("s_add_u32 %s, %s, %s" % (s(S_LEFT), s(S_T), s(S_T2)))
    k("v_add_u32 %s, %s, v12" % (v(VLO), s(S_LEFT)))
    k("v_add_u32 %s, %s, v13" % (v(VLO + 1), s(S_LEFT)))
    k("s_sub_u32 %s, %s, %s" % (s(S_LEFT), s(S_T), s(S_T2)))
    k("s_add_u32 %s, %s, %d" % (s(S_LEFT), s(S_LEFT), 8 * 2048))
    k("v_add_u32 %s, %s, v12" % (v(VHI), s(S_LEFT)))
    k("v_add_u32 %s, %s, v13" % (v(VHI + 1), s(S_LEFT)))
    for r in range(16):
        k("v_mov_b32 %s, 0" % v(OTH + r))
    k("s_lshr_b32 %s, %s, 1" % (s(S_T), s(S_W)))
    k("s_lshl_b32 %s, %s, 1" % (s(S_T2), s(S_RB)))
    k("s_add_u32 %s, %s, %s" % (s(S_T), s(S_T), s(S_T2)))
    k("s_mul_i32 %s, %s, %d" % (s(S_XO0), s(S_T), WS_HO_ROW))
    k("s_lshl_b32 %s, %s, 14" % (s(S_T), s(S_N)))
    k("s_add_u32 %s, %s, %s" % (s(S_XO0), s(S_XO0), s(S_T)))
    k("s_add_u32 %s, %s, 0x%x" % (s(S_XO0), s(S_XO0), WS_HO + 112 * 1024))
    k("s_lshl_b32 %s, %s, 10" % (s(S_T), s(S_WRAP)))
    k("s_add_u32 %s, %s, %s" % (s(S_XO1), s(S_XO0), s(S_T)))
    k("s_sub_u32 %s, %s, %s" % (s(S_XO0), s(S_XO0), s(S_T)))
    k("s_lshl_b32 %s, %s, 8" % (s(S_LEFT), s(S_RB)))
    k("s_add_u32 %s, %s, 0x%x" % (s(S_LEFT), s(S_LEFT), WS_FLAG + FLAG_O))
    k("s_waitcnt vmcnt(0)")
    k("s_setprio 3")
    wait_flags(k, pre + "_w", S_LEFT, 64)
    prof_mark(k, 4)
    for i in range(16):
        so = S_XO1 if i < 8 else S_XO0
        if i % 4 == 0 and i:
            k("s_add_u32 %s, %s, 4096" % (s(S_XO1), s(S_XO1)) if i < 8 else "s_nop 0")
        k("buffer_load_dwordx4 %s, v3, %s, %s offen offset:%d sc1" % (v(XB + 4 * i, 4), s(S_HD, 4), s(so), (i % 4) * 1024))
        if i == 7:
            k("s_add_u32 %s, %s, 8192" % (s(S_XO0), s(S_XO0)))
        if i == 11:
            k("s_add_u32 %s, %s, 4096" % (s(S_XO0), s(S_XO0)))

    def rd(i):
        base = VLO if i < 8 else VHI
        for j in range(2):
            for u in range(2):
                k("ds_read_b64_tr_b16 %s, %s offset:%d" % (v(WB + 8 * (i & 1) + 4 * j + 2 * u, 2), v(base + j), (i & 7) * 2048 + u * 512))

    rd(0)
    for i in range(16):
        if i < 15:
            rd(i + 1)
        k("s_waitcnt vmcnt(%d) lgkmcnt(%d)" % (15 - i, 4 if i < 15 else 0))
        for j, acc in ((0, OWN), (1, OTH)):
            k("v_mfma_f32_32x32x16_bf16 %s, %s, %s, %s" % (v(acc, 16), v(WB + 8 * (i & 1) + 4 * j, 4), v(XB + 4 * i, 4), v(acc, 16)))
    k("s_barrier")
    k("s_xor_b32 %s, %s, 1" % (s(S_T), s(S_W)))
    k("s_lshl_b32 %s, %s, 12" % (s(S_T), s(S_T)))
    k("v_add_u32 v12, %s, v3" % s(S_T))
    k("s_lshl_b32 %s, %s, 12" % (s(S_T), s(S_W)))
    k("v_add_u32 v13, %s, v3" % s(S_T))
    k("s_nop 7")
    for g in range(4):
        k("ds_write_b128 v12, %s offset:%d" % (v(OTH + 4 * g, 4), g * 1024))
    k("s_waitcnt lgkmcnt(0)")
    k("s_barrier")
    for g in range(4):
        k("ds_read_b128 %s, v13 offset:%d" % (v(XB + 4 * g, 4), g * 1024))
    k("v_lshlrev_b32 v10, 10, v1")
    k("v_lshl_add_u32 v10, v2, 4, v10")
    for g in range(4):
        k("s_waitcnt lgkmcnt(%d)" % (3 - g))
        for r in range(4):
            k("v_add_f32 %s, %s, %s" % (v(OWN + 4 * g + r), v(OWN + 4 * g + r), v(XB + 4 * g + r)))
    for r in range(8):
        k("v_cvt_pk_bf16_f32 %s, %s, %s" % (v(16 + r), v(16 + 2 * r), v(17 + 2 * r)))
    k("buffer_store_dwordx4 v[16:19], v10, %s, %s offen" % (s(S_OD, 4), s(S_BX)))
    k("buffer_store_dwordx4 v[20:23], v10, %s, %s offen offset:32" % (s(S_OD, 4), s(S_BX)))


def gen_g_role(k, pre):
    k("v_lshrrev_b32 v1, 6, v0")
    k("v_and_b32 v0, 63, v0")
    k("v_readfirstlane_b32 %s, v1" % s(S_W))
    for r, off in ((S_WS, KA_WS), (S_W2, KA_W2), (S_WOP, KA_WO), (S_X, KA_X), (S_B2, KA_B2), (S_OUT, KA_OUT)):
        k("s_load_dwordx2 %s, s[0:1], %d" % (s(r, 2), off))
    k("s_sub_u32 s3, s2, 256")
    k("s_cmp_ge_u32 %s, 4" % s(S_W))
    k("s_cbranch_scc1 %s_exit" % pre)
    ids(k, "s3")
    k("s_mul_i32 %s, %s, %d" % (s(S_LB), s(S_W), RING))
    seg_params(k, NA, 0, S_XO0, S_WO, S_WRAP)
    k("s_mov_b32 %s, %d" % (s(S_N), NA))
    setup(k)
    k("s_waitcnt lgkmcnt(0)")
    k.srd(S_HD, S_WS, WS_END)
    k.srd(S_WD, S_W2, 1792 * 1024)
    k.srd(S_XD, S_X, 2048 * 1024)
    k.srd(S_OD, S_OUT, 2048 * 1024)
    k.srd(S_BD, S_B2, 1024)
    prof_mark(k, 2)
    stream(k, pre + "a", NA, False)
    prof_mark(k, 3)
    resid_loads(k)
    reduce_and_store(k, pre)
    add_resid(k)
    wo_tail(k, pre)
    k("s_waitcnt vmcnt(0)")
    if common.STAMP:
        k("s_cmp_eq_u32 s2, 256")
        k("s_cbranch_scc0 %s_ng" % pre)
        k("s_cmp_eq_u32 %s, 0" % s(S_W))
        k("s_cbranch_scc0 %s_ng" % pre)
        k("s_load_dwordx2 s[60:61], s[0:1], %d" % KA_DBG)
        k("s_memrealtime s[88:89]")
        k("s_waitcnt lgkmcnt(0)")
        k("v_lshrrev_b32 v8, 2, v0")
        k("v_mul_u32_u24 v8, %d, v8" % (65 * 32))
        k("v_and_b32 v9, 3, v0")
        k("v_lshl_add_u32 v8, v9, 2, v8")
        k("v_add_u32 v8, 0x%x, v8" % WS_STAMP)
        k("v_cmp_gt_u32 vcc, 15, v0")
        k("s_and_saveexec_b64 s[62:63], vcc")
        k("global_load_dword v9, v8, %s sc1" % s(S_WS, 2))
        k("s_waitcnt vmcnt(0)")
        k("s_mov_b64 exec, s[62:63]")
        k("v_mov_b32 v10, s88")
        k("v_cmp_eq_u32 vcc, 15, v0")
        k("s_nop 1")
        k("v_cndmask_b32 v9, v9, v10, vcc")
        k("v_lshlrev_b32 v8, 2, v0")
        k("v_cmp_gt_u32 vcc, 16, v0")
        k("s_and_saveexec_b64 s[62:63], vcc")
        k("global_store_dword v8, v9, s[60:61]")
        k("s_waitcnt vmcnt(0)")
        k("s_mov_b64 exec, s[62:63]")
        k.label(pre + "_ng")
    prof_mark(k, 5)
    prof_rt(k, 6)
    prof_store(k, S_WS, S_W, 24)
    k.label(pre + "_exit")
    k("s_endpgm")


def gen_wo(k, name, pre):
    k.kernel_begin(name)
    k("s_cmp_ge_u32 s2, 256")
    k("s_cbranch_scc1 %s_exit" % pre)
    prof_start(k)
    for r, off in ((S_WS, KA_WS), (S_WOP, KA_WO), (S_OUT, KA_OUT)):
        k("s_load_dwordx2 %s, s[0:1], %d" % (s(r, 2), off))
    ids(k, "s2")
    k("v_lshrrev_b32 v1, 6, v0")
    k("v_and_b32 v0, 63, v0")
    k("v_readfirstlane_b32 %s, v1" % s(S_W))
    k("s_nop 0")
    k("s_mul_i32 %s, %s, %d" % (s(S_LB), s(S_W), RING))
    seg_params(k, NB, 112, S_XO0, S_WO, S_WRAP)
    k("s_mov_b32 %s, %d" % (s(S_N), NB))
    setup(k)
    k("s_waitcnt lgkmcnt(0)")
    k.srd(S_HD, S_WS, WS_BASE + (4 << 20))
    k.srd(S_WD, S_WOP, 512 * 1024)
    k.srd(S_OD, S_OUT, 2048 * 1024)
    k("s_lshl_b32 %s, s2, 14" % s(S_T))
    k("s_lshl_b32 %s, %s, 12" % (s(S_T2), s(S_W)))
    k("s_add_u32 %s, %s, %s" % (s(S_T), s(S_T), s(S_T2)))
    k("s_add_u32 %s, %s, 0x%x" % (s(S_T), s(S_T), WS_BASE))
    for q in range(4):
        k("s_cmp_lg_u32 %s, %d" % (s(S_W), q))
        k("s_cbranch_scc1 %s_nb%d" % (pre, q))
        for g in range(4):
            k("buffer_load_dwordx4 %s, v3, %s, %s offen offset:%d" % (v(ACC + 16 * q + 4 * g, 4), s(S_HD, 4), s(S_T), 1024 * g))
        k.label("%s_nb%d" % (pre, q))
    prof_mark(k, 2)
    stream(k, pre, NB, False)
    prof_mark(k, 3)
    reduce_and_store(k, pre)
    k("s_lshr_b32 %s, %s, 1" % (s(S_T), s(S_W)))
    k("s_lshl_b32 %s, %s, 1" % (s(S_T2), s(S_RB)))
    k("s_add_u32 %s, %s, %s" % (s(S_T), s(S_T), s(S_T2)))
    k("s_lshl_b32 %s, %s, 15" % (s(S_T), s(S_T)))
    k("s_and_b32 %s, %s, 1" % (s(S_T2), s(S_W)))
    k("s_lshl_b32 %s, %s, 6" % (s(S_T2), s(S_T2)))
    k("s_add_u32 %s, %s, %s" % (s(S_T), s(S_T), s(S_T2)))
    k("s_lshl_b32 %s, %s, 7" % (s(S_T2), s(S_CB)))
    k("s_add_u32 %s, %s, %s" % (s(S_T), s(S_T), s(S_T2)))
    k("v_lshlrev_b32 v10, 10, v1")
    k("v_lshl_add_u32 v10, v2, 4, v10")
    for r in range(8):
        k("v_cvt_pk_bf16_f32 %s, %s, %s" % (v(16 + r), v(16 + 2 * r), v(17 + 2 * r)))
    k("buffer_store_dwordx4 v[16:19], v10, %s, %s offen" % (s(S_OD, 4), s(S_T)))
    k("buffer_store_dwordx4 v[20:23], v10, %s, %s offen offset:32" % (s(S_OD, 4), s(S_T)))
    k("s_waitcnt vmcnt(0)")
    prof_mark(k, 5)
    prof_rt(k, 6)
    prof_store(k, S_WS, S_W, 24)
    k.label(pre + "_exit")
    k.kernel_end(name, 128, 128)
    return 256, 65536


def gen_final(k, name, pre):
    k.kernel_begin(name)
    k("s_cmp_ge_u32 s2, 256")
    k("s_cbranch_scc1 %s_exit" % pre)
    prof_start(k)
    for r, off in ((S_WS, KA_WS), (S_W2, KA_W2), (S_WOP, KA_WO), (S_X, KA_X), (S_B2, KA_B2), (S_OUT, KA_OUT)):
        k("s_load_dwordx2 %s, s[0:1], %d" % (s(r, 2), off))
    k("s_bfe_u32 %s, s2, 0x20003" % s(S_RL))
    k("s_and_b32 %s, s2, 7" % s(S_RB))
    k("s_lshl_b32 %s, %s, 2" % (s(S_RB), s(S_RB)))
    k("s_add_u32 %s, %s, %s" % (s(S_RB), s(S_RB), s(S_RL)))
    k("s_lshr_b32 %s, s2, 5" % s(S_CB))
    k("v_lshrrev_b32 v1, 6, v0")
    k("v_and_b32 v0, 63, v0")
    k("v_readfirstlane_b32 %s, v1" % s(S_W))
    k("s_nop 0")
    k("s_mul_i32 %s, %s, %d" % (s(S_LB), s(S_W), RING))
    seg_params(k, NA, 0, S_XO0, S_WO, S_WRAP)
    seg_params(k, NB, 112, S_BX, S_BW, S_BWRAP)
    k("s_mov_b32 %s, %d" % (s(S_N), NA))
    k("s_mov_b32 %s, %d" % (s(S_LEFT), NA))
    setup(k)
    k("s_waitcnt lgkmcnt(0)")
    k.srd(S_HD, S_WS, WS_END)
    k.srd(S_WD, S_W2, 1792 * 1024)
    k.srd(S_XD, S_X, 2048 * 1024)
    k.srd(S_OD, S_OUT, 2048 * 1024)
    k.srd(S_BD, S_B2, 1024)
    prof_mark(k, 2)
    stream(k, pre, NA + NB, True)
    prof_mark(k, 3)
    resid_loads(k)
    reduce_and_store(k, pre)
    finish_tile(k)
    k("s_waitcnt vmcnt(0)")
    prof_mark(k, 5)
    prof_rt(k, 6)
    prof_store(k, S_WS, S_W, 24)
    k.label(pre + "_exit")
    k.kernel_end(name, 128, 128)
    return 256, 65536
```

```python
import common
from common import *
import g2
from g2 import S_W, S_RB, S_CB, S_RL, S_T, S_T2, S_WS, S_HD

OPT = set()
WS_XN = 20 << 20
FLAG_H = 8192
ROWB = 448
SLOT = 32 * ROWB
R = 5
L_BI = R * SLOT
LDS_NEED = L_BI + 1024

S_W1, S_B1 = 62, 64
S_W1D = 68
S_LD, S_WO, S_WEND, S_SLOT, S_KC, S_C, S_XB, S_XO, S_ROT, S_LDO = 72, 73, 74, 75, 76, 77, 78, 79, 59, 66

VWB, VW2 = 8, 9
XR = 16
WF = [32, 48]
ACC = 64
VSRC = 8


def next_slot(k):
    k("s_add_u32 %s, %s, %d" % (s(S_SLOT), s(S_SLOT), SLOT))
    k("s_cmp_ge_u32 %s, %d" % (s(S_SLOT), R * SLOT))
    k("s_cselect_b32 %s, 0, %s" % (s(S_SLOT), s(S_SLOT)))


def loader(k, pre):
    k("s_sub_u32 %s, %s, 4" % (s(S_LD), s(S_W)))
    k("s_and_b32 %s, %s, 1" % (s(S_T), s(S_LD)))
    k("s_lshl_b32 %s, %s, 2" % (s(S_T), s(S_T)))
    k("s_mov_b32 %s, 0x%x" % (s(S_T2), (2 ** 32 + ROWB - 1) // ROWB))
    for j in range(4):
        k("s_add_u32 %s, %s, %d" % (s(S_C), s(S_T), j))
        k("s_min_u32 %s, %s, 6" % (s(S_C), s(S_C)))
        k("s_lshl_b32 %s, %s, 10" % (s(S_C), s(S_C)))
        k("v_lshl_add_u32 v12, v0, 4, %s" % s(S_C))
        k("v_mul_hi_u32 v13, v12, %s" % s(S_T2))
        k("v_mul_u32_u24 v14, %d, v13" % ROWB)
        k("v_sub_u32 v14, v12, v14")
        k("v_mul_u32_u24 v13, 3584, v13")
        k("v_add_u32 %s, v13, v14" % v(VSRC + j))
    k("s_lshr_b32 %s, %s, 1" % (s(S_C), s(S_LD)))
    k("s_mul_i32 %s, %s, %d" % (s(S_LDO), s(S_C), 16 * ROWB))
    k("s_lshl_b32 %s, %s, 10" % (s(S_T), s(S_T)))
    k("s_add_u32 %s, %s, %s" % (s(S_LDO), s(S_LDO), s(S_T)))
    k("s_mul_i32 %s, %s, %d" % (s(S_WO), s(S_C), 16 * 3584))
    k("s_mul_i32 %s, %s, %d" % (s(S_T), s(S_CB), ROWB))
    k("s_add_u32 %s, %s, %s" % (s(S_WO), s(S_WO), s(S_T)))
    k("s_add_u32 %s, %s, %d" % (s(S_WEND), s(S_WO), 512 * 3584))
    k("s_mul_i32 %s, %s, %d" % (s(S_T), s(S_ROT), 32 * 3584))
    k("s_add_u32 %s, %s, %s" % (s(S_WO), s(S_WO), s(S_T)))
    k("s_and_b32 %s, %s, 1" % (s(S_KC), s(S_LD)))

    def issue(c):
        k("s_add_u32 m0, %s, %d" % (s(S_LDO), (c % R) * SLOT))
        k("s_nop 0")
        for j in range(4):
            k("buffer_load_dwordx4 %s, %s, %s offen lds" % (v(VSRC + j), s(S_W1D, 4), s(S_WO)))
            if j < 2:
                k("s_add_u32 m0, m0, 1024")
                k("s_nop 0")
            elif j == 2:
                k("s_add_u32 m0, m0, %s" % s(S_XB))
                k("s_nop 0")
        k("s_add_u32 %s, %s, %d" % (s(S_WO), s(S_WO), 32 * 3584))
        k("s_cmp_ge_u32 %s, %s" % (s(S_WO), s(S_WEND)))
        k("s_cselect_b32 %s, %d, 0" % (s(S_T), 512 * 3584))
        k("s_sub_u32 %s, %s, %s" % (s(S_WO), s(S_WO), s(S_T)))

    k("s_cmp_eq_u32 %s, 0" % s(S_KC))
    k("s_cselect_b32 %s, 1024, 0" % s(S_XB))
    k("v_lshrrev_b32 v12, 3, v1")
    k("v_bfe_u32 v13, v1, 2, 1")
    k("v_and_b32 v14, 3, v1")
    k("v_lshrrev_b32 v15, 1, v12")
    k("v_and_b32 v12, 1, v12")
    k("v_lshl_add_u32 v14, v12, 2, v14")
    k("v_lshl_add_u32 v14, v13, 3, v14")
    k("v_lshl_add_u32 v14, v15, 4, v14")
    k("v_lshl_add_u32 v14, v2, 5, v14")
    k("s_mul_i32 %s, %s, 224" % (s(S_T), s(S_CB)))
    k("s_lshl_b32 %s, %s, 6" % (s(S_T2), s(S_LD)))
    k("s_add_u32 %s, %s, %s" % (s(S_T), s(S_T), s(S_T2)))
    k("v_add_u32 v14, %s, v14" % s(S_T))
    k("v_lshlrev_b32 v14, 1, v14")
    k("v_min_u32 v14, 3582, v14")
    k("global_load_ushort v15, v14, %s" % s(S_B1, 2))
    k("s_waitcnt vmcnt(0)")
    k("v_lshlrev_b32 v15, 16, v15")
    k("s_lshl_b32 %s, %s, 8" % (s(S_T), s(S_LD)))
    k("s_add_u32 %s, %s, %d" % (s(S_T), s(S_T), L_BI))
    k("v_lshl_add_u32 v12, v0, 2, %s" % s(S_T))
    k("ds_write_b32 v12, v15")
    for c in range(4):
        issue(c)
    k("s_waitcnt vmcnt(12) lgkmcnt(0)")
    k("s_barrier")
    pf = "w2pf" in OPT
    if pf:
        pass
    npf = 0
    for c in range(1, 17):
        younger = 4 * sum(1 for j in (c + 1, c + 2) if j < 16)
        extra = npf if c + 1 >= 16 else 0
        k("s_waitcnt vmcnt(%d)" % min(63, younger + (npf if pf and c >= 14 else 0)))
        k("s_barrier")
        if c + 3 < 16:
            issue(c + 3)
        if pf and c == 13:
            k.srd(S_W1D, g2.S_W2, 1792 * 1024)
            k("v_lshrrev_b32 v12, 3, v0")
            k("v_and_b32 v13, 7, v0")
            k("v_lshlrev_b32 v13, 4, v13")
            k("v_lshl_add_u32 v12, v12, 10, v13")
            k("s_mul_i32 %s, %s, %d" % (s(S_T), s(S_RL), 448 * 1024))
            k("s_mul_i32 %s, %s, %d" % (s(S_T2), s(S_LD), 112 * 1024))
            k("s_add_u32 %s, %s, %s" % (s(S_T), s(S_T), s(S_T2)))
            k("s_lshl_b32 %s, %s, 7" % (s(S_T2), s(S_CB)))
            k("s_add_u32 %s, %s, %s" % (s(S_WO), s(S_T), s(S_T2)))
        if pf and c >= 13:
            n = 4 if c < 16 else 2
            for j in range(n):
                k("buffer_load_dwordx4 v[16:19], v12, %s, %s offen" % (s(S_W1D, 4), s(S_WO)))
                k("s_add_u32 %s, %s, 8192" % (s(S_WO), s(S_WO)))
            npf += n
    k("s_endpgm")


def compute(k, pre):
    k("v_bfe_u32 v12, v0, 2, 2")
    k("v_and_b32 v13, 3, v0")
    k("v_bfe_u32 v14, v0, 4, 1")
    k("v_lshl_add_u32 v13, v14, 2, v13")
    k("v_and_b32 v14, 1, v13")
    k("v_lshrrev_b32 v15, 1, v13")
    k("v_lshrrev_b32 v11, 1, v15")
    k("v_and_b32 v15, 1, v15")
    k("v_lshl_add_u32 v15, v14, 1, v15")
    k("v_lshl_add_u32 v13, v11, 2, v15")
    k("v_lshl_add_u32 v14, v2, 3, v12")
    k("v_mul_u32_u24 v14, %d, v14" % ROWB)
    k("v_lshl_add_u32 v14, v13, 3, v14")
    k("s_lshr_b32 %s, %s, 1" % (s(S_T), s(S_W)))
    k("s_lshl_b32 %s, %s, 8" % (s(S_T), s(S_T)))
    k("v_add_u32 %s, %s, v14" % (v(VWB), s(S_T)))
    k("v_lshlrev_b32 v3, 4, v0")
    k("s_lshl_b32 %s, %s, 1" % (s(S_T), s(S_RB)))
    k("s_and_b32 %s, %s, 1" % (s(S_T2), s(S_W)))
    k("s_add_u32 %s, %s, %s" % (s(S_T), s(S_T), s(S_T2)))
    k("s_lshl_b32 %s, %s, 15" % (s(S_XB), s(S_T)))
    k("s_add_u32 %s, %s, 0x%x" % (s(S_XB), s(S_XB), WS_XN))
    k("s_lshl_b32 %s, %s, 11" % (s(S_XO), s(S_ROT)))

    def xload(slot):
        k("s_add_u32 %s, %s, %s" % (s(S_T), s(S_XB), s(S_XO)))
        k("buffer_load_dwordx4 %s, v3, %s, %s offen" % (v(XR + 4 * slot, 4), s(S_HD, 4), s(S_T)))
        k("s_add_u32 %s, %s, 1024" % (s(S_XO), s(S_XO)))
        k("s_and_b32 %s, %s, 0x7fff" % (s(S_XO), s(S_XO)))

    for sl in range(3):
        xload(sl)
    k("s_mov_b32 %s, 0" % s(S_SLOT))
    k("s_barrier")
    k("s_lshr_b32 %s, %s, 1" % (s(S_T), s(S_W)))
    k("s_lshl_b32 %s, %s, 9" % (s(S_T), s(S_T)))
    k("s_add_u32 %s, %s, %d" % (s(S_T), s(S_T), L_BI))
    k("v_lshl_add_u32 v12, v2, 4, %s" % s(S_T))
    for ft in range(4):
        for g in range(4):
            k("ds_read_b128 %s, v12 offset:%d" % (v(ACC + 16 * ft + 4 * g, 4), ft * 128 + g * 32))
    F = 4

    def slot_ops(par):
        k("v_add_u32 %s, %s, %s" % (v(VW2 + par), s(S_SLOT), v(VWB)))

    def rd_w(par, st, buf, ft):
        for u in range(2):
            k("ds_read_b64_tr_b16 %s, %s offset:%d" % (v(WF[buf] + 4 * ft + 2 * u, 2), v(VW2 + par), st * 16 * ROWB + u * 4 * ROWB + ft * 64))

    slot_ops(0)
    for ft in range(F):
        rd_w(0, 0, 0, ft)
    k("s_waitcnt lgkmcnt(8)")
    k("s_mov_b32 %s, 0" % s(S_C))
    k.label(pre + "_loop")
    step = 0
    for par in range(2):
        for st in range(2):
            b, nb = st, 1 - st
            npar = par if st == 0 else 1 - par
            xs = step & 3
            k("s_waitcnt vmcnt(2)")
            for ft in range(F):
                newer = 2 * (F - 1 - ft) + 2 * ft
                k("s_waitcnt lgkmcnt(%d)" % newer)
                d = v(ACC + 16 * ft, 16)
                k("v_mfma_f32_32x32x16_bf16 %s, %s, %s, %s" % (d, v(WF[b] + 4 * ft, 4), v(XR + 4 * xs, 4), d))
                if ft == 0 and st == 1:
                    k("s_barrier")
                rd_w(npar, 1 - st, nb, ft)
                if ft == 0:
                    xload((xs + 3) & 3)
                if st == 0 and ft == 1:
                    next_slot(k)
                if st == 0 and ft == F - 1:
                    slot_ops(1 - par)
            step += 1
    k("s_add_u32 %s, %s, 1" % (s(S_C), s(S_C)))
    k("s_cmp_lt_u32 %s, 8" % s(S_C))
    k("s_cbranch_scc1 %s_loop" % pre)
    k("s_waitcnt vmcnt(0) lgkmcnt(0)")
    k("s_lshl_b32 %s, %s, 1" % (s(S_T2), s(S_RB)))
    k("s_and_b32 %s, %s, 1" % (s(S_T), s(S_W)))
    k("s_add_u32 %s, %s, %s" % (s(S_T2), s(S_T2), s(S_T)))
    k("s_mul_i32 %s, %s, %d" % (s(S_T), s(S_T2), WS_HO_ROW))
    k("s_mul_i32 %s, %s, %d" % (s(S_T2), s(S_CB), 14 * 1024))
    k("s_add_u32 %s, %s, %s" % (s(S_T), s(S_T), s(S_T2)))
    k("s_lshr_b32 %s, %s, 1" % (s(S_T2), s(S_W)))
    k("s_lshl_b32 %s, %s, 13" % (s(S_C), s(S_T2)))
    k("s_add_u32 %s, %s, %s" % (s(S_T), s(S_T), s(S_C)))
    k("s_add_u32 %s, %s, 0x%x" % (s(S_T), s(S_T), WS_HO))
    k("v_add_u32 v12, %s, v3" % s(S_T))
    B = WF[0]
    for ft in range(4):
        if ft == 3:
            k("s_cmp_lg_u32 %s, 0" % s(S_T2))
            k("s_cbranch_scc1 %s_nost" % pre)
        A = ACC + 16 * ft
        for r in range(16):
            k("v_max_f32 %s, 0, %s" % (v(B + r), v(A + r)))
        for r in range(16):
            k("v_mul_f32 %s, %s, %s" % (v(A + r), v(A + r), v(B + r)))
        for r in range(8):
            k("v_cvt_pk_bf16_f32 %s, %s, %s" % (v(A + r), v(A + 2 * r), v(A + 2 * r + 1)))
        k("buffer_store_dwordx4 %s, v12, %s, 0 offen offset:%d sc1" % (v(A, 4), s(S_HD, 4), 2048 * (ft & 1)))
        k("buffer_store_dwordx4 %s, v12, %s, 0 offen offset:%d sc1" % (v(A + 4, 4), s(S_HD, 4), 2048 * (ft & 1) + 1024))
        if ft == 1:
            k("v_add_u32 v12, 4096, v12")
    k.label(pre + "_nost")
    k("s_waitcnt vmcnt(0)")
    if "hpf" in OPT:
        k("v_add_u32 v12, %s, v3" % s(S_T))
        for j in range(8):
            if j == 4:
                k("v_add_u32 v12, 4096, v12")
            if j == 6:
                k("s_cmp_lg_u32 %s, 0" % s(S_T2))
                k("s_cbranch_scc1 %s_nre" % pre)
            k("buffer_load_dwordx4 %s, v12, %s, 0 offen offset:%d sc1" % (v(XR + 4 * (j & 3), 4), s(S_HD, 4), 1024 * (j & 3)))
        k.label(pre + "_nre")
    k("s_barrier")
    k("s_lshl_b32 %s, %s, 7" % (s(S_C), s(S_RB)))
    k("s_add_u32 %s, %s, 0x%x" % (s(S_C), s(S_C), WS_FLAG + FLAG_H))
    k("s_cmp_eq_u32 %s, 0" % s(S_W))
    k("s_cbranch_scc0 %s_nf" % pre)
    k("s_lshl_b32 %s, %s, 2" % (s(S_T), s(S_CB)))
    k("s_add_u32 %s, %s, %s" % (s(S_T), s(S_T), s(S_C)))
    k("v_mov_b32 v12, %s" % s(S_T))
    k("v_mov_b32 v13, 1")
    k("s_mov_b64 exec, 1")
    k("global_store_dword v12, v13, %s sc1" % s(S_WS, 2))
    k("s_mov_b64 exec, -1")
    k.label(pre + "_nf")
    g2.wait_flags(k, pre + "_hw", S_C, 8)


def phase(k, pre):
    k("s_lshl_b32 %s, %s, 2" % (s(S_ROT), s(S_RL)))
    k("s_mov_b32 %s, %s" % (s(S_W1D), s(S_W1)))
    k("s_and_b32 %s, %s, 0xffff" % (s(S_W1D + 1), s(S_W1 + 1)))
    k("s_mov_b32 %s, 0x%x" % (s(S_W1D + 2), 512 * 3584))
    k("s_mov_b32 %s, 0x20000" % s(S_W1D + 3))
    k("s_cmp_ge_u32 %s, 4" % s(S_W))
    k("s_cbranch_scc0 %s_cmp" % pre)
    loader(k, pre)
    k.label(pre + "_cmp")
    compute(k, pre)
```

```python
import common
from common import *

OPT = set()
S_X, S_W2, S_WOP, S_B2, S_OUT, S_WS = 4, 6, 8, 10, 12, 14
S_HD, S_WD, S_XD, S_OD, S_BD = 16, 20, 28, 32, 52
S_W, S_RB, S_CB, S_T, S_T2, S_LB = 36, 37, 38, 39, 40, 41
S_XO0, S_XO1, S_WO, S_WRAP, S_LEFT, S_N, S_TRIP, S_RL = 42, 43, 44, 45, 46, 47, 48, 49
S_BX, S_BW, S_BWRAP = 56, 57, 58
D = 4
WSLOT = 2048
RING = D * WSLOT
VWS, VWR, VL16 = 4, 6, 3
XF, WF, ACC = 16, 48, 64
NA, NB = 28, 8


def setup(k):
    k("v_and_b32 v1, 31, v0")
    k("v_lshrrev_b32 v2, 5, v0")
    k("v_lshlrev_b32 v3, 4, v0")
    k("v_lshrrev_b32 v4, 3, v0")
    k("v_bfe_u32 v5, v0, 2, 1")
    k("v_bfe_u32 v6, v0, 4, 1")
    k("v_xor_b32 v5, v5, v6")
    k("v_and_b32 v6, 3, v0")
    k("v_lshlrev_b32 v6, 4, v6")
    k("v_lshl_add_u32 v5, v5, 6, v6")
    k("v_lshl_add_u32 v4, v4, 10, v5")
    k("v_bfe_u32 v12, v0, 2, 2")
    k("v_and_b32 v13, 3, v0")
    k("v_bfe_u32 v14, v0, 4, 1")
    k("v_lshl_add_u32 v13, v14, 2, v13")
    k("v_and_b32 v14, 1, v13")
    k("v_lshrrev_b32 v15, 1, v13")
    k("v_lshrrev_b32 v8, 1, v15")
    k("v_and_b32 v15, 1, v15")
    k("v_lshl_add_u32 v15, v14, 1, v15")
    k("v_lshl_add_u32 v13, v8, 2, v15")
    k("v_lshl_add_u32 v14, v2, 3, v12")
    k("v_lshlrev_b32 v14, 7, v14")
    k("v_lshl_add_u32 v14, v13, 3, v14")
    k("v_lshrrev_b32 v12, 1, v12")
    k("v_add_u32 v14, %s, v14" % s(S_LB))
    for ft in range(2):
        k("v_xor_b32 v15, %d, v12" % ft)
        k("v_lshl_add_u32 %s, v15, 6, v14" % v(VWR + ft))
    for j in range(64):
        k("v_mov_b32 %s, 0" % v(ACC + j))


def seg_params(k, n, kbase, dx, dw, dwrap):
    k("s_mul_i32 %s, %s, %d" % (s(S_T), s(S_RL), n // 4))
    k("s_mul_i32 %s, %s, %d" % (s(S_T2), s(S_CB), n))
    k("s_lshr_b32 %s, %s, 3" % (s(S_T2), s(S_T2)))
    k("s_add_u32 %s, %s, %s" % (s(S_T), s(S_T), s(S_T2)))
    k("s_cmp_ge_u32 %s, %d" % (s(S_T), n))
    k("s_cselect_b32 %s, %d, 0" % (s(S_T2), n))
    k("s_sub_u32 %s, %s, %s" % (s(S_T), s(S_T), s(S_T2)))
    k("s_sub_u32 %s, %d, %s" % (s(dwrap), n, s(S_T)))
    k("s_mul_i32 %s, %s, %d" % (s(S_T2), s(S_W), n))
    k("s_add_u32 %s, %s, %s" % (s(S_T), s(S_T), s(S_T2)))
    k("s_lshl_b32 %s, %s, 14" % (s(dw), s(S_T)))
    k("s_lshl_b32 %s, %s, 7" % (s(S_T2), s(S_CB)))
    k("s_add_u32 %s, %s, %s" % (s(dw), s(dw), s(S_T2)))
    k("s_add_u32 %s, %s, %d" % (s(S_T), s(S_T), kbase))
    k("s_lshl_b32 %s, %s, 10" % (s(S_T), s(S_T)))
    k("s_lshl_b32 %s, %s, 1" % (s(S_T2), s(S_RB)))
    k("s_mul_i32 %s, %s, %d" % (s(dx), s(S_T2), WS_HO_ROW))
    k("s_add_u32 %s, %s, %s" % (s(dx), s(dx), s(S_T)))
    k("s_add_u32 %s, %s, 0x%x" % (s(dx), s(dx), WS_HO))


XPROF = [False]
XSC = [""]


def issue_groups(slot):
    g = []
    g.append(["buffer_load_dwordx4 %s, v3, %s, %s offen%s" % (v(XF + 8 * slot, 4), s(S_HD, 4), s(S_XO0), XSC[0])])
    g.append(["s_add_u32 %s, %s, %d" % (s(S_XO1), s(S_XO0), WS_HO_ROW),
              "buffer_load_dwordx4 %s, v3, %s, %s offen%s" % (v(XF + 8 * slot + 4, 4), s(S_HD, 4), s(S_XO1), XSC[0])])
    g.append(["s_add_u32 m0, %s, %d" % (s(S_LB), slot * WSLOT),
              "s_add_u32 %s, %s, 8192" % (s(S_T), s(S_WO)),
              "buffer_load_dwordx4 v4, %s, %s offen lds" % (s(S_WD, 4), s(S_WO))])
    g.append(["s_add_u32 m0, m0, 1024", "s_nop 0",
              "buffer_load_dwordx4 v4, %s, %s offen lds" % (s(S_WD, 4), s(S_T))])
    if "nox" in OPT:
        g[0] = ["buffer_load_dwordx4 v4, %s, %s offen lds" % (s(S_WD, 4), s(S_WO))]
        g[1] = ["buffer_load_dwordx4 v4, %s, %s offen lds" % (s(S_WD, 4), s(S_WO))]
    if "now" in OPT:
        g[2] = ["buffer_load_dwordx4 %s, v3, %s, %s offen" % (v(XF + 8 * slot, 4), s(S_HD, 4), s(S_XO0))]
        g[3] = ["buffer_load_dwordx4 %s, v3, %s, %s offen" % (v(XF + 8 * slot + 4, 4), s(S_HD, 4), s(S_XO1))]
    return g


def advance(k, lab, two_segments):
    k("s_add_u32 %s, %s, 1024" % (s(S_XO0), s(S_XO0)))
    k("s_add_u32 %s, %s, 16384" % (s(S_WO), s(S_WO)))
    k("s_sub_u32 %s, %s, 1" % (s(S_WRAP), s(S_WRAP)))
    k("s_cmp_lg_u32 %s, 0" % s(S_WRAP))
    k("s_cbranch_scc1 %s_nw" % lab)
    k("s_lshl_b32 %s, %s, 10" % (s(S_T), s(S_N)))
    k("s_sub_u32 %s, %s, %s" % (s(S_XO0), s(S_XO0), s(S_T)))
    k("s_lshl_b32 %s, %s, 14" % (s(S_T), s(S_N)))
    k("s_sub_u32 %s, %s, %s" % (s(S_WO), s(S_WO), s(S_T)))
    k("s_mov_b32 %s, %s" % (s(S_WRAP), s(S_N)))
    k.label(lab + "_nw")
    if two_segments:
        k("s_sub_u32 %s, %s, 1" % (s(S_LEFT), s(S_LEFT)))
        k("s_cmp_lg_u32 %s, 0" % s(S_LEFT))
        k("s_cbranch_scc1 %s_ns" % lab)
        k("s_mov_b32 %s, %s" % (s(S_XO0), s(S_BX)))
        k("s_mov_b32 %s, %s" % (s(S_WO), s(S_BW)))
        k("s_mov_b32 %s, %s" % (s(S_WRAP), s(S_BWRAP)))
        k("s_mov_b32 %s, %d" % (s(S_N), NB))
        k("s_mov_b32 %s, %s" % (s(S_WD), s(S_WOP)))
        k("s_and_b32 %s, %s, 0xffff" % (s(S_WD + 1), s(S_WOP + 1)))
        k("s_mov_b32 %s, 0x%x" % (s(S_WD + 2), 512 * 1024))
        k.label(lab + "_ns")


def rd_w(k, slot, buf):
    for ft in range(2):
        for u in range(2):
            k("ds_read_b64_tr_b16 %s, %s offset:%d" % (v(WF + 8 * buf + 4 * ft + 2 * u, 2), v(VWR + ft), slot * WSLOT + u * 512))


def step(k, d, lab, issue, vm, two_segments, last=False):
    if not last:
        k("s_waitcnt vmcnt(%d)" % vm)
        rd_w(k, (d + 1) % D, (d + 1) & 1)
        k("s_waitcnt lgkmcnt(4)")
    else:
        k("s_waitcnt lgkmcnt(0)")
    g = issue_groups((d + D - 1) % D) if issue else [[], [], [], []]
    j = 0
    for tt in range(2):
        for ft in range(2):
            dd = v(ACC + 16 * (2 * tt + ft), 16)
            if "nomfma" not in OPT:
                k("v_mfma_f32_32x32x16_bf16 %s, %s, %s, %s" % (dd, v(WF + 8 * (d & 1) + 4 * ft, 4), v(XF + 8 * d + 4 * tt, 4), dd))
            for ins in g[j]:
                k(ins)
            j += 1
    if issue:
        advance(k, lab, two_segments)


def stream(k, pre, nsteps, two_segments, prio=None):
    for d in range(D - 1):
        for grp in issue_groups(d):
            for ins in grp:
                k(ins)
        advance(k, "%s_p%d" % (pre, d), two_segments)
    k("s_waitcnt vmcnt(8)")
    if prio:
        k("s_setprio %d" % prio)
    rd_w(k, 0, 0)
    ntrip = nsteps // D - 1
    k("s_mov_b32 %s, 0" % s(S_TRIP))
    k.label(pre + "_loop")
    for d in range(D):
        step(k, d, "%s_l%d" % (pre, d), True, 4, two_segments)
    k("s_add_u32 %s, %s, 1" % (s(S_TRIP), s(S_TRIP)))
    k("s_cmp_lt_u32 %s, %d" % (s(S_TRIP), ntrip))
    k("s_cbranch_scc1 %s_loop" % pre)
    step(k, 0, pre + "_t0", True, 4, two_segments)
    step(k, 1, pre + "_t1", False, 4, two_segments)
    step(k, 2, pre + "_t2", False, 0, two_segments)
    step(k, 3, pre + "_t3", False, 0, two_segments, last=True)


def reduce_and_store(k, pre):
    k("s_nop 15")
    k("s_barrier")
    for q in range(4):
        k("s_cmp_eq_u32 %s, %d" % (s(S_W), q))
        k("s_cbranch_scc1 %s_nw%d" % (pre, q))
        k("s_lshl_b32 %s, %s, 14" % (s(S_T), s(S_W)))
        k("v_add_u32 v8, %s, v3" % s(S_T))
        for g in range(4):
            k("ds_write_b128 v8, %s offset:%d" % (v(ACC + 16 * q + 4 * g, 4), q * 4096 + g * 1024))
        k.label("%s_nw%d" % (pre, q))
    for q in range(4):
        k("s_cmp_lg_u32 %s, %d" % (s(S_W), q))
        k("s_cbranch_scc1 %s_no%d" % (pre, q))
        for r in range(16):
            k("v_mov_b32 %s, %s" % (v(16 + r), v(ACC + 16 * q + r)))
        k.label("%s_no%d" % (pre, q))
    k("s_waitcnt lgkmcnt(0)")
    k("s_barrier")
    k("s_lshl_b32 %s, %s, 12" % (s(S_T2), s(S_W)))
    k("v_add_u32 v8, %s, v3" % s(S_T2))
    first = True
    for dq in range(1, 4):
        k("s_add_u32 %s, %s, %d" % (s(S_T2), s(S_W), dq))
        k("s_and_b32 %s, %s, 3" % (s(S_T2), s(S_T2)))
        k("s_lshl_b32 %s, %s, 14" % (s(S_T2), s(S_T2)))
        k("v_add_u32 v9, %s, v8" % s(S_T2))
        for g in range(4):
            k("ds_read_b128 %s, v9 offset:%d" % (v(64 + 16 * (dq - 1) + 4 * g, 4), g * 1024))
    for dq in range(1, 4):
        k("s_waitcnt lgkmcnt(%d)" % (4 * (3 - dq)))
        for r in range(16):
            k("v_add_f32 %s, %s, %s" % (v(16 + r), v(16 + r), v(64 + 16 * (dq - 1) + r)))


def resid_loads(k):
    k("s_lshr_b32 %s, %s, 1" % (s(S_T), s(S_W)))
    k("s_lshl_b32 %s, %s, 1" % (s(S_T2), s(S_RB)))
    k("s_add_u32 %s, %s, %s" % (s(S_T), s(S_T), s(S_T2)))
    k("s_lshl_b32 %s, %s, 15" % (s(S_T), s(S_T)))
    k("s_and_b32 %s, %s, 1" % (s(S_T2), s(S_W)))
    k("s_lshl_b32 %s, %s, 6" % (s(S_T2), s(S_T2)))
    k("s_lshl_b32 %s, %s, 7" % (s(S_N), s(S_CB)))
    k("s_add_u32 %s, %s, %s" % (s(S_BW), s(S_T2), s(S_N)))
    k("s_add_u32 %s, %s, %s" % (s(S_BX), s(S_T), s(S_BW)))
    k("v_lshlrev_b32 v10, 10, v1")
    k("v_lshl_add_u32 v10, v2, 4, v10")
    k("v_lshlrev_b32 v11, 4, v2")
    k("buffer_load_dwordx4 v[32:35], v10, %s, %s offen" % (s(S_XD, 4), s(S_BX)))
    k("buffer_load_dwordx4 v[36:39], v10, %s, %s offen offset:32" % (s(S_XD, 4), s(S_BX)))
    k("buffer_load_dwordx4 v[40:43], v11, %s, %s offen" % (s(S_BD, 4), s(S_BW)))
    k("buffer_load_dwordx4 v[44:47], v11, %s, %s offen offset:32" % (s(S_BD, 4), s(S_BW)))


def finish_tile(k):
    k("s_waitcnt vmcnt(0)")
    for half in range(2):
        for j in range(4):
            for src in (32, 40):
                r = src + 4 * half + j
                k("v_lshlrev_b32 v12, 16, %s" % v(r))
                k("v_and_b32 v13, 0xffff0000, %s" % v(r))
                k("v_add_f32 %s, %s, v12" % (v(16 + 8 * half + 2 * j), v(16 + 8 * half + 2 * j)))
                k("v_add_f32 %s, %s, v13" % (v(16 + 8 * half + 2 * j + 1), v(16 + 8 * half + 2 * j + 1)))
    for r in range(8):
        k("v_cvt_pk_bf16_f32 %s, %s, %s" % (v(16 + r), v(16 + 2 * r), v(17 + 2 * r)))
    k("buffer_store_dwordx4 v[16:19], v10, %s, %s offen" % (s(S_OD, 4), s(S_BX)))
    k("buffer_store_dwordx4 v[20:23], v10, %s, %s offen offset:32" % (s(S_OD, 4), s(S_BX)))


WS_BASE = 24 << 20


def ids(k, s_id):
    k("s_bfe_u32 %s, %s, 0x20003" % (s(S_RL), s_id))
    k("s_and_b32 %s, %s, 7" % (s(S_RB), s_id))
    k("s_lshl_b32 %s, %s, 2" % (s(S_RB), s(S_RB)))
    k("s_add_u32 %s, %s, %s" % (s(S_RB), s(S_RB), s(S_RL)))
    k("s_lshr_b32 %s, %s, 5" % (s(S_CB), s_id))


def add_resid(k):
    k("s_waitcnt vmcnt(0)")
    for half in range(2):
        for j in range(4):
            for src in (32, 40):
                r = src + 4 * half + j
                k("v_lshlrev_b32 v12, 16, %s" % v(r))
                k("v_and_b32 v13, 0xffff0000, %s" % v(r))
                k("v_add_f32 %s, %s, v12" % (v(16 + 8 * half + 2 * j), v(16 + 8 * half + 2 * j)))
                k("v_add_f32 %s, %s, v13" % (v(16 + 8 * half + 2 * j + 1), v(16 + 8 * half + 2 * j + 1)))


def gen_ffn2_role(k, pre, s_ws_size):
    k("v_lshrrev_b32 v1, 6, v0")
    k("v_and_b32 v0, 63, v0")
    k("v_readfirstlane_b32 %s, v1" % s(S_W))
    for r, off in ((S_WS, KA_WS), (S_W2, KA_W2), (S_X, KA_X), (S_B2, KA_B2)):
        k("s_load_dwordx2 %s, s[0:1], %d" % (s(r, 2), off))
    k("s_sub_u32 s3, s2, 256")
    k("s_cmp_ge_u32 %s, 4" % s(S_W))
    k("s_cbranch_scc1 %s_exit" % pre)
    ids(k, "s3")
    k("s_mul_i32 %s, %s, %d" % (s(S_LB), s(S_W), RING))
    seg_params(k, NA, 0, S_XO0, S_WO, S_WRAP)
    k("s_mov_b32 %s, %d" % (s(S_N), NA))
    setup(k)
    k("s_waitcnt lgkmcnt(0)")
    k.srd(S_HD, S_WS, s_ws_size)
    k.srd(S_WD, S_W2, 1792 * 1024)
    k.srd(S_XD, S_X, 2048 * 1024)
    k.srd(S_BD, S_B2, 1024)
    prof_mark(k, 2)
    stream(k, pre, NA, False, prio=(3 if "gp3" in OPT else (1 if "gp1" in OPT else 0)))
    prof_mark(k, 3)
    resid_loads(k)
    reduce_and_store(k, pre)
    add_resid(k)
    k("s_lshl_b32 %s, s3, 14" % s(S_T))
    k("s_lshl_b32 %s, %s, 12" % (s(S_T2), s(S_W)))
    k("s_add_u32 %s, %s, %s" % (s(S_T), s(S_T), s(S_T2)))
    k("s_add_u32 %s, %s, 0x%x" % (s(S_T), s(S_T), WS_BASE))
    for g in range(4):
        k("buffer_store_dwordx4 %s, v3, %s, %s offen offset:%d" % (v(16 + 4 * g, 4), s(S_HD, 4), s(S_T), 1024 * g))
    if "nopf" not in OPT:
        k("s_load_dwordx2 %s, s[0:1], %d" % (s(S_WOP, 2), KA_WO))
        k("s_waitcnt lgkmcnt(0)")
        k.srd(S_WD, S_WOP, 512 * 1024)
        k("s_lshl_b32 %s, %s, 17" % (s(S_T), s(S_W)))
        k("s_lshl_b32 %s, %s, 7" % (s(S_T2), s(S_CB)))
        k("s_add_u32 %s, %s, %s" % (s(S_T), s(S_T), s(S_T2)))
        for i in range(16):
            k("buffer_load_dwordx4 %s, v4, %s, %s offen" % (v(64 + 4 * i, 4), s(S_WD, 4), s(S_T)))
            k("s_add_u32 %s, %s, 8192" % (s(S_T), s(S_T)))
    k("s_waitcnt vmcnt(0)")
    prof_mark(k, 5)
    prof_rt(k, 6)
    prof_store(k, S_WS, S_W, 24)
    k.label(pre + "_exit")
    k("s_endpgm")


S_DBG = 60


def wait_flags(k, lab, s_off, n):
    k("s_cmp_eq_u32 %s, 0" % s(S_W))
    k("s_cbranch_scc0 %s_go" % lab)
    k("v_min_u32 v8, %d, v0" % (n - 1))
    k("v_lshl_add_u32 v8, v8, 2, %s" % s(s_off))
    k("s_mov_b32 %s, 0" % s(S_TRIP))
    k.label(lab + "_poll")
    k("global_load_dword v9, v8, %s sc1" % s(S_WS, 2))
    k("s_add_u32 %s, %s, 1" % (s(S_TRIP), s(S_TRIP)))
    k("s_waitcnt vmcnt(0)")
    k("v_cmp_eq_u32 vcc, 0, v9")
    k("s_nop 1")
    k("s_cmp_eq_u64 vcc, 0")
    k("s_cbranch_scc1 %s_go" % lab)
    k("s_cmp_eq_u64 vcc, exec")
    k("s_cbranch_scc0 %s_near" % lab)
    k("s_sleep %d" % (24 if "sl24" in OPT else 12))
    k.label(lab + "_near")
    k("s_sleep %d" % (8 if "sn8" in OPT else 3))
    k("s_cmp_lt_u32 %s, 0x40000" % s(S_TRIP))
    k("s_cbranch_scc1 %s_poll" % lab)
    k.label(lab + "_go")
    k("s_barrier")


def wo_tail(k, pre):
    OWN, OTH, XB, WB = 16, 96, 32, 112
    VLO, VHI = 14, 6
    k("s_barrier")
    k.srd(S_WD, S_WOP, 512 * 1024)
    k("s_lshl_b32 %s, %s, 17" % (s(S_T), s(S_W)))
    k("s_lshl_b32 %s, %s, 7" % (s(S_T2), s(S_CB)))
    k("s_add_u32 %s, %s, %s" % (s(S_T), s(S_T), s(S_T2)))
    k("s_lshl_b32 m0, %s, 14" % s(S_W))
    k("s_mov_b32 %s, 16" % s(S_TRIP))
    k.label(pre + "_wst")
    k("buffer_load_dwordx4 v4, %s, %s offen lds" % (s(S_WD, 4), s(S_T)))
    k("s_add_u32 %s, %s, 8192" % (s(S_T), s(S_T)))
    k("s_add_u32 m0, m0, 1024")
    k("s_sub_u32 %s, %s, 1" % (s(S_TRIP), s(S_TRIP)))
    k("s_cmp_lg_u32 %s, 0" % s(S_TRIP))
    k("s_cbranch_scc1 %s_wst" % pre)
    k("s_and_b32 %s, %s, 1" % (s(S_N), s(S_W)))
    k("s_and_b32 %s, %s, 1" % (s(S_WRAP), s(S_CB)))
    k("s_lshl_b32 %s, %s, 3" % (s(S_WRAP), s(S_WRAP)))
    k("v_subrev_u32 v6, %s, v6" % s(S_LB))
    k("v_subrev_u32 v7, %s, v7" % s(S_LB))
    k("s_cmp_eq_u32 %s, 0" % s(S_N))
    k("s_cselect_b64 vcc, -1, 0")
    k("v_cndmask_b32 v12, v7, v6, vcc")
    k("v_cndmask_b32 v13, v6, v7, vcc")
    k("s_lshl_b32 %s, %s, 15" % (s(S_T), s(S_N)))
    k("s_lshl_b32 %s, %s, 11" % (s(S_T2), s(S_WRAP)))
    k("s_add_u32 %s, %s, %s" % (s(S_LEFT), s(S_T), s(S_T2)))
    k("v_add_u32 %s, %s, v12" % (v(VLO), s(S_LEFT)))
    k("v_add_u32 %s, %s, v13" % (v(VLO + 1), s(S_LEFT)))
    k("s_sub_u32 %s, %s, %s" % (s(S_LEFT), s(S_T), s(S_T2)))
    k("s_add_u32 %s, %s, %d" % (s(S_LEFT), s(S_LEFT), 8 * 2048))
    k("v_add_u32 %s, %s, v12" % (v(VHI), s(S_LEFT)))
    k("v_add_u32 %s, %s, v13" % (v(VHI + 1), s(S_LEFT)))
    for r in range(16):
        k("v_mov_b32 %s, 0" % v(OTH + r))
    k("s_lshr_b32 %s, %s, 1" % (s(S_T), s(S_W)))
    k("s_lshl_b32 %s, %s, 1" % (s(S_T2), s(S_RB)))
    k("s_add_u32 %s, %s, %s" % (s(S_T), s(S_T), s(S_T2)))
    k("s_mul_i32 %s, %s, %d" % (s(S_XO0), s(S_T), WS_HO_ROW))
    k("s_lshl_b32 %s, %s, 14" % (s(S_T), s(S_N)))
    k("s_add_u32 %s, %s, %s" % (s(S_XO0), s(S_XO0), s(S_T)))
    k("s_add_u32 %s, %s, 0x%x" % (s(S_XO0), s(S_XO0), WS_HO + 112 * 1024))
    k("s_lshl_b32 %s, %s, 10" % (s(S_T), s(S_WRAP)))
    k("s_add_u32 %s, %s, %s" % (s(S_XO1), s(S_XO0), s(S_T)))
    k("s_sub_u32 %s, %s, %s" % (s(S_XO0), s(S_XO0), s(S_T)))
    def xloads():
        k("s_mov_b32 %s, %s" % (s(S_T), s(S_XO1)))
        k("s_add_u32 %s, %s, 8192" % (s(S_T2), s(S_XO0)))
        for i in range(16):
            so = S_T if i < 8 else S_T2
            if i in (4, 12):
                k("s_add_u32 %s, %s, 4096" % (s(so), s(so)))
            k("buffer_load_dwordx4 %s, v3, %s, %s offen offset:%d sc1" % (v(XB + 4 * i, 4), s(S_HD, 4), s(so), (i % 4) * 1024))

    if not XPROF[0]:
        prof_mark(k, 2)
    if "tagged" in OPT:
        k("s_waitcnt vmcnt(0)")
        k("s_barrier")
        k("s_setprio 0")
        k("s_lshl_b32 %s, %s, 10" % (s(S_T2), s(S_WRAP)))
        k("s_sub_u32 %s, %s, %s" % (s(S_LEFT), s(S_XO1), s(S_T2)))
        k("v_and_b32 v8, 15, v0")
        k("v_lshlrev_b32 v8, 10, v8")
        k("v_add_u32 v8, 1020, v8")
        k("s_mov_b32 %s, 0" % s(S_TRIP))
        k.label(pre + "_lp")
        k("buffer_load_dword v9, v8, %s, %s offen sc1" % (s(S_HD, 4), s(S_LEFT)))
        k("s_add_u32 %s, %s, 1" % (s(S_TRIP), s(S_TRIP)))
        k("s_waitcnt vmcnt(0)")
        k("v_cmp_eq_u32 vcc, -1, v9")
        k("s_nop 1")
        k("s_cmp_eq_u64 vcc, 0")
        k("s_cbranch_scc1 %s_full" % pre)
        k("s_cmp_eq_u64 vcc, exec")
        k("s_cbranch_scc0 %s_lnear" % pre)
        k("s_sleep 24")
        k("s_branch %s_lagain" % pre)
        k.label(pre + "_lnear")
        k("s_setprio 3")
        k("s_sleep 2")
        k.label(pre + "_lagain")
        k("s_cmp_lt_u32 %s, 0x8000" % s(S_TRIP))
        k("s_cbranch_scc1 %s_lp" % pre)
        k.label(pre + "_full")
        k("s_setprio 3")
        xloads()
        k("s_add_u32 %s, %s, 1" % (s(S_TRIP), s(S_TRIP)))
        for g in range(4):
            k("s_waitcnt vmcnt(%d)" % (12 - 4 * g))
            for r in range(0, 16, 2):
                a_, b_ = XB + 16 * g + r, XB + 16 * g + r + 1
                if g == 0 and r == 0:
                    k("v_max_u32 v9, %s, %s" % (v(a_), v(b_)))
                else:
                    k("v_max3_u32 v9, v9, %s, %s" % (v(a_), v(b_)))
        k("v_cmp_eq_u32 vcc, -1, v9")
        k("s_nop 1")
        k("s_cmp_eq_u64 vcc, 0")
        k("s_cbranch_scc1 %s_got" % pre)
        k("s_cmp_lt_u32 %s, 0x8000" % s(S_TRIP))
        k("s_cbranch_scc1 %s_full" % pre)
        k.label(pre + "_got")
        prof_mark(k, 4)
    else:
        k("s_lshl_b32 %s, %s, 8" % (s(S_LEFT), s(S_RB)))
        k("s_add_u32 %s, %s, 0x%x" % (s(S_LEFT), s(S_LEFT), WS_FLAG + FLAG_O))
        k("s_waitcnt vmcnt(0)")
        k("s_setprio 3")
        wait_flags(k, pre + "_w", S_LEFT, 64)
        prof_mark(k, 4)
        xloads()

    def rd(i):
        base = VLO if i < 8 else VHI
        for j in range(2):
            for u in range(2):
                k("ds_read_b64_tr_b16 %s, %s offset:%d" % (v(WB + 8 * (i & 1) + 4 * j + 2 * u, 2), v(base + j), (i & 7) * 2048 + u * 512))

    rd(0)
    for i in range(16):
        if i < 15:
            rd(i + 1)
        if "tagged" in OPT:
            k("s_waitcnt lgkmcnt(%d)" % (4 if i < 15 else 0))
        else:
            k("s_waitcnt vmcnt(%d) lgkmcnt(%d)" % (15 - i, 4 if i < 15 else 0))
        for j, acc in ((0, OWN), (1, OTH)):
            k("v_mfma_f32_32x32x16_bf16 %s, %s, %s, %s" % (v(acc, 16), v(WB + 8 * (i & 1) + 4 * j, 4), v(XB + 4 * i, 4), v(acc, 16)))
    k("s_barrier")
    k("s_xor_b32 %s, %s, 1" % (s(S_T), s(S_W)))
    k("s_lshl_b32 %s, %s, 12" % (s(S_T), s(S_T)))
    k("v_add_u32 v12, %s, v3" % s(S_T))
    k("s_lshl_b32 %s, %s, 12" % (s(S_T), s(S_W)))
    k("v_add_u32 v13, %s, v3" % s(S_T))
    k("s_nop 7")
    for g in range(4):
        k("ds_write_b128 v12, %s offset:%d" % (v(OTH + 4 * g, 4), g * 1024))
    k("s_waitcnt lgkmcnt(0)")
    k("s_barrier")
    for g in range(4):
        k("ds_read_b128 %s, v13 offset:%d" % (v(XB + 4 * g, 4), g * 1024))
    k("v_lshlrev_b32 v10, 10, v1")
    k("v_lshl_add_u32 v10, v2, 4, v10")
    for g in range(4):
        k("s_waitcnt lgkmcnt(%d)" % (3 - g))
        for r in range(4):
            k("v_add_f32 %s, %s, %s" % (v(OWN + 4 * g + r), v(OWN + 4 * g + r), v(XB + 4 * g + r)))
    for r in range(8):
        k("v_cvt_pk_bf16_f32 %s, %s, %s" % (v(16 + r), v(16 + 2 * r), v(17 + 2 * r)))
    k("buffer_store_dwordx4 v[16:19], v10, %s, %s offen" % (s(S_OD, 4), s(S_BX)))
    k("buffer_store_dwordx4 v[20:23], v10, %s, %s offen offset:32" % (s(S_OD, 4), s(S_BX)))


def gen_g_role(k, pre, ffn1=None):
    k("v_lshrrev_b32 v1, 6, v0")
    k("v_and_b32 v0, 63, v0")
    k("v_readfirstlane_b32 %s, v1" % s(S_W))
    for r, off in ((S_WS, KA_WS), (S_W2, KA_W2), (S_WOP, KA_WO), (S_X, KA_X), (S_B2, KA_B2), (S_OUT, KA_OUT)):
        k("s_load_dwordx2 %s, s[0:1], %d" % (s(r, 2), off))
    k("s_sub_u32 s3, s2, 256")
    if ffn1:
        k("s_load_dwordx2 s[62:63], s[0:1], %d" % KA_W1)
        k("s_load_dwordx2 s[64:65], s[0:1], %d" % KA_B1)
        ids(k, "s3")
        k("v_and_b32 v1, 31, v0")
        k("v_lshrrev_b32 v2, 5, v0")
        k("s_waitcnt lgkmcnt(0)")
        k.srd(S_HD, S_WS, (20 << 20) + (2 << 20))
        for lvl in (1, 2, 3):
            if "fp%d" % lvl in OPT:
                k("s_setprio %d" % lvl)
        ffn1(k, pre + "f")
        prof_mark(k, 2)
        k("s_setprio 0")
        XSC[0] = " sc1"
    else:
        k("s_cmp_ge_u32 %s, 4" % s(S_W))
        k("s_cbranch_scc1 %s_exit" % pre)
    ids(k, "s3")
    k("s_mul_i32 %s, %s, %d" % (s(S_LB), s(S_W), RING))
    seg_params(k, NA, 0, S_XO0, S_WO, S_WRAP)
    k("s_mov_b32 %s, %d" % (s(S_N), NA))
    setup(k)
    k("s_waitcnt lgkmcnt(0)")
    k.srd(S_HD, S_WS, WS_END)
    k.srd(S_WD, S_W2, 1792 * 1024)
    k.srd(S_XD, S_X, 2048 * 1024)
    k.srd(S_OD, S_OUT, 2048 * 1024)
    k.srd(S_BD, S_B2, 1024)
    stream(k, pre + "a", NA, False, prio=(3 if "gp3" in OPT else (1 if "gp1" in OPT else (2 if "gp2" in OPT else None))))
    XSC[0] = ""
    prof_mark(k, 3)
    for lvl in (1, 2, 3):
        if "rp%d" % lvl in OPT:
            k("s_setprio %d" % lvl)
    resid_loads(k)
    reduce_and_store(k, pre)
    add_resid(k)
    wo_tail(k, pre)
    k("s_waitcnt vmcnt(0)")
    if common.STAMP:
        k("s_cmp_eq_u32 s2, 256")
        k("s_cbranch_scc0 %s_ng" % pre)
        k("s_cmp_eq_u32 %s, 0" % s(S_W))
        k("s_cbranch_scc0 %s_ng" % pre)
        k("s_load_dwordx2 s[60:61], s[0:1], %d" % KA_DBG)
        k("s_memrealtime s[88:89]")
        k("s_waitcnt lgkmcnt(0)")
        k("v_lshrrev_b32 v8, 2, v0")
        k("v_mul_u32_u24 v8, %d, v8" % (65 * 32))
        k("v_and_b32 v9, 3, v0")
        k("v_lshl_add_u32 v8, v9, 2, v8")
        k("v_add_u32 v8, 0x%x, v8" % WS_STAMP)
        k("v_cmp_gt_u32 vcc, 15, v0")
        k("s_and_saveexec_b64 s[62:63], vcc")
        k("global_load_dword v9, v8, %s sc1" % s(S_WS, 2))
        k("s_waitcnt vmcnt(0)")
        k("s_mov_b64 exec, s[62:63]")
        k("v_mov_b32 v10, s88")
        k("v_cmp_eq_u32 vcc, 15, v0")
        k("s_nop 1")
        k("v_cndmask_b32 v9, v9, v10, vcc")
        k("v_lshlrev_b32 v8, 2, v0")
        k("v_cmp_gt_u32 vcc, 16, v0")
        k("s_and_saveexec_b64 s[62:63], vcc")
        k("global_store_dword v8, v9, s[60:61]")
        k("s_waitcnt vmcnt(0)")
        k("s_mov_b64 exec, s[62:63]")
        k.label(pre + "_ng")
    prof_mark(k, 5)
    prof_rt(k, 6)
    prof_store(k, S_WS, S_W, 24)
    k.label(pre + "_exit")
    k("s_endpgm")


def gen_wo(k, name, pre):
    k.kernel_begin(name)
    k("s_cmp_ge_u32 s2, 256")
    k("s_cbranch_scc1 %s_exit" % pre)
    prof_start(k)
    for r, off in ((S_WS, KA_WS), (S_WOP, KA_WO), (S_OUT, KA_OUT)):
        k("s_load_dwordx2 %s, s[0:1], %d" % (s(r, 2), off))
    ids(k, "s2")
    k("v_lshrrev_b32 v1, 6, v0")
    k("v_and_b32 v0, 63, v0")
    k("v_readfirstlane_b32 %s, v1" % s(S_W))
    k("s_nop 0")
    k("s_mul_i32 %s, %s, %d" % (s(S_LB), s(S_W), RING))
    seg_params(k, NB, 112, S_XO0, S_WO, S_WRAP)
    k("s_mov_b32 %s, %d" % (s(S_N), NB))
    setup(k)
    k("s_waitcnt lgkmcnt(0)")
    k.srd(S_HD, S_WS, WS_BASE + (4 << 20))
    k.srd(S_WD, S_WOP, 512 * 1024)
    k.srd(S_OD, S_OUT, 2048 * 1024)
    k("s_lshl_b32 %s, s2, 14" % s(S_T))
    k("s_lshl_b32 %s, %s, 12" % (s(S_T2), s(S_W)))
    k("s_add_u32 %s, %s, %s" % (s(S_T), s(S_T), s(S_T2)))
    k("s_add_u32 %s, %s, 0x%x" % (s(S_T), s(S_T), WS_BASE))
    for q in range(4):
        k("s_cmp_lg_u32 %s, %d" % (s(S_W), q))
        k("s_cbranch_scc1 %s_nb%d" % (pre, q))
        for g in range(4):
            k("buffer_load_dwordx4 %s, v3, %s, %s offen offset:%d" % (v(ACC + 16 * q + 4 * g, 4), s(S_HD, 4), s(S_T), 1024 * g))
        k.label("%s_nb%d" % (pre, q))
    prof_mark(k, 2)
    stream(k, pre, NB, False)
    prof_mark(k, 3)
    reduce_and_store(k, pre)
    k("s_lshr_b32 %s, %s, 1" % (s(S_T), s(S_W)))
    k("s_lshl_b32 %s, %s, 1" % (s(S_T2), s(S_RB)))
    k("s_add_u32 %s, %s, %s" % (s(S_T), s(S_T), s(S_T2)))
    k("s_lshl_b32 %s, %s, 15" % (s(S_T), s(S_T)))
    k("s_and_b32 %s, %s, 1" % (s(S_T2), s(S_W)))
    k("s_lshl_b32 %s, %s, 6" % (s(S_T2), s(S_T2)))
    k("s_add_u32 %s, %s, %s" % (s(S_T), s(S_T), s(S_T2)))
    k("s_lshl_b32 %s, %s, 7" % (s(S_T2), s(S_CB)))
    k("s_add_u32 %s, %s, %s" % (s(S_T), s(S_T), s(S_T2)))
    k("v_lshlrev_b32 v10, 10, v1")
    k("v_lshl_add_u32 v10, v2, 4, v10")
    for r in range(8):
        k("v_cvt_pk_bf16_f32 %s, %s, %s" % (v(16 + r), v(16 + 2 * r), v(17 + 2 * r)))
    k("buffer_store_dwordx4 v[16:19], v10, %s, %s offen" % (s(S_OD, 4), s(S_T)))
    k("buffer_store_dwordx4 v[20:23], v10, %s, %s offen offset:32" % (s(S_OD, 4), s(S_T)))
    k("s_waitcnt vmcnt(0)")
    prof_mark(k, 5)
    prof_rt(k, 6)
    prof_store(k, S_WS, S_W, 24)
    k.label(pre + "_exit")
    k.kernel_end(name, 128, 128)
    return 256, 65536


def gen_final(k, name, pre):
    k.kernel_begin(name)
    k("s_cmp_ge_u32 s2, 256")
    k("s_cbranch_scc1 %s_exit" % pre)
    prof_start(k)
    for r, off in ((S_WS, KA_WS), (S_W2, KA_W2), (S_WOP, KA_WO), (S_X, KA_X), (S_B2, KA_B2), (S_OUT, KA_OUT)):
        k("s_load_dwordx2 %s, s[0:1], %d" % (s(r, 2), off))
    k("s_bfe_u32 %s, s2, 0x20003" % s(S_RL))
    k("s_and_b32 %s, s2, 7" % s(S_RB))
    k("s_lshl_b32 %s, %s, 2" % (s(S_RB), s(S_RB)))
    k("s_add_u32 %s, %s, %s" % (s(S_RB), s(S_RB), s(S_RL)))
    k("s_lshr_b32 %s, s2, 5" % s(S_CB))
    k("v_lshrrev_b32 v1, 6, v0")
    k("v_and_b32 v0, 63, v0")
    k("v_readfirstlane_b32 %s, v1" % s(S_W))
    k("s_nop 0")
    k("s_mul_i32 %s, %s, %d" % (s(S_LB), s(S_W), RING))
    if "norot" in OPT:
        k("s_mov_b32 %s, 0" % s(S_RL))
    seg_params(k, NA, 0, S_XO0, S_WO, S_WRAP)
    seg_params(k, NB, 112, S_BX, S_BW, S_BWRAP)
    k("s_mov_b32 %s, %d" % (s(S_N), NA))
    k("s_mov_b32 %s, %d" % (s(S_LEFT), NA))
    setup(k)
    k("s_waitcnt lgkmcnt(0)")
    k.srd(S_HD, S_WS, WS_END)
    k.srd(S_WD, S_W2, 1792 * 1024)
    k.srd(S_XD, S_X, 2048 * 1024)
    k.srd(S_OD, S_OUT, 2048 * 1024)
    k.srd(S_BD, S_B2, 1024)
    prof_mark(k, 2)
    stream(k, pre, NA + NB, True)
    prof_mark(k, 3)
    resid_loads(k)
    reduce_and_store(k, pre)
    finish_tile(k)
    k("s_waitcnt vmcnt(0)")
    prof_mark(k, 5)
    prof_rt(k, 6)
    prof_store(k, S_WS, S_W, 24)
    k.label(pre + "_exit")
    k.kernel_end(name, 128, 128)
    return 256, 65536
```

```python
import sys
import common
from common import *
import attn, gemm1, final, g1, k1, g2, kb, f1

def build(path, which=("qkv", "ffn1", "attn", "final")):
    k = Asm()
    body = Asm()
    launches = []
    if "qkv" in which:
        n, lds = g1.gen(body, "qkv_kernel", "L_qkv", "qkv")
        launches.append("; @launch kernel=qkv_kernel grid=(%d,1,1) block=(512,1,1) lds=%d" % (n, lds))
    if "k1" in which:
        n, lds = k1.gen(body, "k1_kernel", "L_k1")
        launches.append("; @launch kernel=k1_kernel grid=(%d,1,1) block=(512,1,1) lds=%d" % (n, lds))
    if "kb" in which:
        n, lds = kb.gen(body, "kb_kernel", "L_kb", True)
        launches.append("; @launch kernel=kb_kernel grid=(%d,1,1) block=(512,1,1) lds=%d" % (n, lds))
    if "kq" in which:
        kb.OPT.add("xn")
        n, lds = kb.gen(body, "kb_kernel", "L_kb", False)
        launches.append("; @launch kernel=kb_kernel grid=(%d,1,1) block=(512,1,1) lds=%d" % (n, lds))
    if "ffn1" in which:
        n, lds = g1.gen(body, "ffn1_kernel", "L_ffn1", "ffn1")
        launches.append("; @launch kernel=ffn1_kernel grid=(%d,1,1) block=(512,1,1) lds=%d" % (n, lds))
    if "attn" in which:
        attn.gen_attn(body, "attn_kernel")
        launches.append("; @launch kernel=attn_kernel grid=(256,1,1) block=(512,1,1) lds=%d" % (3 * attn.SLOT))
    if "k2" in which:
        attn.gen_attn(body, "k2_kernel", True, lambda kk: g2.gen_ffn2_role(kk, "L_g2", g2.WS_BASE + (4 << 20)))
        launches.append("; @launch kernel=k2_kernel grid=(512,1,1) block=(512,1,1) lds=%d" % (3 * attn.SLOT))
    if "k2s" in which:
        attn.OPT.add("signal")
        attn.gen_attn(body, "k2_kernel", True, lambda kk: g2.gen_g_role(kk, "L_g2"))
        launches.append("; @launch kernel=k2_kernel grid=(512,1,1) block=(512,1,1) lds=%d" % (3 * attn.SLOT))
    if "k2f" in which:
        attn.OPT.add("signal")
        g2.XPROF[0] = True
        attn.gen_attn(body, "k2_kernel", True, lambda kk: g2.gen_g_role(kk, "L_g2", f1.phase))
        launches.append("; @launch kernel=k2_kernel grid=(512,1,1) block=(512,1,1) lds=%d" % (3 * attn.SLOT))
    if "wo" in which:
        n, lds = g2.gen_wo(body, "wo_kernel", "L_wo")
        launches.append("; @launch kernel=wo_kernel grid=(%d,1,1) block=(256,1,1) lds=%d" % (n, lds))
    if "final" in which:
        n, lds = g2.gen_final(body, "final_kernel", "L_fin")
        launches.append("; @launch kernel=final_kernel grid=(%d,1,1) block=(256,1,1) lds=%d" % (n, lds))
    if "empty" in which:
        body.kernel_begin("empty_kernel")
        body.kernel_end("empty_kernel", 32, 32)
        n = [int(a[5:]) for a in which if a.startswith("empty") and len(a) > 5]
    for a in which:
        if a.startswith("nempty"):
            if "empty_kernel:" not in body.text():
                body.kernel_begin("empty_kernel")
                body.kernel_end("empty_kernel", 32, 32)
            for i in range(int(a[6:])):
                launches.append("; @launch kernel=empty_kernel grid=(256,1,1) block=(256,1,1) lds=0")
    body.label("L_text_end")
    txt = HEADER + "\n".join(launches) + "\n" + '.amdgcn_target "amdgcn-amd-amdhsa--gfx950"\n' + body.text()
    open(path, "w").write(txt)

if __name__ == "__main__":
    common.PROF = "prof" in sys.argv
    common.STAMP = "stamp" in sys.argv
    for a in sys.argv[1:]:
        if a.startswith("g1:"):
            g1.OPT.add(a[3:])
        if a.startswith("k1:"):
            k1.OPT.add(a[3:])
        if a.startswith("kb:"):
            kb.OPT.add(a[3:])
        if a.startswith("f1:"):
            f1.OPT.add(a[3:])
        if a.startswith("g2:"):
            g2.OPT.add(a[3:])
        if a.startswith("at:"):
            attn.OPT.add(a[3:])
    out = [a for a in sys.argv[1:] if a.endswith(".s")][0]
    which = [a for a in sys.argv[1:] if a in ("qkv", "ffn1", "attn", "final", "k1", "kb", "k2", "wo", "k2s", "kq", "k2f") or a.startswith("nempty")] or ("qkv", "ffn1", "attn", "final")
    build(out, which)
```

```python
import common
from common import *

SA, SB, CI, P, KF, VF0, VF1, QF, OA = 16, 32, 48, 64, 72, 76, 80, 84, 96
V_LANE16, V_CUR, V_NXT, V_KOFF, V_VOFF, V_T0, V_T1, V_OOFF = 1, 2, 3, 4, 5, 6, 7, 8
SLOT = 24576
TILE = 3072
BIAS = 96.0
ONES = 0x3F803F80

S_WS, S_KV, S_HOS, S_W, S_HEAD, S_QB, S_T, S_C, S_SLOT, S_VM, S_TILE = 4, 8, 12, 16, 17, 18, 19, 20, 21, 22, 24
S_QS = 28
S_NSLOT = 32
S_DBG = 34


OPT = set()


def mfma(k, d, A, B, C):
    k("v_mfma_f32_32x32x16_bf16 %s, %s, %s, %s" % (v(d, 16), v(A, 4), v(B, 4), C if isinstance(C, str) else v(C, 16)))


def dma_chunk(k):
    k("s_mul_i32 %s, %s, %d" % (s(S_T), s(S_W), TILE))
    k("s_add_u32 %s, %s, %s" % (s(S_T), s(S_T), s(S_NSLOT)))
    k("s_mov_b32 m0, %s" % s(S_T))
    k("s_lshl_b32 %s, %s, 11" % (s(S_T + 0), s(S_TILE)))
    k("buffer_load_dwordx4 %s, %s, %s offen lds" % (v(V_KOFF), s(S_KV, 4), s(S_T)))
    k("s_add_u32 m0, m0, 1024")
    k("s_mov_b64 exec, %s" % s(S_VM, 2))
    k("buffer_load_dwordx4 %s, %s, %s offen lds" % (v(V_VOFF), s(S_KV, 4), s(S_T)))
    k("s_add_u32 m0, m0, 512")
    k("s_nop 0")
    k("buffer_load_dwordx4 %s, %s, %s offen offset:512 lds" % (v(V_VOFF), s(S_KV, 4), s(S_T)))
    k("s_mov_b64 exec, -1")


KF2, VF02, VF12 = [KF, 88], [VF0, 92], [VF1, 112]


def tile_body2(k, i, cur, nxt):
    p, q = i & 1, (i + 1) & 1

    def e(j):
        k("v_exp_f32 %s, %s" % (v(cur + j), v(cur + j)))

    def c(j):
        k("v_cvt_pk_bf16_f32 %s, %s, %s" % (v(P + j), v(cur + 2 * j), v(cur + 2 * j + 1)))

    def rd(dst, tile, part):
        base = V_CUR if tile < 8 else V_NXT
        k("ds_read_b128 %s, %s offset:%d" % (v(dst, 4), v(base), (tile % 8) * TILE + part * 1024))

    k("s_waitcnt lgkmcnt(0)")
    mfma(k, nxt, KF2[p], QF, CI)
    rd(VF12[q], i, 2)
    e(0); e(1)
    rd(VF02[q], i + 1, 1)
    e(2); e(3)
    mfma(k, OA, VF12[p], P + 4, OA)
    rd(KF2[q], i + 2, 0)
    c(0); e(4); e(5); c(1); e(6); e(7); c(2); e(8); c(3); e(9); e(10)
    mfma(k, OA, VF02[p], P, OA)
    e(11); c(4); e(12); e(13); c(5); e(14); e(15); c(6); c(7)


def tile_body(k, i, cur, nxt):
    def e(j):
        if "expsep" in OPT:
            k("v_exp_f32 %s, %s" % (v(96 + j), v(cur + j)))
        else:
            k("v_exp_f32 %s, %s" % (v(cur + j), v(cur + j)))

    def c(j):
        k("v_cvt_pk_bf16_f32 %s, %s, %s" % (v(P + j), v(cur + 2 * j), v(cur + 2 * j + 1)))

    def rd(dst, tile, part):
        if "nolds" in OPT:
            return
        base = V_CUR if tile < 8 else V_NXT
        k("ds_read_b128 %s, %s offset:%d" % (v(dst, 4), v(base), (tile % 8) * TILE + part * 1024))

    def w():
        if "nowait" not in OPT:
            k("s_waitcnt lgkmcnt(2)")

    w()
    if "noqk" not in OPT:
        mfma(k, nxt, KF, QF, CI)
    rd(KF, i + 2, 0)
    e(0); e(1); e(2); e(3)
    w()
    if "nopv" not in OPT:
        mfma(k, OA, VF1, P + 4, OA)
    rd(VF1, i, 2)
    c(0); e(4); e(5); c(1); e(6); e(7); c(2); e(8); c(3); e(9); e(10)
    w()
    if "nopv" not in OPT:
        mfma(k, OA, VF0, P, OA)
    rd(VF0, i + 1, 1)
    e(11); c(4); e(12); e(13); c(5); e(14); e(15); c(6); c(7)


def gen_attn(k, name, standalone=True, second_role=None):
    if standalone:
        k.kernel_begin(name)
        k("s_cmp_ge_u32 s2, %d" % (512 if second_role else 256))
        k("s_cbranch_scc1 L_attn_exit")
        prof_start(k)
        if second_role:
            k("s_cmp_ge_u32 s2, 256")
            k("s_cbranch_scc1 L_attn_role2")
        if "noattn" in OPT:
            k("s_endpgm")
        k("s_load_dwordx2 %s, s[0:1], %d" % (s(S_WS, 2), KA_WS))
        k("s_load_dwordx2 %s, s[0:1], %d" % (s(S_DBG, 2), KA_DBG))
    k("s_and_b32 %s, s2, 7" % s(S_HEAD))
    k("s_lshl_b32 %s, %s, 2" % (s(S_HEAD), s(S_HEAD)))
    k("s_lshr_b32 %s, s2, 3" % s(S_T))
    k("s_and_b32 %s, %s, 3" % (s(S_T), s(S_T)))
    k("s_add_u32 %s, %s, %s" % (s(S_HEAD), s(S_HEAD), s(S_T)))
    k("s_lshr_b32 %s, s2, 5" % s(S_QB))
    k("v_lshrrev_b32 %s, 6, v0" % v(V_T0))
    k("v_and_b32 v0, 63, v0")
    k("v_readfirstlane_b32 %s, %s" % (s(S_W), v(V_T0)))
    k("v_lshlrev_b32 %s, 4, v0" % v(V_LANE16))
    k("v_mov_b32 %s, %s" % (v(V_KOFF), v(V_LANE16)))
    k("v_lshrrev_b32 %s, 5, v0" % v(V_T0))
    k("v_lshlrev_b32 %s, 8, %s" % (v(V_T0), v(V_T0)))
    k("v_and_b32 %s, 15, v0" % v(V_T1))
    k("v_lshlrev_b32 %s, 4, %s" % (v(V_T1), v(V_T1)))
    k("v_add3_u32 %s, %s, %s, 0" % (v(V_VOFF), v(V_T0), v(V_T1)))
    k("v_add_u32 %s, 1024, %s" % (v(V_VOFF), v(V_VOFF)))
    k("s_mov_b32 %s, 0x0000ffff" % s(S_VM))
    k("s_mov_b32 %s, 0x0000ffff" % s(S_VM + 1))
    k("s_waitcnt lgkmcnt(0)")
    stamp(k, 2, S_WS, S_W)
    k("s_lshl_b32 %s, %s, 17" % (s(S_T), s(S_HEAD)))
    k("s_add_u32 %s, %s, %s" % (s(S_KV), s(S_WS), s(S_T)))
    k("s_addc_u32 %s, %s, 0" % (s(S_KV + 1), s(S_WS + 1)))
    k("s_add_u32 %s, %s, 0x%x" % (s(S_KV), s(S_KV), WS_KV))
    k("s_addc_u32 %s, %s, 0" % (s(S_KV + 1), s(S_KV + 1)))
    k("s_and_b32 %s, %s, 0xffff" % (s(S_KV + 1), s(S_KV + 1)))
    k("s_mov_b32 %s, 0x20000" % s(S_KV + 2))
    k("s_mov_b32 %s, 0x20000" % s(S_KV + 3))
    k("s_mov_b32 %s, %s" % (s(S_TILE), s(S_W)))
    k("s_mov_b32 %s, 0" % s(S_NSLOT))
    dma_chunk(k)
    k.srd(S_HOS, S_WS, WS_END)
    k("s_lshl_b32 %s, %s, 6" % (s(S_T), s(S_HEAD)))
    k("s_lshl_b32 %s, %s, 3" % (s(S_QS), s(S_QB)))
    k("s_add_u32 %s, %s, %s" % (s(S_QS), s(S_QS), s(S_W)))
    k("s_add_u32 %s, %s, %s" % (s(S_T), s(S_T), s(S_QS)))
    k("s_lshl_b32 %s, %s, 10" % (s(S_T), s(S_T)))
    k("buffer_load_dwordx4 %s, %s, %s, %s offen" % (v(QF, 4), v(V_LANE16), s(S_HOS, 4), s(S_T)))
    k("s_mul_i32 %s, %s, 144" % (s(S_QS), s(S_QS)))
    k("s_add_u32 %s, %s, %s" % (s(S_QS), s(S_QS), s(S_HEAD)))
    k("s_add_u32 %s, %s, 112" % (s(S_QS), s(S_QS)))
    k("s_lshl_b32 %s, %s, 10" % (s(S_QS), s(S_QS)))
    k("s_add_u32 %s, %s, 0x%x" % (s(S_QS), s(S_QS), WS_HO))
    k("v_mov_b32 %s, 0x%x" % (v(P), ONES))
    k("v_mov_b32 %s, 0x%x" % (v(P + 1), ONES))
    k("v_mov_b32 %s, 0x%x" % (v(P + 2), ONES))
    k("v_mov_b32 %s, 0x%x" % (v(P + 3), ONES))
    k("s_mul_i32 %s, %s, %d" % (s(S_T), s(S_W), TILE))
    k("v_add_u32 %s, %s, %s" % (v(V_T0), s(S_T), v(V_LANE16)))
    if "zeropad" in OPT:
        k("v_and_b32 %s, 27, v0" % v(V_T1))
        k("v_cmp_eq_u32 vcc, 16, %s" % v(V_T1))
        k("s_nop 1")
        for j in range(4):
            k("v_cndmask_b32 %s, 0, %s, vcc" % (v(P + j), v(P + j)))
    k("s_mov_b32 exec_lo, 0xffff0000")
    k("s_mov_b32 exec_hi, 0xffff0000")
    for slot in range(3):
        for part in (1, 2):
            k("ds_write_b128 %s, %s offset:%d" % (v(V_T0), v(P, 4), slot * SLOT + part * 1024))
    k("s_mov_b64 exec, -1")
    if "late1" not in OPT:
        k("s_add_u32 %s, %s, 8" % (s(S_TILE), s(S_TILE)))
        k("s_mov_b32 %s, %d" % (s(S_NSLOT), SLOT))
        dma_chunk(k)
        k("s_waitcnt vmcnt(3) lgkmcnt(0)")
    else:
        k("s_waitcnt vmcnt(0) lgkmcnt(0)")
    k("s_barrier")
    prof_mark(k, 2)
    bufs = (SA, SB, CI, OA)
    frs = (KF, VF0, VF1, P)
    for t in range(4):
        k("ds_read_b128 %s, %s offset:%d" % (v(frs[t], 4), v(V_LANE16), t * TILE))
    for t in range(4):
        k("s_waitcnt lgkmcnt(%d)" % (3 - t))
        mfma(k, bufs[t], frs[t], QF, "0")
    k("ds_read_b128 %s, %s offset:%d" % (v(KF, 4), v(V_LANE16), 0))
    k("s_nop 7")
    m = V_T0
    k("v_max3_f32 %s, %s, %s, %s" % (v(m), v(SA), v(SA + 1), v(SA + 2)))
    regs = [SA + j for j in range(3, 16)] + [SB + j for j in range(16)]
    for j in range(0, len(regs) - 1, 2):
        k("v_max3_f32 %s, %s, %s, %s" % (v(m), v(m), v(regs[j]), v(regs[j + 1])))
    k("v_max_f32 %s, %s, %s" % (v(m), v(m), v(regs[-1])))
    regs = [CI + j for j in range(16)] + [OA + j for j in range(16)]
    for j in range(0, 32, 2):
        k("v_max3_f32 %s, %s, %s, %s" % (v(m), v(m), v(regs[j]), v(regs[j + 1])))
    k("v_mov_b32 %s, %s" % (v(V_T1), v(m)))
    k("s_nop 1")
    k("v_permlane32_swap_b32 %s, %s" % (v(V_T1), v(m)))
    k("s_nop 1")
    k("v_max_f32 %s, %s, %s" % (v(m), v(m), v(V_T1)))
    k("v_add_f32 %s, 0x%x, %s" % (v(m), f2u(BIAS), v(m)))
    for j in range(16):
        k("v_sub_f32 %s, 0, %s" % (v(CI + j), v(m)))
    for j in range(16):
        k("v_mov_b32 %s, 0" % v(OA + j))
    for j in range(4):
        k("v_mov_b32 %s, 0" % v(P + 4 + j))
        k("v_mov_b32 %s, 0" % v(VF1 + j))
    k("s_waitcnt lgkmcnt(0)")
    mfma(k, SA, KF, QF, CI)
    k("ds_read_b128 %s, %s offset:%d" % (v(KF, 4), v(V_LANE16), TILE))
    k("ds_read_b128 %s, %s offset:%d" % (v(VF0, 4), v(V_LANE16), 1024))
    k("v_mov_b32 %s, %s" % (v(V_CUR), v(V_LANE16)))
    k("v_add_u32 %s, %d, %s" % (v(V_NXT), SLOT, v(V_LANE16)))
    if "late1" in OPT:
        k("s_add_u32 %s, %s, 8" % (s(S_TILE), s(S_TILE)))
        k("s_mov_b32 %s, %d" % (s(S_NSLOT), SLOT))
        dma_chunk(k)
    k("s_mov_b32 %s, 0" % s(S_C))
    k("s_mov_b32 %s, %d" % (s(S_NSLOT), 2 * SLOT))
    k("s_waitcnt lgkmcnt(0)")
    k("s_nop 7")
    prof_mark(k, 3)
    k(".p2align 6")
    k.label("L_attn_chunk")
    for i in range(8):
        if i == 4:
            k("s_waitcnt vmcnt(0)")
            if "nobar" not in OPT:
                k("s_barrier")
            k("s_cmp_ge_u32 %s, 6" % s(S_C))
            k("s_cbranch_scc1 L_attn_nodma")
            k("s_add_u32 %s, %s, 8" % (s(S_TILE), s(S_TILE)))
            if "nodma" not in OPT:
                dma_chunk(k)
            k.label("L_attn_nodma")
        if "prio2" in OPT and i % 2 == 0:
            k("s_setprio %d" % (3 - ((i - 4) % 8) // 2))
        if "prio3" in OPT and ((i - 4) % 8) in (0, 3, 6):
            k("s_setprio %d" % {0: 2, 3: 1, 6: 0}[(i - 4) % 8])
        if "prio1" in OPT:
            k("s_setprio %d" % (3 - ((i - 4) % 4)))
        if "prio1" in OPT and "bar4" in OPT and i == 0:
            k("s_barrier")
        (tile_body2 if "onewait" in OPT else tile_body)(k, i, SA if i % 2 == 0 else SB, SB if i % 2 == 0 else SA)
    k("v_mov_b32 %s, %s" % (v(V_CUR), v(V_NXT)))
    k("v_add_u32 %s, %s, %s" % (v(V_NXT), s(S_NSLOT), v(V_LANE16)))
    k("s_add_u32 %s, %s, %d" % (s(S_NSLOT), s(S_NSLOT), SLOT))
    k("s_cmp_ge_u32 %s, %d" % (s(S_NSLOT), 3 * SLOT))
    k("s_cselect_b32 %s, 0, %s" % (s(S_NSLOT), s(S_NSLOT)))
    k("s_add_u32 %s, %s, 1" % (s(S_C), s(S_C)))
    k("s_cmp_lt_u32 %s, 8" % s(S_C))
    k("s_cbranch_scc1 L_attn_chunk")
    k("s_waitcnt lgkmcnt(0)")
    prof_mark(k, 4)
    mfma(k, OA, VF1, P + 4, OA)
    k("s_nop 15")
    t = V_T0
    k("v_mul_f32 %s, 0, %s" % (v(t), v(OA)))
    for j in range(1, 8):
        k("v_fma_f32 %s, %s, 0, %s" % (v(t), v(OA + j), v(t)))
    k("s_mov_b32 %s, 0x%x" % (s(S_T), f2u(2.0 ** 100)))
    k("v_cmp_ngt_f32 vcc, %s, %s" % (s(S_T), v(OA + 8)))
    k("v_cmp_u_f32 %s, %s, %s" % (s(S_C, 2), v(t), v(t)))
    k("s_nop 1")
    k("s_or_b64 vcc, vcc, %s" % s(S_C, 2))
    k("s_cbranch_vccnz L_attn_slow")
    k.label("L_attn_fin")
    k("v_rcp_f32 %s, %s" % (v(t), v(OA + 8)))
    k("s_nop 0")
    for j in range(8):
        k("v_mul_f32 %s, %s, %s" % (v(OA + j), v(OA + j), v(t)))
    for j in range(4):
        k("v_cvt_pk_bf16_f32 %s, %s, %s" % (v(P + j), v(OA + 2 * j), v(OA + 2 * j + 1)))
    if "tagged" in OPT:
        k("buffer_store_dwordx4 %s, %s, %s, %s offen sc1" % (v(P, 4), v(V_LANE16), s(S_HOS, 4), s(S_QS)))
    elif "signal" in OPT:
        k("buffer_store_dwordx4 %s, %s, %s, %s offen sc1" % (v(P, 4), v(V_LANE16), s(S_HOS, 4), s(S_QS)))
        k("s_lshl_b32 %s, %s, 3" % (s(S_T), s(S_QB)))
        k("s_add_u32 %s, %s, %s" % (s(S_T), s(S_T), s(S_W)))
        k("s_lshl_b32 %s, %s, 5" % (s(S_T), s(S_T)))
        k("s_add_u32 %s, %s, %s" % (s(S_T), s(S_T), s(S_HEAD)))
        k("s_lshl_b32 %s, %s, 2" % (s(S_T), s(S_T)))
        k("s_add_u32 %s, %s, 0x%x" % (s(S_T), s(S_T), WS_FLAG + FLAG_O))
        k("v_mov_b32 %s, %s" % (v(V_T0), s(S_T)))
        k("v_mov_b32 %s, 1" % v(V_T1))
        k("s_waitcnt vmcnt(0)")
        k("s_mov_b64 exec, 1")
        k("global_store_dword %s, %s, %s sc1" % (v(V_T0), v(V_T1), s(S_WS, 2)))
        k("s_mov_b64 exec, -1")
        k.label("L_attn_nosig")
    else:
        k("buffer_store_dwordx4 %s, %s, %s, %s offen" % (v(P, 4), v(V_LANE16), s(S_HOS, 4), s(S_QS)))
    k("s_waitcnt vmcnt(0)")
    stamp(k, 3, S_WS, S_W)
    prof_mark(k, 5)
    prof_rt(k, 6)
    prof_store(k, S_WS, S_W, 16)
    k("s_endpgm")
    k.label("L_attn_slow")
    k("v_mov_b32 %s, 0xff800000" % v(m))
    k("s_mov_b32 %s, 0" % s(S_C))
    k.label("L_attn_slow_max")
    k("buffer_load_dwordx4 %s, %s, %s, %s offen" % (v(KF, 4), v(V_KOFF), s(S_KV, 4), s(S_C)))
    k("s_waitcnt vmcnt(0)")
    mfma(k, SA, KF, QF, "0")
    k("s_nop 15")
    for j in range(0, 16, 2):
        k("v_max3_f32 %s, %s, %s, %s" % (v(m), v(m), v(SA + j), v(SA + j + 1)))
    k("s_add_u32 %s, %s, 2048" % (s(S_C), s(S_C)))
    k("s_cmp_lt_u32 %s, 0x20000" % s(S_C))
    k("s_cbranch_scc1 L_attn_slow_max")
    k("v_mov_b32 %s, %s" % (v(V_T1), v(m)))
    k("s_nop 1")
    k("v_permlane32_swap_b32 %s, %s" % (v(V_T1), v(m)))
    k("s_nop 1")
    k("v_max_f32 %s, %s, %s" % (v(m), v(m), v(V_T1)))
    for j in range(16):
        k("v_sub_f32 %s, 0, %s" % (v(CI + j), v(m)))
        k("v_mov_b32 %s, 0" % v(OA + j))
    for j in range(4):
        k("v_mov_b32 %s, 0x%x" % (v(VF0 + j), ONES))
        k("v_mov_b32 %s, 0x%x" % (v(VF1 + j), ONES))
    k("s_mov_b32 %s, 0" % s(S_C))
    k.label("L_attn_slow_pv")
    k("buffer_load_dwordx4 %s, %s, %s, %s offen" % (v(KF, 4), v(V_KOFF), s(S_KV, 4), s(S_C)))
    k("s_mov_b64 exec, %s" % s(S_VM, 2))
    k("buffer_load_dwordx4 %s, %s, %s, %s offen" % (v(VF0, 4), v(V_VOFF), s(S_KV, 4), s(S_C)))
    k("buffer_load_dwordx4 %s, %s, %s, %s offen offset:512" % (v(VF1, 4), v(V_VOFF), s(S_KV, 4), s(S_C)))
    k("s_mov_b64 exec, -1")
    k("s_waitcnt vmcnt(0)")
    mfma(k, SA, KF, QF, CI)
    k("s_nop 15")
    for j in range(16):
        k("v_exp_f32 %s, %s" % (v(SA + j), v(SA + j)))
    k("s_nop 0")
    for j in range(8):
        k("v_cvt_pk_bf16_f32 %s, %s, %s" % (v(P + j), v(SA + 2 * j), v(SA + 2 * j + 1)))
    k("s_nop 1")
    mfma(k, OA, VF0, P, OA)
    mfma(k, OA, VF1, P + 4, OA)
    k("s_add_u32 %s, %s, 2048" % (s(S_C), s(S_C)))
    k("s_cmp_lt_u32 %s, 0x20000" % s(S_C))
    k("s_cbranch_scc1 L_attn_slow_pv")
    k("s_nop 15")
    k("s_branch L_attn_fin")
    if second_role:
        k.label("L_attn_role2")
        second_role(k)
    if standalone:
        k.label("L_attn_exit")
        nv = 128 if (common.PROF or second_role) else 112
        k.kernel_end(name, nv, nv)


if __name__ == "__main__":
    import sys
    common.PROF = "prof" in sys.argv
    OPT.update(sys.argv[1:])
    k = Asm()
    k.lines.append(HEADER.rstrip())
    k.lines.append("; @launch kernel=attn_kernel grid=(256,1,1) block=(512,1,1) lds=%d" % (3 * SLOT))
    k('.amdgcn_target "amdgcn-amd-amdhsa--gfx950"')
    gen_attn(k, "attn_kernel")
    open("attn_%s.s" % "_".join(["v"] + [x for x in sys.argv[1:] if x != "prof"]), "w").write(k.text())
```

```python
import common
from common import *
import g2
from g2 import S_W, S_RB, S_CB, S_RL, S_T, S_T2, S_WS, S_HD

OPT = set()
WS_XN = 20 << 20
FLAG_H = 8192
ROWB = 448
SLOT = 32 * ROWB
R = 5
L_BI = R * SLOT
LDS_NEED = L_BI + 1024

S_W1, S_B1 = 62, 64
S_W1D = 68
S_LD, S_WO, S_WEND, S_SLOT, S_KC, S_C, S_XB, S_XO, S_ROT, S_LDO = 72, 73, 74, 75, 76, 77, 78, 79, 59, 66

VWB, VW2 = 8, 9
XR = 16
WF = [32, 48]
ACC = 64
VSRC = 8


def next_slot(k):
    k("s_add_u32 %s, %s, %d" % (s(S_SLOT), s(S_SLOT), SLOT))
    k("s_cmp_ge_u32 %s, %d" % (s(S_SLOT), R * SLOT))
    k("s_cselect_b32 %s, 0, %s" % (s(S_SLOT), s(S_SLOT)))


def loader(k, pre):
    k("s_sub_u32 %s, %s, 4" % (s(S_LD), s(S_W)))
    k("s_and_b32 %s, %s, 1" % (s(S_T), s(S_LD)))
    k("s_lshl_b32 %s, %s, 2" % (s(S_T), s(S_T)))
    k("s_mov_b32 %s, 0x%x" % (s(S_T2), (2 ** 32 + ROWB - 1) // ROWB))
    for j in range(4):
        k("s_add_u32 %s, %s, %d" % (s(S_C), s(S_T), j))
        k("s_min_u32 %s, %s, 6" % (s(S_C), s(S_C)))
        k("s_lshl_b32 %s, %s, 10" % (s(S_C), s(S_C)))
        k("v_lshl_add_u32 v12, v0, 4, %s" % s(S_C))
        k("v_mul_hi_u32 v13, v12, %s" % s(S_T2))
        k("v_mul_u32_u24 v14, %d, v13" % ROWB)
        k("v_sub_u32 v14, v12, v14")
        k("v_mul_u32_u24 v13, 3584, v13")
        k("v_add_u32 %s, v13, v14" % v(VSRC + j))
    k("s_lshr_b32 %s, %s, 1" % (s(S_C), s(S_LD)))
    k("s_mul_i32 %s, %s, %d" % (s(S_LDO), s(S_C), 16 * ROWB))
    k("s_lshl_b32 %s, %s, 10" % (s(S_T), s(S_T)))
    k("s_add_u32 %s, %s, %s" % (s(S_LDO), s(S_LDO), s(S_T)))
    k("s_mul_i32 %s, %s, %d" % (s(S_WO), s(S_C), 16 * 3584))
    k("s_mul_i32 %s, %s, %d" % (s(S_T), s(S_CB), ROWB))
    k("s_add_u32 %s, %s, %s" % (s(S_WO), s(S_WO), s(S_T)))
    k("s_add_u32 %s, %s, %d" % (s(S_WEND), s(S_WO), 512 * 3584))
    k("s_mul_i32 %s, %s, %d" % (s(S_T), s(S_ROT), 32 * 3584))
    k("s_add_u32 %s, %s, %s" % (s(S_WO), s(S_WO), s(S_T)))
    k("s_and_b32 %s, %s, 1" % (s(S_KC), s(S_LD)))

    def issue(c):
        k("s_add_u32 m0, %s, %d" % (s(S_LDO), (c % R) * SLOT))
        k("s_nop 0")
        for j in range(4):
            k("buffer_load_dwordx4 %s, %s, %s offen lds" % (v(VSRC + j), s(S_W1D, 4), s(S_WO)))
            if j < 2:
                k("s_add_u32 m0, m0, 1024")
                k("s_nop 0")
            elif j == 2:
                k("s_add_u32 m0, m0, %s" % s(S_XB))
                k("s_nop 0")
        k("s_add_u32 %s, %s, %d" % (s(S_WO), s(S_WO), 32 * 3584))
        k("s_cmp_ge_u32 %s, %s" % (s(S_WO), s(S_WEND)))
        k("s_cselect_b32 %s, %d, 0" % (s(S_T), 512 * 3584))
        k("s_sub_u32 %s, %s, %s" % (s(S_WO), s(S_WO), s(S_T)))

    k("s_cmp_eq_u32 %s, 0" % s(S_KC))
    k("s_cselect_b32 %s, 1024, 0" % s(S_XB))
    k("v_lshrrev_b32 v12, 3, v1")
    k("v_bfe_u32 v13, v1, 2, 1")
    k("v_and_b32 v14, 3, v1")
    k("v_lshrrev_b32 v15, 1, v12")
    k("v_and_b32 v12, 1, v12")
    k("v_lshl_add_u32 v14, v12, 2, v14")
    k("v_lshl_add_u32 v14, v13, 3, v14")
    k("v_lshl_add_u32 v14, v15, 4, v14")
    k("v_lshl_add_u32 v14, v2, 5, v14")
    k("s_mul_i32 %s, %s, 224" % (s(S_T), s(S_CB)))
    k("s_lshl_b32 %s, %s, 6" % (s(S_T2), s(S_LD)))
    k("s_add_u32 %s, %s, %s" % (s(S_T), s(S_T), s(S_T2)))
    k("v_add_u32 v14, %s, v14" % s(S_T))
    k("v_lshlrev_b32 v14, 1, v14")
    k("v_min_u32 v14, 3582, v14")
    if "early" in OPT:
        if "lp" in OPT:
            prof_mark(k, 2)
        issue(0)
        issue(1)
        if "lp" in OPT:
            prof_mark(k, 3)
        k("global_load_ushort v15, v14, %s" % s(S_B1, 2))
        k("s_waitcnt vmcnt(0)")
        if "lp" in OPT:
            prof_mark(k, 4)
    else:
        k("global_load_ushort v15, v14, %s" % s(S_B1, 2))
        k("s_waitcnt vmcnt(0)")
    k("v_lshlrev_b32 v15, 16, v15")
    k("s_lshl_b32 %s, %s, 8" % (s(S_T), s(S_LD)))
    k("s_add_u32 %s, %s, %d" % (s(S_T), s(S_T), L_BI))
    k("v_lshl_add_u32 v12, v0, 2, %s" % s(S_T))
    k("ds_write_b32 v12, v15")
    if "early" in OPT:
        k("s_waitcnt lgkmcnt(0)")
        k("s_barrier")
        issue(2)
        issue(3)
    else:
        for c in range(4):
            issue(c)
        k("s_waitcnt vmcnt(12) lgkmcnt(0)")
    if "early" not in OPT:
        k("s_barrier")
    pf = "w2pf" in OPT
    if pf:
        pass
    npf = 0
    for c in range(1, 17):
        younger = 4 * sum(1 for j in (c + 1, c + 2) if j < 16)
        extra = npf if c + 1 >= 16 else 0
        k("s_waitcnt vmcnt(%d)" % min(63, younger + (npf if pf and c >= 14 else 0)))
        k("s_barrier")
        if c + 3 < 16:
            issue(c + 3)
        if pf and c == 13:
            k.srd(S_W1D, g2.S_W2, 1792 * 1024)
            k("v_lshrrev_b32 v12, 3, v0")
            k("v_and_b32 v13, 7, v0")
            k("v_lshlrev_b32 v13, 4, v13")
            k("v_lshl_add_u32 v12, v12, 10, v13")
            k("s_mul_i32 %s, %s, %d" % (s(S_T), s(S_RL), 448 * 1024))
            k("s_mul_i32 %s, %s, %d" % (s(S_T2), s(S_LD), 112 * 1024))
            k("s_add_u32 %s, %s, %s" % (s(S_T), s(S_T), s(S_T2)))
            k("s_lshl_b32 %s, %s, 7" % (s(S_T2), s(S_CB)))
            k("s_add_u32 %s, %s, %s" % (s(S_WO), s(S_T), s(S_T2)))
        if pf and c >= 13:
            n = 4 if c < 16 else 2
            for j in range(n):
                k("buffer_load_dwordx4 v[16:19], v12, %s, %s offen" % (s(S_W1D, 4), s(S_WO)))
                k("s_add_u32 %s, %s, 8192" % (s(S_WO), s(S_WO)))
            npf += n
    if "w8" in g2.OPT:
        k("s_branch %s_post" % pre)
    else:
        if "lp" in OPT:
            prof_mark(k, 5)
            prof_rt(k, 6)
            prof_store(k, S_WS, S_W, 24)
        k("s_endpgm")


def compute(k, pre):
    k("v_bfe_u32 v12, v0, 2, 2")
    k("v_and_b32 v13, 3, v0")
    k("v_bfe_u32 v14, v0, 4, 1")
    k("v_lshl_add_u32 v13, v14, 2, v13")
    k("v_and_b32 v14, 1, v13")
    k("v_lshrrev_b32 v15, 1, v13")
    k("v_lshrrev_b32 v11, 1, v15")
    k("v_and_b32 v15, 1, v15")
    k("v_lshl_add_u32 v15, v14, 1, v15")
    k("v_lshl_add_u32 v13, v11, 2, v15")
    k("v_lshl_add_u32 v14, v2, 3, v12")
    k("v_mul_u32_u24 v14, %d, v14" % ROWB)
    k("v_lshl_add_u32 v14, v13, 3, v14")
    k("s_lshr_b32 %s, %s, 1" % (s(S_T), s(S_W)))
    k("s_lshl_b32 %s, %s, 8" % (s(S_T), s(S_T)))
    k("v_add_u32 %s, %s, v14" % (v(VWB), s(S_T)))
    k("v_lshlrev_b32 v3, 4, v0")
    k("s_lshl_b32 %s, %s, 1" % (s(S_T), s(S_RB)))
    k("s_and_b32 %s, %s, 1" % (s(S_T2), s(S_W)))
    k("s_add_u32 %s, %s, %s" % (s(S_T), s(S_T), s(S_T2)))
    k("s_lshl_b32 %s, %s, 15" % (s(S_XB), s(S_T)))
    k("s_add_u32 %s, %s, 0x%x" % (s(S_XB), s(S_XB), WS_XN))
    k("s_lshl_b32 %s, %s, 11" % (s(S_XO), s(S_ROT)))

    def xload(slot):
        k("s_add_u32 %s, %s, %s" % (s(S_T), s(S_XB), s(S_XO)))
        k("buffer_load_dwordx4 %s, v3, %s, %s offen" % (v(XR + 4 * slot, 4), s(S_HD, 4), s(S_T)))
        k("s_add_u32 %s, %s, 1024" % (s(S_XO), s(S_XO)))
        k("s_and_b32 %s, %s, 0x7fff" % (s(S_XO), s(S_XO)))

    for sl in range(3):
        xload(sl)
    k("s_mov_b32 %s, 0" % s(S_SLOT))
    k("s_barrier")
    if "p" in OPT:
        prof_mark(k, 3)
    k("s_lshr_b32 %s, %s, 1" % (s(S_T), s(S_W)))
    k("s_lshl_b32 %s, %s, 9" % (s(S_T), s(S_T)))
    k("s_add_u32 %s, %s, %d" % (s(S_T), s(S_T), L_BI))
    k("v_lshl_add_u32 v12, v2, 4, %s" % s(S_T))
    for ft in range(4):
        for g in range(4):
            k("ds_read_b128 %s, v12 offset:%d" % (v(ACC + 16 * ft + 4 * g, 4), ft * 128 + g * 32))
    F = 4

    def slot_ops(par):
        k("v_add_u32 %s, %s, %s" % (v(VW2 + par), s(S_SLOT), v(VWB)))

    def rd_w(par, st, buf, ft):
        for u in range(2):
            k("ds_read_b64_tr_b16 %s, %s offset:%d" % (v(WF[buf] + 4 * ft + 2 * u, 2), v(VW2 + par), st * 16 * ROWB + u * 4 * ROWB + ft * 64))

    slot_ops(0)
    for ft in range(F):
        rd_w(0, 0, 0, ft)
    k("s_waitcnt lgkmcnt(8)")
    k("s_mov_b32 %s, 0" % s(S_C))
    k.label(pre + "_loop")
    step = 0
    for par in range(2):
        for st in range(2):
            b, nb = st, 1 - st
            npar = par if st == 0 else 1 - par
            xs = step & 3
            k("s_waitcnt vmcnt(2)")
            for ft in range(F):
                newer = 2 * (F - 1 - ft) + 2 * ft
                k("s_waitcnt lgkmcnt(%d)" % newer)
                d = v(ACC + 16 * ft, 16)
                k("v_mfma_f32_32x32x16_bf16 %s, %s, %s, %s" % (d, v(WF[b] + 4 * ft, 4), v(XR + 4 * xs, 4), d))
                if ft == 0 and st == 1:
                    k("s_barrier")
                rd_w(npar, 1 - st, nb, ft)
                if ft == 0:
                    xload((xs + 3) & 3)
                if st == 0 and ft == 1:
                    next_slot(k)
                if st == 0 and ft == F - 1:
                    slot_ops(1 - par)
            step += 1
    k("s_add_u32 %s, %s, 1" % (s(S_C), s(S_C)))
    k("s_cmp_lt_u32 %s, 8" % s(S_C))
    k("s_cbranch_scc1 %s_loop" % pre)
    k("s_waitcnt vmcnt(0) lgkmcnt(0)")
    if "p" in OPT:
        prof_mark(k, 4)
    k("s_lshl_b32 %s, %s, 1" % (s(S_T2), s(S_RB)))
    k("s_and_b32 %s, %s, 1" % (s(S_T), s(S_W)))
    k("s_add_u32 %s, %s, %s" % (s(S_T2), s(S_T2), s(S_T)))
    k("s_mul_i32 %s, %s, %d" % (s(S_T), s(S_T2), WS_HO_ROW))
    k("s_mul_i32 %s, %s, %d" % (s(S_T2), s(S_CB), 14 * 1024))
    k("s_add_u32 %s, %s, %s" % (s(S_T), s(S_T), s(S_T2)))
    k("s_lshr_b32 %s, %s, 1" % (s(S_T2), s(S_W)))
    k("s_lshl_b32 %s, %s, 13" % (s(S_C), s(S_T2)))
    k("s_add_u32 %s, %s, %s" % (s(S_T), s(S_T), s(S_C)))
    k("s_add_u32 %s, %s, 0x%x" % (s(S_T), s(S_T), WS_HO))
    k("v_add_u32 v12, %s, v3" % s(S_T))
    B = WF[0]
    for ft in range(4):
        if ft == 3:
            k("s_cmp_lg_u32 %s, 0" % s(S_T2))
            k("s_cbranch_scc1 %s_nost" % pre)
        A = ACC + 16 * ft
        for r in range(16):
            k("v_max_f32 %s, 0, %s" % (v(B + r), v(A + r)))
        for r in range(16):
            k("v_mul_f32 %s, %s, %s" % (v(A + r), v(A + r), v(B + r)))
        for r in range(8):
            k("v_cvt_pk_bf16_f32 %s, %s, %s" % (v(A + r), v(A + 2 * r), v(A + 2 * r + 1)))
        k("buffer_store_dwordx4 %s, v12, %s, 0 offen offset:%d sc1" % (v(A, 4), s(S_HD, 4), 2048 * (ft & 1)))
        k("buffer_store_dwordx4 %s, v12, %s, 0 offen offset:%d sc1" % (v(A + 4, 4), s(S_HD, 4), 2048 * (ft & 1) + 1024))
        if ft == 1:
            k("v_add_u32 v12, 4096, v12")
    k.label(pre + "_nost")
    k("s_waitcnt vmcnt(0)")
    if "p" in OPT:
        prof_mark(k, 5)
    if "hpf" in OPT:
        k("v_add_u32 v12, %s, v3" % s(S_T))
        for j in range(8):
            if j == 4:
                k("v_add_u32 v12, 4096, v12")
            if j == 6:
                k("s_cmp_lg_u32 %s, 0" % s(S_T2))
                k("s_cbranch_scc1 %s_nre" % pre)
            k("buffer_load_dwordx4 %s, v12, %s, 0 offen offset:%d sc1" % (v(XR + 4 * (j & 3), 4), s(S_HD, 4), 1024 * (j & 3)))
        k.label(pre + "_nre")
    k.label(pre + "_post")
    k("s_barrier")
    k("s_lshl_b32 %s, %s, 7" % (s(S_C), s(S_RB)))
    k("s_add_u32 %s, %s, 0x%x" % (s(S_C), s(S_C), WS_FLAG + FLAG_H))
    k("s_cmp_eq_u32 %s, 0" % s(S_W))
    k("s_cbranch_scc0 %s_nf" % pre)
    k("s_lshl_b32 %s, %s, 2" % (s(S_T), s(S_CB)))
    k("s_add_u32 %s, %s, %s" % (s(S_T), s(S_T), s(S_C)))
    k("v_mov_b32 v12, %s" % s(S_T))
    k("v_mov_b32 v13, 1")
    k("s_mov_b64 exec, 1")
    k("global_store_dword v12, v13, %s sc1" % s(S_WS, 2))
    k("s_mov_b64 exec, -1")
    k.label(pre + "_nf")
    g2.wait_flags(k, pre + "_hw", S_C, 8, far=False)


def phase(k, pre):
    k("s_lshl_b32 %s, %s, 2" % (s(S_ROT), s(S_RL)))
    k("s_lshl_b32 %s, %s, 1" % (s(S_T), s(S_CB)))
    k("s_add_u32 %s, %s, %s" % (s(S_ROT), s(S_ROT), s(S_T)))
    k("s_and_b32 %s, %s, 15" % (s(S_ROT), s(S_ROT)))
    k("s_mov_b32 %s, %s" % (s(S_W1D), s(S_W1)))
    k("s_and_b32 %s, %s, 0xffff" % (s(S_W1D + 1), s(S_W1 + 1)))
    k("s_mov_b32 %s, 0x%x" % (s(S_W1D + 2), 512 * 3584))
    k("s_mov_b32 %s, 0x20000" % s(S_W1D + 3))
    k("s_cmp_ge_u32 %s, 4" % s(S_W))
    k("s_cbranch_scc0 %s_cmp" % pre)
    loader(k, pre)
    k.label(pre + "_cmp")
    compute(k, pre)
```

```python
import common
from common import *

OPT = set()
S_X, S_W2, S_WOP, S_B2, S_OUT, S_WS = 4, 6, 8, 10, 12, 14
S_HD, S_WD, S_XD, S_OD, S_BD = 16, 20, 28, 32, 52
S_W, S_RB, S_CB, S_T, S_T2, S_LB = 36, 37, 38, 39, 40, 41
S_XO0, S_XO1, S_WO, S_WRAP, S_LEFT, S_N, S_TRIP, S_RL = 42, 43, 44, 45, 46, 47, 48, 49
S_BX, S_BW, S_BWRAP = 56, 57, 58
D = 4
WSLOT = 2048
RING = D * WSLOT
VWS, VWR, VL16 = 4, 6, 3
XF, WF, ACC = 16, 48, 64
NA, NB = 28, 8


def setup(k):
    k("v_and_b32 v1, 31, v0")
    k("v_lshrrev_b32 v2, 5, v0")
    k("v_lshlrev_b32 v3, 4, v0")
    k("v_lshrrev_b32 v4, 3, v0")
    k("v_bfe_u32 v5, v0, 2, 1")
    k("v_bfe_u32 v6, v0, 4, 1")
    k("v_xor_b32 v5, v5, v6")
    k("v_and_b32 v6, 3, v0")
    k("v_lshlrev_b32 v6, 4, v6")
    k("v_lshl_add_u32 v5, v5, 6, v6")
    k("v_lshl_add_u32 v4, v4, 10, v5")
    k("v_bfe_u32 v12, v0, 2, 2")
    k("v_and_b32 v13, 3, v0")
    k("v_bfe_u32 v14, v0, 4, 1")
    k("v_lshl_add_u32 v13, v14, 2, v13")
    k("v_and_b32 v14, 1, v13")
    k("v_lshrrev_b32 v15, 1, v13")
    k("v_lshrrev_b32 v8, 1, v15")
    k("v_and_b32 v15, 1, v15")
    k("v_lshl_add_u32 v15, v14, 1, v15")
    k("v_lshl_add_u32 v13, v8, 2, v15")
    k("v_lshl_add_u32 v14, v2, 3, v12")
    k("v_lshlrev_b32 v14, 7, v14")
    k("v_lshl_add_u32 v14, v13, 3, v14")
    k("v_lshrrev_b32 v12, 1, v12")
    k("v_add_u32 v14, %s, v14" % s(S_LB))
    for ft in range(2):
        k("v_xor_b32 v15, %d, v12" % ft)
        k("v_lshl_add_u32 %s, v15, 6, v14" % v(VWR + ft))
    for j in range(64):
        k("v_mov_b32 %s, 0" % v(ACC + j))


def seg_params(k, n, kbase, dx, dw, dwrap):
    k("s_mul_i32 %s, %s, %d" % (s(S_T), s(S_RL), n // 4))
    k("s_mul_i32 %s, %s, %d" % (s(S_T2), s(S_CB), n))
    k("s_lshr_b32 %s, %s, 3" % (s(S_T2), s(S_T2)))
    k("s_add_u32 %s, %s, %s" % (s(S_T), s(S_T), s(S_T2)))
    k("s_cmp_ge_u32 %s, %d" % (s(S_T), n))
    k("s_cselect_b32 %s, %d, 0" % (s(S_T2), n))
    k("s_sub_u32 %s, %s, %s" % (s(S_T), s(S_T), s(S_T2)))
    k("s_sub_u32 %s, %d, %s" % (s(dwrap), n, s(S_T)))
    k("s_mul_i32 %s, %s, %d" % (s(S_T2), s(S_W), n))
    k("s_add_u32 %s, %s, %s" % (s(S_T), s(S_T), s(S_T2)))
    k("s_lshl_b32 %s, %s, 14" % (s(dw), s(S_T)))
    k("s_lshl_b32 %s, %s, 7" % (s(S_T2), s(S_CB)))
    k("s_add_u32 %s, %s, %s" % (s(dw), s(dw), s(S_T2)))
    k("s_add_u32 %s, %s, %d" % (s(S_T), s(S_T), kbase))
    k("s_lshl_b32 %s, %s, 10" % (s(S_T), s(S_T)))
    k("s_lshl_b32 %s, %s, 1" % (s(S_T2), s(S_RB)))
    k("s_mul_i32 %s, %s, %d" % (s(dx), s(S_T2), WS_HO_ROW))
    k("s_add_u32 %s, %s, %s" % (s(dx), s(dx), s(S_T)))
    k("s_add_u32 %s, %s, 0x%x" % (s(dx), s(dx), WS_HO))


XPROF = [False]
XSC = [""]


def issue_groups(slot):
    g = []
    g.append(["buffer_load_dwordx4 %s, v3, %s, %s offen%s" % (v(XF + 8 * slot, 4), s(S_HD, 4), s(S_XO0), XSC[0])])
    g.append(["s_add_u32 %s, %s, %d" % (s(S_XO1), s(S_XO0), WS_HO_ROW),
              "buffer_load_dwordx4 %s, v3, %s, %s offen%s" % (v(XF + 8 * slot + 4, 4), s(S_HD, 4), s(S_XO1), XSC[0])])
    g.append(["s_add_u32 m0, %s, %d" % (s(S_LB), slot * WSLOT),
              "s_add_u32 %s, %s, 8192" % (s(S_T), s(S_WO)),
              "buffer_load_dwordx4 v4, %s, %s offen lds" % (s(S_WD, 4), s(S_WO))])
    g.append(["s_add_u32 m0, m0, 1024", "s_nop 0",
              "buffer_load_dwordx4 v4, %s, %s offen lds" % (s(S_WD, 4), s(S_T))])
    if "nox" in OPT:
        g[0] = ["buffer_load_dwordx4 v4, %s, %s offen lds" % (s(S_WD, 4), s(S_WO))]
        g[1] = ["buffer_load_dwordx4 v4, %s, %s offen lds" % (s(S_WD, 4), s(S_WO))]
    if "now" in OPT:
        g[2] = ["buffer_load_dwordx4 %s, v3, %s, %s offen" % (v(XF + 8 * slot, 4), s(S_HD, 4), s(S_XO0))]
        g[3] = ["buffer_load_dwordx4 %s, v3, %s, %s offen" % (v(XF + 8 * slot + 4, 4), s(S_HD, 4), s(S_XO1))]
    return g


def advance(k, lab, two_segments):
    k("s_add_u32 %s, %s, 1024" % (s(S_XO0), s(S_XO0)))
    k("s_add_u32 %s, %s, 16384" % (s(S_WO), s(S_WO)))
    k("s_sub_u32 %s, %s, 1" % (s(S_WRAP), s(S_WRAP)))
    k("s_cmp_lg_u32 %s, 0" % s(S_WRAP))
    k("s_cbranch_scc1 %s_nw" % lab)
    k("s_lshl_b32 %s, %s, 10" % (s(S_T), s(S_N)))
    k("s_sub_u32 %s, %s, %s" % (s(S_XO0), s(S_XO0), s(S_T)))
    k("s_lshl_b32 %s, %s, 14" % (s(S_T), s(S_N)))
    k("s_sub_u32 %s, %s, %s" % (s(S_WO), s(S_WO), s(S_T)))
    k("s_mov_b32 %s, %s" % (s(S_WRAP), s(S_N)))
    k.label(lab + "_nw")
    if two_segments:
        k("s_sub_u32 %s, %s, 1" % (s(S_LEFT), s(S_LEFT)))
        k("s_cmp_lg_u32 %s, 0" % s(S_LEFT))
        k("s_cbranch_scc1 %s_ns" % lab)
        k("s_mov_b32 %s, %s" % (s(S_XO0), s(S_BX)))
        k("s_mov_b32 %s, %s" % (s(S_WO), s(S_BW)))
        k("s_mov_b32 %s, %s" % (s(S_WRAP), s(S_BWRAP)))
        k("s_mov_b32 %s, %d" % (s(S_N), NB))
        k("s_mov_b32 %s, %s" % (s(S_WD), s(S_WOP)))
        k("s_and_b32 %s, %s, 0xffff" % (s(S_WD + 1), s(S_WOP + 1)))
        k("s_mov_b32 %s, 0x%x" % (s(S_WD + 2), 512 * 1024))
        k.label(lab + "_ns")


def rd_w(k, slot, buf):
    for ft in range(2):
        for u in range(2):
            k("ds_read_b64_tr_b16 %s, %s offset:%d" % (v(WF + 8 * buf + 4 * ft + 2 * u, 2), v(VWR + ft), slot * WSLOT + u * 512))


def step(k, d, lab, issue, vm, two_segments, last=False):
    if not last:
        k("s_waitcnt vmcnt(%d)" % vm)
        rd_w(k, (d + 1) % D, (d + 1) & 1)
        k("s_waitcnt lgkmcnt(4)")
    else:
        k("s_waitcnt lgkmcnt(0)")
    g = issue_groups((d + D - 1) % D) if issue else [[], [], [], []]
    j = 0
    for tt in range(2):
        for ft in range(2):
            dd = v(ACC + 16 * (2 * tt + ft), 16)
            if "nomfma" not in OPT:
                k("v_mfma_f32_32x32x16_bf16 %s, %s, %s, %s" % (dd, v(WF + 8 * (d & 1) + 4 * ft, 4), v(XF + 8 * d + 4 * tt, 4), dd))
            for ins in g[j]:
                k(ins)
            j += 1
    if issue:
        advance(k, lab, two_segments)


def stream(k, pre, nsteps, two_segments, prio=None):
    for d in range(D - 1):
        for grp in issue_groups(d):
            for ins in grp:
                k(ins)
        advance(k, "%s_p%d" % (pre, d), two_segments)
    k("s_waitcnt vmcnt(8)")
    if prio:
        k("s_setprio %d" % prio)
    rd_w(k, 0, 0)
    ntrip = (nsteps - (D - 1)) // D
    k("s_mov_b32 %s, 0" % s(S_TRIP))
    k.label(pre + "_loop")
    for d in range(D):
        step(k, d, "%s_l%d" % (pre, d), True, 4, two_segments)
    k("s_add_u32 %s, %s, 1" % (s(S_TRIP), s(S_TRIP)))
    k("s_cmp_lt_u32 %s, %d" % (s(S_TRIP), ntrip))
    k("s_cbranch_scc1 %s_loop" % pre)
    for n in range(ntrip * D, nsteps):
        step(k, n % D, "%s_t%d" % (pre, n), n + D - 1 < nsteps, 4 if n + 2 < nsteps else 0, two_segments, last=(n == nsteps - 1))


DW = 8
S_WRAPW, S_NX, S_NW = 50, 51, 61


def stream2(k, pre, n, prio=None):
    k("s_mov_b32 %s, %s" % (s(S_WRAPW), s(S_WRAP)))
    k("s_mov_b32 %s, %d" % (s(S_NX), n * 1024))
    k("s_mov_b32 %s, %d" % (s(S_NW), n * 16384))

    def xg(slot):
        return [["buffer_load_dwordx4 %s, v3, %s, %s offen%s" % (v(XF + 8 * slot, 4), s(S_HD, 4), s(S_XO0), XSC[0])],
                ["s_add_u32 %s, %s, %d" % (s(S_XO1), s(S_XO0), WS_HO_ROW),
                 "buffer_load_dwordx4 %s, v3, %s, %s offen%s" % (v(XF + 8 * slot + 4, 4), s(S_HD, 4), s(S_XO1), XSC[0]),
                 "s_add_u32 %s, %s, 1024" % (s(S_XO0), s(S_XO0)),
                 "s_sub_u32 %s, %s, 1" % (s(S_WRAP), s(S_WRAP)),
                 "s_cmp_eq_u32 %s, 0" % s(S_WRAP),
                 "s_cselect_b32 %s, %s, 0" % (s(S_T), s(S_NX)),
                 "s_cselect_b32 %s, %d, %s" % (s(S_WRAP), n, s(S_WRAP)),
                 "s_sub_u32 %s, %s, %s" % (s(S_XO0), s(S_XO0), s(S_T))]]

    def wg(slot):
        return [["s_add_u32 m0, %s, %d" % (s(S_LB), slot * WSLOT),
                 "s_add_u32 %s, %s, 8192" % (s(S_T2), s(S_WO)),
                 "buffer_load_dwordx4 v4, %s, %s offen lds" % (s(S_WD, 4), s(S_WO))],
                ["s_add_u32 m0, m0, 1024",
                 "s_add_u32 %s, %s, 16384" % (s(S_WO), s(S_WO)),
                 "buffer_load_dwordx4 v4, %s, %s offen lds" % (s(S_WD, 4), s(S_T2)),
                 "s_sub_u32 %s, %s, 1" % (s(S_WRAPW), s(S_WRAPW)),
                 "s_cmp_eq_u32 %s, 0" % s(S_WRAPW),
                 "s_cselect_b32 %s, %s, 0" % (s(S_T), s(S_NW)),
                 "s_cselect_b32 %s, %d, %s" % (s(S_WRAPW), n, s(S_WRAPW)),
                 "s_sub_u32 %s, %s, %s" % (s(S_WO), s(S_WO), s(S_T))]]

    def emit(groups):
        for g in groups:
            for ins in g:
                k(ins)

    def rdw(slot, buf):
        for ft in range(2):
            for u in range(2):
                k("ds_read_b64_tr_b16 %s, %s offset:%d" % (v(WF + 8 * buf + 4 * ft + 2 * u, 2), v(VWR + ft), slot * WSLOT + u * 512))

    log = []
    for j in range(3):
        emit(wg(j)); log += [("W", j)] * 2
    for j in range(3):
        emit(xg(j)); log += [("X", j)] * 2
        emit(wg(3 + j)); log += [("W", 3 + j)] * 2

    def younger(kind, idx):
        last = max(i for i, e in enumerate(log) if e == (kind, idx))
        return len(log) - 1 - last

    k("s_waitcnt vmcnt(%d)" % younger("W", 0))
    if prio:
        k("s_setprio %d" % prio)
    rdw(0, 0)

    def one(sidx, static):
        xs, ws = sidx % 4, sidx % DW
        last = static and sidx == n - 1
        k("s_waitcnt vmcnt(%d)" % min(63, younger("X", sidx)))
        if not last:
            rdw((ws + 1) % DW, (sidx + 1) & 1)
            k("s_waitcnt lgkmcnt(4)")
        else:
            k("s_waitcnt lgkmcnt(0)")
        g = []
        if sidx + 3 < n:
            g += xg((sidx + 3) % 4)
            log.extend([("X", sidx + 3)] * 2)
        if sidx + 6 < n:
            g += wg((sidx + 6) % DW)
            log.extend([("W", sidx + 6)] * 2)
        g += [[]] * (4 - len(g))
        j = 0
        for tt in range(2):
            for ft in range(2):
                dd = v(ACC + 16 * (2 * tt + ft), 16)
                k("v_mfma_f32_32x32x16_bf16 %s, %s, %s, %s" % (dd, v(WF + 8 * (sidx & 1) + 4 * ft, 4), v(XF + 8 * xs + 4 * tt, 4), dd))
                for ins in g[j]:
                    k(ins)
                j += 1

    ntrip = (n - 6) // DW
    k("s_mov_b32 %s, 0" % s(S_TRIP))
    k.label(pre + "_loop")
    mark = len(k.lines)
    for d in range(DW):
        one(d, False)
    body_waits = [ln for ln in k.lines[mark:] if "vmcnt" in ln]
    assert len(set(body_waits)) == 1, body_waits
    k("s_add_u32 %s, %s, 1" % (s(S_TRIP), s(S_TRIP)))
    k("s_cmp_lt_u32 %s, %d" % (s(S_TRIP), ntrip))
    k("s_cbranch_scc1 %s_loop" % pre)
    for sidx in range(DW, ntrip * DW):
        log.extend([("X", sidx + 3)] * 2 + [("W", sidx + 6)] * 2)
    for sidx in range(ntrip * DW, n):
        one(sidx, True)


def pair_reduce(k, pre):
    k("s_nop 15")
    k("s_barrier")
    k("s_and_b32 %s, %s, 3" % (s(S_T), s(S_W)))
    k("s_lshl_b32 %s, %s, 14" % (s(S_T), s(S_T)))
    k("v_add_u32 v8, %s, v3" % s(S_T))
    k("s_cmp_ge_u32 %s, 4" % s(S_W))
    k("s_cbranch_scc0 %s_prr" % pre)
    for g in range(16):
        k("ds_write_b128 v8, %s offset:%d" % (v(ACC + 4 * g, 4), g * 1024))
    k("s_waitcnt lgkmcnt(0)")
    k("s_barrier")
    k("s_endpgm")
    k.label(pre + "_prr")
    k("s_barrier")
    for half in range(2):
        for g in range(8):
            k("ds_read_b128 %s, v8 offset:%d" % (v(XF + 4 * g, 4), (8 * half + g) * 1024))
        for g in range(8):
            k("s_waitcnt lgkmcnt(%d)" % (7 - g))
            for r in range(4):
                a_ = ACC + 32 * half + 4 * g + r
                k("v_add_f32 %s, %s, %s" % (v(a_), v(a_), v(XF + 4 * g + r)))


def reduce_and_store(k, pre):
    k("s_nop 15")
    k("s_barrier")
    for q in range(4):
        k("s_cmp_eq_u32 %s, %d" % (s(S_W), q))
        k("s_cbranch_scc1 %s_nw%d" % (pre, q))
        k("s_lshl_b32 %s, %s, 14" % (s(S_T), s(S_W)))
        k("v_add_u32 v8, %s, v3" % s(S_T))
        for g in range(4):
            k("ds_write_b128 v8, %s offset:%d" % (v(ACC + 16 * q + 4 * g, 4), q * 4096 + g * 1024))
        k.label("%s_nw%d" % (pre, q))
    for q in range(4):
        k("s_cmp_lg_u32 %s, %d" % (s(S_W), q))
        k("s_cbranch_scc1 %s_no%d" % (pre, q))
        for r in range(16):
            k("v_mov_b32 %s, %s" % (v(16 + r), v(ACC + 16 * q + r)))
        k.label("%s_no%d" % (pre, q))
    k("s_waitcnt lgkmcnt(0)")
    k("s_barrier")
    k("s_lshl_b32 %s, %s, 12" % (s(S_T2), s(S_W)))
    k("v_add_u32 v8, %s, v3" % s(S_T2))
    first = True
    for dq in range(1, 4):
        k("s_add_u32 %s, %s, %d" % (s(S_T2), s(S_W), dq))
        k("s_and_b32 %s, %s, 3" % (s(S_T2), s(S_T2)))
        k("s_lshl_b32 %s, %s, 14" % (s(S_T2), s(S_T2)))
        k("v_add_u32 v9, %s, v8" % s(S_T2))
        for g in range(4):
            k("ds_read_b128 %s, v9 offset:%d" % (v(64 + 16 * (dq - 1) + 4 * g, 4), g * 1024))
    for dq in range(1, 4):
        k("s_waitcnt lgkmcnt(%d)" % (4 * (3 - dq)))
        for r in range(16):
            k("v_add_f32 %s, %s, %s" % (v(16 + r), v(16 + r), v(64 + 16 * (dq - 1) + r)))


def resid_loads(k):
    k("s_lshr_b32 %s, %s, 1" % (s(S_T), s(S_W)))
    k("s_lshl_b32 %s, %s, 1" % (s(S_T2), s(S_RB)))
    k("s_add_u32 %s, %s, %s" % (s(S_T), s(S_T), s(S_T2)))
    k("s_lshl_b32 %s, %s, 15" % (s(S_T), s(S_T)))
    k("s_and_b32 %s, %s, 1" % (s(S_T2), s(S_W)))
    k("s_lshl_b32 %s, %s, 6" % (s(S_T2), s(S_T2)))
    k("s_lshl_b32 %s, %s, 7" % (s(S_N), s(S_CB)))
    k("s_add_u32 %s, %s, %s" % (s(S_BW), s(S_T2), s(S_N)))
    k("s_add_u32 %s, %s, %s" % (s(S_BX), s(S_T), s(S_BW)))
    k("v_lshlrev_b32 v10, 10, v1")
    k("v_lshl_add_u32 v10, v2, 4, v10")
    k("v_lshlrev_b32 v11, 4, v2")
    k("buffer_load_dwordx4 v[32:35], v10, %s, %s offen" % (s(S_XD, 4), s(S_BX)))
    k("buffer_load_dwordx4 v[36:39], v10, %s, %s offen offset:32" % (s(S_XD, 4), s(S_BX)))
    k("buffer_load_dwordx4 v[40:43], v11, %s, %s offen" % (s(S_BD, 4), s(S_BW)))
    k("buffer_load_dwordx4 v[44:47], v11, %s, %s offen offset:32" % (s(S_BD, 4), s(S_BW)))


def finish_tile(k):
    k("s_waitcnt vmcnt(0)")
    for half in range(2):
        for j in range(4):
            for src in (32, 40):
                r = src + 4 * half + j
                k("v_lshlrev_b32 v12, 16, %s" % v(r))
                k("v_and_b32 v13, 0xffff0000, %s" % v(r))
                k("v_add_f32 %s, %s, v12" % (v(16 + 8 * half + 2 * j), v(16 + 8 * half + 2 * j)))
                k("v_add_f32 %s, %s, v13" % (v(16 + 8 * half + 2 * j + 1), v(16 + 8 * half + 2 * j + 1)))
    for r in range(8):
        k("v_cvt_pk_bf16_f32 %s, %s, %s" % (v(16 + r), v(16 + 2 * r), v(17 + 2 * r)))
    k("buffer_store_dwordx4 v[16:19], v10, %s, %s offen" % (s(S_OD, 4), s(S_BX)))
    k("buffer_store_dwordx4 v[20:23], v10, %s, %s offen offset:32" % (s(S_OD, 4), s(S_BX)))


WS_BASE = 24 << 20


def ids(k, s_id):
    k("s_bfe_u32 %s, %s, 0x20003" % (s(S_RL), s_id))
    k("s_and_b32 %s, %s, 7" % (s(S_RB), s_id))
    k("s_lshl_b32 %s, %s, 2" % (s(S_RB), s(S_RB)))
    k("s_add_u32 %s, %s, %s" % (s(S_RB), s(S_RB), s(S_RL)))
    k("s_lshr_b32 %s, %s, 5" % (s(S_CB), s_id))


def add_resid(k):
    k("s_waitcnt vmcnt(0)")
    for half in range(2):
        for j in range(4):
            for src in (32, 40):
                r = src + 4 * half + j
                k("v_lshlrev_b32 v12, 16, %s" % v(r))
                k("v_and_b32 v13, 0xffff0000, %s" % v(r))
                k("v_add_f32 %s, %s, v12" % (v(16 + 8 * half + 2 * j), v(16 + 8 * half + 2 * j)))
                k("v_add_f32 %s, %s, v13" % (v(16 + 8 * half + 2 * j + 1), v(16 + 8 * half + 2 * j + 1)))


def gen_ffn2_role(k, pre, s_ws_size):
    k("v_lshrrev_b32 v1, 6, v0")
    k("v_and_b32 v0, 63, v0")
    k("v_readfirstlane_b32 %s, v1" % s(S_W))
    for r, off in ((S_WS, KA_WS), (S_W2, KA_W2), (S_X, KA_X), (S_B2, KA_B2)):
        k("s_load_dwordx2 %s, s[0:1], %d" % (s(r, 2), off))
    k("s_sub_u32 s3, s2, 256")
    k("s_cmp_ge_u32 %s, 4" % s(S_W))
    k("s_cbranch_scc1 %s_exit" % pre)
    ids(k, "s3")
    k("s_mul_i32 %s, %s, %d" % (s(S_LB), s(S_W), RING))
    seg_params(k, NA, 0, S_XO0, S_WO, S_WRAP)
    k("s_mov_b32 %s, %d" % (s(S_N), NA))
    setup(k)
    k("s_waitcnt lgkmcnt(0)")
    k.srd(S_HD, S_WS, s_ws_size)
    k.srd(S_WD, S_W2, 1792 * 1024)
    k.srd(S_XD, S_X, 2048 * 1024)
    k.srd(S_BD, S_B2, 1024)
    prof_mark(k, 2)
    stream(k, pre, NA, False, prio=(3 if "gp3" in OPT else (1 if "gp1" in OPT else 0)))
    prof_mark(k, 3)
    resid_loads(k)
    reduce_and_store(k, pre)
    add_resid(k)
    k("s_lshl_b32 %s, s3, 14" % s(S_T))
    k("s_lshl_b32 %s, %s, 12" % (s(S_T2), s(S_W)))
    k("s_add_u32 %s, %s, %s" % (s(S_T), s(S_T), s(S_T2)))
    k("s_add_u32 %s, %s, 0x%x" % (s(S_T), s(S_T), WS_BASE))
    for g in range(4):
        k("buffer_store_dwordx4 %s, v3, %s, %s offen offset:%d" % (v(16 + 4 * g, 4), s(S_HD, 4), s(S_T), 1024 * g))
    if "nopf" not in OPT:
        k("s_load_dwordx2 %s, s[0:1], %d" % (s(S_WOP, 2), KA_WO))
        k("s_waitcnt lgkmcnt(0)")
        k.srd(S_WD, S_WOP, 512 * 1024)
        k("s_lshl_b32 %s, %s, 17" % (s(S_T), s(S_W)))
        k("s_lshl_b32 %s, %s, 7" % (s(S_T2), s(S_CB)))
        k("s_add_u32 %s, %s, %s" % (s(S_T), s(S_T), s(S_T2)))
        for i in range(16):
            k("buffer_load_dwordx4 %s, v4, %s, %s offen" % (v(64 + 4 * i, 4), s(S_WD, 4), s(S_T)))
            k("s_add_u32 %s, %s, 8192" % (s(S_T), s(S_T)))
    k("s_waitcnt vmcnt(0)")
    prof_mark(k, 5)
    prof_rt(k, 6)
    prof_store(k, S_WS, S_W, 24)
    k.label(pre + "_exit")
    k("s_endpgm")


S_DBG = 60


def wait_flags(k, lab, s_off, n, far=True):
    k("s_cmp_eq_u32 %s, 0" % s(S_W))
    k("s_cbranch_scc0 %s_go" % lab)
    k("v_min_u32 v8, %d, v0" % (n - 1))
    k("v_lshl_add_u32 v8, v8, 2, %s" % s(s_off))
    k("s_mov_b32 %s, 0" % s(S_TRIP))
    k.label(lab + "_poll")
    k("global_load_dword v9, v8, %s sc1" % s(S_WS, 2))
    k("s_add_u32 %s, %s, 1" % (s(S_TRIP), s(S_TRIP)))
    k("s_waitcnt vmcnt(0)")
    k("v_cmp_eq_u32 vcc, 0, v9")
    k("s_nop 1")
    k("s_cmp_eq_u64 vcc, 0")
    k("s_cbranch_scc1 %s_go" % lab)
    if far:
        k("s_cmp_eq_u64 vcc, exec")
        k("s_cbranch_scc0 %s_near" % lab)
        k("s_sleep %d" % (24 if "sl24" in OPT else 12))
        k.label(lab + "_near")
    k("s_sleep %d" % (8 if "sn8" in OPT else (3 if far else 1)))
    k("s_cmp_lt_u32 %s, 0x40000" % s(S_TRIP))
    k("s_cbranch_scc1 %s_poll" % lab)
    k.label(lab + "_go")
    k("s_barrier")


def wo_tail(k, pre):
    OWN, OTH, XB, WB = 16, 96, 32, 112
    VLO, VHI = 14, 6
    k("s_barrier")
    k.srd(S_WD, S_WOP, 512 * 1024)
    k("s_lshl_b32 %s, %s, 17" % (s(S_T), s(S_W)))
    k("s_lshl_b32 %s, %s, 7" % (s(S_T2), s(S_CB)))
    k("s_add_u32 %s, %s, %s" % (s(S_T), s(S_T), s(S_T2)))
    k("s_lshl_b32 m0, %s, 14" % s(S_W))
    k("s_mov_b32 %s, 16" % s(S_TRIP))
    k.label(pre + "_wst")
    k("buffer_load_dwordx4 v4, %s, %s offen lds" % (s(S_WD, 4), s(S_T)))
    k("s_add_u32 %s, %s, 8192" % (s(S_T), s(S_T)))
    k("s_add_u32 m0, m0, 1024")
    k("s_sub_u32 %s, %s, 1" % (s(S_TRIP), s(S_TRIP)))
    k("s_cmp_lg_u32 %s, 0" % s(S_TRIP))
    k("s_cbranch_scc1 %s_wst" % pre)
    k("s_and_b32 %s, %s, 1" % (s(S_N), s(S_W)))
    k("s_and_b32 %s, %s, 1" % (s(S_WRAP), s(S_CB)))
    k("s_lshl_b32 %s, %s, 3" % (s(S_WRAP), s(S_WRAP)))
    k("v_subrev_u32 v6, %s, v6" % s(S_LB))
    k("v_subrev_u32 v7, %s, v7" % s(S_LB))
    k("s_cmp_eq_u32 %s, 0" % s(S_N))
    k("s_cselect_b64 vcc, -1, 0")
    k("v_cndmask_b32 v12, v7, v6, vcc")
    k("v_cndmask_b32 v13, v6, v7, vcc")
    k("s_lshl_b32 %s, %s, 15" % (s(S_T), s(S_N)))
    k("s_lshl_b32 %s, %s, 11" % (s(S_T2), s(S_WRAP)))
    k("s_add_u32 %s, %s, %s" % (s(S_LEFT), s(S_T), s(S_T2)))
    k("v_add_u32 %s, %s, v12" % (v(VLO), s(S_LEFT)))
    k("v_add_u32 %s, %s, v13" % (v(VLO + 1), s(S_LEFT)))
    k("s_sub_u32 %s, %s, %s" % (s(S_LEFT), s(S_T), s(S_T2)))
    k("s_add_u32 %s, %s, %d" % (s(S_LEFT), s(S_LEFT), 8 * 2048))
    k("v_add_u32 %s, %s, v12" % (v(VHI), s(S_LEFT)))
    k("v_add_u32 %s, %s, v13" % (v(VHI + 1), s(S_LEFT)))
    for r in range(16):
        k("v_mov_b32 %s, 0" % v(OTH + r))
    k("s_lshr_b32 %s, %s, 1" % (s(S_T), s(S_W)))
    k("s_lshl_b32 %s, %s, 1" % (s(S_T2), s(S_RB)))
    k("s_add_u32 %s, %s, %s" % (s(S_T), s(S_T), s(S_T2)))
    k("s_mul_i32 %s, %s, %d" % (s(S_XO0), s(S_T), WS_HO_ROW))
    k("s_lshl_b32 %s, %s, 14" % (s(S_T), s(S_N)))
    k("s_add_u32 %s, %s, %s" % (s(S_XO0), s(S_XO0), s(S_T)))
    k("s_add_u32 %s, %s, 0x%x" % (s(S_XO0), s(S_XO0), WS_HO + 112 * 1024))
    k("s_lshl_b32 %s, %s, 10" % (s(S_T), s(S_WRAP)))
    k("s_add_u32 %s, %s, %s" % (s(S_XO1), s(S_XO0), s(S_T)))
    k("s_sub_u32 %s, %s, %s" % (s(S_XO0), s(S_XO0), s(S_T)))
    def xloads():
        k("s_mov_b32 %s, %s" % (s(S_T), s(S_XO1)))
        k("s_add_u32 %s, %s, 8192" % (s(S_T2), s(S_XO0)))
        for i in range(16):
            so = S_T if i < 8 else S_T2
            if i in (4, 12):
                k("s_add_u32 %s, %s, 4096" % (s(so), s(so)))
            k("buffer_load_dwordx4 %s, v3, %s, %s offen offset:%d sc1" % (v(XB + 4 * i, 4), s(S_HD, 4), s(so), (i % 4) * 1024))

    if not XPROF[0]:
        prof_mark(k, 2)
    if "tagged" in OPT:
        k("s_waitcnt vmcnt(0)")
        k("s_barrier")
        k("s_setprio 0")
        k("s_lshl_b32 %s, %s, 10" % (s(S_T2), s(S_WRAP)))
        k("s_sub_u32 %s, %s, %s" % (s(S_LEFT), s(S_XO1), s(S_T2)))
        k("v_and_b32 v8, 15, v0")
        k("v_lshlrev_b32 v8, 10, v8")
        k("v_add_u32 v8, 1020, v8")
        k("s_mov_b32 %s, 0" % s(S_TRIP))
        k.label(pre + "_lp")
        k("buffer_load_dword v9, v8, %s, %s offen sc1" % (s(S_HD, 4), s(S_LEFT)))
        k("s_add_u32 %s, %s, 1" % (s(S_TRIP), s(S_TRIP)))
        k("s_waitcnt vmcnt(0)")
        k("v_cmp_eq_u32 vcc, -1, v9")
        k("s_nop 1")
        k("s_cmp_eq_u64 vcc, 0")
        k("s_cbranch_scc1 %s_full" % pre)
        k("s_cmp_eq_u64 vcc, exec")
        k("s_cbranch_scc0 %s_lnear" % pre)
        k("s_sleep 24")
        k("s_branch %s_lagain" % pre)
        k.label(pre + "_lnear")
        k("s_setprio 3")
        k("s_sleep 2")
        k.label(pre + "_lagain")
        k("s_cmp_lt_u32 %s, 0x8000" % s(S_TRIP))
        k("s_cbranch_scc1 %s_lp" % pre)
        k.label(pre + "_full")
        k("s_setprio 3")
        xloads()
        k("s_add_u32 %s, %s, 1" % (s(S_TRIP), s(S_TRIP)))
        for g in range(4):
            k("s_waitcnt vmcnt(%d)" % (12 - 4 * g))
            for r in range(0, 16, 2):
                a_, b_ = XB + 16 * g + r, XB + 16 * g + r + 1
                if g == 0 and r == 0:
                    k("v_max_u32 v9, %s, %s" % (v(a_), v(b_)))
                else:
                    k("v_max3_u32 v9, v9, %s, %s" % (v(a_), v(b_)))
        k("v_cmp_eq_u32 vcc, -1, v9")
        k("s_nop 1")
        k("s_cmp_eq_u64 vcc, 0")
        k("s_cbranch_scc1 %s_got" % pre)
        k("s_cmp_lt_u32 %s, 0x8000" % s(S_TRIP))
        k("s_cbranch_scc1 %s_full" % pre)
        k.label(pre + "_got")
        prof_mark(k, 4)
    else:
        k("s_lshl_b32 %s, %s, 8" % (s(S_LEFT), s(S_RB)))
        k("s_add_u32 %s, %s, 0x%x" % (s(S_LEFT), s(S_LEFT), WS_FLAG + FLAG_O))
        k("s_waitcnt vmcnt(0)")
        k("s_setprio 3")
        wait_flags(k, pre + "_w", S_LEFT, 64)
        if "fprof" not in OPT:
            prof_mark(k, 4)
        xloads()

    def rd(i):
        base = VLO if i < 8 else VHI
        for j in range(2):
            for u in range(2):
                k("ds_read_b64_tr_b16 %s, %s offset:%d" % (v(WB + 8 * (i & 1) + 4 * j + 2 * u, 2), v(base + j), (i & 7) * 2048 + u * 512))

    rd(0)
    for i in range(16):
        if i < 15:
            rd(i + 1)
        if "tagged" in OPT:
            k("s_waitcnt lgkmcnt(%d)" % (4 if i < 15 else 0))
        else:
            k("s_waitcnt vmcnt(%d) lgkmcnt(%d)" % (15 - i, 4 if i < 15 else 0))
        for j, acc in ((0, OWN), (1, OTH)):
            k("v_mfma_f32_32x32x16_bf16 %s, %s, %s, %s" % (v(acc, 16), v(WB + 8 * (i & 1) + 4 * j, 4), v(XB + 4 * i, 4), v(acc, 16)))
    k("s_barrier")
    k("s_xor_b32 %s, %s, 1" % (s(S_T), s(S_W)))
    k("s_lshl_b32 %s, %s, 12" % (s(S_T), s(S_T)))
    k("v_add_u32 v12, %s, v3" % s(S_T))
    k("s_lshl_b32 %s, %s, 12" % (s(S_T), s(S_W)))
    k("v_add_u32 v13, %s, v3" % s(S_T))
    k("s_nop 7")
    for g in range(4):
        k("ds_write_b128 v12, %s offset:%d" % (v(OTH + 4 * g, 4), g * 1024))
    k("s_waitcnt lgkmcnt(0)")
    k("s_barrier")
    for g in range(4):
        k("ds_read_b128 %s, v13 offset:%d" % (v(XB + 4 * g, 4), g * 1024))
    k("v_lshlrev_b32 v10, 10, v1")
    k("v_lshl_add_u32 v10, v2, 4, v10")
    for g in range(4):
        k("s_waitcnt lgkmcnt(%d)" % (3 - g))
        for r in range(4):
            k("v_add_f32 %s, %s, %s" % (v(OWN + 4 * g + r), v(OWN + 4 * g + r), v(XB + 4 * g + r)))
    for r in range(8):
        k("v_cvt_pk_bf16_f32 %s, %s, %s" % (v(16 + r), v(16 + 2 * r), v(17 + 2 * r)))
    k("buffer_store_dwordx4 v[16:19], v10, %s, %s offen" % (s(S_OD, 4), s(S_BX)))
    k("buffer_store_dwordx4 v[20:23], v10, %s, %s offen offset:32" % (s(S_OD, 4), s(S_BX)))


def gen_g_role(k, pre, ffn1=None):
    k("v_lshrrev_b32 v1, 6, v0")
    k("v_and_b32 v0, 63, v0")
    k("v_readfirstlane_b32 %s, v1" % s(S_W))
    for r, off in ((S_WS, KA_WS), (S_W2, KA_W2), (S_WOP, KA_WO), (S_X, KA_X), (S_B2, KA_B2), (S_OUT, KA_OUT)):
        k("s_load_dwordx2 %s, s[0:1], %d" % (s(r, 2), off))
    k("s_sub_u32 s3, s2, 256")
    if ffn1:
        k("s_load_dwordx2 s[62:63], s[0:1], %d" % KA_W1)
        k("s_load_dwordx2 s[64:65], s[0:1], %d" % KA_B1)
        ids(k, "s3")
        k("v_and_b32 v1, 31, v0")
        k("v_lshrrev_b32 v2, 5, v0")
        k("s_waitcnt lgkmcnt(0)")
        k.srd(S_HD, S_WS, (20 << 20) + (2 << 20))
        for lvl in (1, 2, 3):
            if "fp%d" % lvl in OPT:
                k("s_setprio %d" % lvl)
        ffn1(k, pre + "f")
        prof_mark(k, 2)
        k("s_setprio 0")
        XSC[0] = " sc1"
    else:
        k("s_cmp_ge_u32 %s, 4" % s(S_W))
        k("s_cbranch_scc1 %s_exit" % pre)
    ids(k, "s3")
    if "pfo" in OPT:
        k.srd(S_WD, S_WOP, 512 * 1024)
        k("v_lshrrev_b32 v12, 3, v0")
        k("v_and_b32 v13, 7, v0")
        k("v_lshlrev_b32 v13, 4, v13")
        k("v_lshl_add_u32 v12, v12, 10, v13")
        k("s_lshl_b32 %s, %s, 17" % (s(S_T), s(S_RL)))
        k("s_lshl_b32 %s, %s, 14" % (s(S_T2), s(S_W)))
        k("s_add_u32 %s, %s, %s" % (s(S_T), s(S_T), s(S_T2)))
        k("s_lshl_b32 %s, %s, 7" % (s(S_T2), s(S_CB)))
        k("s_add_u32 %s, %s, %s" % (s(S_T), s(S_T), s(S_T2)))
        k("buffer_load_dwordx4 v[48:51], v12, %s, %s offen" % (s(S_WD, 4), s(S_T)))
        k("s_add_u32 %s, %s, 8192" % (s(S_T), s(S_T)))
        k("buffer_load_dwordx4 v[48:51], v12, %s, %s offen" % (s(S_WD, 4), s(S_T)))
        k.srd(S_XD, S_X, 2048 * 1024)
        k("s_lshl_b32 %s, %s, 16" % (s(S_T), s(S_RB)))
        k("s_lshl_b32 %s, %s, 13" % (s(S_T2), s(S_W)))
        k("s_add_u32 %s, %s, %s" % (s(S_T), s(S_T), s(S_T2)))
        k("s_lshl_b32 %s, %s, 7" % (s(S_T2), s(S_CB)))
        k("s_add_u32 %s, %s, %s" % (s(S_T), s(S_T), s(S_T2)))
        k("buffer_load_dwordx4 v[48:51], v12, %s, %s offen" % (s(S_XD, 4), s(S_T)))
    na = NA // 2 if "w8" in OPT else NA
    k("s_mul_i32 %s, %s, %d" % (s(S_LB), s(S_W), DW * WSLOT if "deep" in OPT else RING))
    seg_params(k, na, 0, S_XO0, S_WO, S_WRAP)
    k("s_mov_b32 %s, %d" % (s(S_N), na))
    setup(k)
    k("s_waitcnt lgkmcnt(0)")
    k.srd(S_HD, S_WS, WS_END)
    k.srd(S_WD, S_W2, 1792 * 1024)
    k.srd(S_XD, S_X, 2048 * 1024)
    k.srd(S_OD, S_OUT, 2048 * 1024)
    k.srd(S_BD, S_B2, 1024)
    gp = 3 if "gp3" in OPT else (1 if "gp1" in OPT else (2 if "gp2" in OPT else None))
    if "deep" in OPT:
        stream2(k, pre + "a", na, gp)
    else:
        stream(k, pre + "a", na, False, prio=gp)
    XSC[0] = ""
    if "fprof" not in OPT:
        prof_mark(k, 3)
    if "w8" in OPT:
        for lvl in (1, 2, 3):
            if "rp%d" % lvl in OPT:
                k("s_setprio %d" % lvl)
        pair_reduce(k, pre)
    if "stop" in OPT:
        prof_mark(k, 4)
        prof_mark(k, 5)
        prof_rt(k, 6)
        prof_store(k, S_WS, S_W, 24)
        k("s_endpgm")
    for lvl in (1, 2, 3):
        if "rp%d" % lvl in OPT:
            k("s_setprio %d" % lvl)
    resid_loads(k)
    reduce_and_store(k, pre)
    add_resid(k)
    wo_tail(k, pre)
    k("s_waitcnt vmcnt(0)")
    if common.STAMP:
        k("s_cmp_eq_u32 s2, 256")
        k("s_cbranch_scc0 %s_ng" % pre)
        k("s_cmp_eq_u32 %s, 0" % s(S_W))
        k("s_cbranch_scc0 %s_ng" % pre)
        k("s_load_dwordx2 s[60:61], s[0:1], %d" % KA_DBG)
        k("s_memrealtime s[88:89]")
        k("s_waitcnt lgkmcnt(0)")
        k("v_lshrrev_b32 v8, 2, v0")
        k("v_mul_u32_u24 v8, %d, v8" % (65 * 32))
        k("v_and_b32 v9, 3, v0")
        k("v_lshl_add_u32 v8, v9, 2, v8")
        k("v_add_u32 v8, 0x%x, v8" % WS_STAMP)
        k("v_cmp_gt_u32 vcc, 15, v0")
        k("s_and_saveexec_b64 s[62:63], vcc")
        k("global_load_dword v9, v8, %s sc1" % s(S_WS, 2))
        k("s_waitcnt vmcnt(0)")
        k("s_mov_b64 exec, s[62:63]")
        k("v_mov_b32 v10, s88")
        k("v_cmp_eq_u32 vcc, 15, v0")
        k("s_nop 1")
        k("v_cndmask_b32 v9, v9, v10, vcc")
        k("v_lshlrev_b32 v8, 2, v0")
        k("v_cmp_gt_u32 vcc, 16, v0")
        k("s_and_saveexec_b64 s[62:63], vcc")
        k("global_store_dword v8, v9, s[60:61]")
        k("s_waitcnt vmcnt(0)")
        k("s_mov_b64 exec, s[62:63]")
        k.label(pre + "_ng")
    if "fprof" not in OPT:
        prof_mark(k, 5)
    prof_rt(k, 6)
    prof_store(k, S_WS, S_W, 24)
    k.label(pre + "_exit")
    k("s_endpgm")


def gen_wo(k, name, pre):
    k.kernel_begin(name)
    k("s_cmp_ge_u32 s2, 256")
    k("s_cbranch_scc1 %s_exit" % pre)
    prof_start(k)
    for r, off in ((S_WS, KA_WS), (S_WOP, KA_WO), (S_OUT, KA_OUT)):
        k("s_load_dwordx2 %s, s[0:1], %d" % (s(r, 2), off))
    ids(k, "s2")
    k("v_lshrrev_b32 v1, 6, v0")
    k("v_and_b32 v0, 63, v0")
    k("v_readfirstlane_b32 %s, v1" % s(S_W))
    k("s_nop 0")
    k("s_mul_i32 %s, %s, %d" % (s(S_LB), s(S_W), RING))
    seg_params(k, NB, 112, S_XO0, S_WO, S_WRAP)
    k("s_mov_b32 %s, %d" % (s(S_N), NB))
    setup(k)
    k("s_waitcnt lgkmcnt(0)")
    k.srd(S_HD, S_WS, WS_BASE + (4 << 20))
    k.srd(S_WD, S_WOP, 512 * 1024)
    k.srd(S_OD, S_OUT, 2048 * 1024)
    k("s_lshl_b32 %s, s2, 14" % s(S_T))
    k("s_lshl_b32 %s, %s, 12" % (s(S_T2), s(S_W)))
    k("s_add_u32 %s, %s, %s" % (s(S_T), s(S_T), s(S_T2)))
    k("s_add_u32 %s, %s, 0x%x" % (s(S_T), s(S_T), WS_BASE))
    for q in range(4):
        k("s_cmp_lg_u32 %s, %d" % (s(S_W), q))
        k("s_cbranch_scc1 %s_nb%d" % (pre, q))
        for g in range(4):
            k("buffer_load_dwordx4 %s, v3, %s, %s offen offset:%d" % (v(ACC + 16 * q + 4 * g, 4), s(S_HD, 4), s(S_T), 1024 * g))
        k.label("%s_nb%d" % (pre, q))
    prof_mark(k, 2)
    stream(k, pre, NB, False)
    prof_mark(k, 3)
    reduce_and_store(k, pre)
    k("s_lshr_b32 %s, %s, 1" % (s(S_T), s(S_W)))
    k("s_lshl_b32 %s, %s, 1" % (s(S_T2), s(S_RB)))
    k("s_add_u32 %s, %s, %s" % (s(S_T), s(S_T), s(S_T2)))
    k("s_lshl_b32 %s, %s, 15" % (s(S_T), s(S_T)))
    k("s_and_b32 %s, %s, 1" % (s(S_T2), s(S_W)))
    k("s_lshl_b32 %s, %s, 6" % (s(S_T2), s(S_T2)))
    k("s_add_u32 %s, %s, %s" % (s(S_T), s(S_T), s(S_T2)))
    k("s_lshl_b32 %s, %s, 7" % (s(S_T2), s(S_CB)))
    k("s_add_u32 %s, %s, %s" % (s(S_T), s(S_T), s(S_T2)))
    k("v_lshlrev_b32 v10, 10, v1")
    k("v_lshl_add_u32 v10, v2, 4, v10")
    for r in range(8):
        k("v_cvt_pk_bf16_f32 %s, %s, %s" % (v(16 + r), v(16 + 2 * r), v(17 + 2 * r)))
    k("buffer_store_dwordx4 v[16:19], v10, %s, %s offen" % (s(S_OD, 4), s(S_T)))
    k("buffer_store_dwordx4 v[20:23], v10, %s, %s offen offset:32" % (s(S_OD, 4), s(S_T)))
    k("s_waitcnt vmcnt(0)")
    prof_mark(k, 5)
    prof_rt(k, 6)
    prof_store(k, S_WS, S_W, 24)
    k.label(pre + "_exit")
    k.kernel_end(name, 128, 128)
    return 256, 65536


def gen_final(k, name, pre):
    k.kernel_begin(name)
    k("s_cmp_ge_u32 s2, 256")
    k("s_cbranch_scc1 %s_exit" % pre)
    prof_start(k)
    for r, off in ((S_WS, KA_WS), (S_W2, KA_W2), (S_WOP, KA_WO), (S_X, KA_X), (S_B2, KA_B2), (S_OUT, KA_OUT)):
        k("s_load_dwordx2 %s, s[0:1], %d" % (s(r, 2), off))
    k("s_bfe_u32 %s, s2, 0x20003" % s(S_RL))
    k("s_and_b32 %s, s2, 7" % s(S_RB))
    k("s_lshl_b32 %s, %s, 2" % (s(S_RB), s(S_RB)))
    k("s_add_u32 %s, %s, %s" % (s(S_RB), s(S_RB), s(S_RL)))
    k("s_lshr_b32 %s, s2, 5" % s(S_CB))
    k("v_lshrrev_b32 v1, 6, v0")
    k("v_and_b32 v0, 63, v0")
    k("v_readfirstlane_b32 %s, v1" % s(S_W))
    k("s_nop 0")
    k("s_mul_i32 %s, %s, %d" % (s(S_LB), s(S_W), RING))
    if "norot" in OPT:
        k("s_mov_b32 %s, 0" % s(S_RL))
    seg_params(k, NA, 0, S_XO0, S_WO, S_WRAP)
    seg_params(k, NB, 112, S_BX, S_BW, S_BWRAP)
    k("s_mov_b32 %s, %d" % (s(S_N), NA))
    k("s_mov_b32 %s, %d" % (s(S_LEFT), NA))
    setup(k)
    k("s_waitcnt lgkmcnt(0)")
    k.srd(S_HD, S_WS, WS_END)
    k.srd(S_WD, S_W2, 1792 * 1024)
    k.srd(S_XD, S_X, 2048 * 1024)
    k.srd(S_OD, S_OUT, 2048 * 1024)
    k.srd(S_BD, S_B2, 1024)
    prof_mark(k, 2)
    stream(k, pre, NA + NB, True)
    prof_mark(k, 3)
    resid_loads(k)
    reduce_and_store(k, pre)
    finish_tile(k)
    k("s_waitcnt vmcnt(0)")
    prof_mark(k, 5)
    prof_rt(k, 6)
    prof_store(k, S_WS, S_W, 24)
    k.label(pre + "_exit")
    k.kernel_end(name, 128, 128)
    return 256, 65536
```

```python
import common
from common import *

OPT = set()
XBYTES = 65536
L_PART = XBYTES
L_BI = L_PART + 2048
SLOT0 = XBYTES + 3072
SLOT = 16384
R = 5
SLOTE = SLOT0 + R * SLOT
LDS_BYTES = SLOTE
WS_XN = 20 << 20

S_X, S_WQ, S_WS, S_B1, S_W1 = 4, 6, 8, 10, 40
S_XD, S_WD, S_OD = 12, 16, 20
S_W, S_RB, S_CT, S_T, S_T2, S_C, S_SLOT, S_WO, S_LD = 24, 25, 26, 27, 28, 29, 30, 32, 33
S_RSLOT, S_T3, S_ROT, S_CK, S_KC, S_U, S_NCH, S_WEND, S_LD3, S_LD4 = 35, 36, 37, 38, 39, 42, 43, 44, 45, 46

VA0, VXA, NX, NS, NQ, NT = 4, 5, 16, 48, 50, 52
VWQ, VWF = 6, 7
VW2 = 11
VX = 19
XF = [20, 24]
WF = [28, 44]
ACC = 60
NV = 128
VQO, VFO = 6, 9


def entry(k, pre, name):
    k("s_cmp_ge_u32 s2, 256")
    k("s_cbranch_scc1 %s_exit" % pre)
    prof_start(k)
    k("s_load_dwordx2 %s, s[0:1], %d" % (s(S_X, 2), KA_X))
    k("s_load_dwordx2 %s, s[0:1], %d" % (s(S_WQ, 2), KA_WQKV))
    k("s_load_dwordx2 %s, s[0:1], %d" % (s(S_W1, 2), KA_W1))
    k("s_load_dwordx2 %s, s[0:1], %d" % (s(S_WS, 2), KA_WS))
    k("s_load_dwordx2 %s, s[0:1], %d" % (s(S_B1, 2), KA_B1))
    k("v_lshrrev_b32 v1, 6, v0")
    k("v_and_b32 v0, 63, v0")
    k("v_readfirstlane_b32 %s, v1" % s(S_W))
    if "nopf" not in OPT:
        k("s_getpc_b64 s[50:51]")
        k.label(pre + "_pc")
        k("s_sub_u32 s50, s50, %s_pc-%s" % (pre, name))
        k("s_subb_u32 s51, s51, 0")
        k("s_lshr_b32 s52, s2, 3")
        k("s_lshl_b32 s52, s52, 10")
        k("v_lshl_add_u32 v3, v0, 4, s52")
        k("v_cmp_gt_u32 vcc, L_text_end-%s-16, v3" % name)
        k("s_cmp_eq_u32 %s, 7" % s(S_W))
        k("s_cselect_b64 s[52:53], vcc, 0")
        k("s_and_saveexec_b64 s[54:55], s[52:53]")
        k("s_cbranch_execz %s_npf" % pre)
        k("global_load_dwordx4 v[112:115], v3, s[50:51]")
        k.label(pre + "_npf")
        k("s_mov_b64 exec, s[54:55]")
    k("s_lshr_b32 %s, s2, 3" % s(S_T))
    k("s_and_b32 %s, %s, 7" % (s(S_ROT), s(S_T)))
    k("s_and_b32 %s, s2, 3" % s(S_RB))
    k("s_lshl_b32 %s, %s, 3" % (s(S_RB), s(S_RB)))
    k("s_add_u32 %s, %s, %s" % (s(S_RB), s(S_RB), s(S_ROT)))
    k("s_lshr_b32 %s, %s, 3" % (s(S_T), s(S_T)))
    k("s_bfe_u32 %s, s2, 0x10002" % s(S_CT))
    k("s_lshl_b32 %s, %s, 2" % (s(S_CT), s(S_CT)))
    k("s_add_u32 %s, %s, %s" % (s(S_CT), s(S_CT), s(S_T)))
    k("s_lshl_b32 %s, %s, 1" % (s(S_ROT), s(S_ROT)))
    k("s_lshl_b32 %s, %s, 1" % (s(S_T), s(S_T)))
    k("s_add_u32 %s, %s, %s" % (s(S_T), s(S_T), s(S_W)))
    k("s_and_b32 %s, %s, 7" % (s(S_T), s(S_T)))
    k("s_lshl_b32 %s, %s, 3" % (s(S_T3), s(S_T)))
    k("v_lshlrev_b32 v3, 4, v0")
    k("s_lshl_b32 %s, %s, 6" % (s(S_T), s(S_RB)))
    k("s_add_u32 %s, %s, %s" % (s(S_T), s(S_T), s(S_T3)))
    k("s_lshl_b32 %s, %s, 10" % (s(S_T2), s(S_T)))
    k("s_lshl_b32 m0, %s, 10" % s(S_T3))
    k("s_and_b32 %s, %s, 8" % (s(S_T3), s(S_T3)))
    k("s_waitcnt lgkmcnt(0)")
    stamp(k, 0, S_WS, S_W)
    k.srd(S_XD, S_X, 2048 * 1024)
    for i in range(8):
        k("s_add_u32 %s, %s, %d" % (s(S_T), s(S_T3), i))
        k("s_lshl_b32 %s, %s, 4" % (s(S_T), s(S_T)))
        k("v_xor_b32 v4, %s, v3" % s(S_T))
        k("buffer_load_dwordx4 v4, %s, %s offen lds" % (s(S_XD, 4), s(S_T2)))
        if i < 7:
            k("s_add_u32 m0, m0, 1024")
            k("s_add_u32 %s, %s, 1024" % (s(S_T2), s(S_T2)))
    if "p2" not in OPT and "p3" not in OPT:
        prof_mark(k, 2)
    k("v_and_b32 v1, 31, v0")
    k("v_lshrrev_b32 v2, 5, v0")
    k.srd(S_OD, S_WS, WS_END if "xn" not in OPT else WS_XN + (2 << 20))
    k.srd(S_WD, S_WQ, 512 * 3072)
    for r in range(6, 11):
        k("v_mov_b32 %s, 0" % v(r))
    if "poison" in OPT:
        k("s_lshr_b32 %s, s2, 2" % s(S_T))
        k("s_mul_i32 %s, %s, %d" % (s(S_T), s(S_T), WS_HO_ROW))
        k("s_and_b32 %s, s2, 3" % s(S_T2))
        k("s_lshl_b32 %s, %s, 3" % (s(S_T2), s(S_T2)))
        k("s_add_u32 %s, %s, %s" % (s(S_T2), s(S_T2), s(S_W)))
        k("s_lshl_b32 %s, %s, 10" % (s(S_T2), s(S_T2)))
        k("s_add_u32 %s, %s, %s" % (s(S_T), s(S_T), s(S_T2)))
        k("s_add_u32 %s, %s, 0x%x" % (s(S_T), s(S_T), WS_HO + 112 * 1024))
        k("v_lshlrev_b32 v4, 4, v0")
        for r in range(4):
            k("v_mov_b32 %s, -1" % v(12 + r))
        k("buffer_store_dwordx4 v[12:15], v4, %s, %s offen" % (s(S_OD, 4), s(S_T)))
    k("s_cmp_lt_u32 s2, 48")
    k("s_cbranch_scc0 %s_nz" % pre)
    k("s_cmp_eq_u32 %s, 0" % s(S_W))
    k("s_cbranch_scc0 %s_nz" % pre)
    k("s_lshl_b32 %s, s2, 8" % s(S_T))
    k("s_add_u32 %s, %s, 0x%x" % (s(S_T), s(S_T), WS_FLAG))
    k("v_lshl_add_u32 v4, v0, 2, %s" % s(S_T))
    k("v_mov_b32 v5, 0")
    k("global_store_dword v4, v5, %s" % s(S_WS, 2))
    k.label(pre + "_nz")
    k("s_cmp_ge_u32 %s, 4" % s(S_W))
    k("s_cbranch_scc1 %s_loader" % pre)


def xaddr_base(k, s_tile):
    k("s_lshl_b32 %s, %s, 15" % (s(S_T), s(s_tile)))
    k("v_and_b32 v3, 15, v1")
    k("v_xor_b32 v3, v3, v2")
    k("v_lshlrev_b32 v3, 4, v3")
    k("v_lshl_add_u32 v3, v1, 10, v3")
    k("v_add_u32 %s, %s, v3" % (v(VA0), s(S_T)))


def normalise(k, pre, dma, younger):
    k("s_and_b32 %s, %s, 1" % (s(S_T2), s(S_W)))
    xaddr_base(k, S_T2)
    k("s_lshr_b32 %s, %s, 1" % (s(S_T3), s(S_W)))
    k("s_lshl_b32 %s, %s, 8" % (s(S_U), s(S_T3)))
    k("v_xor_b32 %s, %s, %s" % (v(VXA), s(S_U), v(VA0)))
    k("s_cmp_ge_u32 %s, 4" % s(S_W))
    k("s_cbranch_scc1 %s_nwl" % pre)
    k("s_waitcnt vmcnt(0)")
    k.label(pre + "_nwl")
    k("s_waitcnt vmcnt(%d)" % younger)
    k("s_barrier")
    if "p2" not in OPT:
        prof_mark(k, 3)
    for i in range(8):
        k("v_xor_b32 %s, %d, %s" % (v(NT + 8 + i), 32 * i, v(VXA)))
    AD = NT + 8
    for i in range(8):
        k("ds_read_b128 %s, %s" % (v(NX + 4 * i, 4), v(AD + i)))
    for r in range(4):
        k("v_mov_b32 %s, 0" % v(NS + r))
    k("v_mov_b32 %s, 0x3f803f80" % v(NT))
    for i in range(8):
        k("s_waitcnt lgkmcnt(%d)" % (7 - i))
        for r in range(4):
            k("v_dot2c_f32_bf16 %s, %s, %s" % (v(NS + (r & 1)), v(NT), v(NX + 4 * i + r)))
            k("v_dot2c_f32_bf16 %s, %s, %s" % (v(NQ + (r & 1)), v(NX + 4 * i + r), v(NX + 4 * i + r)))
    k("s_nop 2")
    for r in (NS, NQ):
        k("v_add_f32 %s, %s, %s" % (v(r), v(r), v(r + 1)))
        k("v_mov_b32 %s, %s" % (v(r + 1), v(r)))
        k("s_nop 1")
        k("v_permlane32_swap_b32 %s, %s" % (v(r + 1), v(r)))
        k("s_nop 1")
        k("v_add_f32 %s, %s, %s" % (v(r), v(r), v(r + 1)))
    if "p3" in OPT:
        prof_mark(k, 2)
    k("s_cmp_ge_u32 %s, 4" % s(S_W))
    k("s_cbranch_scc0 %s_nnd" % pre)
    for grp in dma:
        for ins in grp:
            k(ins)
    k.label(pre + "_nnd")
    k("v_mov_b32 %s, %s" % (v(NS + 1), v(NQ)))
    k("s_lshl_b32 %s, %s, 8" % (s(S_T), s(S_W)))
    k("s_add_u32 %s, %s, %d" % (s(S_T), s(S_T), L_PART))
    k("v_lshl_add_u32 v3, v1, 3, %s" % s(S_T))
    k("ds_write_b64 v3, %s" % v(NS, 2))
    k("s_waitcnt lgkmcnt(0)")
    k("s_barrier")
    if "p3" in OPT:
        prof_mark(k, 4)
    k("s_and_b32 %s, %s, 1" % (s(S_T), s(S_W)))
    k("s_lshl_b32 %s, %s, 8" % (s(S_T), s(S_T)))
    k("s_add_u32 %s, %s, %d" % (s(S_T), s(S_T), L_PART))
    k("v_lshl_add_u32 v3, v1, 3, %s" % s(S_T))
    PT = NT + 16
    for q in range(4):
        k("ds_read_b64 %s, v3 offset:%d" % (v(PT + 2 * q, 2), q * 512))
    k("s_waitcnt lgkmcnt(0)")
    k("v_add_f32 %s, %s, %s" % (v(PT), v(PT), v(PT + 2)))
    k("v_add_f32 %s, %s, %s" % (v(PT + 1), v(PT + 1), v(PT + 3)))
    k("v_add_f32 %s, %s, %s" % (v(PT + 4), v(PT + 4), v(PT + 6)))
    k("v_add_f32 %s, %s, %s" % (v(PT + 5), v(PT + 5), v(PT + 7)))
    k("v_add_f32 %s, %s, %s" % (v(NS), v(PT), v(PT + 4)))
    k("v_add_f32 %s, %s, %s" % (v(NQ), v(PT + 1), v(PT + 5)))
    k("v_mul_f32 %s, 0x%x, %s" % (v(NS), f2u(1.0 / 512), v(NS)))
    k("v_mul_f32 %s, 0x%x, %s" % (v(NQ), f2u(1.0 / 512), v(NQ)))
    k("v_fma_f32 %s, -%s, %s, %s" % (v(NQ), v(NS), v(NS), v(NQ)))
    k("v_max_f32 %s, 0, %s" % (v(NQ), v(NQ)))
    k("v_add_f32 %s, 0x%x, %s" % (v(NQ), f2u(1e-5), v(NQ)))
    k("v_rsq_f32 %s, %s" % (v(NQ), v(NQ)))
    MK, TP = NT + 24, NT + 26
    k("v_mov_b32 %s, 0xffff0000" % v(MK))
    k("v_mul_f32 %s, %s, %s" % (v(NS), v(NS), v(NQ)))
    k("v_mov_b32 %s, %s" % (v(NQ + 1), v(NQ)))
    k("v_sub_f32 %s, 0, %s" % (v(NS), v(NS)))
    k("v_mov_b32 %s, %s" % (v(NS + 1), v(NS)))
    for i in range(8):
        for r in range(4):
            x = NX + 4 * i + r
            t = TP + 2 * (r & 1)
            k("v_lshlrev_b32 %s, 16, %s" % (v(t), v(x)))
            k("v_and_b32 %s, %s, %s" % (v(t + 1), v(MK), v(x)))
            if r > 0:
                tp = TP + 2 * ((r - 1) & 1)
                k("v_cvt_pk_bf16_f32 %s, %s, %s" % (v(x - 1), v(tp), v(tp + 1)))
            k("v_pk_fma_f32 %s, %s, %s, %s" % (v(t, 2), v(t, 2), v(NQ, 2), v(NS, 2)))
        tp = TP + 2
        k("v_cvt_pk_bf16_f32 %s, %s, %s" % (v(NX + 4 * i + 3), v(tp), v(tp + 1)))
        k("ds_write_b128 %s, %s" % (v(AD + i), v(NX + 4 * i, 4)))
    if "p3" in OPT:
        prof_mark(k, 5)
    if "xn" in OPT:
        k("s_lshr_b32 %s, %s, 1" % (s(S_T), s(S_CT)))
        k("s_lshr_b32 %s, %s, 1" % (s(S_T2), s(S_W)))
        k("s_cmp_eq_u32 %s, %s" % (s(S_T), s(S_T2)))
        k("s_cbranch_scc0 %s_noxn%s" % (pre, ""))
        k("s_and_b32 %s, %s, 1" % (s(S_T), s(S_W)))
        k("s_lshl_b32 %s, %s, 1" % (s(S_T2), s(S_RB)))
        k("s_add_u32 %s, %s, %s" % (s(S_T), s(S_T), s(S_T2)))
        k("s_lshl_b32 %s, %s, 15" % (s(S_T), s(S_T)))
        k("s_lshl_b32 %s, %s, 12" % (s(S_T2), s(S_CT)))
        k("s_add_u32 %s, %s, %s" % (s(S_T), s(S_T), s(S_T2)))
        k("s_add_u32 %s, %s, 0x%x" % (s(S_T), s(S_T), WS_XN))
        k("v_lshlrev_b32 v3, 4, v0")
        k("s_bitcmp1_b32 %s, 0" % s(S_CT))
        k("s_cbranch_scc1 %s_xnhi%s" % (pre, ""))
        for i in range(4):
            k("buffer_store_dwordx4 %s, v3, %s, %s offen offset:%d" % (v(NX + 4 * i, 4), s(S_OD, 4), s(S_T), 1024 * i))
        k("s_branch %s_noxn%s" % (pre, ""))
        k.label("%s_xnhi%s" % (pre, ""))
        for i in range(4):
            k("buffer_store_dwordx4 %s, v3, %s, %s offen offset:%d" % (v(NX + 16 + 4 * i, 4), s(S_OD, 4), s(S_T), 1024 * i))
        k.label("%s_noxn%s" % (pre, ""))
    k("s_waitcnt lgkmcnt(0)")


def next_slot(k, r):
    k("s_add_u32 %s, %s, %d" % (s(r), s(r), SLOT))
    k("s_cmp_ge_u32 %s, %d" % (s(r), SLOTE))
    k("s_cselect_b32 %s, %d, %s" % (s(r), SLOT0, s(r)))


def wfrag_addr(k):
    t = ACC
    r, b, h, g, x, y = t, t + 1, t + 2, t + 3, t + 4, t + 5
    k("s_lshr_b32 %s, %s, 1" % (s(S_T), s(S_W)))
    k("v_bfe_u32 %s, v0, 2, 2" % v(r))
    k("v_and_b32 %s, 3, v0" % v(b))
    k("v_bfe_u32 %s, v0, 4, 1" % v(h))
    k("v_lshl_add_u32 %s, %s, 2, %s" % (v(b), v(h), v(b)))
    k("v_and_b32 %s, 1, %s" % (v(h), v(b)))
    k("v_lshrrev_b32 %s, 1, %s" % (v(g), v(b)))
    k("v_lshl_add_u32 %s, v2, 3, %s" % (v(x), v(r)))
    k("v_lshl_add_u32 %s, %s, 2, %s" % (v(b), v(h), v(g)))
    k("v_mul_u32_u24 %s, 384, %s" % (v(y), v(x)))
    k("v_lshl_add_u32 %s, %s, 3, %s" % (v(y), v(b), v(y)))
    k("v_lshrrev_b32 %s, 1, %s" % (v(b), v(r)))
    k("v_xor_b32 %s, %s, %s" % (v(b), s(S_T), v(b)))
    k("v_lshl_add_u32 %s, %s, 6, %s" % (v(VWQ), v(b), v(y)))
    k("v_lshrrev_b32 %s, 1, %s" % (v(b), v(g)))
    k("v_and_b32 %s, 1, %s" % (v(g), v(g)))
    k("v_lshl_add_u32 %s, %s, 1, %s" % (v(g), v(h), v(g)))
    k("v_lshl_add_u32 %s, %s, 2, %s" % (v(b), v(b), v(g)))
    k("v_lshlrev_b32 %s, 9, %s" % (v(y), v(x)))
    k("v_lshl_add_u32 %s, %s, 3, %s" % (v(y), v(b), v(y)))
    k("s_lshl_b32 %s, %s, 8" % (s(S_T), s(S_T)))
    k("v_add_u32 %s, %s, %s" % (v(y), s(S_T), v(y)))
    for ft in range(4):
        k("v_xor_b32 %s, %d, %s" % (v(b), ft, v(r)))
        k("v_lshl_add_u32 %s, %s, 6, %s" % (v(VWF + ft), v(b), v(y)))


def compute_phase(k, pre, F):
    q = F == 3
    RB = 384 if q else 512
    NA = 1 if q else 4
    base = VWQ if q else VWF
    p = pre + ("Q" if q else "F")

    def wa(par, ft):
        return VW2 + 4 * par + (0 if q else ft)

    def slot_ops(par):
        return ["v_add_u32 %s, %s, %s" % (v(VW2 + 4 * par + j), s(S_SLOT), v(base + j)) for j in range(NA)]

    def x_ops(st):
        return ["v_xor_b32 %s, %s, %s" % (v(VX), s(S_U), v(VA0))] if st == 0 else ["v_xor_b32 %s, 32, %s" % (v(VX), v(VX))]

    def u_ops():
        return ["s_lshl_b32 %s, %s, 6" % (s(S_U), s(S_KC))]

    def kc_next():
        return ["s_add_u32 %s, %s, 1" % (s(S_KC), s(S_KC)), "s_and_b32 %s, %s, 15" % (s(S_KC), s(S_KC))]

    def rd_x(buf):
        return ["ds_read_b128 %s, %s" % (v(XF[buf], 4), v(VX))]

    def rd_w(par, st, buf, ft):
        off = st * 16 * RB + (ft * 128 if q else 0)
        return ["ds_read_b64_tr_b16 %s, %s offset:%d" % (v(WF[buf] + 4 * ft + 2 * u, 2), v(wa(par, ft)), off + u * 4 * RB) for u in range(2)]

    def mfma(buf, ft):
        d = v(ACC + 16 * ft, 16)
        if q and ft == 2:
            k("v_mfma_f32_32x32x16_bf16 %s, %s, %s, %s" % (d, v(XF[buf], 4), v(WF[buf] + 4 * ft, 4), d))
        else:
            k("v_mfma_f32_32x32x16_bf16 %s, %s, %s, %s" % (d, v(WF[buf] + 4 * ft, 4), v(XF[buf], 4), d))

    k("s_mov_b32 %s, %s" % (s(S_KC), s(S_ROT)))
    for ins in u_ops() + slot_ops(0) + x_ops(0) + rd_x(0) + sum((rd_w(0, 0, 0, ft) for ft in range(F)), []) + x_ops(1):
        k(ins)
    k("s_mov_b32 %s, 0" % s(S_C))
    k(".p2align 3")
    k.label(p + "_loop")
    VXN = VX + 0
    for par in range(2):
        for st in range(2):
            b, nb = st, 1 - st
            npar = par if st == 0 else 1 - par
            for ft in range(F):
                newer = 2 * (F - 1 - ft) + (0 if ft == 0 else 1 + 2 * ft)
                k("s_waitcnt lgkmcnt(%d)" % newer)
                mfma(b, ft)
                if ft == 0:
                    if st == 1:
                        k("s_barrier")
                    for ins in rd_x(nb):
                        k(ins)
                for ins in rd_w(npar, 1 - st, nb, ft):
                    k(ins)
                if ft == 0:
                    if st == 0:
                        for ins in kc_next() + u_ops() + x_ops(0):
                            k(ins)
                    else:
                        for ins in x_ops(1):
                            k(ins)
                if st == 0 and ft == 1:
                    next_slot(k, S_SLOT)
                if st == 0 and ft == F - 1:
                    for ins in slot_ops(1 - par):
                        k(ins)
    k("s_add_u32 %s, %s, 1" % (s(S_C), s(S_C)))
    k("s_cmp_lt_u32 %s, 8" % s(S_C))
    k("s_cbranch_scc1 %s_loop" % p)
    k("s_waitcnt lgkmcnt(0)")


def epilogue_q(k):
    cq = 0.25 * LOG2E
    a1, a2, a3, t1, t2 = 12, 13, 14, 15, 16
    k("s_lshl_b32 %s, %s, 1" % (s(S_T2), s(S_RB)))
    k("s_and_b32 %s, %s, 1" % (s(S_T), s(S_W)))
    k("s_add_u32 %s, %s, %s" % (s(S_T2), s(S_T2), s(S_T)))
    k("s_lshl_b32 %s, %s, 2" % (s(S_T3), s(S_CT)))
    k("s_and_b32 %s, %s, 2" % (s(S_T), s(S_W)))
    k("s_add_u32 %s, %s, %s" % (s(S_T3), s(S_T3), s(S_T)))
    k("v_add_u32 %s, %s, v2" % (v(t1), s(S_T3)))
    k("v_lshlrev_b32 %s, 4, v1" % v(t2))
    k("v_lshl_add_u32 %s, %s, 16, %s" % (v(a1), v(t1), v(t2)))
    k("s_lshl_b32 %s, %s, 10" % (s(S_T), s(S_T2)))
    k("v_add_u32 %s, %s, %s" % (v(a1), s(S_T), v(a1)))
    k("v_lshl_add_u32 %s, %s, 17, %s" % (v(a2), v(t1), v(t2)))
    k("s_lshl_b32 %s, %s, 11" % (s(S_T), s(S_T2)))
    k("s_add_u32 %s, %s, 0x%x" % (s(S_T), s(S_T), WS_KV))
    k("v_add_u32 %s, %s, %s" % (v(a2), s(S_T), v(a2)))
    k("v_bfe_u32 %s, v1, 2, 1" % v(t1))
    k("v_lshrrev_b32 %s, 3, v1" % v(t2))
    k("v_and_b32 %s, 3, v1" % v(a3))
    k("v_and_b32 v17, 1, %s" % v(t2))
    k("v_lshrrev_b32 %s, 1, %s" % (v(t2), v(t2)))
    k("v_lshl_add_u32 %s, %s, 2, %s" % (v(a3), v(t2), v(a3)))
    k("v_lshl_add_u32 %s, v17, 3, %s" % (v(a3), v(a3)))
    k("v_lshlrev_b32 %s, 4, %s" % (v(a3), v(a3)))
    k("v_add_u32 %s, %s, %s" % (v(t1), s(S_T3), v(t1)))
    k("v_lshl_add_u32 %s, %s, 17, %s" % (v(a3), v(t1), v(a3)))
    k("v_lshl_add_u32 %s, v2, 8, %s" % (v(a3), v(a3)))
    k("s_add_u32 %s, %s, 1024" % (s(S_T), s(S_T)))
    k("v_add_u32 %s, %s, %s" % (v(a3), s(S_T), v(a3)))
    sc = " sc1" if "sc1" in OPT else (" nt" if "nt" in OPT else "")
    for ft, dst in ((1, a2), (2, a3), (0, a1)):
        A = ACC + 16 * ft
        if ft == 0:
            for r in range(16):
                k("v_mul_f32 %s, 0x%x, %s" % (v(A + r), f2u(cq), v(A + r)))
        for r in range(8):
            k("v_cvt_pk_bf16_f32 %s, %s, %s" % (v(A + r), v(A + 2 * r), v(A + 2 * r + 1)))
        k("buffer_store_dwordx4 %s, %s, %s, 0 offen%s" % (v(A, 4), v(dst), s(S_OD, 4), sc))
        k("buffer_store_dwordx4 %s, %s, %s, 0 offen offset:512%s" % (v(A + 4, 4), v(dst), s(S_OD, 4), sc))


def epilogue_f(k):
    a1 = 12
    k("s_lshl_b32 %s, %s, 1" % (s(S_T2), s(S_RB)))
    k("s_and_b32 %s, %s, 1" % (s(S_T), s(S_W)))
    k("s_add_u32 %s, %s, %s" % (s(S_T2), s(S_T2), s(S_T)))
    k("s_mul_i32 %s, %s, %d" % (s(S_T), s(S_T2), WS_HO_ROW))
    k("s_lshl_b32 %s, %s, 14" % (s(S_T3), s(S_CT)))
    k("s_add_u32 %s, %s, %s" % (s(S_T), s(S_T), s(S_T3)))
    k("s_lshr_b32 %s, %s, 1" % (s(S_T3), s(S_W)))
    k("s_lshl_b32 %s, %s, 13" % (s(S_T3), s(S_T3)))
    k("s_add_u32 %s, %s, %s" % (s(S_T), s(S_T), s(S_T3)))
    k("s_add_u32 %s, %s, 0x%x" % (s(S_T), s(S_T), WS_HO))
    k("v_lshlrev_b32 %s, 4, v0" % v(a1))
    k("v_add_u32 %s, %s, %s" % (v(a1), s(S_T), v(a1)))
    B = WF[0]
    for ft in range(4):
        A = ACC + 16 * ft
        for r in range(16):
            k("v_max_f32 %s, 0, %s" % (v(B + r), v(A + r)))
        for r in range(16):
            k("v_mul_f32 %s, %s, %s" % (v(A + r), v(A + r), v(B + r)))
        for r in range(8):
            k("v_cvt_pk_bf16_f32 %s, %s, %s" % (v(A + r), v(A + 2 * r), v(A + 2 * r + 1)))
        sc = " sc1" if "sc1" in OPT else (" nt" if "nt" in OPT else "")
        k("buffer_store_dwordx4 %s, %s, %s, 0 offen offset:%d%s" % (v(A, 4), v(a1), s(S_OD, 4), 2048 * (ft & 1), sc))
        k("buffer_store_dwordx4 %s, %s, %s, 0 offen offset:%d%s" % (v(A + 4, 4), v(a1), s(S_OD, 4), 2048 * (ft & 1) + 1024, sc))
        if ft == 1:
            k("v_add_u32 %s, 4096, %s" % (v(a1), v(a1)))


def compute(k, pre, ffn):
    wfrag_addr(k)
    k("s_and_b32 %s, %s, 1" % (s(S_T2), s(S_W)))
    xaddr_base(k, S_T2)
    for j in range(48):
        k("v_mov_b32 %s, 0" % v(ACC + j))
    k("s_mov_b32 %s, %d" % (s(S_SLOT), SLOT0))
    k("s_setprio 2")
    k("s_barrier")
    if "p3" not in OPT:
        prof_mark(k, 4 if "p2" not in OPT else 2)
    compute_phase(k, pre, 3)
    if "p2" in OPT:
        prof_mark(k, 3)
    k("s_nop 7")
    epilogue_q(k)
    if ffn:
        k("s_cmp_eq_u32 %s, 7" % s(S_CT))
        k("s_cbranch_scc1 %s_cdone" % pre)
        k("s_lshr_b32 %s, %s, 1" % (s(S_T), s(S_W)))
        k("s_lshl_b32 %s, %s, 9" % (s(S_T), s(S_T)))
        k("s_add_u32 %s, %s, %d" % (s(S_T), s(S_T), L_BI))
        k("v_lshl_add_u32 v3, v2, 4, %s" % s(S_T))
        for ft in range(4):
            for g in range(4):
                k("ds_read_b128 %s, v3 offset:%d" % (v(ACC + 16 * ft + 4 * g, 4), ft * 128 + g * 32))
        k("s_waitcnt lgkmcnt(0)")
        if "p2" in OPT:
            prof_mark(k, 4)
        compute_phase(k, pre, 4)
        if "p2" in OPT:
            prof_mark(k, 5)
        k("s_nop 7")
        epilogue_f(k)
        k.label(pre + "_cdone")


class Groups:
    def __init__(self):
        self.groups = [[]]

    def __call__(self, txt):
        self.groups[-1].append(txt)
        if txt.startswith("buffer_load"):
            self.groups.append([])


def issue_chunk(k, q, c):
    n = 3 if q else 4
    wrow = 3072 if q else 3584
    k("s_add_u32 m0, %s, %d" % (s(S_LD3 if q else S_LD4), SLOT0 + (c % R) * SLOT))
    if not q:
        k("s_mov_b32 %s, %s" % (s(S_T2), s(S_WO)))
    else:
        k("s_nop 0")
    for i in range(n):
        k("buffer_load_dwordx4 %s, %s, %s offen lds" % (v(VQO + i) if q else v(VFO + (i & 1)), s(S_WD, 4), s(S_WO if q else S_T2)))
        if i < n - 1:
            k("s_add_u32 m0, m0, 1024")
            if q:
                k("s_nop 0")
            else:
                k("s_add_u32 %s, %s, %d" % (s(S_T2), s(S_T2), 2 * wrow))
    k("s_add_u32 %s, %s, %d" % (s(S_WO), s(S_WO), 32 * wrow))
    k("s_cmp_ge_u32 %s, %s" % (s(S_WO), s(S_WEND)))
    k("s_cselect_b32 %s, %d, 0" % (s(S_T), 512 * wrow))
    k("s_sub_u32 %s, %s, %s" % (s(S_WO), s(S_WO), s(S_T)))


def phase_base(k, q):
    wrow = 3072 if q else 3584
    k("s_mul_i32 %s, %s, %d" % (s(S_WO), s(S_LD), 8 * wrow))
    k("s_lshl_b32 %s, %s, %d" % (s(S_T), s(S_CT), 7 if q else 9))
    k("s_add_u32 %s, %s, %s" % (s(S_WO), s(S_WO), s(S_T)))
    k("s_add_u32 %s, %s, %d" % (s(S_WEND), s(S_WO), 512 * wrow))
    k("s_mul_i32 %s, %s, %d" % (s(S_T), s(S_ROT), 32 * wrow))
    k("s_add_u32 %s, %s, %s" % (s(S_WO), s(S_WO), s(S_T)))


def loader_pre(k, pre, ffn):
    k("s_setprio 3")
    k("s_sub_u32 %s, %s, 4" % (s(S_LD), s(S_W)))
    k("s_mov_b32 %s, 0x%x" % (s(S_T), (2 ** 32 + 383) // 384))
    for j in range(3):
        k("v_lshlrev_b32 v12, 4, v0")
        k("v_add_u32 v12, %d, v12" % (1024 * j))
        k("v_mul_hi_u32 v13, v12, %s" % s(S_T))
        k("v_mul_u32_u24 v14, 384, v13")
        k("v_sub_u32 v14, v12, v14")
        k("v_lshrrev_b32 v15, 7, v14")
        k("v_and_b32 v14, 127, v14")
        k("v_bfe_u32 v12, v13, 1, 1")
        k("v_lshlrev_b32 v12, 6, v12")
        k("v_xor_b32 v14, v14, v12")
        k("v_mul_u32_u24 v13, 3072, v13")
        k("v_lshl_add_u32 v13, v15, 10, v13")
        k("v_add_u32 %s, v13, v14" % v(VQO + j))
    k("s_mul_i32 %s, %s, 3072" % (s(S_LD3), s(S_LD)))
    k("s_lshl_b32 %s, %s, 12" % (s(S_LD4), s(S_LD)))
    phase_base(k, True)
    issue_chunk(k, True, 0)
    issue_chunk(k, True, 1)
    for p_ in range(2):
        k("v_lshrrev_b32 v12, 5, v0")
        k("v_add_u32 v12, %d, v12" % (2 * p_))
        k("v_bfe_u32 v13, v0, 2, 3")
        k("v_xor_b32 v13, v13, v12")
        k("v_lshlrev_b32 v13, 6, v13")
        k("v_and_b32 v14, 3, v0")
        k("v_lshl_add_u32 v13, v14, 4, v13")
        k("v_lshrrev_b32 v12, 5, v0")
        k("v_mul_u32_u24 v12, 3584, v12")
        k("v_add_u32 %s, v12, v13" % v(VFO + p_))
    if ffn:
        k("v_lshrrev_b32 v12, 3, v1")
        k("v_bfe_u32 v13, v1, 2, 1")
        k("v_and_b32 v14, 3, v1")
        k("v_lshrrev_b32 v15, 1, v12")
        k("v_and_b32 v12, 1, v12")
        k("v_lshl_add_u32 v14, v12, 2, v14")
        k("v_lshl_add_u32 v14, v13, 3, v14")
        k("v_lshl_add_u32 v14, v15, 4, v14")
        k("v_lshl_add_u32 v14, v2, 5, v14")
        k("s_lshl_b32 %s, %s, 8" % (s(S_T), s(S_CT)))
        k("s_lshl_b32 %s, %s, 6" % (s(S_T2), s(S_LD)))
        k("s_add_u32 %s, %s, %s" % (s(S_T), s(S_T), s(S_T2)))
        k("v_add_u32 v14, %s, v14" % s(S_T))
        k("v_lshlrev_b32 v14, 1, v14")
        k("v_min_u32 v14, 3582, v14")
        k("global_load_ushort v11, v14, %s" % s(S_B1, 2))


def loader_post(k, pre, ffn):
    k("s_waitcnt vmcnt(%d)" % (6 if ffn else 9))
    if ffn:
        k("v_lshlrev_b32 v11, 16, v11")
        k("s_lshl_b32 %s, %s, 8" % (s(S_T), s(S_LD)))
        k("s_add_u32 %s, %s, %d" % (s(S_T), s(S_T), L_BI))
        k("v_lshl_add_u32 v12, v0, 2, %s" % s(S_T))
        k("ds_write_b32 v12, v11")
        k("s_waitcnt lgkmcnt(0)")
    k("s_barrier")
    k("s_setprio 1")

    def n_of(c):
        return 3 if c < 16 else 4

    def schedule(first, last, total):
        for c in range(first, last + 1):
            younger = sum(n_of(j) for j in (c + 1, c + 2) if j < total)
            k("s_waitcnt vmcnt(%d)" % younger)
            k("s_barrier")
            if c + 3 < total:
                if c + 3 == 16:
                    k.srd(S_WD, S_W1, 512 * 3584)
                    phase_base(k, False)
                issue_chunk(k, c + 3 < 16, c + 3)

    if ffn:
        k("s_cmp_eq_u32 %s, 7" % s(S_CT))
        k("s_cbranch_scc1 %s_lq" % pre)
        schedule(1, 32, 32)
        k("s_branch %s_lend" % pre)
        k.label(pre + "_lq")
    schedule(1, 16, 16)
    k.label(pre + "_lend")
    if "w1pf" in OPT:
        k.srd(S_WD, S_W1, 512 * 3584)
        k("s_lshr_b32 %s, s2, 3" % s(S_T))
        k("s_lshl_b32 %s, %s, 2" % (s(S_T), s(S_T)))
        k("s_add_u32 %s, %s, %s" % (s(S_T), s(S_T), s(S_LD)))
        k("s_mul_i32 %s, %s, %d" % (s(S_T), s(S_T), 4 * 3584))
        k("v_lshlrev_b32 v12, 4, v0")
        for j in range(14):
            k("buffer_load_dwordx4 v[16:19], v12, %s, %s offen" % (s(S_WD, 4), s(S_T)))
            k("s_add_u32 %s, %s, 1024" % (s(S_T), s(S_T)))


def finish(k):
    k("s_waitcnt vmcnt(0)")
    stamp(k, 1, S_WS, S_W)
    if "p2" not in OPT and "p3" not in OPT:
        prof_mark(k, 5)
    prof_rt(k, 6)
    prof_store(k, S_WS, S_W, 28)
    k("s_endpgm")


def gen(k, name, pre, ffn=True):
    k.kernel_begin(name)
    entry(k, pre, name)
    k("s_branch %s_norm" % pre)
    k.label(pre + "_loader")
    loader_pre(k, pre, ffn)
    k.label(pre + "_norm")
    g = Groups()
    issue_chunk(g, True, 2)
    issue_chunk(g, True, 3)
    normalise(k, pre, g.groups, 6 + (1 if ffn else 0))
    k("s_cmp_ge_u32 %s, 4" % s(S_W))
    k("s_cbranch_scc1 %s_lpost" % pre)
    compute(k, pre, ffn)
    finish(k)
    k.label(pre + "_lpost")
    loader_post(k, pre, ffn)
    if "w1pf" in OPT and not common.PROF:
        k("s_endpgm")
    finish(k)
    k.label(pre + "_exit")
    k.kernel_end(name, NV, NV)
    return 256, LDS_BYTES
```

```python
import common
from common import *

SA, SB, CI, P, KF, VF0, VF1, QF, OA = 16, 32, 48, 64, 72, 76, 80, 84, 96
V_LANE16, V_CUR, V_NXT, V_KOFF, V_VOFF, V_T0, V_T1, V_OOFF = 1, 2, 3, 4, 5, 6, 7, 8
SLOT = 24576
TILE = 3072
BIAS = 96.0
ONES = 0x3F803F80

S_WS, S_KV, S_HOS, S_W, S_HEAD, S_QB, S_T, S_C, S_SLOT, S_VM, S_TILE = 4, 8, 12, 16, 17, 18, 19, 20, 21, 22, 24
S_QS = 28
S_NSLOT = 32
S_DBG = 34
S_W2P, S_W2D, S_PFO = 36, 40, 44


OPT = set()


def mfma(k, d, A, B, C):
    k("v_mfma_f32_32x32x16_bf16 %s, %s, %s, %s" % (v(d, 16), v(A, 4), v(B, 4), C if isinstance(C, str) else v(C, 16)))


def dma_chunk(k):
    k("s_mul_i32 %s, %s, %d" % (s(S_T), s(S_W), TILE))
    k("s_add_u32 %s, %s, %s" % (s(S_T), s(S_T), s(S_NSLOT)))
    k("s_mov_b32 m0, %s" % s(S_T))
    k("s_lshl_b32 %s, %s, 11" % (s(S_T + 0), s(S_TILE)))
    k("buffer_load_dwordx4 %s, %s, %s offen lds" % (v(V_KOFF), s(S_KV, 4), s(S_T)))
    k("s_add_u32 m0, m0, 1024")
    k("s_mov_b64 exec, %s" % s(S_VM, 2))
    k("buffer_load_dwordx4 %s, %s, %s offen lds" % (v(V_VOFF), s(S_KV, 4), s(S_T)))
    k("s_add_u32 m0, m0, 512")
    k("s_nop 0")
    k("buffer_load_dwordx4 %s, %s, %s offen offset:512 lds" % (v(V_VOFF), s(S_KV, 4), s(S_T)))
    k("s_mov_b64 exec, -1")


KF2, VF02, VF12 = [KF, 88], [VF0, 92], [VF1, 112]


def tile_body2(k, i, cur, nxt):
    p, q = i & 1, (i + 1) & 1

    def e(j):
        k("v_exp_f32 %s, %s" % (v(cur + j), v(cur + j)))

    def c(j):
        k("v_cvt_pk_bf16_f32 %s, %s, %s" % (v(P + j), v(cur + 2 * j), v(cur + 2 * j + 1)))

    def rd(dst, tile, part):
        base = V_CUR if tile < 8 else V_NXT
        k("ds_read_b128 %s, %s offset:%d" % (v(dst, 4), v(base), (tile % 8) * TILE + part * 1024))

    k("s_waitcnt lgkmcnt(0)")
    mfma(k, nxt, KF2[p], QF, CI)
    rd(VF12[q], i, 2)
    e(0); e(1)
    rd(VF02[q], i + 1, 1)
    e(2); e(3)
    mfma(k, OA, VF12[p], P + 4, OA)
    rd(KF2[q], i + 2, 0)
    c(0); e(4); e(5); c(1); e(6); e(7); c(2); e(8); c(3); e(9); e(10)
    mfma(k, OA, VF02[p], P, OA)
    e(11); c(4); e(12); e(13); c(5); e(14); e(15); c(6); c(7)


def tile_body(k, i, cur, nxt):
    def e(j):
        if "expsep" in OPT:
            k("v_exp_f32 %s, %s" % (v(96 + j), v(cur + j)))
        else:
            k("v_exp_f32 %s, %s" % (v(cur + j), v(cur + j)))

    def c(j):
        k("v_cvt_pk_bf16_f32 %s, %s, %s" % (v(P + j), v(cur + 2 * j), v(cur + 2 * j + 1)))

    def rd(dst, tile, part):
        if "nolds" in OPT:
            return
        base = V_CUR if tile < 8 else V_NXT
        k("ds_read_b128 %s, %s offset:%d" % (v(dst, 4), v(base), (tile % 8) * TILE + part * 1024))

    def w():
        if "nowait" not in OPT:
            k("s_waitcnt lgkmcnt(2)")

    w()
    if "noqk" not in OPT:
        mfma(k, nxt, KF, QF, CI)
    rd(KF, i + 2, 0)
    e(0); e(1); e(2); e(3)
    w()
    if "nopv" not in OPT:
        mfma(k, OA, VF1, P + 4, OA)
    rd(VF1, i, 2)
    c(0); e(4); e(5); c(1); e(6); e(7); c(2); e(8); c(3); e(9); e(10)
    w()
    if "nopv" not in OPT:
        mfma(k, OA, VF0, P, OA)
    rd(VF0, i + 1, 1)
    e(11); c(4); e(12); e(13); c(5); e(14); e(15); c(6); c(7)


def gen_attn(k, name, standalone=True, second_role=None):
    if standalone:
        k.kernel_begin(name)
        k("s_cmp_ge_u32 s2, %d" % (512 if second_role else 256))
        k("s_cbranch_scc1 L_attn_exit")
        prof_start(k)
        if second_role:
            k("s_cmp_ge_u32 s2, 256")
            k("s_cbranch_scc1 L_attn_role2")
        if "noattn" in OPT:
            k("s_endpgm")
        k("s_load_dwordx2 %s, s[0:1], %d" % (s(S_WS, 2), KA_WS))
        k("s_load_dwordx2 %s, s[0:1], %d" % (s(S_DBG, 2), KA_DBG))
        if "w2pf" in OPT:
            k("s_load_dwordx2 %s, s[0:1], %d" % (s(S_W2P, 2), KA_W2))
    k("s_and_b32 %s, s2, 7" % s(S_HEAD))
    k("s_lshl_b32 %s, %s, 2" % (s(S_HEAD), s(S_HEAD)))
    k("s_lshr_b32 %s, s2, 3" % s(S_T))
    k("s_and_b32 %s, %s, 3" % (s(S_T), s(S_T)))
    k("s_add_u32 %s, %s, %s" % (s(S_HEAD), s(S_HEAD), s(S_T)))
    k("s_lshr_b32 %s, s2, 5" % s(S_QB))
    k("v_lshrrev_b32 %s, 6, v0" % v(V_T0))
    k("v_and_b32 v0, 63, v0")
    k("v_readfirstlane_b32 %s, %s" % (s(S_W), v(V_T0)))
    k("v_lshlrev_b32 %s, 4, v0" % v(V_LANE16))
    k("v_mov_b32 %s, %s" % (v(V_KOFF), v(V_LANE16)))
    k("v_lshrrev_b32 %s, 5, v0" % v(V_T0))
    k("v_lshlrev_b32 %s, 8, %s" % (v(V_T0), v(V_T0)))
    k("v_and_b32 %s, 15, v0" % v(V_T1))
    k("v_lshlrev_b32 %s, 4, %s" % (v(V_T1), v(V_T1)))
    k("v_add3_u32 %s, %s, %s, 0" % (v(V_VOFF), v(V_T0), v(V_T1)))
    k("v_add_u32 %s, 1024, %s" % (v(V_VOFF), v(V_VOFF)))
    k("s_mov_b32 %s, 0x0000ffff" % s(S_VM))
    k("s_mov_b32 %s, 0x0000ffff" % s(S_VM + 1))
    k("s_waitcnt lgkmcnt(0)")
    stamp(k, 2, S_WS, S_W)
    k("s_lshl_b32 %s, %s, 17" % (s(S_T), s(S_HEAD)))
    k("s_add_u32 %s, %s, %s" % (s(S_KV), s(S_WS), s(S_T)))
    k("s_addc_u32 %s, %s, 0" % (s(S_KV + 1), s(S_WS + 1)))
    k("s_add_u32 %s, %s, 0x%x" % (s(S_KV), s(S_KV), WS_KV))
    k("s_addc_u32 %s, %s, 0" % (s(S_KV + 1), s(S_KV + 1)))
    k("s_and_b32 %s, %s, 0xffff" % (s(S_KV + 1), s(S_KV + 1)))
    k("s_mov_b32 %s, 0x20000" % s(S_KV + 2))
    k("s_mov_b32 %s, 0x20000" % s(S_KV + 3))
    if "w2pf" in OPT:
        k.srd(S_W2D, S_W2P, 1792 * 1024)
        k("s_lshr_b32 %s, s2, 3" % s(S_PFO))
        k("s_mul_i32 %s, %s, %d" % (s(S_PFO), s(S_PFO), 56 * 1024))
        k("s_lshl_b32 %s, %s, 11" % (s(S_T), s(S_W)))
        k("s_add_u32 %s, %s, %s" % (s(S_PFO), s(S_PFO), s(S_T)))
    k("s_mov_b32 %s, %s" % (s(S_TILE), s(S_W)))
    k("s_mov_b32 %s, 0" % s(S_NSLOT))
    dma_chunk(k)
    k.srd(S_HOS, S_WS, WS_END)
    k("s_lshl_b32 %s, %s, 6" % (s(S_T), s(S_HEAD)))
    k("s_lshl_b32 %s, %s, 3" % (s(S_QS), s(S_QB)))
    k("s_add_u32 %s, %s, %s" % (s(S_QS), s(S_QS), s(S_W)))
    k("s_add_u32 %s, %s, %s" % (s(S_T), s(S_T), s(S_QS)))
    k("s_lshl_b32 %s, %s, 10" % (s(S_T), s(S_T)))
    k("buffer_load_dwordx4 %s, %s, %s, %s offen" % (v(QF, 4), v(V_LANE16), s(S_HOS, 4), s(S_T)))
    k("s_mul_i32 %s, %s, 144" % (s(S_QS), s(S_QS)))
    k("s_add_u32 %s, %s, %s" % (s(S_QS), s(S_QS), s(S_HEAD)))
    k("s_add_u32 %s, %s, 112" % (s(S_QS), s(S_QS)))
    k("s_lshl_b32 %s, %s, 10" % (s(S_QS), s(S_QS)))
    k("s_add_u32 %s, %s, 0x%x" % (s(S_QS), s(S_QS), WS_HO))
    k("v_mov_b32 %s, 0x%x" % (v(P), ONES))
    k("v_mov_b32 %s, 0x%x" % (v(P + 1), ONES))
    k("v_mov_b32 %s, 0x%x" % (v(P + 2), ONES))
    k("v_mov_b32 %s, 0x%x" % (v(P + 3), ONES))
    k("s_mul_i32 %s, %s, %d" % (s(S_T), s(S_W), TILE))
    k("v_add_u32 %s, %s, %s" % (v(V_T0), s(S_T), v(V_LANE16)))
    if "zeropad" in OPT:
        k("v_and_b32 %s, 27, v0" % v(V_T1))
        k("v_cmp_eq_u32 vcc, 16, %s" % v(V_T1))
        k("s_nop 1")
        for j in range(4):
            k("v_cndmask_b32 %s, 0, %s, vcc" % (v(P + j), v(P + j)))
    k("s_mov_b32 exec_lo, 0xffff0000")
    k("s_mov_b32 exec_hi, 0xffff0000")
    for slot in range(3):
        for part in (1, 2):
            k("ds_write_b128 %s, %s offset:%d" % (v(V_T0), v(P, 4), slot * SLOT + part * 1024))
    k("s_mov_b64 exec, -1")
    if "late1" not in OPT:
        k("s_add_u32 %s, %s, 8" % (s(S_TILE), s(S_TILE)))
        k("s_mov_b32 %s, %d" % (s(S_NSLOT), SLOT))
        dma_chunk(k)
        k("s_waitcnt vmcnt(3) lgkmcnt(0)")
    else:
        k("s_waitcnt vmcnt(0) lgkmcnt(0)")
    k("s_barrier")
    prof_mark(k, 2)
    bufs = (SA, SB, CI, OA)
    frs = (KF, VF0, VF1, P)
    for t in range(4):
        k("ds_read_b128 %s, %s offset:%d" % (v(frs[t], 4), v(V_LANE16), t * TILE))
    for t in range(4):
        k("s_waitcnt lgkmcnt(%d)" % (3 - t))
        mfma(k, bufs[t], frs[t], QF, "0")
    k("ds_read_b128 %s, %s offset:%d" % (v(KF, 4), v(V_LANE16), 0))
    k("s_nop 7")
    m = V_T0
    k("v_max3_f32 %s, %s, %s, %s" % (v(m), v(SA), v(SA + 1), v(SA + 2)))
    regs = [SA + j for j in range(3, 16)] + [SB + j for j in range(16)]
    for j in range(0, len(regs) - 1, 2):
        k("v_max3_f32 %s, %s, %s, %s" % (v(m), v(m), v(regs[j]), v(regs[j + 1])))
    k("v_max_f32 %s, %s, %s" % (v(m), v(m), v(regs[-1])))
    regs = [CI + j for j in range(16)] + [OA + j for j in range(16)]
    for j in range(0, 32, 2):
        k("v_max3_f32 %s, %s, %s, %s" % (v(m), v(m), v(regs[j]), v(regs[j + 1])))
    k("v_mov_b32 %s, %s" % (v(V_T1), v(m)))
    k("s_nop 1")
    k("v_permlane32_swap_b32 %s, %s" % (v(V_T1), v(m)))
    k("s_nop 1")
    k("v_max_f32 %s, %s, %s" % (v(m), v(m), v(V_T1)))
    k("v_add_f32 %s, 0x%x, %s" % (v(m), f2u(BIAS), v(m)))
    for j in range(16):
        k("v_sub_f32 %s, 0, %s" % (v(CI + j), v(m)))
    for j in range(16):
        k("v_mov_b32 %s, 0" % v(OA + j))
    for j in range(4):
        k("v_mov_b32 %s, 0" % v(P + 4 + j))
        k("v_mov_b32 %s, 0" % v(VF1 + j))
    k("s_waitcnt lgkmcnt(0)")
    mfma(k, SA, KF, QF, CI)
    k("ds_read_b128 %s, %s offset:%d" % (v(KF, 4), v(V_LANE16), TILE))
    k("ds_read_b128 %s, %s offset:%d" % (v(VF0, 4), v(V_LANE16), 1024))
    k("v_mov_b32 %s, %s" % (v(V_CUR), v(V_LANE16)))
    k("v_add_u32 %s, %d, %s" % (v(V_NXT), SLOT, v(V_LANE16)))
    if "late1" in OPT:
        k("s_add_u32 %s, %s, 8" % (s(S_TILE), s(S_TILE)))
        k("s_mov_b32 %s, %d" % (s(S_NSLOT), SLOT))
        dma_chunk(k)
    k("s_mov_b32 %s, 0" % s(S_C))
    k("s_mov_b32 %s, %d" % (s(S_NSLOT), 2 * SLOT))
    k("s_waitcnt lgkmcnt(0)")
    k("s_nop 7")
    prof_mark(k, 3)
    k(".p2align 6")
    k.label("L_attn_chunk")
    for i in range(8):
        if i == 4:
            k("s_waitcnt vmcnt(0)")
            if "nobar" not in OPT:
                k("s_barrier")
            k("s_cmp_ge_u32 %s, 6" % s(S_C))
            k("s_cbranch_scc1 L_attn_nodma")
            k("s_add_u32 %s, %s, 8" % (s(S_TILE), s(S_TILE)))
            if "nodma" not in OPT:
                dma_chunk(k)
            if "w2pf" in OPT:
                k("s_cmp_ge_u32 %s, 4" % s(S_C))
                k("s_cbranch_scc1 L_attn_nodma")
                k("buffer_load_dwordx4 v[116:119], %s, %s, %s offen" % (v(V_LANE16), s(S_W2D, 4), s(S_PFO)))
                k("buffer_load_dwordx4 v[116:119], %s, %s, %s offen offset:1024" % (v(V_LANE16), s(S_W2D, 4), s(S_PFO)))
                k("s_add_u32 %s, %s, 16384" % (s(S_PFO), s(S_PFO)))
            k.label("L_attn_nodma")
        if "prio2" in OPT and i % 2 == 0:
            k("s_setprio %d" % (3 - ((i - 4) % 8) // 2))
        if "prio3" in OPT and ((i - 4) % 8) in (0, 3, 6):
            k("s_setprio %d" % {0: 2, 3: 1, 6: 0}[(i - 4) % 8])
        if "prio1" in OPT:
            k("s_setprio %d" % (3 - ((i - 4) % 4)))
        if "prio1" in OPT and "bar4" in OPT and i == 0:
            k("s_barrier")
        (tile_body2 if "onewait" in OPT else tile_body)(k, i, SA if i % 2 == 0 else SB, SB if i % 2 == 0 else SA)
    k("v_mov_b32 %s, %s" % (v(V_CUR), v(V_NXT)))
    k("v_add_u32 %s, %s, %s" % (v(V_NXT), s(S_NSLOT), v(V_LANE16)))
    k("s_add_u32 %s, %s, %d" % (s(S_NSLOT), s(S_NSLOT), SLOT))
    k("s_cmp_ge_u32 %s, %d" % (s(S_NSLOT), 3 * SLOT))
    k("s_cselect_b32 %s, 0, %s" % (s(S_NSLOT), s(S_NSLOT)))
    k("s_add_u32 %s, %s, 1" % (s(S_C), s(S_C)))
    k("s_cmp_lt_u32 %s, 8" % s(S_C))
    k("s_cbranch_scc1 L_attn_chunk")
    k("s_waitcnt lgkmcnt(0)")
    prof_mark(k, 4)
    mfma(k, OA, VF1, P + 4, OA)
    k("s_nop 15")
    t = V_T0
    k("v_mul_f32 %s, 0, %s" % (v(t), v(OA)))
    for j in range(1, 8):
        k("v_fma_f32 %s, %s, 0, %s" % (v(t), v(OA + j), v(t)))
    k("s_mov_b32 %s, 0x%x" % (s(S_T), f2u(2.0 ** 100)))
    k("v_cmp_ngt_f32 vcc, %s, %s" % (s(S_T), v(OA + 8)))
    k("v_cmp_u_f32 %s, %s, %s" % (s(S_C, 2), v(t), v(t)))
    k("s_nop 1")
    k("s_or_b64 vcc, vcc, %s" % s(S_C, 2))
    k("s_cbranch_vccnz L_attn_slow")
    k.label("L_attn_fin")
    k("v_rcp_f32 %s, %s" % (v(t), v(OA + 8)))
    k("s_nop 0")
    for j in range(8):
        k("v_mul_f32 %s, %s, %s" % (v(OA + j), v(OA + j), v(t)))
    for j in range(4):
        k("v_cvt_pk_bf16_f32 %s, %s, %s" % (v(P + j), v(OA + 2 * j), v(OA + 2 * j + 1)))
    if "tagged" in OPT:
        k("buffer_store_dwordx4 %s, %s, %s, %s offen sc1" % (v(P, 4), v(V_LANE16), s(S_HOS, 4), s(S_QS)))
    elif "signal" in OPT:
        k("buffer_store_dwordx4 %s, %s, %s, %s offen sc1" % (v(P, 4), v(V_LANE16), s(S_HOS, 4), s(S_QS)))
        k("s_lshl_b32 %s, %s, 3" % (s(S_T), s(S_QB)))
        k("s_add_u32 %s, %s, %s" % (s(S_T), s(S_T), s(S_W)))
        k("s_lshl_b32 %s, %s, 5" % (s(S_T), s(S_T)))
        k("s_add_u32 %s, %s, %s" % (s(S_T), s(S_T), s(S_HEAD)))
        k("s_lshl_b32 %s, %s, 2" % (s(S_T), s(S_T)))
        k("s_add_u32 %s, %s, 0x%x" % (s(S_T), s(S_T), WS_FLAG + FLAG_O))
        k("v_mov_b32 %s, %s" % (v(V_T0), s(S_T)))
        k("v_mov_b32 %s, 1" % v(V_T1))
        k("s_waitcnt vmcnt(0)")
        k("s_mov_b64 exec, 1")
        k("global_store_dword %s, %s, %s sc1" % (v(V_T0), v(V_T1), s(S_WS, 2)))
        k("s_mov_b64 exec, -1")
        k.label("L_attn_nosig")
    else:
        k("buffer_store_dwordx4 %s, %s, %s, %s offen" % (v(P, 4), v(V_LANE16), s(S_HOS, 4), s(S_QS)))
    k("s_waitcnt vmcnt(0)")
    stamp(k, 3, S_WS, S_W)
    prof_mark(k, 5)
    prof_rt(k, 6)
    prof_store(k, S_WS, S_W, 16)
    k("s_endpgm")
    k.label("L_attn_slow")
    k("v_mov_b32 %s, 0xff800000" % v(m))
    k("s_mov_b32 %s, 0" % s(S_C))
    k.label("L_attn_slow_max")
    k("buffer_load_dwordx4 %s, %s, %s, %s offen" % (v(KF, 4), v(V_KOFF), s(S_KV, 4), s(S_C)))
    k("s_waitcnt vmcnt(0)")
    mfma(k, SA, KF, QF, "0")
    k("s_nop 15")
    for j in range(0, 16, 2):
        k("v_max3_f32 %s, %s, %s, %s" % (v(m), v(m), v(SA + j), v(SA + j + 1)))
    k("s_add_u32 %s, %s, 2048" % (s(S_C), s(S_C)))
    k("s_cmp_lt_u32 %s, 0x20000" % s(S_C))
    k("s_cbranch_scc1 L_attn_slow_max")
    k("v_mov_b32 %s, %s" % (v(V_T1), v(m)))
    k("s_nop 1")
    k("v_permlane32_swap_b32 %s, %s" % (v(V_T1), v(m)))
    k("s_nop 1")
    k("v_max_f32 %s, %s, %s" % (v(m), v(m), v(V_T1)))
    for j in range(16):
        k("v_sub_f32 %s, 0, %s" % (v(CI + j), v(m)))
        k("v_mov_b32 %s, 0" % v(OA + j))
    for j in range(4):
        k("v_mov_b32 %s, 0x%x" % (v(VF0 + j), ONES))
        k("v_mov_b32 %s, 0x%x" % (v(VF1 + j), ONES))
    k("s_mov_b32 %s, 0" % s(S_C))
    k.label("L_attn_slow_pv")
    k("buffer_load_dwordx4 %s, %s, %s, %s offen" % (v(KF, 4), v(V_KOFF), s(S_KV, 4), s(S_C)))
    k("s_mov_b64 exec, %s" % s(S_VM, 2))
    k("buffer_load_dwordx4 %s, %s, %s, %s offen" % (v(VF0, 4), v(V_VOFF), s(S_KV, 4), s(S_C)))
    k("buffer_load_dwordx4 %s, %s, %s, %s offen offset:512" % (v(VF1, 4), v(V_VOFF), s(S_KV, 4), s(S_C)))
    k("s_mov_b64 exec, -1")
    k("s_waitcnt vmcnt(0)")
    mfma(k, SA, KF, QF, CI)
    k("s_nop 15")
    for j in range(16):
        k("v_exp_f32 %s, %s" % (v(SA + j), v(SA + j)))
    k("s_nop 0")
    for j in range(8):
        k("v_cvt_pk_bf16_f32 %s, %s, %s" % (v(P + j), v(SA + 2 * j), v(SA + 2 * j + 1)))
    k("s_nop 1")
    mfma(k, OA, VF0, P, OA)
    mfma(k, OA, VF1, P + 4, OA)
    k("s_add_u32 %s, %s, 2048" % (s(S_C), s(S_C)))
    k("s_cmp_lt_u32 %s, 0x20000" % s(S_C))
    k("s_cbranch_scc1 L_attn_slow_pv")
    k("s_nop 15")
    k("s_branch L_attn_fin")
    if second_role:
        k.label("L_attn_role2")
        second_role(k)
    if standalone:
        k.label("L_attn_exit")
        nv = 128 if (common.PROF or second_role) else 112
        k.kernel_end(name, nv, nv)


if __name__ == "__main__":
    import sys
    common.PROF = "prof" in sys.argv
    OPT.update(sys.argv[1:])
    k = Asm()
    k.lines.append(HEADER.rstrip())
    k.lines.append("; @launch kernel=attn_kernel grid=(256,1,1) block=(512,1,1) lds=%d" % (3 * SLOT))
    k('.amdgcn_target "amdgcn-amd-amdhsa--gfx950"')
    gen_attn(k, "attn_kernel")
    open("attn_%s.s" % "_".join(["v"] + [x for x in sys.argv[1:] if x != "prof"]), "w").write(k.text())
```

```python
import common
from common import *
import g2
from g2 import S_W, S_RB, S_CB, S_RL, S_T, S_T2, S_WS, S_HD

OPT = set()
WS_XN = 20 << 20
FLAG_H = 8192
ROWB = 448
SLOT = 32 * ROWB
R = 5
L_BI = R * SLOT
LDS_NEED = L_BI + 1024

S_W1, S_B1 = 62, 64
S_W1D = 68
S_LD, S_WO, S_WEND, S_SLOT, S_KC, S_C, S_XB, S_XO, S_ROT, S_LDO = 72, 73, 74, 75, 76, 77, 78, 79, 59, 66

VWB, VW2 = 8, 9
XR = 16
WF = [32, 48]
ACC = 64
VSRC = 8


def next_slot(k):
    k("s_add_u32 %s, %s, %d" % (s(S_SLOT), s(S_SLOT), SLOT))
    k("s_cmp_ge_u32 %s, %d" % (s(S_SLOT), R * SLOT))
    k("s_cselect_b32 %s, 0, %s" % (s(S_SLOT), s(S_SLOT)))


def loader(k, pre):
    k("s_sub_u32 %s, %s, 4" % (s(S_LD), s(S_W)))
    k("s_and_b32 %s, %s, 1" % (s(S_T), s(S_LD)))
    k("s_lshl_b32 %s, %s, 2" % (s(S_T), s(S_T)))
    k("s_mov_b32 %s, 0x%x" % (s(S_T2), (2 ** 32 + ROWB - 1) // ROWB))
    for j in range(4):
        k("s_add_u32 %s, %s, %d" % (s(S_C), s(S_T), j))
        k("s_min_u32 %s, %s, 6" % (s(S_C), s(S_C)))
        k("s_lshl_b32 %s, %s, 10" % (s(S_C), s(S_C)))
        k("v_lshl_add_u32 v12, v0, 4, %s" % s(S_C))
        k("v_mul_hi_u32 v13, v12, %s" % s(S_T2))
        k("v_mul_u32_u24 v14, %d, v13" % ROWB)
        k("v_sub_u32 v14, v12, v14")
        k("v_mul_u32_u24 v13, 3584, v13")
        k("v_add_u32 %s, v13, v14" % v(VSRC + j))
    k("s_lshr_b32 %s, %s, 1" % (s(S_C), s(S_LD)))
    k("s_mul_i32 %s, %s, %d" % (s(S_LDO), s(S_C), 16 * ROWB))
    k("s_lshl_b32 %s, %s, 10" % (s(S_T), s(S_T)))
    k("s_add_u32 %s, %s, %s" % (s(S_LDO), s(S_LDO), s(S_T)))
    k("s_mul_i32 %s, %s, %d" % (s(S_WO), s(S_C), 16 * 3584))
    k("s_mul_i32 %s, %s, %d" % (s(S_T), s(S_CB), ROWB))
    k("s_add_u32 %s, %s, %s" % (s(S_WO), s(S_WO), s(S_T)))
    k("s_add_u32 %s, %s, %d" % (s(S_WEND), s(S_WO), 512 * 3584))
    k("s_mul_i32 %s, %s, %d" % (s(S_T), s(S_ROT), 32 * 3584))
    k("s_add_u32 %s, %s, %s" % (s(S_WO), s(S_WO), s(S_T)))
    k("s_and_b32 %s, %s, 1" % (s(S_KC), s(S_LD)))

    def issue(c):
        k("s_add_u32 m0, %s, %d" % (s(S_LDO), (c % R) * SLOT))
        k("s_nop 0")
        for j in range(4):
            k("buffer_load_dwordx4 %s, %s, %s offen lds" % (v(VSRC + j), s(S_W1D, 4), s(S_WO)))
            if j < 2:
                k("s_add_u32 m0, m0, 1024")
                k("s_nop 0")
            elif j == 2:
                k("s_add_u32 m0, m0, %s" % s(S_XB))
                k("s_nop 0")
        k("s_add_u32 %s, %s, %d" % (s(S_WO), s(S_WO), 32 * 3584))
        k("s_cmp_ge_u32 %s, %s" % (s(S_WO), s(S_WEND)))
        k("s_cselect_b32 %s, %d, 0" % (s(S_T), 512 * 3584))
        k("s_sub_u32 %s, %s, %s" % (s(S_WO), s(S_WO), s(S_T)))

    k("s_cmp_eq_u32 %s, 0" % s(S_KC))
    k("s_cselect_b32 %s, 1024, 0" % s(S_XB))
    k("v_lshrrev_b32 v12, 3, v1")
    k("v_bfe_u32 v13, v1, 2, 1")
    k("v_and_b32 v14, 3, v1")
    k("v_lshrrev_b32 v15, 1, v12")
    k("v_and_b32 v12, 1, v12")
    k("v_lshl_add_u32 v14, v12, 2, v14")
    k("v_lshl_add_u32 v14, v13, 3, v14")
    k("v_lshl_add_u32 v14, v15, 4, v14")
    k("v_lshl_add_u32 v14, v2, 5, v14")
    k("s_mul_i32 %s, %s, 224" % (s(S_T), s(S_CB)))
    k("s_lshl_b32 %s, %s, 6" % (s(S_T2), s(S_LD)))
    k("s_add_u32 %s, %s, %s" % (s(S_T), s(S_T), s(S_T2)))
    k("v_add_u32 v14, %s, v14" % s(S_T))
    k("v_lshlrev_b32 v14, 1, v14")
    k("v_min_u32 v14, 3582, v14")
    if "early" in OPT:
        if "lp" in OPT:
            prof_mark(k, 2)
        issue(0)
        issue(1)
        if "lp" in OPT:
            prof_mark(k, 3)
        k("global_load_ushort v15, v14, %s" % s(S_B1, 2))
        k("s_waitcnt vmcnt(0)")
        if "lp" in OPT:
            prof_mark(k, 4)
    else:
        k("global_load_ushort v15, v14, %s" % s(S_B1, 2))
        k("s_waitcnt vmcnt(0)")
    k("v_lshlrev_b32 v15, 16, v15")
    k("s_lshl_b32 %s, %s, 8" % (s(S_T), s(S_LD)))
    k("s_add_u32 %s, %s, %d" % (s(S_T), s(S_T), L_BI))
    k("v_lshl_add_u32 v12, v0, 2, %s" % s(S_T))
    k("ds_write_b32 v12, v15")
    if "early" in OPT:
        k("s_waitcnt lgkmcnt(0)")
        k("s_barrier")
        issue(2)
        issue(3)
    else:
        for c in range(4):
            issue(c)
        k("s_waitcnt vmcnt(12) lgkmcnt(0)")
    if "early" not in OPT:
        k("s_barrier")
    pf = "w2pf" in OPT
    if pf:
        pass
    npf = 0
    for c in range(1, 17):
        younger = 4 * sum(1 for j in (c + 1, c + 2) if j < 16)
        extra = npf if c + 1 >= 16 else 0
        k("s_waitcnt vmcnt(%d)" % min(63, younger + (npf if pf and c >= 14 else 0)))
        k("s_barrier")
        if c + 3 < 16:
            issue(c + 3)
        if pf and c == 13:
            k.srd(S_W1D, g2.S_W2, 1792 * 1024)
            k("v_lshrrev_b32 v12, 3, v0")
            k("v_and_b32 v13, 7, v0")
            k("v_lshlrev_b32 v13, 4, v13")
            k("v_lshl_add_u32 v12, v12, 10, v13")
            k("s_mul_i32 %s, %s, %d" % (s(S_T), s(S_RL), 448 * 1024))
            k("s_mul_i32 %s, %s, %d" % (s(S_T2), s(S_LD), 112 * 1024))
            k("s_add_u32 %s, %s, %s" % (s(S_T), s(S_T), s(S_T2)))
            k("s_lshl_b32 %s, %s, 7" % (s(S_T2), s(S_CB)))
            k("s_add_u32 %s, %s, %s" % (s(S_WO), s(S_T), s(S_T2)))
        if pf and c >= 13:
            n = 4 if c < 16 else 2
            for j in range(n):
                k("buffer_load_dwordx4 v[16:19], v12, %s, %s offen" % (s(S_W1D, 4), s(S_WO)))
                k("s_add_u32 %s, %s, 8192" % (s(S_WO), s(S_WO)))
            npf += n
    if "w2post" in OPT:
        k.srd(S_W1D, g2.S_W2, 1792 * 1024)
        k("v_lshrrev_b32 v12, 3, v0")
        k("v_and_b32 v13, 7, v0")
        k("v_lshlrev_b32 v13, 4, v13")
        k("v_lshl_add_u32 v12, v12, 10, v13")
        k("s_mul_i32 %s, %s, %d" % (s(S_T), s(S_RL), 448 * 1024))
        k("s_mul_i32 %s, %s, %d" % (s(S_T2), s(S_LD), 112 * 1024))
        k("s_add_u32 %s, %s, %s" % (s(S_T), s(S_T), s(S_T2)))
        k("s_lshl_b32 %s, %s, 7" % (s(S_T2), s(S_CB)))
        k("s_add_u32 %s, %s, %s" % (s(S_WO), s(S_T), s(S_T2)))
        for j in range(14):
            k("buffer_load_dwordx4 v[16:19], v12, %s, %s offen" % (s(S_W1D, 4), s(S_WO)))
            k("s_add_u32 %s, %s, 8192" % (s(S_WO), s(S_WO)))
    if "w8" in g2.OPT:
        k("s_branch %s_post" % pre)
    else:
        if "lp" in OPT:
            prof_mark(k, 5)
            prof_rt(k, 6)
            prof_store(k, S_WS, S_W, 24)
        k("s_endpgm")


def compute(k, pre):
    k("v_bfe_u32 v12, v0, 2, 2")
    k("v_and_b32 v13, 3, v0")
    k("v_bfe_u32 v14, v0, 4, 1")
    k("v_lshl_add_u32 v13, v14, 2, v13")
    k("v_and_b32 v14, 1, v13")
    k("v_lshrrev_b32 v15, 1, v13")
    k("v_lshrrev_b32 v11, 1, v15")
    k("v_and_b32 v15, 1, v15")
    k("v_lshl_add_u32 v15, v14, 1, v15")
    k("v_lshl_add_u32 v13, v11, 2, v15")
    k("v_lshl_add_u32 v14, v2, 3, v12")
    k("v_mul_u32_u24 v14, %d, v14" % ROWB)
    k("v_lshl_add_u32 v14, v13, 3, v14")
    k("s_lshr_b32 %s, %s, 1" % (s(S_T), s(S_W)))
    k("s_lshl_b32 %s, %s, 8" % (s(S_T), s(S_T)))
    k("v_add_u32 %s, %s, v14" % (v(VWB), s(S_T)))
    k("v_lshlrev_b32 v3, 4, v0")
    k("s_lshl_b32 %s, %s, 1" % (s(S_T), s(S_RB)))
    k("s_and_b32 %s, %s, 1" % (s(S_T2), s(S_W)))
    k("s_add_u32 %s, %s, %s" % (s(S_T), s(S_T), s(S_T2)))
    k("s_lshl_b32 %s, %s, 15" % (s(S_XB), s(S_T)))
    k("s_add_u32 %s, %s, 0x%x" % (s(S_XB), s(S_XB), WS_XN))
    k("s_lshl_b32 %s, %s, 11" % (s(S_XO), s(S_ROT)))

    def xload(slot):
        k("s_add_u32 %s, %s, %s" % (s(S_T), s(S_XB), s(S_XO)))
        k("buffer_load_dwordx4 %s, v3, %s, %s offen" % (v(XR + 4 * slot, 4), s(S_HD, 4), s(S_T)))
        k("s_add_u32 %s, %s, 1024" % (s(S_XO), s(S_XO)))
        k("s_and_b32 %s, %s, 0x7fff" % (s(S_XO), s(S_XO)))

    for sl in range(3):
        xload(sl)
    k("s_mov_b32 %s, 0" % s(S_SLOT))
    k("s_barrier")
    if "p" in OPT:
        prof_mark(k, 3)
    k("s_lshr_b32 %s, %s, 1" % (s(S_T), s(S_W)))
    k("s_lshl_b32 %s, %s, 9" % (s(S_T), s(S_T)))
    k("s_add_u32 %s, %s, %d" % (s(S_T), s(S_T), L_BI))
    k("v_lshl_add_u32 v12, v2, 4, %s" % s(S_T))
    for ft in range(4):
        for g in range(4):
            k("ds_read_b128 %s, v12 offset:%d" % (v(ACC + 16 * ft + 4 * g, 4), ft * 128 + g * 32))
    F = 4

    def slot_ops(par):
        k("v_add_u32 %s, %s, %s" % (v(VW2 + par), s(S_SLOT), v(VWB)))

    def rd_w(par, st, buf, ft):
        for u in range(2):
            k("ds_read_b64_tr_b16 %s, %s offset:%d" % (v(WF[buf] + 4 * ft + 2 * u, 2), v(VW2 + par), st * 16 * ROWB + u * 4 * ROWB + ft * 64))

    slot_ops(0)
    for ft in range(F):
        rd_w(0, 0, 0, ft)
    k("s_waitcnt lgkmcnt(8)")
    k("s_mov_b32 %s, 0" % s(S_C))
    k.label(pre + "_loop")
    step = 0
    for par in range(2):
        for st in range(2):
            b, nb = st, 1 - st
            npar = par if st == 0 else 1 - par
            xs = step & 3
            k("s_waitcnt vmcnt(2)")
            for ft in range(F):
                newer = 2 * (F - 1 - ft) + 2 * ft
                k("s_waitcnt lgkmcnt(%d)" % newer)
                d = v(ACC + 16 * ft, 16)
                k("v_mfma_f32_32x32x16_bf16 %s, %s, %s, %s" % (d, v(WF[b] + 4 * ft, 4), v(XR + 4 * xs, 4), d))
                if ft == 0 and st == 1:
                    k("s_barrier")
                rd_w(npar, 1 - st, nb, ft)
                if ft == 0:
                    xload((xs + 3) & 3)
                if st == 0 and ft == 1:
                    next_slot(k)
                if st == 0 and ft == F - 1:
                    slot_ops(1 - par)
            step += 1
    k("s_add_u32 %s, %s, 1" % (s(S_C), s(S_C)))
    k("s_cmp_lt_u32 %s, 8" % s(S_C))
    k("s_cbranch_scc1 %s_loop" % pre)
    k("s_waitcnt vmcnt(0) lgkmcnt(0)")
    if "p" in OPT:
        prof_mark(k, 4)
    k("s_lshl_b32 %s, %s, 1" % (s(S_T2), s(S_RB)))
    k("s_and_b32 %s, %s, 1" % (s(S_T), s(S_W)))
    k("s_add_u32 %s, %s, %s" % (s(S_T2), s(S_T2), s(S_T)))
    k("s_mul_i32 %s, %s, %d" % (s(S_T), s(S_T2), WS_HO_ROW))
    k("s_mul_i32 %s, %s, %d" % (s(S_T2), s(S_CB), 14 * 1024))
    k("s_add_u32 %s, %s, %s" % (s(S_T), s(S_T), s(S_T2)))
    k("s_lshr_b32 %s, %s, 1" % (s(S_T2), s(S_W)))
    k("s_lshl_b32 %s, %s, 13" % (s(S_C), s(S_T2)))
    k("s_add_u32 %s, %s, %s" % (s(S_T), s(S_T), s(S_C)))
    k("s_add_u32 %s, %s, 0x%x" % (s(S_T), s(S_T), WS_HO))
    k("v_add_u32 v12, %s, v3" % s(S_T))
    B = WF[0]
    for ft in range(4):
        if ft == 3:
            k("s_cmp_lg_u32 %s, 0" % s(S_T2))
            k("s_cbranch_scc1 %s_nost" % pre)
        A = ACC + 16 * ft
        for r in range(16):
            k("v_max_f32 %s, 0, %s" % (v(B + r), v(A + r)))
        for r in range(16):
            k("v_mul_f32 %s, %s, %s" % (v(A + r), v(A + r), v(B + r)))
        for r in range(8):
            k("v_cvt_pk_bf16_f32 %s, %s, %s" % (v(A + r), v(A + 2 * r), v(A + 2 * r + 1)))
        k("buffer_store_dwordx4 %s, v12, %s, 0 offen offset:%d sc1" % (v(A, 4), s(S_HD, 4), 2048 * (ft & 1)))
        k("buffer_store_dwordx4 %s, v12, %s, 0 offen offset:%d sc1" % (v(A + 4, 4), s(S_HD, 4), 2048 * (ft & 1) + 1024))
        if ft == 1:
            k("v_add_u32 v12, 4096, v12")
    k.label(pre + "_nost")
    k("s_waitcnt vmcnt(0)")
    if "p" in OPT:
        prof_mark(k, 5)
    if "hpf" in OPT:
        k("v_add_u32 v12, %s, v3" % s(S_T))
        for j in range(8):
            if j == 4:
                k("v_add_u32 v12, 4096, v12")
            if j == 6:
                k("s_cmp_lg_u32 %s, 0" % s(S_T2))
                k("s_cbranch_scc1 %s_nre" % pre)
            k("buffer_load_dwordx4 %s, v12, %s, 0 offen offset:%d sc1" % (v(XR + 4 * (j & 3), 4), s(S_HD, 4), 1024 * (j & 3)))
        k.label(pre + "_nre")
    if "wf" in OPT:
        k("s_lshl_b32 %s, %s, 7" % (s(S_C), s(S_RB)))
        k("s_add_u32 %s, %s, 0x%x" % (s(S_C), s(S_C), WS_FLAG + FLAG_H))
        k("s_lshl_b32 %s, %s, 2" % (s(S_T), s(S_CB)))
        k("s_add_u32 %s, %s, %s" % (s(S_T), s(S_T), s(S_W)))
        k("s_lshl_b32 %s, %s, 2" % (s(S_T), s(S_T)))
        k("s_add_u32 %s, %s, %s" % (s(S_T), s(S_T), s(S_C)))
        k("v_mov_b32 v12, %s" % s(S_T))
        k("v_mov_b32 v13, 1")
        k("s_mov_b64 exec, 1")
        k("global_store_dword v12, v13, %s sc1" % s(S_WS, 2))
        k("s_mov_b64 exec, -1")
        k("s_lshl_b32 %s, %s, 5" % (s(S_T), s(S_W)))
        k("s_add_u32 %s, %s, %s" % (s(S_C), s(S_C), s(S_T)))
        k("v_and_b32 v8, 7, v0")
        k("v_lshl_add_u32 v8, v8, 2, %s" % s(S_C))
        k("s_mov_b32 %s, 0" % s(S_KC))
        k.label(pre + "_wp")
        k("global_load_dword v9, v8, %s sc1" % s(S_WS, 2))
        k("s_add_u32 %s, %s, 1" % (s(S_KC), s(S_KC)))
        k("s_waitcnt vmcnt(0)")
        k("v_cmp_eq_u32 vcc, 0, v9")
        k("s_nop 1")
        k("s_cmp_eq_u64 vcc, 0")
        k("s_cbranch_scc1 %s_wg" % pre)
        k("s_sleep 2")
        k("s_cmp_lt_u32 %s, 0x40000" % s(S_KC))
        k("s_cbranch_scc1 %s_wp" % pre)
        k.label(pre + "_wg")
        return
    k.label(pre + "_post")
    k("s_barrier")
    k("s_lshl_b32 %s, %s, 7" % (s(S_C), s(S_RB)))
    k("s_add_u32 %s, %s, 0x%x" % (s(S_C), s(S_C), WS_FLAG + FLAG_H))
    k("s_cmp_eq_u32 %s, 0" % s(S_W))
    k("s_cbranch_scc0 %s_nf" % pre)
    k("s_lshl_b32 %s, %s, 2" % (s(S_T), s(S_CB)))
    k("s_add_u32 %s, %s, %s" % (s(S_T), s(S_T), s(S_C)))
    k("v_mov_b32 v12, %s" % s(S_T))
    k("v_mov_b32 v13, 1")
    k("s_mov_b64 exec, 1")
    k("global_store_dword v12, v13, %s sc1" % s(S_WS, 2))
    k("s_mov_b64 exec, -1")
    k.label(pre + "_nf")
    g2.wait_flags(k, pre + "_hw", S_C, 8, far=False)


def phase(k, pre):
    k("s_lshl_b32 %s, %s, 2" % (s(S_ROT), s(S_RL)))
    k("s_lshl_b32 %s, %s, 1" % (s(S_T), s(S_CB)))
    k("s_add_u32 %s, %s, %s" % (s(S_ROT), s(S_ROT), s(S_T)))
    k("s_and_b32 %s, %s, 15" % (s(S_ROT), s(S_ROT)))
    k("s_mov_b32 %s, %s" % (s(S_W1D), s(S_W1)))
    k("s_and_b32 %s, %s, 0xffff" % (s(S_W1D + 1), s(S_W1 + 1)))
    k("s_mov_b32 %s, 0x%x" % (s(S_W1D + 2), 512 * 3584))
    k("s_mov_b32 %s, 0x20000" % s(S_W1D + 3))
    k("s_cmp_ge_u32 %s, 4" % s(S_W))
    k("s_cbranch_scc0 %s_cmp" % pre)
    loader(k, pre)
    k.label(pre + "_cmp")
    compute(k, pre)
```

```python
import common
from common import *

OPT = set()
XBYTES = 65536
L_PART = XBYTES
L_BI = L_PART + 2048
SLOT0 = XBYTES + 3072
SLOT = 16384
R = 5
SLOTE = SLOT0 + R * SLOT
LDS_BYTES = SLOTE
WS_XN = 20 << 20

S_X, S_WQ, S_WS, S_B1, S_W1 = 4, 6, 8, 10, 40
S_XD, S_WD, S_OD = 12, 16, 20
S_W, S_RB, S_CT, S_T, S_T2, S_C, S_SLOT, S_WO, S_LD = 24, 25, 26, 27, 28, 29, 30, 32, 33
S_RSLOT, S_T3, S_ROT, S_CK, S_KC, S_U, S_NCH, S_WEND, S_LD3, S_LD4 = 35, 36, 37, 38, 39, 42, 43, 44, 45, 46

VA0, VXA, NX, NS, NQ, NT = 4, 5, 16, 48, 50, 52
VWQ, VWF = 6, 7
VW2 = 11
VX = 19
XF = [20, 24]
WF = [28, 44]
ACC = 60
NV = 128
VQO, VFO = 6, 9


def entry(k, pre, name):
    k("s_cmp_ge_u32 s2, 256")
    k("s_cbranch_scc1 %s_exit" % pre)
    prof_start(k)
    k("s_load_dwordx2 %s, s[0:1], %d" % (s(S_X, 2), KA_X))
    k("s_load_dwordx2 %s, s[0:1], %d" % (s(S_WQ, 2), KA_WQKV))
    k("s_load_dwordx2 %s, s[0:1], %d" % (s(S_W1, 2), KA_W1))
    k("s_load_dwordx2 %s, s[0:1], %d" % (s(S_WS, 2), KA_WS))
    k("s_load_dwordx2 %s, s[0:1], %d" % (s(S_B1, 2), KA_B1))
    k("v_lshrrev_b32 v1, 6, v0")
    k("v_and_b32 v0, 63, v0")
    k("v_readfirstlane_b32 %s, v1" % s(S_W))
    if "nopf" not in OPT:
        k("s_getpc_b64 s[50:51]")
        k.label(pre + "_pc")
        k("s_sub_u32 s50, s50, %s_pc-%s" % (pre, name))
        k("s_subb_u32 s51, s51, 0")
        k("s_lshr_b32 s52, s2, 3")
        k("s_lshl_b32 s52, s52, 10")
        k("v_lshl_add_u32 v3, v0, 4, s52")
        k("v_cmp_gt_u32 vcc, L_text_end-%s-16, v3" % name)
        k("s_cmp_eq_u32 %s, 7" % s(S_W))
        k("s_cselect_b64 s[52:53], vcc, 0")
        k("s_and_saveexec_b64 s[54:55], s[52:53]")
        k("s_cbranch_execz %s_npf" % pre)
        k("global_load_dwordx4 v[112:115], v3, s[50:51]")
        k.label(pre + "_npf")
        k("s_mov_b64 exec, s[54:55]")
    k("s_lshr_b32 %s, s2, 3" % s(S_T))
    k("s_and_b32 %s, %s, 7" % (s(S_ROT), s(S_T)))
    k("s_and_b32 %s, s2, 3" % s(S_RB))
    k("s_lshl_b32 %s, %s, 3" % (s(S_RB), s(S_RB)))
    k("s_add_u32 %s, %s, %s" % (s(S_RB), s(S_RB), s(S_ROT)))
    k("s_lshr_b32 %s, %s, 3" % (s(S_T), s(S_T)))
    k("s_bfe_u32 %s, s2, 0x10002" % s(S_CT))
    k("s_lshl_b32 %s, %s, 2" % (s(S_CT), s(S_CT)))
    k("s_add_u32 %s, %s, %s" % (s(S_CT), s(S_CT), s(S_T)))
    k("s_lshl_b32 %s, %s, 1" % (s(S_ROT), s(S_ROT)))
    k("s_lshl_b32 %s, %s, 1" % (s(S_T), s(S_T)))
    k("s_add_u32 %s, %s, %s" % (s(S_T), s(S_T), s(S_W)))
    k("s_and_b32 %s, %s, 7" % (s(S_T), s(S_T)))
    k("s_lshl_b32 %s, %s, 3" % (s(S_T3), s(S_T)))
    k("v_lshlrev_b32 v3, 4, v0")
    k("s_lshl_b32 %s, %s, 6" % (s(S_T), s(S_RB)))
    k("s_add_u32 %s, %s, %s" % (s(S_T), s(S_T), s(S_T3)))
    k("s_lshl_b32 %s, %s, 10" % (s(S_T2), s(S_T)))
    k("s_lshl_b32 m0, %s, 10" % s(S_T3))
    k("s_and_b32 %s, %s, 8" % (s(S_T3), s(S_T3)))
    k("s_waitcnt lgkmcnt(0)")
    stamp(k, 0, S_WS, S_W)
    k.srd(S_XD, S_X, 2048 * 1024)
    for i in range(8):
        k("s_add_u32 %s, %s, %d" % (s(S_T), s(S_T3), i))
        k("s_lshl_b32 %s, %s, 4" % (s(S_T), s(S_T)))
        k("v_xor_b32 v4, %s, v3" % s(S_T))
        k("buffer_load_dwordx4 v4, %s, %s offen lds" % (s(S_XD, 4), s(S_T2)))
        if i < 7:
            k("s_add_u32 m0, m0, 1024")
            k("s_add_u32 %s, %s, 1024" % (s(S_T2), s(S_T2)))
    if "p2" not in OPT and "p3" not in OPT:
        prof_mark(k, 2)
    k("v_and_b32 v1, 31, v0")
    k("v_lshrrev_b32 v2, 5, v0")
    k.srd(S_OD, S_WS, WS_END if "xn" not in OPT else WS_XN + (2 << 20))
    k.srd(S_WD, S_WQ, 512 * 3072)
    for r in range(6, 11):
        k("v_mov_b32 %s, 0" % v(r))
    if "poison" in OPT:
        k("s_lshr_b32 %s, s2, 2" % s(S_T))
        k("s_mul_i32 %s, %s, %d" % (s(S_T), s(S_T), WS_HO_ROW))
        k("s_and_b32 %s, s2, 3" % s(S_T2))
        k("s_lshl_b32 %s, %s, 3" % (s(S_T2), s(S_T2)))
        k("s_add_u32 %s, %s, %s" % (s(S_T2), s(S_T2), s(S_W)))
        k("s_lshl_b32 %s, %s, 10" % (s(S_T2), s(S_T2)))
        k("s_add_u32 %s, %s, %s" % (s(S_T), s(S_T), s(S_T2)))
        k("s_add_u32 %s, %s, 0x%x" % (s(S_T), s(S_T), WS_HO + 112 * 1024))
        k("v_lshlrev_b32 v4, 4, v0")
        for r in range(4):
            k("v_mov_b32 %s, -1" % v(12 + r))
        k("buffer_store_dwordx4 v[12:15], v4, %s, %s offen" % (s(S_OD, 4), s(S_T)))
    k("s_cmp_lt_u32 s2, 48")
    k("s_cbranch_scc0 %s_nz" % pre)
    k("s_cmp_eq_u32 %s, 0" % s(S_W))
    k("s_cbranch_scc0 %s_nz" % pre)
    k("s_lshl_b32 %s, s2, 8" % s(S_T))
    k("s_add_u32 %s, %s, 0x%x" % (s(S_T), s(S_T), WS_FLAG))
    k("v_lshl_add_u32 v4, v0, 2, %s" % s(S_T))
    k("v_mov_b32 v5, 0")
    k("global_store_dword v4, v5, %s" % s(S_WS, 2))
    k.label(pre + "_nz")
    k("s_cmp_ge_u32 %s, 4" % s(S_W))
    k("s_cbranch_scc1 %s_loader" % pre)


def xaddr_base(k, s_tile):
    k("s_lshl_b32 %s, %s, 15" % (s(S_T), s(s_tile)))
    k("v_and_b32 v3, 15, v1")
    k("v_xor_b32 v3, v3, v2")
    k("v_lshlrev_b32 v3, 4, v3")
    k("v_lshl_add_u32 v3, v1, 10, v3")
    k("v_add_u32 %s, %s, v3" % (v(VA0), s(S_T)))


def normalise(k, pre, dma, younger):
    k("s_and_b32 %s, %s, 1" % (s(S_T2), s(S_W)))
    xaddr_base(k, S_T2)
    k("s_lshr_b32 %s, %s, 1" % (s(S_T3), s(S_W)))
    k("s_lshl_b32 %s, %s, 8" % (s(S_U), s(S_T3)))
    k("v_xor_b32 %s, %s, %s" % (v(VXA), s(S_U), v(VA0)))
    k("s_cmp_ge_u32 %s, 4" % s(S_W))
    k("s_cbranch_scc1 %s_nwl" % pre)
    k("s_waitcnt vmcnt(0)")
    k.label(pre + "_nwl")
    k("s_waitcnt vmcnt(%d)" % younger)
    k("s_barrier")
    if "p2" not in OPT:
        prof_mark(k, 3)
    for i in range(8):
        k("v_xor_b32 %s, %d, %s" % (v(NT + 8 + i), 32 * i, v(VXA)))
    AD = NT + 8
    for i in range(8):
        k("ds_read_b128 %s, %s" % (v(NX + 4 * i, 4), v(AD + i)))
    for r in range(4):
        k("v_mov_b32 %s, 0" % v(NS + r))
    k("v_mov_b32 %s, 0x3f803f80" % v(NT))
    for i in range(8):
        k("s_waitcnt lgkmcnt(%d)" % (7 - i))
        for r in range(4):
            k("v_dot2c_f32_bf16 %s, %s, %s" % (v(NS + (r & 1)), v(NT), v(NX + 4 * i + r)))
            k("v_dot2c_f32_bf16 %s, %s, %s" % (v(NQ + (r & 1)), v(NX + 4 * i + r), v(NX + 4 * i + r)))
    k("s_nop 2")
    for r in (NS, NQ):
        k("v_add_f32 %s, %s, %s" % (v(r), v(r), v(r + 1)))
        k("v_mov_b32 %s, %s" % (v(r + 1), v(r)))
        k("s_nop 1")
        k("v_permlane32_swap_b32 %s, %s" % (v(r + 1), v(r)))
        k("s_nop 1")
        k("v_add_f32 %s, %s, %s" % (v(r), v(r), v(r + 1)))
    if "p3" in OPT:
        prof_mark(k, 2)

    def w1pf(first, n):
        k("s_lshr_b32 %s, s2, 3" % s(S_T))
        k("s_mul_i32 %s, %s, %d" % (s(S_T), s(S_T), 16 * 3584))
        k("s_mul_i32 %s, %s, 7168" % (s(S_T2), s(S_W)))
        k("s_add_u32 %s, %s, %s" % (s(S_T), s(S_T), s(S_T2)))
        k("v_lshlrev_b32 v3, 4, v0")
        for j in range(first, first + n):
            k("s_add_u32 %s, %s, %d" % (s(S_T2), s(S_T), j * 1024))
            k("buffer_load_dwordx4 v[112:115], v3, s[56:59], %s offen" % s(S_T2))

    if "w1n" in OPT:
        k.srd(56, S_W1, 512 * 3584)
        w1pf(0, 4)
    k("s_cmp_ge_u32 %s, 4" % s(S_W))
    k("s_cbranch_scc0 %s_nnd" % pre)
    for grp in dma:
        for ins in grp:
            k(ins)
    k.label(pre + "_nnd")
    k("v_mov_b32 %s, %s" % (v(NS + 1), v(NQ)))
    k("s_lshl_b32 %s, %s, 8" % (s(S_T), s(S_W)))
    k("s_add_u32 %s, %s, %d" % (s(S_T), s(S_T), L_PART))
    k("v_lshl_add_u32 v3, v1, 3, %s" % s(S_T))
    k("ds_write_b64 v3, %s" % v(NS, 2))
    k("s_waitcnt lgkmcnt(0)")
    k("s_barrier")
    if "p3" in OPT:
        prof_mark(k, 4)
    k("s_and_b32 %s, %s, 1" % (s(S_T), s(S_W)))
    k("s_lshl_b32 %s, %s, 8" % (s(S_T), s(S_T)))
    k("s_add_u32 %s, %s, %d" % (s(S_T), s(S_T), L_PART))
    k("v_lshl_add_u32 v3, v1, 3, %s" % s(S_T))
    PT = NT + 16
    for q in range(4):
        k("ds_read_b64 %s, v3 offset:%d" % (v(PT + 2 * q, 2), q * 512))
    k("s_waitcnt lgkmcnt(0)")
    k("v_add_f32 %s, %s, %s" % (v(PT), v(PT), v(PT + 2)))
    k("v_add_f32 %s, %s, %s" % (v(PT + 1), v(PT + 1), v(PT + 3)))
    k("v_add_f32 %s, %s, %s" % (v(PT + 4), v(PT + 4), v(PT + 6)))
    k("v_add_f32 %s, %s, %s" % (v(PT + 5), v(PT + 5), v(PT + 7)))
    k("v_add_f32 %s, %s, %s" % (v(NS), v(PT), v(PT + 4)))
    k("v_add_f32 %s, %s, %s" % (v(NQ), v(PT + 1), v(PT + 5)))
    k("v_mul_f32 %s, 0x%x, %s" % (v(NS), f2u(1.0 / 512), v(NS)))
    k("v_mul_f32 %s, 0x%x, %s" % (v(NQ), f2u(1.0 / 512), v(NQ)))
    k("v_fma_f32 %s, -%s, %s, %s" % (v(NQ), v(NS), v(NS), v(NQ)))
    k("v_max_f32 %s, 0, %s" % (v(NQ), v(NQ)))
    k("v_add_f32 %s, 0x%x, %s" % (v(NQ), f2u(1e-5), v(NQ)))
    k("v_rsq_f32 %s, %s" % (v(NQ), v(NQ)))
    MK, TP = NT + 24, NT + 26
    k("v_mov_b32 %s, 0xffff0000" % v(MK))
    k("v_mul_f32 %s, %s, %s" % (v(NS), v(NS), v(NQ)))
    k("v_mov_b32 %s, %s" % (v(NQ + 1), v(NQ)))
    k("v_sub_f32 %s, 0, %s" % (v(NS), v(NS)))
    k("v_mov_b32 %s, %s" % (v(NS + 1), v(NS)))
    for i in range(8):
        for r in range(4):
            x = NX + 4 * i + r
            t = TP + 2 * (r & 1)
            k("v_lshlrev_b32 %s, 16, %s" % (v(t), v(x)))
            k("v_and_b32 %s, %s, %s" % (v(t + 1), v(MK), v(x)))
            if r > 0:
                tp = TP + 2 * ((r - 1) & 1)
                k("v_cvt_pk_bf16_f32 %s, %s, %s" % (v(x - 1), v(tp), v(tp + 1)))
            k("v_pk_fma_f32 %s, %s, %s, %s" % (v(t, 2), v(t, 2), v(NQ, 2), v(NS, 2)))
        tp = TP + 2
        k("v_cvt_pk_bf16_f32 %s, %s, %s" % (v(NX + 4 * i + 3), v(tp), v(tp + 1)))
        k("ds_write_b128 %s, %s" % (v(AD + i), v(NX + 4 * i, 4)))
    if "p3" in OPT:
        prof_mark(k, 5)
    if "xn" in OPT:
        k("s_lshr_b32 %s, %s, 1" % (s(S_T), s(S_CT)))
        k("s_lshr_b32 %s, %s, 1" % (s(S_T2), s(S_W)))
        k("s_cmp_eq_u32 %s, %s" % (s(S_T), s(S_T2)))
        k("s_cbranch_scc0 %s_noxn%s" % (pre, ""))
        k("s_and_b32 %s, %s, 1" % (s(S_T), s(S_W)))
        k("s_lshl_b32 %s, %s, 1" % (s(S_T2), s(S_RB)))
        k("s_add_u32 %s, %s, %s" % (s(S_T), s(S_T), s(S_T2)))
        k("s_lshl_b32 %s, %s, 15" % (s(S_T), s(S_T)))
        k("s_lshl_b32 %s, %s, 12" % (s(S_T2), s(S_CT)))
        k("s_add_u32 %s, %s, %s" % (s(S_T), s(S_T), s(S_T2)))
        k("s_add_u32 %s, %s, 0x%x" % (s(S_T), s(S_T), WS_XN))
        k("v_lshlrev_b32 v3, 4, v0")
        k("s_bitcmp1_b32 %s, 0" % s(S_CT))
        k("s_cbranch_scc1 %s_xnhi%s" % (pre, ""))
        for i in range(4):
            k("buffer_store_dwordx4 %s, v3, %s, %s offen offset:%d" % (v(NX + 4 * i, 4), s(S_OD, 4), s(S_T), 1024 * i))
        k("s_branch %s_noxn%s" % (pre, ""))
        k.label("%s_xnhi%s" % (pre, ""))
        for i in range(4):
            k("buffer_store_dwordx4 %s, v3, %s, %s offen offset:%d" % (v(NX + 16 + 4 * i, 4), s(S_OD, 4), s(S_T), 1024 * i))
        k.label("%s_noxn%s" % (pre, ""))
    k("s_waitcnt lgkmcnt(0)")


def next_slot(k, r):
    k("s_add_u32 %s, %s, %d" % (s(r), s(r), SLOT))
    k("s_cmp_ge_u32 %s, %d" % (s(r), SLOTE))
    k("s_cselect_b32 %s, %d, %s" % (s(r), SLOT0, s(r)))


def wfrag_addr(k):
    t = ACC
    r, b, h, g, x, y = t, t + 1, t + 2, t + 3, t + 4, t + 5
    k("s_lshr_b32 %s, %s, 1" % (s(S_T), s(S_W)))
    k("v_bfe_u32 %s, v0, 2, 2" % v(r))
    k("v_and_b32 %s, 3, v0" % v(b))
    k("v_bfe_u32 %s, v0, 4, 1" % v(h))
    k("v_lshl_add_u32 %s, %s, 2, %s" % (v(b), v(h), v(b)))
    k("v_and_b32 %s, 1, %s" % (v(h), v(b)))
    k("v_lshrrev_b32 %s, 1, %s" % (v(g), v(b)))
    k("v_lshl_add_u32 %s, v2, 3, %s" % (v(x), v(r)))
    k("v_lshl_add_u32 %s, %s, 2, %s" % (v(b), v(h), v(g)))
    k("v_mul_u32_u24 %s, 384, %s" % (v(y), v(x)))
    k("v_lshl_add_u32 %s, %s, 3, %s" % (v(y), v(b), v(y)))
    k("v_lshrrev_b32 %s, 1, %s" % (v(b), v(r)))
    k("v_xor_b32 %s, %s, %s" % (v(b), s(S_T), v(b)))
    k("v_lshl_add_u32 %s, %s, 6, %s" % (v(VWQ), v(b), v(y)))
    k("v_lshrrev_b32 %s, 1, %s" % (v(b), v(g)))
    k("v_and_b32 %s, 1, %s" % (v(g), v(g)))
    k("v_lshl_add_u32 %s, %s, 1, %s" % (v(g), v(h), v(g)))
    k("v_lshl_add_u32 %s, %s, 2, %s" % (v(b), v(b), v(g)))
    k("v_lshlrev_b32 %s, 9, %s" % (v(y), v(x)))
    k("v_lshl_add_u32 %s, %s, 3, %s" % (v(y), v(b), v(y)))
    k("s_lshl_b32 %s, %s, 8" % (s(S_T), s(S_T)))
    k("v_add_u32 %s, %s, %s" % (v(y), s(S_T), v(y)))
    for ft in range(4):
        k("v_xor_b32 %s, %d, %s" % (v(b), ft, v(r)))
        k("v_lshl_add_u32 %s, %s, 6, %s" % (v(VWF + ft), v(b), v(y)))


def compute_phase(k, pre, F):
    q = F == 3
    RB = 384 if q else 512
    NA = 1 if q else 4
    base = VWQ if q else VWF
    p = pre + ("Q" if q else "F")

    def wa(par, ft):
        return VW2 + 4 * par + (0 if q else ft)

    def slot_ops(par):
        return ["v_add_u32 %s, %s, %s" % (v(VW2 + 4 * par + j), s(S_SLOT), v(base + j)) for j in range(NA)]

    def x_ops(st):
        return ["v_xor_b32 %s, %s, %s" % (v(VX), s(S_U), v(VA0))] if st == 0 else ["v_xor_b32 %s, 32, %s" % (v(VX), v(VX))]

    def u_ops():
        return ["s_lshl_b32 %s, %s, 6" % (s(S_U), s(S_KC))]

    def kc_next():
        return ["s_add_u32 %s, %s, 1" % (s(S_KC), s(S_KC)), "s_and_b32 %s, %s, 15" % (s(S_KC), s(S_KC))]

    def rd_x(buf):
        return ["ds_read_b128 %s, %s" % (v(XF[buf], 4), v(VX))]

    def rd_w(par, st, buf, ft):
        off = st * 16 * RB + (ft * 128 if q else 0)
        return ["ds_read_b64_tr_b16 %s, %s offset:%d" % (v(WF[buf] + 4 * ft + 2 * u, 2), v(wa(par, ft)), off + u * 4 * RB) for u in range(2)]

    def mfma(buf, ft):
        d = v(ACC + 16 * ft, 16)
        if q and ft == 2:
            k("v_mfma_f32_32x32x16_bf16 %s, %s, %s, %s" % (d, v(XF[buf], 4), v(WF[buf] + 4 * ft, 4), d))
        else:
            k("v_mfma_f32_32x32x16_bf16 %s, %s, %s, %s" % (d, v(WF[buf] + 4 * ft, 4), v(XF[buf], 4), d))

    k("s_mov_b32 %s, %s" % (s(S_KC), s(S_ROT)))
    for ins in u_ops() + slot_ops(0) + x_ops(0) + rd_x(0) + sum((rd_w(0, 0, 0, ft) for ft in range(F)), []) + x_ops(1):
        k(ins)
    k("s_mov_b32 %s, 0" % s(S_C))
    k(".p2align 3")
    k.label(p + "_loop")
    VXN = VX + 0
    for par in range(2):
        for st in range(2):
            b, nb = st, 1 - st
            npar = par if st == 0 else 1 - par
            for ft in range(F):
                newer = 2 * (F - 1 - ft) + (0 if ft == 0 else 1 + 2 * ft)
                k("s_waitcnt lgkmcnt(%d)" % newer)
                mfma(b, ft)
                if ft == 0:
                    if st == 1:
                        k("s_barrier")
                    for ins in rd_x(nb):
                        k(ins)
                for ins in rd_w(npar, 1 - st, nb, ft):
                    k(ins)
                if ft == 0:
                    if st == 0:
                        for ins in kc_next() + u_ops() + x_ops(0):
                            k(ins)
                    else:
                        for ins in x_ops(1):
                            k(ins)
                if st == 0 and ft == 1:
                    next_slot(k, S_SLOT)
                if st == 0 and ft == F - 1:
                    for ins in slot_ops(1 - par):
                        k(ins)
    k("s_add_u32 %s, %s, 1" % (s(S_C), s(S_C)))
    k("s_cmp_lt_u32 %s, 8" % s(S_C))
    k("s_cbranch_scc1 %s_loop" % p)
    k("s_waitcnt lgkmcnt(0)")


def epilogue_q(k):
    cq = 0.25 * LOG2E
    a1, a2, a3, t1, t2 = 12, 13, 14, 15, 16
    k("s_lshl_b32 %s, %s, 1" % (s(S_T2), s(S_RB)))
    k("s_and_b32 %s, %s, 1" % (s(S_T), s(S_W)))
    k("s_add_u32 %s, %s, %s" % (s(S_T2), s(S_T2), s(S_T)))
    k("s_lshl_b32 %s, %s, 2" % (s(S_T3), s(S_CT)))
    k("s_and_b32 %s, %s, 2" % (s(S_T), s(S_W)))
    k("s_add_u32 %s, %s, %s" % (s(S_T3), s(S_T3), s(S_T)))
    k("v_add_u32 %s, %s, v2" % (v(t1), s(S_T3)))
    k("v_lshlrev_b32 %s, 4, v1" % v(t2))
    k("v_lshl_add_u32 %s, %s, 16, %s" % (v(a1), v(t1), v(t2)))
    k("s_lshl_b32 %s, %s, 10" % (s(S_T), s(S_T2)))
    k("v_add_u32 %s, %s, %s" % (v(a1), s(S_T), v(a1)))
    k("v_lshl_add_u32 %s, %s, 17, %s" % (v(a2), v(t1), v(t2)))
    k("s_lshl_b32 %s, %s, 11" % (s(S_T), s(S_T2)))
    k("s_add_u32 %s, %s, 0x%x" % (s(S_T), s(S_T), WS_KV))
    k("v_add_u32 %s, %s, %s" % (v(a2), s(S_T), v(a2)))
    k("v_bfe_u32 %s, v1, 2, 1" % v(t1))
    k("v_lshrrev_b32 %s, 3, v1" % v(t2))
    k("v_and_b32 %s, 3, v1" % v(a3))
    k("v_and_b32 v17, 1, %s" % v(t2))
    k("v_lshrrev_b32 %s, 1, %s" % (v(t2), v(t2)))
    k("v_lshl_add_u32 %s, %s, 2, %s" % (v(a3), v(t2), v(a3)))
    k("v_lshl_add_u32 %s, v17, 3, %s" % (v(a3), v(a3)))
    k("v_lshlrev_b32 %s, 4, %s" % (v(a3), v(a3)))
    k("v_add_u32 %s, %s, %s" % (v(t1), s(S_T3), v(t1)))
    k("v_lshl_add_u32 %s, %s, 17, %s" % (v(a3), v(t1), v(a3)))
    k("v_lshl_add_u32 %s, v2, 8, %s" % (v(a3), v(a3)))
    k("s_add_u32 %s, %s, 1024" % (s(S_T), s(S_T)))
    k("v_add_u32 %s, %s, %s" % (v(a3), s(S_T), v(a3)))
    sc = " sc1" if "sc1" in OPT else (" nt" if "nt" in OPT else "")
    for ft, dst in ((1, a2), (2, a3), (0, a1)):
        A = ACC + 16 * ft
        if ft == 0:
            for r in range(16):
                k("v_mul_f32 %s, 0x%x, %s" % (v(A + r), f2u(cq), v(A + r)))
        for r in range(8):
            k("v_cvt_pk_bf16_f32 %s, %s, %s" % (v(A + r), v(A + 2 * r), v(A + 2 * r + 1)))
        k("buffer_store_dwordx4 %s, %s, %s, 0 offen%s" % (v(A, 4), v(dst), s(S_OD, 4), sc))
        k("buffer_store_dwordx4 %s, %s, %s, 0 offen offset:512%s" % (v(A + 4, 4), v(dst), s(S_OD, 4), sc))


def epilogue_f(k):
    a1 = 12
    k("s_lshl_b32 %s, %s, 1" % (s(S_T2), s(S_RB)))
    k("s_and_b32 %s, %s, 1" % (s(S_T), s(S_W)))
    k("s_add_u32 %s, %s, %s" % (s(S_T2), s(S_T2), s(S_T)))
    k("s_mul_i32 %s, %s, %d" % (s(S_T), s(S_T2), WS_HO_ROW))
    k("s_lshl_b32 %s, %s, 14" % (s(S_T3), s(S_CT)))
    k("s_add_u32 %s, %s, %s" % (s(S_T), s(S_T), s(S_T3)))
    k("s_lshr_b32 %s, %s, 1" % (s(S_T3), s(S_W)))
    k("s_lshl_b32 %s, %s, 13" % (s(S_T3), s(S_T3)))
    k("s_add_u32 %s, %s, %s" % (s(S_T), s(S_T), s(S_T3)))
    k("s_add_u32 %s, %s, 0x%x" % (s(S_T), s(S_T), WS_HO))
    k("v_lshlrev_b32 %s, 4, v0" % v(a1))
    k("v_add_u32 %s, %s, %s" % (v(a1), s(S_T), v(a1)))
    B = WF[0]
    for ft in range(4):
        A = ACC + 16 * ft
        for r in range(16):
            k("v_max_f32 %s, 0, %s" % (v(B + r), v(A + r)))
        for r in range(16):
            k("v_mul_f32 %s, %s, %s" % (v(A + r), v(A + r), v(B + r)))
        for r in range(8):
            k("v_cvt_pk_bf16_f32 %s, %s, %s" % (v(A + r), v(A + 2 * r), v(A + 2 * r + 1)))
        sc = " sc1" if "sc1" in OPT else (" nt" if "nt" in OPT else "")
        k("buffer_store_dwordx4 %s, %s, %s, 0 offen offset:%d%s" % (v(A, 4), v(a1), s(S_OD, 4), 2048 * (ft & 1), sc))
        k("buffer_store_dwordx4 %s, %s, %s, 0 offen offset:%d%s" % (v(A + 4, 4), v(a1), s(S_OD, 4), 2048 * (ft & 1) + 1024, sc))
        if ft == 1:
            k("v_add_u32 %s, 4096, %s" % (v(a1), v(a1)))


def compute(k, pre, ffn):
    wfrag_addr(k)
    k("s_and_b32 %s, %s, 1" % (s(S_T2), s(S_W)))
    xaddr_base(k, S_T2)
    for j in range(48):
        k("v_mov_b32 %s, 0" % v(ACC + j))
    k("s_mov_b32 %s, %d" % (s(S_SLOT), SLOT0))
    k("s_setprio 2")
    k("s_barrier")
    if "p3" not in OPT:
        prof_mark(k, 4 if "p2" not in OPT else 2)
    compute_phase(k, pre, 3)
    if "p2" in OPT:
        prof_mark(k, 3)
    k("s_nop 7")
    epilogue_q(k)
    if ffn:
        k("s_cmp_eq_u32 %s, 7" % s(S_CT))
        k("s_cbranch_scc1 %s_cdone" % pre)
        k("s_lshr_b32 %s, %s, 1" % (s(S_T), s(S_W)))
        k("s_lshl_b32 %s, %s, 9" % (s(S_T), s(S_T)))
        k("s_add_u32 %s, %s, %d" % (s(S_T), s(S_T), L_BI))
        k("v_lshl_add_u32 v3, v2, 4, %s" % s(S_T))
        for ft in range(4):
            for g in range(4):
                k("ds_read_b128 %s, v3 offset:%d" % (v(ACC + 16 * ft + 4 * g, 4), ft * 128 + g * 32))
        k("s_waitcnt lgkmcnt(0)")
        if "p2" in OPT:
            prof_mark(k, 4)
        compute_phase(k, pre, 4)
        if "p2" in OPT:
            prof_mark(k, 5)
        k("s_nop 7")
        epilogue_f(k)
        k.label(pre + "_cdone")


class Groups:
    def __init__(self):
        self.groups = [[]]

    def __call__(self, txt):
        self.groups[-1].append(txt)
        if txt.startswith("buffer_load"):
            self.groups.append([])


def issue_chunk(k, q, c):
    n = 3 if q else 4
    wrow = 3072 if q else 3584
    k("s_add_u32 m0, %s, %d" % (s(S_LD3 if q else S_LD4), SLOT0 + (c % R) * SLOT))
    if not q:
        k("s_mov_b32 %s, %s" % (s(S_T2), s(S_WO)))
    else:
        k("s_nop 0")
    for i in range(n):
        k("buffer_load_dwordx4 %s, %s, %s offen lds" % (v(VQO + i) if q else v(VFO + (i & 1)), s(S_WD, 4), s(S_WO if q else S_T2)))
        if i < n - 1:
            k("s_add_u32 m0, m0, 1024")
            if q:
                k("s_nop 0")
            else:
                k("s_add_u32 %s, %s, %d" % (s(S_T2), s(S_T2), 2 * wrow))
    k("s_add_u32 %s, %s, %d" % (s(S_WO), s(S_WO), 32 * wrow))
    k("s_cmp_ge_u32 %s, %s" % (s(S_WO), s(S_WEND)))
    k("s_cselect_b32 %s, %d, 0" % (s(S_T), 512 * wrow))
    k("s_sub_u32 %s, %s, %s" % (s(S_WO), s(S_WO), s(S_T)))


def phase_base(k, q):
    wrow = 3072 if q else 3584
    k("s_mul_i32 %s, %s, %d" % (s(S_WO), s(S_LD), 8 * wrow))
    k("s_lshl_b32 %s, %s, %d" % (s(S_T), s(S_CT), 7 if q else 9))
    k("s_add_u32 %s, %s, %s" % (s(S_WO), s(S_WO), s(S_T)))
    k("s_add_u32 %s, %s, %d" % (s(S_WEND), s(S_WO), 512 * wrow))
    k("s_mul_i32 %s, %s, %d" % (s(S_T), s(S_ROT), 32 * wrow))
    k("s_add_u32 %s, %s, %s" % (s(S_WO), s(S_WO), s(S_T)))


def loader_pre(k, pre, ffn):
    k("s_setprio 3")
    k("s_sub_u32 %s, %s, 4" % (s(S_LD), s(S_W)))
    k("s_mov_b32 %s, 0x%x" % (s(S_T), (2 ** 32 + 383) // 384))
    for j in range(3):
        k("v_lshlrev_b32 v12, 4, v0")
        k("v_add_u32 v12, %d, v12" % (1024 * j))
        k("v_mul_hi_u32 v13, v12, %s" % s(S_T))
        k("v_mul_u32_u24 v14, 384, v13")
        k("v_sub_u32 v14, v12, v14")
        k("v_lshrrev_b32 v15, 7, v14")
        k("v_and_b32 v14, 127, v14")
        k("v_bfe_u32 v12, v13, 1, 1")
        k("v_lshlrev_b32 v12, 6, v12")
        k("v_xor_b32 v14, v14, v12")
        k("v_mul_u32_u24 v13, 3072, v13")
        k("v_lshl_add_u32 v13, v15, 10, v13")
        k("v_add_u32 %s, v13, v14" % v(VQO + j))
    k("s_mul_i32 %s, %s, 3072" % (s(S_LD3), s(S_LD)))
    k("s_lshl_b32 %s, %s, 12" % (s(S_LD4), s(S_LD)))
    phase_base(k, True)
    issue_chunk(k, True, 0)
    issue_chunk(k, True, 1)
    for p_ in range(2):
        k("v_lshrrev_b32 v12, 5, v0")
        k("v_add_u32 v12, %d, v12" % (2 * p_))
        k("v_bfe_u32 v13, v0, 2, 3")
        k("v_xor_b32 v13, v13, v12")
        k("v_lshlrev_b32 v13, 6, v13")
        k("v_and_b32 v14, 3, v0")
        k("v_lshl_add_u32 v13, v14, 4, v13")
        k("v_lshrrev_b32 v12, 5, v0")
        k("v_mul_u32_u24 v12, 3584, v12")
        k("v_add_u32 %s, v12, v13" % v(VFO + p_))
    if ffn:
        k("v_lshrrev_b32 v12, 3, v1")
        k("v_bfe_u32 v13, v1, 2, 1")
        k("v_and_b32 v14, 3, v1")
        k("v_lshrrev_b32 v15, 1, v12")
        k("v_and_b32 v12, 1, v12")
        k("v_lshl_add_u32 v14, v12, 2, v14")
        k("v_lshl_add_u32 v14, v13, 3, v14")
        k("v_lshl_add_u32 v14, v15, 4, v14")
        k("v_lshl_add_u32 v14, v2, 5, v14")
        k("s_lshl_b32 %s, %s, 8" % (s(S_T), s(S_CT)))
        k("s_lshl_b32 %s, %s, 6" % (s(S_T2), s(S_LD)))
        k("s_add_u32 %s, %s, %s" % (s(S_T), s(S_T), s(S_T2)))
        k("v_add_u32 v14, %s, v14" % s(S_T))
        k("v_lshlrev_b32 v14, 1, v14")
        k("v_min_u32 v14, 3582, v14")
        k("global_load_ushort v11, v14, %s" % s(S_B1, 2))


def loader_post(k, pre, ffn):
    npf = 4 if "w1n" in OPT else 0
    k("s_waitcnt vmcnt(%d)" % (6 if ffn else 9 + npf))
    if ffn:
        k("v_lshlrev_b32 v11, 16, v11")
        k("s_lshl_b32 %s, %s, 8" % (s(S_T), s(S_LD)))
        k("s_add_u32 %s, %s, %d" % (s(S_T), s(S_T), L_BI))
        k("v_lshl_add_u32 v12, v0, 2, %s" % s(S_T))
        k("ds_write_b32 v12, v11")
        k("s_waitcnt lgkmcnt(0)")
    k("s_barrier")
    k("s_setprio 1")

    def n_of(c):
        return 3 if c < 16 else 4

    def schedule(first, last, total):
        for c in range(first, last + 1):
            younger = sum(n_of(j) for j in (c + 1, c + 2) if j < total)
            if c == 1:
                younger += npf
            k("s_waitcnt vmcnt(%d)" % younger)
            k("s_barrier")
            if c + 3 < total:
                if c + 3 == 16:
                    k.srd(S_WD, S_W1, 512 * 3584)
                    phase_base(k, False)
                issue_chunk(k, c + 3 < 16, c + 3)

    if ffn:
        k("s_cmp_eq_u32 %s, 7" % s(S_CT))
        k("s_cbranch_scc1 %s_lq" % pre)
        schedule(1, 32, 32)
        k("s_branch %s_lend" % pre)
        k.label(pre + "_lq")
    schedule(1, 16, 16)
    k.label(pre + "_lend")
    if "w1pf" in OPT:
        k.srd(S_WD, S_W1, 512 * 3584)
        k("s_lshr_b32 %s, s2, 3" % s(S_T))
        k("s_lshl_b32 %s, %s, 2" % (s(S_T), s(S_T)))
        k("s_add_u32 %s, %s, %s" % (s(S_T), s(S_T), s(S_LD)))
        k("s_mul_i32 %s, %s, %d" % (s(S_T), s(S_T), 4 * 3584))
        k("v_lshlrev_b32 v12, 4, v0")
        for j in range(14):
            k("buffer_load_dwordx4 v[16:19], v12, %s, %s offen" % (s(S_WD, 4), s(S_T)))
            k("s_add_u32 %s, %s, 1024" % (s(S_T), s(S_T)))


def finish(k):
    k("s_waitcnt vmcnt(0)")
    stamp(k, 1, S_WS, S_W)
    if "p2" not in OPT and "p3" not in OPT:
        prof_mark(k, 5)
    prof_rt(k, 6)
    prof_store(k, S_WS, S_W, 28)
    k("s_endpgm")


def gen(k, name, pre, ffn=True):
    k.kernel_begin(name)
    entry(k, pre, name)
    k("s_branch %s_norm" % pre)
    k.label(pre + "_loader")
    loader_pre(k, pre, ffn)
    k.label(pre + "_norm")
    g = Groups()
    issue_chunk(g, True, 2)
    issue_chunk(g, True, 3)
    normalise(k, pre, g.groups, 6 + (1 if ffn else 0))
    k("s_cmp_ge_u32 %s, 4" % s(S_W))
    k("s_cbranch_scc1 %s_lpost" % pre)
    compute(k, pre, ffn)
    finish(k)
    k.label(pre + "_lpost")
    loader_post(k, pre, ffn)
    if "w1pf" in OPT and not common.PROF:
        k("s_endpgm")
    finish(k)
    k.label(pre + "_exit")
    k.kernel_end(name, NV, NV)
    return 256, LDS_BYTES
```

```python
import common
from common import *

SA, SB, CI, P, KF, VF0, VF1, QF, OA = 16, 32, 48, 64, 72, 76, 80, 84, 96
V_LANE16, V_CUR, V_NXT, V_KOFF, V_VOFF, V_T0, V_T1, V_OOFF = 1, 2, 3, 4, 5, 6, 7, 8
SLOT = 24576
TILE = 3072
BIAS = 96.0
ONES = 0x3F803F80

S_WS, S_KV, S_HOS, S_W, S_HEAD, S_QB, S_T, S_C, S_SLOT, S_VM, S_TILE = 4, 8, 12, 16, 17, 18, 19, 20, 21, 22, 24
S_QS = 28
S_NSLOT = 32
S_DBG = 34
S_W2P, S_W2D, S_PFO = 36, 40, 44


OPT = set()


def mfma(k, d, A, B, C):
    k("v_mfma_f32_32x32x16_bf16 %s, %s, %s, %s" % (v(d, 16), v(A, 4), v(B, 4), C if isinstance(C, str) else v(C, 16)))


def dma_chunk(k):
    k("s_mul_i32 %s, %s, %d" % (s(S_T), s(S_W), TILE))
    k("s_add_u32 %s, %s, %s" % (s(S_T), s(S_T), s(S_NSLOT)))
    k("s_mov_b32 m0, %s" % s(S_T))
    k("s_lshl_b32 %s, %s, 11" % (s(S_T + 0), s(S_TILE)))
    k("buffer_load_dwordx4 %s, %s, %s offen lds" % (v(V_KOFF), s(S_KV, 4), s(S_T)))
    k("s_add_u32 m0, m0, 1024")
    k("s_mov_b64 exec, %s" % s(S_VM, 2))
    k("buffer_load_dwordx4 %s, %s, %s offen lds" % (v(V_VOFF), s(S_KV, 4), s(S_T)))
    k("s_add_u32 m0, m0, 512")
    k("s_nop 0")
    k("buffer_load_dwordx4 %s, %s, %s offen offset:512 lds" % (v(V_VOFF), s(S_KV, 4), s(S_T)))
    k("s_mov_b64 exec, -1")


KF2, VF02, VF12 = [KF, 88], [VF0, 92], [VF1, 112]


def tile_body2(k, i, cur, nxt):
    p, q = i & 1, (i + 1) & 1

    def e(j):
        k("v_exp_f32 %s, %s" % (v(cur + j), v(cur + j)))

    def c(j):
        k("v_cvt_pk_bf16_f32 %s, %s, %s" % (v(P + j), v(cur + 2 * j), v(cur + 2 * j + 1)))

    def rd(dst, tile, part):
        base = V_CUR if tile < 8 else V_NXT
        k("ds_read_b128 %s, %s offset:%d" % (v(dst, 4), v(base), (tile % 8) * TILE + part * 1024))

    k("s_waitcnt lgkmcnt(0)")
    mfma(k, nxt, KF2[p], QF, CI)
    rd(VF12[q], i, 2)
    e(0); e(1)
    rd(VF02[q], i + 1, 1)
    e(2); e(3)
    mfma(k, OA, VF12[p], P + 4, OA)
    rd(KF2[q], i + 2, 0)
    c(0); e(4); e(5); c(1); e(6); e(7); c(2); e(8); c(3); e(9); e(10)
    mfma(k, OA, VF02[p], P, OA)
    e(11); c(4); e(12); e(13); c(5); e(14); e(15); c(6); c(7)


def tile_body(k, i, cur, nxt):
    def e(j):
        if "expsep" in OPT:
            k("v_exp_f32 %s, %s" % (v(96 + j), v(cur + j)))
        else:
            k("v_exp_f32 %s, %s" % (v(cur + j), v(cur + j)))

    def c(j):
        k("v_cvt_pk_bf16_f32 %s, %s, %s" % (v(P + j), v(cur + 2 * j), v(cur + 2 * j + 1)))

    def rd(dst, tile, part):
        if "nolds" in OPT:
            return
        base = V_CUR if tile < 8 else V_NXT
        k("ds_read_b128 %s, %s offset:%d" % (v(dst, 4), v(base), (tile % 8) * TILE + part * 1024))

    def w():
        if "nowait" not in OPT:
            k("s_waitcnt lgkmcnt(2)")

    w()
    if "noqk" not in OPT:
        mfma(k, nxt, KF, QF, CI)
    rd(KF, i + 2, 0)
    e(0); e(1); e(2); e(3)
    w()
    if "nopv" not in OPT:
        mfma(k, OA, VF1, P + 4, OA)
    rd(VF1, i, 2)
    c(0); e(4); e(5); c(1); e(6); e(7); c(2); e(8); c(3); e(9); e(10)
    w()
    if "nopv" not in OPT:
        mfma(k, OA, VF0, P, OA)
    rd(VF0, i + 1, 1)
    e(11); c(4); e(12); e(13); c(5); e(14); e(15); c(6); c(7)


def gen_attn(k, name, standalone=True, second_role=None):
    if standalone:
        k.kernel_begin(name)
        k("s_cmp_ge_u32 s2, %d" % (512 if second_role else 256))
        k("s_cbranch_scc1 L_attn_exit")
        prof_start(k)
        if second_role:
            k("s_cmp_ge_u32 s2, 256")
            k("s_cbranch_scc1 L_attn_role2")
        if "noattn" in OPT:
            k("s_endpgm")
        k("s_load_dwordx2 %s, s[0:1], %d" % (s(S_WS, 2), KA_WS))
        k("s_load_dwordx2 %s, s[0:1], %d" % (s(S_DBG, 2), KA_DBG))
        if "w2pf" in OPT:
            k("s_load_dwordx2 %s, s[0:1], %d" % (s(S_W2P, 2), KA_W2))
        if "wopf" in OPT:
            k("s_load_dwordx2 %s, s[0:1], %d" % (s(S_W2P, 2), KA_WO))
            k("s_load_dwordx2 s[46:47], s[0:1], %d" % KA_X)
    k("s_and_b32 %s, s2, 7" % s(S_HEAD))
    k("s_lshl_b32 %s, %s, 2" % (s(S_HEAD), s(S_HEAD)))
    k("s_lshr_b32 %s, s2, 3" % s(S_T))
    k("s_and_b32 %s, %s, 3" % (s(S_T), s(S_T)))
    k("s_add_u32 %s, %s, %s" % (s(S_HEAD), s(S_HEAD), s(S_T)))
    k("s_lshr_b32 %s, s2, 5" % s(S_QB))
    k("v_lshrrev_b32 %s, 6, v0" % v(V_T0))
    k("v_and_b32 v0, 63, v0")
    k("v_readfirstlane_b32 %s, %s" % (s(S_W), v(V_T0)))
    k("v_lshlrev_b32 %s, 4, v0" % v(V_LANE16))
    k("v_mov_b32 %s, %s" % (v(V_KOFF), v(V_LANE16)))
    k("v_lshrrev_b32 %s, 5, v0" % v(V_T0))
    k("v_lshlrev_b32 %s, 8, %s" % (v(V_T0), v(V_T0)))
    k("v_and_b32 %s, 15, v0" % v(V_T1))
    k("v_lshlrev_b32 %s, 4, %s" % (v(V_T1), v(V_T1)))
    k("v_add3_u32 %s, %s, %s, 0" % (v(V_VOFF), v(V_T0), v(V_T1)))
    k("v_add_u32 %s, 1024, %s" % (v(V_VOFF), v(V_VOFF)))
    k("s_mov_b32 %s, 0x0000ffff" % s(S_VM))
    k("s_mov_b32 %s, 0x0000ffff" % s(S_VM + 1))
    k("s_waitcnt lgkmcnt(0)")
    stamp(k, 2, S_WS, S_W)
    k("s_lshl_b32 %s, %s, 17" % (s(S_T), s(S_HEAD)))
    k("s_add_u32 %s, %s, %s" % (s(S_KV), s(S_WS), s(S_T)))
    k("s_addc_u32 %s, %s, 0" % (s(S_KV + 1), s(S_WS + 1)))
    k("s_add_u32 %s, %s, 0x%x" % (s(S_KV), s(S_KV), WS_KV))
    k("s_addc_u32 %s, %s, 0" % (s(S_KV + 1), s(S_KV + 1)))
    k("s_and_b32 %s, %s, 0xffff" % (s(S_KV + 1), s(S_KV + 1)))
    k("s_mov_b32 %s, 0x20000" % s(S_KV + 2))
    k("s_mov_b32 %s, 0x20000" % s(S_KV + 3))
    if "w2pf" in OPT:
        k.srd(S_W2D, S_W2P, 1792 * 1024)
        k("s_lshr_b32 %s, s2, 3" % s(S_PFO))
        k("s_mul_i32 %s, %s, %d" % (s(S_PFO), s(S_PFO), 56 * 1024))
        k("s_lshl_b32 %s, %s, 11" % (s(S_T), s(S_W)))
        k("s_add_u32 %s, %s, %s" % (s(S_PFO), s(S_PFO), s(S_T)))
    k("s_mov_b32 %s, %s" % (s(S_TILE), s(S_W)))
    k("s_mov_b32 %s, 0" % s(S_NSLOT))
    dma_chunk(k)
    k.srd(S_HOS, S_WS, WS_END)
    k("s_lshl_b32 %s, %s, 6" % (s(S_T), s(S_HEAD)))
    k("s_lshl_b32 %s, %s, 3" % (s(S_QS), s(S_QB)))
    k("s_add_u32 %s, %s, %s" % (s(S_QS), s(S_QS), s(S_W)))
    k("s_add_u32 %s, %s, %s" % (s(S_T), s(S_T), s(S_QS)))
    k("s_lshl_b32 %s, %s, 10" % (s(S_T), s(S_T)))
    k("buffer_load_dwordx4 %s, %s, %s, %s offen" % (v(QF, 4), v(V_LANE16), s(S_HOS, 4), s(S_T)))
    k("s_mul_i32 %s, %s, 144" % (s(S_QS), s(S_QS)))
    k("s_add_u32 %s, %s, %s" % (s(S_QS), s(S_QS), s(S_HEAD)))
    k("s_add_u32 %s, %s, 112" % (s(S_QS), s(S_QS)))
    k("s_lshl_b32 %s, %s, 10" % (s(S_QS), s(S_QS)))
    k("s_add_u32 %s, %s, 0x%x" % (s(S_QS), s(S_QS), WS_HO))
    k("v_mov_b32 %s, 0x%x" % (v(P), ONES))
    k("v_mov_b32 %s, 0x%x" % (v(P + 1), ONES))
    k("v_mov_b32 %s, 0x%x" % (v(P + 2), ONES))
    k("v_mov_b32 %s, 0x%x" % (v(P + 3), ONES))
    k("s_mul_i32 %s, %s, %d" % (s(S_T), s(S_W), TILE))
    k("v_add_u32 %s, %s, %s" % (v(V_T0), s(S_T), v(V_LANE16)))
    if "zeropad" in OPT:
        k("v_and_b32 %s, 27, v0" % v(V_T1))
        k("v_cmp_eq_u32 vcc, 16, %s" % v(V_T1))
        k("s_nop 1")
        for j in range(4):
            k("v_cndmask_b32 %s, 0, %s, vcc" % (v(P + j), v(P + j)))
    k("s_mov_b32 exec_lo, 0xffff0000")
    k("s_mov_b32 exec_hi, 0xffff0000")
    for slot in range(3):
        for part in (1, 2):
            k("ds_write_b128 %s, %s offset:%d" % (v(V_T0), v(P, 4), slot * SLOT + part * 1024))
    k("s_mov_b64 exec, -1")
    if "late1" not in OPT:
        k("s_add_u32 %s, %s, 8" % (s(S_TILE), s(S_TILE)))
        k("s_mov_b32 %s, %d" % (s(S_NSLOT), SLOT))
        dma_chunk(k)
        k("s_waitcnt vmcnt(3) lgkmcnt(0)")
    else:
        k("s_waitcnt vmcnt(0) lgkmcnt(0)")
    k("s_barrier")
    prof_mark(k, 2)
    bufs = (SA, SB, CI, OA)
    frs = (KF, VF0, VF1, P)
    for t in range(4):
        k("ds_read_b128 %s, %s offset:%d" % (v(frs[t], 4), v(V_LANE16), t * TILE))
    for t in range(4):
        k("s_waitcnt lgkmcnt(%d)" % (3 - t))
        mfma(k, bufs[t], frs[t], QF, "0")
    k("ds_read_b128 %s, %s offset:%d" % (v(KF, 4), v(V_LANE16), 0))
    k("s_nop 7")
    m = V_T0
    k("v_max3_f32 %s, %s, %s, %s" % (v(m), v(SA), v(SA + 1), v(SA + 2)))
    regs = [SA + j for j in range(3, 16)] + [SB + j for j in range(16)]
    for j in range(0, len(regs) - 1, 2):
        k("v_max3_f32 %s, %s, %s, %s" % (v(m), v(m), v(regs[j]), v(regs[j + 1])))
    k("v_max_f32 %s, %s, %s" % (v(m), v(m), v(regs[-1])))
    regs = [CI + j for j in range(16)] + [OA + j for j in range(16)]
    for j in range(0, 32, 2):
        k("v_max3_f32 %s, %s, %s, %s" % (v(m), v(m), v(regs[j]), v(regs[j + 1])))
    k("v_mov_b32 %s, %s" % (v(V_T1), v(m)))
    k("s_nop 1")
    k("v_permlane32_swap_b32 %s, %s" % (v(V_T1), v(m)))
    k("s_nop 1")
    k("v_max_f32 %s, %s, %s" % (v(m), v(m), v(V_T1)))
    k("v_add_f32 %s, 0x%x, %s" % (v(m), f2u(BIAS), v(m)))
    for j in range(16):
        k("v_sub_f32 %s, 0, %s" % (v(CI + j), v(m)))
    for j in range(16):
        k("v_mov_b32 %s, 0" % v(OA + j))
    for j in range(4):
        k("v_mov_b32 %s, 0" % v(P + 4 + j))
        k("v_mov_b32 %s, 0" % v(VF1 + j))
    k("s_waitcnt lgkmcnt(0)")
    mfma(k, SA, KF, QF, CI)
    k("ds_read_b128 %s, %s offset:%d" % (v(KF, 4), v(V_LANE16), TILE))
    k("ds_read_b128 %s, %s offset:%d" % (v(VF0, 4), v(V_LANE16), 1024))
    k("v_mov_b32 %s, %s" % (v(V_CUR), v(V_LANE16)))
    k("v_add_u32 %s, %d, %s" % (v(V_NXT), SLOT, v(V_LANE16)))
    if "late1" in OPT:
        k("s_add_u32 %s, %s, 8" % (s(S_TILE), s(S_TILE)))
        k("s_mov_b32 %s, %d" % (s(S_NSLOT), SLOT))
        dma_chunk(k)
    k("s_mov_b32 %s, 0" % s(S_C))
    k("s_mov_b32 %s, %d" % (s(S_NSLOT), 2 * SLOT))
    k("s_waitcnt lgkmcnt(0)")
    k("s_nop 7")
    prof_mark(k, 3)
    k(".p2align 6")
    k.label("L_attn_chunk")
    for i in range(8):
        if i == 4:
            k("s_waitcnt vmcnt(0)")
            if "nobar" not in OPT:
                k("s_barrier")
            k("s_cmp_ge_u32 %s, 6" % s(S_C))
            k("s_cbranch_scc1 L_attn_nodma")
            k("s_add_u32 %s, %s, 8" % (s(S_TILE), s(S_TILE)))
            if "nodma" not in OPT:
                dma_chunk(k)
            if "wopf" in OPT:
                cpf = 4 if "wopf4" in OPT else 5
                k("s_cmp_eq_u32 %s, %d" % (s(S_C), cpf))
                k("s_cbranch_scc0 L_attn_nodma")
                k.srd(S_W2D, S_W2P, 512 * 1024)
                k("s_lshr_b32 %s, s2, 3" % s(S_PFO))
                k("s_lshl_b32 %s, %s, 3" % (s(S_PFO), s(S_PFO)))
                k("s_add_u32 %s, %s, %s" % (s(S_PFO), s(S_PFO), s(S_W)))
                k("s_lshl_b32 %s, %s, 11" % (s(S_T), s(S_PFO)))
                k("buffer_load_dwordx4 v[116:119], %s, %s, %s offen" % (v(V_LANE16), s(S_W2D, 4), s(S_T)))
                k("buffer_load_dwordx4 v[116:119], %s, %s, %s offen offset:1024" % (v(V_LANE16), s(S_W2D, 4), s(S_T)))
                k.srd(S_W2D, 46, 2048 * 1024)
                k("s_and_b32 %s, s2, 7" % s(S_T))
                k("s_lshl_b32 %s, %s, 8" % (s(S_T), s(S_T)))
                k("s_add_u32 %s, %s, %s" % (s(S_T), s(S_T), s(S_PFO)))
                k("s_lshl_b32 %s, %s, 10" % (s(S_T), s(S_T)))
                k("buffer_load_dwordx4 v[116:119], %s, %s, %s offen" % (v(V_LANE16), s(S_W2D, 4), s(S_T)))
            if "w2pf" in OPT:
                k("s_cmp_ge_u32 %s, 4" % s(S_C))
                k("s_cbranch_scc1 L_attn_nodma")
                k("buffer_load_dwordx4 v[116:119], %s, %s, %s offen" % (v(V_LANE16), s(S_W2D, 4), s(S_PFO)))
                k("buffer_load_dwordx4 v[116:119], %s, %s, %s offen offset:1024" % (v(V_LANE16), s(S_W2D, 4), s(S_PFO)))
                k("s_add_u32 %s, %s, 16384" % (s(S_PFO), s(S_PFO)))
            k.label("L_attn_nodma")
        if "prio2" in OPT and i % 2 == 0:
            k("s_setprio %d" % (3 - ((i - 4) % 8) // 2))
        if "prio3" in OPT and ((i - 4) % 8) in (0, 3, 6):
            k("s_setprio %d" % {0: 2, 3: 1, 6: 0}[(i - 4) % 8])
        if "prio1" in OPT:
            k("s_setprio %d" % (3 - ((i - 4) % 4)))
        if "prio1" in OPT and "bar4" in OPT and i == 0:
            k("s_barrier")
        (tile_body2 if "onewait" in OPT else tile_body)(k, i, SA if i % 2 == 0 else SB, SB if i % 2 == 0 else SA)
    k("v_mov_b32 %s, %s" % (v(V_CUR), v(V_NXT)))
    k("v_add_u32 %s, %s, %s" % (v(V_NXT), s(S_NSLOT), v(V_LANE16)))
    k("s_add_u32 %s, %s, %d" % (s(S_NSLOT), s(S_NSLOT), SLOT))
    k("s_cmp_ge_u32 %s, %d" % (s(S_NSLOT), 3 * SLOT))
    k("s_cselect_b32 %s, 0, %s" % (s(S_NSLOT), s(S_NSLOT)))
    k("s_add_u32 %s, %s, 1" % (s(S_C), s(S_C)))
    k("s_cmp_lt_u32 %s, 8" % s(S_C))
    k("s_cbranch_scc1 L_attn_chunk")
    k("s_waitcnt lgkmcnt(0)")
    prof_mark(k, 4)
    mfma(k, OA, VF1, P + 4, OA)
    k("s_nop 15")
    t = V_T0
    k("v_mul_f32 %s, 0, %s" % (v(t), v(OA)))
    for j in range(1, 8):
        k("v_fma_f32 %s, %s, 0, %s" % (v(t), v(OA + j), v(t)))
    k("s_mov_b32 %s, 0x%x" % (s(S_T), f2u(2.0 ** 100)))
    k("v_cmp_ngt_f32 vcc, %s, %s" % (s(S_T), v(OA + 8)))
    k("v_cmp_u_f32 %s, %s, %s" % (s(S_C, 2), v(t), v(t)))
    k("s_nop 1")
    k("s_or_b64 vcc, vcc, %s" % s(S_C, 2))
    k("s_cbranch_vccnz L_attn_slow")
    k.label("L_attn_fin")
    k("v_rcp_f32 %s, %s" % (v(t), v(OA + 8)))
    k("s_nop 0")
    for j in range(8):
        k("v_mul_f32 %s, %s, %s" % (v(OA + j), v(OA + j), v(t)))
    for j in range(4):
        k("v_cvt_pk_bf16_f32 %s, %s, %s" % (v(P + j), v(OA + 2 * j), v(OA + 2 * j + 1)))
    if "tagged" in OPT:
        k("buffer_store_dwordx4 %s, %s, %s, %s offen sc1" % (v(P, 4), v(V_LANE16), s(S_HOS, 4), s(S_QS)))
    elif "signal" in OPT:
        k("buffer_store_dwordx4 %s, %s, %s, %s offen sc1" % (v(P, 4), v(V_LANE16), s(S_HOS, 4), s(S_QS)))
        k("s_lshl_b32 %s, %s, 3" % (s(S_T), s(S_QB)))
        k("s_add_u32 %s, %s, %s" % (s(S_T), s(S_T), s(S_W)))
        k("s_lshl_b32 %s, %s, 5" % (s(S_T), s(S_T)))
        k("s_add_u32 %s, %s, %s" % (s(S_T), s(S_T), s(S_HEAD)))
        k("s_lshl_b32 %s, %s, 2" % (s(S_T), s(S_T)))
        k("s_add_u32 %s, %s, 0x%x" % (s(S_T), s(S_T), WS_FLAG + FLAG_O))
        k("v_mov_b32 %s, %s" % (v(V_T0), s(S_T)))
        k("v_mov_b32 %s, 1" % v(V_T1))
        k("s_waitcnt vmcnt(0)")
        k("s_mov_b64 exec, 1")
        k("global_store_dword %s, %s, %s sc1" % (v(V_T0), v(V_T1), s(S_WS, 2)))
        k("s_mov_b64 exec, -1")
        k.label("L_attn_nosig")
    else:
        k("buffer_store_dwordx4 %s, %s, %s, %s offen" % (v(P, 4), v(V_LANE16), s(S_HOS, 4), s(S_QS)))
    k("s_waitcnt vmcnt(0)")
    stamp(k, 3, S_WS, S_W)
    prof_mark(k, 5)
    prof_rt(k, 6)
    prof_store(k, S_WS, S_W, 16)
    k("s_endpgm")
    k.label("L_attn_slow")
    k("v_mov_b32 %s, 0xff800000" % v(m))
    k("s_mov_b32 %s, 0" % s(S_C))
    k.label("L_attn_slow_max")
    k("buffer_load_dwordx4 %s, %s, %s, %s offen" % (v(KF, 4), v(V_KOFF), s(S_KV, 4), s(S_C)))
    k("s_waitcnt vmcnt(0)")
    mfma(k, SA, KF, QF, "0")
    k("s_nop 15")
    for j in range(0, 16, 2):
        k("v_max3_f32 %s, %s, %s, %s" % (v(m), v(m), v(SA + j), v(SA + j + 1)))
    k("s_add_u32 %s, %s, 2048" % (s(S_C), s(S_C)))
    k("s_cmp_lt_u32 %s, 0x20000" % s(S_C))
    k("s_cbranch_scc1 L_attn_slow_max")
    k("v_mov_b32 %s, %s" % (v(V_T1), v(m)))
    k("s_nop 1")
    k("v_permlane32_swap_b32 %s, %s" % (v(V_T1), v(m)))
    k("s_nop 1")
    k("v_max_f32 %s, %s, %s" % (v(m), v(m), v(V_T1)))
    for j in range(16):
        k("v_sub_f32 %s, 0, %s" % (v(CI + j), v(m)))
        k("v_mov_b32 %s, 0" % v(OA + j))
    for j in range(4):
        k("v_mov_b32 %s, 0x%x" % (v(VF0 + j), ONES))
        k("v_mov_b32 %s, 0x%x" % (v(VF1 + j), ONES))
    k("s_mov_b32 %s, 0" % s(S_C))
    k.label("L_attn_slow_pv")
    k("buffer_load_dwordx4 %s, %s, %s, %s offen" % (v(KF, 4), v(V_KOFF), s(S_KV, 4), s(S_C)))
    k("s_mov_b64 exec, %s" % s(S_VM, 2))
    k("buffer_load_dwordx4 %s, %s, %s, %s offen" % (v(VF0, 4), v(V_VOFF), s(S_KV, 4), s(S_C)))
    k("buffer_load_dwordx4 %s, %s, %s, %s offen offset:512" % (v(VF1, 4), v(V_VOFF), s(S_KV, 4), s(S_C)))
    k("s_mov_b64 exec, -1")
    k("s_waitcnt vmcnt(0)")
    mfma(k, SA, KF, QF, CI)
    k("s_nop 15")
    for j in range(16):
        k("v_exp_f32 %s, %s" % (v(SA + j), v(SA + j)))
    k("s_nop 0")
    for j in range(8):
        k("v_cvt_pk_bf16_f32 %s, %s, %s" % (v(P + j), v(SA + 2 * j), v(SA + 2 * j + 1)))
    k("s_nop 1")
    mfma(k, OA, VF0, P, OA)
    mfma(k, OA, VF1, P + 4, OA)
    k("s_add_u32 %s, %s, 2048" % (s(S_C), s(S_C)))
    k("s_cmp_lt_u32 %s, 0x20000" % s(S_C))
    k("s_cbranch_scc1 L_attn_slow_pv")
    k("s_nop 15")
    k("s_branch L_attn_fin")
    if second_role:
        k.label("L_attn_role2")
        second_role(k)
    if standalone:
        k.label("L_attn_exit")
        nv = 128 if (common.PROF or second_role) else 112
        k.kernel_end(name, nv, nv)


if __name__ == "__main__":
    import sys
    common.PROF = "prof" in sys.argv
    OPT.update(sys.argv[1:])
    k = Asm()
    k.lines.append(HEADER.rstrip())
    k.lines.append("; @launch kernel=attn_kernel grid=(256,1,1) block=(512,1,1) lds=%d" % (3 * SLOT))
    k('.amdgcn_target "amdgcn-amd-amdhsa--gfx950"')
    gen_attn(k, "attn_kernel")
    open("attn_%s.s" % "_".join(["v"] + [x for x in sys.argv[1:] if x != "prof"]), "w").write(k.text())
```

```python
import common
from common import *
import g2
from g2 import S_W, S_RB, S_CB, S_RL, S_T, S_T2, S_WS, S_HD

OPT = set()
WS_XN = 20 << 20
FLAG_H = 8192
ROWB = 448
SLOT = 32 * ROWB
R = 5
L_BI = R * SLOT
LDS_NEED = L_BI + 1024

S_W1, S_B1 = 62, 64
S_W1D = 68
S_LD, S_WO, S_WEND, S_SLOT, S_KC, S_C, S_XB, S_XO, S_ROT, S_LDO = 72, 73, 74, 75, 76, 77, 78, 79, 59, 66

VWB, VW2 = 8, 9
XR = 16
WF = [32, 48]
ACC = 64
VSRC = 8


def next_slot(k):
    k("s_add_u32 %s, %s, %d" % (s(S_SLOT), s(S_SLOT), SLOT))
    k("s_cmp_ge_u32 %s, %d" % (s(S_SLOT), R * SLOT))
    k("s_cselect_b32 %s, 0, %s" % (s(S_SLOT), s(S_SLOT)))


def loader(k, pre):
    k("s_sub_u32 %s, %s, 4" % (s(S_LD), s(S_W)))
    k("s_and_b32 %s, %s, 1" % (s(S_T), s(S_LD)))
    k("s_lshl_b32 %s, %s, 2" % (s(S_T), s(S_T)))
    k("s_mov_b32 %s, 0x%x" % (s(S_T2), (2 ** 32 + ROWB - 1) // ROWB))
    for j in range(4):
        k("s_add_u32 %s, %s, %d" % (s(S_C), s(S_T), j))
        k("s_min_u32 %s, %s, 6" % (s(S_C), s(S_C)))
        k("s_lshl_b32 %s, %s, 10" % (s(S_C), s(S_C)))
        k("v_lshl_add_u32 v12, v0, 4, %s" % s(S_C))
        k("v_mul_hi_u32 v13, v12, %s" % s(S_T2))
        k("v_mul_u32_u24 v14, %d, v13" % ROWB)
        k("v_sub_u32 v14, v12, v14")
        k("v_mul_u32_u24 v13, 3584, v13")
        k("v_add_u32 %s, v13, v14" % v(VSRC + j))
    k("s_lshr_b32 %s, %s, 1" % (s(S_C), s(S_LD)))
    k("s_mul_i32 %s, %s, %d" % (s(S_LDO), s(S_C), 16 * ROWB))
    k("s_lshl_b32 %s, %s, 10" % (s(S_T), s(S_T)))
    k("s_add_u32 %s, %s, %s" % (s(S_LDO), s(S_LDO), s(S_T)))
    k("s_mul_i32 %s, %s, %d" % (s(S_WO), s(S_C), 16 * 3584))
    k("s_mul_i32 %s, %s, %d" % (s(S_T), s(S_CB), ROWB))
    k("s_add_u32 %s, %s, %s" % (s(S_WO), s(S_WO), s(S_T)))
    k("s_add_u32 %s, %s, %d" % (s(S_WEND), s(S_WO), 512 * 3584))
    k("s_mul_i32 %s, %s, %d" % (s(S_T), s(S_ROT), 32 * 3584))
    k("s_add_u32 %s, %s, %s" % (s(S_WO), s(S_WO), s(S_T)))
    k("s_and_b32 %s, %s, 1" % (s(S_KC), s(S_LD)))

    def issue(c):
        k("s_add_u32 m0, %s, %d" % (s(S_LDO), (c % R) * SLOT))
        k("s_nop 0")
        for j in range(4):
            k("buffer_load_dwordx4 %s, %s, %s offen lds" % (v(VSRC + j), s(S_W1D, 4), s(S_WO)))
            if j < 2:
                k("s_add_u32 m0, m0, 1024")
                k("s_nop 0")
            elif j == 2:
                k("s_add_u32 m0, m0, %s" % s(S_XB))
                k("s_nop 0")
        k("s_add_u32 %s, %s, %d" % (s(S_WO), s(S_WO), 32 * 3584))
        k("s_cmp_ge_u32 %s, %s" % (s(S_WO), s(S_WEND)))
        k("s_cselect_b32 %s, %d, 0" % (s(S_T), 512 * 3584))
        k("s_sub_u32 %s, %s, %s" % (s(S_WO), s(S_WO), s(S_T)))

    k("s_cmp_eq_u32 %s, 0" % s(S_KC))
    k("s_cselect_b32 %s, 1024, 0" % s(S_XB))
    k("v_lshrrev_b32 v12, 3, v1")
    k("v_bfe_u32 v13, v1, 2, 1")
    k("v_and_b32 v14, 3, v1")
    k("v_lshrrev_b32 v15, 1, v12")
    k("v_and_b32 v12, 1, v12")
    k("v_lshl_add_u32 v14, v12, 2, v14")
    k("v_lshl_add_u32 v14, v13, 3, v14")
    k("v_lshl_add_u32 v14, v15, 4, v14")
    k("v_lshl_add_u32 v14, v2, 5, v14")
    k("s_mul_i32 %s, %s, 224" % (s(S_T), s(S_CB)))
    k("s_lshl_b32 %s, %s, 6" % (s(S_T2), s(S_LD)))
    k("s_add_u32 %s, %s, %s" % (s(S_T), s(S_T), s(S_T2)))
    k("v_add_u32 v14, %s, v14" % s(S_T))
    k("v_lshlrev_b32 v14, 1, v14")
    k("v_min_u32 v14, 3582, v14")
    if "early" in OPT:
        if "lp" in OPT:
            prof_mark(k, 2)
        issue(0)
        issue(1)
        if "lp" in OPT:
            prof_mark(k, 3)
        k("global_load_ushort v15, v14, %s" % s(S_B1, 2))
        k("s_waitcnt vmcnt(0)")
        if "lp" in OPT:
            prof_mark(k, 4)
    else:
        k("global_load_ushort v15, v14, %s" % s(S_B1, 2))
        k("s_waitcnt vmcnt(0)")
    k("v_lshlrev_b32 v15, 16, v15")
    k("s_lshl_b32 %s, %s, 8" % (s(S_T), s(S_LD)))
    k("s_add_u32 %s, %s, %d" % (s(S_T), s(S_T), L_BI))
    k("v_lshl_add_u32 v12, v0, 2, %s" % s(S_T))
    k("ds_write_b32 v12, v15")
    if "early" in OPT:
        k("s_waitcnt lgkmcnt(0)")
        k("s_barrier")
        issue(2)
        issue(3)
    else:
        for c in range(4):
            issue(c)
        k("s_waitcnt vmcnt(12) lgkmcnt(0)")
    if "early" not in OPT:
        k("s_barrier")
    pf = "w2pf" in OPT
    if pf:
        pass
    npf = 0
    for c in range(1, 17):
        younger = 4 * sum(1 for j in (c + 1, c + 2) if j < 16)
        extra = npf if c + 1 >= 16 else 0
        k("s_waitcnt vmcnt(%d)" % min(63, younger + (npf if pf and c >= 14 else 0)))
        k("s_barrier")
        if c + 3 < 16:
            issue(c + 3)
        if pf and c == 13:
            k.srd(S_W1D, g2.S_W2, 1792 * 1024)
            k("v_lshrrev_b32 v12, 3, v0")
            k("v_and_b32 v13, 7, v0")
            k("v_lshlrev_b32 v13, 4, v13")
            k("v_lshl_add_u32 v12, v12, 10, v13")
            k("s_mul_i32 %s, %s, %d" % (s(S_T), s(S_RL), 448 * 1024))
            k("s_mul_i32 %s, %s, %d" % (s(S_T2), s(S_LD), 112 * 1024))
            k("s_add_u32 %s, %s, %s" % (s(S_T), s(S_T), s(S_T2)))
            k("s_lshl_b32 %s, %s, 7" % (s(S_T2), s(S_CB)))
            k("s_add_u32 %s, %s, %s" % (s(S_WO), s(S_T), s(S_T2)))
        if pf and c >= 13:
            n = 4 if c < 16 else 2
            for j in range(n):
                k("buffer_load_dwordx4 v[16:19], v12, %s, %s offen" % (s(S_W1D, 4), s(S_WO)))
                k("s_add_u32 %s, %s, 8192" % (s(S_WO), s(S_WO)))
            npf += n
    if "w2post" in OPT:
        k.srd(S_W1D, g2.S_W2, 1792 * 1024)
        k("v_lshrrev_b32 v12, 3, v0")
        k("v_and_b32 v13, 7, v0")
        k("v_lshlrev_b32 v13, 4, v13")
        k("v_lshl_add_u32 v12, v12, 10, v13")
        k("s_mul_i32 %s, %s, %d" % (s(S_T), s(S_RL), 448 * 1024))
        k("s_mul_i32 %s, %s, %d" % (s(S_T2), s(S_LD), 112 * 1024))
        k("s_add_u32 %s, %s, %s" % (s(S_T), s(S_T), s(S_T2)))
        k("s_lshl_b32 %s, %s, 7" % (s(S_T2), s(S_CB)))
        k("s_add_u32 %s, %s, %s" % (s(S_WO), s(S_T), s(S_T2)))
        for j in range(14):
            k("buffer_load_dwordx4 v[16:19], v12, %s, %s offen" % (s(S_W1D, 4), s(S_WO)))
            k("s_add_u32 %s, %s, 8192" % (s(S_WO), s(S_WO)))
    if "w8" in g2.OPT:
        k("s_branch %s_post" % pre)
    else:
        if "lp" in OPT:
            prof_mark(k, 5)
            prof_rt(k, 6)
            prof_store(k, S_WS, S_W, 24)
        k("s_endpgm")


def compute(k, pre):
    k("v_bfe_u32 v12, v0, 2, 2")
    k("v_and_b32 v13, 3, v0")
    k("v_bfe_u32 v14, v0, 4, 1")
    k("v_lshl_add_u32 v13, v14, 2, v13")
    k("v_and_b32 v14, 1, v13")
    k("v_lshrrev_b32 v15, 1, v13")
    k("v_lshrrev_b32 v11, 1, v15")
    k("v_and_b32 v15, 1, v15")
    k("v_lshl_add_u32 v15, v14, 1, v15")
    k("v_lshl_add_u32 v13, v11, 2, v15")
    k("v_lshl_add_u32 v14, v2, 3, v12")
    k("v_mul_u32_u24 v14, %d, v14" % ROWB)
    k("v_lshl_add_u32 v14, v13, 3, v14")
    k("s_lshr_b32 %s, %s, 1" % (s(S_T), s(S_W)))
    k("s_lshl_b32 %s, %s, 8" % (s(S_T), s(S_T)))
    k("v_add_u32 %s, %s, v14" % (v(VWB), s(S_T)))
    k("v_lshlrev_b32 v3, 4, v0")
    k("s_lshl_b32 %s, %s, 1" % (s(S_T), s(S_RB)))
    k("s_and_b32 %s, %s, 1" % (s(S_T2), s(S_W)))
    k("s_add_u32 %s, %s, %s" % (s(S_T), s(S_T), s(S_T2)))
    k("s_lshl_b32 %s, %s, 15" % (s(S_XB), s(S_T)))
    k("s_add_u32 %s, %s, 0x%x" % (s(S_XB), s(S_XB), WS_XN))
    k("s_lshl_b32 %s, %s, 11" % (s(S_XO), s(S_ROT)))

    def xload(slot):
        k("s_add_u32 %s, %s, %s" % (s(S_T), s(S_XB), s(S_XO)))
        k("buffer_load_dwordx4 %s, v3, %s, %s offen" % (v(XR + 4 * slot, 4), s(S_HD, 4), s(S_T)))
        k("s_add_u32 %s, %s, 1024" % (s(S_XO), s(S_XO)))
        k("s_and_b32 %s, %s, 0x7fff" % (s(S_XO), s(S_XO)))

    for sl in range(3):
        xload(sl)
    k("s_mov_b32 %s, 0" % s(S_SLOT))
    k("s_barrier")
    if "p" in OPT:
        prof_mark(k, 3)
    k("s_lshr_b32 %s, %s, 1" % (s(S_T), s(S_W)))
    k("s_lshl_b32 %s, %s, 9" % (s(S_T), s(S_T)))
    k("s_add_u32 %s, %s, %d" % (s(S_T), s(S_T), L_BI))
    k("v_lshl_add_u32 v12, v2, 4, %s" % s(S_T))
    for ft in range(4):
        for g in range(4):
            k("ds_read_b128 %s, v12 offset:%d" % (v(ACC + 16 * ft + 4 * g, 4), ft * 128 + g * 32))
    F = 4

    def slot_ops(par):
        k("v_add_u32 %s, %s, %s" % (v(VW2 + par), s(S_SLOT), v(VWB)))

    def rd_w(par, st, buf, ft):
        for u in range(2):
            k("ds_read_b64_tr_b16 %s, %s offset:%d" % (v(WF[buf] + 4 * ft + 2 * u, 2), v(VW2 + par), st * 16 * ROWB + u * 4 * ROWB + ft * 64))

    slot_ops(0)
    for ft in range(F):
        rd_w(0, 0, 0, ft)
    k("s_waitcnt lgkmcnt(8)")
    k("s_mov_b32 %s, 0" % s(S_C))
    k.label(pre + "_loop")
    step = 0
    for par in range(2):
        for st in range(2):
            b, nb = st, 1 - st
            npar = par if st == 0 else 1 - par
            xs = step & 3
            k("s_waitcnt vmcnt(2)")
            for ft in range(F):
                newer = 2 * (F - 1 - ft) + 2 * ft
                k("s_waitcnt lgkmcnt(%d)" % newer)
                d = v(ACC + 16 * ft, 16)
                k("v_mfma_f32_32x32x16_bf16 %s, %s, %s, %s" % (d, v(WF[b] + 4 * ft, 4), v(XR + 4 * xs, 4), d))
                if ft == 0 and st == 1:
                    k("s_barrier")
                rd_w(npar, 1 - st, nb, ft)
                if ft == 0:
                    xload((xs + 3) & 3)
                if st == 0 and ft == 1:
                    next_slot(k)
                if st == 0 and ft == F - 1:
                    slot_ops(1 - par)
            step += 1
    k("s_add_u32 %s, %s, 1" % (s(S_C), s(S_C)))
    k("s_cmp_lt_u32 %s, 8" % s(S_C))
    k("s_cbranch_scc1 %s_loop" % pre)
    k("s_waitcnt vmcnt(0) lgkmcnt(0)")
    if "p" in OPT:
        prof_mark(k, 4)
    k("s_lshl_b32 %s, %s, 1" % (s(S_T2), s(S_RB)))
    k("s_and_b32 %s, %s, 1" % (s(S_T), s(S_W)))
    k("s_add_u32 %s, %s, %s" % (s(S_T2), s(S_T2), s(S_T)))
    k("s_mul_i32 %s, %s, %d" % (s(S_T), s(S_T2), WS_HO_ROW))
    k("s_mul_i32 %s, %s, %d" % (s(S_T2), s(S_CB), 14 * 1024))
    k("s_add_u32 %s, %s, %s" % (s(S_T), s(S_T), s(S_T2)))
    k("s_lshr_b32 %s, %s, 1" % (s(S_T2), s(S_W)))
    k("s_lshl_b32 %s, %s, 13" % (s(S_C), s(S_T2)))
    k("s_add_u32 %s, %s, %s" % (s(S_T), s(S_T), s(S_C)))
    k("s_add_u32 %s, %s, 0x%x" % (s(S_T), s(S_T), WS_HO))
    k("v_add_u32 v12, %s, v3" % s(S_T))
    B = WF[0]
    for ft in range(4):
        if ft == 3:
            k("s_cmp_lg_u32 %s, 0" % s(S_T2))
            k("s_cbranch_scc1 %s_nost" % pre)
        A = ACC + 16 * ft
        for r in range(16):
            k("v_max_f32 %s, 0, %s" % (v(B + r), v(A + r)))
        for r in range(16):
            k("v_mul_f32 %s, %s, %s" % (v(A + r), v(A + r), v(B + r)))
        for r in range(8):
            k("v_cvt_pk_bf16_f32 %s, %s, %s" % (v(A + r), v(A + 2 * r), v(A + 2 * r + 1)))
        k("buffer_store_dwordx4 %s, v12, %s, 0 offen offset:%d sc1" % (v(A, 4), s(S_HD, 4), 2048 * (ft & 1)))
        k("buffer_store_dwordx4 %s, v12, %s, 0 offen offset:%d sc1" % (v(A + 4, 4), s(S_HD, 4), 2048 * (ft & 1) + 1024))
        if ft == 1:
            k("v_add_u32 v12, 4096, v12")
    k.label(pre + "_nost")
    k("s_waitcnt vmcnt(0)")
    if "p" in OPT:
        prof_mark(k, 5)
    if "hpf" in OPT:
        k("v_add_u32 v12, %s, v3" % s(S_T))
        for j in range(8):
            if j == 4:
                k("v_add_u32 v12, 4096, v12")
            if j == 6:
                k("s_cmp_lg_u32 %s, 0" % s(S_T2))
                k("s_cbranch_scc1 %s_nre" % pre)
            k("buffer_load_dwordx4 %s, v12, %s, 0 offen offset:%d sc1" % (v(XR + 4 * (j & 3), 4), s(S_HD, 4), 1024 * (j & 3)))
        k.label(pre + "_nre")
    if "wf" in OPT:
        k("s_lshl_b32 %s, %s, 7" % (s(S_C), s(S_RB)))
        k("s_add_u32 %s, %s, 0x%x" % (s(S_C), s(S_C), WS_FLAG + FLAG_H))
        k("s_lshl_b32 %s, %s, 2" % (s(S_T), s(S_CB)))
        k("s_add_u32 %s, %s, %s" % (s(S_T), s(S_T), s(S_W)))
        k("s_lshl_b32 %s, %s, 2" % (s(S_T), s(S_T)))
        k("s_add_u32 %s, %s, %s" % (s(S_T), s(S_T), s(S_C)))
        k("v_mov_b32 v12, %s" % s(S_T))
        k("v_mov_b32 v13, 1")
        k("s_mov_b64 exec, 1")
        k("global_store_dword v12, v13, %s sc1" % s(S_WS, 2))
        k("s_mov_b64 exec, -1")
        k("s_lshl_b32 %s, %s, 5" % (s(S_T), s(S_W)))
        k("s_add_u32 %s, %s, %s" % (s(S_C), s(S_C), s(S_T)))
        k("v_and_b32 v8, 7, v0")
        k("v_lshl_add_u32 v8, v8, 2, %s" % s(S_C))
        k("s_mov_b32 %s, 0" % s(S_KC))
        k.label(pre + "_wp")
        k("global_load_dword v9, v8, %s sc1" % s(S_WS, 2))
        k("s_add_u32 %s, %s, 1" % (s(S_KC), s(S_KC)))
        k("s_waitcnt vmcnt(0)")
        k("v_cmp_eq_u32 vcc, 0, v9")
        k("s_nop 1")
        k("s_cmp_eq_u64 vcc, 0")
        k("s_cbranch_scc1 %s_wg" % pre)
        k("s_sleep 2")
        k("s_cmp_lt_u32 %s, 0x40000" % s(S_KC))
        k("s_cbranch_scc1 %s_wp" % pre)
        k.label(pre + "_wg")
        return
    k.label(pre + "_post")
    k("s_barrier")
    k("s_lshl_b32 %s, %s, 7" % (s(S_C), s(S_RB)))
    k("s_add_u32 %s, %s, 0x%x" % (s(S_C), s(S_C), WS_FLAG + FLAG_H))
    k("s_cmp_eq_u32 %s, 0" % s(S_W))
    k("s_cbranch_scc0 %s_nf" % pre)
    k("s_lshl_b32 %s, %s, 2" % (s(S_T), s(S_CB)))
    k("s_add_u32 %s, %s, %s" % (s(S_T), s(S_T), s(S_C)))
    k("v_mov_b32 v12, %s" % s(S_T))
    k("v_mov_b32 v13, 1")
    k("s_mov_b64 exec, 1")
    k("global_store_dword v12, v13, %s sc1" % s(S_WS, 2))
    k("s_mov_b64 exec, -1")
    k.label(pre + "_nf")
    g2.wait_flags(k, pre + "_hw", S_C, 8, far=False)


def phase(k, pre):
    if "map84" in g2.OPT:
        k("s_lshl_b32 %s, %s, 1" % (s(S_ROT), s(S_RL)))
        k("s_and_b32 %s, %s, 3" % (s(S_T), s(S_CB)))
        k("s_lshl_b32 %s, %s, 2" % (s(S_T), s(S_T)))
    else:
        k("s_lshl_b32 %s, %s, 2" % (s(S_ROT), s(S_RL)))
        k("s_lshl_b32 %s, %s, 1" % (s(S_T), s(S_CB)))
    k("s_add_u32 %s, %s, %s" % (s(S_ROT), s(S_ROT), s(S_T)))
    k("s_and_b32 %s, %s, 15" % (s(S_ROT), s(S_ROT)))
    k("s_mov_b32 %s, %s" % (s(S_W1D), s(S_W1)))
    k("s_and_b32 %s, %s, 0xffff" % (s(S_W1D + 1), s(S_W1 + 1)))
    k("s_mov_b32 %s, 0x%x" % (s(S_W1D + 2), 512 * 3584))
    k("s_mov_b32 %s, 0x20000" % s(S_W1D + 3))
    k("s_cmp_ge_u32 %s, 4" % s(S_W))
    k("s_cbranch_scc0 %s_cmp" % pre)
    loader(k, pre)
    k.label(pre + "_cmp")
    compute(k, pre)
```

```python
import common
from common import *

OPT = set()
S_X, S_W2, S_WOP, S_B2, S_OUT, S_WS = 4, 6, 8, 10, 12, 14
S_HD, S_WD, S_XD, S_OD, S_BD = 16, 20, 28, 32, 52
S_W, S_RB, S_CB, S_T, S_T2, S_LB = 36, 37, 38, 39, 40, 41
S_XO0, S_XO1, S_WO, S_WRAP, S_LEFT, S_N, S_TRIP, S_RL = 42, 43, 44, 45, 46, 47, 48, 49
S_BX, S_BW, S_BWRAP = 56, 57, 58
D = 4
WSLOT = 2048
RING = D * WSLOT
VWS, VWR, VL16 = 4, 6, 3
XF, WF, ACC = 16, 48, 64
NA, NB = 28, 8


def setup(k):
    k("v_and_b32 v1, 31, v0")
    k("v_lshrrev_b32 v2, 5, v0")
    k("v_lshlrev_b32 v3, 4, v0")
    k("v_lshrrev_b32 v4, 3, v0")
    k("v_bfe_u32 v5, v0, 2, 1")
    k("v_bfe_u32 v6, v0, 4, 1")
    k("v_xor_b32 v5, v5, v6")
    k("v_and_b32 v6, 3, v0")
    k("v_lshlrev_b32 v6, 4, v6")
    k("v_lshl_add_u32 v5, v5, 6, v6")
    k("v_lshl_add_u32 v4, v4, 10, v5")
    k("v_bfe_u32 v12, v0, 2, 2")
    k("v_and_b32 v13, 3, v0")
    k("v_bfe_u32 v14, v0, 4, 1")
    k("v_lshl_add_u32 v13, v14, 2, v13")
    k("v_and_b32 v14, 1, v13")
    k("v_lshrrev_b32 v15, 1, v13")
    k("v_lshrrev_b32 v8, 1, v15")
    k("v_and_b32 v15, 1, v15")
    k("v_lshl_add_u32 v15, v14, 1, v15")
    k("v_lshl_add_u32 v13, v8, 2, v15")
    k("v_lshl_add_u32 v14, v2, 3, v12")
    k("v_lshlrev_b32 v14, 7, v14")
    k("v_lshl_add_u32 v14, v13, 3, v14")
    k("v_lshrrev_b32 v12, 1, v12")
    k("v_add_u32 v14, %s, v14" % s(S_LB))
    for ft in range(2):
        k("v_xor_b32 v15, %d, v12" % ft)
        k("v_lshl_add_u32 %s, v15, 6, v14" % v(VWR + ft))
    for j in range(64):
        k("v_mov_b32 %s, 0" % v(ACC + j))


def seg_params(k, n, kbase, dx, dw, dwrap):
    if "map84" in OPT:
        k("s_mul_i32 %s, %s, %d" % (s(S_T), s(S_RL), n))
        k("s_lshr_b32 %s, %s, 3" % (s(S_T), s(S_T)))
        k("s_and_b32 %s, %s, 3" % (s(S_T2), s(S_CB)))
        k("s_mul_i32 %s, %s, %d" % (s(S_T2), s(S_T2), n // 4))
    else:
        k("s_mul_i32 %s, %s, %d" % (s(S_T), s(S_RL), n // 4))
        k("s_mul_i32 %s, %s, %d" % (s(S_T2), s(S_CB), n))
        k("s_lshr_b32 %s, %s, 3" % (s(S_T2), s(S_T2)))
    k("s_add_u32 %s, %s, %s" % (s(S_T), s(S_T), s(S_T2)))
    k("s_cmp_ge_u32 %s, %d" % (s(S_T), n))
    k("s_cselect_b32 %s, %d, 0" % (s(S_T2), n))
    k("s_sub_u32 %s, %s, %s" % (s(S_T), s(S_T), s(S_T2)))
    k("s_sub_u32 %s, %d, %s" % (s(dwrap), n, s(S_T)))
    k("s_mul_i32 %s, %s, %d" % (s(S_T2), s(S_W), n))
    k("s_add_u32 %s, %s, %s" % (s(S_T), s(S_T), s(S_T2)))
    k("s_lshl_b32 %s, %s, 14" % (s(dw), s(S_T)))
    k("s_lshl_b32 %s, %s, 7" % (s(S_T2), s(S_CB)))
    k("s_add_u32 %s, %s, %s" % (s(dw), s(dw), s(S_T2)))
    k("s_add_u32 %s, %s, %d" % (s(S_T), s(S_T), kbase))
    k("s_lshl_b32 %s, %s, 10" % (s(S_T), s(S_T)))
    k("s_lshl_b32 %s, %s, 1" % (s(S_T2), s(S_RB)))
    k("s_mul_i32 %s, %s, %d" % (s(dx), s(S_T2), WS_HO_ROW))
    k("s_add_u32 %s, %s, %s" % (s(dx), s(dx), s(S_T)))
    k("s_add_u32 %s, %s, 0x%x" % (s(dx), s(dx), WS_HO))


XPROF = [False]
XSC = [""]


def issue_groups(slot):
    g = []
    g.append(["buffer_load_dwordx4 %s, v3, %s, %s offen%s" % (v(XF + 8 * slot, 4), s(S_HD, 4), s(S_XO0), XSC[0])])
    g.append(["s_add_u32 %s, %s, %d" % (s(S_XO1), s(S_XO0), WS_HO_ROW),
              "buffer_load_dwordx4 %s, v3, %s, %s offen%s" % (v(XF + 8 * slot + 4, 4), s(S_HD, 4), s(S_XO1), XSC[0])])
    g.append(["s_add_u32 m0, %s, %d" % (s(S_LB), slot * WSLOT),
              "s_add_u32 %s, %s, 8192" % (s(S_T), s(S_WO)),
              "buffer_load_dwordx4 v4, %s, %s offen lds" % (s(S_WD, 4), s(S_WO))])
    g.append(["s_add_u32 m0, m0, 1024", "s_nop 0",
              "buffer_load_dwordx4 v4, %s, %s offen lds" % (s(S_WD, 4), s(S_T))])
    if "nox" in OPT:
        g[0] = ["buffer_load_dwordx4 v4, %s, %s offen lds" % (s(S_WD, 4), s(S_WO))]
        g[1] = ["buffer_load_dwordx4 v4, %s, %s offen lds" % (s(S_WD, 4), s(S_WO))]
    if "now" in OPT:
        g[2] = ["buffer_load_dwordx4 %s, v3, %s, %s offen" % (v(XF + 8 * slot, 4), s(S_HD, 4), s(S_XO0))]
        g[3] = ["buffer_load_dwordx4 %s, v3, %s, %s offen" % (v(XF + 8 * slot + 4, 4), s(S_HD, 4), s(S_XO1))]
    return g


def advance(k, lab, two_segments):
    k("s_add_u32 %s, %s, 1024" % (s(S_XO0), s(S_XO0)))
    k("s_add_u32 %s, %s, 16384" % (s(S_WO), s(S_WO)))
    k("s_sub_u32 %s, %s, 1" % (s(S_WRAP), s(S_WRAP)))
    k("s_cmp_lg_u32 %s, 0" % s(S_WRAP))
    k("s_cbranch_scc1 %s_nw" % lab)
    k("s_lshl_b32 %s, %s, 10" % (s(S_T), s(S_N)))
    k("s_sub_u32 %s, %s, %s" % (s(S_XO0), s(S_XO0), s(S_T)))
    k("s_lshl_b32 %s, %s, 14" % (s(S_T), s(S_N)))
    k("s_sub_u32 %s, %s, %s" % (s(S_WO), s(S_WO), s(S_T)))
    k("s_mov_b32 %s, %s" % (s(S_WRAP), s(S_N)))
    k.label(lab + "_nw")
    if two_segments:
        k("s_sub_u32 %s, %s, 1" % (s(S_LEFT), s(S_LEFT)))
        k("s_cmp_lg_u32 %s, 0" % s(S_LEFT))
        k("s_cbranch_scc1 %s_ns" % lab)
        k("s_mov_b32 %s, %s" % (s(S_XO0), s(S_BX)))
        k("s_mov_b32 %s, %s" % (s(S_WO), s(S_BW)))
        k("s_mov_b32 %s, %s" % (s(S_WRAP), s(S_BWRAP)))
        k("s_mov_b32 %s, %d" % (s(S_N), NB))
        k("s_mov_b32 %s, %s" % (s(S_WD), s(S_WOP)))
        k("s_and_b32 %s, %s, 0xffff" % (s(S_WD + 1), s(S_WOP + 1)))
        k("s_mov_b32 %s, 0x%x" % (s(S_WD + 2), 512 * 1024))
        k.label(lab + "_ns")


def rd_w(k, slot, buf):
    for ft in range(2):
        for u in range(2):
            k("ds_read_b64_tr_b16 %s, %s offset:%d" % (v(WF + 8 * buf + 4 * ft + 2 * u, 2), v(VWR + ft), slot * WSLOT + u * 512))


def step(k, d, lab, issue, vm, two_segments, last=False):
    if not last:
        k("s_waitcnt vmcnt(%d)" % vm)
        rd_w(k, (d + 1) % D, (d + 1) & 1)
        k("s_waitcnt lgkmcnt(4)")
    else:
        k("s_waitcnt lgkmcnt(0)")
    g = issue_groups((d + D - 1) % D) if issue else [[], [], [], []]
    j = 0
    for tt in range(2):
        for ft in range(2):
            dd = v(ACC + 16 * (2 * tt + ft), 16)
            if "nomfma" not in OPT:
                k("v_mfma_f32_32x32x16_bf16 %s, %s, %s, %s" % (dd, v(WF + 8 * (d & 1) + 4 * ft, 4), v(XF + 8 * d + 4 * tt, 4), dd))
            for ins in g[j]:
                k(ins)
            j += 1
    if issue:
        advance(k, lab, two_segments)


def stream(k, pre, nsteps, two_segments, prio=None):
    for d in range(D - 1):
        for grp in issue_groups(d):
            for ins in grp:
                k(ins)
        advance(k, "%s_p%d" % (pre, d), two_segments)
    k("s_waitcnt vmcnt(8)")
    if prio:
        k("s_setprio %d" % prio)
    rd_w(k, 0, 0)
    ntrip = (nsteps - (D - 1)) // D
    k("s_mov_b32 %s, 0" % s(S_TRIP))
    k.label(pre + "_loop")
    for d in range(D):
        step(k, d, "%s_l%d" % (pre, d), True, 4, two_segments)
    k("s_add_u32 %s, %s, 1" % (s(S_TRIP), s(S_TRIP)))
    k("s_cmp_lt_u32 %s, %d" % (s(S_TRIP), ntrip))
    k("s_cbranch_scc1 %s_loop" % pre)
    for n in range(ntrip * D, nsteps):
        step(k, n % D, "%s_t%d" % (pre, n), n + D - 1 < nsteps, 4 if n + 2 < nsteps else 0, two_segments, last=(n == nsteps - 1))


DW = 8
S_WRAPW, S_NX, S_NW = 50, 51, 61


def stream2(k, pre, n, prio=None):
    k("s_mov_b32 %s, %s" % (s(S_WRAPW), s(S_WRAP)))
    k("s_mov_b32 %s, %d" % (s(S_NX), n * 1024))
    k("s_mov_b32 %s, %d" % (s(S_NW), n * 16384))

    def xg(slot):
        return [["buffer_load_dwordx4 %s, v3, %s, %s offen%s" % (v(XF + 8 * slot, 4), s(S_HD, 4), s(S_XO0), XSC[0])],
                ["s_add_u32 %s, %s, %d" % (s(S_XO1), s(S_XO0), WS_HO_ROW),
                 "buffer_load_dwordx4 %s, v3, %s, %s offen%s" % (v(XF + 8 * slot + 4, 4), s(S_HD, 4), s(S_XO1), XSC[0]),
                 "s_add_u32 %s, %s, 1024" % (s(S_XO0), s(S_XO0)),
                 "s_sub_u32 %s, %s, 1" % (s(S_WRAP), s(S_WRAP)),
                 "s_cmp_eq_u32 %s, 0" % s(S_WRAP),
                 "s_cselect_b32 %s, %s, 0" % (s(S_T), s(S_NX)),
                 "s_cselect_b32 %s, %d, %s" % (s(S_WRAP), n, s(S_WRAP)),
                 "s_sub_u32 %s, %s, %s" % (s(S_XO0), s(S_XO0), s(S_T))]]

    def wg(slot):
        return [["s_add_u32 m0, %s, %d" % (s(S_LB), slot * WSLOT),
                 "s_add_u32 %s, %s, 8192" % (s(S_T2), s(S_WO)),
                 "buffer_load_dwordx4 v4, %s, %s offen lds" % (s(S_WD, 4), s(S_WO))],
                ["s_add_u32 m0, m0, 1024",
                 "s_add_u32 %s, %s, 16384" % (s(S_WO), s(S_WO)),
                 "buffer_load_dwordx4 v4, %s, %s offen lds" % (s(S_WD, 4), s(S_T2)),
                 "s_sub_u32 %s, %s, 1" % (s(S_WRAPW), s(S_WRAPW)),
                 "s_cmp_eq_u32 %s, 0" % s(S_WRAPW),
                 "s_cselect_b32 %s, %s, 0" % (s(S_T), s(S_NW)),
                 "s_cselect_b32 %s, %d, %s" % (s(S_WRAPW), n, s(S_WRAPW)),
                 "s_sub_u32 %s, %s, %s" % (s(S_WO), s(S_WO), s(S_T))]]

    def emit(groups):
        for g in groups:
            for ins in g:
                k(ins)

    def rdw(slot, buf):
        for ft in range(2):
            for u in range(2):
                k("ds_read_b64_tr_b16 %s, %s offset:%d" % (v(WF + 8 * buf + 4 * ft + 2 * u, 2), v(VWR + ft), slot * WSLOT + u * 512))

    log = []
    for j in range(3):
        emit(wg(j)); log += [("W", j)] * 2
    for j in range(3):
        emit(xg(j)); log += [("X", j)] * 2
        emit(wg(3 + j)); log += [("W", 3 + j)] * 2

    def younger(kind, idx):
        last = max(i for i, e in enumerate(log) if e == (kind, idx))
        return len(log) - 1 - last

    k("s_waitcnt vmcnt(%d)" % younger("W", 0))
    if prio:
        k("s_setprio %d" % prio)
    rdw(0, 0)

    def one(sidx, static):
        xs, ws = sidx % 4, sidx % DW
        last = static and sidx == n - 1
        k("s_waitcnt vmcnt(%d)" % min(63, younger("X", sidx)))
        if not last:
            rdw((ws + 1) % DW, (sidx + 1) & 1)
            k("s_waitcnt lgkmcnt(4)")
        else:
            k("s_waitcnt lgkmcnt(0)")
        g = []
        if sidx + 3 < n:
            g += xg((sidx + 3) % 4)
            log.extend([("X", sidx + 3)] * 2)
        if sidx + 6 < n:
            g += wg((sidx + 6) % DW)
            log.extend([("W", sidx + 6)] * 2)
        g += [[]] * (4 - len(g))
        j = 0
        for tt in range(2):
            for ft in range(2):
                dd = v(ACC + 16 * (2 * tt + ft), 16)
                k("v_mfma_f32_32x32x16_bf16 %s, %s, %s, %s" % (dd, v(WF + 8 * (sidx & 1) + 4 * ft, 4), v(XF + 8 * xs + 4 * tt, 4), dd))
                for ins in g[j]:
                    k(ins)
                j += 1

    ntrip = (n - 6) // DW
    k("s_mov_b32 %s, 0" % s(S_TRIP))
    k.label(pre + "_loop")
    mark = len(k.lines)
    for d in range(DW):
        one(d, False)
    body_waits = [ln for ln in k.lines[mark:] if "vmcnt" in ln]
    assert len(set(body_waits)) == 1, body_waits
    k("s_add_u32 %s, %s, 1" % (s(S_TRIP), s(S_TRIP)))
    k("s_cmp_lt_u32 %s, %d" % (s(S_TRIP), ntrip))
    k("s_cbranch_scc1 %s_loop" % pre)
    for sidx in range(DW, ntrip * DW):
        log.extend([("X", sidx + 3)] * 2 + [("W", sidx + 6)] * 2)
    for sidx in range(ntrip * DW, n):
        one(sidx, True)


def pair_reduce(k, pre):
    k("s_nop 15")
    k("s_barrier")
    k("s_and_b32 %s, %s, 3" % (s(S_T), s(S_W)))
    k("s_lshl_b32 %s, %s, 14" % (s(S_T), s(S_T)))
    k("v_add_u32 v8, %s, v3" % s(S_T))
    k("s_cmp_ge_u32 %s, 4" % s(S_W))
    k("s_cbranch_scc0 %s_prr" % pre)
    for g in range(16):
        k("ds_write_b128 v8, %s offset:%d" % (v(ACC + 4 * g, 4), g * 1024))
    k("s_waitcnt lgkmcnt(0)")
    k("s_barrier")
    k("s_endpgm")
    k.label(pre + "_prr")
    k("s_barrier")
    for half in range(2):
        for g in range(8):
            k("ds_read_b128 %s, v8 offset:%d" % (v(XF + 4 * g, 4), (8 * half + g) * 1024))
        for g in range(8):
            k("s_waitcnt lgkmcnt(%d)" % (7 - g))
            for r in range(4):
                a_ = ACC + 32 * half + 4 * g + r
                k("v_add_f32 %s, %s, %s" % (v(a_), v(a_), v(XF + 4 * g + r)))


def reduce_and_store(k, pre):
    k("s_nop 15")
    k("s_barrier")
    for q in range(4):
        k("s_cmp_eq_u32 %s, %d" % (s(S_W), q))
        k("s_cbranch_scc1 %s_nw%d" % (pre, q))
        k("s_lshl_b32 %s, %s, 14" % (s(S_T), s(S_W)))
        k("v_add_u32 v8, %s, v3" % s(S_T))
        for g in range(4):
            k("ds_write_b128 v8, %s offset:%d" % (v(ACC + 16 * q + 4 * g, 4), q * 4096 + g * 1024))
        k.label("%s_nw%d" % (pre, q))
    for q in range(4):
        k("s_cmp_lg_u32 %s, %d" % (s(S_W), q))
        k("s_cbranch_scc1 %s_no%d" % (pre, q))
        for r in range(16):
            k("v_mov_b32 %s, %s" % (v(16 + r), v(ACC + 16 * q + r)))
        k.label("%s_no%d" % (pre, q))
    k("s_waitcnt lgkmcnt(0)")
    k("s_barrier")
    k("s_lshl_b32 %s, %s, 12" % (s(S_T2), s(S_W)))
    k("v_add_u32 v8, %s, v3" % s(S_T2))
    first = True
    for dq in range(1, 4):
        k("s_add_u32 %s, %s, %d" % (s(S_T2), s(S_W), dq))
        k("s_and_b32 %s, %s, 3" % (s(S_T2), s(S_T2)))
        k("s_lshl_b32 %s, %s, 14" % (s(S_T2), s(S_T2)))
        k("v_add_u32 v9, %s, v8" % s(S_T2))
        for g in range(4):
            k("ds_read_b128 %s, v9 offset:%d" % (v(64 + 16 * (dq - 1) + 4 * g, 4), g * 1024))
    for dq in range(1, 4):
        k("s_waitcnt lgkmcnt(%d)" % (4 * (3 - dq)))
        for r in range(16):
            k("v_add_f32 %s, %s, %s" % (v(16 + r), v(16 + r), v(64 + 16 * (dq - 1) + r)))


def resid_loads(k):
    k("s_lshr_b32 %s, %s, 1" % (s(S_T), s(S_W)))
    k("s_lshl_b32 %s, %s, 1" % (s(S_T2), s(S_RB)))
    k("s_add_u32 %s, %s, %s" % (s(S_T), s(S_T), s(S_T2)))
    k("s_lshl_b32 %s, %s, 15" % (s(S_T), s(S_T)))
    k("s_and_b32 %s, %s, 1" % (s(S_T2), s(S_W)))
    k("s_lshl_b32 %s, %s, 6" % (s(S_T2), s(S_T2)))
    k("s_lshl_b32 %s, %s, 7" % (s(S_N), s(S_CB)))
    k("s_add_u32 %s, %s, %s" % (s(S_BW), s(S_T2), s(S_N)))
    k("s_add_u32 %s, %s, %s" % (s(S_BX), s(S_T), s(S_BW)))
    k("v_lshlrev_b32 v10, 10, v1")
    k("v_lshl_add_u32 v10, v2, 4, v10")
    k("v_lshlrev_b32 v11, 4, v2")
    k("buffer_load_dwordx4 v[32:35], v10, %s, %s offen" % (s(S_XD, 4), s(S_BX)))
    k("buffer_load_dwordx4 v[36:39], v10, %s, %s offen offset:32" % (s(S_XD, 4), s(S_BX)))
    k("buffer_load_dwordx4 v[40:43], v11, %s, %s offen" % (s(S_BD, 4), s(S_BW)))
    k("buffer_load_dwordx4 v[44:47], v11, %s, %s offen offset:32" % (s(S_BD, 4), s(S_BW)))


def finish_tile(k):
    k("s_waitcnt vmcnt(0)")
    for half in range(2):
        for j in range(4):
            for src in (32, 40):
                r = src + 4 * half + j
                k("v_lshlrev_b32 v12, 16, %s" % v(r))
                k("v_and_b32 v13, 0xffff0000, %s" % v(r))
                k("v_add_f32 %s, %s, v12" % (v(16 + 8 * half + 2 * j), v(16 + 8 * half + 2 * j)))
                k("v_add_f32 %s, %s, v13" % (v(16 + 8 * half + 2 * j + 1), v(16 + 8 * half + 2 * j + 1)))
    for r in range(8):
        k("v_cvt_pk_bf16_f32 %s, %s, %s" % (v(16 + r), v(16 + 2 * r), v(17 + 2 * r)))
    k("buffer_store_dwordx4 v[16:19], v10, %s, %s offen" % (s(S_OD, 4), s(S_BX)))
    k("buffer_store_dwordx4 v[20:23], v10, %s, %s offen offset:32" % (s(S_OD, 4), s(S_BX)))


WS_BASE = 24 << 20


def ids(k, s_id):
    if "map84" in OPT:
        k("s_bfe_u32 %s, %s, 0x30003" % (s(S_RL), s_id))
        k("s_bfe_u32 %s, %s, 0x20001" % (s(S_RB), s_id))
        k("s_lshl_b32 %s, %s, 3" % (s(S_RB), s(S_RB)))
        k("s_add_u32 %s, %s, %s" % (s(S_RB), s(S_RB), s(S_RL)))
        k("s_and_b32 %s, %s, 1" % (s(S_CB), s_id))
        k("s_lshl_b32 %s, %s, 2" % (s(S_CB), s(S_CB)))
        k("s_lshr_b32 %s, %s, 6" % (s(S_T), s_id))
        k("s_and_b32 %s, %s, 3" % (s(S_T), s(S_T)))
        k("s_add_u32 %s, %s, %s" % (s(S_CB), s(S_CB), s(S_T)))
        return
    k("s_bfe_u32 %s, %s, 0x20003" % (s(S_RL), s_id))
    k("s_and_b32 %s, %s, 7" % (s(S_RB), s_id))
    k("s_lshl_b32 %s, %s, 2" % (s(S_RB), s(S_RB)))
    k("s_add_u32 %s, %s, %s" % (s(S_RB), s(S_RB), s(S_RL)))
    k("s_lshr_b32 %s, %s, 5" % (s(S_CB), s_id))


def add_resid(k):
    k("s_waitcnt vmcnt(0)")
    for half in range(2):
        for j in range(4):
            for src in (32, 40):
                r = src + 4 * half + j
                k("v_lshlrev_b32 v12, 16, %s" % v(r))
                k("v_and_b32 v13, 0xffff0000, %s" % v(r))
                k("v_add_f32 %s, %s, v12" % (v(16 + 8 * half + 2 * j), v(16 + 8 * half + 2 * j)))
                k("v_add_f32 %s, %s, v13" % (v(16 + 8 * half + 2 * j + 1), v(16 + 8 * half + 2 * j + 1)))


def gen_ffn2_role(k, pre, s_ws_size):
    k("v_lshrrev_b32 v1, 6, v0")
    k("v_and_b32 v0, 63, v0")
    k("v_readfirstlane_b32 %s, v1" % s(S_W))
    for r, off in ((S_WS, KA_WS), (S_W2, KA_W2), (S_X, KA_X), (S_B2, KA_B2)):
        k("s_load_dwordx2 %s, s[0:1], %d" % (s(r, 2), off))
    k("s_sub_u32 s3, s2, 256")
    k("s_cmp_ge_u32 %s, 4" % s(S_W))
    k("s_cbranch_scc1 %s_exit" % pre)
    ids(k, "s3")
    k("s_mul_i32 %s, %s, %d" % (s(S_LB), s(S_W), RING))
    seg_params(k, NA, 0, S_XO0, S_WO, S_WRAP)
    k("s_mov_b32 %s, %d" % (s(S_N), NA))
    setup(k)
    k("s_waitcnt lgkmcnt(0)")
    k.srd(S_HD, S_WS, s_ws_size)
    k.srd(S_WD, S_W2, 1792 * 1024)
    k.srd(S_XD, S_X, 2048 * 1024)
    k.srd(S_BD, S_B2, 1024)
    prof_mark(k, 2)
    stream(k, pre, NA, False, prio=(3 if "gp3" in OPT else (1 if "gp1" in OPT else 0)))
    prof_mark(k, 3)
    resid_loads(k)
    reduce_and_store(k, pre)
    add_resid(k)
    k("s_lshl_b32 %s, s3, 14" % s(S_T))
    k("s_lshl_b32 %s, %s, 12" % (s(S_T2), s(S_W)))
    k("s_add_u32 %s, %s, %s" % (s(S_T), s(S_T), s(S_T2)))
    k("s_add_u32 %s, %s, 0x%x" % (s(S_T), s(S_T), WS_BASE))
    for g in range(4):
        k("buffer_store_dwordx4 %s, v3, %s, %s offen offset:%d" % (v(16 + 4 * g, 4), s(S_HD, 4), s(S_T), 1024 * g))
    if "nopf" not in OPT:
        k("s_load_dwordx2 %s, s[0:1], %d" % (s(S_WOP, 2), KA_WO))
        k("s_waitcnt lgkmcnt(0)")
        k.srd(S_WD, S_WOP, 512 * 1024)
        k("s_lshl_b32 %s, %s, 17" % (s(S_T), s(S_W)))
        k("s_lshl_b32 %s, %s, 7" % (s(S_T2), s(S_CB)))
        k("s_add_u32 %s, %s, %s" % (s(S_T), s(S_T), s(S_T2)))
        for i in range(16):
            k("buffer_load_dwordx4 %s, v4, %s, %s offen" % (v(64 + 4 * i, 4), s(S_WD, 4), s(S_T)))
            k("s_add_u32 %s, %s, 8192" % (s(S_T), s(S_T)))
    k("s_waitcnt vmcnt(0)")
    prof_mark(k, 5)
    prof_rt(k, 6)
    prof_store(k, S_WS, S_W, 24)
    k.label(pre + "_exit")
    k("s_endpgm")


S_DBG = 60


def wait_flags(k, lab, s_off, n, far=True):
    k("s_cmp_eq_u32 %s, 0" % s(S_W))
    k("s_cbranch_scc0 %s_go" % lab)
    k("v_min_u32 v8, %d, v0" % (n - 1))
    k("v_lshl_add_u32 v8, v8, 2, %s" % s(s_off))
    k("s_mov_b32 %s, 0" % s(S_TRIP))
    k.label(lab + "_poll")
    k("global_load_dword v9, v8, %s sc1" % s(S_WS, 2))
    k("s_add_u32 %s, %s, 1" % (s(S_TRIP), s(S_TRIP)))
    k("s_waitcnt vmcnt(0)")
    k("v_cmp_eq_u32 vcc, 0, v9")
    k("s_nop 1")
    k("s_cmp_eq_u64 vcc, 0")
    k("s_cbranch_scc1 %s_go" % lab)
    if far:
        k("s_cmp_eq_u64 vcc, exec")
        k("s_cbranch_scc0 %s_near" % lab)
        k("s_sleep %d" % (24 if "sl24" in OPT else 12))
        k.label(lab + "_near")
    k("s_sleep %d" % (8 if "sn8" in OPT else (3 if far else 1)))
    k("s_cmp_lt_u32 %s, 0x40000" % s(S_TRIP))
    k("s_cbranch_scc1 %s_poll" % lab)
    k.label(lab + "_go")
    k("s_barrier")


def wo_tail(k, pre):
    OWN, OTH, XB, WB = 16, 96, 32, 112
    VLO, VHI = 14, 6
    k("s_barrier")
    k.srd(S_WD, S_WOP, 512 * 1024)
    k("s_lshl_b32 %s, %s, 17" % (s(S_T), s(S_W)))
    k("s_lshl_b32 %s, %s, 7" % (s(S_T2), s(S_CB)))
    k("s_add_u32 %s, %s, %s" % (s(S_T), s(S_T), s(S_T2)))
    k("s_lshl_b32 m0, %s, 14" % s(S_W))
    k("s_mov_b32 %s, 16" % s(S_TRIP))
    k.label(pre + "_wst")
    k("buffer_load_dwordx4 v4, %s, %s offen lds" % (s(S_WD, 4), s(S_T)))
    k("s_add_u32 %s, %s, 8192" % (s(S_T), s(S_T)))
    k("s_add_u32 m0, m0, 1024")
    k("s_sub_u32 %s, %s, 1" % (s(S_TRIP), s(S_TRIP)))
    k("s_cmp_lg_u32 %s, 0" % s(S_TRIP))
    k("s_cbranch_scc1 %s_wst" % pre)
    k("s_and_b32 %s, %s, 1" % (s(S_N), s(S_W)))
    k("s_and_b32 %s, %s, 1" % (s(S_WRAP), s(S_CB)))
    k("s_lshl_b32 %s, %s, 3" % (s(S_WRAP), s(S_WRAP)))
    k("v_subrev_u32 v6, %s, v6" % s(S_LB))
    k("v_subrev_u32 v7, %s, v7" % s(S_LB))
    k("s_cmp_eq_u32 %s, 0" % s(S_N))
    k("s_cselect_b64 vcc, -1, 0")
    k("v_cndmask_b32 v12, v7, v6, vcc")
    k("v_cndmask_b32 v13, v6, v7, vcc")
    k("s_lshl_b32 %s, %s, 15" % (s(S_T), s(S_N)))
    k("s_lshl_b32 %s, %s, 11" % (s(S_T2), s(S_WRAP)))
    k("s_add_u32 %s, %s, %s" % (s(S_LEFT), s(S_T), s(S_T2)))
    k("v_add_u32 %s, %s, v12" % (v(VLO), s(S_LEFT)))
    k("v_add_u32 %s, %s, v13" % (v(VLO + 1), s(S_LEFT)))
    k("s_sub_u32 %s, %s, %s" % (s(S_LEFT), s(S_T), s(S_T2)))
    k("s_add_u32 %s, %s, %d" % (s(S_LEFT), s(S_LEFT), 8 * 2048))
    k("v_add_u32 %s, %s, v12" % (v(VHI), s(S_LEFT)))
    k("v_add_u32 %s, %s, v13" % (v(VHI + 1), s(S_LEFT)))
    for r in range(16):
        k("v_mov_b32 %s, 0" % v(OTH + r))
    k("s_lshr_b32 %s, %s, 1" % (s(S_T), s(S_W)))
    k("s_lshl_b32 %s, %s, 1" % (s(S_T2), s(S_RB)))
    k("s_add_u32 %s, %s, %s" % (s(S_T), s(S_T), s(S_T2)))
    k("s_mul_i32 %s, %s, %d" % (s(S_XO0), s(S_T), WS_HO_ROW))
    k("s_lshl_b32 %s, %s, 14" % (s(S_T), s(S_N)))
    k("s_add_u32 %s, %s, %s" % (s(S_XO0), s(S_XO0), s(S_T)))
    k("s_add_u32 %s, %s, 0x%x" % (s(S_XO0), s(S_XO0), WS_HO + 112 * 1024))
    k("s_lshl_b32 %s, %s, 10" % (s(S_T), s(S_WRAP)))
    k("s_add_u32 %s, %s, %s" % (s(S_XO1), s(S_XO0), s(S_T)))
    k("s_sub_u32 %s, %s, %s" % (s(S_XO0), s(S_XO0), s(S_T)))
    def xloads():
        k("s_mov_b32 %s, %s" % (s(S_T), s(S_XO1)))
        k("s_add_u32 %s, %s, 8192" % (s(S_T2), s(S_XO0)))
        for i in range(16):
            so = S_T if i < 8 else S_T2
            if i in (4, 12):
                k("s_add_u32 %s, %s, 4096" % (s(so), s(so)))
            k("buffer_load_dwordx4 %s, v3, %s, %s offen offset:%d sc1" % (v(XB + 4 * i, 4), s(S_HD, 4), s(so), (i % 4) * 1024))

    if not XPROF[0]:
        prof_mark(k, 2)
    if "tagged" in OPT:
        k("s_waitcnt vmcnt(0)")
        k("s_barrier")
        k("s_setprio 0")
        k("s_lshl_b32 %s, %s, 10" % (s(S_T2), s(S_WRAP)))
        k("s_sub_u32 %s, %s, %s" % (s(S_LEFT), s(S_XO1), s(S_T2)))
        k("v_and_b32 v8, 15, v0")
        k("v_lshlrev_b32 v8, 10, v8")
        k("v_add_u32 v8, 1020, v8")
        k("s_mov_b32 %s, 0" % s(S_TRIP))
        k.label(pre + "_lp")
        k("buffer_load_dword v9, v8, %s, %s offen sc1" % (s(S_HD, 4), s(S_LEFT)))
        k("s_add_u32 %s, %s, 1" % (s(S_TRIP), s(S_TRIP)))
        k("s_waitcnt vmcnt(0)")
        k("v_cmp_eq_u32 vcc, -1, v9")
        k("s_nop 1")
        k("s_cmp_eq_u64 vcc, 0")
        k("s_cbranch_scc1 %s_full" % pre)
        k("s_cmp_eq_u64 vcc, exec")
        k("s_cbranch_scc0 %s_lnear" % pre)
        k("s_sleep 24")
        k("s_branch %s_lagain" % pre)
        k.label(pre + "_lnear")
        k("s_setprio 3")
        k("s_sleep 2")
        k.label(pre + "_lagain")
        k("s_cmp_lt_u32 %s, 0x8000" % s(S_TRIP))
        k("s_cbranch_scc1 %s_lp" % pre)
        k.label(pre + "_full")
        k("s_setprio 3")
        xloads()
        k("s_add_u32 %s, %s, 1" % (s(S_TRIP), s(S_TRIP)))
        for g in range(4):
            k("s_waitcnt vmcnt(%d)" % (12 - 4 * g))
            for r in range(0, 16, 2):
                a_, b_ = XB + 16 * g + r, XB + 16 * g + r + 1
                if g == 0 and r == 0:
                    k("v_max_u32 v9, %s, %s" % (v(a_), v(b_)))
                else:
                    k("v_max3_u32 v9, v9, %s, %s" % (v(a_), v(b_)))
        k("v_cmp_eq_u32 vcc, -1, v9")
        k("s_nop 1")
        k("s_cmp_eq_u64 vcc, 0")
        k("s_cbranch_scc1 %s_got" % pre)
        k("s_cmp_lt_u32 %s, 0x8000" % s(S_TRIP))
        k("s_cbranch_scc1 %s_full" % pre)
        k.label(pre + "_got")
        prof_mark(k, 4)
    else:
        k("s_lshl_b32 %s, %s, 8" % (s(S_LEFT), s(S_RB)))
        k("s_add_u32 %s, %s, 0x%x" % (s(S_LEFT), s(S_LEFT), WS_FLAG + FLAG_O))
        k("s_waitcnt vmcnt(0)")
        k("s_setprio 3")
        wait_flags(k, pre + "_w", S_LEFT, 64)
        if "fprof" not in OPT:
            prof_mark(k, 4)
        xloads()

    def rd(i):
        base = VLO if i < 8 else VHI
        for j in range(2):
            for u in range(2):
                k("ds_read_b64_tr_b16 %s, %s offset:%d" % (v(WB + 8 * (i & 1) + 4 * j + 2 * u, 2), v(base + j), (i & 7) * 2048 + u * 512))

    rd(0)
    for i in range(16):
        if i < 15:
            rd(i + 1)
        if "tagged" in OPT:
            k("s_waitcnt lgkmcnt(%d)" % (4 if i < 15 else 0))
        else:
            k("s_waitcnt vmcnt(%d) lgkmcnt(%d)" % (15 - i, 4 if i < 15 else 0))
        for j, acc in ((0, OWN), (1, OTH)):
            k("v_mfma_f32_32x32x16_bf16 %s, %s, %s, %s" % (v(acc, 16), v(WB + 8 * (i & 1) + 4 * j, 4), v(XB + 4 * i, 4), v(acc, 16)))
    k("s_barrier")
    k("s_xor_b32 %s, %s, 1" % (s(S_T), s(S_W)))
    k("s_lshl_b32 %s, %s, 12" % (s(S_T), s(S_T)))
    k("v_add_u32 v12, %s, v3" % s(S_T))
    k("s_lshl_b32 %s, %s, 12" % (s(S_T), s(S_W)))
    k("v_add_u32 v13, %s, v3" % s(S_T))
    k("s_nop 7")
    for g in range(4):
        k("ds_write_b128 v12, %s offset:%d" % (v(OTH + 4 * g, 4), g * 1024))
    k("s_waitcnt lgkmcnt(0)")
    k("s_barrier")
    for g in range(4):
        k("ds_read_b128 %s, v13 offset:%d" % (v(XB + 4 * g, 4), g * 1024))
    k("v_lshlrev_b32 v10, 10, v1")
    k("v_lshl_add_u32 v10, v2, 4, v10")
    for g in range(4):
        k("s_waitcnt lgkmcnt(%d)" % (3 - g))
        for r in range(4):
            k("v_add_f32 %s, %s, %s" % (v(OWN + 4 * g + r), v(OWN + 4 * g + r), v(XB + 4 * g + r)))
    for r in range(8):
        k("v_cvt_pk_bf16_f32 %s, %s, %s" % (v(16 + r), v(16 + 2 * r), v(17 + 2 * r)))
    k("buffer_store_dwordx4 v[16:19], v10, %s, %s offen" % (s(S_OD, 4), s(S_BX)))
    k("buffer_store_dwordx4 v[20:23], v10, %s, %s offen offset:32" % (s(S_OD, 4), s(S_BX)))


def gen_g_role(k, pre, ffn1=None):
    k("v_lshrrev_b32 v1, 6, v0")
    k("v_and_b32 v0, 63, v0")
    k("v_readfirstlane_b32 %s, v1" % s(S_W))
    for r, off in ((S_WS, KA_WS), (S_W2, KA_W2), (S_WOP, KA_WO), (S_X, KA_X), (S_B2, KA_B2), (S_OUT, KA_OUT)):
        k("s_load_dwordx2 %s, s[0:1], %d" % (s(r, 2), off))
    k("s_sub_u32 s3, s2, 256")
    if ffn1:
        k("s_load_dwordx2 s[62:63], s[0:1], %d" % KA_W1)
        k("s_load_dwordx2 s[64:65], s[0:1], %d" % KA_B1)
        ids(k, "s3")
        k("v_and_b32 v1, 31, v0")
        k("v_lshrrev_b32 v2, 5, v0")
        k("s_waitcnt lgkmcnt(0)")
        k.srd(S_HD, S_WS, (20 << 20) + (2 << 20))
        for lvl in (1, 2, 3):
            if "fp%d" % lvl in OPT:
                k("s_setprio %d" % lvl)
        ffn1(k, pre + "f")
        prof_mark(k, 2)
        k("s_setprio 0")
        XSC[0] = " sc1"
    else:
        k("s_cmp_ge_u32 %s, 4" % s(S_W))
        k("s_cbranch_scc1 %s_exit" % pre)
    ids(k, "s3")
    if "pfo" in OPT:
        k.srd(S_WD, S_WOP, 512 * 1024)
        k("v_lshrrev_b32 v12, 3, v0")
        k("v_and_b32 v13, 7, v0")
        k("v_lshlrev_b32 v13, 4, v13")
        k("v_lshl_add_u32 v12, v12, 10, v13")
        k("s_lshl_b32 %s, %s, 17" % (s(S_T), s(S_RL)))
        k("s_lshl_b32 %s, %s, 14" % (s(S_T2), s(S_W)))
        k("s_add_u32 %s, %s, %s" % (s(S_T), s(S_T), s(S_T2)))
        k("s_lshl_b32 %s, %s, 7" % (s(S_T2), s(S_CB)))
        k("s_add_u32 %s, %s, %s" % (s(S_T), s(S_T), s(S_T2)))
        k("buffer_load_dwordx4 v[48:51], v12, %s, %s offen" % (s(S_WD, 4), s(S_T)))
        k("s_add_u32 %s, %s, 8192" % (s(S_T), s(S_T)))
        k("buffer_load_dwordx4 v[48:51], v12, %s, %s offen" % (s(S_WD, 4), s(S_T)))
        k.srd(S_XD, S_X, 2048 * 1024)
        k("s_lshl_b32 %s, %s, 16" % (s(S_T), s(S_RB)))
        k("s_lshl_b32 %s, %s, 13" % (s(S_T2), s(S_W)))
        k("s_add_u32 %s, %s, %s" % (s(S_T), s(S_T), s(S_T2)))
        k("s_lshl_b32 %s, %s, 7" % (s(S_T2), s(S_CB)))
        k("s_add_u32 %s, %s, %s" % (s(S_T), s(S_T), s(S_T2)))
        k("buffer_load_dwordx4 v[48:51], v12, %s, %s offen" % (s(S_XD, 4), s(S_T)))
    na = NA // 2 if "w8" in OPT else NA
    k("s_mul_i32 %s, %s, %d" % (s(S_LB), s(S_W), DW * WSLOT if "deep" in OPT else RING))
    seg_params(k, na, 0, S_XO0, S_WO, S_WRAP)
    k("s_mov_b32 %s, %d" % (s(S_N), na))
    setup(k)
    k("s_waitcnt lgkmcnt(0)")
    k.srd(S_HD, S_WS, WS_END)
    k.srd(S_WD, S_W2, 1792 * 1024)
    k.srd(S_XD, S_X, 2048 * 1024)
    k.srd(S_OD, S_OUT, 2048 * 1024)
    k.srd(S_BD, S_B2, 1024)
    gp = 3 if "gp3" in OPT else (1 if "gp1" in OPT else (2 if "gp2" in OPT else None))
    if "deep" in OPT:
        stream2(k, pre + "a", na, gp)
    else:
        stream(k, pre + "a", na, False, prio=gp)
    XSC[0] = ""
    if "fprof" not in OPT:
        prof_mark(k, 3)
    if "w8" in OPT:
        for lvl in (1, 2, 3):
            if "rp%d" % lvl in OPT:
                k("s_setprio %d" % lvl)
        pair_reduce(k, pre)
    if "stop" in OPT:
        prof_mark(k, 4)
        prof_mark(k, 5)
        prof_rt(k, 6)
        prof_store(k, S_WS, S_W, 24)
        k("s_endpgm")
    for lvl in (1, 2, 3):
        if "rp%d" % lvl in OPT:
            k("s_setprio %d" % lvl)
    resid_loads(k)
    reduce_and_store(k, pre)
    add_resid(k)
    wo_tail(k, pre)
    k("s_waitcnt vmcnt(0)")
    if common.STAMP:
        k("s_cmp_eq_u32 s2, 256")
        k("s_cbranch_scc0 %s_ng" % pre)
        k("s_cmp_eq_u32 %s, 0" % s(S_W))
        k("s_cbranch_scc0 %s_ng" % pre)
        k("s_load_dwordx2 s[60:61], s[0:1], %d" % KA_DBG)
        k("s_memrealtime s[88:89]")
        k("s_waitcnt lgkmcnt(0)")
        k("v_lshrrev_b32 v8, 2, v0")
        k("v_mul_u32_u24 v8, %d, v8" % (65 * 32))
        k("v_and_b32 v9, 3, v0")
        k("v_lshl_add_u32 v8, v9, 2, v8")
        k("v_add_u32 v8, 0x%x, v8" % WS_STAMP)
        k("v_cmp_gt_u32 vcc, 15, v0")
        k("s_and_saveexec_b64 s[62:63], vcc")
        k("global_load_dword v9, v8, %s sc1" % s(S_WS, 2))
        k("s_waitcnt vmcnt(0)")
        k("s_mov_b64 exec, s[62:63]")
        k("v_mov_b32 v10, s88")
        k("v_cmp_eq_u32 vcc, 15, v0")
        k("s_nop 1")
        k("v_cndmask_b32 v9, v9, v10, vcc")
        k("v_lshlrev_b32 v8, 2, v0")
        k("v_cmp_gt_u32 vcc, 16, v0")
        k("s_and_saveexec_b64 s[62:63], vcc")
        k("global_store_dword v8, v9, s[60:61]")
        k("s_waitcnt vmcnt(0)")
        k("s_mov_b64 exec, s[62:63]")
        k.label(pre + "_ng")
    if "fprof" not in OPT:
        prof_mark(k, 5)
    prof_rt(k, 6)
    prof_store(k, S_WS, S_W, 24)
    k.label(pre + "_exit")
    k("s_endpgm")


def gen_wo(k, name, pre):
    k.kernel_begin(name)
    k("s_cmp_ge_u32 s2, 256")
    k("s_cbranch_scc1 %s_exit" % pre)
    prof_start(k)
    for r, off in ((S_WS, KA_WS), (S_WOP, KA_WO), (S_OUT, KA_OUT)):
        k("s_load_dwordx2 %s, s[0:1], %d" % (s(r, 2), off))
    ids(k, "s2")
    k("v_lshrrev_b32 v1, 6, v0")
    k("v_and_b32 v0, 63, v0")
    k("v_readfirstlane_b32 %s, v1" % s(S_W))
    k("s_nop 0")
    k("s_mul_i32 %s, %s, %d" % (s(S_LB), s(S_W), RING))
    seg_params(k, NB, 112, S_XO0, S_WO, S_WRAP)
    k("s_mov_b32 %s, %d" % (s(S_N), NB))
    setup(k)
    k("s_waitcnt lgkmcnt(0)")
    k.srd(S_HD, S_WS, WS_BASE + (4 << 20))
    k.srd(S_WD, S_WOP, 512 * 1024)
    k.srd(S_OD, S_OUT, 2048 * 1024)
    k("s_lshl_b32 %s, s2, 14" % s(S_T))
    k("s_lshl_b32 %s, %s, 12" % (s(S_T2), s(S_W)))
    k("s_add_u32 %s, %s, %s" % (s(S_T), s(S_T), s(S_T2)))
    k("s_add_u32 %s, %s, 0x%x" % (s(S_T), s(S_T), WS_BASE))
    for q in range(4):
        k("s_cmp_lg_u32 %s, %d" % (s(S_W), q))
        k("s_cbranch_scc1 %s_nb%d" % (pre, q))
        for g in range(4):
            k("buffer_load_dwordx4 %s, v3, %s, %s offen offset:%d" % (v(ACC + 16 * q + 4 * g, 4), s(S_HD, 4), s(S_T), 1024 * g))
        k.label("%s_nb%d" % (pre, q))
    prof_mark(k, 2)
    stream(k, pre, NB, False)
    prof_mark(k, 3)
    reduce_and_store(k, pre)
    k("s_lshr_b32 %s, %s, 1" % (s(S_T), s(S_W)))
    k("s_lshl_b32 %s, %s, 1" % (s(S_T2), s(S_RB)))
    k("s_add_u32 %s, %s, %s" % (s(S_T), s(S_T), s(S_T2)))
    k("s_lshl_b32 %s, %s, 15" % (s(S_T), s(S_T)))
    k("s_and_b32 %s, %s, 1" % (s(S_T2), s(S_W)))
    k("s_lshl_b32 %s, %s, 6" % (s(S_T2), s(S_T2)))
    k("s_add_u32 %s, %s, %s" % (s(S_T), s(S_T), s(S_T2)))
    k("s_lshl_b32 %s, %s, 7" % (s(S_T2), s(S_CB)))
    k("s_add_u32 %s, %s, %s" % (s(S_T), s(S_T), s(S_T2)))
    k("v_lshlrev_b32 v10, 10, v1")
    k("v_lshl_add_u32 v10, v2, 4, v10")
    for r in range(8):
        k("v_cvt_pk_bf16_f32 %s, %s, %s" % (v(16 + r), v(16 + 2 * r), v(17 + 2 * r)))
    k("buffer_store_dwordx4 v[16:19], v10, %s, %s offen" % (s(S_OD, 4), s(S_T)))
    k("buffer_store_dwordx4 v[20:23], v10, %s, %s offen offset:32" % (s(S_OD, 4), s(S_T)))
    k("s_waitcnt vmcnt(0)")
    prof_mark(k, 5)
    prof_rt(k, 6)
    prof_store(k, S_WS, S_W, 24)
    k.label(pre + "_exit")
    k.kernel_end(name, 128, 128)
    return 256, 65536


def gen_final(k, name, pre):
    k.kernel_begin(name)
    k("s_cmp_ge_u32 s2, 256")
    k("s_cbranch_scc1 %s_exit" % pre)
    prof_start(k)
    for r, off in ((S_WS, KA_WS), (S_W2, KA_W2), (S_WOP, KA_WO), (S_X, KA_X), (S_B2, KA_B2), (S_OUT, KA_OUT)):
        k("s_load_dwordx2 %s, s[0:1], %d" % (s(r, 2), off))
    k("s_bfe_u32 %s, s2, 0x20003" % s(S_RL))
    k("s_and_b32 %s, s2, 7" % s(S_RB))
    k("s_lshl_b32 %s, %s, 2" % (s(S_RB), s(S_RB)))
    k("s_add_u32 %s, %s, %s" % (s(S_RB), s(S_RB), s(S_RL)))
    k("s_lshr_b32 %s, s2, 5" % s(S_CB))
    k("v_lshrrev_b32 v1, 6, v0")
    k("v_and_b32 v0, 63, v0")
    k("v_readfirstlane_b32 %s, v1" % s(S_W))
    k("s_nop 0")
    k("s_mul_i32 %s, %s, %d" % (s(S_LB), s(S_W), RING))
    if "norot" in OPT:
        k("s_mov_b32 %s, 0" % s(S_RL))
    seg_params(k, NA, 0, S_XO0, S_WO, S_WRAP)
    seg_params(k, NB, 112, S_BX, S_BW, S_BWRAP)
    k("s_mov_b32 %s, %d" % (s(S_N), NA))
    k("s_mov_b32 %s, %d" % (s(S_LEFT), NA))
    setup(k)
    k("s_waitcnt lgkmcnt(0)")
    k.srd(S_HD, S_WS, WS_END)
    k.srd(S_WD, S_W2, 1792 * 1024)
    k.srd(S_XD, S_X, 2048 * 1024)
    k.srd(S_OD, S_OUT, 2048 * 1024)
    k.srd(S_BD, S_B2, 1024)
    prof_mark(k, 2)
    stream(k, pre, NA + NB, True)
    prof_mark(k, 3)
    resid_loads(k)
    reduce_and_store(k, pre)
    finish_tile(k)
    k("s_waitcnt vmcnt(0)")
    prof_mark(k, 5)
    prof_rt(k, 6)
    prof_store(k, S_WS, S_W, 24)
    k.label(pre + "_exit")
    k.kernel_end(name, 128, 128)
    return 256, 65536
```

```python
import common
from common import *
import g2
from g2 import S_W, S_RB, S_CB, S_RL, S_T, S_T2, S_WS, S_HD

OPT = set()
WS_XN = 20 << 20
FLAG_H = 8192
ROWB = 448
SLOT = 32 * ROWB
R = 5
L_BI = R * SLOT
LDS_NEED = L_BI + 1024

S_W1, S_B1 = 62, 64
S_W1D = 68
S_LD, S_WO, S_WEND, S_SLOT, S_KC, S_C, S_XB, S_XO, S_ROT, S_LDO = 72, 73, 74, 75, 76, 77, 78, 79, 59, 66

VWB, VW2 = 8, 9
XR = 16
WF = [32, 48]
ACC = 64
VSRC = 8


def next_slot(k):
    k("s_add_u32 %s, %s, %d" % (s(S_SLOT), s(S_SLOT), SLOT))
    k("s_cmp_ge_u32 %s, %d" % (s(S_SLOT), R * SLOT))
    k("s_cselect_b32 %s, 0, %s" % (s(S_SLOT), s(S_SLOT)))


def loader(k, pre):
    k("s_sub_u32 %s, %s, 4" % (s(S_LD), s(S_W)))
    k("s_and_b32 %s, %s, 1" % (s(S_T), s(S_LD)))
    k("s_lshl_b32 %s, %s, 2" % (s(S_T), s(S_T)))
    k("s_mov_b32 %s, 0x%x" % (s(S_T2), (2 ** 32 + ROWB - 1) // ROWB))
    for j in range(4):
        k("s_add_u32 %s, %s, %d" % (s(S_C), s(S_T), j))
        k("s_min_u32 %s, %s, 6" % (s(S_C), s(S_C)))
        k("s_lshl_b32 %s, %s, 10" % (s(S_C), s(S_C)))
        k("v_lshl_add_u32 v12, v0, 4, %s" % s(S_C))
        k("v_mul_hi_u32 v13, v12, %s" % s(S_T2))
        k("v_mul_u32_u24 v14, %d, v13" % ROWB)
        k("v_sub_u32 v14, v12, v14")
        k("v_mul_u32_u24 v13, 3584, v13")
        k("v_add_u32 %s, v13, v14" % v(VSRC + j))
    k("s_lshr_b32 %s, %s, 1" % (s(S_C), s(S_LD)))
    k("s_mul_i32 %s, %s, %d" % (s(S_LDO), s(S_C), 16 * ROWB))
    k("s_lshl_b32 %s, %s, 10" % (s(S_T), s(S_T)))
    k("s_add_u32 %s, %s, %s" % (s(S_LDO), s(S_LDO), s(S_T)))
    k("s_mul_i32 %s, %s, %d" % (s(S_WO), s(S_C), 16 * 3584))
    k("s_mul_i32 %s, %s, %d" % (s(S_T), s(S_CB), ROWB))
    k("s_add_u32 %s, %s, %s" % (s(S_WO), s(S_WO), s(S_T)))
    k("s_add_u32 %s, %s, %d" % (s(S_WEND), s(S_WO), 512 * 3584))
    k("s_mul_i32 %s, %s, %d" % (s(S_T), s(S_ROT), 32 * 3584))
    k("s_add_u32 %s, %s, %s" % (s(S_WO), s(S_WO), s(S_T)))
    k("s_and_b32 %s, %s, 1" % (s(S_KC), s(S_LD)))

    def issue(c):
        k("s_add_u32 m0, %s, %d" % (s(S_LDO), (c % R) * SLOT))
        k("s_nop 0")
        for j in range(4):
            k("buffer_load_dwordx4 %s, %s, %s offen lds" % (v(VSRC + j), s(S_W1D, 4), s(S_WO)))
            if j < 2:
                k("s_add_u32 m0, m0, 1024")
                k("s_nop 0")
            elif j == 2:
                k("s_add_u32 m0, m0, %s" % s(S_XB))
                k("s_nop 0")
        k("s_add_u32 %s, %s, %d" % (s(S_WO), s(S_WO), 32 * 3584))
        k("s_cmp_ge_u32 %s, %s" % (s(S_WO), s(S_WEND)))
        k("s_cselect_b32 %s, %d, 0" % (s(S_T), 512 * 3584))
        k("s_sub_u32 %s, %s, %s" % (s(S_WO), s(S_WO), s(S_T)))

    k("s_cmp_eq_u32 %s, 0" % s(S_KC))
    k("s_cselect_b32 %s, 1024, 0" % s(S_XB))
    k("v_lshrrev_b32 v12, 3, v1")
    k("v_bfe_u32 v13, v1, 2, 1")
    k("v_and_b32 v14, 3, v1")
    k("v_lshrrev_b32 v15, 1, v12")
    k("v_and_b32 v12, 1, v12")
    k("v_lshl_add_u32 v14, v12, 2, v14")
    k("v_lshl_add_u32 v14, v13, 3, v14")
    k("v_lshl_add_u32 v14, v15, 4, v14")
    k("v_lshl_add_u32 v14, v2, 5, v14")
    k("s_mul_i32 %s, %s, 224" % (s(S_T), s(S_CB)))
    k("s_lshl_b32 %s, %s, 6" % (s(S_T2), s(S_LD)))
    k("s_add_u32 %s, %s, %s" % (s(S_T), s(S_T), s(S_T2)))
    k("v_add_u32 v14, %s, v14" % s(S_T))
    k("v_lshlrev_b32 v14, 1, v14")
    k("v_min_u32 v14, 3582, v14")
    if "early" in OPT:
        if "lp" in OPT:
            prof_mark(k, 2)
        issue(0)
        issue(1)
        if "lp" in OPT:
            prof_mark(k, 3)
        k("global_load_ushort v15, v14, %s" % s(S_B1, 2))
        k("s_waitcnt vmcnt(0)")
        if "lp" in OPT:
            prof_mark(k, 4)
    else:
        k("global_load_ushort v15, v14, %s" % s(S_B1, 2))
        k("s_waitcnt vmcnt(0)")
    k("v_lshlrev_b32 v15, 16, v15")
    k("s_lshl_b32 %s, %s, 8" % (s(S_T), s(S_LD)))
    k("s_add_u32 %s, %s, %d" % (s(S_T), s(S_T), L_BI))
    k("v_lshl_add_u32 v12, v0, 2, %s" % s(S_T))
    k("ds_write_b32 v12, v15")
    if "early" in OPT:
        k("s_waitcnt lgkmcnt(0)")
        k("s_barrier")
        issue(2)
        issue(3)
    else:
        for c in range(4):
            issue(c)
        k("s_waitcnt vmcnt(12) lgkmcnt(0)")
    if "early" not in OPT:
        k("s_barrier")
    pf = "w2pf" in OPT
    if pf:
        pass
    npf = 0
    for c in range(1, 17):
        younger = 4 * sum(1 for j in (c + 1, c + 2) if j < 16)
        extra = npf if c + 1 >= 16 else 0
        k("s_waitcnt vmcnt(%d)" % min(63, younger + (npf if pf and c >= 14 else 0)))
        k("s_barrier")
        if c + 3 < 16:
            issue(c + 3)
        if pf and c == 13:
            k.srd(S_W1D, g2.S_W2, 1792 * 1024)
            k("v_lshrrev_b32 v12, 3, v0")
            k("v_and_b32 v13, 7, v0")
            k("v_lshlrev_b32 v13, 4, v13")
            k("v_lshl_add_u32 v12, v12, 10, v13")
            k("s_mul_i32 %s, %s, %d" % (s(S_T), s(S_RL), 448 * 1024))
            k("s_mul_i32 %s, %s, %d" % (s(S_T2), s(S_LD), 112 * 1024))
            k("s_add_u32 %s, %s, %s" % (s(S_T), s(S_T), s(S_T2)))
            k("s_lshl_b32 %s, %s, 7" % (s(S_T2), s(S_CB)))
            k("s_add_u32 %s, %s, %s" % (s(S_WO), s(S_T), s(S_T2)))
        if pf and c >= 13:
            n = 4 if c < 16 else 2
            for j in range(n):
                k("buffer_load_dwordx4 v[16:19], v12, %s, %s offen" % (s(S_W1D, 4), s(S_WO)))
                k("s_add_u32 %s, %s, 8192" % (s(S_WO), s(S_WO)))
            npf += n
    if "w2post" in OPT:
        k.srd(S_W1D, g2.S_W2, 1792 * 1024)
        k("v_lshrrev_b32 v12, 3, v0")
        k("v_and_b32 v13, 7, v0")
        k("v_lshlrev_b32 v13, 4, v13")
        k("v_lshl_add_u32 v12, v12, 10, v13")
        k("s_mul_i32 %s, %s, %d" % (s(S_T), s(S_RL), 448 * 1024))
        k("s_mul_i32 %s, %s, %d" % (s(S_T2), s(S_LD), 112 * 1024))
        k("s_add_u32 %s, %s, %s" % (s(S_T), s(S_T), s(S_T2)))
        k("s_lshl_b32 %s, %s, 7" % (s(S_T2), s(S_CB)))
        k("s_add_u32 %s, %s, %s" % (s(S_WO), s(S_T), s(S_T2)))
        for j in range(14):
            k("buffer_load_dwordx4 v[16:19], v12, %s, %s offen" % (s(S_W1D, 4), s(S_WO)))
            k("s_add_u32 %s, %s, 8192" % (s(S_WO), s(S_WO)))
    if "w8" in g2.OPT:
        k("s_branch %s_post" % pre)
    else:
        if "lp" in OPT:
            prof_mark(k, 5)
            prof_rt(k, 6)
            prof_store(k, S_WS, S_W, 24)
        k("s_endpgm")


def compute(k, pre):
    k("v_bfe_u32 v12, v0, 2, 2")
    k("v_and_b32 v13, 3, v0")
    k("v_bfe_u32 v14, v0, 4, 1")
    k("v_lshl_add_u32 v13, v14, 2, v13")
    k("v_and_b32 v14, 1, v13")
    k("v_lshrrev_b32 v15, 1, v13")
    k("v_lshrrev_b32 v11, 1, v15")
    k("v_and_b32 v15, 1, v15")
    k("v_lshl_add_u32 v15, v14, 1, v15")
    k("v_lshl_add_u32 v13, v11, 2, v15")
    k("v_lshl_add_u32 v14, v2, 3, v12")
    k("v_mul_u32_u24 v14, %d, v14" % ROWB)
    k("v_lshl_add_u32 v14, v13, 3, v14")
    k("s_lshr_b32 %s, %s, 1" % (s(S_T), s(S_W)))
    k("s_lshl_b32 %s, %s, 8" % (s(S_T), s(S_T)))
    k("v_add_u32 %s, %s, v14" % (v(VWB), s(S_T)))
    k("v_lshlrev_b32 v3, 4, v0")
    k("s_lshl_b32 %s, %s, 1" % (s(S_T), s(S_RB)))
    k("s_and_b32 %s, %s, 1" % (s(S_T2), s(S_W)))
    k("s_add_u32 %s, %s, %s" % (s(S_T), s(S_T), s(S_T2)))
    k("s_lshl_b32 %s, %s, 15" % (s(S_XB), s(S_T)))
    k("s_add_u32 %s, %s, 0x%x" % (s(S_XB), s(S_XB), WS_XN))
    k("s_lshl_b32 %s, %s, 11" % (s(S_XO), s(S_ROT)))

    def xload(slot):
        k("s_add_u32 %s, %s, %s" % (s(S_T), s(S_XB), s(S_XO)))
        k("buffer_load_dwordx4 %s, v3, %s, %s offen" % (v(XR + 4 * slot, 4), s(S_HD, 4), s(S_T)))
        k("s_add_u32 %s, %s, 1024" % (s(S_XO), s(S_XO)))
        k("s_and_b32 %s, %s, 0x7fff" % (s(S_XO), s(S_XO)))

    for sl in range(3):
        xload(sl)
    k("s_mov_b32 %s, 0" % s(S_SLOT))
    k("s_barrier")
    if "p" in OPT:
        prof_mark(k, 3)
    k("s_lshr_b32 %s, %s, 1" % (s(S_T), s(S_W)))
    k("s_lshl_b32 %s, %s, 9" % (s(S_T), s(S_T)))
    k("s_add_u32 %s, %s, %d" % (s(S_T), s(S_T), L_BI))
    k("v_lshl_add_u32 v12, v2, 4, %s" % s(S_T))
    for ft in range(4):
        for g in range(4):
            k("ds_read_b128 %s, v12 offset:%d" % (v(ACC + 16 * ft + 4 * g, 4), ft * 128 + g * 32))
    F = 4

    def slot_ops(par):
        k("v_add_u32 %s, %s, %s" % (v(VW2 + par), s(S_SLOT), v(VWB)))

    def rd_w(par, st, buf, ft):
        for u in range(2):
            k("ds_read_b64_tr_b16 %s, %s offset:%d" % (v(WF[buf] + 4 * ft + 2 * u, 2), v(VW2 + par), st * 16 * ROWB + u * 4 * ROWB + ft * 64))

    slot_ops(0)
    for ft in range(F):
        rd_w(0, 0, 0, ft)
    k("s_waitcnt lgkmcnt(8)")
    k("s_mov_b32 %s, 0" % s(S_C))
    k.label(pre + "_loop")
    step = 0
    for par in range(2):
        for st in range(2):
            b, nb = st, 1 - st
            npar = par if st == 0 else 1 - par
            xs = step & 3
            k("s_waitcnt vmcnt(2)")
            for ft in range(F):
                newer = 2 * (F - 1 - ft) + 2 * ft
                k("s_waitcnt lgkmcnt(%d)" % newer)
                d = v(ACC + 16 * ft, 16)
                k("v_mfma_f32_32x32x16_bf16 %s, %s, %s, %s" % (d, v(WF[b] + 4 * ft, 4), v(XR + 4 * xs, 4), d))
                if ft == 0 and st == 1:
                    k("s_barrier")
                rd_w(npar, 1 - st, nb, ft)
                if ft == 0:
                    xload((xs + 3) & 3)
                if st == 0 and ft == 1:
                    next_slot(k)
                if st == 0 and ft == F - 1:
                    slot_ops(1 - par)
            step += 1
    k("s_add_u32 %s, %s, 1" % (s(S_C), s(S_C)))
    k("s_cmp_lt_u32 %s, 8" % s(S_C))
    k("s_cbranch_scc1 %s_loop" % pre)
    k("s_waitcnt vmcnt(0) lgkmcnt(0)")
    if "p" in OPT:
        prof_mark(k, 4)
    epilogue(k, pre)


def epilogue(k, pre):
    if "fast" in g2.OPT:
        g2.resid_early_loads(k)
    k("s_lshl_b32 %s, %s, 1" % (s(S_T2), s(S_RB)))
    k("s_and_b32 %s, %s, 1" % (s(S_T), s(S_W)))
    k("s_add_u32 %s, %s, %s" % (s(S_T2), s(S_T2), s(S_T)))
    k("s_mul_i32 %s, %s, %d" % (s(S_T), s(S_T2), WS_HO_ROW))
    k("s_mul_i32 %s, %s, %d" % (s(S_T2), s(S_CB), 14 * 1024))
    k("s_add_u32 %s, %s, %s" % (s(S_T), s(S_T), s(S_T2)))
    k("s_lshr_b32 %s, %s, 1" % (s(S_T2), s(S_W)))
    k("s_lshl_b32 %s, %s, 13" % (s(S_C), s(S_T2)))
    k("s_add_u32 %s, %s, %s" % (s(S_T), s(S_T), s(S_C)))
    k("s_add_u32 %s, %s, 0x%x" % (s(S_T), s(S_T), WS_HO))
    k("v_add_u32 v12, %s, v3" % s(S_T))
    B = WF[0]
    for ft in range(4):
        if ft == 3:
            k("s_cmp_lg_u32 %s, 0" % s(S_T2))
            k("s_cbranch_scc1 %s_nost" % pre)
        A = ACC + 16 * ft
        for r in range(16):
            k("v_max_f32 %s, 0, %s" % (v(B + r), v(A + r)))
        for r in range(16):
            k("v_mul_f32 %s, %s, %s" % (v(A + r), v(A + r), v(B + r)))
        for r in range(8):
            k("v_cvt_pk_bf16_f32 %s, %s, %s" % (v(A + r), v(A + 2 * r), v(A + 2 * r + 1)))
        k("buffer_store_dwordx4 %s, v12, %s, 0 offen offset:%d sc1" % (v(A, 4), s(S_HD, 4), 2048 * (ft & 1)))
        k("buffer_store_dwordx4 %s, v12, %s, 0 offen offset:%d sc1" % (v(A + 4, 4), s(S_HD, 4), 2048 * (ft & 1) + 1024))
        if ft == 1:
            k("v_add_u32 v12, 4096, v12")
    k.label(pre + "_nost")
    k("s_waitcnt vmcnt(0)")
    if "p" in OPT:
        prof_mark(k, 5)
    if "hpf" in OPT:
        k("v_add_u32 v12, %s, v3" % s(S_T))
        for j in range(8):
            if j == 4:
                k("v_add_u32 v12, 4096, v12")
            if j == 6:
                k("s_cmp_lg_u32 %s, 0" % s(S_T2))
                k("s_cbranch_scc1 %s_nre" % pre)
            k("buffer_load_dwordx4 %s, v12, %s, 0 offen offset:%d sc1" % (v(XR + 4 * (j & 3), 4), s(S_HD, 4), 1024 * (j & 3)))
        k.label(pre + "_nre")
    if "wf" in OPT:
        k("s_lshl_b32 %s, %s, 7" % (s(S_C), s(S_RB)))
        k("s_add_u32 %s, %s, 0x%x" % (s(S_C), s(S_C), WS_FLAG + FLAG_H))
        k("s_lshl_b32 %s, %s, 2" % (s(S_T), s(S_CB)))
        k("s_add_u32 %s, %s, %s" % (s(S_T), s(S_T), s(S_W)))
        k("s_lshl_b32 %s, %s, 2" % (s(S_T), s(S_T)))
        k("s_add_u32 %s, %s, %s" % (s(S_T), s(S_T), s(S_C)))
        k("v_mov_b32 v12, %s" % s(S_T))
        k("v_mov_b32 v13, 1")
        k("s_mov_b64 exec, 1")
        k("global_store_dword v12, v13, %s sc1" % s(S_WS, 2))
        k("s_mov_b64 exec, -1")
        k("s_lshl_b32 %s, %s, 5" % (s(S_T), s(S_W)))
        k("s_add_u32 %s, %s, %s" % (s(S_C), s(S_C), s(S_T)))
        k("v_and_b32 v8, 7, v0")
        k("v_lshl_add_u32 v8, v8, 2, %s" % s(S_C))
        k("s_mov_b32 %s, 0" % s(S_KC))
        k.label(pre + "_wp")
        k("global_load_dword v9, v8, %s sc1" % s(S_WS, 2))
        k("s_add_u32 %s, %s, 1" % (s(S_KC), s(S_KC)))
        k("s_waitcnt vmcnt(0)")
        k("v_cmp_eq_u32 vcc, 0, v9")
        k("s_nop 1")
        k("s_cmp_eq_u64 vcc, 0")
        k("s_cbranch_scc1 %s_wg" % pre)
        k("s_sleep 2")
        k("s_cmp_lt_u32 %s, 0x40000" % s(S_KC))
        k("s_cbranch_scc1 %s_wp" % pre)
        k.label(pre + "_wg")
        return
    k.label(pre + "_post")
    k("s_barrier")
    k("s_lshl_b32 %s, %s, 7" % (s(S_C), s(S_RB)))
    k("s_add_u32 %s, %s, 0x%x" % (s(S_C), s(S_C), WS_FLAG + FLAG_H))
    k("s_cmp_eq_u32 %s, 0" % s(S_W))
    k("s_cbranch_scc0 %s_nf" % pre)
    k("s_lshl_b32 %s, %s, 2" % (s(S_T), s(S_CB)))
    k("s_add_u32 %s, %s, %s" % (s(S_T), s(S_T), s(S_C)))
    k("v_mov_b32 v12, %s" % s(S_T))
    k("v_mov_b32 v13, 1")
    k("s_mov_b64 exec, 1")
    k("global_store_dword v12, v13, %s sc1" % s(S_WS, 2))
    k("s_mov_b64 exec, -1")
    k.label(pre + "_nf")
    g2.wait_flags(k, pre + "_hw", S_C, 8, far=False)


def phase(k, pre):
    phase_head(k, pre)
    loader(k, pre)
    k.label(pre + "_cmp")
    compute(k, pre)


def phase_head(k, pre):
    if "map84" in g2.OPT:
        k("s_lshl_b32 %s, %s, 1" % (s(S_ROT), s(S_RL)))
        k("s_and_b32 %s, %s, 3" % (s(S_T), s(S_CB)))
        k("s_lshl_b32 %s, %s, 2" % (s(S_T), s(S_T)))
    else:
        k("s_lshl_b32 %s, %s, 2" % (s(S_ROT), s(S_RL)))
        k("s_lshl_b32 %s, %s, 1" % (s(S_T), s(S_CB)))
    k("s_add_u32 %s, %s, %s" % (s(S_ROT), s(S_ROT), s(S_T)))
    k("s_and_b32 %s, %s, 15" % (s(S_ROT), s(S_ROT)))
    k("s_mov_b32 %s, %s" % (s(S_W1D), s(S_W1)))
    k("s_and_b32 %s, %s, 0xffff" % (s(S_W1D + 1), s(S_W1 + 1)))
    k("s_mov_b32 %s, 0x%x" % (s(S_W1D + 2), 512 * 3584))
    k("s_mov_b32 %s, 0x20000" % s(S_W1D + 3))
    k("s_cmp_ge_u32 %s, 4" % s(S_W))
    k("s_cbranch_scc0 %s_cmp" % pre)
```

```python
import common
from common import *
import g2
from g2 import S_W, S_RB, S_CB, S_RL, S_T, S_T2, S_WS, S_HD
import f1
from f1 import WS_XN, FLAG_H, ROWB, S_W1, S_B1, S_W1D, S_LD, S_WO, S_WEND, S_SLOT, S_KC, S_C, S_XB, S_XO, S_ROT, S_LDO

OPT = f1.OPT
WB = 32 * ROWB
SLOT = WB + 4096
R = 4
L_BI = R * SLOT
LDS_NEED = L_BI + 1024
S_D3, S_O3, S_INC3, S_END3, S_WRAP3, S_LDO3 = 92, 67, 90, 91, 60, 61
VWB, VW2, VXB, VX2 = 8, 9, 11, 12
XF = [16, 20]
WF = [32, 48]
ACC = 64
VSRC = 8


def next_slot(k):
    k("s_add_u32 %s, %s, %d" % (s(S_SLOT), s(S_SLOT), SLOT))
    k("s_cmp_ge_u32 %s, %d" % (s(S_SLOT), R * SLOT))
    k("s_cselect_b32 %s, 0, %s" % (s(S_SLOT), s(S_SLOT)))


def loader(k, pre):
    k("s_sub_u32 %s, %s, 4" % (s(S_LD), s(S_W)))
    k("s_and_b32 %s, %s, 1" % (s(S_KC), s(S_LD)))
    k("s_lshl_b32 %s, %s, 2" % (s(S_T), s(S_KC)))
    k("s_mov_b32 %s, 0x%x" % (s(S_T2), (2 ** 32 + ROWB - 1) // ROWB))
    for j in range(4):
        k("s_add_u32 %s, %s, %d" % (s(S_C), s(S_T), j))
        k("s_lshl_b32 %s, %s, 10" % (s(S_C), s(S_C)))
        k("v_lshl_add_u32 v12, v0, 4, %s" % s(S_C))
        k("v_mul_hi_u32 v13, v12, %s" % s(S_T2))
        k("v_mul_u32_u24 v14, %d, v13" % ROWB)
        k("v_sub_u32 v14, v12, v14")
        k("v_mul_u32_u24 v13, 3584, v13")
        k("v_add_u32 %s, v13, v14" % v(VSRC + j))
    k("s_lshr_b32 %s, %s, 1" % (s(S_C), s(S_LD)))
    k("s_mul_i32 %s, %s, %d" % (s(S_LDO), s(S_C), 16 * ROWB))
    k("s_lshl_b32 %s, %s, 10" % (s(S_T), s(S_T)))
    k("s_add_u32 %s, %s, %s" % (s(S_LDO), s(S_LDO), s(S_T)))
    k("s_mul_i32 %s, %s, %d" % (s(S_WO), s(S_C), 16 * 3584))
    k("s_mul_i32 %s, %s, %d" % (s(S_T), s(S_CB), ROWB))
    k("s_add_u32 %s, %s, %s" % (s(S_WO), s(S_WO), s(S_T)))
    k("s_add_u32 %s, %s, %d" % (s(S_WEND), s(S_WO), 512 * 3584))
    k("s_mul_i32 %s, %s, %d" % (s(S_T), s(S_ROT), 32 * 3584))
    k("s_add_u32 %s, %s, %s" % (s(S_WO), s(S_WO), s(S_T)))
    k("s_lshl_b32 %s, %s, 1" % (s(S_T), s(S_RB)))
    k("s_add_u32 %s, %s, %s" % (s(S_T), s(S_T), s(S_C)))
    k("s_lshl_b32 %s, %s, 15" % (s(S_XB), s(S_T)))
    k("s_add_u32 %s, %s, 0x%x" % (s(S_XB), s(S_XB), WS_XN))
    k("s_lshl_b32 %s, %s, 11" % (s(S_T), s(S_ROT)))
    k("s_add_u32 %s, %s, %s" % (s(S_XO), s(S_XB), s(S_T)))
    k("s_lshl_b32 %s, %s, 11" % (s(S_T), s(S_C)))
    k("s_add_u32 %s, %s, %d" % (s(S_T), s(S_T), WB))
    k("s_add_u32 %s, %s, 3072" % (s(S_T2), s(S_LDO)))
    k("s_cmp_eq_u32 %s, 0" % s(S_KC))
    k("s_cselect_b32 %s, %s, %s" % (s(S_LDO3), s(S_T2), s(S_T)))
    k("s_cselect_b32 %s, %s, %s" % (s(S_D3), s(S_W1D), s(S_HD)))
    k("s_cselect_b32 %s, %s, %s" % (s(S_D3 + 1), s(S_W1D + 1), s(S_HD + 1)))
    k("s_cselect_b32 %s, %s, %s" % (s(S_D3 + 2), s(S_W1D + 2), s(S_HD + 2)))
    k("s_mov_b32 %s, 0x20000" % s(S_D3 + 3))
    k("s_cselect_b32 %s, %s, %s" % (s(S_O3), s(S_WO), s(S_XO)))
    k("s_cselect_b32 %s, %d, 2048" % (s(S_INC3), 32 * 3584))
    k("s_add_u32 %s, %s, 32768" % (s(S_T), s(S_XB)))
    k("s_cmp_eq_u32 %s, 0" % s(S_KC))
    k("s_cselect_b32 %s, %s, %s" % (s(S_END3), s(S_WEND), s(S_T)))
    k("s_cselect_b32 %s, %d, 32768" % (s(S_WRAP3), 512 * 3584))
    k("v_lshlrev_b32 v12, 4, v0")
    k("s_cselect_b64 vcc, -1, 0")
    k("v_cndmask_b32 %s, v12, %s, vcc" % (v(VSRC + 3), v(VSRC + 3)))

    def issue(c, tag):
        sl = (c % R) * SLOT
        k("s_add_u32 m0, %s, %d" % (s(S_LDO), sl))
        k("s_nop 0")
        for j in range(3):
            k("buffer_load_dwordx4 %s, %s, %s offen lds" % (v(VSRC + j), s(S_W1D, 4), s(S_WO)))
            if j < 2:
                k("s_add_u32 m0, m0, 1024")
                k("s_nop 0")
        k("s_add_u32 m0, %s, %d" % (s(S_LDO3), sl))
        k("s_cmp_eq_u32 %s, 0" % s(S_KC))
        k("buffer_load_dwordx4 %s, %s, %s offen lds" % (v(VSRC + 3), s(S_D3, 4), s(S_O3)))
        k("s_cbranch_scc1 %s_e%s" % (pre, tag))
        k("buffer_load_dwordx4 %s, %s, %s offen offset:1024 lds" % (v(VSRC + 3), s(S_D3, 4), s(S_O3)))
        k.label("%s_e%s" % (pre, tag))
        k("s_add_u32 %s, %s, %d" % (s(S_WO), s(S_WO), 32 * 3584))
        k("s_cmp_ge_u32 %s, %s" % (s(S_WO), s(S_WEND)))
        k("s_cselect_b32 %s, %d, 0" % (s(S_T), 512 * 3584))
        k("s_sub_u32 %s, %s, %s" % (s(S_WO), s(S_WO), s(S_T)))
        k("s_add_u32 %s, %s, %s" % (s(S_O3), s(S_O3), s(S_INC3)))
        k("s_cmp_ge_u32 %s, %s" % (s(S_O3), s(S_END3)))
        k("s_cselect_b32 %s, %s, 0" % (s(S_T), s(S_WRAP3)))
        k("s_sub_u32 %s, %s, %s" % (s(S_O3), s(S_O3), s(S_T)))

    k("v_lshrrev_b32 v12, 3, v1")
    k("v_bfe_u32 v13, v1, 2, 1")
    k("v_and_b32 v14, 3, v1")
    k("v_lshrrev_b32 v15, 1, v12")
    k("v_and_b32 v12, 1, v12")
    k("v_lshl_add_u32 v14, v12, 2, v14")
    k("v_lshl_add_u32 v14, v13, 3, v14")
    k("v_lshl_add_u32 v14, v15, 4, v14")
    k("v_lshl_add_u32 v14, v2, 5, v14")
    k("s_mul_i32 %s, %s, 224" % (s(S_T), s(S_CB)))
    k("s_lshl_b32 %s, %s, 6" % (s(S_T2), s(S_LD)))
    k("s_add_u32 %s, %s, %s" % (s(S_T), s(S_T), s(S_T2)))
    k("v_add_u32 v14, %s, v14" % s(S_T))
    k("v_lshlrev_b32 v14, 1, v14")
    k("v_min_u32 v14, 3582, v14")
    k("global_load_ushort v15, v14, %s" % s(S_B1, 2))
    if "early" not in OPT:
        k("s_waitcnt vmcnt(0)")
    issue(0, "a")
    issue(1, "b")
    k("s_waitcnt vmcnt(4)")
    k("v_lshlrev_b32 v15, 16, v15")
    k("s_lshl_b32 %s, %s, 8" % (s(S_T), s(S_LD)))
    k("s_add_u32 %s, %s, %d" % (s(S_T), s(S_T), L_BI))
    k("v_lshl_add_u32 v12, v0, 2, %s" % s(S_T))
    k("ds_write_b32 v12, v15")
    k("s_waitcnt lgkmcnt(0)")
    k("s_barrier")
    issue(2, "c")
    for c in range(1, 17):
        k("s_waitcnt vmcnt(%d)" % (4 if c + 1 < 16 else 0))
        k("s_barrier")
        if c + 2 < 16:
            issue(c + 2, "l%d" % c)
    k("s_endpgm")


def compute(k, pre):
    k("v_bfe_u32 v12, v0, 2, 2")
    k("v_and_b32 v13, 3, v0")
    k("v_bfe_u32 v14, v0, 4, 1")
    k("v_lshl_add_u32 v13, v14, 2, v13")
    k("v_and_b32 v14, 1, v13")
    k("v_lshrrev_b32 v15, 1, v13")
    k("v_lshrrev_b32 v11, 1, v15")
    k("v_and_b32 v15, 1, v15")
    k("v_lshl_add_u32 v15, v14, 1, v15")
    k("v_lshl_add_u32 v13, v11, 2, v15")
    k("v_lshl_add_u32 v14, v2, 3, v12")
    k("v_mul_u32_u24 v14, %d, v14" % ROWB)
    k("v_lshl_add_u32 v14, v13, 3, v14")
    k("s_lshr_b32 %s, %s, 1" % (s(S_T), s(S_W)))
    k("s_lshl_b32 %s, %s, 8" % (s(S_T), s(S_T)))
    k("v_add_u32 %s, %s, v14" % (v(VWB), s(S_T)))
    k("v_lshlrev_b32 v3, 4, v0")
    k("s_and_b32 %s, %s, 1" % (s(S_T), s(S_W)))
    k("s_lshl_b32 %s, %s, 11" % (s(S_T), s(S_T)))
    k("s_add_u32 %s, %s, %d" % (s(S_T), s(S_T), WB))
    k("v_add_u32 %s, %s, v3" % (v(VXB), s(S_T)))
    k("s_mov_b32 %s, 0" % s(S_SLOT))
    k("s_barrier")
    if "p" in OPT:
        prof_mark(k, 3)
    k("s_lshr_b32 %s, %s, 1" % (s(S_T), s(S_W)))
    k("s_lshl_b32 %s, %s, 9" % (s(S_T), s(S_T)))
    k("s_add_u32 %s, %s, %d" % (s(S_T), s(S_T), L_BI))
    k("v_lshl_add_u32 v14, v2, 4, %s" % s(S_T))
    for ft in range(4):
        for g in range(4):
            k("ds_read_b128 %s, v14 offset:%d" % (v(ACC + 16 * ft + 4 * g, 4), ft * 128 + g * 32))
    F = 4

    def slot_ops(par):
        k("v_add_u32 %s, %s, %s" % (v(VW2 + par), s(S_SLOT), v(VWB)))
        k("v_add_u32 %s, %s, %s" % (v(VX2 + par), s(S_SLOT), v(VXB)))

    def rd_x(par, st, buf):
        k("ds_read_b128 %s, %s offset:%d" % (v(XF[buf], 4), v(VX2 + par), st * 1024))

    def rd_w(par, st, buf, ft):
        for u in range(2):
            k("ds_read_b64_tr_b16 %s, %s offset:%d" % (v(WF[buf] + 4 * ft + 2 * u, 2), v(VW2 + par), st * 16 * ROWB + u * 4 * ROWB + ft * 64))

    slot_ops(0)
    k("s_waitcnt lgkmcnt(0)")
    rd_x(0, 0, 0)
    for ft in range(F):
        rd_w(0, 0, 0, ft)
    k("s_mov_b32 %s, 0" % s(S_C))
    k.label(pre + "_loop")
    for par in range(2):
        for st in range(2):
            b, nb = st, 1 - st
            npar = par if st == 0 else 1 - par
            for ft in range(F):
                newer = 2 * (F - 1 - ft) + (0 if ft == 0 else 1 + 2 * ft)
                k("s_waitcnt lgkmcnt(%d)" % newer)
                d = v(ACC + 16 * ft, 16)
                k("v_mfma_f32_32x32x16_bf16 %s, %s, %s, %s" % (d, v(WF[b] + 4 * ft, 4), v(XF[b], 4), d))
                if ft == 0:
                    if st == 1:
                        k("s_barrier")
                    rd_x(npar, 1 - st, nb)
                rd_w(npar, 1 - st, nb, ft)
                if st == 0 and ft == 1:
                    next_slot(k)
                if st == 0 and ft == F - 1:
                    slot_ops(1 - par)
    k("s_add_u32 %s, %s, 1" % (s(S_C), s(S_C)))
    k("s_cmp_lt_u32 %s, 8" % s(S_C))
    k("s_cbranch_scc1 %s_loop" % pre)
    k("s_waitcnt lgkmcnt(0)")
    if "p" in OPT:
        prof_mark(k, 4)
    f1.epilogue(k, pre)


def phase(k, pre):
    f1.phase_head(k, pre)
    loader(k, pre)
    k.label(pre + "_cmp")
    compute(k, pre)
```

```python
import sys
import common
from common import *
import attn, gemm1, final, g1, k1, g2, kb, f1, f1x

def build(path, which=("qkv", "ffn1", "attn", "final")):
    k = Asm()
    body = Asm()
    launches = []
    if "qkv" in which:
        n, lds = g1.gen(body, "qkv_kernel", "L_qkv", "qkv")
        launches.append("; @launch kernel=qkv_kernel grid=(%d,1,1) block=(512,1,1) lds=%d" % (n, lds))
    if "k1" in which:
        n, lds = k1.gen(body, "k1_kernel", "L_k1")
        launches.append("; @launch kernel=k1_kernel grid=(%d,1,1) block=(512,1,1) lds=%d" % (n, lds))
    if "kb" in which:
        n, lds = kb.gen(body, "kb_kernel", "L_kb", True)
        launches.append("; @launch kernel=kb_kernel grid=(%d,1,1) block=(512,1,1) lds=%d" % (n, lds))
    if "kq" in which:
        kb.OPT.add("xn")
        n, lds = kb.gen(body, "kb_kernel", "L_kb", False)
        launches.append("; @launch kernel=kb_kernel grid=(%d,1,1) block=(512,1,1) lds=%d" % (n, lds))
    if "ffn1" in which:
        n, lds = g1.gen(body, "ffn1_kernel", "L_ffn1", "ffn1")
        launches.append("; @launch kernel=ffn1_kernel grid=(%d,1,1) block=(512,1,1) lds=%d" % (n, lds))
    if "attn" in which:
        attn.gen_attn(body, "attn_kernel")
        launches.append("; @launch kernel=attn_kernel grid=(256,1,1) block=(512,1,1) lds=%d" % (3 * attn.SLOT))
    if "k2" in which:
        attn.gen_attn(body, "k2_kernel", True, lambda kk: g2.gen_ffn2_role(kk, "L_g2", g2.WS_BASE + (4 << 20)))
        launches.append("; @launch kernel=k2_kernel grid=(512,1,1) block=(512,1,1) lds=%d" % (3 * attn.SLOT))
    if "k2s" in which:
        attn.OPT.add("signal")
        attn.gen_attn(body, "k2_kernel", True, lambda kk: g2.gen_g_role(kk, "L_g2"))
        launches.append("; @launch kernel=k2_kernel grid=(512,1,1) block=(512,1,1) lds=%d" % (3 * attn.SLOT))
    if "k2f" in which:
        attn.OPT.add("signal")
        g2.XPROF[0] = True
        xl = "xl" in f1.OPT
        attn.gen_attn(body, "k2_kernel", True, lambda kk: g2.gen_g_role(kk, "L_g2", f1x.phase if xl else f1.phase))
        launches.append("; @launch kernel=k2_kernel grid=(512,1,1) block=(512,1,1) lds=%d" % (max(3 * attn.SLOT, f1x.LDS_NEED) if xl else 3 * attn.SLOT))
    if "wo" in which:
        n, lds = g2.gen_wo(body, "wo_kernel", "L_wo")
        launches.append("; @launch kernel=wo_kernel grid=(%d,1,1) block=(256,1,1) lds=%d" % (n, lds))
    if "final" in which:
        n, lds = g2.gen_final(body, "final_kernel", "L_fin")
        launches.append("; @launch kernel=final_kernel grid=(%d,1,1) block=(256,1,1) lds=%d" % (n, lds))
    if "empty" in which:
        body.kernel_begin("empty_kernel")
        body.kernel_end("empty_kernel", 32, 32)
        n = [int(a[5:]) for a in which if a.startswith("empty") and len(a) > 5]
    for a in which:
        if a.startswith("nempty"):
            if "empty_kernel:" not in body.text():
                body.kernel_begin("empty_kernel")
                body.kernel_end("empty_kernel", 32, 32)
            for i in range(int(a[6:])):
                launches.append("; @launch kernel=empty_kernel grid=(256,1,1) block=(256,1,1) lds=0")
    body.label("L_text_end")
    txt = HEADER + "\n".join(launches) + "\n" + '.amdgcn_target "amdgcn-amd-amdhsa--gfx950"\n' + body.text()
    open(path, "w").write(txt)

if __name__ == "__main__":
    common.PROF = "prof" in sys.argv
    common.STAMP = "stamp" in sys.argv
    for a in sys.argv[1:]:
        if a.startswith("g1:"):
            g1.OPT.add(a[3:])
        if a.startswith("k1:"):
            k1.OPT.add(a[3:])
        if a.startswith("kb:"):
            kb.OPT.add(a[3:])
        if a.startswith("f1:"):
            f1.OPT.add(a[3:])
        if a.startswith("g2:"):
            g2.OPT.add(a[3:])
        if a.startswith("at:"):
            attn.OPT.add(a[3:])
    out = [a for a in sys.argv[1:] if a.endswith(".s")][0]
    which = [a for a in sys.argv[1:] if a in ("qkv", "ffn1", "attn", "final", "k1", "kb", "k2", "wo", "k2s", "kq", "k2f") or a.startswith("nempty")] or ("qkv", "ffn1", "attn", "final")
    build(out, which)
```

```python
import common
from common import *
import g2
from g2 import S_W, S_RB, S_CB, S_RL, S_T, S_T2, S_WS, S_HD
import f1
from f1 import WS_XN, FLAG_H, ROWB, S_W1, S_B1, S_W1D, S_LD, S_WO, S_WEND, S_SLOT, S_KC, S_C, S_XB, S_XO, S_ROT, S_LDO

OPT = f1.OPT
WB = 32 * ROWB
SLOT = WB + 4096
R = 4
L_BI = R * SLOT
LDS_NEED = L_BI + 1024
S_D3, S_O3, S_INC3, S_END3, S_WRAP3, S_LDO3 = 92, 67, 90, 91, 60, 61
VWB, VW2, VXB, VX2 = 8, 9, 11, 12
XF = [16, 20]
WF = [32, 48]
ACC = 64
VSRC = 8


def next_slot(k):
    k("s_add_u32 %s, %s, %d" % (s(S_SLOT), s(S_SLOT), SLOT))
    k("s_cmp_ge_u32 %s, %d" % (s(S_SLOT), R * SLOT))
    k("s_cselect_b32 %s, 0, %s" % (s(S_SLOT), s(S_SLOT)))


def loader(k, pre):
    k("s_sub_u32 %s, %s, 4" % (s(S_LD), s(S_W)))
    k("s_and_b32 %s, %s, 1" % (s(S_KC), s(S_LD)))
    k("s_lshl_b32 %s, %s, 2" % (s(S_T), s(S_KC)))
    k("s_mov_b32 %s, 0x%x" % (s(S_T2), (2 ** 32 + ROWB - 1) // ROWB))
    for j in range(4):
        k("s_add_u32 %s, %s, %d" % (s(S_C), s(S_T), j))
        k("s_lshl_b32 %s, %s, 10" % (s(S_C), s(S_C)))
        k("v_lshl_add_u32 v12, v0, 4, %s" % s(S_C))
        k("v_mul_hi_u32 v13, v12, %s" % s(S_T2))
        k("v_mul_u32_u24 v14, %d, v13" % ROWB)
        k("v_sub_u32 v14, v12, v14")
        k("v_mul_u32_u24 v13, 3584, v13")
        k("v_add_u32 %s, v13, v14" % v(VSRC + j))
    k("s_lshr_b32 %s, %s, 1" % (s(S_C), s(S_LD)))
    k("s_mul_i32 %s, %s, %d" % (s(S_LDO), s(S_C), 16 * ROWB))
    k("s_lshl_b32 %s, %s, 10" % (s(S_T), s(S_T)))
    k("s_add_u32 %s, %s, %s" % (s(S_LDO), s(S_LDO), s(S_T)))
    k("s_mul_i32 %s, %s, %d" % (s(S_WO), s(S_C), 16 * 3584))
    k("s_mul_i32 %s, %s, %d" % (s(S_T), s(S_CB), ROWB))
    k("s_add_u32 %s, %s, %s" % (s(S_WO), s(S_WO), s(S_T)))
    k("s_add_u32 %s, %s, %d" % (s(S_WEND), s(S_WO), 512 * 3584))
    k("s_mul_i32 %s, %s, %d" % (s(S_T), s(S_ROT), 32 * 3584))
    k("s_add_u32 %s, %s, %s" % (s(S_WO), s(S_WO), s(S_T)))
    k("s_lshl_b32 %s, %s, 1" % (s(S_T), s(S_RB)))
    k("s_add_u32 %s, %s, %s" % (s(S_T), s(S_T), s(S_C)))
    k("s_lshl_b32 %s, %s, 15" % (s(S_XB), s(S_T)))
    k("s_add_u32 %s, %s, 0x%x" % (s(S_XB), s(S_XB), WS_XN))
    k("s_lshl_b32 %s, %s, 11" % (s(S_T), s(S_ROT)))
    k("s_add_u32 %s, %s, %s" % (s(S_XO), s(S_XB), s(S_T)))
    k("s_lshl_b32 %s, %s, 11" % (s(S_T), s(S_C)))
    k("s_add_u32 %s, %s, %d" % (s(S_T), s(S_T), WB))
    k("s_add_u32 %s, %s, 3072" % (s(S_T2), s(S_LDO)))
    k("s_cmp_eq_u32 %s, 0" % s(S_KC))
    k("s_cselect_b32 %s, %s, %s" % (s(S_LDO3), s(S_T2), s(S_T)))
    k("s_cselect_b32 %s, %s, %s" % (s(S_D3), s(S_W1D), s(S_HD)))
    k("s_cselect_b32 %s, %s, %s" % (s(S_D3 + 1), s(S_W1D + 1), s(S_HD + 1)))
    k("s_cselect_b32 %s, %s, %s" % (s(S_D3 + 2), s(S_W1D + 2), s(S_HD + 2)))
    k("s_mov_b32 %s, 0x20000" % s(S_D3 + 3))
    k("s_cselect_b32 %s, %s, %s" % (s(S_O3), s(S_WO), s(S_XO)))
    k("s_movk_i32 %s, 2048" % s(S_INC3))
    k("s_cselect_b32 %s, %d, %s" % (s(S_INC3), 32 * 3584, s(S_INC3)))
    k("s_add_u32 %s, %s, 32768" % (s(S_T), s(S_XB)))
    k("s_cmp_eq_u32 %s, 0" % s(S_KC))
    k("s_cselect_b32 %s, %s, %s" % (s(S_END3), s(S_WEND), s(S_T)))
    k("s_mov_b32 %s, 32768" % s(S_WRAP3))
    k("s_cselect_b32 %s, %d, %s" % (s(S_WRAP3), 512 * 3584, s(S_WRAP3)))
    k("v_lshlrev_b32 v12, 4, v0")
    k("s_cselect_b64 vcc, -1, 0")
    k("v_cndmask_b32 %s, v12, %s, vcc" % (v(VSRC + 3), v(VSRC + 3)))

    def issue(c, tag):
        sl = (c % R) * SLOT
        k("s_add_u32 m0, %s, %d" % (s(S_LDO), sl))
        k("s_nop 0")
        for j in range(3):
            k("buffer_load_dwordx4 %s, %s, %s offen lds" % (v(VSRC + j), s(S_W1D, 4), s(S_WO)))
            if j < 2:
                k("s_add_u32 m0, m0, 1024")
                k("s_nop 0")
        k("s_add_u32 m0, %s, %d" % (s(S_LDO3), sl))
        k("s_cmp_eq_u32 %s, 0" % s(S_KC))
        k("buffer_load_dwordx4 %s, %s, %s offen lds" % (v(VSRC + 3), s(S_D3, 4), s(S_O3)))
        k("s_cbranch_scc1 %s_e%s" % (pre, tag))
        k("buffer_load_dwordx4 %s, %s, %s offen offset:1024 lds" % (v(VSRC + 3), s(S_D3, 4), s(S_O3)))
        k.label("%s_e%s" % (pre, tag))
        k("s_add_u32 %s, %s, %d" % (s(S_WO), s(S_WO), 32 * 3584))
        k("s_cmp_ge_u32 %s, %s" % (s(S_WO), s(S_WEND)))
        k("s_cselect_b32 %s, %d, 0" % (s(S_T), 512 * 3584))
        k("s_sub_u32 %s, %s, %s" % (s(S_WO), s(S_WO), s(S_T)))
        k("s_add_u32 %s, %s, %s" % (s(S_O3), s(S_O3), s(S_INC3)))
        k("s_cmp_ge_u32 %s, %s" % (s(S_O3), s(S_END3)))
        k("s_cselect_b32 %s, %s, 0" % (s(S_T), s(S_WRAP3)))
        k("s_sub_u32 %s, %s, %s" % (s(S_O3), s(S_O3), s(S_T)))

    k("v_lshrrev_b32 v12, 3, v1")
    k("v_bfe_u32 v13, v1, 2, 1")
    k("v_and_b32 v14, 3, v1")
    k("v_lshrrev_b32 v15, 1, v12")
    k("v_and_b32 v12, 1, v12")
    k("v_lshl_add_u32 v14, v12, 2, v14")
    k("v_lshl_add_u32 v14, v13, 3, v14")
    k("v_lshl_add_u32 v14, v15, 4, v14")
    k("v_lshl_add_u32 v14, v2, 5, v14")
    k("s_mul_i32 %s, %s, 224" % (s(S_T), s(S_CB)))
    k("s_lshl_b32 %s, %s, 6" % (s(S_T2), s(S_LD)))
    k("s_add_u32 %s, %s, %s" % (s(S_T), s(S_T), s(S_T2)))
    k("v_add_u32 v14, %s, v14" % s(S_T))
    k("v_lshlrev_b32 v14, 1, v14")
    k("v_min_u32 v14, 3582, v14")
    k("global_load_ushort v15, v14, %s" % s(S_B1, 2))
    if "early" not in OPT:
        k("s_waitcnt vmcnt(0)")
    issue(0, "a")
    issue(1, "b")
    k("s_waitcnt vmcnt(4)")
    k("v_lshlrev_b32 v15, 16, v15")
    k("s_lshl_b32 %s, %s, 8" % (s(S_T), s(S_LD)))
    k("s_add_u32 %s, %s, %d" % (s(S_T), s(S_T), L_BI))
    k("v_lshl_add_u32 v12, v0, 2, %s" % s(S_T))
    k("ds_write_b32 v12, v15")
    k("s_waitcnt lgkmcnt(0)")
    k("s_barrier")
    issue(2, "c")
    for c in range(1, 17):
        k("s_waitcnt vmcnt(%d)" % (4 if c + 1 < 16 else 0))
        k("s_barrier")
        if c + 2 < 16:
            issue(c + 2, "l%d" % c)
    k("s_endpgm")


def compute(k, pre):
    k("v_bfe_u32 v12, v0, 2, 2")
    k("v_and_b32 v13, 3, v0")
    k("v_bfe_u32 v14, v0, 4, 1")
    k("v_lshl_add_u32 v13, v14, 2, v13")
    k("v_and_b32 v14, 1, v13")
    k("v_lshrrev_b32 v15, 1, v13")
    k("v_lshrrev_b32 v11, 1, v15")
    k("v_and_b32 v15, 1, v15")
    k("v_lshl_add_u32 v15, v14, 1, v15")
    k("v_lshl_add_u32 v13, v11, 2, v15")
    k("v_lshl_add_u32 v14, v2, 3, v12")
    k("v_mul_u32_u24 v14, %d, v14" % ROWB)
    k("v_lshl_add_u32 v14, v13, 3, v14")
    k("s_lshr_b32 %s, %s, 1" % (s(S_T), s(S_W)))
    k("s_lshl_b32 %s, %s, 8" % (s(S_T), s(S_T)))
    k("v_add_u32 %s, %s, v14" % (v(VWB), s(S_T)))
    k("v_lshlrev_b32 v3, 4, v0")
    k("s_and_b32 %s, %s, 1" % (s(S_T), s(S_W)))
    k("s_lshl_b32 %s, %s, 11" % (s(S_T), s(S_T)))
    k("s_add_u32 %s, %s, %d" % (s(S_T), s(S_T), WB))
    k("v_add_u32 %s, %s, v3" % (v(VXB), s(S_T)))
    k("s_mov_b32 %s, 0" % s(S_SLOT))
    k("s_barrier")
    if "p" in OPT:
        prof_mark(k, 3)
    k("s_lshr_b32 %s, %s, 1" % (s(S_T), s(S_W)))
    k("s_lshl_b32 %s, %s, 9" % (s(S_T), s(S_T)))
    k("s_add_u32 %s, %s, %d" % (s(S_T), s(S_T), L_BI))
    k("v_lshl_add_u32 v14, v2, 4, %s" % s(S_T))
    for ft in range(4):
        for g in range(4):
            k("ds_read_b128 %s, v14 offset:%d" % (v(ACC + 16 * ft + 4 * g, 4), ft * 128 + g * 32))
    F = 4

    def slot_ops(par):
        k("v_add_u32 %s, %s, %s" % (v(VW2 + par), s(S_SLOT), v(VWB)))
        k("v_add_u32 %s, %s, %s" % (v(VX2 + par), s(S_SLOT), v(VXB)))

    def rd_x(par, st, buf):
        k("ds_read_b128 %s, %s offset:%d" % (v(XF[buf], 4), v(VX2 + par), st * 1024))

    def rd_w(par, st, buf, ft):
        for u in range(2):
            k("ds_read_b64_tr_b16 %s, %s offset:%d" % (v(WF[buf] + 4 * ft + 2 * u, 2), v(VW2 + par), st * 16 * ROWB + u * 4 * ROWB + ft * 64))

    slot_ops(0)
    k("s_waitcnt lgkmcnt(0)")
    rd_x(0, 0, 0)
    for ft in range(F):
        rd_w(0, 0, 0, ft)
    k("s_mov_b32 %s, 0" % s(S_C))
    k.label(pre + "_loop")
    for par in range(2):
        for st in range(2):
            b, nb = st, 1 - st
            npar = par if st == 0 else 1 - par
            for ft in range(F):
                newer = 2 * (F - 1 - ft) + (0 if ft == 0 else 1 + 2 * ft)
                k("s_waitcnt lgkmcnt(%d)" % newer)
                d = v(ACC + 16 * ft, 16)
                k("v_mfma_f32_32x32x16_bf16 %s, %s, %s, %s" % (d, v(WF[b] + 4 * ft, 4), v(XF[b], 4), d))
                if ft == 0:
                    if st == 1:
                        k("s_barrier")
                    rd_x(npar, 1 - st, nb)
                rd_w(npar, 1 - st, nb, ft)
                if st == 0 and ft == 1:
                    next_slot(k)
                if st == 0 and ft == F - 1:
                    slot_ops(1 - par)
    k("s_add_u32 %s, %s, 1" % (s(S_C), s(S_C)))
    k("s_cmp_lt_u32 %s, 8" % s(S_C))
    k("s_cbranch_scc1 %s_loop" % pre)
    k("s_waitcnt lgkmcnt(0)")
    if "p" in OPT:
        prof_mark(k, 4)
    f1.epilogue(k, pre)


def phase(k, pre):
    f1.phase_head(k, pre)
    loader(k, pre)
    k.label(pre + "_cmp")
    compute(k, pre)
```

```python
import common
from common import *

OPT = set()
S_X, S_W2, S_WOP, S_B2, S_OUT, S_WS = 4, 6, 8, 10, 12, 14
S_HD, S_WD, S_XD, S_OD, S_BD = 16, 20, 28, 32, 52
S_W, S_RB, S_CB, S_T, S_T2, S_LB = 36, 37, 38, 39, 40, 41
S_XO0, S_XO1, S_WO, S_WRAP, S_LEFT, S_N, S_TRIP, S_RL = 42, 43, 44, 45, 46, 47, 48, 49
S_BX, S_BW, S_BWRAP = 56, 57, 58
D = 4
WSLOT = 2048
RING = D * WSLOT
VWS, VWR, VL16 = 4, 6, 3
XF, WF, ACC = 16, 48, 64
NA, NB = 28, 8


def setup(k):
    k("v_and_b32 v1, 31, v0")
    k("v_lshrrev_b32 v2, 5, v0")
    k("v_lshlrev_b32 v3, 4, v0")
    k("v_lshrrev_b32 v4, 3, v0")
    k("v_bfe_u32 v5, v0, 2, 1")
    k("v_bfe_u32 v6, v0, 4, 1")
    k("v_xor_b32 v5, v5, v6")
    k("v_and_b32 v6, 3, v0")
    k("v_lshlrev_b32 v6, 4, v6")
    k("v_lshl_add_u32 v5, v5, 6, v6")
    k("v_lshl_add_u32 v4, v4, 10, v5")
    k("v_bfe_u32 v12, v0, 2, 2")
    k("v_and_b32 v13, 3, v0")
    k("v_bfe_u32 v14, v0, 4, 1")
    k("v_lshl_add_u32 v13, v14, 2, v13")
    k("v_and_b32 v14, 1, v13")
    k("v_lshrrev_b32 v15, 1, v13")
    k("v_lshrrev_b32 v8, 1, v15")
    k("v_and_b32 v15, 1, v15")
    k("v_lshl_add_u32 v15, v14, 1, v15")
    k("v_lshl_add_u32 v13, v8, 2, v15")
    k("v_lshl_add_u32 v14, v2, 3, v12")
    k("v_lshlrev_b32 v14, 7, v14")
    k("v_lshl_add_u32 v14, v13, 3, v14")
    k("v_lshrrev_b32 v12, 1, v12")
    k("v_add_u32 v14, %s, v14" % s(S_LB))
    for ft in range(2):
        k("v_xor_b32 v15, %d, v12" % ft)
        k("v_lshl_add_u32 %s, v15, 6, v14" % v(VWR + ft))
    for j in range(64):
        k("v_mov_b32 %s, 0" % v(ACC + j))


def seg_params(k, n, kbase, dx, dw, dwrap):
    if "map84" in OPT:
        k("s_mul_i32 %s, %s, %d" % (s(S_T), s(S_RL), n))
        k("s_lshr_b32 %s, %s, 3" % (s(S_T), s(S_T)))
        k("s_and_b32 %s, %s, 3" % (s(S_T2), s(S_CB)))
        k("s_mul_i32 %s, %s, %d" % (s(S_T2), s(S_T2), n // 4))
    else:
        k("s_mul_i32 %s, %s, %d" % (s(S_T), s(S_RL), n // 4))
        k("s_mul_i32 %s, %s, %d" % (s(S_T2), s(S_CB), n))
        k("s_lshr_b32 %s, %s, 3" % (s(S_T2), s(S_T2)))
    k("s_add_u32 %s, %s, %s" % (s(S_T), s(S_T), s(S_T2)))
    k("s_cmp_ge_u32 %s, %d" % (s(S_T), n))
    k("s_cselect_b32 %s, %d, 0" % (s(S_T2), n))
    k("s_sub_u32 %s, %s, %s" % (s(S_T), s(S_T), s(S_T2)))
    k("s_sub_u32 %s, %d, %s" % (s(dwrap), n, s(S_T)))
    k("s_mul_i32 %s, %s, %d" % (s(S_T2), s(S_W), n))
    k("s_add_u32 %s, %s, %s" % (s(S_T), s(S_T), s(S_T2)))
    k("s_lshl_b32 %s, %s, 14" % (s(dw), s(S_T)))
    k("s_lshl_b32 %s, %s, 7" % (s(S_T2), s(S_CB)))
    k("s_add_u32 %s, %s, %s" % (s(dw), s(dw), s(S_T2)))
    k("s_add_u32 %s, %s, %d" % (s(S_T), s(S_T), kbase))
    k("s_lshl_b32 %s, %s, 10" % (s(S_T), s(S_T)))
    k("s_lshl_b32 %s, %s, 1" % (s(S_T2), s(S_RB)))
    k("s_mul_i32 %s, %s, %d" % (s(dx), s(S_T2), WS_HO_ROW))
    k("s_add_u32 %s, %s, %s" % (s(dx), s(dx), s(S_T)))
    k("s_add_u32 %s, %s, 0x%x" % (s(dx), s(dx), WS_HO))


XPROF = [False]
XSC = [""]


def issue_groups(slot):
    g = []
    g.append(["buffer_load_dwordx4 %s, v3, %s, %s offen%s" % (v(XF + 8 * slot, 4), s(S_HD, 4), s(S_XO0), XSC[0])])
    g.append(["s_add_u32 %s, %s, %d" % (s(S_XO1), s(S_XO0), WS_HO_ROW),
              "buffer_load_dwordx4 %s, v3, %s, %s offen%s" % (v(XF + 8 * slot + 4, 4), s(S_HD, 4), s(S_XO1), XSC[0])])
    g.append(["s_add_u32 m0, %s, %d" % (s(S_LB), slot * WSLOT),
              "s_add_u32 %s, %s, 8192" % (s(S_T), s(S_WO)),
              "buffer_load_dwordx4 v4, %s, %s offen lds" % (s(S_WD, 4), s(S_WO))])
    g.append(["s_add_u32 m0, m0, 1024", "s_nop 0",
              "buffer_load_dwordx4 v4, %s, %s offen lds" % (s(S_WD, 4), s(S_T))])
    if "nox" in OPT:
        g[0] = ["buffer_load_dwordx4 v4, %s, %s offen lds" % (s(S_WD, 4), s(S_WO))]
        g[1] = ["buffer_load_dwordx4 v4, %s, %s offen lds" % (s(S_WD, 4), s(S_WO))]
    if "now" in OPT:
        g[2] = ["buffer_load_dwordx4 %s, v3, %s, %s offen" % (v(XF + 8 * slot, 4), s(S_HD, 4), s(S_XO0))]
        g[3] = ["buffer_load_dwordx4 %s, v3, %s, %s offen" % (v(XF + 8 * slot + 4, 4), s(S_HD, 4), s(S_XO1))]
    return g


def advance(k, lab, two_segments):
    k("s_add_u32 %s, %s, 1024" % (s(S_XO0), s(S_XO0)))
    k("s_add_u32 %s, %s, 16384" % (s(S_WO), s(S_WO)))
    k("s_sub_u32 %s, %s, 1" % (s(S_WRAP), s(S_WRAP)))
    k("s_cmp_lg_u32 %s, 0" % s(S_WRAP))
    k("s_cbranch_scc1 %s_nw" % lab)
    k("s_lshl_b32 %s, %s, 10" % (s(S_T), s(S_N)))
    k("s_sub_u32 %s, %s, %s" % (s(S_XO0), s(S_XO0), s(S_T)))
    k("s_lshl_b32 %s, %s, 14" % (s(S_T), s(S_N)))
    k("s_sub_u32 %s, %s, %s" % (s(S_WO), s(S_WO), s(S_T)))
    k("s_mov_b32 %s, %s" % (s(S_WRAP), s(S_N)))
    k.label(lab + "_nw")
    if two_segments:
        k("s_sub_u32 %s, %s, 1" % (s(S_LEFT), s(S_LEFT)))
        k("s_cmp_lg_u32 %s, 0" % s(S_LEFT))
        k("s_cbranch_scc1 %s_ns" % lab)
        k("s_mov_b32 %s, %s" % (s(S_XO0), s(S_BX)))
        k("s_mov_b32 %s, %s" % (s(S_WO), s(S_BW)))
        k("s_mov_b32 %s, %s" % (s(S_WRAP), s(S_BWRAP)))
        k("s_mov_b32 %s, %d" % (s(S_N), NB))
        k("s_mov_b32 %s, %s" % (s(S_WD), s(S_WOP)))
        k("s_and_b32 %s, %s, 0xffff" % (s(S_WD + 1), s(S_WOP + 1)))
        k("s_mov_b32 %s, 0x%x" % (s(S_WD + 2), 512 * 1024))
        k.label(lab + "_ns")


def rd_w(k, slot, buf):
    for ft in range(2):
        for u in range(2):
            k("ds_read_b64_tr_b16 %s, %s offset:%d" % (v(WF + 8 * buf + 4 * ft + 2 * u, 2), v(VWR + ft), slot * WSLOT + u * 512))


def step(k, d, lab, issue, vm, two_segments, last=False):
    if not last:
        k("s_waitcnt vmcnt(%d)" % vm)
        rd_w(k, (d + 1) % D, (d + 1) & 1)
        k("s_waitcnt lgkmcnt(4)")
    else:
        k("s_waitcnt lgkmcnt(0)")
    g = issue_groups((d + D - 1) % D) if issue else [[], [], [], []]
    j = 0
    for tt in range(2):
        for ft in range(2):
            dd = v(ACC + 16 * (2 * tt + ft), 16)
            if "nomfma" not in OPT:
                k("v_mfma_f32_32x32x16_bf16 %s, %s, %s, %s" % (dd, v(WF + 8 * (d & 1) + 4 * ft, 4), v(XF + 8 * d + 4 * tt, 4), dd))
            for ins in g[j]:
                k(ins)
            j += 1
    if issue:
        advance(k, lab, two_segments)


def stream(k, pre, nsteps, two_segments, prio=None):
    for d in range(D - 1):
        for grp in issue_groups(d):
            for ins in grp:
                k(ins)
        advance(k, "%s_p%d" % (pre, d), two_segments)
    if "latep" in OPT:
        k("s_setprio %d" % (prio or 0))
    k("s_waitcnt vmcnt(8)")
    if prio and "latep" not in OPT:
        k("s_setprio %d" % prio)
    rd_w(k, 0, 0)
    ntrip = (nsteps - (D - 1)) // D
    k("s_mov_b32 %s, 0" % s(S_TRIP))
    k.label(pre + "_loop")
    for d in range(D):
        step(k, d, "%s_l%d" % (pre, d), True, 4, two_segments)
    k("s_add_u32 %s, %s, 1" % (s(S_TRIP), s(S_TRIP)))
    k("s_cmp_lt_u32 %s, %d" % (s(S_TRIP), ntrip))
    k("s_cbranch_scc1 %s_loop" % pre)
    for n in range(ntrip * D, nsteps):
        step(k, n % D, "%s_t%d" % (pre, n), n + D - 1 < nsteps, 4 if n + 2 < nsteps else 0, two_segments, last=(n == nsteps - 1))


DW = 8
S_WRAPW, S_NX, S_NW = 50, 51, 61


def stream2(k, pre, n, prio=None):
    k("s_mov_b32 %s, %s" % (s(S_WRAPW), s(S_WRAP)))
    k("s_mov_b32 %s, %d" % (s(S_NX), n * 1024))
    k("s_mov_b32 %s, %d" % (s(S_NW), n * 16384))

    def xg(slot):
        return [["buffer_load_dwordx4 %s, v3, %s, %s offen%s" % (v(XF + 8 * slot, 4), s(S_HD, 4), s(S_XO0), XSC[0])],
                ["s_add_u32 %s, %s, %d" % (s(S_XO1), s(S_XO0), WS_HO_ROW),
                 "buffer_load_dwordx4 %s, v3, %s, %s offen%s" % (v(XF + 8 * slot + 4, 4), s(S_HD, 4), s(S_XO1), XSC[0]),
                 "s_add_u32 %s, %s, 1024" % (s(S_XO0), s(S_XO0)),
                 "s_sub_u32 %s, %s, 1" % (s(S_WRAP), s(S_WRAP)),
                 "s_cmp_eq_u32 %s, 0" % s(S_WRAP),
                 "s_cselect_b32 %s, %s, 0" % (s(S_T), s(S_NX)),
                 "s_cselect_b32 %s, %d, %s" % (s(S_WRAP), n, s(S_WRAP)),
                 "s_sub_u32 %s, %s, %s" % (s(S_XO0), s(S_XO0), s(S_T))]]

    def wg(slot):
        return [["s_add_u32 m0, %s, %d" % (s(S_LB), slot * WSLOT),
                 "s_add_u32 %s, %s, 8192" % (s(S_T2), s(S_WO)),
                 "buffer_load_dwordx4 v4, %s, %s offen lds" % (s(S_WD, 4), s(S_WO))],
                ["s_add_u32 m0, m0, 1024",
                 "s_add_u32 %s, %s, 16384" % (s(S_WO), s(S_WO)),
                 "buffer_load_dwordx4 v4, %s, %s offen lds" % (s(S_WD, 4), s(S_T2)),
                 "s_sub_u32 %s, %s, 1" % (s(S_WRAPW), s(S_WRAPW)),
                 "s_cmp_eq_u32 %s, 0" % s(S_WRAPW),
                 "s_cselect_b32 %s, %s, 0" % (s(S_T), s(S_NW)),
                 "s_cselect_b32 %s, %d, %s" % (s(S_WRAPW), n, s(S_WRAPW)),
                 "s_sub_u32 %s, %s, %s" % (s(S_WO), s(S_WO), s(S_T))]]

    def emit(groups):
        for g in groups:
            for ins in g:
                k(ins)

    def rdw(slot, buf):
        for ft in range(2):
            for u in range(2):
                k("ds_read_b64_tr_b16 %s, %s offset:%d" % (v(WF + 8 * buf + 4 * ft + 2 * u, 2), v(VWR + ft), slot * WSLOT + u * 512))

    log = []
    for j in range(3):
        emit(wg(j)); log += [("W", j)] * 2
    for j in range(3):
        emit(xg(j)); log += [("X", j)] * 2
        emit(wg(3 + j)); log += [("W", 3 + j)] * 2

    def younger(kind, idx):
        last = max(i for i, e in enumerate(log) if e == (kind, idx))
        return len(log) - 1 - last

    if "latep" in OPT:
        k("s_setprio %d" % (prio or 0))
    k("s_waitcnt vmcnt(%d)" % younger("W", 0))
    if prio and "latep" not in OPT:
        k("s_setprio %d" % prio)
    rdw(0, 0)

    def one(sidx, static):
        xs, ws = sidx % 4, sidx % DW
        last = static and sidx == n - 1
        k("s_waitcnt vmcnt(%d)" % min(63, younger("X", sidx)))
        if not last:
            rdw((ws + 1) % DW, (sidx + 1) & 1)
            k("s_waitcnt lgkmcnt(4)")
        else:
            k("s_waitcnt lgkmcnt(0)")
        g = []
        if sidx + 3 < n:
            g += xg((sidx + 3) % 4)
            log.extend([("X", sidx + 3)] * 2)
        if sidx + 6 < n:
            g += wg((sidx + 6) % DW)
            log.extend([("W", sidx + 6)] * 2)
        g += [[]] * (4 - len(g))
        j = 0
        for tt in range(2):
            for ft in range(2):
                dd = v(ACC + 16 * (2 * tt + ft), 16)
                k("v_mfma_f32_32x32x16_bf16 %s, %s, %s, %s" % (dd, v(WF + 8 * (sidx & 1) + 4 * ft, 4), v(XF + 8 * xs + 4 * tt, 4), dd))
                for ins in g[j]:
                    k(ins)
                j += 1

    ntrip = (n - 6) // DW
    k("s_mov_b32 %s, 0" % s(S_TRIP))
    k.label(pre + "_loop")
    mark = len(k.lines)
    for d in range(DW):
        one(d, False)
    body_waits = [ln for ln in k.lines[mark:] if "vmcnt" in ln]
    assert len(set(body_waits)) == 1, body_waits
    k("s_add_u32 %s, %s, 1" % (s(S_TRIP), s(S_TRIP)))
    k("s_cmp_lt_u32 %s, %d" % (s(S_TRIP), ntrip))
    k("s_cbranch_scc1 %s_loop" % pre)
    for sidx in range(DW, ntrip * DW):
        log.extend([("X", sidx + 3)] * 2 + [("W", sidx + 6)] * 2)
    for sidx in range(ntrip * DW, n):
        one(sidx, True)


def pair_reduce(k, pre):
    k("s_nop 15")
    k("s_barrier")
    k("s_and_b32 %s, %s, 3" % (s(S_T), s(S_W)))
    k("s_lshl_b32 %s, %s, 14" % (s(S_T), s(S_T)))
    k("v_add_u32 v8, %s, v3" % s(S_T))
    k("s_cmp_ge_u32 %s, 4" % s(S_W))
    k("s_cbranch_scc0 %s_prr" % pre)
    for g in range(16):
        k("ds_write_b128 v8, %s offset:%d" % (v(ACC + 4 * g, 4), g * 1024))
    k("s_waitcnt lgkmcnt(0)")
    k("s_barrier")
    k("s_endpgm")
    k.label(pre + "_prr")
    k("s_barrier")
    for half in range(2):
        for g in range(8):
            k("ds_read_b128 %s, v8 offset:%d" % (v(XF + 4 * g, 4), (8 * half + g) * 1024))
        for g in range(8):
            k("s_waitcnt lgkmcnt(%d)" % (7 - g))
            for r in range(4):
                a_ = ACC + 32 * half + 4 * g + r
                k("v_add_f32 %s, %s, %s" % (v(a_), v(a_), v(XF + 4 * g + r)))


def reduce_and_store(k, pre):
    k("s_nop 15")
    k("s_barrier")
    for q in range(4):
        k("s_cmp_eq_u32 %s, %d" % (s(S_W), q))
        k("s_cbranch_scc1 %s_nw%d" % (pre, q))
        k("s_lshl_b32 %s, %s, 14" % (s(S_T), s(S_W)))
        k("v_add_u32 v8, %s, v3" % s(S_T))
        for g in range(4):
            k("ds_write_b128 v8, %s offset:%d" % (v(ACC + 16 * q + 4 * g, 4), q * 4096 + g * 1024))
        k.label("%s_nw%d" % (pre, q))
    for q in range(4):
        k("s_cmp_lg_u32 %s, %d" % (s(S_W), q))
        k("s_cbranch_scc1 %s_no%d" % (pre, q))
        for r in range(16):
            k("v_mov_b32 %s, %s" % (v(16 + r), v(ACC + 16 * q + r)))
        k.label("%s_no%d" % (pre, q))
    k("s_waitcnt lgkmcnt(0)")
    k("s_barrier")
    k("s_lshl_b32 %s, %s, 12" % (s(S_T2), s(S_W)))
    k("v_add_u32 v8, %s, v3" % s(S_T2))
    first = True
    for dq in range(1, 4):
        k("s_add_u32 %s, %s, %d" % (s(S_T2), s(S_W), dq))
        k("s_and_b32 %s, %s, 3" % (s(S_T2), s(S_T2)))
        k("s_lshl_b32 %s, %s, 14" % (s(S_T2), s(S_T2)))
        k("v_add_u32 v9, %s, v8" % s(S_T2))
        for g in range(4):
            k("ds_read_b128 %s, v9 offset:%d" % (v(64 + 16 * (dq - 1) + 4 * g, 4), g * 1024))
    for dq in range(1, 4):
        k("s_waitcnt lgkmcnt(%d)" % (4 * (3 - dq)))
        for r in range(16):
            k("v_add_f32 %s, %s, %s" % (v(16 + r), v(16 + r), v(64 + 16 * (dq - 1) + r)))


def resid_loads(k):
    k("s_lshr_b32 %s, %s, 1" % (s(S_T), s(S_W)))
    k("s_lshl_b32 %s, %s, 1" % (s(S_T2), s(S_RB)))
    k("s_add_u32 %s, %s, %s" % (s(S_T), s(S_T), s(S_T2)))
    k("s_lshl_b32 %s, %s, 15" % (s(S_T), s(S_T)))
    k("s_and_b32 %s, %s, 1" % (s(S_T2), s(S_W)))
    k("s_lshl_b32 %s, %s, 6" % (s(S_T2), s(S_T2)))
    k("s_lshl_b32 %s, %s, 7" % (s(S_N), s(S_CB)))
    k("s_add_u32 %s, %s, %s" % (s(S_BW), s(S_T2), s(S_N)))
    k("s_add_u32 %s, %s, %s" % (s(S_BX), s(S_T), s(S_BW)))
    k("v_lshlrev_b32 v10, 10, v1")
    k("v_lshl_add_u32 v10, v2, 4, v10")
    k("v_lshlrev_b32 v11, 4, v2")
    k("buffer_load_dwordx4 v[32:35], v10, %s, %s offen" % (s(S_XD, 4), s(S_BX)))
    k("buffer_load_dwordx4 v[36:39], v10, %s, %s offen offset:32" % (s(S_XD, 4), s(S_BX)))
    k("buffer_load_dwordx4 v[40:43], v11, %s, %s offen" % (s(S_BD, 4), s(S_BW)))
    k("buffer_load_dwordx4 v[44:47], v11, %s, %s offen offset:32" % (s(S_BD, 4), s(S_BW)))


def finish_tile(k):
    k("s_waitcnt vmcnt(0)")
    for half in range(2):
        for j in range(4):
            for src in (32, 40):
                r = src + 4 * half + j
                k("v_lshlrev_b32 v12, 16, %s" % v(r))
                k("v_and_b32 v13, 0xffff0000, %s" % v(r))
                k("v_add_f32 %s, %s, v12" % (v(16 + 8 * half + 2 * j), v(16 + 8 * half + 2 * j)))
                k("v_add_f32 %s, %s, v13" % (v(16 + 8 * half + 2 * j + 1), v(16 + 8 * half + 2 * j + 1)))
    for r in range(8):
        k("v_cvt_pk_bf16_f32 %s, %s, %s" % (v(16 + r), v(16 + 2 * r), v(17 + 2 * r)))
    k("buffer_store_dwordx4 v[16:19], v10, %s, %s offen" % (s(S_OD, 4), s(S_BX)))
    k("buffer_store_dwordx4 v[20:23], v10, %s, %s offen offset:32" % (s(S_OD, 4), s(S_BX)))


WS_BASE = 24 << 20


def ids(k, s_id):
    if "map84" in OPT:
        k("s_bfe_u32 %s, %s, 0x30003" % (s(S_RL), s_id))
        k("s_bfe_u32 %s, %s, 0x20001" % (s(S_RB), s_id))
        k("s_lshl_b32 %s, %s, 3" % (s(S_RB), s(S_RB)))
        k("s_add_u32 %s, %s, %s" % (s(S_RB), s(S_RB), s(S_RL)))
        k("s_and_b32 %s, %s, 1" % (s(S_CB), s_id))
        k("s_lshl_b32 %s, %s, 2" % (s(S_CB), s(S_CB)))
        k("s_lshr_b32 %s, %s, 6" % (s(S_T), s_id))
        k("s_and_b32 %s, %s, 3" % (s(S_T), s(S_T)))
        k("s_add_u32 %s, %s, %s" % (s(S_CB), s(S_CB), s(S_T)))
        return
    k("s_bfe_u32 %s, %s, 0x20003" % (s(S_RL), s_id))
    k("s_and_b32 %s, %s, 7" % (s(S_RB), s_id))
    k("s_lshl_b32 %s, %s, 2" % (s(S_RB), s(S_RB)))
    k("s_add_u32 %s, %s, %s" % (s(S_RB), s(S_RB), s(S_RL)))
    k("s_lshr_b32 %s, %s, 5" % (s(S_CB), s_id))


def resid_early_loads(k):
    k.srd(S_XD, S_X, 2048 * 1024)
    k.srd(S_BD, S_B2, 1024)
    k("s_lshr_b32 %s, %s, 1" % (s(S_T), s(S_W)))
    k("s_lshl_b32 %s, %s, 1" % (s(S_T2), s(S_RB)))
    k("s_add_u32 %s, %s, %s" % (s(S_T), s(S_T), s(S_T2)))
    k("s_lshl_b32 %s, %s, 15" % (s(S_T), s(S_T)))
    k("s_and_b32 %s, %s, 1" % (s(S_T2), s(S_W)))
    k("s_lshl_b32 %s, %s, 6" % (s(S_T2), s(S_T2)))
    k("s_lshl_b32 %s, %s, 7" % (s(S_BW), s(S_CB)))
    k("s_add_u32 %s, %s, %s" % (s(S_BW), s(S_BW), s(S_T2)))
    k("s_add_u32 %s, %s, %s" % (s(S_BX), s(S_T), s(S_BW)))
    k("v_lshlrev_b32 v10, 10, v1")
    k("v_lshl_add_u32 v10, v2, 4, v10")
    k("v_lshlrev_b32 v11, 4, v2")
    k("buffer_load_dwordx4 v[48:51], v10, %s, %s offen" % (s(S_XD, 4), s(S_BX)))
    k("buffer_load_dwordx4 v[52:55], v10, %s, %s offen offset:32" % (s(S_XD, 4), s(S_BX)))
    k("buffer_load_dwordx4 v[56:59], v11, %s, %s offen" % (s(S_BD, 4), s(S_BW)))
    k("buffer_load_dwordx4 v[60:63], v11, %s, %s offen offset:32" % (s(S_BD, 4), s(S_BW)))


def resid_into_acc(k, pre):
    k("s_waitcnt vmcnt(0)")
    for half in range(2):
        for j in range(4):
            rx, rb_ = 48 + 4 * half + j, 56 + 4 * half + j
            e = 16 + 8 * half + 2 * j
            k("v_lshlrev_b32 %s, 16, %s" % (v(e), v(rx)))
            k("v_and_b32 %s, 0xffff0000, %s" % (v(e + 1), v(rx)))
            k("v_lshlrev_b32 v12, 16, %s" % v(rb_))
            k("v_and_b32 v13, 0xffff0000, %s" % v(rb_))
            k("v_add_f32 %s, %s, v12" % (v(e), v(e)))
            k("v_add_f32 %s, %s, v13" % (v(e + 1), v(e + 1)))
    for q in range(4):
        k("s_cmp_lg_u32 %s, %d" % (s(S_W), q))
        k("s_cbranch_scc1 %s_ri%d" % (pre, q))
        for r in range(16):
            k("v_mov_b32 %s, %s" % (v(ACC + 16 * q + r), v(16 + r)))
        k.label("%s_ri%d" % (pre, q))


def add_resid(k):
    k("s_waitcnt vmcnt(0)")
    for half in range(2):
        for j in range(4):
            for src in (32, 40):
                r = src + 4 * half + j
                k("v_lshlrev_b32 v12, 16, %s" % v(r))
                k("v_and_b32 v13, 0xffff0000, %s" % v(r))
                k("v_add_f32 %s, %s, v12" % (v(16 + 8 * half + 2 * j), v(16 + 8 * half + 2 * j)))
                k("v_add_f32 %s, %s, v13" % (v(16 + 8 * half + 2 * j + 1), v(16 + 8 * half + 2 * j + 1)))


def gen_ffn2_role(k, pre, s_ws_size):
    k("v_lshrrev_b32 v1, 6, v0")
    k("v_and_b32 v0, 63, v0")
    k("v_readfirstlane_b32 %s, v1" % s(S_W))
    for r, off in ((S_WS, KA_WS), (S_W2, KA_W2), (S_X, KA_X), (S_B2, KA_B2)):
        k("s_load_dwordx2 %s, s[0:1], %d" % (s(r, 2), off))
    k("s_sub_u32 s3, s2, 256")
    k("s_cmp_ge_u32 %s, 4" % s(S_W))
    k("s_cbranch_scc1 %s_exit" % pre)
    ids(k, "s3")
    k("s_mul_i32 %s, %s, %d" % (s(S_LB), s(S_W), RING))
    seg_params(k, NA, 0, S_XO0, S_WO, S_WRAP)
    k("s_mov_b32 %s, %d" % (s(S_N), NA))
    setup(k)
    k("s_waitcnt lgkmcnt(0)")
    k.srd(S_HD, S_WS, s_ws_size)
    k.srd(S_WD, S_W2, 1792 * 1024)
    k.srd(S_XD, S_X, 2048 * 1024)
    k.srd(S_BD, S_B2, 1024)
    prof_mark(k, 2)
    stream(k, pre, NA, False, prio=(3 if "gp3" in OPT else (1 if "gp1" in OPT else 0)))
    prof_mark(k, 3)
    resid_loads(k)
    reduce_and_store(k, pre)
    add_resid(k)
    k("s_lshl_b32 %s, s3, 14" % s(S_T))
    k("s_lshl_b32 %s, %s, 12" % (s(S_T2), s(S_W)))
    k("s_add_u32 %s, %s, %s" % (s(S_T), s(S_T), s(S_T2)))
    k("s_add_u32 %s, %s, 0x%x" % (s(S_T), s(S_T), WS_BASE))
    for g in range(4):
        k("buffer_store_dwordx4 %s, v3, %s, %s offen offset:%d" % (v(16 + 4 * g, 4), s(S_HD, 4), s(S_T), 1024 * g))
    if "nopf" not in OPT:
        k("s_load_dwordx2 %s, s[0:1], %d" % (s(S_WOP, 2), KA_WO))
        k("s_waitcnt lgkmcnt(0)")
        k.srd(S_WD, S_WOP, 512 * 1024)
        k("s_lshl_b32 %s, %s, 17" % (s(S_T), s(S_W)))
        k("s_lshl_b32 %s, %s, 7" % (s(S_T2), s(S_CB)))
        k("s_add_u32 %s, %s, %s" % (s(S_T), s(S_T), s(S_T2)))
        for i in range(16):
            k("buffer_load_dwordx4 %s, v4, %s, %s offen" % (v(64 + 4 * i, 4), s(S_WD, 4), s(S_T)))
            k("s_add_u32 %s, %s, 8192" % (s(S_T), s(S_T)))
    k("s_waitcnt vmcnt(0)")
    prof_mark(k, 5)
    prof_rt(k, 6)
    prof_store(k, S_WS, S_W, 24)
    k.label(pre + "_exit")
    k("s_endpgm")


S_DBG = 60


def wait_flags(k, lab, s_off, n, far=True, pre_loaded=False):
    k("s_cmp_eq_u32 %s, 0" % s(S_W))
    k("s_cbranch_scc0 %s_go" % lab)
    k("v_min_u32 v8, %d, v0" % (n - 1))
    k("v_lshl_add_u32 v8, v8, 2, %s" % s(s_off))
    k("s_mov_b32 %s, 0" % s(S_TRIP))
    if pre_loaded:
        k("v_cmp_eq_u32 vcc, 0, v9")
        k("s_nop 1")
        k("s_cmp_eq_u64 vcc, 0")
        k("s_cbranch_scc1 %s_go" % lab)
    k.label(lab + "_poll")
    k("global_load_dword v9, v8, %s sc1" % s(S_WS, 2))
    k("s_add_u32 %s, %s, 1" % (s(S_TRIP), s(S_TRIP)))
    k("s_waitcnt vmcnt(0)")
    k("v_cmp_eq_u32 vcc, 0, v9")
    k("s_nop 1")
    k("s_cmp_eq_u64 vcc, 0")
    k("s_cbranch_scc1 %s_go" % lab)
    if far:
        k("s_cmp_eq_u64 vcc, exec")
        k("s_cbranch_scc0 %s_near" % lab)
        k("s_sleep %d" % (24 if "sl24" in OPT else 12))
        k.label(lab + "_near")
    k("s_sleep %d" % (8 if "sn8" in OPT else (3 if far else 1)))
    k("s_cmp_lt_u32 %s, 0x40000" % s(S_TRIP))
    k("s_cbranch_scc1 %s_poll" % lab)
    k.label(lab + "_go")
    k("s_barrier")


def wo_tail(k, pre):
    OWN, OTH, XB, WB = 16, 96, 32, 112
    VLO, VHI = 14, 6
    k("s_barrier")
    k.srd(S_WD, S_WOP, 512 * 1024)
    k("s_lshl_b32 %s, %s, 17" % (s(S_T), s(S_W)))
    k("s_lshl_b32 %s, %s, 7" % (s(S_T2), s(S_CB)))
    k("s_add_u32 %s, %s, %s" % (s(S_T), s(S_T), s(S_T2)))
    k("s_lshl_b32 m0, %s, 14" % s(S_W))
    if "fast" in OPT:
        k("s_nop 0")
        for j in range(16):
            k("buffer_load_dwordx4 v4, %s, %s offen lds" % (s(S_WD, 4), s(S_T)))
            if j < 15:
                k("s_add_u32 m0, m0, 1024")
                k("s_add_u32 %s, %s, 8192" % (s(S_T), s(S_T)))
        k("s_lshl_b32 %s, %s, 8" % (s(S_TRIP), s(S_RB)))
        k("s_add_u32 %s, %s, 0x%x" % (s(S_TRIP), s(S_TRIP), WS_FLAG + FLAG_O))
        k("v_lshl_add_u32 v8, v0, 2, %s" % s(S_TRIP))
        k("global_load_dword v9, v8, %s sc1" % s(S_WS, 2))
    else:
        k("s_mov_b32 %s, 16" % s(S_TRIP))
        k.label(pre + "_wst")
        k("buffer_load_dwordx4 v4, %s, %s offen lds" % (s(S_WD, 4), s(S_T)))
        k("s_add_u32 %s, %s, 8192" % (s(S_T), s(S_T)))
        k("s_add_u32 m0, m0, 1024")
        k("s_sub_u32 %s, %s, 1" % (s(S_TRIP), s(S_TRIP)))
        k("s_cmp_lg_u32 %s, 0" % s(S_TRIP))
        k("s_cbranch_scc1 %s_wst" % pre)
    k("s_and_b32 %s, %s, 1" % (s(S_N), s(S_W)))
    k("s_and_b32 %s, %s, 1" % (s(S_WRAP), s(S_CB)))
    k("s_lshl_b32 %s, %s, 3" % (s(S_WRAP), s(S_WRAP)))
    k("v_subrev_u32 v6, %s, v6" % s(S_LB))
    k("v_subrev_u32 v7, %s, v7" % s(S_LB))
    k("s_cmp_eq_u32 %s, 0" % s(S_N))
    k("s_cselect_b64 vcc, -1, 0")
    k("v_cndmask_b32 v12, v7, v6, vcc")
    k("v_cndmask_b32 v13, v6, v7, vcc")
    k("s_lshl_b32 %s, %s, 15" % (s(S_T), s(S_N)))
    k("s_lshl_b32 %s, %s, 11" % (s(S_T2), s(S_WRAP)))
    k("s_add_u32 %s, %s, %s" % (s(S_LEFT), s(S_T), s(S_T2)))
    k("v_add_u32 %s, %s, v12" % (v(VLO), s(S_LEFT)))
    k("v_add_u32 %s, %s, v13" % (v(VLO + 1), s(S_LEFT)))
    k("s_sub_u32 %s, %s, %s" % (s(S_LEFT), s(S_T), s(S_T2)))
    k("s_add_u32 %s, %s, %d" % (s(S_LEFT), s(S_LEFT), 8 * 2048))
    k("v_add_u32 %s, %s, v12" % (v(VHI), s(S_LEFT)))
    k("v_add_u32 %s, %s, v13" % (v(VHI + 1), s(S_LEFT)))
    for r in range(16):
        k("v_mov_b32 %s, 0" % v(OTH + r))
    k("s_lshr_b32 %s, %s, 1" % (s(S_T), s(S_W)))
    k("s_lshl_b32 %s, %s, 1" % (s(S_T2), s(S_RB)))
    k("s_add_u32 %s, %s, %s" % (s(S_T), s(S_T), s(S_T2)))
    k("s_mul_i32 %s, %s, %d" % (s(S_XO0), s(S_T), WS_HO_ROW))
    k("s_lshl_b32 %s, %s, 14" % (s(S_T), s(S_N)))
    k("s_add_u32 %s, %s, %s" % (s(S_XO0), s(S_XO0), s(S_T)))
    k("s_add_u32 %s, %s, 0x%x" % (s(S_XO0), s(S_XO0), WS_HO + 112 * 1024))
    k("s_lshl_b32 %s, %s, 10" % (s(S_T), s(S_WRAP)))
    k("s_add_u32 %s, %s, %s" % (s(S_XO1), s(S_XO0), s(S_T)))
    k("s_sub_u32 %s, %s, %s" % (s(S_XO0), s(S_XO0), s(S_T)))
    def xloads():
        k("s_mov_b32 %s, %s" % (s(S_T), s(S_XO1)))
        k("s_add_u32 %s, %s, 8192" % (s(S_T2), s(S_XO0)))
        for i in range(16):
            so = S_T if i < 8 else S_T2
            if i in (4, 12):
                k("s_add_u32 %s, %s, 4096" % (s(so), s(so)))
            k("buffer_load_dwordx4 %s, v3, %s, %s offen offset:%d sc1" % (v(XB + 4 * i, 4), s(S_HD, 4), s(so), (i % 4) * 1024))

    if not XPROF[0]:
        prof_mark(k, 2)
    if "tagged" in OPT:
        k("s_waitcnt vmcnt(0)")
        k("s_barrier")
        k("s_setprio 0")
        k("s_lshl_b32 %s, %s, 10" % (s(S_T2), s(S_WRAP)))
        k("s_sub_u32 %s, %s, %s" % (s(S_LEFT), s(S_XO1), s(S_T2)))
        k("v_and_b32 v8, 15, v0")
        k("v_lshlrev_b32 v8, 10, v8")
        k("v_add_u32 v8, 1020, v8")
        k("s_mov_b32 %s, 0" % s(S_TRIP))
        k.label(pre + "_lp")
        k("buffer_load_dword v9, v8, %s, %s offen sc1" % (s(S_HD, 4), s(S_LEFT)))
        k("s_add_u32 %s, %s, 1" % (s(S_TRIP), s(S_TRIP)))
        k("s_waitcnt vmcnt(0)")
        k("v_cmp_eq_u32 vcc, -1, v9")
        k("s_nop 1")
        k("s_cmp_eq_u64 vcc, 0")
        k("s_cbranch_scc1 %s_full" % pre)
        k("s_cmp_eq_u64 vcc, exec")
        k("s_cbranch_scc0 %s_lnear" % pre)
        k("s_sleep 24")
        k("s_branch %s_lagain" % pre)
        k.label(pre + "_lnear")
        k("s_setprio 3")
        k("s_sleep 2")
        k.label(pre + "_lagain")
        k("s_cmp_lt_u32 %s, 0x8000" % s(S_TRIP))
        k("s_cbranch_scc1 %s_lp" % pre)
        k.label(pre + "_full")
        k("s_setprio 3")
        xloads()
        k("s_add_u32 %s, %s, 1" % (s(S_TRIP), s(S_TRIP)))
        for g in range(4):
            k("s_waitcnt vmcnt(%d)" % (12 - 4 * g))
            for r in range(0, 16, 2):
                a_, b_ = XB + 16 * g + r, XB + 16 * g + r + 1
                if g == 0 and r == 0:
                    k("v_max_u32 v9, %s, %s" % (v(a_), v(b_)))
                else:
                    k("v_max3_u32 v9, v9, %s, %s" % (v(a_), v(b_)))
        k("v_cmp_eq_u32 vcc, -1, v9")
        k("s_nop 1")
        k("s_cmp_eq_u64 vcc, 0")
        k("s_cbranch_scc1 %s_got" % pre)
        k("s_cmp_lt_u32 %s, 0x8000" % s(S_TRIP))
        k("s_cbranch_scc1 %s_full" % pre)
        k.label(pre + "_got")
        prof_mark(k, 4)
    else:
        k("s_lshl_b32 %s, %s, 8" % (s(S_LEFT), s(S_RB)))
        k("s_add_u32 %s, %s, 0x%x" % (s(S_LEFT), s(S_LEFT), WS_FLAG + FLAG_O))
        k("s_waitcnt vmcnt(0)")
        k("s_setprio 3")
        wait_flags(k, pre + "_w", S_LEFT, 64, pre_loaded="fast" in OPT)
        if "fprof" not in OPT:
            prof_mark(k, 4)
        xloads()

    def rd(i):
        base = VLO if i < 8 else VHI
        for j in range(2):
            for u in range(2):
                k("ds_read_b64_tr_b16 %s, %s offset:%d" % (v(WB + 8 * (i & 1) + 4 * j + 2 * u, 2), v(base + j), (i & 7) * 2048 + u * 512))

    rd(0)
    for i in range(16):
        if i < 15:
            rd(i + 1)
        if "tagged" in OPT:
            k("s_waitcnt lgkmcnt(%d)" % (4 if i < 15 else 0))
        else:
            k("s_waitcnt vmcnt(%d) lgkmcnt(%d)" % (15 - i, 4 if i < 15 else 0))
        for j, acc in ((0, OWN), (1, OTH)):
            k("v_mfma_f32_32x32x16_bf16 %s, %s, %s, %s" % (v(acc, 16), v(WB + 8 * (i & 1) + 4 * j, 4), v(XB + 4 * i, 4), v(acc, 16)))
    k("s_barrier")
    k("s_xor_b32 %s, %s, 1" % (s(S_T), s(S_W)))
    k("s_lshl_b32 %s, %s, 12" % (s(S_T), s(S_T)))
    k("v_add_u32 v12, %s, v3" % s(S_T))
    k("s_lshl_b32 %s, %s, 12" % (s(S_T), s(S_W)))
    k("v_add_u32 v13, %s, v3" % s(S_T))
    k("s_nop 7")
    for g in range(4):
        k("ds_write_b128 v12, %s offset:%d" % (v(OTH + 4 * g, 4), g * 1024))
    k("s_waitcnt lgkmcnt(0)")
    k("s_barrier")
    for g in range(4):
        k("ds_read_b128 %s, v13 offset:%d" % (v(XB + 4 * g, 4), g * 1024))
    k("v_lshlrev_b32 v10, 10, v1")
    k("v_lshl_add_u32 v10, v2, 4, v10")
    for g in range(4):
        k("s_waitcnt lgkmcnt(%d)" % (3 - g))
        for r in range(4):
            k("v_add_f32 %s, %s, %s" % (v(OWN + 4 * g + r), v(OWN + 4 * g + r), v(XB + 4 * g + r)))
    for r in range(8):
        k("v_cvt_pk_bf16_f32 %s, %s, %s" % (v(16 + r), v(16 + 2 * r), v(17 + 2 * r)))
    k("buffer_store_dwordx4 v[16:19], v10, %s, %s offen" % (s(S_OD, 4), s(S_BX)))
    k("buffer_store_dwordx4 v[20:23], v10, %s, %s offen offset:32" % (s(S_OD, 4), s(S_BX)))


def gen_g_role(k, pre, ffn1=None):
    k("v_lshrrev_b32 v1, 6, v0")
    k("v_and_b32 v0, 63, v0")
    k("v_readfirstlane_b32 %s, v1" % s(S_W))
    for r, off in ((S_WS, KA_WS), (S_W2, KA_W2), (S_WOP, KA_WO), (S_X, KA_X), (S_B2, KA_B2), (S_OUT, KA_OUT)):
        k("s_load_dwordx2 %s, s[0:1], %d" % (s(r, 2), off))
    k("s_sub_u32 s3, s2, 256")
    if ffn1:
        k("s_load_dwordx2 s[62:63], s[0:1], %d" % KA_W1)
        k("s_load_dwordx2 s[64:65], s[0:1], %d" % KA_B1)
        ids(k, "s3")
        k("v_and_b32 v1, 31, v0")
        k("v_lshrrev_b32 v2, 5, v0")
        k("s_waitcnt lgkmcnt(0)")
        k.srd(S_HD, S_WS, (20 << 20) + (2 << 20))
        for lvl in (1, 2, 3):
            if "fp%d" % lvl in OPT:
                k("s_setprio %d" % lvl)
        ffn1(k, pre + "f")
        prof_mark(k, 2)
        if "latep" not in OPT:
            k("s_setprio 0")
        XSC[0] = " sc1"
    else:
        k("s_cmp_ge_u32 %s, 4" % s(S_W))
        k("s_cbranch_scc1 %s_exit" % pre)
    ids(k, "s3")
    if "pfo" in OPT:
        k.srd(S_WD, S_WOP, 512 * 1024)
        k("v_lshrrev_b32 v12, 3, v0")
        k("v_and_b32 v13, 7, v0")
        k("v_lshlrev_b32 v13, 4, v13")
        k("v_lshl_add_u32 v12, v12, 10, v13")
        k("s_lshl_b32 %s, %s, 17" % (s(S_T), s(S_RL)))
        k("s_lshl_b32 %s, %s, 14" % (s(S_T2), s(S_W)))
        k("s_add_u32 %s, %s, %s" % (s(S_T), s(S_T), s(S_T2)))
        k("s_lshl_b32 %s, %s, 7" % (s(S_T2), s(S_CB)))
        k("s_add_u32 %s, %s, %s" % (s(S_T), s(S_T), s(S_T2)))
        k("buffer_load_dwordx4 v[48:51], v12, %s, %s offen" % (s(S_WD, 4), s(S_T)))
        k("s_add_u32 %s, %s, 8192" % (s(S_T), s(S_T)))
        k("buffer_load_dwordx4 v[48:51], v12, %s, %s offen" % (s(S_WD, 4), s(S_T)))
        k.srd(S_XD, S_X, 2048 * 1024)
        k("s_lshl_b32 %s, %s, 16" % (s(S_T), s(S_RB)))
        k("s_lshl_b32 %s, %s, 13" % (s(S_T2), s(S_W)))
        k("s_add_u32 %s, %s, %s" % (s(S_T), s(S_T), s(S_T2)))
        k("s_lshl_b32 %s, %s, 7" % (s(S_T2), s(S_CB)))
        k("s_add_u32 %s, %s, %s" % (s(S_T), s(S_T), s(S_T2)))
        k("buffer_load_dwordx4 v[48:51], v12, %s, %s offen" % (s(S_XD, 4), s(S_T)))
    na = NA // 2 if "w8" in OPT else NA
    k("s_mul_i32 %s, %s, %d" % (s(S_LB), s(S_W), DW * WSLOT if "deep" in OPT else RING))
    seg_params(k, na, 0, S_XO0, S_WO, S_WRAP)
    k("s_mov_b32 %s, %d" % (s(S_N), na))
    setup(k)
    k("s_waitcnt lgkmcnt(0)")
    k.srd(S_HD, S_WS, WS_END)
    k.srd(S_WD, S_W2, 1792 * 1024)
    k.srd(S_XD, S_X, 2048 * 1024)
    k.srd(S_OD, S_OUT, 2048 * 1024)
    k.srd(S_BD, S_B2, 1024)
    if "fast" in OPT:
        resid_into_acc(k, pre)
    gp = 3 if "gp3" in OPT else (1 if "gp1" in OPT else (2 if "gp2" in OPT else None))
    if "deep" in OPT:
        stream2(k, pre + "a", na, gp)
    else:
        stream(k, pre + "a", na, False, prio=gp)
    XSC[0] = ""
    if "fprof" not in OPT:
        prof_mark(k, 3)
    if "w8" in OPT:
        for lvl in (1, 2, 3):
            if "rp%d" % lvl in OPT:
                k("s_setprio %d" % lvl)
        pair_reduce(k, pre)
    if "stop" in OPT:
        prof_mark(k, 4)
        prof_mark(k, 5)
        prof_rt(k, 6)
        prof_store(k, S_WS, S_W, 24)
        k("s_endpgm")
    for lvl in (1, 2, 3):
        if "rp%d" % lvl in OPT:
            k("s_setprio %d" % lvl)
    if "fast" not in OPT:
        resid_loads(k)
    reduce_and_store(k, pre)
    if "fast" not in OPT:
        add_resid(k)
    wo_tail(k, pre)
    k("s_waitcnt vmcnt(0)")
    if common.STAMP:
        k("s_cmp_eq_u32 s2, 256")
        k("s_cbranch_scc0 %s_ng" % pre)
        k("s_cmp_eq_u32 %s, 0" % s(S_W))
        k("s_cbranch_scc0 %s_ng" % pre)
        k("s_load_dwordx2 s[60:61], s[0:1], %d" % KA_DBG)
        k("s_memrealtime s[88:89]")
        k("s_waitcnt lgkmcnt(0)")
        k("v_lshrrev_b32 v8, 2, v0")
        k("v_mul_u32_u24 v8, %d, v8" % (65 * 32))
        k("v_and_b32 v9, 3, v0")
        k("v_lshl_add_u32 v8, v9, 2, v8")
        k("v_add_u32 v8, 0x%x, v8" % WS_STAMP)
        k("v_cmp_gt_u32 vcc, 15, v0")
        k("s_and_saveexec_b64 s[62:63], vcc")
        k("global_load_dword v9, v8, %s sc1" % s(S_WS, 2))
        k("s_waitcnt vmcnt(0)")
        k("s_mov_b64 exec, s[62:63]")
        k("v_mov_b32 v10, s88")
        k("v_cmp_eq_u32 vcc, 15, v0")
        k("s_nop 1")
        k("v_cndmask_b32 v9, v9, v10, vcc")
        k("v_lshlrev_b32 v8, 2, v0")
        k("v_cmp_gt_u32 vcc, 16, v0")
        k("s_and_saveexec_b64 s[62:63], vcc")
        k("global_store_dword v8, v9, s[60:61]")
        k("s_waitcnt vmcnt(0)")
        k("s_mov_b64 exec, s[62:63]")
        k.label(pre + "_ng")
    if "fprof" not in OPT:
        prof_mark(k, 5)
    prof_rt(k, 6)
    prof_store(k, S_WS, S_W, 24)
    k.label(pre + "_exit")
    k("s_endpgm")


def gen_wo(k, name, pre):
    k.kernel_begin(name)
    k("s_cmp_ge_u32 s2, 256")
    k("s_cbranch_scc1 %s_exit" % pre)
    prof_start(k)
    for r, off in ((S_WS, KA_WS), (S_WOP, KA_WO), (S_OUT, KA_OUT)):
        k("s_load_dwordx2 %s, s[0:1], %d" % (s(r, 2), off))
    ids(k, "s2")
    k("v_lshrrev_b32 v1, 6, v0")
    k("v_and_b32 v0, 63, v0")
    k("v_readfirstlane_b32 %s, v1" % s(S_W))
    k("s_nop 0")
    k("s_mul_i32 %s, %s, %d" % (s(S_LB), s(S_W), RING))
    seg_params(k, NB, 112, S_XO0, S_WO, S_WRAP)
    k("s_mov_b32 %s, %d" % (s(S_N), NB))
    setup(k)
    k("s_waitcnt lgkmcnt(0)")
    k.srd(S_HD, S_WS, WS_BASE + (4 << 20))
    k.srd(S_WD, S_WOP, 512 * 1024)
    k.srd(S_OD, S_OUT, 2048 * 1024)
    k("s_lshl_b32 %s, s2, 14" % s(S_T))
    k("s_lshl_b32 %s, %s, 12" % (s(S_T2), s(S_W)))
    k("s_add_u32 %s, %s, %s" % (s(S_T), s(S_T), s(S_T2)))
    k("s_add_u32 %s, %s, 0x%x" % (s(S_T), s(S_T), WS_BASE))
    for q in range(4):
        k("s_cmp_lg_u32 %s, %d" % (s(S_W), q))
        k("s_cbranch_scc1 %s_nb%d" % (pre, q))
        for g in range(4):
            k("buffer_load_dwordx4 %s, v3, %s, %s offen offset:%d" % (v(ACC + 16 * q + 4 * g, 4), s(S_HD, 4), s(S_T), 1024 * g))
        k.label("%s_nb%d" % (pre, q))
    prof_mark(k, 2)
    stream(k, pre, NB, False)
    prof_mark(k, 3)
    reduce_and_store(k, pre)
    k("s_lshr_b32 %s, %s, 1" % (s(S_T), s(S_W)))
    k("s_lshl_b32 %s, %s, 1" % (s(S_T2), s(S_RB)))
    k("s_add_u32 %s, %s, %s" % (s(S_T), s(S_T), s(S_T2)))
    k("s_lshl_b32 %s, %s, 15" % (s(S_T), s(S_T)))
    k("s_and_b32 %s, %s, 1" % (s(S_T2), s(S_W)))
    k("s_lshl_b32 %s, %s, 6" % (s(S_T2), s(S_T2)))
    k("s_add_u32 %s, %s, %s" % (s(S_T), s(S_T), s(S_T2)))
    k("s_lshl_b32 %s, %s, 7" % (s(S_T2), s(S_CB)))
    k("s_add_u32 %s, %s, %s" % (s(S_T), s(S_T), s(S_T2)))
    k("v_lshlrev_b32 v10, 10, v1")
    k("v_lshl_add_u32 v10, v2, 4, v10")
    for r in range(8):
        k("v_cvt_pk_bf16_f32 %s, %s, %s" % (v(16 + r), v(16 + 2 * r), v(17 + 2 * r)))
    k("buffer_store_dwordx4 v[16:19], v10, %s, %s offen" % (s(S_OD, 4), s(S_T)))
    k("buffer_store_dwordx4 v[20:23], v10, %s, %s offen offset:32" % (s(S_OD, 4), s(S_T)))
    k("s_waitcnt vmcnt(0)")
    prof_mark(k, 5)
    prof_rt(k, 6)
    prof_store(k, S_WS, S_W, 24)
    k.label(pre + "_exit")
    k.kernel_end(name, 128, 128)
    return 256, 65536


def gen_final(k, name, pre):
    k.kernel_begin(name)
    k("s_cmp_ge_u32 s2, 256")
    k("s_cbranch_scc1 %s_exit" % pre)
    prof_start(k)
    for r, off in ((S_WS, KA_WS), (S_W2, KA_W2), (S_WOP, KA_WO), (S_X, KA_X), (S_B2, KA_B2), (S_OUT, KA_OUT)):
        k("s_load_dwordx2 %s, s[0:1], %d" % (s(r, 2), off))
    k("s_bfe_u32 %s, s2, 0x20003" % s(S_RL))
    k("s_and_b32 %s, s2, 7" % s(S_RB))
    k("s_lshl_b32 %s, %s, 2" % (s(S_RB), s(S_RB)))
    k("s_add_u32 %s, %s, %s" % (s(S_RB), s(S_RB), s(S_RL)))
    k("s_lshr_b32 %s, s2, 5" % s(S_CB))
    k("v_lshrrev_b32 v1, 6, v0")
    k("v_and_b32 v0, 63, v0")
    k("v_readfirstlane_b32 %s, v1" % s(S_W))
    k("s_nop 0")
    k("s_mul_i32 %s, %s, %d" % (s(S_LB), s(S_W), RING))
    if "norot" in OPT:
        k("s_mov_b32 %s, 0" % s(S_RL))
    seg_params(k, NA, 0, S_XO0, S_WO, S_WRAP)
    seg_params(k, NB, 112, S_BX, S_BW, S_BWRAP)
    k("s_mov_b32 %s, %d" % (s(S_N), NA))
    k("s_mov_b32 %s, %d" % (s(S_LEFT), NA))
    setup(k)
    k("s_waitcnt lgkmcnt(0)")
    k.srd(S_HD, S_WS, WS_END)
    k.srd(S_WD, S_W2, 1792 * 1024)
    k.srd(S_XD, S_X, 2048 * 1024)
    k.srd(S_OD, S_OUT, 2048 * 1024)
    k.srd(S_BD, S_B2, 1024)
    prof_mark(k, 2)
    stream(k, pre, NA + NB, True)
    prof_mark(k, 3)
    resid_loads(k)
    reduce_and_store(k, pre)
    finish_tile(k)
    k("s_waitcnt vmcnt(0)")
    prof_mark(k, 5)
    prof_rt(k, 6)
    prof_store(k, S_WS, S_W, 24)
    k.label(pre + "_exit")
    k.kernel_end(name, 128, 128)
    return 256, 65536
```

```python
import common
from common import *

OPT = set()
S_X, S_W2, S_WOP, S_B2, S_OUT, S_WS = 4, 6, 8, 10, 12, 14
S_HD, S_WD, S_XD, S_OD, S_BD = 16, 20, 28, 32, 52
S_W, S_RB, S_CB, S_T, S_T2, S_LB = 36, 37, 38, 39, 40, 41
S_XO0, S_XO1, S_WO, S_WRAP, S_LEFT, S_N, S_TRIP, S_RL = 42, 43, 44, 45, 46, 47, 48, 49
S_BX, S_BW, S_BWRAP = 56, 57, 58
D = 4
WSLOT = 2048
RING = D * WSLOT
VWS, VWR, VL16 = 4, 6, 3
XF, WF, ACC = 16, 48, 64
NA, NB = 28, 8


def setup(k):
    k("v_and_b32 v1, 31, v0")
    k("v_lshrrev_b32 v2, 5, v0")
    k("v_lshlrev_b32 v3, 4, v0")
    k("v_lshrrev_b32 v4, 3, v0")
    k("v_bfe_u32 v5, v0, 2, 1")
    k("v_bfe_u32 v6, v0, 4, 1")
    k("v_xor_b32 v5, v5, v6")
    k("v_and_b32 v6, 3, v0")
    k("v_lshlrev_b32 v6, 4, v6")
    k("v_lshl_add_u32 v5, v5, 6, v6")
    k("v_lshl_add_u32 v4, v4, 10, v5")
    k("v_bfe_u32 v12, v0, 2, 2")
    k("v_and_b32 v13, 3, v0")
    k("v_bfe_u32 v14, v0, 4, 1")
    k("v_lshl_add_u32 v13, v14, 2, v13")
    k("v_and_b32 v14, 1, v13")
    k("v_lshrrev_b32 v15, 1, v13")
    k("v_lshrrev_b32 v8, 1, v15")
    k("v_and_b32 v15, 1, v15")
    k("v_lshl_add_u32 v15, v14, 1, v15")
    k("v_lshl_add_u32 v13, v8, 2, v15")
    k("v_lshl_add_u32 v14, v2, 3, v12")
    k("v_lshlrev_b32 v14, 7, v14")
    k("v_lshl_add_u32 v14, v13, 3, v14")
    k("v_lshrrev_b32 v12, 1, v12")
    k("v_add_u32 v14, %s, v14" % s(S_LB))
    for ft in range(2):
        k("v_xor_b32 v15, %d, v12" % ft)
        k("v_lshl_add_u32 %s, v15, 6, v14" % v(VWR + ft))
    for j in range(64):
        k("v_mov_b32 %s, 0" % v(ACC + j))


def seg_params(k, n, kbase, dx, dw, dwrap):
    if "map84" in OPT:
        k("s_mul_i32 %s, %s, %d" % (s(S_T), s(S_RL), n))
        k("s_lshr_b32 %s, %s, 3" % (s(S_T), s(S_T)))
        k("s_and_b32 %s, %s, 3" % (s(S_T2), s(S_CB)))
        k("s_mul_i32 %s, %s, %d" % (s(S_T2), s(S_T2), n // 4))
    else:
        k("s_mul_i32 %s, %s, %d" % (s(S_T), s(S_RL), n // 4))
        k("s_mul_i32 %s, %s, %d" % (s(S_T2), s(S_CB), n))
        k("s_lshr_b32 %s, %s, 3" % (s(S_T2), s(S_T2)))
    k("s_add_u32 %s, %s, %s" % (s(S_T), s(S_T), s(S_T2)))
    k("s_cmp_ge_u32 %s, %d" % (s(S_T), n))
    k("s_cselect_b32 %s, %d, 0" % (s(S_T2), n))
    k("s_sub_u32 %s, %s, %s" % (s(S_T), s(S_T), s(S_T2)))
    k("s_sub_u32 %s, %d, %s" % (s(dwrap), n, s(S_T)))
    k("s_mul_i32 %s, %s, %d" % (s(S_T2), s(S_W), n))
    k("s_add_u32 %s, %s, %s" % (s(S_T), s(S_T), s(S_T2)))
    k("s_lshl_b32 %s, %s, 14" % (s(dw), s(S_T)))
    k("s_lshl_b32 %s, %s, 7" % (s(S_T2), s(S_CB)))
    k("s_add_u32 %s, %s, %s" % (s(dw), s(dw), s(S_T2)))
    k("s_add_u32 %s, %s, %d" % (s(S_T), s(S_T), kbase))
    k("s_lshl_b32 %s, %s, 10" % (s(S_T), s(S_T)))
    k("s_lshl_b32 %s, %s, 1" % (s(S_T2), s(S_RB)))
    k("s_mul_i32 %s, %s, %d" % (s(dx), s(S_T2), WS_HO_ROW))
    k("s_add_u32 %s, %s, %s" % (s(dx), s(dx), s(S_T)))
    k("s_add_u32 %s, %s, 0x%x" % (s(dx), s(dx), WS_HO))


XPROF = [False]
XSC = [""]


def issue_groups(slot):
    g = []
    g.append(["buffer_load_dwordx4 %s, v3, %s, %s offen%s" % (v(XF + 8 * slot, 4), s(S_HD, 4), s(S_XO0), XSC[0])])
    g.append(["s_add_u32 %s, %s, %d" % (s(S_XO1), s(S_XO0), WS_HO_ROW),
              "buffer_load_dwordx4 %s, v3, %s, %s offen%s" % (v(XF + 8 * slot + 4, 4), s(S_HD, 4), s(S_XO1), XSC[0])])
    g.append(["s_add_u32 m0, %s, %d" % (s(S_LB), slot * WSLOT),
              "s_add_u32 %s, %s, 8192" % (s(S_T), s(S_WO)),
              "buffer_load_dwordx4 v4, %s, %s offen lds" % (s(S_WD, 4), s(S_WO))])
    g.append(["s_add_u32 m0, m0, 1024", "s_nop 0",
              "buffer_load_dwordx4 v4, %s, %s offen lds" % (s(S_WD, 4), s(S_T))])
    if "nox" in OPT:
        g[0] = ["buffer_load_dwordx4 v4, %s, %s offen lds" % (s(S_WD, 4), s(S_WO))]
        g[1] = ["buffer_load_dwordx4 v4, %s, %s offen lds" % (s(S_WD, 4), s(S_WO))]
    if "now" in OPT:
        g[2] = ["buffer_load_dwordx4 %s, v3, %s, %s offen" % (v(XF + 8 * slot, 4), s(S_HD, 4), s(S_XO0))]
        g[3] = ["buffer_load_dwordx4 %s, v3, %s, %s offen" % (v(XF + 8 * slot + 4, 4), s(S_HD, 4), s(S_XO1))]
    return g


def advance(k, lab, two_segments):
    k("s_add_u32 %s, %s, 1024" % (s(S_XO0), s(S_XO0)))
    k("s_add_u32 %s, %s, 16384" % (s(S_WO), s(S_WO)))
    k("s_sub_u32 %s, %s, 1" % (s(S_WRAP), s(S_WRAP)))
    k("s_cmp_lg_u32 %s, 0" % s(S_WRAP))
    k("s_cbranch_scc1 %s_nw" % lab)
    k("s_lshl_b32 %s, %s, 10" % (s(S_T), s(S_N)))
    k("s_sub_u32 %s, %s, %s" % (s(S_XO0), s(S_XO0), s(S_T)))
    k("s_lshl_b32 %s, %s, 14" % (s(S_T), s(S_N)))
    k("s_sub_u32 %s, %s, %s" % (s(S_WO), s(S_WO), s(S_T)))
    k("s_mov_b32 %s, %s" % (s(S_WRAP), s(S_N)))
    k.label(lab + "_nw")
    if two_segments:
        k("s_sub_u32 %s, %s, 1" % (s(S_LEFT), s(S_LEFT)))
        k("s_cmp_lg_u32 %s, 0" % s(S_LEFT))
        k("s_cbranch_scc1 %s_ns" % lab)
        k("s_mov_b32 %s, %s" % (s(S_XO0), s(S_BX)))
        k("s_mov_b32 %s, %s" % (s(S_WO), s(S_BW)))
        k("s_mov_b32 %s, %s" % (s(S_WRAP), s(S_BWRAP)))
        k("s_mov_b32 %s, %d" % (s(S_N), NB))
        k("s_mov_b32 %s, %s" % (s(S_WD), s(S_WOP)))
        k("s_and_b32 %s, %s, 0xffff" % (s(S_WD + 1), s(S_WOP + 1)))
        k("s_mov_b32 %s, 0x%x" % (s(S_WD + 2), 512 * 1024))
        k.label(lab + "_ns")


def rd_w(k, slot, buf):
    for ft in range(2):
        for u in range(2):
            k("ds_read_b64_tr_b16 %s, %s offset:%d" % (v(WF + 8 * buf + 4 * ft + 2 * u, 2), v(VWR + ft), slot * WSLOT + u * 512))


def step(k, d, lab, issue, vm, two_segments, last=False):
    if not last:
        k("s_waitcnt vmcnt(%d)" % vm)
        rd_w(k, (d + 1) % D, (d + 1) & 1)
        k("s_waitcnt lgkmcnt(4)")
    else:
        k("s_waitcnt lgkmcnt(0)")
    g = issue_groups((d + D - 1) % D) if issue else [[], [], [], []]
    j = 0
    for tt in range(2):
        for ft in range(2):
            dd = v(ACC + 16 * (2 * tt + ft), 16)
            if "nomfma" not in OPT:
                k("v_mfma_f32_32x32x16_bf16 %s, %s, %s, %s" % (dd, v(WF + 8 * (d & 1) + 4 * ft, 4), v(XF + 8 * d + 4 * tt, 4), dd))
            for ins in g[j]:
                k(ins)
            j += 1
    if issue:
        advance(k, lab, two_segments)


def stream(k, pre, nsteps, two_segments, prio=None):
    for d in range(D - 1):
        for grp in issue_groups(d):
            for ins in grp:
                k(ins)
        advance(k, "%s_p%d" % (pre, d), two_segments)
    if "latep" in OPT:
        k("s_setprio %d" % (prio or 0))
    k("s_waitcnt vmcnt(8)")
    if prio and "latep" not in OPT:
        k("s_setprio %d" % prio)
    rd_w(k, 0, 0)
    ntrip = (nsteps - (D - 1)) // D
    k("s_mov_b32 %s, 0" % s(S_TRIP))
    k.label(pre + "_loop")
    for d in range(D):
        step(k, d, "%s_l%d" % (pre, d), True, 4, two_segments)
    k("s_add_u32 %s, %s, 1" % (s(S_TRIP), s(S_TRIP)))
    k("s_cmp_lt_u32 %s, %d" % (s(S_TRIP), ntrip))
    k("s_cbranch_scc1 %s_loop" % pre)
    for n in range(ntrip * D, nsteps):
        step(k, n % D, "%s_t%d" % (pre, n), n + D - 1 < nsteps, 4 if n + 2 < nsteps else 0, two_segments, last=(n == nsteps - 1))


DW = 8
S_WRAPW, S_NX, S_NW = 50, 51, 61


def stream2(k, pre, n, prio=None):
    k("s_mov_b32 %s, %s" % (s(S_WRAPW), s(S_WRAP)))
    k("s_mov_b32 %s, %d" % (s(S_NX), n * 1024))
    k("s_mov_b32 %s, %d" % (s(S_NW), n * 16384))

    def xg(slot):
        return [["buffer_load_dwordx4 %s, v3, %s, %s offen%s" % (v(XF + 8 * slot, 4), s(S_HD, 4), s(S_XO0), XSC[0])],
                ["s_add_u32 %s, %s, %d" % (s(S_XO1), s(S_XO0), WS_HO_ROW),
                 "buffer_load_dwordx4 %s, v3, %s, %s offen%s" % (v(XF + 8 * slot + 4, 4), s(S_HD, 4), s(S_XO1), XSC[0]),
                 "s_add_u32 %s, %s, 1024" % (s(S_XO0), s(S_XO0)),
                 "s_sub_u32 %s, %s, 1" % (s(S_WRAP), s(S_WRAP)),
                 "s_cmp_eq_u32 %s, 0" % s(S_WRAP),
                 "s_cselect_b32 %s, %s, 0" % (s(S_T), s(S_NX)),
                 "s_cselect_b32 %s, %d, %s" % (s(S_WRAP), n, s(S_WRAP)),
                 "s_sub_u32 %s, %s, %s" % (s(S_XO0), s(S_XO0), s(S_T))]]

    def wg(slot):
        return [["s_add_u32 m0, %s, %d" % (s(S_LB), slot * WSLOT),
                 "s_add_u32 %s, %s, 8192" % (s(S_T2), s(S_WO)),
                 "buffer_load_dwordx4 v4, %s, %s offen lds" % (s(S_WD, 4), s(S_WO))],
                ["s_add_u32 m0, m0, 1024",
                 "s_add_u32 %s, %s, 16384" % (s(S_WO), s(S_WO)),
                 "buffer_load_dwordx4 v4, %s, %s offen lds" % (s(S_WD, 4), s(S_T2)),
                 "s_sub_u32 %s, %s, 1" % (s(S_WRAPW), s(S_WRAPW)),
                 "s_cmp_eq_u32 %s, 0" % s(S_WRAPW),
                 "s_cselect_b32 %s, %s, 0" % (s(S_T), s(S_NW)),
                 "s_cselect_b32 %s, %d, %s" % (s(S_WRAPW), n, s(S_WRAPW)),
                 "s_sub_u32 %s, %s, %s" % (s(S_WO), s(S_WO), s(S_T))]]

    def emit(groups):
        for g in groups:
            for ins in g:
                k(ins)

    def rdw(slot, buf):
        for ft in range(2):
            for u in range(2):
                k("ds_read_b64_tr_b16 %s, %s offset:%d" % (v(WF + 8 * buf + 4 * ft + 2 * u, 2), v(VWR + ft), slot * WSLOT + u * 512))

    log = []
    for j in range(3):
        emit(wg(j)); log += [("W", j)] * 2
    for j in range(3):
        emit(xg(j)); log += [("X", j)] * 2
        emit(wg(3 + j)); log += [("W", 3 + j)] * 2

    def younger(kind, idx):
        last = max(i for i, e in enumerate(log) if e == (kind, idx))
        return len(log) - 1 - last

    if "latep" in OPT:
        k("s_setprio %d" % (prio or 0))
    k("s_waitcnt vmcnt(%d)" % younger("W", 0))
    if prio and "latep" not in OPT:
        k("s_setprio %d" % prio)
    rdw(0, 0)

    def one(sidx, static):
        xs, ws = sidx % 4, sidx % DW
        last = static and sidx == n - 1
        k("s_waitcnt vmcnt(%d)" % min(63, younger("X", sidx)))
        if not last:
            rdw((ws + 1) % DW, (sidx + 1) & 1)
            k("s_waitcnt lgkmcnt(4)")
        else:
            k("s_waitcnt lgkmcnt(0)")
        g = []
        if sidx + 3 < n:
            g += xg((sidx + 3) % 4)
            log.extend([("X", sidx + 3)] * 2)
        if sidx + 6 < n:
            g += wg((sidx + 6) % DW)
            log.extend([("W", sidx + 6)] * 2)
        g += [[]] * (4 - len(g))
        j = 0
        for tt in range(2):
            for ft in range(2):
                dd = v(ACC + 16 * (2 * tt + ft), 16)
                k("v_mfma_f32_32x32x16_bf16 %s, %s, %s, %s" % (dd, v(WF + 8 * (sidx & 1) + 4 * ft, 4), v(XF + 8 * xs + 4 * tt, 4), dd))
                for ins in g[j]:
                    k(ins)
                j += 1

    ntrip = (n - 6) // DW
    k("s_mov_b32 %s, 0" % s(S_TRIP))
    k.label(pre + "_loop")
    mark = len(k.lines)
    for d in range(DW):
        one(d, False)
    body_waits = [ln for ln in k.lines[mark:] if "vmcnt" in ln]
    assert len(set(body_waits)) == 1, body_waits
    k("s_add_u32 %s, %s, 1" % (s(S_TRIP), s(S_TRIP)))
    k("s_cmp_lt_u32 %s, %d" % (s(S_TRIP), ntrip))
    k("s_cbranch_scc1 %s_loop" % pre)
    for sidx in range(DW, ntrip * DW):
        log.extend([("X", sidx + 3)] * 2 + [("W", sidx + 6)] * 2)
    for sidx in range(ntrip * DW, n):
        one(sidx, True)


def pair_reduce(k, pre):
    k("s_nop 15")
    k("s_barrier")
    k("s_and_b32 %s, %s, 3" % (s(S_T), s(S_W)))
    k("s_lshl_b32 %s, %s, 14" % (s(S_T), s(S_T)))
    k("v_add_u32 v8, %s, v3" % s(S_T))
    k("s_cmp_ge_u32 %s, 4" % s(S_W))
    k("s_cbranch_scc0 %s_prr" % pre)
    for g in range(16):
        k("ds_write_b128 v8, %s offset:%d" % (v(ACC + 4 * g, 4), g * 1024))
    k("s_waitcnt lgkmcnt(0)")
    k("s_barrier")
    k("s_endpgm")
    k.label(pre + "_prr")
    k("s_barrier")
    for half in range(2):
        for g in range(8):
            k("ds_read_b128 %s, v8 offset:%d" % (v(XF + 4 * g, 4), (8 * half + g) * 1024))
        for g in range(8):
            k("s_waitcnt lgkmcnt(%d)" % (7 - g))
            for r in range(4):
                a_ = ACC + 32 * half + 4 * g + r
                k("v_add_f32 %s, %s, %s" % (v(a_), v(a_), v(XF + 4 * g + r)))


def reduce_and_store(k, pre):
    k("s_nop 15")
    k("s_barrier")
    for q in range(4):
        k("s_cmp_eq_u32 %s, %d" % (s(S_W), q))
        k("s_cbranch_scc1 %s_nw%d" % (pre, q))
        k("s_lshl_b32 %s, %s, 14" % (s(S_T), s(S_W)))
        k("v_add_u32 v8, %s, v3" % s(S_T))
        for g in range(4):
            k("ds_write_b128 v8, %s offset:%d" % (v(ACC + 16 * q + 4 * g, 4), q * 4096 + g * 1024))
        k.label("%s_nw%d" % (pre, q))
    for q in range(4):
        k("s_cmp_lg_u32 %s, %d" % (s(S_W), q))
        k("s_cbranch_scc1 %s_no%d" % (pre, q))
        for r in range(16):
            k("v_mov_b32 %s, %s" % (v(16 + r), v(ACC + 16 * q + r)))
        k.label("%s_no%d" % (pre, q))
    k("s_waitcnt lgkmcnt(0)")
    k("s_barrier")
    k("s_lshl_b32 %s, %s, 12" % (s(S_T2), s(S_W)))
    k("v_add_u32 v8, %s, v3" % s(S_T2))
    first = True
    for dq in range(1, 4):
        k("s_add_u32 %s, %s, %d" % (s(S_T2), s(S_W), dq))
        k("s_and_b32 %s, %s, 3" % (s(S_T2), s(S_T2)))
        k("s_lshl_b32 %s, %s, 14" % (s(S_T2), s(S_T2)))
        k("v_add_u32 v9, %s, v8" % s(S_T2))
        for g in range(4):
            k("ds_read_b128 %s, v9 offset:%d" % (v(64 + 16 * (dq - 1) + 4 * g, 4), g * 1024))
    for dq in range(1, 4):
        k("s_waitcnt lgkmcnt(%d)" % (4 * (3 - dq)))
        for r in range(16):
            k("v_add_f32 %s, %s, %s" % (v(16 + r), v(16 + r), v(64 + 16 * (dq - 1) + r)))


def resid_loads(k):
    k("s_lshr_b32 %s, %s, 1" % (s(S_T), s(S_W)))
    k("s_lshl_b32 %s, %s, 1" % (s(S_T2), s(S_RB)))
    k("s_add_u32 %s, %s, %s" % (s(S_T), s(S_T), s(S_T2)))
    k("s_lshl_b32 %s, %s, 15" % (s(S_T), s(S_T)))
    k("s_and_b32 %s, %s, 1" % (s(S_T2), s(S_W)))
    k("s_lshl_b32 %s, %s, 6" % (s(S_T2), s(S_T2)))
    k("s_lshl_b32 %s, %s, 7" % (s(S_N), s(S_CB)))
    k("s_add_u32 %s, %s, %s" % (s(S_BW), s(S_T2), s(S_N)))
    k("s_add_u32 %s, %s, %s" % (s(S_BX), s(S_T), s(S_BW)))
    k("v_lshlrev_b32 v10, 10, v1")
    k("v_lshl_add_u32 v10, v2, 4, v10")
    k("v_lshlrev_b32 v11, 4, v2")
    k("buffer_load_dwordx4 v[32:35], v10, %s, %s offen" % (s(S_XD, 4), s(S_BX)))
    k("buffer_load_dwordx4 v[36:39], v10, %s, %s offen offset:32" % (s(S_XD, 4), s(S_BX)))
    k("buffer_load_dwordx4 v[40:43], v11, %s, %s offen" % (s(S_BD, 4), s(S_BW)))
    k("buffer_load_dwordx4 v[44:47], v11, %s, %s offen offset:32" % (s(S_BD, 4), s(S_BW)))


def finish_tile(k):
    k("s_waitcnt vmcnt(0)")
    for half in range(2):
        for j in range(4):
            for src in (32, 40):
                r = src + 4 * half + j
                k("v_lshlrev_b32 v12, 16, %s" % v(r))
                k("v_and_b32 v13, 0xffff0000, %s" % v(r))
                k("v_add_f32 %s, %s, v12" % (v(16 + 8 * half + 2 * j), v(16 + 8 * half + 2 * j)))
                k("v_add_f32 %s, %s, v13" % (v(16 + 8 * half + 2 * j + 1), v(16 + 8 * half + 2 * j + 1)))
    for r in range(8):
        k("v_cvt_pk_bf16_f32 %s, %s, %s" % (v(16 + r), v(16 + 2 * r), v(17 + 2 * r)))
    k("buffer_store_dwordx4 v[16:19], v10, %s, %s offen" % (s(S_OD, 4), s(S_BX)))
    k("buffer_store_dwordx4 v[20:23], v10, %s, %s offen offset:32" % (s(S_OD, 4), s(S_BX)))


WS_BASE = 24 << 20


def ids(k, s_id):
    if "map84" in OPT:
        k("s_bfe_u32 %s, %s, 0x30003" % (s(S_RL), s_id))
        k("s_bfe_u32 %s, %s, 0x20001" % (s(S_RB), s_id))
        k("s_lshl_b32 %s, %s, 3" % (s(S_RB), s(S_RB)))
        k("s_add_u32 %s, %s, %s" % (s(S_RB), s(S_RB), s(S_RL)))
        k("s_and_b32 %s, %s, 1" % (s(S_CB), s_id))
        k("s_lshl_b32 %s, %s, 2" % (s(S_CB), s(S_CB)))
        k("s_lshr_b32 %s, %s, 6" % (s(S_T), s_id))
        k("s_and_b32 %s, %s, 3" % (s(S_T), s(S_T)))
        k("s_add_u32 %s, %s, %s" % (s(S_CB), s(S_CB), s(S_T)))
        return
    k("s_bfe_u32 %s, %s, 0x20003" % (s(S_RL), s_id))
    k("s_and_b32 %s, %s, 7" % (s(S_RB), s_id))
    k("s_lshl_b32 %s, %s, 2" % (s(S_RB), s(S_RB)))
    k("s_add_u32 %s, %s, %s" % (s(S_RB), s(S_RB), s(S_RL)))
    k("s_lshr_b32 %s, %s, 5" % (s(S_CB), s_id))


def resid_early_loads(k):
    k.srd(S_XD, S_X, 2048 * 1024)
    k.srd(S_BD, S_B2, 1024)
    k("s_lshr_b32 %s, %s, 1" % (s(S_T), s(S_W)))
    k("s_lshl_b32 %s, %s, 1" % (s(S_T2), s(S_RB)))
    k("s_add_u32 %s, %s, %s" % (s(S_T), s(S_T), s(S_T2)))
    k("s_lshl_b32 %s, %s, 15" % (s(S_T), s(S_T)))
    k("s_and_b32 %s, %s, 1" % (s(S_T2), s(S_W)))
    k("s_lshl_b32 %s, %s, 6" % (s(S_T2), s(S_T2)))
    k("s_lshl_b32 %s, %s, 7" % (s(S_BW), s(S_CB)))
    k("s_add_u32 %s, %s, %s" % (s(S_BW), s(S_BW), s(S_T2)))
    k("s_add_u32 %s, %s, %s" % (s(S_BX), s(S_T), s(S_BW)))
    k("v_lshlrev_b32 v10, 10, v1")
    k("v_lshl_add_u32 v10, v2, 4, v10")
    k("v_lshlrev_b32 v11, 4, v2")
    k("buffer_load_dwordx4 v[48:51], v10, %s, %s offen" % (s(S_XD, 4), s(S_BX)))
    k("buffer_load_dwordx4 v[52:55], v10, %s, %s offen offset:32" % (s(S_XD, 4), s(S_BX)))
    k("buffer_load_dwordx4 v[56:59], v11, %s, %s offen" % (s(S_BD, 4), s(S_BW)))
    k("buffer_load_dwordx4 v[60:63], v11, %s, %s offen offset:32" % (s(S_BD, 4), s(S_BW)))


def resid_into_acc(k, pre):
    k("s_waitcnt vmcnt(0)")
    for half in range(2):
        for j in range(4):
            rx, rb_ = 48 + 4 * half + j, 56 + 4 * half + j
            e = 16 + 8 * half + 2 * j
            k("v_lshlrev_b32 %s, 16, %s" % (v(e), v(rx)))
            k("v_and_b32 %s, 0xffff0000, %s" % (v(e + 1), v(rx)))
            k("v_lshlrev_b32 v12, 16, %s" % v(rb_))
            k("v_and_b32 v13, 0xffff0000, %s" % v(rb_))
            k("v_add_f32 %s, %s, v12" % (v(e), v(e)))
            k("v_add_f32 %s, %s, v13" % (v(e + 1), v(e + 1)))
    for q in range(4):
        k("s_cmp_lg_u32 %s, %d" % (s(S_W), q))
        k("s_cbranch_scc1 %s_ri%d" % (pre, q))
        for r in range(16):
            k("v_mov_b32 %s, %s" % (v(ACC + 16 * q + r), v(16 + r)))
        k.label("%s_ri%d" % (pre, q))


def add_resid(k):
    k("s_waitcnt vmcnt(0)")
    for half in range(2):
        for j in range(4):
            for src in (32, 40):
                r = src + 4 * half + j
                k("v_lshlrev_b32 v12, 16, %s" % v(r))
                k("v_and_b32 v13, 0xffff0000, %s" % v(r))
                k("v_add_f32 %s, %s, v12" % (v(16 + 8 * half + 2 * j), v(16 + 8 * half + 2 * j)))
                k("v_add_f32 %s, %s, v13" % (v(16 + 8 * half + 2 * j + 1), v(16 + 8 * half + 2 * j + 1)))


def gen_ffn2_role(k, pre, s_ws_size):
    k("v_lshrrev_b32 v1, 6, v0")
    k("v_and_b32 v0, 63, v0")
    k("v_readfirstlane_b32 %s, v1" % s(S_W))
    for r, off in ((S_WS, KA_WS), (S_W2, KA_W2), (S_X, KA_X), (S_B2, KA_B2)):
        k("s_load_dwordx2 %s, s[0:1], %d" % (s(r, 2), off))
    k("s_sub_u32 s3, s2, 256")
    k("s_cmp_ge_u32 %s, 4" % s(S_W))
    k("s_cbranch_scc1 %s_exit" % pre)
    ids(k, "s3")
    k("s_mul_i32 %s, %s, %d" % (s(S_LB), s(S_W), RING))
    seg_params(k, NA, 0, S_XO0, S_WO, S_WRAP)
    k("s_mov_b32 %s, %d" % (s(S_N), NA))
    setup(k)
    k("s_waitcnt lgkmcnt(0)")
    k.srd(S_HD, S_WS, s_ws_size)
    k.srd(S_WD, S_W2, 1792 * 1024)
    k.srd(S_XD, S_X, 2048 * 1024)
    k.srd(S_BD, S_B2, 1024)
    prof_mark(k, 2)
    stream(k, pre, NA, False, prio=(3 if "gp3" in OPT else (1 if "gp1" in OPT else 0)))
    prof_mark(k, 3)
    resid_loads(k)
    reduce_and_store(k, pre)
    add_resid(k)
    k("s_lshl_b32 %s, s3, 14" % s(S_T))
    k("s_lshl_b32 %s, %s, 12" % (s(S_T2), s(S_W)))
    k("s_add_u32 %s, %s, %s" % (s(S_T), s(S_T), s(S_T2)))
    k("s_add_u32 %s, %s, 0x%x" % (s(S_T), s(S_T), WS_BASE))
    for g in range(4):
        k("buffer_store_dwordx4 %s, v3, %s, %s offen offset:%d" % (v(16 + 4 * g, 4), s(S_HD, 4), s(S_T), 1024 * g))
    if "nopf" not in OPT:
        k("s_load_dwordx2 %s, s[0:1], %d" % (s(S_WOP, 2), KA_WO))
        k("s_waitcnt lgkmcnt(0)")
        k.srd(S_WD, S_WOP, 512 * 1024)
        k("s_lshl_b32 %s, %s, 17" % (s(S_T), s(S_W)))
        k("s_lshl_b32 %s, %s, 7" % (s(S_T2), s(S_CB)))
        k("s_add_u32 %s, %s, %s" % (s(S_T), s(S_T), s(S_T2)))
        for i in range(16):
            k("buffer_load_dwordx4 %s, v4, %s, %s offen" % (v(64 + 4 * i, 4), s(S_WD, 4), s(S_T)))
            k("s_add_u32 %s, %s, 8192" % (s(S_T), s(S_T)))
    k("s_waitcnt vmcnt(0)")
    prof_mark(k, 5)
    prof_rt(k, 6)
    prof_store(k, S_WS, S_W, 24)
    k.label(pre + "_exit")
    k("s_endpgm")


S_DBG = 60


def wait_flags(k, lab, s_off, n, far=True, pre_loaded=False):
    k("s_cmp_eq_u32 %s, 0" % s(S_W))
    k("s_cbranch_scc0 %s_go" % lab)
    k("v_min_u32 v8, %d, v0" % (n - 1))
    k("v_lshl_add_u32 v8, v8, 2, %s" % s(s_off))
    k("s_mov_b32 %s, 0" % s(S_TRIP))
    if pre_loaded:
        k("v_cmp_eq_u32 vcc, 0, v9")
        k("s_nop 1")
        k("s_cmp_eq_u64 vcc, 0")
        k("s_cbranch_scc1 %s_go" % lab)
    k.label(lab + "_poll")
    k("global_load_dword v9, v8, %s sc1" % s(S_WS, 2))
    k("s_add_u32 %s, %s, 1" % (s(S_TRIP), s(S_TRIP)))
    k("s_waitcnt vmcnt(0)")
    k("v_cmp_eq_u32 vcc, 0, v9")
    k("s_nop 1")
    k("s_cmp_eq_u64 vcc, 0")
    k("s_cbranch_scc1 %s_go" % lab)
    if far:
        k("s_cmp_eq_u64 vcc, exec")
        k("s_cbranch_scc0 %s_near" % lab)
        k("s_sleep %d" % (24 if "sl24" in OPT else 12))
        k.label(lab + "_near")
    k("s_sleep %d" % (8 if "sn8" in OPT else (3 if far else 1)))
    k("s_cmp_lt_u32 %s, 0x40000" % s(S_TRIP))
    k("s_cbranch_scc1 %s_poll" % lab)
    k.label(lab + "_go")
    k("s_barrier")


def wo_tail(k, pre):
    OWN, OTH, XB, WB = 16, 96, 32, 112
    VLO, VHI = 14, 6
    k("s_barrier")
    k.srd(S_WD, S_WOP, 512 * 1024)
    k("s_lshl_b32 %s, %s, 17" % (s(S_T), s(S_W)))
    k("s_lshl_b32 %s, %s, 7" % (s(S_T2), s(S_CB)))
    k("s_add_u32 %s, %s, %s" % (s(S_T), s(S_T), s(S_T2)))
    k("s_lshl_b32 m0, %s, 14" % s(S_W))
    if "fast" in OPT:
        k("s_nop 0")
        for j in range(16):
            k("buffer_load_dwordx4 v4, %s, %s offen lds" % (s(S_WD, 4), s(S_T)))
            if j < 15:
                k("s_add_u32 m0, m0, 1024")
                k("s_add_u32 %s, %s, 8192" % (s(S_T), s(S_T)))
        k("s_lshl_b32 %s, %s, 8" % (s(S_TRIP), s(S_RB)))
        k("s_add_u32 %s, %s, 0x%x" % (s(S_TRIP), s(S_TRIP), WS_FLAG + FLAG_O))
        k("v_lshl_add_u32 v8, v0, 2, %s" % s(S_TRIP))
        k("global_load_dword v9, v8, %s sc1" % s(S_WS, 2))
    else:
        k("s_mov_b32 %s, 16" % s(S_TRIP))
        k.label(pre + "_wst")
        k("buffer_load_dwordx4 v4, %s, %s offen lds" % (s(S_WD, 4), s(S_T)))
        k("s_add_u32 %s, %s, 8192" % (s(S_T), s(S_T)))
        k("s_add_u32 m0, m0, 1024")
        k("s_sub_u32 %s, %s, 1" % (s(S_TRIP), s(S_TRIP)))
        k("s_cmp_lg_u32 %s, 0" % s(S_TRIP))
        k("s_cbranch_scc1 %s_wst" % pre)
    k("s_and_b32 %s, %s, 1" % (s(S_N), s(S_W)))
    k("s_and_b32 %s, %s, 1" % (s(S_WRAP), s(S_CB)))
    k("s_lshl_b32 %s, %s, 3" % (s(S_WRAP), s(S_WRAP)))
    k("v_subrev_u32 v6, %s, v6" % s(S_LB))
    k("v_subrev_u32 v7, %s, v7" % s(S_LB))
    k("s_cmp_eq_u32 %s, 0" % s(S_N))
    k("s_cselect_b64 vcc, -1, 0")
    k("v_cndmask_b32 v12, v7, v6, vcc")
    k("v_cndmask_b32 v13, v6, v7, vcc")
    k("s_lshl_b32 %s, %s, 15" % (s(S_T), s(S_N)))
    k("s_lshl_b32 %s, %s, 11" % (s(S_T2), s(S_WRAP)))
    k("s_add_u32 %s, %s, %s" % (s(S_LEFT), s(S_T), s(S_T2)))
    k("v_add_u32 %s, %s, v12" % (v(VLO), s(S_LEFT)))
    k("v_add_u32 %s, %s, v13" % (v(VLO + 1), s(S_LEFT)))
    k("s_sub_u32 %s, %s, %s" % (s(S_LEFT), s(S_T), s(S_T2)))
    k("s_add_u32 %s, %s, %d" % (s(S_LEFT), s(S_LEFT), 8 * 2048))
    k("v_add_u32 %s, %s, v12" % (v(VHI), s(S_LEFT)))
    k("v_add_u32 %s, %s, v13" % (v(VHI + 1), s(S_LEFT)))
    for r in range(16):
        k("v_mov_b32 %s, 0" % v(OTH + r))
    k("s_lshr_b32 %s, %s, 1" % (s(S_T), s(S_W)))
    k("s_lshl_b32 %s, %s, 1" % (s(S_T2), s(S_RB)))
    k("s_add_u32 %s, %s, %s" % (s(S_T), s(S_T), s(S_T2)))
    k("s_mul_i32 %s, %s, %d" % (s(S_XO0), s(S_T), WS_HO_ROW))
    k("s_lshl_b32 %s, %s, 14" % (s(S_T), s(S_N)))
    k("s_add_u32 %s, %s, %s" % (s(S_XO0), s(S_XO0), s(S_T)))
    k("s_add_u32 %s, %s, 0x%x" % (s(S_XO0), s(S_XO0), WS_HO + 112 * 1024))
    k("s_lshl_b32 %s, %s, 10" % (s(S_T), s(S_WRAP)))
    k("s_add_u32 %s, %s, %s" % (s(S_XO1), s(S_XO0), s(S_T)))
    k("s_sub_u32 %s, %s, %s" % (s(S_XO0), s(S_XO0), s(S_T)))
    def xloads():
        k("s_mov_b32 %s, %s" % (s(S_T), s(S_XO1)))
        k("s_add_u32 %s, %s, 8192" % (s(S_T2), s(S_XO0)))
        for i in range(16):
            so = S_T if i < 8 else S_T2
            if i in (4, 12):
                k("s_add_u32 %s, %s, 4096" % (s(so), s(so)))
            k("buffer_load_dwordx4 %s, v3, %s, %s offen offset:%d sc1" % (v(XB + 4 * i, 4), s(S_HD, 4), s(so), (i % 4) * 1024))

    if not XPROF[0]:
        prof_mark(k, 2)
    if "tagged" in OPT:
        k("s_waitcnt vmcnt(0)")
        k("s_barrier")
        k("s_setprio 0")
        k("s_lshl_b32 %s, %s, 10" % (s(S_T2), s(S_WRAP)))
        k("s_sub_u32 %s, %s, %s" % (s(S_LEFT), s(S_XO1), s(S_T2)))
        k("v_and_b32 v8, 15, v0")
        k("v_lshlrev_b32 v8, 10, v8")
        k("v_add_u32 v8, 1020, v8")
        k("s_mov_b32 %s, 0" % s(S_TRIP))
        k.label(pre + "_lp")
        k("buffer_load_dword v9, v8, %s, %s offen sc1" % (s(S_HD, 4), s(S_LEFT)))
        k("s_add_u32 %s, %s, 1" % (s(S_TRIP), s(S_TRIP)))
        k("s_waitcnt vmcnt(0)")
        k("v_cmp_eq_u32 vcc, -1, v9")
        k("s_nop 1")
        k("s_cmp_eq_u64 vcc, 0")
        k("s_cbranch_scc1 %s_full" % pre)
        k("s_cmp_eq_u64 vcc, exec")
        k("s_cbranch_scc0 %s_lnear" % pre)
        k("s_sleep 24")
        k("s_branch %s_lagain" % pre)
        k.label(pre + "_lnear")
        k("s_setprio 3")
        k("s_sleep 2")
        k.label(pre + "_lagain")
        k("s_cmp_lt_u32 %s, 0x8000" % s(S_TRIP))
        k("s_cbranch_scc1 %s_lp" % pre)
        k.label(pre + "_full")
        k("s_setprio 3")
        xloads()
        k("s_add_u32 %s, %s, 1" % (s(S_TRIP), s(S_TRIP)))
        for g in range(4):
            k("s_waitcnt vmcnt(%d)" % (12 - 4 * g))
            for r in range(0, 16, 2):
                a_, b_ = XB + 16 * g + r, XB + 16 * g + r + 1
                if g == 0 and r == 0:
                    k("v_max_u32 v9, %s, %s" % (v(a_), v(b_)))
                else:
                    k("v_max3_u32 v9, v9, %s, %s" % (v(a_), v(b_)))
        k("v_cmp_eq_u32 vcc, -1, v9")
        k("s_nop 1")
        k("s_cmp_eq_u64 vcc, 0")
        k("s_cbranch_scc1 %s_got" % pre)
        k("s_cmp_lt_u32 %s, 0x8000" % s(S_TRIP))
        k("s_cbranch_scc1 %s_full" % pre)
        k.label(pre + "_got")
        prof_mark(k, 4)
    else:
        k("s_lshl_b32 %s, %s, 8" % (s(S_LEFT), s(S_RB)))
        k("s_add_u32 %s, %s, 0x%x" % (s(S_LEFT), s(S_LEFT), WS_FLAG + FLAG_O))
        k("s_waitcnt vmcnt(0)")
        k("s_setprio 3")
        wait_flags(k, pre + "_w", S_LEFT, 64, pre_loaded="fast" in OPT)
        if "fprof" not in OPT:
            prof_mark(k, 4)
        xloads()

    def rd(i):
        base = VLO if i < 8 else VHI
        for j in range(2):
            for u in range(2):
                k("ds_read_b64_tr_b16 %s, %s offset:%d" % (v(WB + 8 * (i & 1) + 4 * j + 2 * u, 2), v(base + j), (i & 7) * 2048 + u * 512))

    rd(0)
    for i in range(16):
        if i < 15:
            rd(i + 1)
        if "tagged" in OPT:
            k("s_waitcnt lgkmcnt(%d)" % (4 if i < 15 else 0))
        else:
            k("s_waitcnt vmcnt(%d) lgkmcnt(%d)" % (15 - i, 4 if i < 15 else 0))
        for j, acc in ((0, OWN), (1, OTH)):
            k("v_mfma_f32_32x32x16_bf16 %s, %s, %s, %s" % (v(acc, 16), v(WB + 8 * (i & 1) + 4 * j, 4), v(XB + 4 * i, 4), v(acc, 16)))
    k("s_barrier")
    k("s_xor_b32 %s, %s, 1" % (s(S_T), s(S_W)))
    k("s_lshl_b32 %s, %s, 12" % (s(S_T), s(S_T)))
    k("v_add_u32 v12, %s, v3" % s(S_T))
    k("s_lshl_b32 %s, %s, 12" % (s(S_T), s(S_W)))
    k("v_add_u32 v13, %s, v3" % s(S_T))
    k("s_nop 7")
    for g in range(4):
        k("ds_write_b128 v12, %s offset:%d" % (v(OTH + 4 * g, 4), g * 1024))
    k("s_waitcnt lgkmcnt(0)")
    k("s_barrier")
    for g in range(4):
        k("ds_read_b128 %s, v13 offset:%d" % (v(XB + 4 * g, 4), g * 1024))
    k("v_lshlrev_b32 v10, 10, v1")
    k("v_lshl_add_u32 v10, v2, 4, v10")
    for g in range(4):
        k("s_waitcnt lgkmcnt(%d)" % (3 - g))
        for r in range(4):
            k("v_add_f32 %s, %s, %s" % (v(OWN + 4 * g + r), v(OWN + 4 * g + r), v(XB + 4 * g + r)))
    for r in range(8):
        k("v_cvt_pk_bf16_f32 %s, %s, %s" % (v(16 + r), v(16 + 2 * r), v(17 + 2 * r)))
    osc = " sc1" if "osc1" in OPT else (" nt" if "ont" in OPT else "")
    k("buffer_store_dwordx4 v[16:19], v10, %s, %s offen%s" % (s(S_OD, 4), s(S_BX), osc))
    k("buffer_store_dwordx4 v[20:23], v10, %s, %s offen offset:32%s" % (s(S_OD, 4), s(S_BX), osc))


def gen_g_role(k, pre, ffn1=None):
    k("v_lshrrev_b32 v1, 6, v0")
    k("v_and_b32 v0, 63, v0")
    k("v_readfirstlane_b32 %s, v1" % s(S_W))
    for r, off in ((S_WS, KA_WS), (S_W2, KA_W2), (S_WOP, KA_WO), (S_X, KA_X), (S_B2, KA_B2), (S_OUT, KA_OUT)):
        k("s_load_dwordx2 %s, s[0:1], %d" % (s(r, 2), off))
    k("s_sub_u32 s3, s2, 256")
    if ffn1:
        k("s_load_dwordx2 s[62:63], s[0:1], %d" % KA_W1)
        k("s_load_dwordx2 s[64:65], s[0:1], %d" % KA_B1)
        ids(k, "s3")
        k("v_and_b32 v1, 31, v0")
        k("v_lshrrev_b32 v2, 5, v0")
        k("s_waitcnt lgkmcnt(0)")
        k.srd(S_HD, S_WS, (20 << 20) + (2 << 20))
        for lvl in (1, 2, 3):
            if "fp%d" % lvl in OPT:
                k("s_setprio %d" % lvl)
        ffn1(k, pre + "f")
        prof_mark(k, 2)
        if "latep" not in OPT:
            k("s_setprio 0")
        XSC[0] = " sc1"
    else:
        k("s_cmp_ge_u32 %s, 4" % s(S_W))
        k("s_cbranch_scc1 %s_exit" % pre)
    ids(k, "s3")
    if "pfo" in OPT:
        k.srd(S_WD, S_WOP, 512 * 1024)
        k("v_lshrrev_b32 v12, 3, v0")
        k("v_and_b32 v13, 7, v0")
        k("v_lshlrev_b32 v13, 4, v13")
        k("v_lshl_add_u32 v12, v12, 10, v13")
        k("s_lshl_b32 %s, %s, 17" % (s(S_T), s(S_RL)))
        k("s_lshl_b32 %s, %s, 14" % (s(S_T2), s(S_W)))
        k("s_add_u32 %s, %s, %s" % (s(S_T), s(S_T), s(S_T2)))
        k("s_lshl_b32 %s, %s, 7" % (s(S_T2), s(S_CB)))
        k("s_add_u32 %s, %s, %s" % (s(S_T), s(S_T), s(S_T2)))
        k("buffer_load_dwordx4 v[48:51], v12, %s, %s offen" % (s(S_WD, 4), s(S_T)))
        k("s_add_u32 %s, %s, 8192" % (s(S_T), s(S_T)))
        k("buffer_load_dwordx4 v[48:51], v12, %s, %s offen" % (s(S_WD, 4), s(S_T)))
        k.srd(S_XD, S_X, 2048 * 1024)
        k("s_lshl_b32 %s, %s, 16" % (s(S_T), s(S_RB)))
        k("s_lshl_b32 %s, %s, 13" % (s(S_T2), s(S_W)))
        k("s_add_u32 %s, %s, %s" % (s(S_T), s(S_T), s(S_T2)))
        k("s_lshl_b32 %s, %s, 7" % (s(S_T2), s(S_CB)))
        k("s_add_u32 %s, %s, %s" % (s(S_T), s(S_T), s(S_T2)))
        k("buffer_load_dwordx4 v[48:51], v12, %s, %s offen" % (s(S_XD, 4), s(S_T)))
    na = NA // 2 if "w8" in OPT else NA
    k("s_mul_i32 %s, %s, %d" % (s(S_LB), s(S_W), DW * WSLOT if "deep" in OPT else RING))
    seg_params(k, na, 0, S_XO0, S_WO, S_WRAP)
    k("s_mov_b32 %s, %d" % (s(S_N), na))
    setup(k)
    k("s_waitcnt lgkmcnt(0)")
    k.srd(S_HD, S_WS, WS_END)
    k.srd(S_WD, S_W2, 1792 * 1024)
    k.srd(S_XD, S_X, 2048 * 1024)
    k.srd(S_OD, S_OUT, 2048 * 1024)
    k.srd(S_BD, S_B2, 1024)
    if "fast" in OPT:
        resid_into_acc(k, pre)
    gp = 3 if "gp3" in OPT else (1 if "gp1" in OPT else (2 if "gp2" in OPT else None))
    if "deep" in OPT:
        stream2(k, pre + "a", na, gp)
    else:
        stream(k, pre + "a", na, False, prio=gp)
    XSC[0] = ""
    if "fprof" not in OPT:
        prof_mark(k, 3)
    if "w8" in OPT:
        for lvl in (1, 2, 3):
            if "rp%d" % lvl in OPT:
                k("s_setprio %d" % lvl)
        pair_reduce(k, pre)
    if "stop" in OPT:
        prof_mark(k, 4)
        prof_mark(k, 5)
        prof_rt(k, 6)
        prof_store(k, S_WS, S_W, 24)
        k("s_endpgm")
    for lvl in (1, 2, 3):
        if "rp%d" % lvl in OPT:
            k("s_setprio %d" % lvl)
    if "fast" not in OPT:
        resid_loads(k)
    reduce_and_store(k, pre)
    if "fast" not in OPT:
        add_resid(k)
    wo_tail(k, pre)
    if "nowait" not in OPT or common.PROF or common.STAMP:
        k("s_waitcnt vmcnt(0)")
    if common.STAMP:
        k("s_cmp_eq_u32 s2, 256")
        k("s_cbranch_scc0 %s_ng" % pre)
        k("s_cmp_eq_u32 %s, 0" % s(S_W))
        k("s_cbranch_scc0 %s_ng" % pre)
        k("s_load_dwordx2 s[60:61], s[0:1], %d" % KA_DBG)
        k("s_memrealtime s[88:89]")
        k("s_waitcnt lgkmcnt(0)")
        k("v_lshrrev_b32 v8, 2, v0")
        k("v_mul_u32_u24 v8, %d, v8" % (65 * 32))
        k("v_and_b32 v9, 3, v0")
        k("v_lshl_add_u32 v8, v9, 2, v8")
        k("v_add_u32 v8, 0x%x, v8" % WS_STAMP)
        k("v_cmp_gt_u32 vcc, 15, v0")
        k("s_and_saveexec_b64 s[62:63], vcc")
        k("global_load_dword v9, v8, %s sc1" % s(S_WS, 2))
        k("s_waitcnt vmcnt(0)")
        k("s_mov_b64 exec, s[62:63]")
        k("v_mov_b32 v10, s88")
        k("v_cmp_eq_u32 vcc, 15, v0")
        k("s_nop 1")
        k("v_cndmask_b32 v9, v9, v10, vcc")
        k("v_lshlrev_b32 v8, 2, v0")
        k("v_cmp_gt_u32 vcc, 16, v0")
        k("s_and_saveexec_b64 s[62:63], vcc")
        k("global_store_dword v8, v9, s[60:61]")
        k("s_waitcnt vmcnt(0)")
        k("s_mov_b64 exec, s[62:63]")
        k.label(pre + "_ng")
    if "fprof" not in OPT:
        prof_mark(k, 5)
    prof_rt(k, 6)
    prof_store(k, S_WS, S_W, 24)
    k.label(pre + "_exit")
    k("s_endpgm")


def gen_wo(k, name, pre):
    k.kernel_begin(name)
    k("s_cmp_ge_u32 s2, 256")
    k("s_cbranch_scc1 %s_exit" % pre)
    prof_start(k)
    for r, off in ((S_WS, KA_WS), (S_WOP, KA_WO), (S_OUT, KA_OUT)):
        k("s_load_dwordx2 %s, s[0:1], %d" % (s(r, 2), off))
    ids(k, "s2")
    k("v_lshrrev_b32 v1, 6, v0")
    k("v_and_b32 v0, 63, v0")
    k("v_readfirstlane_b32 %s, v1" % s(S_W))
    k("s_nop 0")
    k("s_mul_i32 %s, %s, %d" % (s(S_LB), s(S_W), RING))
    seg_params(k, NB, 112, S_XO0, S_WO, S_WRAP)
    k("s_mov_b32 %s, %d" % (s(S_N), NB))
    setup(k)
    k("s_waitcnt lgkmcnt(0)")
    k.srd(S_HD, S_WS, WS_BASE + (4 << 20))
    k.srd(S_WD, S_WOP, 512 * 1024)
    k.srd(S_OD, S_OUT, 2048 * 1024)
    k("s_lshl_b32 %s, s2, 14" % s(S_T))
    k("s_lshl_b32 %s, %s, 12" % (s(S_T2), s(S_W)))
    k("s_add_u32 %s, %s, %s" % (s(S_T), s(S_T), s(S_T2)))
    k("s_add_u32 %s, %s, 0x%x" % (s(S_T), s(S_T), WS_BASE))
    for q in range(4):
        k("s_cmp_lg_u32 %s, %d" % (s(S_W), q))
        k("s_cbranch_scc1 %s_nb%d" % (pre, q))
        for g in range(4):
            k("buffer_load_dwordx4 %s, v3, %s, %s offen offset:%d" % (v(ACC + 16 * q + 4 * g, 4), s(S_HD, 4), s(S_T), 1024 * g))
        k.label("%s_nb%d" % (pre, q))
    prof_mark(k, 2)
    stream(k, pre, NB, False)
    prof_mark(k, 3)
    reduce_and_store(k, pre)
    k("s_lshr_b32 %s, %s, 1" % (s(S_T), s(S_W)))
    k("s_lshl_b32 %s, %s, 1" % (s(S_T2), s(S_RB)))
    k("s_add_u32 %s, %s, %s" % (s(S_T), s(S_T), s(S_T2)))
    k("s_lshl_b32 %s, %s, 15" % (s(S_T), s(S_T)))
    k("s_and_b32 %s, %s, 1" % (s(S_T2), s(S_W)))
    k("s_lshl_b32 %s, %s, 6" % (s(S_T2), s(S_T2)))
    k("s_add_u32 %s, %s, %s" % (s(S_T), s(S_T), s(S_T2)))
    k("s_lshl_b32 %s, %s, 7" % (s(S_T2), s(S_CB)))
    k("s_add_u32 %s, %s, %s" % (s(S_T), s(S_T), s(S_T2)))
    k("v_lshlrev_b32 v10, 10, v1")
    k("v_lshl_add_u32 v10, v2, 4, v10")
    for r in range(8):
        k("v_cvt_pk_bf16_f32 %s, %s, %s" % (v(16 + r), v(16 + 2 * r), v(17 + 2 * r)))
    k("buffer_store_dwordx4 v[16:19], v10, %s, %s offen" % (s(S_OD, 4), s(S_T)))
    k("buffer_store_dwordx4 v[20:23], v10, %s, %s offen offset:32" % (s(S_OD, 4), s(S_T)))
    k("s_waitcnt vmcnt(0)")
    prof_mark(k, 5)
    prof_rt(k, 6)
    prof_store(k, S_WS, S_W, 24)
    k.label(pre + "_exit")
    k.kernel_end(name, 128, 128)
    return 256, 65536


def gen_final(k, name, pre):
    k.kernel_begin(name)
    k("s_cmp_ge_u32 s2, 256")
    k("s_cbranch_scc1 %s_exit" % pre)
    prof_start(k)
    for r, off in ((S_WS, KA_WS), (S_W2, KA_W2), (S_WOP, KA_WO), (S_X, KA_X), (S_B2, KA_B2), (S_OUT, KA_OUT)):
        k("s_load_dwordx2 %s, s[0:1], %d" % (s(r, 2), off))
    k("s_bfe_u32 %s, s2, 0x20003" % s(S_RL))
    k("s_and_b32 %s, s2, 7" % s(S_RB))
    k("s_lshl_b32 %s, %s, 2" % (s(S_RB), s(S_RB)))
    k("s_add_u32 %s, %s, %s" % (s(S_RB), s(S_RB), s(S_RL)))
    k("s_lshr_b32 %s, s2, 5" % s(S_CB))
    k("v_lshrrev_b32 v1, 6, v0")
    k("v_and_b32 v0, 63, v0")
    k("v_readfirstlane_b32 %s, v1" % s(S_W))
    k("s_nop 0")
    k("s_mul_i32 %s, %s, %d" % (s(S_LB), s(S_W), RING))
    if "norot" in OPT:
        k("s_mov_b32 %s, 0" % s(S_RL))
    seg_params(k, NA, 0, S_XO0, S_WO, S_WRAP)
    seg_params(k, NB, 112, S_BX, S_BW, S_BWRAP)
    k("s_mov_b32 %s, %d" % (s(S_N), NA))
    k("s_mov_b32 %s, %d" % (s(S_LEFT), NA))
    setup(k)
    k("s_waitcnt lgkmcnt(0)")
    k.srd(S_HD, S_WS, WS_END)
    k.srd(S_WD, S_W2, 1792 * 1024)
    k.srd(S_XD, S_X, 2048 * 1024)
    k.srd(S_OD, S_OUT, 2048 * 1024)
    k.srd(S_BD, S_B2, 1024)
    prof_mark(k, 2)
    stream(k, pre, NA + NB, True)
    prof_mark(k, 3)
    resid_loads(k)
    reduce_and_store(k, pre)
    finish_tile(k)
    k("s_waitcnt vmcnt(0)")
    prof_mark(k, 5)
    prof_rt(k, 6)
    prof_store(k, S_WS, S_W, 24)
    k.label(pre + "_exit")
    k.kernel_end(name, 128, 128)
    return 256, 65536
```

```python
import common
from common import *

SA, SB, CI, P, KF, VF0, VF1, QF, OA = 16, 32, 48, 64, 72, 76, 80, 84, 96
V_LANE16, V_CUR, V_NXT, V_KOFF, V_VOFF, V_T0, V_T1, V_OOFF = 1, 2, 3, 4, 5, 6, 7, 8
SLOT = 24576
TILE = 3072
BIAS = 100.0
ONES = 0x3F803F80

S_WS, S_KV, S_HOS, S_W, S_HEAD, S_QB, S_T, S_C, S_SLOT, S_VM, S_TILE = 4, 8, 12, 16, 17, 18, 19, 20, 21, 22, 24
S_QS = 28
S_NSLOT = 32
S_DBG = 34
S_W2P, S_W2D, S_PFO = 36, 40, 44


OPT = set()


def mfma(k, d, A, B, C):
    k("v_mfma_f32_32x32x16_bf16 %s, %s, %s, %s" % (v(d, 16), v(A, 4), v(B, 4), C if isinstance(C, str) else v(C, 16)))


def dma_chunk(k):
    k("s_mul_i32 %s, %s, %d" % (s(S_T), s(S_W), TILE))
    k("s_add_u32 %s, %s, %s" % (s(S_T), s(S_T), s(S_NSLOT)))
    k("s_mov_b32 m0, %s" % s(S_T))
    k("s_lshl_b32 %s, %s, 11" % (s(S_T + 0), s(S_TILE)))
    k("buffer_load_dwordx4 %s, %s, %s offen lds" % (v(V_KOFF), s(S_KV, 4), s(S_T)))
    k("s_add_u32 m0, m0, 1024")
    k("s_mov_b64 exec, %s" % s(S_VM, 2))
    k("buffer_load_dwordx4 %s, %s, %s offen lds" % (v(V_VOFF), s(S_KV, 4), s(S_T)))
    k("s_add_u32 m0, m0, 512")
    k("s_nop 0")
    k("buffer_load_dwordx4 %s, %s, %s offen offset:512 lds" % (v(V_VOFF), s(S_KV, 4), s(S_T)))
    k("s_mov_b64 exec, -1")


KF2, VF02, VF12 = [KF, 88], [VF0, 92], [VF1, 112]


def tile_body2(k, i, cur, nxt):
    p, q = i & 1, (i + 1) & 1

    def e(j):
        k("v_exp_f32 %s, %s" % (v(cur + j), v(cur + j)))

    def c(j):
        k("v_cvt_pk_bf16_f32 %s, %s, %s" % (v(P + j), v(cur + 2 * j), v(cur + 2 * j + 1)))

    def rd(dst, tile, part):
        base = V_CUR if tile < 8 else V_NXT
        k("ds_read_b128 %s, %s offset:%d" % (v(dst, 4), v(base), (tile % 8) * TILE + part * 1024))

    k("s_waitcnt lgkmcnt(0)")
    mfma(k, nxt, KF2[p], QF, CI)
    rd(VF12[q], i, 2)
    e(0); e(1)
    rd(VF02[q], i + 1, 1)
    e(2); e(3)
    mfma(k, OA, VF12[p], P + 4, OA)
    rd(KF2[q], i + 2, 0)
    c(0); e(4); e(5); c(1); e(6); e(7); c(2); e(8); c(3); e(9); e(10)
    mfma(k, OA, VF02[p], P, OA)
    e(11); c(4); e(12); e(13); c(5); e(14); e(15); c(6); c(7)


def tile_body(k, i, cur, nxt):
    def e(j):
        if "expsep" in OPT:
            k("v_exp_f32 %s, %s" % (v(96 + j), v(cur + j)))
        else:
            k("v_exp_f32 %s, %s" % (v(cur + j), v(cur + j)))

    def c(j):
        k("v_cvt_pk_bf16_f32 %s, %s, %s" % (v(P + j), v(cur + 2 * j), v(cur + 2 * j + 1)))

    def rd(dst, tile, part):
        if "nolds" in OPT:
            return
        base = V_CUR if tile < 8 else V_NXT
        k("ds_read_b128 %s, %s offset:%d" % (v(dst, 4), v(base), (tile % 8) * TILE + part * 1024))

    def w():
        if "nowait" not in OPT:
            k("s_waitcnt lgkmcnt(2)")

    w()
    if "noqk" not in OPT:
        mfma(k, nxt, KF, QF, CI)
    rd(KF, i + 2, 0)
    e(0); e(1); e(2); e(3)
    w()
    if "nopv" not in OPT:
        mfma(k, OA, VF1, P + 4, OA)
    rd(VF1, i, 2)
    c(0); e(4); e(5); c(1); e(6); e(7); c(2); e(8); c(3); e(9); e(10)
    w()
    if "nopv" not in OPT:
        mfma(k, OA, VF0, P, OA)
    rd(VF0, i + 1, 1)
    e(11); c(4); e(12); e(13); c(5); e(14); e(15); c(6); c(7)


def gen_attn(k, name, standalone=True, second_role=None):
    if standalone:
        k.kernel_begin(name)
        k("s_cmp_ge_u32 s2, %d" % (512 if second_role else 256))
        k("s_cbranch_scc1 L_attn_exit")
        prof_start(k)
        if second_role:
            if "swap" in OPT:
                k("s_xor_b32 s2, s2, 256")
            k("s_cmp_ge_u32 s2, 256")
            k("s_cbranch_scc1 L_attn_role2")
        if "noattn" in OPT:
            k("s_endpgm")
        k("s_load_dwordx2 %s, s[0:1], %d" % (s(S_WS, 2), KA_WS))
        k("s_load_dwordx2 %s, s[0:1], %d" % (s(S_DBG, 2), KA_DBG))
        if "w2pf" in OPT:
            k("s_load_dwordx2 %s, s[0:1], %d" % (s(S_W2P, 2), KA_W2))
        if "wopf" in OPT:
            k("s_load_dwordx2 %s, s[0:1], %d" % (s(S_W2P, 2), KA_WO))
            k("s_load_dwordx2 s[46:47], s[0:1], %d" % KA_X)
    k("s_and_b32 %s, s2, 7" % s(S_HEAD))
    k("s_lshl_b32 %s, %s, 2" % (s(S_HEAD), s(S_HEAD)))
    k("s_lshr_b32 %s, s2, 3" % s(S_T))
    k("s_and_b32 %s, %s, 3" % (s(S_T), s(S_T)))
    k("s_add_u32 %s, %s, %s" % (s(S_HEAD), s(S_HEAD), s(S_T)))
    k("s_lshr_b32 %s, s2, 5" % s(S_QB))
    k("v_lshrrev_b32 %s, 6, v0" % v(V_T0))
    k("v_and_b32 v0, 63, v0")
    k("v_readfirstlane_b32 %s, %s" % (s(S_W), v(V_T0)))
    k("v_lshlrev_b32 %s, 4, v0" % v(V_LANE16))
    k("v_mov_b32 %s, %s" % (v(V_KOFF), v(V_LANE16)))
    k("v_lshrrev_b32 %s, 5, v0" % v(V_T0))
    k("v_lshlrev_b32 %s, 8, %s" % (v(V_T0), v(V_T0)))
    k("v_and_b32 %s, 15, v0" % v(V_T1))
    k("v_lshlrev_b32 %s, 4, %s" % (v(V_T1), v(V_T1)))
    k("v_add3_u32 %s, %s, %s, 0" % (v(V_VOFF), v(V_T0), v(V_T1)))
    k("v_add_u32 %s, 1024, %s" % (v(V_VOFF), v(V_VOFF)))
    k("s_mov_b32 %s, 0x0000ffff" % s(S_VM))
    k("s_mov_b32 %s, 0x0000ffff" % s(S_VM + 1))
    k("s_waitcnt lgkmcnt(0)")
    stamp(k, 2, S_WS, S_W)
    k("s_lshl_b32 %s, %s, 17" % (s(S_T), s(S_HEAD)))
    k("s_add_u32 %s, %s, %s" % (s(S_KV), s(S_WS), s(S_T)))
    k("s_addc_u32 %s, %s, 0" % (s(S_KV + 1), s(S_WS + 1)))
    k("s_add_u32 %s, %s, 0x%x" % (s(S_KV), s(S_KV), WS_KV))
    k("s_addc_u32 %s, %s, 0" % (s(S_KV + 1), s(S_KV + 1)))
    k("s_and_b32 %s, %s, 0xffff" % (s(S_KV + 1), s(S_KV + 1)))
    k("s_mov_b32 %s, 0x20000" % s(S_KV + 2))
    k("s_mov_b32 %s, 0x20000" % s(S_KV + 3))
    if "w2pf" in OPT:
        k.srd(S_W2D, S_W2P, 1792 * 1024)
        k("s_lshr_b32 %s, s2, 3" % s(S_PFO))
        k("s_mul_i32 %s, %s, %d" % (s(S_PFO), s(S_PFO), 56 * 1024))
        k("s_lshl_b32 %s, %s, 11" % (s(S_T), s(S_W)))
        k("s_add_u32 %s, %s, %s" % (s(S_PFO), s(S_PFO), s(S_T)))
    k("s_mov_b32 %s, %s" % (s(S_TILE), s(S_W)))
    k("s_mov_b32 %s, 0" % s(S_NSLOT))
    dma_chunk(k)
    k.srd(S_HOS, S_WS, WS_END)
    k("s_lshl_b32 %s, %s, 6" % (s(S_T), s(S_HEAD)))
    k("s_lshl_b32 %s, %s, 3" % (s(S_QS), s(S_QB)))
    k("s_add_u32 %s, %s, %s" % (s(S_QS), s(S_QS), s(S_W)))
    k("s_add_u32 %s, %s, %s" % (s(S_T), s(S_T), s(S_QS)))
    k("s_lshl_b32 %s, %s, 10" % (s(S_T), s(S_T)))
    k("buffer_load_dwordx4 %s, %s, %s, %s offen" % (v(QF, 4), v(V_LANE16), s(S_HOS, 4), s(S_T)))
    k("s_mul_i32 %s, %s, 144" % (s(S_QS), s(S_QS)))
    k("s_add_u32 %s, %s, %s" % (s(S_QS), s(S_QS), s(S_HEAD)))
    k("s_add_u32 %s, %s, 112" % (s(S_QS), s(S_QS)))
    k("s_lshl_b32 %s, %s, 10" % (s(S_QS), s(S_QS)))
    k("s_add_u32 %s, %s, 0x%x" % (s(S_QS), s(S_QS), WS_HO))
    k("v_mov_b32 %s, 0x%x" % (v(P), ONES))
    k("v_mov_b32 %s, 0x%x" % (v(P + 1), ONES))
    k("v_mov_b32 %s, 0x%x" % (v(P + 2), ONES))
    k("v_mov_b32 %s, 0x%x" % (v(P + 3), ONES))
    k("s_mul_i32 %s, %s, %d" % (s(S_T), s(S_W), TILE))
    k("v_add_u32 %s, %s, %s" % (v(V_T0), s(S_T), v(V_LANE16)))
    if "zeropad" in OPT:
        k("v_and_b32 %s, 27, v0" % v(V_T1))
        k("v_cmp_eq_u32 vcc, 16, %s" % v(V_T1))
        k("s_nop 1")
        for j in range(4):
            k("v_cndmask_b32 %s, 0, %s, vcc" % (v(P + j), v(P + j)))
    k("s_mov_b32 exec_lo, 0xffff0000")
    k("s_mov_b32 exec_hi, 0xffff0000")
    for slot in range(3):
        for part in (1, 2):
            k("ds_write_b128 %s, %s offset:%d" % (v(V_T0), v(P, 4), slot * SLOT + part * 1024))
    k("s_mov_b64 exec, -1")
    if "late1" not in OPT:
        k("s_add_u32 %s, %s, 8" % (s(S_TILE), s(S_TILE)))
        k("s_mov_b32 %s, %d" % (s(S_NSLOT), SLOT))
        dma_chunk(k)
        k("s_waitcnt vmcnt(3) lgkmcnt(0)")
    else:
        k("s_waitcnt vmcnt(0) lgkmcnt(0)")
    k("s_barrier")
    prof_mark(k, 2)
    nt = 2 if "samp2" in OPT else 4
    bufs = (SA, SB, CI, OA)[:nt]
    frs = (KF, VF0, VF1, P)[:nt]
    for t in range(nt):
        k("ds_read_b128 %s, %s offset:%d" % (v(frs[t], 4), v(V_LANE16), t * TILE))
    for t in range(nt):
        k("s_waitcnt lgkmcnt(%d)" % (nt - 1 - t))
        mfma(k, bufs[t], frs[t], QF, "0")
    k("s_nop %d" % (7 if nt == 4 else 11))
    if nt == 2:
        k("s_nop 0")
    m = V_T0
    k("v_max3_f32 %s, %s, %s, %s" % (v(m), v(SA), v(SA + 1), v(SA + 2)))
    regs = [SA + j for j in range(3, 16)] + [b + j for b in bufs[1:] for j in range(16)]
    for j in range(0, len(regs) - 1, 2):
        k("v_max3_f32 %s, %s, %s, %s" % (v(m), v(m), v(regs[j]), v(regs[j + 1])))
    if len(regs) % 2:
        k("v_max_f32 %s, %s, %s" % (v(m), v(m), v(regs[-1])))
    k("v_mov_b32 %s, %s" % (v(V_T1), v(m)))
    k("s_nop 1")
    k("v_permlane32_swap_b32 %s, %s" % (v(V_T1), v(m)))
    k("s_nop 1")
    k("v_max_f32 %s, %s, %s" % (v(m), v(m), v(V_T1)))
    k("v_add_f32 %s, 0x%x, %s" % (v(m), f2u(BIAS), v(m)))
    for j in range(16):
        k("v_sub_f32 %s, 0, %s" % (v(CI + j), v(m)))
    for j in range(16):
        k("v_mov_b32 %s, 0" % v(OA + j))
    for j in range(4):
        k("v_mov_b32 %s, 0" % v(P + 4 + j))
        k("v_mov_b32 %s, 0" % v(VF1 + j))
    k("s_waitcnt lgkmcnt(0)")
    mfma(k, SA, KF, QF, CI)
    k("ds_read_b128 %s, %s offset:%d" % (v(KF, 4), v(V_LANE16), TILE))
    k("ds_read_b128 %s, %s offset:%d" % (v(VF0, 4), v(V_LANE16), 1024))
    k("v_mov_b32 %s, %s" % (v(V_CUR), v(V_LANE16)))
    k("v_add_u32 %s, %d, %s" % (v(V_NXT), SLOT, v(V_LANE16)))
    if "late1" in OPT:
        k("s_add_u32 %s, %s, 8" % (s(S_TILE), s(S_TILE)))
        k("s_mov_b32 %s, %d" % (s(S_NSLOT), SLOT))
        dma_chunk(k)
    k("s_mov_b32 %s, 0" % s(S_C))
    k("s_mov_b32 %s, %d" % (s(S_NSLOT), 2 * SLOT))
    k("s_waitcnt lgkmcnt(0)")
    k("s_nop 7")
    prof_mark(k, 3)
    k(".p2align 6")
    k.label("L_attn_chunk")
    for i in range(8):
        if i == 4:
            k("s_waitcnt vmcnt(0)")
            if "nobar" not in OPT:
                k("s_barrier")
            k("s_cmp_ge_u32 %s, 6" % s(S_C))
            k("s_cbranch_scc1 L_attn_nodma")
            k("s_add_u32 %s, %s, 8" % (s(S_TILE), s(S_TILE)))
            if "nodma" not in OPT:
                dma_chunk(k)
            if "wopf" in OPT:
                cpf = 4 if "wopf4" in OPT else 5
                k("s_cmp_eq_u32 %s, %d" % (s(S_C), cpf))
                k("s_cbranch_scc0 L_attn_nodma")
                k.srd(S_W2D, S_W2P, 512 * 1024)
                k("s_lshr_b32 %s, s2, 3" % s(S_PFO))
                k("s_lshl_b32 %s, %s, 3" % (s(S_PFO), s(S_PFO)))
                k("s_add_u32 %s, %s, %s" % (s(S_PFO), s(S_PFO), s(S_W)))
                k("s_lshl_b32 %s, %s, 11" % (s(S_T), s(S_PFO)))
                k("buffer_load_dwordx4 v[116:119], %s, %s, %s offen" % (v(V_LANE16), s(S_W2D, 4), s(S_T)))
                k("buffer_load_dwordx4 v[116:119], %s, %s, %s offen offset:1024" % (v(V_LANE16), s(S_W2D, 4), s(S_T)))
                k.srd(S_W2D, 46, 2048 * 1024)
                k("s_and_b32 %s, s2, 7" % s(S_T))
                k("s_lshl_b32 %s, %s, 8" % (s(S_T), s(S_T)))
                k("s_add_u32 %s, %s, %s" % (s(S_T), s(S_T), s(S_PFO)))
                k("s_lshl_b32 %s, %s, 10" % (s(S_T), s(S_T)))
                k("buffer_load_dwordx4 v[116:119], %s, %s, %s offen" % (v(V_LANE16), s(S_W2D, 4), s(S_T)))
            if "w2pf" in OPT:
                k("s_cmp_ge_u32 %s, 4" % s(S_C))
                k("s_cbranch_scc1 L_attn_nodma")
                k("buffer_load_dwordx4 v[116:119], %s, %s, %s offen" % (v(V_LANE16), s(S_W2D, 4), s(S_PFO)))
                k("buffer_load_dwordx4 v[116:119], %s, %s, %s offen offset:1024" % (v(V_LANE16), s(S_W2D, 4), s(S_PFO)))
                k("s_add_u32 %s, %s, 16384" % (s(S_PFO), s(S_PFO)))
            k.label("L_attn_nodma")
        if "prio2" in OPT and i % 2 == 0:
            k("s_setprio %d" % (3 - ((i - 4) % 8) // 2))
        if "prio3" in OPT and ((i - 4) % 8) in (0, 3, 6):
            k("s_setprio %d" % {0: 2, 3: 1, 6: 0}[(i - 4) % 8])
        if "prio1" in OPT:
            k("s_setprio %d" % (3 - ((i - 4) % 4)))
        if "prio1" in OPT and "bar4" in OPT and i == 0:
            k("s_barrier")
        (tile_body2 if "onewait" in OPT else tile_body)(k, i, SA if i % 2 == 0 else SB, SB if i % 2 == 0 else SA)
    k("v_mov_b32 %s, %s" % (v(V_CUR), v(V_NXT)))
    k("v_add_u32 %s, %s, %s" % (v(V_NXT), s(S_NSLOT), v(V_LANE16)))
    k("s_add_u32 %s, %s, %d" % (s(S_NSLOT), s(S_NSLOT), SLOT))
    k("s_cmp_ge_u32 %s, %d" % (s(S_NSLOT), 3 * SLOT))
    k("s_cselect_b32 %s, 0, %s" % (s(S_NSLOT), s(S_NSLOT)))
    k("s_add_u32 %s, %s, 1" % (s(S_C), s(S_C)))
    k("s_cmp_lt_u32 %s, 8" % s(S_C))
    k("s_cbranch_scc1 L_attn_chunk")
    k("s_waitcnt lgkmcnt(0)")
    prof_mark(k, 4)
    mfma(k, OA, VF1, P + 4, OA)
    k("s_nop 15")
    t = V_T0
    k("v_mul_f32 %s, 0, %s" % (v(t), v(OA)))
    for j in range(1, 8):
        k("v_fma_f32 %s, %s, 0, %s" % (v(t), v(OA + j), v(t)))
    k("s_mov_b32 %s, 0x%x" % (s(S_T), f2u(2.0 ** 110)))
    k("v_cmp_ngt_f32 vcc, %s, %s" % (s(S_T), v(OA + 8)))
    k("v_cmp_u_f32 %s, %s, %s" % (s(S_C, 2), v(t), v(t)))
    k("s_nop 1")
    k("s_or_b64 vcc, vcc, %s" % s(S_C, 2))
    k("s_cbranch_vccnz L_attn_slow")
    k.label("L_attn_fin")
    k("v_rcp_f32 %s, %s" % (v(t), v(OA + 8)))
    k("s_nop 0")
    for j in range(8):
        k("v_mul_f32 %s, %s, %s" % (v(OA + j), v(OA + j), v(t)))
    for j in range(4):
        k("v_cvt_pk_bf16_f32 %s, %s, %s" % (v(P + j), v(OA + 2 * j), v(OA + 2 * j + 1)))
    if "tagged" in OPT:
        k("buffer_store_dwordx4 %s, %s, %s, %s offen sc1" % (v(P, 4), v(V_LANE16), s(S_HOS, 4), s(S_QS)))
    elif "signal" in OPT:
        k("buffer_store_dwordx4 %s, %s, %s, %s offen sc1" % (v(P, 4), v(V_LANE16), s(S_HOS, 4), s(S_QS)))
        k("s_lshl_b32 %s, %s, 3" % (s(S_T), s(S_QB)))
        k("s_add_u32 %s, %s, %s" % (s(S_T), s(S_T), s(S_W)))
        k("s_lshl_b32 %s, %s, 5" % (s(S_T), s(S_T)))
        k("s_add_u32 %s, %s, %s" % (s(S_T), s(S_T), s(S_HEAD)))
        k("s_lshl_b32 %s, %s, 2" % (s(S_T), s(S_T)))
        k("s_add_u32 %s, %s, 0x%x" % (s(S_T), s(S_T), WS_FLAG + FLAG_O))
        k("v_mov_b32 %s, %s" % (v(V_T0), s(S_T)))
        k("v_mov_b32 %s, 1" % v(V_T1))
        k("s_waitcnt vmcnt(0)")
        k("s_mov_b64 exec, 1")
        k("global_store_dword %s, %s, %s sc1" % (v(V_T0), v(V_T1), s(S_WS, 2)))
        k("s_mov_b64 exec, -1")
        k.label("L_attn_nosig")
    else:
        k("buffer_store_dwordx4 %s, %s, %s, %s offen" % (v(P, 4), v(V_LANE16), s(S_HOS, 4), s(S_QS)))
    if "nowait" not in OPT or common.PROF or common.STAMP:
        k("s_waitcnt vmcnt(0)")
    stamp(k, 3, S_WS, S_W)
    prof_mark(k, 5)
    prof_rt(k, 6)
    prof_store(k, S_WS, S_W, 16)
    k("s_endpgm")
    k.label("L_attn_slow")
    k("v_mov_b32 %s, 0xff800000" % v(m))
    k("s_mov_b32 %s, 0" % s(S_C))
    k.label("L_attn_slow_max")
    k("buffer_load_dwordx4 %s, %s, %s, %s offen" % (v(KF, 4), v(V_KOFF), s(S_KV, 4), s(S_C)))
    k("s_waitcnt vmcnt(0)")
    mfma(k, SA, KF, QF, "0")
    k("s_nop 15")
    for j in range(0, 16, 2):
        k("v_max3_f32 %s, %s, %s, %s" % (v(m), v(m), v(SA + j), v(SA + j + 1)))
    k("s_add_u32 %s, %s, 2048" % (s(S_C), s(S_C)))
    k("s_cmp_lt_u32 %s, 0x20000" % s(S_C))
    k("s_cbranch_scc1 L_attn_slow_max")
    k("v_mov_b32 %s, %s" % (v(V_T1), v(m)))
    k("s_nop 1")
    k("v_permlane32_swap_b32 %s, %s" % (v(V_T1), v(m)))
    k("s_nop 1")
    k("v_max_f32 %s, %s, %s" % (v(m), v(m), v(V_T1)))
    for j in range(16):
        k("v_sub_f32 %s, 0, %s" % (v(CI + j), v(m)))
        k("v_mov_b32 %s, 0" % v(OA + j))
    for j in range(4):
        k("v_mov_b32 %s, 0x%x" % (v(VF0 + j), ONES))
        k("v_mov_b32 %s, 0x%x" % (v(VF1 + j), ONES))
    k("s_mov_b32 %s, 0" % s(S_C))
    k.label("L_attn_slow_pv")
    k("buffer_load_dwordx4 %s, %s, %s, %s offen" % (v(KF, 4), v(V_KOFF), s(S_KV, 4), s(S_C)))
    k("s_mov_b64 exec, %s" % s(S_VM, 2))
    k("buffer_load_dwordx4 %s, %s, %s, %s offen" % (v(VF0, 4), v(V_VOFF), s(S_KV, 4), s(S_C)))
    k("buffer_load_dwordx4 %s, %s, %s, %s offen offset:512" % (v(VF1, 4), v(V_VOFF), s(S_KV, 4), s(S_C)))
    k("s_mov_b64 exec, -1")
    k("s_waitcnt vmcnt(0)")
    mfma(k, SA, KF, QF, CI)
    k("s_nop 15")
    for j in range(16):
        k("v_exp_f32 %s, %s" % (v(SA + j), v(SA + j)))
    k("s_nop 0")
    for j in range(8):
        k("v_cvt_pk_bf16_f32 %s, %s, %s" % (v(P + j), v(SA + 2 * j), v(SA + 2 * j + 1)))
    k("s_nop 1")
    mfma(k, OA, VF0, P, OA)
    mfma(k, OA, VF1, P + 4, OA)
    k("s_add_u32 %s, %s, 2048" % (s(S_C), s(S_C)))
    k("s_cmp_lt_u32 %s, 0x20000" % s(S_C))
    k("s_cbranch_scc1 L_attn_slow_pv")
    k("s_nop 15")
    k("s_branch L_attn_fin")
    if second_role:
        k.label("L_attn_role2")
        second_role(k)
    if standalone:
        k.label("L_attn_exit")
        nv = 128 if (common.PROF or second_role) else 112
        k.kernel_end(name, nv, nv)


if __name__ == "__main__":
    import sys
    common.PROF = "prof" in sys.argv
    OPT.update(sys.argv[1:])
    k = Asm()
    k.lines.append(HEADER.rstrip())
    k.lines.append("; @launch kernel=attn_kernel grid=(256,1,1) block=(512,1,1) lds=%d" % (3 * SLOT))
    k('.amdgcn_target "amdgcn-amd-amdhsa--gfx950"')
    gen_attn(k, "attn_kernel")
    open("attn_%s.s" % "_".join(["v"] + [x for x in sys.argv[1:] if x != "prof"]), "w").write(k.text())
```

```python
import common
from common import *

OPT = set()
XBYTES = 65536
L_ST = XBYTES
L_CS = L_ST + 1024
L_RS = L_CS + 1024
SLOT0 = XBYTES + 3072
SLOT = 12288
R = 7
SLOTE = SLOT0 + R * SLOT
LDS_BYTES = SLOTE
WS_XN = 20 << 20

S_X, S_WQ, S_WS = 4, 6, 8
S_XD, S_WD, S_OD = 12, 16, 20
S_W, S_RB, S_CT, S_T, S_T2, S_C, S_SLOT, S_WO, S_LD = 24, 25, 26, 27, 28, 29, 30, 32, 33
S_T3, S_ROT, S_KC, S_U, S_WEND, S_LD3, S_XO = 36, 37, 39, 42, 44, 45, 46

VA0 = 4
VWQ = 6
VW2 = 7
VX = 9
SEL, CSA, CSK, DA = 12, 16, 20, 10
XF = [24, 28]
WF = [32, 44]
ACC = 56
ONE = 5
NV = 128
VXO = 120
VQO = 8


def entry(k, pre, name):
    k("s_cmp_ge_u32 s2, 256")
    k("s_cbranch_scc1 %s_exit" % pre)
    prof_start(k)
    k("s_load_dwordx2 %s, s[0:1], %d" % (s(S_X, 2), KA_X))
    k("s_load_dwordx2 %s, s[0:1], %d" % (s(S_WQ, 2), KA_WQKV))
    k("s_load_dwordx2 %s, s[0:1], %d" % (s(S_WS, 2), KA_WS))
    k("v_lshrrev_b32 v1, 6, v0")
    k("v_and_b32 v0, 63, v0")
    k("v_readfirstlane_b32 %s, v1" % s(S_W))
    k("s_lshr_b32 %s, s2, 3" % s(S_T))
    k("s_and_b32 %s, %s, 7" % (s(S_ROT), s(S_T)))
    k("s_and_b32 %s, s2, 3" % s(S_RB))
    k("s_lshl_b32 %s, %s, 3" % (s(S_RB), s(S_RB)))
    k("s_add_u32 %s, %s, %s" % (s(S_RB), s(S_RB), s(S_ROT)))
    k("s_lshr_b32 %s, %s, 3" % (s(S_T), s(S_T)))
    k("s_bfe_u32 %s, s2, 0x10002" % s(S_CT))
    k("s_lshl_b32 %s, %s, 2" % (s(S_CT), s(S_CT)))
    k("s_add_u32 %s, %s, %s" % (s(S_CT), s(S_CT), s(S_T)))
    k("s_add_u32 %s, %s, %s" % (s(S_ROT), s(S_ROT), s(S_T)))
    k("s_and_b32 %s, %s, 3" % (s(S_ROT), s(S_ROT)))
    k("v_lshrrev_b32 v2, 4, v0")
    k("v_and_b32 v3, 15, v0")
    k("s_and_b32 %s, %s, 1" % (s(S_T), s(S_W)))
    k("s_lshl_b32 %s, %s, 3" % (s(S_T), s(S_T)))
    for p in range(2):
        k("v_add_u32 v4, %s, v2" % s(S_T))
        if p:
            k("v_add_u32 v4, 4, v4")
        k("v_xor_b32 v4, v4, v3")
        k("v_lshlrev_b32 v4, 4, v4")
        k("v_lshl_add_u32 %s, v2, 10, v4" % v(VXO + p))
    k("s_lshl_b32 %s, %s, 6" % (s(S_XO), s(S_RB)))
    k("s_lshl_b32 %s, %s, 3" % (s(S_T), s(S_W)))
    k("s_add_u32 %s, %s, %s" % (s(S_XO), s(S_XO), s(S_T)))
    k("s_lshl_b32 %s, %s, 10" % (s(S_XO), s(S_XO)))
    k("s_waitcnt lgkmcnt(0)")
    stamp(k, 0, S_WS, S_W)
    k.srd(S_XD, S_X, 2048 * 1024)
    k.srd(S_WD, S_WQ, 512 * 3072)
    k.srd(S_OD, S_WS, WS_XN + (2 << 20))
    k("s_cmp_ge_u32 %s, 4" % s(S_W))
    k("s_cbranch_scc1 %s_loader" % pre)


def issue_x(k, j):
    k("s_add_u32 %s, %s, %d" % (s(S_T), s(S_ROT), j))
    k("s_and_b32 %s, %s, 3" % (s(S_T), s(S_T)))
    k("s_lshl_b32 %s, %s, 8" % (s(S_T2), s(S_T)))
    k("s_add_u32 %s, %s, %s" % (s(S_T2), s(S_T2), s(S_XO)))
    k("s_lshl_b32 %s, %s, 14" % (s(S_T), s(S_T)))
    k("s_lshl_b32 %s, %s, 11" % (s(S_T3), s(S_W)))
    k("s_add_u32 m0, %s, %s" % (s(S_T), s(S_T3)))
    k("s_add_u32 %s, %s, 4096" % (s(S_T3), s(S_T2)))
    k("buffer_load_dwordx4 %s, %s, %s offen lds" % (v(VXO), s(S_XD, 4), s(S_T2)))
    k("s_add_u32 m0, m0, 1024")
    k("s_nop 0")
    k("buffer_load_dwordx4 %s, %s, %s offen lds" % (v(VXO + 1), s(S_XD, 4), s(S_T3)))


def side_jobs(k, pre):
    k("s_cmp_lt_u32 s2, 48")
    k("s_cbranch_scc0 %s_nz" % pre)
    k("s_cmp_eq_u32 %s, 0" % s(S_W))
    k("s_cbranch_scc0 %s_nz" % pre)
    k("s_lshl_b32 %s, s2, 8" % s(S_T))
    k("s_add_u32 %s, %s, 0x%x" % (s(S_T), s(S_T), WS_FLAG))
    k("v_lshl_add_u32 v2, v0, 2, %s" % s(S_T))
    k("v_mov_b32 v3, 0")
    k("global_store_dword v2, v3, %s" % s(S_WS, 2))
    k.label(pre + "_nz")
    k("s_getpc_b64 s[50:51]")
    k.label(pre + "_pc")
    k("s_sub_u32 s50, s50, %s_pc-%s" % (pre, pre[2:] + "_kernel"))
    k("s_subb_u32 s51, s51, 0")
    k("s_lshr_b32 s52, s2, 3")
    k("s_lshl_b32 s52, s52, 10")
    k("v_lshl_add_u32 v3, v0, 4, s52")
    k("v_cmp_gt_u32 vcc, L_text_end-%s-16, v3" % (pre[2:] + "_kernel"))
    k("s_cmp_eq_u32 %s, 3" % s(S_W))
    k("s_cselect_b64 s[52:53], vcc, 0")
    k("s_and_saveexec_b64 s[54:55], s[52:53]")
    k("s_cbranch_execz %s_npf" % pre)
    k("global_load_dwordx4 v[112:115], v3, s[50:51]")
    k.label(pre + "_npf")
    k("s_mov_b64 exec, s[54:55]")


def lane_helpers(k):
    k("v_and_b32 v1, 31, v0")
    k("v_lshrrev_b32 v2, 5, v0")


def xaddr_base(k, s_tile):
    k("s_lshl_b32 %s, %s, 13" % (s(S_T), s(s_tile)))
    k("v_and_b32 v3, 15, v1")
    k("v_xor_b32 v3, v3, v2")
    k("v_lshlrev_b32 v3, 4, v3")
    k("v_lshl_add_u32 v3, v1, 8, v3")
    k("v_add_u32 %s, %s, v3" % (v(VA0), s(S_T)))


def next_slot(k, r):
    k("s_add_u32 %s, %s, %d" % (s(r), s(r), SLOT))
    k("s_cmp_ge_u32 %s, %d" % (s(r), SLOTE))
    k("s_cselect_b32 %s, %d, %s" % (s(r), SLOT0, s(r)))


def compute(k, pre):
    issue_x(k, 0)
    prof_mark(k, 4)
    side_jobs(k, pre)
    lane_helpers(k)
    k("s_and_b32 %s, %s, 1" % (s(S_T2), s(S_W)))
    xaddr_base(k, S_T2)
    t = ACC
    r, b, h, g, x, y = t, t + 1, t + 2, t + 3, t + 4, t + 5
    k("s_lshr_b32 %s, %s, 1" % (s(S_T), s(S_W)))
    k("v_bfe_u32 %s, v0, 2, 2" % v(r))
    k("v_and_b32 %s, 3, v0" % v(b))
    k("v_bfe_u32 %s, v0, 4, 1" % v(h))
    k("v_lshl_add_u32 %s, %s, 2, %s" % (v(b), v(h), v(b)))
    k("v_and_b32 %s, 1, %s" % (v(h), v(b)))
    k("v_lshrrev_b32 %s, 1, %s" % (v(g), v(b)))
    k("v_lshl_add_u32 %s, v2, 3, %s" % (v(x), v(r)))
    k("v_lshl_add_u32 %s, %s, 2, %s" % (v(b), v(h), v(g)))
    k("v_mul_u32_u24 %s, 384, %s" % (v(y), v(x)))
    k("v_lshl_add_u32 %s, %s, 3, %s" % (v(y), v(b), v(y)))
    k("v_lshrrev_b32 %s, 1, %s" % (v(b), v(r)))
    k("v_xor_b32 %s, %s, %s" % (v(b), s(S_T), v(b)))
    k("v_lshl_add_u32 %s, %s, 6, %s" % (v(VWQ), v(b), v(y)))
    k("v_and_b32 v3, 15, v0")
    k("v_bfe_u32 %s, v0, 4, 1" % v(SEL))
    k("v_cmp_eq_u32 vcc, v3, %s" % v(SEL))
    k("v_mov_b32 %s, 0x3f803f80" % v(ONE))
    k("s_nop 0")
    k("v_cndmask_b32 %s, 0, %s, vcc" % (v(SEL), v(ONE)))
    for j in range(1, 4):
        k("v_mov_b32 %s, %s" % (v(SEL + j), v(SEL)))
    for j in range(8):
        k("v_mov_b32 %s, 0" % v(CSA + j))
    for j in range(48):
        k("v_mov_b32 %s, 0" % v(ACC + j))
    k("s_mov_b32 %s, %d" % (s(S_SLOT), SLOT0))
    k("s_lshl_b32 %s, %s, 2" % (s(S_KC), s(S_ROT)))
    k("s_setprio 2")
    k("s_waitcnt vmcnt(0)")
    k("s_barrier")
    prof_mark(k, 2)
    for j in range(1, 4):
        issue_x(k, j)
    F, RB = 3, 384

    def slot_ops(par):
        return ["v_add_u32 %s, %s, %s" % (v(VW2 + par), s(S_SLOT), v(VWQ))]

    def u_ops():
        return ["s_and_b32 %s, %s, 3" % (s(S_T), s(S_KC)), "s_lshl_b32 %s, %s, 6" % (s(S_T), s(S_T)),
                "s_lshr_b32 %s, %s, 2" % (s(S_U), s(S_KC)), "s_lshl_b32 %s, %s, 14" % (s(S_U), s(S_U)),
                "s_or_b32 %s, %s, %s" % (s(S_U), s(S_U), s(S_T))]

    def x_ops(st):
        return ["v_xor_b32 %s, %s, %s" % (v(VX), s(S_U), v(VA0))] if st == 0 else ["v_xor_b32 %s, 32, %s" % (v(VX), v(VX))]

    def kc_next():
        return ["s_add_u32 %s, %s, 1" % (s(S_KC), s(S_KC)), "s_and_b32 %s, %s, 15" % (s(S_KC), s(S_KC))]

    def rd_x(buf):
        return ["ds_read_b128 %s, %s" % (v(XF[buf], 4), v(VX))]

    def rd_w(par, st, buf, ft):
        off = st * 16 * RB + ft * 128
        return ["ds_read_b64_tr_b16 %s, %s offset:%d" % (v(WF[buf] + 4 * ft + 2 * u, 2), v(VW2 + par), off + u * 4 * RB) for u in range(2)]

    def mfma(buf, ft):
        d = v(ACC + 16 * ft, 16)
        if ft == 2:
            k("v_mfma_f32_32x32x16_bf16 %s, %s, %s, %s" % (d, v(XF[buf], 4), v(WF[buf] + 4 * ft, 4), d))
        else:
            k("v_mfma_f32_32x32x16_bf16 %s, %s, %s, %s" % (d, v(WF[buf] + 4 * ft, 4), v(XF[buf], 4), d))

    def colsum(acc, buf, ft):
        k("v_mfma_f32_16x16x32_bf16 %s, %s, %s, %s" % (v(acc, 4), v(WF[buf] + 4 * ft, 4), v(SEL, 4), v(acc, 4)))

    for ins in u_ops() + slot_ops(0) + x_ops(0) + rd_x(0) + sum((rd_w(0, 0, 0, ft) for ft in range(F)), []) + x_ops(1):
        k(ins)
    k("s_mov_b32 %s, 0" % s(S_C))
    for w in range(1, 4):
        k("s_cmp_eq_u32 %s, %d" % (s(S_W), w))
        k("s_cbranch_scc1 %s_loop%d" % (pre, w))
    for w in range(4):
        tt, fg = w & 1, w >> 1
        k(".p2align 3")
        k.label("%s_loop%d" % (pre, w))
        for par in range(2):
            for st in range(2):
                b, nb = st, 1 - st
                npar = par if st == 0 else 1 - par
                for ft in range(F):
                    newer = 2 * (F - 1 - ft) + (0 if ft == 0 else 1 + 2 * ft)
                    k("s_waitcnt lgkmcnt(%d)" % newer)
                    mfma(b, ft)
                    if ft == 0:
                        if st == 1:
                            if par == 1:
                                k("s_cmp_eq_u32 %s, 0" % s(S_C))
                                k("s_cbranch_scc1 %s_xw%d" % (pre, w))
                                k("s_waitcnt vmcnt(0)")
                                k.label("%s_xw%d" % (pre, w))
                            k("s_barrier")
                        for ins in rd_x(nb):
                            k(ins)
                    for ins in rd_w(npar, 1 - st, nb, ft):
                        k(ins)
                    if ft == 0:
                        for ins in (kc_next() + u_ops() + x_ops(0) if st == 0 else x_ops(1)):
                            k(ins)
                    if st == 0 and ft == 1:
                        next_slot(k, S_SLOT)
                    if st == 0 and ft == F - 1:
                        for ins in slot_ops(1 - par):
                            k(ins)
                if "nocs" not in OPT:
                    colsum(CSA, b, 0 if tt == 0 else 2)
                    if st == tt:
                        colsum(CSK, b, 1)
        k("s_add_u32 %s, %s, 1" % (s(S_C), s(S_C)))
        k("s_cmp_lt_u32 %s, 8" % s(S_C))
        k("s_cbranch_scc1 %s_loop%d" % (pre, w))
        if w < 3:
            k("s_branch %s_cdone" % pre)
    k.label(pre + "_cdone")
    prof_mark(k, 3)
    k("s_waitcnt lgkmcnt(0)")
    k("s_lshr_b32 %s, %s, 1" % (s(S_T2), s(S_W)))
    k("v_and_b32 v3, 1, v0")
    k("v_lshlrev_b32 v3, 6, v3")
    k("v_lshrrev_b32 %s, 4, v0" % v(XF[0]))
    k("v_lshl_add_u32 v3, %s, 4, v3" % v(XF[0]))
    k("s_lshl_b32 %s, %s, 9" % (s(S_T), s(S_T2)))
    k("s_add_u32 %s, %s, %d" % (s(S_T), s(S_T), L_CS))
    k("v_add_u32 v3, %s, v3" % s(S_T))
    k("s_and_b32 %s, %s, 1" % (s(S_T), s(S_W)))
    k("s_mul_i32 %s, %s, 384" % (s(S_T3), s(S_T)))
    k("s_lshl_b32 %s, %s, 7" % (s(S_T), s(S_T)))
    k("s_add_u32 %s, %s, 128" % (s(S_T), s(S_T)))
    k("v_add_u32 %s, %s, v3" % (v(XF[0]), s(S_T3)))
    k("v_add_u32 %s, %s, v3" % (v(XF[0] + 1), s(S_T)))
    k("s_mov_b32 exec_lo, 0x00030003")
    k("s_mov_b32 exec_hi, 0x00030003")
    k("ds_write_b128 %s, %s" % (v(XF[0]), v(CSA, 4)))
    k("ds_write_b128 %s, %s" % (v(XF[0] + 1), v(CSK, 4)))
    k("s_mov_b64 exec, -1")
    k("s_waitcnt lgkmcnt(0)")
    k("s_barrier")
    epilogue(k)


def stats_from_lds(k, s_tile, rs, rm, tmp):
    k("s_lshl_b32 %s, %s, 9" % (s(S_T), s(s_tile)))
    k("s_add_u32 %s, %s, %d" % (s(S_T), s(S_T), L_ST))
    k("v_lshl_add_u32 v3, v1, 2, %s" % s(S_T))
    k("ds_read_b32 %s, v3" % v(rm))
    k("ds_read_b32 %s, v3 offset:128" % v(rs))
    k("ds_read_b32 %s, v3 offset:256" % v(tmp))
    k("ds_read_b32 %s, v3 offset:384" % v(tmp + 1))
    k("s_waitcnt lgkmcnt(0)")
    k("v_add_f32 %s, %s, %s" % (v(rm), v(rm), v(tmp)))
    k("v_add_f32 %s, %s, %s" % (v(rs), v(rs), v(tmp + 1)))
    k("v_mul_f32 %s, 0x%x, %s" % (v(rm), f2u(1.0 / 512), v(rm)))
    k("v_mul_f32 %s, 0x%x, %s" % (v(rs), f2u(1.0 / 512), v(rs)))
    k("v_fma_f32 %s, -%s, %s, %s" % (v(rs), v(rm), v(rm), v(rs)))
    k("v_max_f32 %s, 0, %s" % (v(rs), v(rs)))
    k("v_add_f32 %s, 0x%x, %s" % (v(rs), f2u(1e-5), v(rs)))
    k("v_rsq_f32 %s, %s" % (v(rs), v(rs)))
    k("s_nop 0")
    k("v_mul_f32 %s, %s, %s" % (v(rm), v(rm), v(rs)))


def epilogue(k):
    cq = 0.25 * LOG2E
    RS, RM = 10, 11
    T0 = 24
    h16, a1, a2, a3, t1, t2 = 4, 5, 6, 7, 8, 9
    k("v_lshlrev_b32 %s, 4, v2" % v(h16))
    k("s_lshr_b32 %s, %s, 1" % (s(S_T2), s(S_W)))
    k("s_lshl_b32 %s, %s, 9" % (s(S_T3), s(S_T2)))
    k("s_add_u32 %s, %s, %d" % (s(S_T3), s(S_T3), L_CS))
    k("v_add_u32 v12, %s, %s" % (s(S_T3), v(h16)))
    for g in range(4):
        k("ds_read_b128 %s, v12 offset:%d" % (v(T0 + 4 * g, 4), g * 32))
    k("s_and_b32 %s, %s, 1" % (s(S_U), s(S_W)))
    stats_from_lds(k, S_U, RS, RM, 14)
    k("s_lshl_b32 %s, %s, 8" % (s(S_T), s(S_W)))
    k("s_add_u32 %s, %s, %d" % (s(S_T), s(S_T), L_RS))
    k("v_lshl_add_u32 v3, v1, 2, %s" % s(S_T))
    k("ds_write_b32 v3, %s" % v(RS))
    k("ds_write_b32 v3, %s offset:128" % v(RM))
    k("v_add_u32 v13, %s, %s" % (s(S_T), v(h16)))
    k("s_lshl_b32 %s, %s, 1" % (s(S_T2), s(S_RB)))
    k("s_add_u32 %s, %s, %s" % (s(S_T2), s(S_T2), s(S_U)))
    k("s_lshl_b32 %s, %s, 2" % (s(S_T3), s(S_CT)))
    k("s_and_b32 %s, %s, 2" % (s(S_T), s(S_W)))
    k("s_add_u32 %s, %s, %s" % (s(S_T3), s(S_T3), s(S_T)))
    k("v_add_u32 %s, %s, v2" % (v(t1), s(S_T3)))
    k("v_lshlrev_b32 %s, 4, v1" % v(t2))
    k("v_lshl_add_u32 %s, %s, 16, %s" % (v(a1), v(t1), v(t2)))
    k("s_lshl_b32 %s, %s, 10" % (s(S_T), s(S_T2)))
    k("v_add_u32 %s, %s, %s" % (v(a1), s(S_T), v(a1)))
    k("v_lshl_add_u32 %s, %s, 17, %s" % (v(a2), v(t1), v(t2)))
    k("s_lshl_b32 %s, %s, 11" % (s(S_T), s(S_T2)))
    k("s_add_u32 %s, %s, 0x%x" % (s(S_T), s(S_T), WS_KV))
    k("v_add_u32 %s, %s, %s" % (v(a2), s(S_T), v(a2)))
    k("v_bfe_u32 %s, v1, 2, 1" % v(t1))
    k("v_lshrrev_b32 %s, 3, v1" % v(t2))
    k("v_and_b32 %s, 3, v1" % v(a3))
    k("v_and_b32 v14, 1, %s" % v(t2))
    k("v_lshrrev_b32 %s, 1, %s" % (v(t2), v(t2)))
    k("v_lshl_add_u32 %s, %s, 2, %s" % (v(a3), v(t2), v(a3)))
    k("v_lshl_add_u32 %s, v14, 3, %s" % (v(a3), v(a3)))
    k("v_lshlrev_b32 %s, 4, %s" % (v(a3), v(a3)))
    k("v_add_u32 %s, %s, %s" % (v(t1), s(S_T3), v(t1)))
    k("v_lshl_add_u32 %s, %s, 17, %s" % (v(a3), v(t1), v(a3)))
    k("v_lshl_add_u32 %s, v2, 8, %s" % (v(a3), v(a3)))
    k("s_add_u32 %s, %s, 1024" % (s(S_T), s(S_T)))
    k("v_add_u32 %s, %s, %s" % (v(a3), s(S_T), v(a3)))
    sc = " sc1" if "sc1" in OPT else ""
    KT = T0 + 16
    for g in range(4):
        k("ds_read_b128 %s, v12 offset:%d" % (v(KT + 4 * g, 4), 128 + g * 32))
    for g in range(4):
        k("ds_read_b128 %s, v12 offset:%d" % (v(104 + 4 * g, 4), 256 + g * 32))
    k("v_mul_f32 v14, 0x%x, %s" % (f2u(cq), v(RS)))
    k("v_mul_f32 v15, 0x%x, %s" % (f2u(cq), v(RM)))
    A = ACC
    k("s_waitcnt lgkmcnt(8)")
    for r in range(16):
        k("v_mul_f32 %s, %s, v15" % (v(T0 + r), v(T0 + r)))
    for r in range(16):
        k("v_fma_f32 %s, %s, v14, -%s" % (v(A + r), v(A + r), v(T0 + r)))
    for r in range(8):
        k("v_cvt_pk_bf16_f32 %s, %s, %s" % (v(A + r), v(A + 2 * r), v(A + 2 * r + 1)))
    k("buffer_store_dwordx4 %s, %s, %s, 0 offen%s" % (v(A, 4), v(a1), s(S_OD, 4), sc))
    k("buffer_store_dwordx4 %s, %s, %s, 0 offen offset:512%s" % (v(A + 4, 4), v(a1), s(S_OD, 4), sc))
    k("s_waitcnt lgkmcnt(0)")
    for g in range(4):
        k("ds_read_b128 %s, v13 offset:%d" % (v(T0 + 4 * g, 4), g * 32))
    A = ACC + 16
    for r in range(16):
        k("v_add_f32 %s, %s, %s" % (v(KT + r), v(KT + r), v(104 + r)))
    for g in range(4):
        k("ds_read_b128 %s, v13 offset:%d" % (v(104 + 4 * g, 4), 128 + g * 32))
    k("v_lshlrev_b32 v3, 2, v1")
    k("s_lshr_b32 %s, %s, 1" % (s(S_T), s(S_W)))
    k("s_lshl_b32 %s, %s, 9" % (s(S_T), s(S_T)))
    k("s_add_u32 %s, %s, %d" % (s(S_T), s(S_T), L_CS + 384))
    k("v_add_u32 v3, %s, v3" % s(S_T))
    k("ds_read_b32 v14, v3")
    for r in range(16):
        k("v_mul_f32 %s, %s, %s" % (v(KT + r), v(KT + r), v(RM)))
    for r in range(16):
        k("v_fma_f32 %s, %s, %s, -%s" % (v(A + r), v(A + r), v(RS), v(KT + r)))
    for r in range(8):
        k("v_cvt_pk_bf16_f32 %s, %s, %s" % (v(A + r), v(A + 2 * r), v(A + 2 * r + 1)))
    k("buffer_store_dwordx4 %s, %s, %s, 0 offen%s" % (v(A, 4), v(a2), s(S_OD, 4), sc))
    k("buffer_store_dwordx4 %s, %s, %s, 0 offen offset:512%s" % (v(A + 4, 4), v(a2), s(S_OD, 4), sc))
    A = ACC + 32
    k("s_waitcnt lgkmcnt(0)")
    for r in range(16):
        k("v_mul_f32 %s, %s, v14" % (v(104 + r), v(104 + r)))
    for r in range(16):
        k("v_fma_f32 %s, %s, %s, -%s" % (v(A + r), v(A + r), v(T0 + r), v(104 + r)))
    for r in range(8):
        k("v_cvt_pk_bf16_f32 %s, %s, %s" % (v(A + r), v(A + 2 * r), v(A + 2 * r + 1)))
    k("buffer_store_dwordx4 %s, %s, %s, 0 offen%s" % (v(A, 4), v(a3), s(S_OD, 4), sc))
    k("buffer_store_dwordx4 %s, %s, %s, 0 offen offset:512%s" % (v(A + 4, 4), v(a3), s(S_OD, 4), sc))


def issue_chunk(k, c):
    k("s_add_u32 m0, %s, %d" % (s(S_LD3), SLOT0 + (c % R) * SLOT))
    k("s_add_u32 %s, %s, %d" % (s(S_T2), s(S_WO), 32 * 3072))
    for i in range(3):
        k("buffer_load_dwordx4 %s, %s, %s offen lds" % (v(VQO + i), s(S_WD, 4), s(S_WO)))
        if i == 0:
            k("s_add_u32 m0, m0, 1024")
            k("s_cmp_ge_u32 %s, %s" % (s(S_T2), s(S_WEND)))
        if i == 1:
            k("s_cselect_b32 %s, %d, 0" % (s(S_T), 512 * 3072))
            k("s_add_u32 m0, m0, 1024")
            k("s_nop 0")
    k("s_sub_u32 %s, %s, %s" % (s(S_WO), s(S_T2), s(S_T)))


def loader(k, pre):
    k("s_setprio 3")
    issue_x(k, 0)
    k("s_sub_u32 %s, %s, 4" % (s(S_LD), s(S_W)))
    k("s_mov_b32 %s, 0x%x" % (s(S_T), (2 ** 32 + 383) // 384))
    for j in range(3):
        k("v_lshlrev_b32 v12, 4, v0")
        k("v_add_u32 v12, %d, v12" % (1024 * j))
        k("v_mul_hi_u32 v13, v12, %s" % s(S_T))
        k("v_mul_u32_u24 v14, 384, v13")
        k("v_sub_u32 v14, v12, v14")
        k("v_lshrrev_b32 v15, 7, v14")
        k("v_and_b32 v14, 127, v14")
        k("v_bfe_u32 v12, v13, 1, 1")
        k("v_lshlrev_b32 v12, 6, v12")
        k("v_xor_b32 v14, v14, v12")
        k("v_mul_u32_u24 v13, 3072, v13")
        k("v_lshl_add_u32 v13, v15, 10, v13")
        k("v_add_u32 %s, v13, v14" % v(VQO + j))
    k("s_mul_i32 %s, %s, 3072" % (s(S_LD3), s(S_LD)))
    k("s_mul_i32 %s, %s, %d" % (s(S_WO), s(S_LD), 8 * 3072))
    k("s_lshl_b32 %s, %s, 7" % (s(S_T), s(S_CT)))
    k("s_add_u32 %s, %s, %s" % (s(S_WO), s(S_WO), s(S_T)))
    k("s_add_u32 %s, %s, %d" % (s(S_WEND), s(S_WO), 512 * 3072))
    k("s_mul_i32 %s, %s, %d" % (s(S_T), s(S_ROT), 4 * 32 * 3072))
    k("s_add_u32 %s, %s, %s" % (s(S_WO), s(S_WO), s(S_T)))
    log = ["x"] * 2

    def chunk(c):
        issue_chunk(k, c)
        log.extend([c] * 3)

    def younger(c):
        return len(log) - 1 - max(i for i, e in enumerate(log) if e == c)

    chunk(0)
    k("s_waitcnt vmcnt(%d)" % younger(0))
    k("s_barrier")
    k("s_setprio 1")
    for j in range(1, 4):
        chunk(j)
        issue_x(k, j)
        log.extend([("x", j)] * 2)
    AHEAD = R - 2
    nxt = 4
    lane_helpers(k)
    k("s_and_b32 %s, %s, 1" % (s(S_U), s(S_LD)))
    xaddr_base(k, S_U)
    k("s_lshr_b32 %s, %s, 1" % (s(S_T), s(S_LD)))
    k("s_lshl_b32 %s, %s, 15" % (s(S_T), s(S_T)))
    k("v_xor_b32 v5, %s, %s" % (s(S_T), v(VA0)))
    for r in range(4):
        k("v_mov_b32 %s, 0" % v(48 + r))
    k("v_mov_b32 v52, 0x3f803f80")

    def burst(b):
        for i in range(4):
            st_ = 4 * b + i
            k("v_xor_b32 v53, 0x%x, v5" % (((st_ & 7) << 5) | ((st_ >> 3) << 14)))
            k("ds_read_b128 %s, v53" % v(16 + 4 * i, 4))
        k("s_waitcnt lgkmcnt(0)")
        k("s_setprio 3")
        for r in range(16):
            k("v_dot2c_f32_bf16 %s, v52, %s" % (v(48 + (r & 1)), v(16 + r)))
            k("v_dot2c_f32_bf16 %s, %s, %s" % (v(50 + (r & 1)), v(16 + r), v(16 + r)))
        k("s_setprio 1")

    for c in range(1, 17):
        need = younger(c) if c < 16 else 0
        if c in (3, 4):
            need = min(need, younger(("x", c - 2)))
        if c == 4:
            need = min(need, younger(("x", 3)))
        k("s_waitcnt vmcnt(%d)" % need)
        k("s_barrier")
        n_issue = 2 if c <= 2 else 1
        for _ in range(n_issue):
            if nxt < 16 and nxt <= c + AHEAD:
                chunk(nxt)
                nxt += 1
        if 11 <= c <= 14 and "nostat" not in OPT:
            burst(c - 11)
    k("s_nop 2")
    for r in (48, 50):
        k("v_add_f32 %s, %s, %s" % (v(r), v(r), v(r + 1)))
        k("v_mov_b32 %s, %s" % (v(r + 1), v(r)))
        k("s_nop 1")
        k("v_permlane32_swap_b32 %s, %s" % (v(r + 1), v(r)))
        k("s_nop 1")
        k("v_add_f32 %s, %s, %s" % (v(r), v(r), v(r + 1)))
    k("s_and_b32 %s, %s, 1" % (s(S_T), s(S_LD)))
    k("s_lshl_b32 %s, %s, 9" % (s(S_T), s(S_T)))
    k("s_lshr_b32 %s, %s, 1" % (s(S_T2), s(S_LD)))
    k("s_lshl_b32 %s, %s, 8" % (s(S_T2), s(S_T2)))
    k("s_add_u32 %s, %s, %s" % (s(S_T), s(S_T), s(S_T2)))
    k("s_add_u32 %s, %s, %d" % (s(S_T), s(S_T), L_ST))
    k("v_lshl_add_u32 v3, v1, 2, %s" % s(S_T))
    k("ds_write_b32 v3, v48")
    k("ds_write_b32 v3, v50 offset:128")
    k("s_waitcnt lgkmcnt(0)")
    k("s_barrier")
    lane_helpers(k)
    k("s_and_b32 %s, %s, 1" % (s(S_U), s(S_LD)))
    xaddr_base(k, S_U)
    k("s_lshl_b32 %s, %s, 2" % (s(S_KC), s(S_CT)))
    k("s_and_b32 %s, %s, 2" % (s(S_T), s(S_LD)))
    k("s_add_u32 %s, %s, %s" % (s(S_KC), s(S_KC), s(S_T)))
    k("s_and_b32 %s, %s, 7" % (s(S_T), s(S_KC)))
    k("s_lshl_b32 %s, %s, 5" % (s(S_T), s(S_T)))
    k("s_lshr_b32 %s, %s, 3" % (s(S_T2), s(S_KC)))
    k("s_lshl_b32 %s, %s, 14" % (s(S_T2), s(S_T2)))
    k("s_or_b32 %s, %s, %s" % (s(S_T), s(S_T), s(S_T2)))
    k("v_xor_b32 v6, %s, %s" % (s(S_T), v(VA0)))
    k("v_xor_b32 v7, 32, v6")
    k("ds_read_b128 v[16:19], v6")
    k("ds_read_b128 v[20:23], v7")
    RS, RM = 10, 12
    stats_from_lds(k, S_U, RS, RM, 14)
    k("v_mov_b32 %s, %s" % (v(RS + 1), v(RS)))
    k("v_sub_f32 %s, 0, %s" % (v(RM), v(RM)))
    k("v_mov_b32 %s, %s" % (v(RM + 1), v(RM)))
    k("v_mov_b32 v14, 0xffff0000")
    for x in range(16, 24):
        k("v_lshlrev_b32 v24, 16, %s" % v(x))
        k("v_and_b32 v25, v14, %s" % v(x))
        k("v_pk_fma_f32 v[24:25], v[24:25], %s, %s" % (v(RS, 2), v(RM, 2)))
        k("v_cvt_pk_bf16_f32 %s, v24, v25" % v(x))
    k("s_lshl_b32 %s, %s, 1" % (s(S_T), s(S_RB)))
    k("s_add_u32 %s, %s, %s" % (s(S_T), s(S_T), s(S_U)))
    k("s_lshl_b32 %s, %s, 15" % (s(S_T), s(S_T)))
    k("s_lshl_b32 %s, %s, 10" % (s(S_T2), s(S_KC)))
    k("s_add_u32 %s, %s, %s" % (s(S_T), s(S_T), s(S_T2)))
    k("s_add_u32 %s, %s, 0x%x" % (s(S_T), s(S_T), WS_XN))
    k("v_lshlrev_b32 v3, 4, v0")
    sc = " sc1" if "sc1" in OPT else ""
    k("buffer_store_dwordx4 v[16:19], v3, %s, %s offen%s" % (s(S_OD, 4), s(S_T), sc))
    k("buffer_store_dwordx4 v[20:23], v3, %s, %s offen offset:1024%s" % (s(S_OD, 4), s(S_T), sc))


def finish(k):
    k("s_waitcnt vmcnt(0)")
    stamp(k, 1, S_WS, S_W)
    prof_mark(k, 5)
    prof_rt(k, 6)
    prof_store(k, S_WS, S_W, 28)
    k("s_endpgm")


def gen(k, name, pre):
    k.kernel_begin(name)
    entry(k, pre, name)
    compute(k, pre)
    finish(k)
    k.label(pre + "_loader")
    loader(k, pre)
    finish(k)
    k.label(pre + "_exit")
    k.kernel_end(name, NV, NV)
    return 256, LDS_BYTES
```

```python
import common
from common import *

OPT = set()
XBYTES = 65536
L_PART = XBYTES
L_BI = L_PART + 2048
SLOT0 = XBYTES + 3072
SLOT = 16384
R = 5
SLOTE = SLOT0 + R * SLOT
LDS_BYTES = SLOTE
WS_XN = 20 << 20

S_X, S_WQ, S_WS, S_B1, S_W1 = 4, 6, 8, 10, 40
S_XD, S_WD, S_OD = 12, 16, 20
S_W, S_RB, S_CT, S_T, S_T2, S_C, S_SLOT, S_WO, S_LD = 24, 25, 26, 27, 28, 29, 30, 32, 33
S_RSLOT, S_T3, S_ROT, S_CK, S_KC, S_U, S_NCH, S_WEND, S_LD3, S_LD4 = 35, 36, 37, 38, 39, 42, 43, 44, 45, 46

VA0, VXA, NX, NS, NQ, NT = 4, 5, 16, 48, 50, 52
VWQ, VWF = 6, 7
VW2 = 11
VX = 19
XF = [20, 24]
WF = [28, 44]
ACC = 60
NV = 128
VQO, VFO = 6, 9


def entry(k, pre, name):
    k("s_cmp_ge_u32 s2, 256")
    k("s_cbranch_scc1 %s_exit" % pre)
    prof_start(k)
    k("s_load_dwordx2 %s, s[0:1], %d" % (s(S_X, 2), KA_X))
    k("s_load_dwordx2 %s, s[0:1], %d" % (s(S_WQ, 2), KA_WQKV))
    k("s_load_dwordx2 %s, s[0:1], %d" % (s(S_W1, 2), KA_W1))
    k("s_load_dwordx2 %s, s[0:1], %d" % (s(S_WS, 2), KA_WS))
    k("s_load_dwordx2 %s, s[0:1], %d" % (s(S_B1, 2), KA_B1))
    k("v_lshrrev_b32 v1, 6, v0")
    k("v_and_b32 v0, 63, v0")
    k("v_readfirstlane_b32 %s, v1" % s(S_W))
    if "nopf" not in OPT:
        k("s_getpc_b64 s[50:51]")
        k.label(pre + "_pc")
        k("s_sub_u32 s50, s50, %s_pc-%s" % (pre, name))
        k("s_subb_u32 s51, s51, 0")
        k("s_lshr_b32 s52, s2, 3")
        k("s_lshl_b32 s52, s52, 10")
        k("v_lshl_add_u32 v3, v0, 4, s52")
        k("v_cmp_gt_u32 vcc, L_text_end-%s-16, v3" % name)
        k("s_cmp_eq_u32 %s, 7" % s(S_W))
        k("s_cselect_b64 s[52:53], vcc, 0")
        k("s_and_saveexec_b64 s[54:55], s[52:53]")
        k("s_cbranch_execz %s_npf" % pre)
        k("global_load_dwordx4 v[112:115], v3, s[50:51]")
        k.label(pre + "_npf")
        k("s_mov_b64 exec, s[54:55]")
    if "mapx" in OPT:
        k("s_lshr_b32 %s, s2, 3" % s(S_RB))
        k("s_and_b32 %s, %s, 7" % (s(S_ROT), s(S_RB)))
        k("s_and_b32 %s, s2, 7" % s(S_CT))
        k("s_mov_b32 %s, 0" % s(S_T))
    else:
        k("s_lshr_b32 %s, s2, 3" % s(S_T))
        k("s_and_b32 %s, %s, 7" % (s(S_ROT), s(S_T)))
        k("s_and_b32 %s, s2, 3" % s(S_RB))
        k("s_lshl_b32 %s, %s, 3" % (s(S_RB), s(S_RB)))
        k("s_add_u32 %s, %s, %s" % (s(S_RB), s(S_RB), s(S_ROT)))
        k("s_lshr_b32 %s, %s, 3" % (s(S_T), s(S_T)))
        k("s_bfe_u32 %s, s2, 0x10002" % s(S_CT))
        k("s_lshl_b32 %s, %s, 2" % (s(S_CT), s(S_CT)))
        k("s_add_u32 %s, %s, %s" % (s(S_CT), s(S_CT), s(S_T)))
    if "n12" in OPT:
        k("s_add_u32 %s, %s, %s" % (s(S_ROT), s(S_ROT), s(S_T)))
        k("s_and_b32 %s, %s, 3" % (s(S_ROT), s(S_ROT)))
        k("s_lshl_b32 %s, %s, 2" % (s(S_ROT), s(S_ROT)))
    else:
        k("s_lshl_b32 %s, %s, 1" % (s(S_ROT), s(S_ROT)))
    k("s_lshl_b32 %s, %s, 1" % (s(S_T), s(S_T)))
    k("s_add_u32 %s, %s, %s" % (s(S_T), s(S_T), s(S_W)))
    k("s_and_b32 %s, %s, 7" % (s(S_T), s(S_T)))
    k("s_lshl_b32 %s, %s, 3" % (s(S_T3), s(S_T)))
    k("v_lshlrev_b32 v3, 4, v0")
    k("s_lshl_b32 %s, %s, 6" % (s(S_T), s(S_RB)))
    k("s_add_u32 %s, %s, %s" % (s(S_T), s(S_T), s(S_T3)))
    k("s_lshl_b32 %s, %s, 10" % (s(S_T2), s(S_T)))
    k("s_lshl_b32 m0, %s, 10" % s(S_T3))
    k("s_and_b32 %s, %s, 8" % (s(S_T3), s(S_T3)))
    k("s_waitcnt lgkmcnt(0)")
    stamp(k, 0, S_WS, S_W)
    k.srd(S_XD, S_X, 2048 * 1024)
    if "n12" in OPT:
        k("s_cmp_ge_u32 %s, 8" % s(S_W))
        k("s_cbranch_scc1 %s_nox" % pre)
    for i in range(8):
        k("s_add_u32 %s, %s, %d" % (s(S_T), s(S_T3), i))
        k("s_lshl_b32 %s, %s, 4" % (s(S_T), s(S_T)))
        k("v_xor_b32 v4, %s, v3" % s(S_T))
        k("buffer_load_dwordx4 v4, %s, %s offen lds" % (s(S_XD, 4), s(S_T2)))
        if i < 7:
            k("s_add_u32 m0, m0, 1024")
            k("s_add_u32 %s, %s, 1024" % (s(S_T2), s(S_T2)))
    if "n12" in OPT:
        k.label(pre + "_nox")
    if "p2" not in OPT and "p3" not in OPT:
        prof_mark(k, 2)
    k("v_and_b32 v1, 31, v0")
    k("v_lshrrev_b32 v2, 5, v0")
    k.srd(S_OD, S_WS, WS_END if "xn" not in OPT else WS_XN + (2 << 20))
    k.srd(S_WD, S_WQ, 512 * 3072)
    for r in range(6, 11):
        k("v_mov_b32 %s, 0" % v(r))
    if "poison" in OPT:
        k("s_lshr_b32 %s, s2, 2" % s(S_T))
        k("s_mul_i32 %s, %s, %d" % (s(S_T), s(S_T), WS_HO_ROW))
        k("s_and_b32 %s, s2, 3" % s(S_T2))
        k("s_lshl_b32 %s, %s, 3" % (s(S_T2), s(S_T2)))
        k("s_add_u32 %s, %s, %s" % (s(S_T2), s(S_T2), s(S_W)))
        k("s_lshl_b32 %s, %s, 10" % (s(S_T2), s(S_T2)))
        k("s_add_u32 %s, %s, %s" % (s(S_T), s(S_T), s(S_T2)))
        k("s_add_u32 %s, %s, 0x%x" % (s(S_T), s(S_T), WS_HO + 112 * 1024))
        k("v_lshlrev_b32 v4, 4, v0")
        for r in range(4):
            k("v_mov_b32 %s, -1" % v(12 + r))
        k("buffer_store_dwordx4 v[12:15], v4, %s, %s offen" % (s(S_OD, 4), s(S_T)))
    k("s_cmp_lt_u32 s2, 48")
    k("s_cbranch_scc0 %s_nz" % pre)
    k("s_cmp_eq_u32 %s, 0" % s(S_W))
    k("s_cbranch_scc0 %s_nz" % pre)
    k("s_lshl_b32 %s, s2, 8" % s(S_T))
    k("s_add_u32 %s, %s, 0x%x" % (s(S_T), s(S_T), WS_FLAG))
    k("v_lshl_add_u32 v4, v0, 2, %s" % s(S_T))
    k("v_mov_b32 v5, 0")
    k("global_store_dword v4, v5, %s" % s(S_WS, 2))
    k.label(pre + "_nz")
    if "n12" in OPT:
        k("s_cmp_ge_u32 %s, 8" % s(S_W))
        k("s_cbranch_scc1 %s_norm" % pre)
    k("s_cmp_ge_u32 %s, 4" % s(S_W))
    k("s_cbranch_scc1 %s_loader" % pre)


def xaddr_base(k, s_tile):
    k("s_lshl_b32 %s, %s, 15" % (s(S_T), s(s_tile)))
    k("v_and_b32 v3, 15, v1")
    k("v_xor_b32 v3, v3, v2")
    k("v_lshlrev_b32 v3, 4, v3")
    k("v_lshl_add_u32 v3, v1, 10, v3")
    k("v_add_u32 %s, %s, v3" % (v(VA0), s(S_T)))


def normalise(k, pre, dma, younger):
    k("s_and_b32 %s, %s, 1" % (s(S_T2), s(S_W)))
    xaddr_base(k, S_T2)
    k("s_lshr_b32 %s, %s, 1" % (s(S_T3), s(S_W)))
    k("s_lshl_b32 %s, %s, 8" % (s(S_U), s(S_T3)))
    k("v_xor_b32 %s, %s, %s" % (v(VXA), s(S_U), v(VA0)))
    k("s_cmp_ge_u32 %s, 4" % s(S_W))
    k("s_cbranch_scc1 %s_nwl" % pre)
    k("s_waitcnt vmcnt(0)")
    k.label(pre + "_nwl")
    k("s_waitcnt vmcnt(%d)" % younger)
    k("s_barrier")
    if "n12" in OPT:
        k("s_cmp_ge_u32 %s, 8" % s(S_W))
        k("s_cbranch_scc1 %s_nosum" % pre)
    if "p2" not in OPT:
        prof_mark(k, 3)
    for i in range(8):
        k("v_xor_b32 %s, %d, %s" % (v(NT + 8 + i), 32 * i, v(VXA)))
    AD = NT + 8
    for i in range(8):
        k("ds_read_b128 %s, %s" % (v(NX + 4 * i, 4), v(AD + i)))
    for r in range(4):
        k("v_mov_b32 %s, 0" % v(NS + r))
    k("v_mov_b32 %s, 0x3f803f80" % v(NT))
    for i in range(8):
        k("s_waitcnt lgkmcnt(%d)" % (7 - i))
        for r in range(4):
            k("v_dot2c_f32_bf16 %s, %s, %s" % (v(NS + (r & 1)), v(NT), v(NX + 4 * i + r)))
            k("v_dot2c_f32_bf16 %s, %s, %s" % (v(NQ + (r & 1)), v(NX + 4 * i + r), v(NX + 4 * i + r)))
    k("s_nop 2")
    for r in (NS, NQ):
        k("v_add_f32 %s, %s, %s" % (v(r), v(r), v(r + 1)))
        k("v_mov_b32 %s, %s" % (v(r + 1), v(r)))
        k("s_nop 1")
        k("v_permlane32_swap_b32 %s, %s" % (v(r + 1), v(r)))
        k("s_nop 1")
        k("v_add_f32 %s, %s, %s" % (v(r), v(r), v(r + 1)))
    if "p3" in OPT:
        prof_mark(k, 2)

    def w1pf(first, n):
        k("s_lshr_b32 %s, s2, 3" % s(S_T))
        k("s_mul_i32 %s, %s, %d" % (s(S_T), s(S_T), 16 * 3584))
        k("s_mul_i32 %s, %s, 7168" % (s(S_T2), s(S_W)))
        k("s_add_u32 %s, %s, %s" % (s(S_T), s(S_T), s(S_T2)))
        k("v_lshlrev_b32 v3, 4, v0")
        for j in range(first, first + n):
            k("s_add_u32 %s, %s, %d" % (s(S_T2), s(S_T), j * 1024))
            k("buffer_load_dwordx4 v[112:115], v3, s[56:59], %s offen" % s(S_T2))

    if "w1n" in OPT:
        k.srd(56, S_W1, 512 * 3584)
        w1pf(0, 4)
    k("s_cmp_ge_u32 %s, 4" % s(S_W))
    k("s_cbranch_scc0 %s_nnd" % pre)
    for grp in dma:
        for ins in grp:
            k(ins)
    k.label(pre + "_nnd")
    k("v_mov_b32 %s, %s" % (v(NS + 1), v(NQ)))
    k("s_lshl_b32 %s, %s, 8" % (s(S_T), s(S_W)))
    k("s_add_u32 %s, %s, %d" % (s(S_T), s(S_T), L_PART))
    k("v_lshl_add_u32 v3, v1, 3, %s" % s(S_T))
    k("ds_write_b64 v3, %s" % v(NS, 2))
    if "n12" in OPT:
        k.label(pre + "_nosum")
    k("s_waitcnt lgkmcnt(0)")
    k("s_barrier")
    if "p3" in OPT:
        prof_mark(k, 4)
    k("s_and_b32 %s, %s, 1" % (s(S_T), s(S_W)))
    k("s_lshl_b32 %s, %s, 8" % (s(S_T), s(S_T)))
    k("s_add_u32 %s, %s, %d" % (s(S_T), s(S_T), L_PART))
    k("v_lshl_add_u32 v3, v1, 3, %s" % s(S_T))
    PT = NT + 16
    for q in range(4):
        k("ds_read_b64 %s, v3 offset:%d" % (v(PT + 2 * q, 2), q * 512))
    k("s_waitcnt lgkmcnt(0)")
    k("v_add_f32 %s, %s, %s" % (v(PT), v(PT), v(PT + 2)))
    k("v_add_f32 %s, %s, %s" % (v(PT + 1), v(PT + 1), v(PT + 3)))
    k("v_add_f32 %s, %s, %s" % (v(PT + 4), v(PT + 4), v(PT + 6)))
    k("v_add_f32 %s, %s, %s" % (v(PT + 5), v(PT + 5), v(PT + 7)))
    k("v_add_f32 %s, %s, %s" % (v(NS), v(PT), v(PT + 4)))
    k("v_add_f32 %s, %s, %s" % (v(NQ), v(PT + 1), v(PT + 5)))
    k("v_mul_f32 %s, 0x%x, %s" % (v(NS), f2u(1.0 / 512), v(NS)))
    k("v_mul_f32 %s, 0x%x, %s" % (v(NQ), f2u(1.0 / 512), v(NQ)))
    k("v_fma_f32 %s, -%s, %s, %s" % (v(NQ), v(NS), v(NS), v(NQ)))
    k("v_max_f32 %s, 0, %s" % (v(NQ), v(NQ)))
    k("v_add_f32 %s, 0x%x, %s" % (v(NQ), f2u(1e-5), v(NQ)))
    k("v_rsq_f32 %s, %s" % (v(NQ), v(NQ)))
    MK, TP = NT + 24, NT + 26
    k("v_mov_b32 %s, 0xffff0000" % v(MK))
    k("v_mul_f32 %s, %s, %s" % (v(NS), v(NS), v(NQ)))
    k("v_mov_b32 %s, %s" % (v(NQ + 1), v(NQ)))
    k("v_sub_f32 %s, 0, %s" % (v(NS), v(NS)))
    k("v_mov_b32 %s, %s" % (v(NS + 1), v(NS)))
    if "n12" in OPT:
        def norm_frag(tag, n):
            k("s_lshl_b32 %s, %s, 5" % (s(S_T), s(S_KC)))
            k("v_xor_b32 %s, %s, %s" % (v(AD), s(S_T), v(VA0)))
            k("ds_read_b128 %s, %s" % (v(NX, 4), v(AD)))
            if n == 2:
                k("v_xor_b32 %s, 32, %s" % (v(AD + 1), v(AD)))
                k("ds_read_b128 %s, %s" % (v(NX + 4, 4), v(AD + 1)))
            for i in range(n):
                k("s_waitcnt lgkmcnt(%d)" % (n - 1 - i))
                for r in range(4):
                    x = NX + 4 * i + r
                    t = TP + 2 * (r & 1)
                    k("v_lshlrev_b32 %s, 16, %s" % (v(t), v(x)))
                    k("v_and_b32 %s, %s, %s" % (v(t + 1), v(MK), v(x)))
                    if r > 0:
                        tp = TP + 2 * ((r - 1) & 1)
                        k("v_cvt_pk_bf16_f32 %s, %s, %s" % (v(x - 1), v(tp), v(tp + 1)))
                    k("v_pk_fma_f32 %s, %s, %s, %s" % (v(t, 2), v(t, 2), v(NQ, 2), v(NS, 2)))
                k("v_cvt_pk_bf16_f32 %s, %s, %s" % (v(NX + 4 * i + 3), v(TP + 2), v(TP + 3)))
                k("ds_write_b128 %s, %s" % (v(AD + i), v(NX + 4 * i, 4)))
            k("s_lshr_b32 %s, %s, 2" % (s(S_T), s(S_KC)))
            k("s_cmp_eq_u32 %s, %s" % (s(S_T), s(S_CT)))
            k("s_cbranch_scc0 %s_nx%s" % (pre, tag))
            k("s_lshl_b32 %s, %s, 10" % (s(S_T), s(S_KC)))
            k("s_add_u32 %s, %s, %s" % (s(S_T), s(S_T), s(S_RSLOT)))
            for i in range(n):
                k("buffer_store_dwordx4 %s, v3, %s, %s offen offset:%d" % (v(NX + 4 * i, 4), s(S_OD, 4), s(S_T), 1024 * i))
            k.label("%s_nx%s" % (pre, tag))

        k("s_and_b32 %s, %s, 1" % (s(S_T), s(S_W)))
        k("s_lshl_b32 %s, %s, 1" % (s(S_T2), s(S_RB)))
        k("s_add_u32 %s, %s, %s" % (s(S_T), s(S_T), s(S_T2)))
        k("s_lshl_b32 %s, %s, 15" % (s(S_RSLOT), s(S_T)))
        k("s_add_u32 %s, %s, 0x%x" % (s(S_RSLOT), s(S_RSLOT), WS_XN))
        k("v_lshlrev_b32 v3, 4, v0")
        k("s_cmp_ge_u32 %s, 8" % s(S_W))
        k("s_cbranch_scc1 %s_nzr" % pre)
        k("s_lshl_b32 %s, %s, 1" % (s(S_KC), s(S_ROT)))
        k("s_and_b32 %s, %s, 6" % (s(S_T), s(S_W)))
        k("s_add_u32 %s, %s, %s" % (s(S_KC), s(S_KC), s(S_T)))
        norm_frag("a", 2)
        k("s_branch %s_ndone" % pre)
        k.label(pre + "_nzr")
        k("s_setprio 3")

        def step_of(f, dst):
            k("s_lshl_b32 %s, %s, 1" % (s(dst), s(S_ROT)))
            k("s_add_u32 %s, %s, %d" % (s(dst), s(dst), 8 * (1 + (f >> 2))))
            k("s_and_b32 %s, %s, 31" % (s(dst), s(dst)))
            k("s_add_u32 %s, %s, %s" % (s(dst), s(dst), s(S_U)))
            if f & 3:
                k("s_add_u32 %s, %s, %d" % (s(dst), s(dst), f & 3))

        k("s_and_b32 %s, %s, 2" % (s(S_U), s(S_W)))
        k("s_lshl_b32 %s, %s, 1" % (s(S_U), s(S_U)))

        def fetch(f):
            step_of(f, S_T2)
            k("s_lshl_b32 %s, %s, 5" % (s(S_T2), s(S_T2)))
            k("v_xor_b32 %s, %s, %s" % (v(AD + (f & 1)), s(S_T2), v(VA0)))
            k("ds_read_b128 %s, %s" % (v(NX + 4 * (f & 1), 4), v(AD + (f & 1))))

        fetch(0)
        for f in range(12):
            b = f & 1
            k("s_waitcnt lgkmcnt(0)")
            for r in range(4):
                x = NX + 4 * b + r
                t = TP + 2 * (r & 1)
                k("v_lshlrev_b32 %s, 16, %s" % (v(t), v(x)))
                k("v_and_b32 %s, %s, %s" % (v(t + 1), v(MK), v(x)))
                if r > 0:
                    tp = TP + 2 * ((r - 1) & 1)
                    k("v_cvt_pk_bf16_f32 %s, %s, %s" % (v(x - 1), v(tp), v(tp + 1)))
                k("v_pk_fma_f32 %s, %s, %s, %s" % (v(t, 2), v(t, 2), v(NQ, 2), v(NS, 2)))
            k("v_cvt_pk_bf16_f32 %s, %s, %s" % (v(NX + 4 * b + 3), v(TP + 2), v(TP + 3)))
            k("ds_write_b128 %s, %s" % (v(AD + b), v(NX + 4 * b, 4)))
            if f < 11:
                fetch(f + 1)
            step_of(f, S_KC)
            k("s_lshr_b32 %s, %s, 2" % (s(S_T), s(S_KC)))
            k("s_cmp_eq_u32 %s, %s" % (s(S_T), s(S_CT)))
            k("s_cbranch_scc0 %s_nxb%d" % (pre, f))
            k("s_lshl_b32 %s, %s, 10" % (s(S_T), s(S_KC)))
            k("s_add_u32 %s, %s, %s" % (s(S_T), s(S_T), s(S_RSLOT)))
            k("buffer_store_dwordx4 %s, v3, %s, %s offen" % (v(NX + 4 * b, 4), s(S_OD, 4), s(S_T)))
            k.label("%s_nxb%d" % (pre, f))
            k("s_barrier")
        k("s_waitcnt lgkmcnt(0)")
        for b in range(5):
            k("s_barrier")
        finish(k)
        k.label(pre + "_ndone")
    else:
        for i in range(8):
            for r in range(4):
                x = NX + 4 * i + r
                t = TP + 2 * (r & 1)
                k("v_lshlrev_b32 %s, 16, %s" % (v(t), v(x)))
                k("v_and_b32 %s, %s, %s" % (v(t + 1), v(MK), v(x)))
                if r > 0:
                    tp = TP + 2 * ((r - 1) & 1)
                    k("v_cvt_pk_bf16_f32 %s, %s, %s" % (v(x - 1), v(tp), v(tp + 1)))
                k("v_pk_fma_f32 %s, %s, %s, %s" % (v(t, 2), v(t, 2), v(NQ, 2), v(NS, 2)))
            tp = TP + 2
            k("v_cvt_pk_bf16_f32 %s, %s, %s" % (v(NX + 4 * i + 3), v(tp), v(tp + 1)))
            k("ds_write_b128 %s, %s" % (v(AD + i), v(NX + 4 * i, 4)))
    if "p3" in OPT:
        prof_mark(k, 5)
    if "xn" in OPT and "n12" not in OPT:
        k("s_lshr_b32 %s, %s, 1" % (s(S_T), s(S_CT)))
        k("s_lshr_b32 %s, %s, 1" % (s(S_T2), s(S_W)))
        k("s_cmp_eq_u32 %s, %s" % (s(S_T), s(S_T2)))
        k("s_cbranch_scc0 %s_noxn%s" % (pre, ""))
        k("s_and_b32 %s, %s, 1" % (s(S_T), s(S_W)))
        k("s_lshl_b32 %s, %s, 1" % (s(S_T2), s(S_RB)))
        k("s_add_u32 %s, %s, %s" % (s(S_T), s(S_T), s(S_T2)))
        k("s_lshl_b32 %s, %s, 15" % (s(S_T), s(S_T)))
        k("s_lshl_b32 %s, %s, 12" % (s(S_T2), s(S_CT)))
        k("s_add_u32 %s, %s, %s" % (s(S_T), s(S_T), s(S_T2)))
        k("s_add_u32 %s, %s, 0x%x" % (s(S_T), s(S_T), WS_XN))
        k("v_lshlrev_b32 v3, 4, v0")
        k("s_bitcmp1_b32 %s, 0" % s(S_CT))
        k("s_cbranch_scc1 %s_xnhi%s" % (pre, ""))
        for i in range(4):
            k("buffer_store_dwordx4 %s, v3, %s, %s offen offset:%d" % (v(NX + 4 * i, 4), s(S_OD, 4), s(S_T), 1024 * i))
        k("s_branch %s_noxn%s" % (pre, ""))
        k.label("%s_xnhi%s" % (pre, ""))
        for i in range(4):
            k("buffer_store_dwordx4 %s, v3, %s, %s offen offset:%d" % (v(NX + 16 + 4 * i, 4), s(S_OD, 4), s(S_T), 1024 * i))
        k.label("%s_noxn%s" % (pre, ""))
    k("s_waitcnt lgkmcnt(0)")


def next_slot(k, r):
    k("s_add_u32 %s, %s, %d" % (s(r), s(r), SLOT))
    k("s_cmp_ge_u32 %s, %d" % (s(r), SLOTE))
    k("s_cselect_b32 %s, %d, %s" % (s(r), SLOT0, s(r)))


def wfrag_addr(k):
    t = ACC
    r, b, h, g, x, y = t, t + 1, t + 2, t + 3, t + 4, t + 5
    k("s_lshr_b32 %s, %s, 1" % (s(S_T), s(S_W)))
    k("v_bfe_u32 %s, v0, 2, 2" % v(r))
    k("v_and_b32 %s, 3, v0" % v(b))
    k("v_bfe_u32 %s, v0, 4, 1" % v(h))
    k("v_lshl_add_u32 %s, %s, 2, %s" % (v(b), v(h), v(b)))
    k("v_and_b32 %s, 1, %s" % (v(h), v(b)))
    k("v_lshrrev_b32 %s, 1, %s" % (v(g), v(b)))
    k("v_lshl_add_u32 %s, v2, 3, %s" % (v(x), v(r)))
    k("v_lshl_add_u32 %s, %s, 2, %s" % (v(b), v(h), v(g)))
    k("v_mul_u32_u24 %s, 384, %s" % (v(y), v(x)))
    k("v_lshl_add_u32 %s, %s, 3, %s" % (v(y), v(b), v(y)))
    k("v_lshrrev_b32 %s, 1, %s" % (v(b), v(r)))
    k("v_xor_b32 %s, %s, %s" % (v(b), s(S_T), v(b)))
    k("v_lshl_add_u32 %s, %s, 6, %s" % (v(VWQ), v(b), v(y)))
    k("v_lshrrev_b32 %s, 1, %s" % (v(b), v(g)))
    k("v_and_b32 %s, 1, %s" % (v(g), v(g)))
    k("v_lshl_add_u32 %s, %s, 1, %s" % (v(g), v(h), v(g)))
    k("v_lshl_add_u32 %s, %s, 2, %s" % (v(b), v(b), v(g)))
    k("v_lshlrev_b32 %s, 9, %s" % (v(y), v(x)))
    k("v_lshl_add_u32 %s, %s, 3, %s" % (v(y), v(b), v(y)))
    k("s_lshl_b32 %s, %s, 8" % (s(S_T), s(S_T)))
    k("v_add_u32 %s, %s, %s" % (v(y), s(S_T), v(y)))
    for ft in range(4):
        k("v_xor_b32 %s, %d, %s" % (v(b), ft, v(r)))
        k("v_lshl_add_u32 %s, %s, 6, %s" % (v(VWF + ft), v(b), v(y)))


def compute_phase(k, pre, F):
    q = F == 3
    RB = 384 if q else 512
    NA = 1 if q else 4
    base = VWQ if q else VWF
    p = pre + ("Q" if q else "F")

    def wa(par, ft):
        return VW2 + 4 * par + (0 if q else ft)

    def slot_ops(par):
        return ["v_add_u32 %s, %s, %s" % (v(VW2 + 4 * par + j), s(S_SLOT), v(base + j)) for j in range(NA)]

    def x_ops(st):
        return ["v_xor_b32 %s, %s, %s" % (v(VX), s(S_U), v(VA0))] if st == 0 else ["v_xor_b32 %s, 32, %s" % (v(VX), v(VX))]

    def u_ops():
        return ["s_lshl_b32 %s, %s, 6" % (s(S_U), s(S_KC))]

    def kc_next():
        return ["s_add_u32 %s, %s, 1" % (s(S_KC), s(S_KC)), "s_and_b32 %s, %s, 15" % (s(S_KC), s(S_KC))]

    def rd_x(buf):
        return ["ds_read_b128 %s, %s" % (v(XF[buf], 4), v(VX))]

    def rd_w(par, st, buf, ft):
        off = st * 16 * RB + (ft * 128 if q else 0)
        return ["ds_read_b64_tr_b16 %s, %s offset:%d" % (v(WF[buf] + 4 * ft + 2 * u, 2), v(wa(par, ft)), off + u * 4 * RB) for u in range(2)]

    def mfma(buf, ft):
        d = v(ACC + 16 * ft, 16)
        if q and ft == 2:
            k("v_mfma_f32_32x32x16_bf16 %s, %s, %s, %s" % (d, v(XF[buf], 4), v(WF[buf] + 4 * ft, 4), d))
        else:
            k("v_mfma_f32_32x32x16_bf16 %s, %s, %s, %s" % (d, v(WF[buf] + 4 * ft, 4), v(XF[buf], 4), d))

    k("s_mov_b32 %s, %s" % (s(S_KC), s(S_ROT)))
    for ins in u_ops() + slot_ops(0) + x_ops(0) + rd_x(0) + sum((rd_w(0, 0, 0, ft) for ft in range(F)), []) + x_ops(1):
        k(ins)
    k("s_mov_b32 %s, 0" % s(S_C))
    k(".p2align 3")
    k.label(p + "_loop")
    VXN = VX + 0
    for par in range(2):
        for st in range(2):
            b, nb = st, 1 - st
            npar = par if st == 0 else 1 - par
            for ft in range(F):
                newer = 2 * (F - 1 - ft) + (0 if ft == 0 else 1 + 2 * ft)
                k("s_waitcnt lgkmcnt(%d)" % newer)
                mfma(b, ft)
                if ft == 0:
                    if st == 1:
                        k("s_barrier")
                    for ins in rd_x(nb):
                        k(ins)
                for ins in rd_w(npar, 1 - st, nb, ft):
                    k(ins)
                if ft == 0:
                    if st == 0:
                        for ins in kc_next() + u_ops() + x_ops(0):
                            k(ins)
                    else:
                        for ins in x_ops(1):
                            k(ins)
                if st == 0 and ft == 1:
                    next_slot(k, S_SLOT)
                if st == 0 and ft == F - 1:
                    for ins in slot_ops(1 - par):
                        k(ins)
    k("s_add_u32 %s, %s, 1" % (s(S_C), s(S_C)))
    k("s_cmp_lt_u32 %s, 8" % s(S_C))
    k("s_cbranch_scc1 %s_loop" % p)
    k("s_waitcnt lgkmcnt(0)")


def epilogue_q(k):
    cq = 0.25 * LOG2E
    a1, a2, a3, t1, t2 = 12, 13, 14, 15, 16
    k("s_lshl_b32 %s, %s, 1" % (s(S_T2), s(S_RB)))
    k("s_and_b32 %s, %s, 1" % (s(S_T), s(S_W)))
    k("s_add_u32 %s, %s, %s" % (s(S_T2), s(S_T2), s(S_T)))
    k("s_lshl_b32 %s, %s, 2" % (s(S_T3), s(S_CT)))
    k("s_and_b32 %s, %s, 2" % (s(S_T), s(S_W)))
    k("s_add_u32 %s, %s, %s" % (s(S_T3), s(S_T3), s(S_T)))
    k("v_add_u32 %s, %s, v2" % (v(t1), s(S_T3)))
    k("v_lshlrev_b32 %s, 4, v1" % v(t2))
    k("v_lshl_add_u32 %s, %s, 16, %s" % (v(a1), v(t1), v(t2)))
    k("s_lshl_b32 %s, %s, 10" % (s(S_T), s(S_T2)))
    k("v_add_u32 %s, %s, %s" % (v(a1), s(S_T), v(a1)))
    k("v_lshl_add_u32 %s, %s, 17, %s" % (v(a2), v(t1), v(t2)))
    k("s_lshl_b32 %s, %s, 11" % (s(S_T), s(S_T2)))
    k("s_add_u32 %s, %s, 0x%x" % (s(S_T), s(S_T), WS_KV))
    k("v_add_u32 %s, %s, %s" % (v(a2), s(S_T), v(a2)))
    k("v_bfe_u32 %s, v1, 2, 1" % v(t1))
    k("v_lshrrev_b32 %s, 3, v1" % v(t2))
    k("v_and_b32 %s, 3, v1" % v(a3))
    k("v_and_b32 v17, 1, %s" % v(t2))
    k("v_lshrrev_b32 %s, 1, %s" % (v(t2), v(t2)))
    k("v_lshl_add_u32 %s, %s, 2, %s" % (v(a3), v(t2), v(a3)))
    k("v_lshl_add_u32 %s, v17, 3, %s" % (v(a3), v(a3)))
    k("v_lshlrev_b32 %s, 4, %s" % (v(a3), v(a3)))
    k("v_add_u32 %s, %s, %s" % (v(t1), s(S_T3), v(t1)))
    k("v_lshl_add_u32 %s, %s, 17, %s" % (v(a3), v(t1), v(a3)))
    k("v_lshl_add_u32 %s, v2, 8, %s" % (v(a3), v(a3)))
    k("s_add_u32 %s, %s, 1024" % (s(S_T), s(S_T)))
    k("v_add_u32 %s, %s, %s" % (v(a3), s(S_T), v(a3)))
    sc = " sc1" if "sc1" in OPT else (" nt" if "nt" in OPT else "")
    for ft, dst in ((1, a2), (2, a3), (0, a1)):
        A = ACC + 16 * ft
        if ft == 0:
            for r in range(16):
                k("v_mul_f32 %s, 0x%x, %s" % (v(A + r), f2u(cq), v(A + r)))
        for r in range(8):
            k("v_cvt_pk_bf16_f32 %s, %s, %s" % (v(A + r), v(A + 2 * r), v(A + 2 * r + 1)))
        k("buffer_store_dwordx4 %s, %s, %s, 0 offen%s" % (v(A, 4), v(dst), s(S_OD, 4), sc))
        k("buffer_store_dwordx4 %s, %s, %s, 0 offen offset:512%s" % (v(A + 4, 4), v(dst), s(S_OD, 4), sc))


def epilogue_f(k):
    a1 = 12
    k("s_lshl_b32 %s, %s, 1" % (s(S_T2), s(S_RB)))
    k("s_and_b32 %s, %s, 1" % (s(S_T), s(S_W)))
    k("s_add_u32 %s, %s, %s" % (s(S_T2), s(S_T2), s(S_T)))
    k("s_mul_i32 %s, %s, %d" % (s(S_T), s(S_T2), WS_HO_ROW))
    k("s_lshl_b32 %s, %s, 14" % (s(S_T3), s(S_CT)))
    k("s_add_u32 %s, %s, %s" % (s(S_T), s(S_T), s(S_T3)))
    k("s_lshr_b32 %s, %s, 1" % (s(S_T3), s(S_W)))
    k("s_lshl_b32 %s, %s, 13" % (s(S_T3), s(S_T3)))
    k("s_add_u32 %s, %s, %s" % (s(S_T), s(S_T), s(S_T3)))
    k("s_add_u32 %s, %s, 0x%x" % (s(S_T), s(S_T), WS_HO))
    k("v_lshlrev_b32 %s, 4, v0" % v(a1))
    k("v_add_u32 %s, %s, %s" % (v(a1), s(S_T), v(a1)))
    B = WF[0]
    for ft in range(4):
        A = ACC + 16 * ft
        for r in range(16):
            k("v_max_f32 %s, 0, %s" % (v(B + r), v(A + r)))
        for r in range(16):
            k("v_mul_f32 %s, %s, %s" % (v(A + r), v(A + r), v(B + r)))
        for r in range(8):
            k("v_cvt_pk_bf16_f32 %s, %s, %s" % (v(A + r), v(A + 2 * r), v(A + 2 * r + 1)))
        sc = " sc1" if "sc1" in OPT else (" nt" if "nt" in OPT else "")
        k("buffer_store_dwordx4 %s, %s, %s, 0 offen offset:%d%s" % (v(A, 4), v(a1), s(S_OD, 4), 2048 * (ft & 1), sc))
        k("buffer_store_dwordx4 %s, %s, %s, 0 offen offset:%d%s" % (v(A + 4, 4), v(a1), s(S_OD, 4), 2048 * (ft & 1) + 1024, sc))
        if ft == 1:
            k("v_add_u32 %s, 4096, %s" % (v(a1), v(a1)))


def compute(k, pre, ffn):
    wfrag_addr(k)
    k("s_and_b32 %s, %s, 1" % (s(S_T2), s(S_W)))
    xaddr_base(k, S_T2)
    for j in range(48):
        k("v_mov_b32 %s, 0" % v(ACC + j))
    k("s_mov_b32 %s, %d" % (s(S_SLOT), SLOT0))
    k("s_setprio 2")
    k("s_barrier")
    if "p3" not in OPT:
        prof_mark(k, 4 if "p2" not in OPT else 2)
    compute_phase(k, pre, 3)
    if "p2" in OPT:
        prof_mark(k, 3)
    k("s_nop 7")
    epilogue_q(k)
    if ffn:
        k("s_cmp_eq_u32 %s, 7" % s(S_CT))
        k("s_cbranch_scc1 %s_cdone" % pre)
        k("s_lshr_b32 %s, %s, 1" % (s(S_T), s(S_W)))
        k("s_lshl_b32 %s, %s, 9" % (s(S_T), s(S_T)))
        k("s_add_u32 %s, %s, %d" % (s(S_T), s(S_T), L_BI))
        k("v_lshl_add_u32 v3, v2, 4, %s" % s(S_T))
        for ft in range(4):
            for g in range(4):
                k("ds_read_b128 %s, v3 offset:%d" % (v(ACC + 16 * ft + 4 * g, 4), ft * 128 + g * 32))
        k("s_waitcnt lgkmcnt(0)")
        if "p2" in OPT:
            prof_mark(k, 4)
        compute_phase(k, pre, 4)
        if "p2" in OPT:
            prof_mark(k, 5)
        k("s_nop 7")
        epilogue_f(k)
        k.label(pre + "_cdone")


class Groups:
    def __init__(self):
        self.groups = [[]]

    def __call__(self, txt):
        self.groups[-1].append(txt)
        if txt.startswith("buffer_load"):
            self.groups.append([])


def issue_chunk(k, q, c):
    n = 3 if q else 4
    wrow = 3072 if q else 3584
    k("s_add_u32 m0, %s, %d" % (s(S_LD3 if q else S_LD4), SLOT0 + (c % R) * SLOT))
    if not q:
        k("s_mov_b32 %s, %s" % (s(S_T2), s(S_WO)))
    else:
        k("s_nop 0")
    for i in range(n):
        k("buffer_load_dwordx4 %s, %s, %s offen lds" % (v(VQO + i) if q else v(VFO + (i & 1)), s(S_WD, 4), s(S_WO if q else S_T2)))
        if i < n - 1:
            k("s_add_u32 m0, m0, 1024")
            if q:
                k("s_nop 0")
            else:
                k("s_add_u32 %s, %s, %d" % (s(S_T2), s(S_T2), 2 * wrow))
    k("s_add_u32 %s, %s, %d" % (s(S_WO), s(S_WO), 32 * wrow))
    k("s_cmp_ge_u32 %s, %s" % (s(S_WO), s(S_WEND)))
    k("s_cselect_b32 %s, %d, 0" % (s(S_T), 512 * wrow))
    k("s_sub_u32 %s, %s, %s" % (s(S_WO), s(S_WO), s(S_T)))


def phase_base(k, q):
    wrow = 3072 if q else 3584
    k("s_mul_i32 %s, %s, %d" % (s(S_WO), s(S_LD), 8 * wrow))
    k("s_lshl_b32 %s, %s, %d" % (s(S_T), s(S_CT), 7 if q else 9))
    k("s_add_u32 %s, %s, %s" % (s(S_WO), s(S_WO), s(S_T)))
    k("s_add_u32 %s, %s, %d" % (s(S_WEND), s(S_WO), 512 * wrow))
    k("s_mul_i32 %s, %s, %d" % (s(S_T), s(S_ROT), 32 * wrow))
    k("s_add_u32 %s, %s, %s" % (s(S_WO), s(S_WO), s(S_T)))


def loader_pre(k, pre, ffn):
    k("s_setprio 3")
    k("s_sub_u32 %s, %s, 4" % (s(S_LD), s(S_W)))
    k("s_mov_b32 %s, 0x%x" % (s(S_T), (2 ** 32 + 383) // 384))
    for j in range(3):
        k("v_lshlrev_b32 v12, 4, v0")
        k("v_add_u32 v12, %d, v12" % (1024 * j))
        k("v_mul_hi_u32 v13, v12, %s" % s(S_T))
        k("v_mul_u32_u24 v14, 384, v13")
        k("v_sub_u32 v14, v12, v14")
        k("v_lshrrev_b32 v15, 7, v14")
        k("v_and_b32 v14, 127, v14")
        k("v_bfe_u32 v12, v13, 1, 1")
        k("v_lshlrev_b32 v12, 6, v12")
        k("v_xor_b32 v14, v14, v12")
        k("v_mul_u32_u24 v13, 3072, v13")
        k("v_lshl_add_u32 v13, v15, 10, v13")
        k("v_add_u32 %s, v13, v14" % v(VQO + j))
    k("s_mul_i32 %s, %s, 3072" % (s(S_LD3), s(S_LD)))
    k("s_lshl_b32 %s, %s, 12" % (s(S_LD4), s(S_LD)))
    phase_base(k, True)
    issue_chunk(k, True, 0)
    issue_chunk(k, True, 1)
    for p_ in range(2):
        k("v_lshrrev_b32 v12, 5, v0")
        k("v_add_u32 v12, %d, v12" % (2 * p_))
        k("v_bfe_u32 v13, v0, 2, 3")
        k("v_xor_b32 v13, v13, v12")
        k("v_lshlrev_b32 v13, 6, v13")
        k("v_and_b32 v14, 3, v0")
        k("v_lshl_add_u32 v13, v14, 4, v13")
        k("v_lshrrev_b32 v12, 5, v0")
        k("v_mul_u32_u24 v12, 3584, v12")
        k("v_add_u32 %s, v12, v13" % v(VFO + p_))
    if ffn:
        k("v_lshrrev_b32 v12, 3, v1")
        k("v_bfe_u32 v13, v1, 2, 1")
        k("v_and_b32 v14, 3, v1")
        k("v_lshrrev_b32 v15, 1, v12")
        k("v_and_b32 v12, 1, v12")
        k("v_lshl_add_u32 v14, v12, 2, v14")
        k("v_lshl_add_u32 v14, v13, 3, v14")
        k("v_lshl_add_u32 v14, v15, 4, v14")
        k("v_lshl_add_u32 v14, v2, 5, v14")
        k("s_lshl_b32 %s, %s, 8" % (s(S_T), s(S_CT)))
        k("s_lshl_b32 %s, %s, 6" % (s(S_T2), s(S_LD)))
        k("s_add_u32 %s, %s, %s" % (s(S_T), s(S_T), s(S_T2)))
        k("v_add_u32 v14, %s, v14" % s(S_T))
        k("v_lshlrev_b32 v14, 1, v14")
        k("v_min_u32 v14, 3582, v14")
        k("global_load_ushort v11, v14, %s" % s(S_B1, 2))


def loader_post(k, pre, ffn):
    npf = 4 if "w1n" in OPT else 0
    k("s_waitcnt vmcnt(%d)" % (6 if ffn else 9 + npf))
    if ffn:
        k("v_lshlrev_b32 v11, 16, v11")
        k("s_lshl_b32 %s, %s, 8" % (s(S_T), s(S_LD)))
        k("s_add_u32 %s, %s, %d" % (s(S_T), s(S_T), L_BI))
        k("v_lshl_add_u32 v12, v0, 2, %s" % s(S_T))
        k("ds_write_b32 v12, v11")
        k("s_waitcnt lgkmcnt(0)")
    k("s_barrier")
    k("s_setprio 1")

    def n_of(c):
        return 3 if c < 16 else 4

    def schedule(first, last, total):
        for c in range(first, last + 1):
            younger = sum(n_of(j) for j in (c + 1, c + 2) if j < total)
            if c == 1:
                younger += npf
            k("s_waitcnt vmcnt(%d)" % younger)
            k("s_barrier")
            if c + 3 < total:
                if c + 3 == 16:
                    k.srd(S_WD, S_W1, 512 * 3584)
                    phase_base(k, False)
                issue_chunk(k, c + 3 < 16, c + 3)

    if ffn:
        k("s_cmp_eq_u32 %s, 7" % s(S_CT))
        k("s_cbranch_scc1 %s_lq" % pre)
        schedule(1, 32, 32)
        k("s_branch %s_lend" % pre)
        k.label(pre + "_lq")
    schedule(1, 16, 16)
    k.label(pre + "_lend")
    if "w1pf" in OPT:
        k.srd(S_WD, S_W1, 512 * 3584)
        k("s_lshr_b32 %s, s2, 3" % s(S_T))
        k("s_lshl_b32 %s, %s, 2" % (s(S_T), s(S_T)))
        k("s_add_u32 %s, %s, %s" % (s(S_T), s(S_T), s(S_LD)))
        k("s_mul_i32 %s, %s, %d" % (s(S_T), s(S_T), 4 * 3584))
        k("v_lshlrev_b32 v12, 4, v0")
        for j in range(14):
            k("buffer_load_dwordx4 v[16:19], v12, %s, %s offen" % (s(S_WD, 4), s(S_T)))
            k("s_add_u32 %s, %s, 1024" % (s(S_T), s(S_T)))


def finish(k):
    k("s_waitcnt vmcnt(0)")
    stamp(k, 1, S_WS, S_W)
    if "p2" not in OPT and "p3" not in OPT:
        prof_mark(k, 5)
    prof_rt(k, 6)
    prof_store(k, S_WS, S_W, 28)
    k("s_endpgm")


def gen(k, name, pre, ffn=True):
    k.kernel_begin(name)
    entry(k, pre, name)
    k("s_branch %s_norm" % pre)
    k.label(pre + "_loader")
    loader_pre(k, pre, ffn)
    k.label(pre + "_norm")
    g = Groups()
    issue_chunk(g, True, 2)
    issue_chunk(g, True, 3)
    normalise(k, pre, g.groups, 6 + (1 if ffn else 0))
    k("s_cmp_ge_u32 %s, 4" % s(S_W))
    k("s_cbranch_scc1 %s_lpost" % pre)
    compute(k, pre, ffn)
    finish(k)
    k.label(pre + "_lpost")
    loader_post(k, pre, ffn)
    if "w1pf" in OPT and not common.PROF:
        k("s_endpgm")
    finish(k)
    k.label(pre + "_exit")
    k.kernel_end(name, NV, NV)
    return 256, LDS_BYTES
```

```python
import sys
import common
from common import *
import attn, gemm1, final, g1, k1, g2, kb, f1, f1x, ka

def build(path, which=("qkv", "ffn1", "attn", "final")):
    k = Asm()
    body = Asm()
    launches = []
    if "qkv" in which:
        n, lds = g1.gen(body, "qkv_kernel", "L_qkv", "qkv")
        launches.append("; @launch kernel=qkv_kernel grid=(%d,1,1) block=(512,1,1) lds=%d" % (n, lds))
    if "k1" in which:
        n, lds = k1.gen(body, "k1_kernel", "L_k1")
        launches.append("; @launch kernel=k1_kernel grid=(%d,1,1) block=(512,1,1) lds=%d" % (n, lds))
    if "kb" in which:
        n, lds = kb.gen(body, "kb_kernel", "L_kb", True)
        launches.append("; @launch kernel=kb_kernel grid=(%d,1,1) block=(512,1,1) lds=%d" % (n, lds))
    if "kq" in which:
        kb.OPT.add("xn")
        n, lds = kb.gen(body, "kb_kernel", "L_kb", False)
        launches.append("; @launch kernel=kb_kernel grid=(%d,1,1) block=(%d,1,1) lds=%d" % (n, 768 if "n12" in kb.OPT else 512, lds))
    if "ka" in which:
        n, lds = ka.gen(body, "ka_kernel", "L_ka")
        launches.append("; @launch kernel=ka_kernel grid=(%d,1,1) block=(512,1,1) lds=%d" % (n, lds))
    if "ffn1" in which:
        n, lds = g1.gen(body, "ffn1_kernel", "L_ffn1", "ffn1")
        launches.append("; @launch kernel=ffn1_kernel grid=(%d,1,1) block=(512,1,1) lds=%d" % (n, lds))
    if "attn" in which:
        attn.gen_attn(body, "attn_kernel")
        launches.append("; @launch kernel=attn_kernel grid=(256,1,1) block=(512,1,1) lds=%d" % (3 * attn.SLOT))
    if "k2" in which:
        attn.gen_attn(body, "k2_kernel", True, lambda kk: g2.gen_ffn2_role(kk, "L_g2", g2.WS_BASE + (4 << 20)))
        launches.append("; @launch kernel=k2_kernel grid=(512,1,1) block=(512,1,1) lds=%d" % (3 * attn.SLOT))
    if "k2s" in which:
        attn.OPT.add("signal")
        attn.gen_attn(body, "k2_kernel", True, lambda kk: g2.gen_g_role(kk, "L_g2"))
        launches.append("; @launch kernel=k2_kernel grid=(512,1,1) block=(512,1,1) lds=%d" % (3 * attn.SLOT))
    if "k2f" in which:
        attn.OPT.add("signal")
        g2.XPROF[0] = True
        xl = "xl" in f1.OPT
        attn.gen_attn(body, "k2_kernel", True, lambda kk: g2.gen_g_role(kk, "L_g2", f1x.phase if xl else f1.phase))
        launches.append("; @launch kernel=k2_kernel grid=(512,1,1) block=(512,1,1) lds=%d" % (max(3 * attn.SLOT, f1x.LDS_NEED) if xl else 3 * attn.SLOT))
    if "wo" in which:
        n, lds = g2.gen_wo(body, "wo_kernel", "L_wo")
        launches.append("; @launch kernel=wo_kernel grid=(%d,1,1) block=(256,1,1) lds=%d" % (n, lds))
    if "final" in which:
        n, lds = g2.gen_final(body, "final_kernel", "L_fin")
        launches.append("; @launch kernel=final_kernel grid=(%d,1,1) block=(256,1,1) lds=%d" % (n, lds))
    if "empty" in which:
        body.kernel_begin("empty_kernel")
        body.kernel_end("empty_kernel", 32, 32)
        n = [int(a[5:]) for a in which if a.startswith("empty") and len(a) > 5]
    for a in which:
        if a.startswith("nempty"):
            if "empty_kernel:" not in body.text():
                body.kernel_begin("empty_kernel")
                body.kernel_end("empty_kernel", 32, 32)
            for i in range(int(a[6:])):
                launches.append("; @launch kernel=empty_kernel grid=(256,1,1) block=(256,1,1) lds=0")
    body.label("L_text_end")
    txt = HEADER + "\n".join(launches) + "\n" + '.amdgcn_target "amdgcn-amd-amdhsa--gfx950"\n' + body.text()
    open(path, "w").write(txt)

if __name__ == "__main__":
    common.PROF = "prof" in sys.argv
    common.STAMP = "stamp" in sys.argv
    for a in sys.argv[1:]:
        if a.startswith("g1:"):
            g1.OPT.add(a[3:])
        if a.startswith("k1:"):
            k1.OPT.add(a[3:])
        if a.startswith("ka:"):
            ka.OPT.add(a[3:])
        if a.startswith("kb:"):
            kb.OPT.add(a[3:])
        if a.startswith("f1:"):
            f1.OPT.add(a[3:])
        if a.startswith("g2:"):
            g2.OPT.add(a[3:])
        if a.startswith("at:"):
            attn.OPT.add(a[3:])
    out = [a for a in sys.argv[1:] if a.endswith(".s")][0]
    which = [a for a in sys.argv[1:] if a in ("qkv", "ffn1", "attn", "final", "k1", "kb", "k2", "wo", "k2s", "kq", "k2f", "ka") or a.startswith("nempty")] or ("qkv", "ffn1", "attn", "final")
    build(out, which)
```

```python
import common
from common import *

OPT = set()
XBYTES = 65536
L_PART = XBYTES
L_BI = L_PART + 2048
SLOT0 = XBYTES + 3072
SLOT = 16384
R = 5
SLOTE = SLOT0 + R * SLOT
LDS_BYTES = SLOTE
WS_XN = 20 << 20

S_X, S_WQ, S_WS, S_B1, S_W1 = 4, 6, 8, 10, 40
S_XD, S_WD, S_OD = 12, 16, 20
S_W, S_RB, S_CT, S_T, S_T2, S_C, S_SLOT, S_WO, S_LD = 24, 25, 26, 27, 28, 29, 30, 32, 33
S_RSLOT, S_T3, S_ROT, S_CK, S_KC, S_U, S_NCH, S_WEND, S_LD3, S_LD4 = 35, 36, 37, 38, 39, 42, 43, 44, 45, 46

VA0, VXA, NX, NS, NQ, NT = 4, 5, 16, 48, 50, 52
VWQ, VWF = 6, 7
VW2 = 11
VX = 19
XF = [20, 24]
WF = [28, 44]
ACC = 60
NV = 128
VQO, VFO = 6, 9


def entry(k, pre, name):
    k("s_cmp_ge_u32 s2, 256")
    k("s_cbranch_scc1 %s_exit" % pre)
    prof_start(k)
    k("s_load_dwordx2 %s, s[0:1], %d" % (s(S_X, 2), KA_X))
    k("s_load_dwordx2 %s, s[0:1], %d" % (s(S_WQ, 2), KA_WQKV))
    k("s_load_dwordx2 %s, s[0:1], %d" % (s(S_W1, 2), KA_W1))
    k("s_load_dwordx2 %s, s[0:1], %d" % (s(S_WS, 2), KA_WS))
    k("s_load_dwordx2 %s, s[0:1], %d" % (s(S_B1, 2), KA_B1))
    k("v_lshrrev_b32 v1, 6, v0")
    k("v_and_b32 v0, 63, v0")
    k("v_readfirstlane_b32 %s, v1" % s(S_W))
    if "nopf" not in OPT:
        k("s_getpc_b64 s[50:51]")
        k.label(pre + "_pc")
        k("s_sub_u32 s50, s50, %s_pc-%s" % (pre, name))
        k("s_subb_u32 s51, s51, 0")
        k("s_lshr_b32 s52, s2, 3")
        k("s_lshl_b32 s52, s52, 10")
        k("v_lshl_add_u32 v3, v0, 4, s52")
        k("v_cmp_gt_u32 vcc, L_text_end-%s-16, v3" % name)
        k("s_cmp_eq_u32 %s, 7" % s(S_W))
        k("s_cselect_b64 s[52:53], vcc, 0")
        k("s_and_saveexec_b64 s[54:55], s[52:53]")
        k("s_cbranch_execz %s_npf" % pre)
        k("global_load_dwordx4 v[112:115], v3, s[50:51]")
        k.label(pre + "_npf")
        k("s_mov_b64 exec, s[54:55]")
    if "mapx" in OPT:
        k("s_lshr_b32 %s, s2, 3" % s(S_RB))
        k("s_and_b32 %s, %s, 7" % (s(S_ROT), s(S_RB)))
        k("s_and_b32 %s, s2, 7" % s(S_CT))
        k("s_mov_b32 %s, 0" % s(S_T))
    else:
        k("s_lshr_b32 %s, s2, 3" % s(S_T))
        k("s_and_b32 %s, %s, 7" % (s(S_ROT), s(S_T)))
        k("s_and_b32 %s, s2, 3" % s(S_RB))
        k("s_lshl_b32 %s, %s, 3" % (s(S_RB), s(S_RB)))
        k("s_add_u32 %s, %s, %s" % (s(S_RB), s(S_RB), s(S_ROT)))
        k("s_lshr_b32 %s, %s, 3" % (s(S_T), s(S_T)))
        k("s_bfe_u32 %s, s2, 0x10002" % s(S_CT))
        k("s_lshl_b32 %s, %s, 2" % (s(S_CT), s(S_CT)))
        k("s_add_u32 %s, %s, %s" % (s(S_CT), s(S_CT), s(S_T)))
    if "n12" in OPT:
        k("s_add_u32 %s, %s, %s" % (s(S_ROT), s(S_ROT), s(S_T)))
        k("s_and_b32 %s, %s, 3" % (s(S_ROT), s(S_ROT)))
        k("s_lshl_b32 %s, %s, 2" % (s(S_ROT), s(S_ROT)))
    else:
        k("s_lshl_b32 %s, %s, 1" % (s(S_ROT), s(S_ROT)))
    k("s_lshl_b32 %s, %s, 1" % (s(S_T), s(S_T)))
    k("s_add_u32 %s, %s, %s" % (s(S_T), s(S_T), s(S_W)))
    k("s_and_b32 %s, %s, 7" % (s(S_T), s(S_T)))
    k("s_lshl_b32 %s, %s, 3" % (s(S_T3), s(S_T)))
    k("v_lshlrev_b32 v3, 4, v0")
    k("s_lshl_b32 %s, %s, 6" % (s(S_T), s(S_RB)))
    k("s_add_u32 %s, %s, %s" % (s(S_T), s(S_T), s(S_T3)))
    k("s_lshl_b32 %s, %s, 10" % (s(S_T2), s(S_T)))
    k("s_lshl_b32 m0, %s, 10" % s(S_T3))
    k("s_and_b32 %s, %s, 8" % (s(S_T3), s(S_T3)))
    k("s_waitcnt lgkmcnt(0)")
    stamp(k, 0, S_WS, S_W)
    k.srd(S_XD, S_X, 2048 * 1024)
    if "n12" in OPT:
        k("s_cmp_ge_u32 %s, 8" % s(S_W))
        k("s_cbranch_scc1 %s_nox" % pre)
    for i in range(8):
        k("s_add_u32 %s, %s, %d" % (s(S_T), s(S_T3), i))
        k("s_lshl_b32 %s, %s, 4" % (s(S_T), s(S_T)))
        k("v_xor_b32 v4, %s, v3" % s(S_T))
        k("buffer_load_dwordx4 v4, %s, %s offen lds" % (s(S_XD, 4), s(S_T2)))
        if i < 7:
            k("s_add_u32 m0, m0, 1024")
            k("s_add_u32 %s, %s, 1024" % (s(S_T2), s(S_T2)))
    if "n12" in OPT:
        k.label(pre + "_nox")
    if "p2" not in OPT and "p3" not in OPT:
        prof_mark(k, 2)
    k("v_and_b32 v1, 31, v0")
    k("v_lshrrev_b32 v2, 5, v0")
    k.srd(S_OD, S_WS, WS_END if "xn" not in OPT else WS_XN + (2 << 20))
    k.srd(S_WD, S_WQ, 512 * 3072)
    for r in range(6, 11):
        k("v_mov_b32 %s, 0" % v(r))
    if "poison" in OPT:
        k("s_lshr_b32 %s, s2, 2" % s(S_T))
        k("s_mul_i32 %s, %s, %d" % (s(S_T), s(S_T), WS_HO_ROW))
        k("s_and_b32 %s, s2, 3" % s(S_T2))
        k("s_lshl_b32 %s, %s, 3" % (s(S_T2), s(S_T2)))
        k("s_add_u32 %s, %s, %s" % (s(S_T2), s(S_T2), s(S_W)))
        k("s_lshl_b32 %s, %s, 10" % (s(S_T2), s(S_T2)))
        k("s_add_u32 %s, %s, %s" % (s(S_T), s(S_T), s(S_T2)))
        k("s_add_u32 %s, %s, 0x%x" % (s(S_T), s(S_T), WS_HO + 112 * 1024))
        k("v_lshlrev_b32 v4, 4, v0")
        for r in range(4):
            k("v_mov_b32 %s, -1" % v(12 + r))
        k("buffer_store_dwordx4 v[12:15], v4, %s, %s offen%s" % (s(S_OD, 4), s(S_T), " sc1" if "xsc1" in OPT else ""))
    k("s_cmp_lt_u32 s2, 48")
    k("s_cbranch_scc0 %s_nz" % pre)
    k("s_cmp_eq_u32 %s, 0" % s(S_W))
    k("s_cbranch_scc0 %s_nz" % pre)
    k("s_lshl_b32 %s, s2, 8" % s(S_T))
    k("s_add_u32 %s, %s, 0x%x" % (s(S_T), s(S_T), WS_FLAG))
    k("v_lshl_add_u32 v4, v0, 2, %s" % s(S_T))
    k("v_mov_b32 v5, 0")
    k("global_store_dword v4, v5, %s" % s(S_WS, 2))
    k.label(pre + "_nz")
    if "n12" in OPT:
        k("s_cmp_ge_u32 %s, 8" % s(S_W))
        k("s_cbranch_scc1 %s_norm" % pre)
    k("s_cmp_ge_u32 %s, 4" % s(S_W))
    k("s_cbranch_scc1 %s_loader" % pre)


def xaddr_base(k, s_tile):
    k("s_lshl_b32 %s, %s, 15" % (s(S_T), s(s_tile)))
    k("v_and_b32 v3, 15, v1")
    k("v_xor_b32 v3, v3, v2")
    k("v_lshlrev_b32 v3, 4, v3")
    k("v_lshl_add_u32 v3, v1, 10, v3")
    k("v_add_u32 %s, %s, v3" % (v(VA0), s(S_T)))


def normalise(k, pre, dma, younger):
    k("s_and_b32 %s, %s, 1" % (s(S_T2), s(S_W)))
    xaddr_base(k, S_T2)
    k("s_lshr_b32 %s, %s, 1" % (s(S_T3), s(S_W)))
    k("s_lshl_b32 %s, %s, 8" % (s(S_U), s(S_T3)))
    k("v_xor_b32 %s, %s, %s" % (v(VXA), s(S_U), v(VA0)))
    k("s_cmp_ge_u32 %s, 4" % s(S_W))
    k("s_cbranch_scc1 %s_nwl" % pre)
    k("s_waitcnt vmcnt(0)")
    k.label(pre + "_nwl")
    k("s_waitcnt vmcnt(%d)" % younger)
    k("s_barrier")
    if "n12" in OPT:
        k("s_cmp_ge_u32 %s, 8" % s(S_W))
        k("s_cbranch_scc1 %s_nosum" % pre)
    if "p2" not in OPT:
        prof_mark(k, 3)
    for i in range(8):
        k("v_xor_b32 %s, %d, %s" % (v(NT + 8 + i), 32 * i, v(VXA)))
    AD = NT + 8
    for i in range(8):
        k("ds_read_b128 %s, %s" % (v(NX + 4 * i, 4), v(AD + i)))
    for r in range(4):
        k("v_mov_b32 %s, 0" % v(NS + r))
    k("v_mov_b32 %s, 0x3f803f80" % v(NT))
    for i in range(8):
        k("s_waitcnt lgkmcnt(%d)" % (7 - i))
        for r in range(4):
            k("v_dot2c_f32_bf16 %s, %s, %s" % (v(NS + (r & 1)), v(NT), v(NX + 4 * i + r)))
            k("v_dot2c_f32_bf16 %s, %s, %s" % (v(NQ + (r & 1)), v(NX + 4 * i + r), v(NX + 4 * i + r)))
    k("s_nop 2")
    for r in (NS, NQ):
        k("v_add_f32 %s, %s, %s" % (v(r), v(r), v(r + 1)))
        k("v_mov_b32 %s, %s" % (v(r + 1), v(r)))
        k("s_nop 1")
        k("v_permlane32_swap_b32 %s, %s" % (v(r + 1), v(r)))
        k("s_nop 1")
        k("v_add_f32 %s, %s, %s" % (v(r), v(r), v(r + 1)))
    if "p3" in OPT:
        prof_mark(k, 2)

    def w1pf(first, n):
        k("s_lshr_b32 %s, s2, 3" % s(S_T))
        k("s_mul_i32 %s, %s, %d" % (s(S_T), s(S_T), 16 * 3584))
        k("s_mul_i32 %s, %s, 7168" % (s(S_T2), s(S_W)))
        k("s_add_u32 %s, %s, %s" % (s(S_T), s(S_T), s(S_T2)))
        k("v_lshlrev_b32 v3, 4, v0")
        for j in range(first, first + n):
            k("s_add_u32 %s, %s, %d" % (s(S_T2), s(S_T), j * 1024))
            k("buffer_load_dwordx4 v[112:115], v3, s[56:59], %s offen" % s(S_T2))

    if "w1n" in OPT:
        k.srd(56, S_W1, 512 * 3584)
        w1pf(0, 4)
    k("s_cmp_ge_u32 %s, 4" % s(S_W))
    k("s_cbranch_scc0 %s_nnd" % pre)
    for grp in dma:
        for ins in grp:
            k(ins)
    k.label(pre + "_nnd")
    k("v_mov_b32 %s, %s" % (v(NS + 1), v(NQ)))
    k("s_lshl_b32 %s, %s, 8" % (s(S_T), s(S_W)))
    k("s_add_u32 %s, %s, %d" % (s(S_T), s(S_T), L_PART))
    k("v_lshl_add_u32 v3, v1, 3, %s" % s(S_T))
    k("ds_write_b64 v3, %s" % v(NS, 2))
    if "n12" in OPT:
        k.label(pre + "_nosum")
    k("s_waitcnt lgkmcnt(0)")
    k("s_barrier")
    if "p3" in OPT:
        prof_mark(k, 4)
    k("s_and_b32 %s, %s, 1" % (s(S_T), s(S_W)))
    k("s_lshl_b32 %s, %s, 8" % (s(S_T), s(S_T)))
    k("s_add_u32 %s, %s, %d" % (s(S_T), s(S_T), L_PART))
    k("v_lshl_add_u32 v3, v1, 3, %s" % s(S_T))
    PT = NT + 16
    for q in range(4):
        k("ds_read_b64 %s, v3 offset:%d" % (v(PT + 2 * q, 2), q * 512))
    k("s_waitcnt lgkmcnt(0)")
    k("v_add_f32 %s, %s, %s" % (v(PT), v(PT), v(PT + 2)))
    k("v_add_f32 %s, %s, %s" % (v(PT + 1), v(PT + 1), v(PT + 3)))
    k("v_add_f32 %s, %s, %s" % (v(PT + 4), v(PT + 4), v(PT + 6)))
    k("v_add_f32 %s, %s, %s" % (v(PT + 5), v(PT + 5), v(PT + 7)))
    k("v_add_f32 %s, %s, %s" % (v(NS), v(PT), v(PT + 4)))
    k("v_add_f32 %s, %s, %s" % (v(NQ), v(PT + 1), v(PT + 5)))
    k("v_mul_f32 %s, 0x%x, %s" % (v(NS), f2u(1.0 / 512), v(NS)))
    k("v_mul_f32 %s, 0x%x, %s" % (v(NQ), f2u(1.0 / 512), v(NQ)))
    k("v_fma_f32 %s, -%s, %s, %s" % (v(NQ), v(NS), v(NS), v(NQ)))
    k("v_max_f32 %s, 0, %s" % (v(NQ), v(NQ)))
    k("v_add_f32 %s, 0x%x, %s" % (v(NQ), f2u(1e-5), v(NQ)))
    k("v_rsq_f32 %s, %s" % (v(NQ), v(NQ)))
    MK, TP = NT + 24, NT + 26
    k("v_mov_b32 %s, 0xffff0000" % v(MK))
    k("v_mul_f32 %s, %s, %s" % (v(NS), v(NS), v(NQ)))
    k("v_mov_b32 %s, %s" % (v(NQ + 1), v(NQ)))
    k("v_sub_f32 %s, 0, %s" % (v(NS), v(NS)))
    k("v_mov_b32 %s, %s" % (v(NS + 1), v(NS)))
    if "n12" in OPT:
        def norm_frag(tag, n):
            k("s_lshl_b32 %s, %s, 5" % (s(S_T), s(S_KC)))
            k("v_xor_b32 %s, %s, %s" % (v(AD), s(S_T), v(VA0)))
            k("ds_read_b128 %s, %s" % (v(NX, 4), v(AD)))
            if n == 2:
                k("v_xor_b32 %s, 32, %s" % (v(AD + 1), v(AD)))
                k("ds_read_b128 %s, %s" % (v(NX + 4, 4), v(AD + 1)))
            for i in range(n):
                k("s_waitcnt lgkmcnt(%d)" % (n - 1 - i))
                for r in range(4):
                    x = NX + 4 * i + r
                    t = TP + 2 * (r & 1)
                    k("v_lshlrev_b32 %s, 16, %s" % (v(t), v(x)))
                    k("v_and_b32 %s, %s, %s" % (v(t + 1), v(MK), v(x)))
                    if r > 0:
                        tp = TP + 2 * ((r - 1) & 1)
                        k("v_cvt_pk_bf16_f32 %s, %s, %s" % (v(x - 1), v(tp), v(tp + 1)))
                    k("v_pk_fma_f32 %s, %s, %s, %s" % (v(t, 2), v(t, 2), v(NQ, 2), v(NS, 2)))
                k("v_cvt_pk_bf16_f32 %s, %s, %s" % (v(NX + 4 * i + 3), v(TP + 2), v(TP + 3)))
                k("ds_write_b128 %s, %s" % (v(AD + i), v(NX + 4 * i, 4)))
            k("s_lshr_b32 %s, %s, 2" % (s(S_T), s(S_KC)))
            k("s_cmp_eq_u32 %s, %s" % (s(S_T), s(S_CT)))
            k("s_cbranch_scc0 %s_nx%s" % (pre, tag))
            k("s_lshl_b32 %s, %s, 10" % (s(S_T), s(S_KC)))
            k("s_add_u32 %s, %s, %s" % (s(S_T), s(S_T), s(S_RSLOT)))
            for i in range(n):
                k("buffer_store_dwordx4 %s, v3, %s, %s offen offset:%d" % (v(NX + 4 * i, 4), s(S_OD, 4), s(S_T), 1024 * i))
            k.label("%s_nx%s" % (pre, tag))

        k("s_and_b32 %s, %s, 1" % (s(S_T), s(S_W)))
        k("s_lshl_b32 %s, %s, 1" % (s(S_T2), s(S_RB)))
        k("s_add_u32 %s, %s, %s" % (s(S_T), s(S_T), s(S_T2)))
        k("s_lshl_b32 %s, %s, 15" % (s(S_RSLOT), s(S_T)))
        k("s_add_u32 %s, %s, 0x%x" % (s(S_RSLOT), s(S_RSLOT), WS_XN))
        k("v_lshlrev_b32 v3, 4, v0")
        k("s_cmp_ge_u32 %s, 8" % s(S_W))
        k("s_cbranch_scc1 %s_nzr" % pre)
        k("s_lshl_b32 %s, %s, 1" % (s(S_KC), s(S_ROT)))
        k("s_and_b32 %s, %s, 6" % (s(S_T), s(S_W)))
        k("s_add_u32 %s, %s, %s" % (s(S_KC), s(S_KC), s(S_T)))
        norm_frag("a", 2)
        k("s_branch %s_ndone" % pre)
        k.label(pre + "_nzr")
        k("s_setprio 3")

        def step_of(f, dst):
            k("s_lshl_b32 %s, %s, 1" % (s(dst), s(S_ROT)))
            k("s_add_u32 %s, %s, %d" % (s(dst), s(dst), 8 * (1 + (f >> 2))))
            k("s_and_b32 %s, %s, 31" % (s(dst), s(dst)))
            k("s_add_u32 %s, %s, %s" % (s(dst), s(dst), s(S_U)))
            if f & 3:
                k("s_add_u32 %s, %s, %d" % (s(dst), s(dst), f & 3))

        k("s_and_b32 %s, %s, 2" % (s(S_U), s(S_W)))
        k("s_lshl_b32 %s, %s, 1" % (s(S_U), s(S_U)))

        def fetch(f):
            step_of(f, S_T2)
            k("s_lshl_b32 %s, %s, 5" % (s(S_T2), s(S_T2)))
            k("v_xor_b32 %s, %s, %s" % (v(AD + (f & 1)), s(S_T2), v(VA0)))
            k("ds_read_b128 %s, %s" % (v(NX + 4 * (f & 1), 4), v(AD + (f & 1))))

        fetch(0)
        for f in range(12):
            b = f & 1
            k("s_waitcnt lgkmcnt(0)")
            for r in range(4):
                x = NX + 4 * b + r
                t = TP + 2 * (r & 1)
                k("v_lshlrev_b32 %s, 16, %s" % (v(t), v(x)))
                k("v_and_b32 %s, %s, %s" % (v(t + 1), v(MK), v(x)))
                if r > 0:
                    tp = TP + 2 * ((r - 1) & 1)
                    k("v_cvt_pk_bf16_f32 %s, %s, %s" % (v(x - 1), v(tp), v(tp + 1)))
                k("v_pk_fma_f32 %s, %s, %s, %s" % (v(t, 2), v(t, 2), v(NQ, 2), v(NS, 2)))
            k("v_cvt_pk_bf16_f32 %s, %s, %s" % (v(NX + 4 * b + 3), v(TP + 2), v(TP + 3)))
            k("ds_write_b128 %s, %s" % (v(AD + b), v(NX + 4 * b, 4)))
            if f < 11:
                fetch(f + 1)
            step_of(f, S_KC)
            k("s_lshr_b32 %s, %s, 2" % (s(S_T), s(S_KC)))
            k("s_cmp_eq_u32 %s, %s" % (s(S_T), s(S_CT)))
            k("s_cbranch_scc0 %s_nxb%d" % (pre, f))
            k("s_lshl_b32 %s, %s, 10" % (s(S_T), s(S_KC)))
            k("s_add_u32 %s, %s, %s" % (s(S_T), s(S_T), s(S_RSLOT)))
            k("buffer_store_dwordx4 %s, v3, %s, %s offen" % (v(NX + 4 * b, 4), s(S_OD, 4), s(S_T)))
            k.label("%s_nxb%d" % (pre, f))
            k("s_barrier")
        k("s_waitcnt lgkmcnt(0)")
        for b in range(5):
            k("s_barrier")
        finish(k)
        k.label(pre + "_ndone")
    else:
        for i in range(8):
            for r in range(4):
                x = NX + 4 * i + r
                t = TP + 2 * (r & 1)
                k("v_lshlrev_b32 %s, 16, %s" % (v(t), v(x)))
                k("v_and_b32 %s, %s, %s" % (v(t + 1), v(MK), v(x)))
                if r > 0:
                    tp = TP + 2 * ((r - 1) & 1)
                    k("v_cvt_pk_bf16_f32 %s, %s, %s" % (v(x - 1), v(tp), v(tp + 1)))
                k("v_pk_fma_f32 %s, %s, %s, %s" % (v(t, 2), v(t, 2), v(NQ, 2), v(NS, 2)))
            tp = TP + 2
            k("v_cvt_pk_bf16_f32 %s, %s, %s" % (v(NX + 4 * i + 3), v(tp), v(tp + 1)))
            k("ds_write_b128 %s, %s" % (v(AD + i), v(NX + 4 * i, 4)))
    if "p3" in OPT:
        prof_mark(k, 5)
    if "xn" in OPT and "n12" not in OPT:
        k("s_lshr_b32 %s, %s, 1" % (s(S_T), s(S_CT)))
        k("s_lshr_b32 %s, %s, 1" % (s(S_T2), s(S_W)))
        k("s_cmp_eq_u32 %s, %s" % (s(S_T), s(S_T2)))
        k("s_cbranch_scc0 %s_noxn%s" % (pre, ""))
        k("s_and_b32 %s, %s, 1" % (s(S_T), s(S_W)))
        k("s_lshl_b32 %s, %s, 1" % (s(S_T2), s(S_RB)))
        k("s_add_u32 %s, %s, %s" % (s(S_T), s(S_T), s(S_T2)))
        k("s_lshl_b32 %s, %s, 15" % (s(S_T), s(S_T)))
        k("s_lshl_b32 %s, %s, 12" % (s(S_T2), s(S_CT)))
        k("s_add_u32 %s, %s, %s" % (s(S_T), s(S_T), s(S_T2)))
        k("s_add_u32 %s, %s, 0x%x" % (s(S_T), s(S_T), WS_XN))
        k("v_lshlrev_b32 v3, 4, v0")
        k("s_bitcmp1_b32 %s, 0" % s(S_CT))
        k("s_cbranch_scc1 %s_xnhi%s" % (pre, ""))
        xsc = " sc1" if "xsc1" in OPT else ""
        for i in range(4):
            k("buffer_store_dwordx4 %s, v3, %s, %s offen offset:%d%s" % (v(NX + 4 * i, 4), s(S_OD, 4), s(S_T), 1024 * i, xsc))
        k("s_branch %s_noxn%s" % (pre, ""))
        k.label("%s_xnhi%s" % (pre, ""))
        for i in range(4):
            k("buffer_store_dwordx4 %s, v3, %s, %s offen offset:%d%s" % (v(NX + 16 + 4 * i, 4), s(S_OD, 4), s(S_T), 1024 * i, xsc))
        k.label("%s_noxn%s" % (pre, ""))
    k("s_waitcnt lgkmcnt(0)")


def next_slot(k, r):
    k("s_add_u32 %s, %s, %d" % (s(r), s(r), SLOT))
    k("s_cmp_ge_u32 %s, %d" % (s(r), SLOTE))
    k("s_cselect_b32 %s, %d, %s" % (s(r), SLOT0, s(r)))


def wfrag_addr(k):
    t = ACC
    r, b, h, g, x, y = t, t + 1, t + 2, t + 3, t + 4, t + 5
    k("s_lshr_b32 %s, %s, 1" % (s(S_T), s(S_W)))
    k("v_bfe_u32 %s, v0, 2, 2" % v(r))
    k("v_and_b32 %s, 3, v0" % v(b))
    k("v_bfe_u32 %s, v0, 4, 1" % v(h))
    k("v_lshl_add_u32 %s, %s, 2, %s" % (v(b), v(h), v(b)))
    k("v_and_b32 %s, 1, %s" % (v(h), v(b)))
    k("v_lshrrev_b32 %s, 1, %s" % (v(g), v(b)))
    k("v_lshl_add_u32 %s, v2, 3, %s" % (v(x), v(r)))
    k("v_lshl_add_u32 %s, %s, 2, %s" % (v(b), v(h), v(g)))
    k("v_mul_u32_u24 %s, 384, %s" % (v(y), v(x)))
    k("v_lshl_add_u32 %s, %s, 3, %s" % (v(y), v(b), v(y)))
    k("v_lshrrev_b32 %s, 1, %s" % (v(b), v(r)))
    k("v_xor_b32 %s, %s, %s" % (v(b), s(S_T), v(b)))
    k("v_lshl_add_u32 %s, %s, 6, %s" % (v(VWQ), v(b), v(y)))
    k("v_lshrrev_b32 %s, 1, %s" % (v(b), v(g)))
    k("v_and_b32 %s, 1, %s" % (v(g), v(g)))
    k("v_lshl_add_u32 %s, %s, 1, %s" % (v(g), v(h), v(g)))
    k("v_lshl_add_u32 %s, %s, 2, %s" % (v(b), v(b), v(g)))
    k("v_lshlrev_b32 %s, 9, %s" % (v(y), v(x)))
    k("v_lshl_add_u32 %s, %s, 3, %s" % (v(y), v(b), v(y)))
    k("s_lshl_b32 %s, %s, 8" % (s(S_T), s(S_T)))
    k("v_add_u32 %s, %s, %s" % (v(y), s(S_T), v(y)))
    for ft in range(4):
        k("v_xor_b32 %s, %d, %s" % (v(b), ft, v(r)))
        k("v_lshl_add_u32 %s, %s, 6, %s" % (v(VWF + ft), v(b), v(y)))


def compute_phase(k, pre, F):
    q = F == 3
    RB = 384 if q else 512
    NA = 1 if q else 4
    base = VWQ if q else VWF
    p = pre + ("Q" if q else "F")

    def wa(par, ft):
        return VW2 + 4 * par + (0 if q else ft)

    def slot_ops(par):
        return ["v_add_u32 %s, %s, %s" % (v(VW2 + 4 * par + j), s(S_SLOT), v(base + j)) for j in range(NA)]

    def x_ops(st):
        return ["v_xor_b32 %s, %s, %s" % (v(VX), s(S_U), v(VA0))] if st == 0 else ["v_xor_b32 %s, 32, %s" % (v(VX), v(VX))]

    def u_ops():
        return ["s_lshl_b32 %s, %s, 6" % (s(S_U), s(S_KC))]

    def kc_next():
        return ["s_add_u32 %s, %s, 1" % (s(S_KC), s(S_KC)), "s_and_b32 %s, %s, 15" % (s(S_KC), s(S_KC))]

    def rd_x(buf):
        return ["ds_read_b128 %s, %s" % (v(XF[buf], 4), v(VX))]

    def rd_w(par, st, buf, ft):
        off = st * 16 * RB + (ft * 128 if q else 0)
        return ["ds_read_b64_tr_b16 %s, %s offset:%d" % (v(WF[buf] + 4 * ft + 2 * u, 2), v(wa(par, ft)), off + u * 4 * RB) for u in range(2)]

    def mfma(buf, ft):
        d = v(ACC + 16 * ft, 16)
        if q and ft == 2:
            k("v_mfma_f32_32x32x16_bf16 %s, %s, %s, %s" % (d, v(XF[buf], 4), v(WF[buf] + 4 * ft, 4), d))
        else:
            k("v_mfma_f32_32x32x16_bf16 %s, %s, %s, %s" % (d, v(WF[buf] + 4 * ft, 4), v(XF[buf], 4), d))

    k("s_mov_b32 %s, %s" % (s(S_KC), s(S_ROT)))
    for ins in u_ops() + slot_ops(0) + x_ops(0) + rd_x(0) + sum((rd_w(0, 0, 0, ft) for ft in range(F)), []) + x_ops(1):
        k(ins)
    k("s_mov_b32 %s, 0" % s(S_C))
    k(".p2align 3")
    k.label(p + "_loop")
    VXN = VX + 0
    for par in range(2):
        for st in range(2):
            b, nb = st, 1 - st
            npar = par if st == 0 else 1 - par
            for ft in range(F):
                newer = 2 * (F - 1 - ft) + (0 if ft == 0 else 1 + 2 * ft)
                k("s_waitcnt lgkmcnt(%d)" % newer)
                mfma(b, ft)
                if ft == 0:
                    if st == 1:
                        k("s_barrier")
                    for ins in rd_x(nb):
                        k(ins)
                for ins in rd_w(npar, 1 - st, nb, ft):
                    k(ins)
                if ft == 0:
                    if st == 0:
                        for ins in kc_next() + u_ops() + x_ops(0):
                            k(ins)
                    else:
                        for ins in x_ops(1):
                            k(ins)
                if st == 0 and ft == 1:
                    next_slot(k, S_SLOT)
                if st == 0 and ft == F - 1:
                    for ins in slot_ops(1 - par):
                        k(ins)
    k("s_add_u32 %s, %s, 1" % (s(S_C), s(S_C)))
    k("s_cmp_lt_u32 %s, 8" % s(S_C))
    k("s_cbranch_scc1 %s_loop" % p)
    k("s_waitcnt lgkmcnt(0)")


def epilogue_q(k):
    cq = 0.25 * LOG2E
    a1, a2, a3, t1, t2 = 12, 13, 14, 15, 16
    k("s_lshl_b32 %s, %s, 1" % (s(S_T2), s(S_RB)))
    k("s_and_b32 %s, %s, 1" % (s(S_T), s(S_W)))
    k("s_add_u32 %s, %s, %s" % (s(S_T2), s(S_T2), s(S_T)))
    k("s_lshl_b32 %s, %s, 2" % (s(S_T3), s(S_CT)))
    k("s_and_b32 %s, %s, 2" % (s(S_T), s(S_W)))
    k("s_add_u32 %s, %s, %s" % (s(S_T3), s(S_T3), s(S_T)))
    k("v_add_u32 %s, %s, v2" % (v(t1), s(S_T3)))
    k("v_lshlrev_b32 %s, 4, v1" % v(t2))
    k("v_lshl_add_u32 %s, %s, 16, %s" % (v(a1), v(t1), v(t2)))
    k("s_lshl_b32 %s, %s, 10" % (s(S_T), s(S_T2)))
    k("v_add_u32 %s, %s, %s" % (v(a1), s(S_T), v(a1)))
    k("v_lshl_add_u32 %s, %s, 17, %s" % (v(a2), v(t1), v(t2)))
    k("s_lshl_b32 %s, %s, 11" % (s(S_T), s(S_T2)))
    k("s_add_u32 %s, %s, 0x%x" % (s(S_T), s(S_T), WS_KV))
    k("v_add_u32 %s, %s, %s" % (v(a2), s(S_T), v(a2)))
    k("v_bfe_u32 %s, v1, 2, 1" % v(t1))
    k("v_lshrrev_b32 %s, 3, v1" % v(t2))
    k("v_and_b32 %s, 3, v1" % v(a3))
    k("v_and_b32 v17, 1, %s" % v(t2))
    k("v_lshrrev_b32 %s, 1, %s" % (v(t2), v(t2)))
    k("v_lshl_add_u32 %s, %s, 2, %s" % (v(a3), v(t2), v(a3)))
    k("v_lshl_add_u32 %s, v17, 3, %s" % (v(a3), v(a3)))
    k("v_lshlrev_b32 %s, 4, %s" % (v(a3), v(a3)))
    k("v_add_u32 %s, %s, %s" % (v(t1), s(S_T3), v(t1)))
    k("v_lshl_add_u32 %s, %s, 17, %s" % (v(a3), v(t1), v(a3)))
    k("v_lshl_add_u32 %s, v2, 8, %s" % (v(a3), v(a3)))
    k("s_add_u32 %s, %s, 1024" % (s(S_T), s(S_T)))
    k("v_add_u32 %s, %s, %s" % (v(a3), s(S_T), v(a3)))
    sc = " sc1" if "sc1" in OPT else (" nt" if "nt" in OPT else "")
    for ft, dst in ((1, a2), (2, a3), (0, a1)):
        A = ACC + 16 * ft
        if ft == 0:
            for r in range(16):
                k("v_mul_f32 %s, 0x%x, %s" % (v(A + r), f2u(cq), v(A + r)))
        for r in range(8):
            k("v_cvt_pk_bf16_f32 %s, %s, %s" % (v(A + r), v(A + 2 * r), v(A + 2 * r + 1)))
        k("buffer_store_dwordx4 %s, %s, %s, 0 offen%s" % (v(A, 4), v(dst), s(S_OD, 4), sc))
        k("buffer_store_dwordx4 %s, %s, %s, 0 offen offset:512%s" % (v(A + 4, 4), v(dst), s(S_OD, 4), sc))


def epilogue_f(k):
    a1 = 12
    k("s_lshl_b32 %s, %s, 1" % (s(S_T2), s(S_RB)))
    k("s_and_b32 %s, %s, 1" % (s(S_T), s(S_W)))
    k("s_add_u32 %s, %s, %s" % (s(S_T2), s(S_T2), s(S_T)))
    k("s_mul_i32 %s, %s, %d" % (s(S_T), s(S_T2), WS_HO_ROW))
    k("s_lshl_b32 %s, %s, 14" % (s(S_T3), s(S_CT)))
    k("s_add_u32 %s, %s, %s" % (s(S_T), s(S_T), s(S_T3)))
    k("s_lshr_b32 %s, %s, 1" % (s(S_T3), s(S_W)))
    k("s_lshl_b32 %s, %s, 13" % (s(S_T3), s(S_T3)))
    k("s_add_u32 %s, %s, %s" % (s(S_T), s(S_T), s(S_T3)))
    k("s_add_u32 %s, %s, 0x%x" % (s(S_T), s(S_T), WS_HO))
    k("v_lshlrev_b32 %s, 4, v0" % v(a1))
    k("v_add_u32 %s, %s, %s" % (v(a1), s(S_T), v(a1)))
    B = WF[0]
    for ft in range(4):
        A = ACC + 16 * ft
        for r in range(16):
            k("v_max_f32 %s, 0, %s" % (v(B + r), v(A + r)))
        for r in range(16):
            k("v_mul_f32 %s, %s, %s" % (v(A + r), v(A + r), v(B + r)))
        for r in range(8):
            k("v_cvt_pk_bf16_f32 %s, %s, %s" % (v(A + r), v(A + 2 * r), v(A + 2 * r + 1)))
        sc = " sc1" if "sc1" in OPT else (" nt" if "nt" in OPT else "")
        k("buffer_store_dwordx4 %s, %s, %s, 0 offen offset:%d%s" % (v(A, 4), v(a1), s(S_OD, 4), 2048 * (ft & 1), sc))
        k("buffer_store_dwordx4 %s, %s, %s, 0 offen offset:%d%s" % (v(A + 4, 4), v(a1), s(S_OD, 4), 2048 * (ft & 1) + 1024, sc))
        if ft == 1:
            k("v_add_u32 %s, 4096, %s" % (v(a1), v(a1)))


def compute(k, pre, ffn):
    wfrag_addr(k)
    k("s_and_b32 %s, %s, 1" % (s(S_T2), s(S_W)))
    xaddr_base(k, S_T2)
    for j in range(48):
        k("v_mov_b32 %s, 0" % v(ACC + j))
    k("s_mov_b32 %s, %d" % (s(S_SLOT), SLOT0))
    k("s_setprio 2")
    k("s_barrier")
    if "p3" not in OPT:
        prof_mark(k, 4 if "p2" not in OPT else 2)
    compute_phase(k, pre, 3)
    if "p2" in OPT:
        prof_mark(k, 3)
    k("s_nop 7")
    epilogue_q(k)
    if ffn:
        k("s_cmp_eq_u32 %s, 7" % s(S_CT))
        k("s_cbranch_scc1 %s_cdone" % pre)
        k("s_lshr_b32 %s, %s, 1" % (s(S_T), s(S_W)))
        k("s_lshl_b32 %s, %s, 9" % (s(S_T), s(S_T)))
        k("s_add_u32 %s, %s, %d" % (s(S_T), s(S_T), L_BI))
        k("v_lshl_add_u32 v3, v2, 4, %s" % s(S_T))
        for ft in range(4):
            for g in range(4):
                k("ds_read_b128 %s, v3 offset:%d" % (v(ACC + 16 * ft + 4 * g, 4), ft * 128 + g * 32))
        k("s_waitcnt lgkmcnt(0)")
        if "p2" in OPT:
            prof_mark(k, 4)
        compute_phase(k, pre, 4)
        if "p2" in OPT:
            prof_mark(k, 5)
        k("s_nop 7")
        epilogue_f(k)
        k.label(pre + "_cdone")


class Groups:
    def __init__(self):
        self.groups = [[]]

    def __call__(self, txt):
        self.groups[-1].append(txt)
        if txt.startswith("buffer_load"):
            self.groups.append([])


def issue_chunk(k, q, c):
    n = 3 if q else 4
    wrow = 3072 if q else 3584
    k("s_add_u32 m0, %s, %d" % (s(S_LD3 if q else S_LD4), SLOT0 + (c % R) * SLOT))
    if not q:
        k("s_mov_b32 %s, %s" % (s(S_T2), s(S_WO)))
    else:
        k("s_nop 0")
    for i in range(n):
        k("buffer_load_dwordx4 %s, %s, %s offen lds" % (v(VQO + i) if q else v(VFO + (i & 1)), s(S_WD, 4), s(S_WO if q else S_T2)))
        if i < n - 1:
            k("s_add_u32 m0, m0, 1024")
            if q:
                k("s_nop 0")
            else:
                k("s_add_u32 %s, %s, %d" % (s(S_T2), s(S_T2), 2 * wrow))
    k("s_add_u32 %s, %s, %d" % (s(S_WO), s(S_WO), 32 * wrow))
    k("s_cmp_ge_u32 %s, %s" % (s(S_WO), s(S_WEND)))
    k("s_cselect_b32 %s, %d, 0" % (s(S_T), 512 * wrow))
    k("s_sub_u32 %s, %s, %s" % (s(S_WO), s(S_WO), s(S_T)))


def phase_base(k, q):
    wrow = 3072 if q else 3584
    k("s_mul_i32 %s, %s, %d" % (s(S_WO), s(S_LD), 8 * wrow))
    k("s_lshl_b32 %s, %s, %d" % (s(S_T), s(S_CT), 7 if q else 9))
    k("s_add_u32 %s, %s, %s" % (s(S_WO), s(S_WO), s(S_T)))
    k("s_add_u32 %s, %s, %d" % (s(S_WEND), s(S_WO), 512 * wrow))
    k("s_mul_i32 %s, %s, %d" % (s(S_T), s(S_ROT), 32 * wrow))
    k("s_add_u32 %s, %s, %s" % (s(S_WO), s(S_WO), s(S_T)))


def loader_pre(k, pre, ffn):
    k("s_setprio 3")
    k("s_sub_u32 %s, %s, 4" % (s(S_LD), s(S_W)))
    k("s_mov_b32 %s, 0x%x" % (s(S_T), (2 ** 32 + 383) // 384))
    for j in range(3):
        k("v_lshlrev_b32 v12, 4, v0")
        k("v_add_u32 v12, %d, v12" % (1024 * j))
        k("v_mul_hi_u32 v13, v12, %s" % s(S_T))
        k("v_mul_u32_u24 v14, 384, v13")
        k("v_sub_u32 v14, v12, v14")
        k("v_lshrrev_b32 v15, 7, v14")
        k("v_and_b32 v14, 127, v14")
        k("v_bfe_u32 v12, v13, 1, 1")
        k("v_lshlrev_b32 v12, 6, v12")
        k("v_xor_b32 v14, v14, v12")
        k("v_mul_u32_u24 v13, 3072, v13")
        k("v_lshl_add_u32 v13, v15, 10, v13")
        k("v_add_u32 %s, v13, v14" % v(VQO + j))
    k("s_mul_i32 %s, %s, 3072" % (s(S_LD3), s(S_LD)))
    k("s_lshl_b32 %s, %s, 12" % (s(S_LD4), s(S_LD)))
    phase_base(k, True)
    issue_chunk(k, True, 0)
    issue_chunk(k, True, 1)
    for p_ in range(2):
        k("v_lshrrev_b32 v12, 5, v0")
        k("v_add_u32 v12, %d, v12" % (2 * p_))
        k("v_bfe_u32 v13, v0, 2, 3")
        k("v_xor_b32 v13, v13, v12")
        k("v_lshlrev_b32 v13, 6, v13")
        k("v_and_b32 v14, 3, v0")
        k("v_lshl_add_u32 v13, v14, 4, v13")
        k("v_lshrrev_b32 v12, 5, v0")
        k("v_mul_u32_u24 v12, 3584, v12")
        k("v_add_u32 %s, v12, v13" % v(VFO + p_))
    if ffn:
        k("v_lshrrev_b32 v12, 3, v1")
        k("v_bfe_u32 v13, v1, 2, 1")
        k("v_and_b32 v14, 3, v1")
        k("v_lshrrev_b32 v15, 1, v12")
        k("v_and_b32 v12, 1, v12")
        k("v_lshl_add_u32 v14, v12, 2, v14")
        k("v_lshl_add_u32 v14, v13, 3, v14")
        k("v_lshl_add_u32 v14, v15, 4, v14")
        k("v_lshl_add_u32 v14, v2, 5, v14")
        k("s_lshl_b32 %s, %s, 8" % (s(S_T), s(S_CT)))
        k("s_lshl_b32 %s, %s, 6" % (s(S_T2), s(S_LD)))
        k("s_add_u32 %s, %s, %s" % (s(S_T), s(S_T), s(S_T2)))
        k("v_add_u32 v14, %s, v14" % s(S_T))
        k("v_lshlrev_b32 v14, 1, v14")
        k("v_min_u32 v14, 3582, v14")
        k("global_load_ushort v11, v14, %s" % s(S_B1, 2))


def loader_post(k, pre, ffn):
    npf = 4 if "w1n" in OPT else 0
    k("s_waitcnt vmcnt(%d)" % (6 if ffn else 9 + npf))
    if ffn:
        k("v_lshlrev_b32 v11, 16, v11")
        k("s_lshl_b32 %s, %s, 8" % (s(S_T), s(S_LD)))
        k("s_add_u32 %s, %s, %d" % (s(S_T), s(S_T), L_BI))
        k("v_lshl_add_u32 v12, v0, 2, %s" % s(S_T))
        k("ds_write_b32 v12, v11")
        k("s_waitcnt lgkmcnt(0)")
    k("s_barrier")
    k("s_setprio %d" % (3 if "lp3" in OPT else 1))

    def n_of(c):
        return 3 if c < 16 else 4

    def schedule(first, last, total):
        for c in range(first, last + 1):
            younger = sum(n_of(j) for j in (c + 1, c + 2) if j < total)
            if c == 1:
                younger += npf
            k("s_waitcnt vmcnt(%d)" % younger)
            k("s_barrier")
            if c + 3 < total:
                if c + 3 == 16:
                    k.srd(S_WD, S_W1, 512 * 3584)
                    phase_base(k, False)
                issue_chunk(k, c + 3 < 16, c + 3)

    if ffn:
        k("s_cmp_eq_u32 %s, 7" % s(S_CT))
        k("s_cbranch_scc1 %s_lq" % pre)
        schedule(1, 32, 32)
        k("s_branch %s_lend" % pre)
        k.label(pre + "_lq")
    schedule(1, 16, 16)
    k.label(pre + "_lend")
    if "w1pf" in OPT:
        k.srd(S_WD, S_W1, 512 * 3584)
        k("s_lshr_b32 %s, s2, 3" % s(S_T))
        k("s_lshl_b32 %s, %s, 2" % (s(S_T), s(S_T)))
        k("s_add_u32 %s, %s, %s" % (s(S_T), s(S_T), s(S_LD)))
        k("s_mul_i32 %s, %s, %d" % (s(S_T), s(S_T), 4 * 3584))
        k("v_lshlrev_b32 v12, 4, v0")
        for j in range(14):
            k("buffer_load_dwordx4 v[16:19], v12, %s, %s offen" % (s(S_WD, 4), s(S_T)))
            k("s_add_u32 %s, %s, 1024" % (s(S_T), s(S_T)))


def finish(k):
    if "nowait" not in OPT or common.PROF or common.STAMP:
        k("s_waitcnt vmcnt(0)")
    stamp(k, 1, S_WS, S_W)
    if "p2" not in OPT and "p3" not in OPT:
        prof_mark(k, 5)
    prof_rt(k, 6)
    prof_store(k, S_WS, S_W, 28)
    k("s_endpgm")


def gen(k, name, pre, ffn=True):
    k.kernel_begin(name)
    entry(k, pre, name)
    k("s_branch %s_norm" % pre)
    k.label(pre + "_loader")
    loader_pre(k, pre, ffn)
    k.label(pre + "_norm")
    g = Groups()
    issue_chunk(g, True, 2)
    issue_chunk(g, True, 3)
    normalise(k, pre, g.groups, 6 + (1 if ffn else 0))
    k("s_cmp_ge_u32 %s, 4" % s(S_W))
    k("s_cbranch_scc1 %s_lpost" % pre)
    compute(k, pre, ffn)
    finish(k)
    k.label(pre + "_lpost")
    loader_post(k, pre, ffn)
    if "w1pf" in OPT and not common.PROF:
        k("s_endpgm")
    finish(k)
    k.label(pre + "_exit")
    k.kernel_end(name, NV, NV)
    return 256, LDS_BYTES
```

```python
import common
from common import *
import g2
from g2 import S_W, S_RB, S_CB, S_RL, S_T, S_T2, S_WS, S_HD

OPT = set()
WS_XN = 20 << 20
FLAG_H = 8192
ROWB = 448
SLOT = 32 * ROWB
R = 5
L_BI = R * SLOT
LDS_NEED = L_BI + 1024

S_W1, S_B1 = 62, 64
S_W1D = 68
S_LD, S_WO, S_WEND, S_SLOT, S_KC, S_C, S_XB, S_XO, S_ROT, S_LDO = 72, 73, 74, 75, 76, 77, 78, 79, 59, 66

VWB, VW2 = 8, 9
XR = 16
WF = [32, 48]
ACC = 64
VSRC = 8


def next_slot(k):
    k("s_add_u32 %s, %s, %d" % (s(S_SLOT), s(S_SLOT), SLOT))
    k("s_cmp_ge_u32 %s, %d" % (s(S_SLOT), R * SLOT))
    k("s_cselect_b32 %s, 0, %s" % (s(S_SLOT), s(S_SLOT)))


def loader(k, pre):
    k("s_sub_u32 %s, %s, 4" % (s(S_LD), s(S_W)))
    k("s_and_b32 %s, %s, 1" % (s(S_T), s(S_LD)))
    k("s_lshl_b32 %s, %s, 2" % (s(S_T), s(S_T)))
    k("s_mov_b32 %s, 0x%x" % (s(S_T2), (2 ** 32 + ROWB - 1) // ROWB))
    for j in range(4):
        k("s_add_u32 %s, %s, %d" % (s(S_C), s(S_T), j))
        k("s_min_u32 %s, %s, 6" % (s(S_C), s(S_C)))
        k("s_lshl_b32 %s, %s, 10" % (s(S_C), s(S_C)))
        k("v_lshl_add_u32 v12, v0, 4, %s" % s(S_C))
        k("v_mul_hi_u32 v13, v12, %s" % s(S_T2))
        k("v_mul_u32_u24 v14, %d, v13" % ROWB)
        k("v_sub_u32 v14, v12, v14")
        k("v_mul_u32_u24 v13, 3584, v13")
        k("v_add_u32 %s, v13, v14" % v(VSRC + j))
    k("s_lshr_b32 %s, %s, 1" % (s(S_C), s(S_LD)))
    k("s_mul_i32 %s, %s, %d" % (s(S_LDO), s(S_C), 16 * ROWB))
    k("s_lshl_b32 %s, %s, 10" % (s(S_T), s(S_T)))
    k("s_add_u32 %s, %s, %s" % (s(S_LDO), s(S_LDO), s(S_T)))
    k("s_mul_i32 %s, %s, %d" % (s(S_WO), s(S_C), 16 * 3584))
    k("s_mul_i32 %s, %s, %d" % (s(S_T), s(S_CB), ROWB))
    k("s_add_u32 %s, %s, %s" % (s(S_WO), s(S_WO), s(S_T)))
    k("s_add_u32 %s, %s, %d" % (s(S_WEND), s(S_WO), 512 * 3584))
    k("s_mul_i32 %s, %s, %d" % (s(S_T), s(S_ROT), 32 * 3584))
    k("s_add_u32 %s, %s, %s" % (s(S_WO), s(S_WO), s(S_T)))
    k("s_and_b32 %s, %s, 1" % (s(S_KC), s(S_LD)))

    def issue(c):
        k("s_add_u32 m0, %s, %d" % (s(S_LDO), (c % R) * SLOT))
        k("s_nop 0")
        for j in range(4):
            k("buffer_load_dwordx4 %s, %s, %s offen lds" % (v(VSRC + j), s(S_W1D, 4), s(S_WO)))
            if j < 2:
                k("s_add_u32 m0, m0, 1024")
                k("s_nop 0")
            elif j == 2:
                k("s_add_u32 m0, m0, %s" % s(S_XB))
                k("s_nop 0")
        k("s_add_u32 %s, %s, %d" % (s(S_WO), s(S_WO), 32 * 3584))
        k("s_cmp_ge_u32 %s, %s" % (s(S_WO), s(S_WEND)))
        k("s_cselect_b32 %s, %d, 0" % (s(S_T), 512 * 3584))
        k("s_sub_u32 %s, %s, %s" % (s(S_WO), s(S_WO), s(S_T)))

    k("s_cmp_eq_u32 %s, 0" % s(S_KC))
    k("s_cselect_b32 %s, 1024, 0" % s(S_XB))
    k("v_lshrrev_b32 v12, 3, v1")
    k("v_bfe_u32 v13, v1, 2, 1")
    k("v_and_b32 v14, 3, v1")
    k("v_lshrrev_b32 v15, 1, v12")
    k("v_and_b32 v12, 1, v12")
    k("v_lshl_add_u32 v14, v12, 2, v14")
    k("v_lshl_add_u32 v14, v13, 3, v14")
    k("v_lshl_add_u32 v14, v15, 4, v14")
    k("v_lshl_add_u32 v14, v2, 5, v14")
    k("s_mul_i32 %s, %s, 224" % (s(S_T), s(S_CB)))
    k("s_lshl_b32 %s, %s, 6" % (s(S_T2), s(S_LD)))
    k("s_add_u32 %s, %s, %s" % (s(S_T), s(S_T), s(S_T2)))
    k("v_add_u32 v14, %s, v14" % s(S_T))
    k("v_lshlrev_b32 v14, 1, v14")
    k("v_min_u32 v14, 3582, v14")
    if "early" in OPT:
        if "lp" in OPT:
            prof_mark(k, 2)
        issue(0)
        issue(1)
        if "lp" in OPT:
            prof_mark(k, 3)
        k("global_load_ushort v15, v14, %s" % s(S_B1, 2))
        k("s_waitcnt vmcnt(0)")
        if "lp" in OPT:
            prof_mark(k, 4)
    else:
        k("global_load_ushort v15, v14, %s" % s(S_B1, 2))
        k("s_waitcnt vmcnt(0)")
    k("v_lshlrev_b32 v15, 16, v15")
    k("s_lshl_b32 %s, %s, 8" % (s(S_T), s(S_LD)))
    k("s_add_u32 %s, %s, %d" % (s(S_T), s(S_T), L_BI))
    k("v_lshl_add_u32 v12, v0, 2, %s" % s(S_T))
    k("ds_write_b32 v12, v15")
    if "early" in OPT:
        k("s_waitcnt lgkmcnt(0)")
        k("s_barrier")
        issue(2)
        issue(3)
    else:
        for c in range(4):
            issue(c)
        k("s_waitcnt vmcnt(12) lgkmcnt(0)")
    if "early" not in OPT:
        k("s_barrier")
    pf = "w2pf" in OPT
    if pf:
        pass
    npf = 0
    for c in range(1, 17):
        younger = 4 * sum(1 for j in (c + 1, c + 2) if j < 16)
        extra = npf if c + 1 >= 16 else 0
        k("s_waitcnt vmcnt(%d)" % min(63, younger + (npf if pf and c >= 14 else 0)))
        k("s_barrier")
        if c + 3 < 16:
            issue(c + 3)
        if pf and c == 13:
            k.srd(S_W1D, g2.S_W2, 1792 * 1024)
            k("v_lshrrev_b32 v12, 3, v0")
            k("v_and_b32 v13, 7, v0")
            k("v_lshlrev_b32 v13, 4, v13")
            k("v_lshl_add_u32 v12, v12, 10, v13")
            k("s_mul_i32 %s, %s, %d" % (s(S_T), s(S_RL), 448 * 1024))
            k("s_mul_i32 %s, %s, %d" % (s(S_T2), s(S_LD), 112 * 1024))
            k("s_add_u32 %s, %s, %s" % (s(S_T), s(S_T), s(S_T2)))
            k("s_lshl_b32 %s, %s, 7" % (s(S_T2), s(S_CB)))
            k("s_add_u32 %s, %s, %s" % (s(S_WO), s(S_T), s(S_T2)))
        if pf and c >= 13:
            n = 4 if c < 16 else 2
            for j in range(n):
                k("buffer_load_dwordx4 v[16:19], v12, %s, %s offen" % (s(S_W1D, 4), s(S_WO)))
                k("s_add_u32 %s, %s, 8192" % (s(S_WO), s(S_WO)))
            npf += n
    if "w2post" in OPT:
        k.srd(S_W1D, g2.S_W2, 1792 * 1024)
        k("v_lshrrev_b32 v12, 3, v0")
        k("v_and_b32 v13, 7, v0")
        k("v_lshlrev_b32 v13, 4, v13")
        k("v_lshl_add_u32 v12, v12, 10, v13")
        k("s_mul_i32 %s, %s, %d" % (s(S_T), s(S_RL), 448 * 1024))
        k("s_mul_i32 %s, %s, %d" % (s(S_T2), s(S_LD), 112 * 1024))
        k("s_add_u32 %s, %s, %s" % (s(S_T), s(S_T), s(S_T2)))
        k("s_lshl_b32 %s, %s, 7" % (s(S_T2), s(S_CB)))
        k("s_add_u32 %s, %s, %s" % (s(S_WO), s(S_T), s(S_T2)))
        for j in range(14):
            k("buffer_load_dwordx4 v[16:19], v12, %s, %s offen" % (s(S_W1D, 4), s(S_WO)))
            k("s_add_u32 %s, %s, 8192" % (s(S_WO), s(S_WO)))
    if "w8" in g2.OPT:
        k("s_branch %s_post" % pre)
    else:
        if "lp" in OPT:
            prof_mark(k, 5)
            prof_rt(k, 6)
            prof_store(k, S_WS, S_W, 24)
        k("s_endpgm")


def compute(k, pre):
    k("v_bfe_u32 v12, v0, 2, 2")
    k("v_and_b32 v13, 3, v0")
    k("v_bfe_u32 v14, v0, 4, 1")
    k("v_lshl_add_u32 v13, v14, 2, v13")
    k("v_and_b32 v14, 1, v13")
    k("v_lshrrev_b32 v15, 1, v13")
    k("v_lshrrev_b32 v11, 1, v15")
    k("v_and_b32 v15, 1, v15")
    k("v_lshl_add_u32 v15, v14, 1, v15")
    k("v_lshl_add_u32 v13, v11, 2, v15")
    k("v_lshl_add_u32 v14, v2, 3, v12")
    k("v_mul_u32_u24 v14, %d, v14" % ROWB)
    k("v_lshl_add_u32 v14, v13, 3, v14")
    k("s_lshr_b32 %s, %s, 1" % (s(S_T), s(S_W)))
    k("s_lshl_b32 %s, %s, 8" % (s(S_T), s(S_T)))
    k("v_add_u32 %s, %s, v14" % (v(VWB), s(S_T)))
    k("v_lshlrev_b32 v3, 4, v0")
    k("s_lshl_b32 %s, %s, 1" % (s(S_T), s(S_RB)))
    k("s_and_b32 %s, %s, 1" % (s(S_T2), s(S_W)))
    k("s_add_u32 %s, %s, %s" % (s(S_T), s(S_T), s(S_T2)))
    k("s_lshl_b32 %s, %s, 15" % (s(S_XB), s(S_T)))
    k("s_add_u32 %s, %s, 0x%x" % (s(S_XB), s(S_XB), WS_XN))
    k("s_lshl_b32 %s, %s, 11" % (s(S_XO), s(S_ROT)))

    def xload(slot):
        k("s_add_u32 %s, %s, %s" % (s(S_T), s(S_XB), s(S_XO)))
        k("buffer_load_dwordx4 %s, v3, %s, %s offen" % (v(XR + 4 * slot, 4), s(S_HD, 4), s(S_T)))
        k("s_add_u32 %s, %s, 1024" % (s(S_XO), s(S_XO)))
        k("s_and_b32 %s, %s, 0x7fff" % (s(S_XO), s(S_XO)))

    for sl in range(3):
        xload(sl)
    k("s_mov_b32 %s, 0" % s(S_SLOT))
    k("s_barrier")
    if "p" in OPT:
        prof_mark(k, 3)
    k("s_lshr_b32 %s, %s, 1" % (s(S_T), s(S_W)))
    k("s_lshl_b32 %s, %s, 9" % (s(S_T), s(S_T)))
    k("s_add_u32 %s, %s, %d" % (s(S_T), s(S_T), L_BI))
    k("v_lshl_add_u32 v12, v2, 4, %s" % s(S_T))
    for ft in range(4):
        for g in range(4):
            k("ds_read_b128 %s, v12 offset:%d" % (v(ACC + 16 * ft + 4 * g, 4), ft * 128 + g * 32))
    F = 4

    def slot_ops(par):
        k("v_add_u32 %s, %s, %s" % (v(VW2 + par), s(S_SLOT), v(VWB)))

    def rd_w(par, st, buf, ft):
        for u in range(2):
            k("ds_read_b64_tr_b16 %s, %s offset:%d" % (v(WF[buf] + 4 * ft + 2 * u, 2), v(VW2 + par), st * 16 * ROWB + u * 4 * ROWB + ft * 64))

    slot_ops(0)
    for ft in range(F):
        rd_w(0, 0, 0, ft)
    k("s_waitcnt lgkmcnt(8)")
    k("s_mov_b32 %s, 0" % s(S_C))
    k.label(pre + "_loop")
    step = 0
    for par in range(2):
        for st in range(2):
            b, nb = st, 1 - st
            npar = par if st == 0 else 1 - par
            xs = step & 3
            k("s_waitcnt vmcnt(2)")
            for ft in range(F):
                newer = 2 * (F - 1 - ft) + 2 * ft
                k("s_waitcnt lgkmcnt(%d)" % newer)
                d = v(ACC + 16 * ft, 16)
                k("v_mfma_f32_32x32x16_bf16 %s, %s, %s, %s" % (d, v(WF[b] + 4 * ft, 4), v(XR + 4 * xs, 4), d))
                if ft == 0 and st == 1:
                    k("s_barrier")
                rd_w(npar, 1 - st, nb, ft)
                if ft == 0:
                    xload((xs + 3) & 3)
                if st == 0 and ft == 1:
                    next_slot(k)
                if st == 0 and ft == F - 1:
                    slot_ops(1 - par)
            step += 1
    k("s_add_u32 %s, %s, 1" % (s(S_C), s(S_C)))
    k("s_cmp_lt_u32 %s, 8" % s(S_C))
    k("s_cbranch_scc1 %s_loop" % pre)
    k("s_waitcnt vmcnt(0) lgkmcnt(0)")
    if "p" in OPT:
        prof_mark(k, 4)
    epilogue(k, pre)


def epilogue(k, pre):
    if "fast" in g2.OPT:
        g2.resid_early_loads(k)
    k("s_lshl_b32 %s, %s, 1" % (s(S_T2), s(S_RB)))
    k("s_and_b32 %s, %s, 1" % (s(S_T), s(S_W)))
    k("s_add_u32 %s, %s, %s" % (s(S_T2), s(S_T2), s(S_T)))
    k("s_mul_i32 %s, %s, %d" % (s(S_T), s(S_T2), WS_HO_ROW))
    k("s_mul_i32 %s, %s, %d" % (s(S_T2), s(S_CB), 14 * 1024))
    k("s_add_u32 %s, %s, %s" % (s(S_T), s(S_T), s(S_T2)))
    k("s_lshr_b32 %s, %s, 1" % (s(S_T2), s(S_W)))
    k("s_lshl_b32 %s, %s, 13" % (s(S_C), s(S_T2)))
    k("s_add_u32 %s, %s, %s" % (s(S_T), s(S_T), s(S_C)))
    k("s_add_u32 %s, %s, 0x%x" % (s(S_T), s(S_T), WS_HO))
    k("v_add_u32 v12, %s, v3" % s(S_T))
    B = WF[0]
    for ft in range(4):
        if ft == 3:
            k("s_cmp_lg_u32 %s, 0" % s(S_T2))
            k("s_cbranch_scc1 %s_nost" % pre)
        A = ACC + 16 * ft
        for r in range(16):
            k("v_max_f32 %s, 0, %s" % (v(B + r), v(A + r)))
        for r in range(16):
            k("v_mul_f32 %s, %s, %s" % (v(A + r), v(A + r), v(B + r)))
        for r in range(8):
            k("v_cvt_pk_bf16_f32 %s, %s, %s" % (v(A + r), v(A + 2 * r), v(A + 2 * r + 1)))
        k("buffer_store_dwordx4 %s, v12, %s, 0 offen offset:%d sc1" % (v(A, 4), s(S_HD, 4), 2048 * (ft & 1)))
        k("buffer_store_dwordx4 %s, v12, %s, 0 offen offset:%d sc1" % (v(A + 4, 4), s(S_HD, 4), 2048 * (ft & 1) + 1024))
        if ft == 1:
            k("v_add_u32 v12, 4096, v12")
    k.label(pre + "_nost")
    k("s_waitcnt vmcnt(0)")
    if "p" in OPT:
        prof_mark(k, 5)
    if "hpf" in OPT:
        k("v_add_u32 v12, %s, v3" % s(S_T))
        for j in range(8):
            if j == 4:
                k("v_add_u32 v12, 4096, v12")
            if j == 6:
                k("s_cmp_lg_u32 %s, 0" % s(S_T2))
                k("s_cbranch_scc1 %s_nre" % pre)
            k("buffer_load_dwordx4 %s, v12, %s, 0 offen offset:%d sc1" % (v(XR + 4 * (j & 3), 4), s(S_HD, 4), 1024 * (j & 3)))
        k.label(pre + "_nre")
    handoff(k, pre)


def handoff(k, pre):
    if "wf" in OPT:
        k("s_lshl_b32 %s, %s, 7" % (s(S_C), s(S_RB)))
        k("s_add_u32 %s, %s, 0x%x" % (s(S_C), s(S_C), WS_FLAG + FLAG_H))
        k("s_lshl_b32 %s, %s, 2" % (s(S_T), s(S_CB)))
        k("s_add_u32 %s, %s, %s" % (s(S_T), s(S_T), s(S_W)))
        k("s_lshl_b32 %s, %s, 2" % (s(S_T), s(S_T)))
        k("s_add_u32 %s, %s, %s" % (s(S_T), s(S_T), s(S_C)))
        k("v_mov_b32 v12, %s" % s(S_T))
        k("v_mov_b32 v13, 1")
        k("s_mov_b64 exec, 1")
        k("global_store_dword v12, v13, %s sc1" % s(S_WS, 2))
        k("s_mov_b64 exec, -1")
        k("s_lshl_b32 %s, %s, 5" % (s(S_T), s(S_W)))
        k("s_add_u32 %s, %s, %s" % (s(S_C), s(S_C), s(S_T)))
        k("v_and_b32 v8, 7, v0")
        k("v_lshl_add_u32 v8, v8, 2, %s" % s(S_C))
        k("s_mov_b32 %s, 0" % s(S_KC))
        k.label(pre + "_wp")
        k("global_load_dword v9, v8, %s sc1" % s(S_WS, 2))
        k("s_add_u32 %s, %s, 1" % (s(S_KC), s(S_KC)))
        k("s_waitcnt vmcnt(0)")
        k("v_cmp_eq_u32 vcc, 0, v9")
        k("s_nop 1")
        k("s_cmp_eq_u64 vcc, 0")
        k("s_cbranch_scc1 %s_wg" % pre)
        k("s_sleep 2")
        k("s_cmp_lt_u32 %s, 0x40000" % s(S_KC))
        k("s_cbranch_scc1 %s_wp" % pre)
        k.label(pre + "_wg")
        return
    k.label(pre + "_post")
    k("s_barrier")
    k("s_lshl_b32 %s, %s, 7" % (s(S_C), s(S_RB)))
    k("s_add_u32 %s, %s, 0x%x" % (s(S_C), s(S_C), WS_FLAG + FLAG_H))
    k("s_cmp_eq_u32 %s, 0" % s(S_W))
    k("s_cbranch_scc0 %s_nf" % pre)
    k("s_lshl_b32 %s, %s, 2" % (s(S_T), s(S_CB)))
    k("s_add_u32 %s, %s, %s" % (s(S_T), s(S_T), s(S_C)))
    k("v_mov_b32 v12, %s" % s(S_T))
    k("v_mov_b32 v13, 1")
    k("s_mov_b64 exec, 1")
    k("global_store_dword v12, v13, %s sc1" % s(S_WS, 2))
    k("s_mov_b64 exec, -1")
    k.label(pre + "_nf")
    g2.wait_flags(k, pre + "_hw", S_C, 8, far=False)


def phase(k, pre):
    phase_head(k, pre)
    loader(k, pre)
    k.label(pre + "_cmp")
    compute(k, pre)


def phase_head(k, pre):
    if "map84" in g2.OPT:
        k("s_lshl_b32 %s, %s, 1" % (s(S_ROT), s(S_RL)))
        k("s_and_b32 %s, %s, 3" % (s(S_T), s(S_CB)))
        k("s_lshl_b32 %s, %s, 2" % (s(S_T), s(S_T)))
    else:
        k("s_lshl_b32 %s, %s, 2" % (s(S_ROT), s(S_RL)))
        k("s_lshl_b32 %s, %s, 1" % (s(S_T), s(S_CB)))
    k("s_add_u32 %s, %s, %s" % (s(S_ROT), s(S_ROT), s(S_T)))
    k("s_and_b32 %s, %s, 15" % (s(S_ROT), s(S_ROT)))
    k("s_mov_b32 %s, %s" % (s(S_W1D), s(S_W1)))
    k("s_and_b32 %s, %s, 0xffff" % (s(S_W1D + 1), s(S_W1 + 1)))
    k("s_mov_b32 %s, 0x%x" % (s(S_W1D + 2), 512 * 3584))
    k("s_mov_b32 %s, 0x20000" % s(S_W1D + 3))
    k("s_cmp_ge_u32 %s, 4" % s(S_W))
    k("s_cbranch_scc0 %s_cmp" % pre)
```

```python
import common
from common import *
import g2
from g2 import S_W, S_RB, S_CB, S_RL, S_T, S_T2, S_WS, S_HD
import f1
from f1 import WS_XN, FLAG_H, ROWB, S_W1, S_B1, S_W1D, S_LD, S_WO, S_WEND, S_SLOT, S_KC, S_C, S_XB, S_XO, S_ROT, S_LDO

OPT = f1.OPT
WB = 32 * ROWB
SLOT = WB + 4096
R = 4
L_BI = R * SLOT
LDS_NEED = L_BI + 1024
S_D3, S_O3, S_INC3, S_END3, S_WRAP3, S_LDO3 = 92, 67, 90, 91, 60, 61
VWB, VW2, VXB, VX2 = 8, 9, 11, 12
XF = [16, 20]
WF = [32, 48]
ACC = 64
VSRC = 8


def next_slot(k):
    k("s_add_u32 %s, %s, %d" % (s(S_SLOT), s(S_SLOT), SLOT))
    k("s_cmp_ge_u32 %s, %d" % (s(S_SLOT), R * SLOT))
    k("s_cselect_b32 %s, 0, %s" % (s(S_SLOT), s(S_SLOT)))


def loader(k, pre):
    k("s_sub_u32 %s, %s, 4" % (s(S_LD), s(S_W)))
    k("s_and_b32 %s, %s, 1" % (s(S_KC), s(S_LD)))
    k("s_lshl_b32 %s, %s, 2" % (s(S_T), s(S_KC)))
    k("s_mov_b32 %s, 0x%x" % (s(S_T2), (2 ** 32 + ROWB - 1) // ROWB))
    for j in range(4):
        k("s_add_u32 %s, %s, %d" % (s(S_C), s(S_T), j))
        k("s_lshl_b32 %s, %s, 10" % (s(S_C), s(S_C)))
        k("v_lshl_add_u32 v12, v0, 4, %s" % s(S_C))
        k("v_mul_hi_u32 v13, v12, %s" % s(S_T2))
        k("v_mul_u32_u24 v14, %d, v13" % ROWB)
        k("v_sub_u32 v14, v12, v14")
        k("v_mul_u32_u24 v13, 3584, v13")
        k("v_add_u32 %s, v13, v14" % v(VSRC + j))
    k("s_lshr_b32 %s, %s, 1" % (s(S_C), s(S_LD)))
    k("s_mul_i32 %s, %s, %d" % (s(S_LDO), s(S_C), 16 * ROWB))
    k("s_lshl_b32 %s, %s, 10" % (s(S_T), s(S_T)))
    k("s_add_u32 %s, %s, %s" % (s(S_LDO), s(S_LDO), s(S_T)))
    k("s_mul_i32 %s, %s, %d" % (s(S_WO), s(S_C), 16 * 3584))
    k("s_mul_i32 %s, %s, %d" % (s(S_T), s(S_CB), ROWB))
    k("s_add_u32 %s, %s, %s" % (s(S_WO), s(S_WO), s(S_T)))
    k("s_add_u32 %s, %s, %d" % (s(S_WEND), s(S_WO), 512 * 3584))
    k("s_mul_i32 %s, %s, %d" % (s(S_T), s(S_ROT), 32 * 3584))
    k("s_add_u32 %s, %s, %s" % (s(S_WO), s(S_WO), s(S_T)))
    k("s_lshl_b32 %s, %s, 1" % (s(S_T), s(S_RB)))
    k("s_add_u32 %s, %s, %s" % (s(S_T), s(S_T), s(S_C)))
    k("s_lshl_b32 %s, %s, 15" % (s(S_XB), s(S_T)))
    k("s_add_u32 %s, %s, 0x%x" % (s(S_XB), s(S_XB), WS_XN))
    k("s_lshl_b32 %s, %s, 11" % (s(S_T), s(S_ROT)))
    k("s_add_u32 %s, %s, %s" % (s(S_XO), s(S_XB), s(S_T)))
    k("s_lshl_b32 %s, %s, 11" % (s(S_T), s(S_C)))
    k("s_add_u32 %s, %s, %d" % (s(S_T), s(S_T), WB))
    k("s_add_u32 %s, %s, 3072" % (s(S_T2), s(S_LDO)))
    k("s_cmp_eq_u32 %s, 0" % s(S_KC))
    k("s_cselect_b32 %s, %s, %s" % (s(S_LDO3), s(S_T2), s(S_T)))
    k("s_cselect_b32 %s, %s, %s" % (s(S_D3), s(S_W1D), s(S_HD)))
    k("s_cselect_b32 %s, %s, %s" % (s(S_D3 + 1), s(S_W1D + 1), s(S_HD + 1)))
    k("s_cselect_b32 %s, %s, %s" % (s(S_D3 + 2), s(S_W1D + 2), s(S_HD + 2)))
    k("s_mov_b32 %s, 0x20000" % s(S_D3 + 3))
    k("s_cselect_b32 %s, %s, %s" % (s(S_O3), s(S_WO), s(S_XO)))
    k("s_movk_i32 %s, 2048" % s(S_INC3))
    k("s_cselect_b32 %s, %d, %s" % (s(S_INC3), 32 * 3584, s(S_INC3)))
    k("s_add_u32 %s, %s, 32768" % (s(S_T), s(S_XB)))
    k("s_cmp_eq_u32 %s, 0" % s(S_KC))
    k("s_cselect_b32 %s, %s, %s" % (s(S_END3), s(S_WEND), s(S_T)))
    k("s_mov_b32 %s, 32768" % s(S_WRAP3))
    k("s_cselect_b32 %s, %d, %s" % (s(S_WRAP3), 512 * 3584, s(S_WRAP3)))
    k("v_lshlrev_b32 v12, 4, v0")
    k("s_cselect_b64 vcc, -1, 0")
    k("v_cndmask_b32 %s, v12, %s, vcc" % (v(VSRC + 3), v(VSRC + 3)))

    def issue(c, tag):
        sl = (c % R) * SLOT
        k("s_add_u32 m0, %s, %d" % (s(S_LDO), sl))
        k("s_nop 0")
        for j in range(3):
            k("buffer_load_dwordx4 %s, %s, %s offen lds" % (v(VSRC + j), s(S_W1D, 4), s(S_WO)))
            if j < 2:
                k("s_add_u32 m0, m0, 1024")
                k("s_nop 0")
        k("s_add_u32 m0, %s, %d" % (s(S_LDO3), sl))
        k("s_cmp_eq_u32 %s, 0" % s(S_KC))
        k("buffer_load_dwordx4 %s, %s, %s offen lds" % (v(VSRC + 3), s(S_D3, 4), s(S_O3)))
        k("s_cbranch_scc1 %s_e%s" % (pre, tag))
        k("buffer_load_dwordx4 %s, %s, %s offen offset:1024 lds" % (v(VSRC + 3), s(S_D3, 4), s(S_O3)))
        k.label("%s_e%s" % (pre, tag))
        k("s_add_u32 %s, %s, %d" % (s(S_WO), s(S_WO), 32 * 3584))
        k("s_cmp_ge_u32 %s, %s" % (s(S_WO), s(S_WEND)))
        k("s_cselect_b32 %s, %d, 0" % (s(S_T), 512 * 3584))
        k("s_sub_u32 %s, %s, %s" % (s(S_WO), s(S_WO), s(S_T)))
        k("s_add_u32 %s, %s, %s" % (s(S_O3), s(S_O3), s(S_INC3)))
        k("s_cmp_ge_u32 %s, %s" % (s(S_O3), s(S_END3)))
        k("s_cselect_b32 %s, %s, 0" % (s(S_T), s(S_WRAP3)))
        k("s_sub_u32 %s, %s, %s" % (s(S_O3), s(S_O3), s(S_T)))

    k("v_lshrrev_b32 v12, 3, v1")
    k("v_bfe_u32 v13, v1, 2, 1")
    k("v_and_b32 v14, 3, v1")
    k("v_lshrrev_b32 v15, 1, v12")
    k("v_and_b32 v12, 1, v12")
    k("v_lshl_add_u32 v14, v12, 2, v14")
    k("v_lshl_add_u32 v14, v13, 3, v14")
    k("v_lshl_add_u32 v14, v15, 4, v14")
    k("v_lshl_add_u32 v14, v2, 5, v14")
    k("s_mul_i32 %s, %s, 224" % (s(S_T), s(S_CB)))
    k("s_lshl_b32 %s, %s, 6" % (s(S_T2), s(S_LD)))
    k("s_add_u32 %s, %s, %s" % (s(S_T), s(S_T), s(S_T2)))
    k("v_add_u32 v14, %s, v14" % s(S_T))
    k("v_lshlrev_b32 v14, 1, v14")
    k("v_min_u32 v14, 3582, v14")
    k("global_load_ushort v15, v14, %s" % s(S_B1, 2))
    if "early" not in OPT:
        k("s_waitcnt vmcnt(0)")
    issue(0, "a")
    issue(1, "b")
    k("s_waitcnt vmcnt(4)")
    k("v_lshlrev_b32 v15, 16, v15")
    k("s_lshl_b32 %s, %s, 8" % (s(S_T), s(S_LD)))
    k("s_add_u32 %s, %s, %d" % (s(S_T), s(S_T), L_BI))
    k("v_lshl_add_u32 v12, v0, 2, %s" % s(S_T))
    k("ds_write_b32 v12, v15")
    k("s_waitcnt lgkmcnt(0)")
    k("s_barrier")
    issue(2, "c")
    for c in range(1, 17):
        k("s_waitcnt vmcnt(%d)" % (4 if c + 1 < 16 else 0))
        k("s_barrier")
        if c + 2 < 16:
            issue(c + 2, "l%d" % c)
    k("s_endpgm")


def compute(k, pre):
    k("v_bfe_u32 v12, v0, 2, 2")
    k("v_and_b32 v13, 3, v0")
    k("v_bfe_u32 v14, v0, 4, 1")
    k("v_lshl_add_u32 v13, v14, 2, v13")
    k("v_and_b32 v14, 1, v13")
    k("v_lshrrev_b32 v15, 1, v13")
    k("v_lshrrev_b32 v11, 1, v15")
    k("v_and_b32 v15, 1, v15")
    k("v_lshl_add_u32 v15, v14, 1, v15")
    k("v_lshl_add_u32 v13, v11, 2, v15")
    k("v_lshl_add_u32 v14, v2, 3, v12")
    k("v_mul_u32_u24 v14, %d, v14" % ROWB)
    k("v_lshl_add_u32 v14, v13, 3, v14")
    k("s_lshr_b32 %s, %s, 1" % (s(S_T), s(S_W)))
    k("s_lshl_b32 %s, %s, 8" % (s(S_T), s(S_T)))
    k("v_add_u32 %s, %s, v14" % (v(VWB), s(S_T)))
    k("v_lshlrev_b32 v3, 4, v0")
    k("s_and_b32 %s, %s, 1" % (s(S_T), s(S_W)))
    k("s_lshl_b32 %s, %s, 11" % (s(S_T), s(S_T)))
    k("s_add_u32 %s, %s, %d" % (s(S_T), s(S_T), WB))
    k("v_add_u32 %s, %s, v3" % (v(VXB), s(S_T)))
    k("s_mov_b32 %s, 0" % s(S_SLOT))
    k("s_barrier")
    if "p" in OPT:
        prof_mark(k, 3)
    k("s_lshr_b32 %s, %s, 1" % (s(S_T), s(S_W)))
    k("s_lshl_b32 %s, %s, 9" % (s(S_T), s(S_T)))
    k("s_add_u32 %s, %s, %d" % (s(S_T), s(S_T), L_BI))
    k("v_lshl_add_u32 v14, v2, 4, %s" % s(S_T))
    for ft in range(4):
        for g in range(4):
            k("ds_read_b128 %s, v14 offset:%d" % (v(ACC + 16 * ft + 4 * g, 4), ft * 128 + g * 32))
    F = 4

    def slot_ops(par):
        k("v_add_u32 %s, %s, %s" % (v(VW2 + par), s(S_SLOT), v(VWB)))
        k("v_add_u32 %s, %s, %s" % (v(VX2 + par), s(S_SLOT), v(VXB)))

    def rd_x(par, st, buf):
        k("ds_read_b128 %s, %s offset:%d" % (v(XF[buf], 4), v(VX2 + par), st * 1024))

    def rd_w(par, st, buf, ft):
        for u in range(2):
            k("ds_read_b64_tr_b16 %s, %s offset:%d" % (v(WF[buf] + 4 * ft + 2 * u, 2), v(VW2 + par), st * 16 * ROWB + u * 4 * ROWB + ft * 64))

    slot_ops(0)
    k("s_waitcnt lgkmcnt(0)")
    rd_x(0, 0, 0)
    for ft in range(F):
        rd_w(0, 0, 0, ft)
    k("s_mov_b32 %s, 0" % s(S_C))
    k.label(pre + "_loop")
    for par in range(2):
        for st in range(2):
            b, nb = st, 1 - st
            npar = par if st == 0 else 1 - par
            for ft in range(F):
                newer = 2 * (F - 1 - ft) + (0 if ft == 0 else 1 + 2 * ft)
                k("s_waitcnt lgkmcnt(%d)" % newer)
                d = v(ACC + 16 * ft, 16)
                k("v_mfma_f32_32x32x16_bf16 %s, %s, %s, %s" % (d, v(WF[b] + 4 * ft, 4), v(XF[b], 4), d))
                if ft == 0:
                    if st == 1:
                        k("s_barrier")
                    rd_x(npar, 1 - st, nb)
                rd_w(npar, 1 - st, nb, ft)
                if st == 0 and ft == 1:
                    next_slot(k)
                if st == 0 and ft == F - 1:
                    slot_ops(1 - par)
    k("s_add_u32 %s, %s, 1" % (s(S_C), s(S_C)))
    k("s_cmp_lt_u32 %s, 8" % s(S_C))
    k("s_cbranch_scc1 %s_loop" % pre)
    k("s_waitcnt lgkmcnt(0)")
    if "p" in OPT:
        prof_mark(k, 4)
    f1.epilogue(k, pre)


def compute22(k, pre):
    k("v_bfe_u32 v12, v0, 2, 2")
    k("v_and_b32 v13, 3, v0")
    k("v_bfe_u32 v14, v0, 4, 1")
    k("v_lshl_add_u32 v13, v14, 2, v13")
    k("v_and_b32 v14, 1, v13")
    k("v_lshrrev_b32 v15, 1, v13")
    k("v_lshrrev_b32 v11, 1, v15")
    k("v_and_b32 v15, 1, v15")
    k("v_lshl_add_u32 v15, v14, 1, v15")
    k("v_lshl_add_u32 v13, v11, 2, v15")
    k("v_lshl_add_u32 v14, v2, 3, v12")
    k("v_mul_u32_u24 v14, %d, v14" % ROWB)
    k("v_lshl_add_u32 v14, v13, 3, v14")
    k("s_lshl_b32 %s, %s, 7" % (s(S_T), s(S_W)))
    k("v_add_u32 %s, %s, v14" % (v(VWB), s(S_T)))
    k("v_lshlrev_b32 v3, 4, v0")
    k("v_add_u32 %s, %d, v3" % (v(VXB), WB))
    k("s_mov_b32 %s, 0" % s(S_SLOT))
    XF2 = [16, 24]
    WF2 = [32, 40]
    k("s_barrier")
    if "p" in OPT:
        prof_mark(k, 3)
    k("s_lshl_b32 %s, %s, 8" % (s(S_T), s(S_W)))
    k("s_add_u32 %s, %s, %d" % (s(S_T), s(S_T), L_BI))
    k("v_lshl_add_u32 v14, v2, 4, %s" % s(S_T))
    for tt in range(2):
        for j in range(2):
            for g in range(4):
                k("ds_read_b128 %s, v14 offset:%d" % (v(ACC + 16 * (2 * tt + j) + 4 * g, 4), j * 128 + g * 32))

    def slot_ops(par):
        k("v_add_u32 %s, %s, %s" % (v(VW2 + par), s(S_SLOT), v(VWB)))
        k("v_add_u32 %s, %s, %s" % (v(VX2 + par), s(S_SLOT), v(VXB)))

    def rd_x(par, st, buf, tt):
        k("ds_read_b128 %s, %s offset:%d" % (v(XF2[buf] + 4 * tt, 4), v(VX2 + par), tt * 2048 + st * 1024))

    def rd_w(par, st, buf, j):
        for u in range(2):
            k("ds_read_b64_tr_b16 %s, %s offset:%d" % (v(WF2[buf] + 4 * j + 2 * u, 2), v(VW2 + par), st * 16 * ROWB + u * 4 * ROWB + j * 64))

    slot_ops(0)
    k("s_waitcnt lgkmcnt(0)")
    k("s_cmp_eq_u32 %s, 3" % s(S_W))
    k("s_cbranch_scc1 %s_one" % pre)
    for F in (2, 1):
        lab = pre + ("_two" if F == 2 else "_one")
        k.label(lab)
        rd_x(0, 0, 0, 0)
        rd_w(0, 0, 0, 0)
        if F == 2:
            rd_w(0, 0, 0, 1)
        rd_x(0, 0, 0, 1)
        k("s_mov_b32 %s, 0" % s(S_C))
        k.label(lab + "_loop")
        for par in range(2):
            for st in range(2):
                b, nb = st, 1 - st
                npar = par if st == 0 else 1 - par
                order = ["x0", "w0a", "w0b"] + (["w1a", "w1b"] if F == 2 else []) + ["x1"]
                issued = []
                mf = [(0, 0), (0, 1), (1, 0), (1, 1)] if F == 2 else [(0, 0), (1, 0)]
                nxt = {0: [("x", 0), ("w", 0)], 1: [("w", 1)], 2: [("x", 1)], 3: []} if F == 2 else {0: [("x", 0), ("w", 0)], 1: [("x", 1)]}
                for mi, (tt, j) in enumerate(mf):
                    needs = ["x%d" % tt, "w%da" % j, "w%db" % j]
                    last = max(order.index(n) for n in needs)
                    k("s_waitcnt lgkmcnt(%d)" % (len(order) - 1 - last + len(issued)))
                    d = v(ACC + 16 * (2 * tt + j), 16)
                    k("v_mfma_f32_32x32x16_bf16 %s, %s, %s, %s" % (d, v(WF2[b] + 4 * j, 4), v(XF2[b] + 4 * tt, 4), d))
                    if mi == 0 and st == 1:
                        k("s_barrier")
                    for kind, idx in nxt[mi]:
                        if kind == "x":
                            rd_x(npar, 1 - st, nb, idx)
                            issued.append(1)
                        else:
                            rd_w(npar, 1 - st, nb, idx)
                            issued.extend([1, 1])
                    if st == 0 and mi == 0:
                        next_slot(k)
                    if st == 0 and mi == len(mf) - 1:
                        slot_ops(1 - par)
        k("s_add_u32 %s, %s, 1" % (s(S_C), s(S_C)))
        k("s_cmp_lt_u32 %s, 8" % s(S_C))
        k("s_cbranch_scc1 %s_loop" % lab)
        if F == 2:
            k("s_branch %s_done" % pre)
    k.label(pre + "_done")
    k("s_waitcnt lgkmcnt(0)")
    if "p" in OPT:
        prof_mark(k, 4)
    k("s_lshl_b32 %s, %s, 1" % (s(S_T2), s(S_RB)))
    k("s_mul_i32 %s, %s, %d" % (s(S_T), s(S_T2), WS_HO_ROW))
    k("s_mul_i32 %s, %s, %d" % (s(S_T2), s(S_CB), 14 * 1024))
    k("s_add_u32 %s, %s, %s" % (s(S_T), s(S_T), s(S_T2)))
    k("s_lshl_b32 %s, %s, 12" % (s(S_T2), s(S_W)))
    k("s_add_u32 %s, %s, %s" % (s(S_T), s(S_T), s(S_T2)))
    k("s_add_u32 %s, %s, 0x%x" % (s(S_T), s(S_T), WS_HO))
    k("v_add_u32 v12, %s, v3" % s(S_T))
    k("v_add_u32 v13, %d, v12" % WS_HO_ROW)
    B = 32
    for j in range(2):
        if j == 1:
            k("s_cmp_eq_u32 %s, 3" % s(S_W))
            k("s_cbranch_scc1 %s_nost" % pre)
        for tt in range(2):
            A = ACC + 16 * (2 * tt + j)
            for r in range(16):
                k("v_max_f32 %s, 0, %s" % (v(B + r), v(A + r)))
            for r in range(0, 16, 2):
                k("v_pk_mul_f32 %s, %s, %s" % (v(A + r, 2), v(A + r, 2), v(B + r, 2)))
            for r in range(8):
                k("v_cvt_pk_bf16_f32 %s, %s, %s" % (v(A + r), v(A + 2 * r), v(A + 2 * r + 1)))
            k("buffer_store_dwordx4 %s, %s, %s, 0 offen offset:%d sc1" % (v(A, 4), v(12 + tt), s(S_HD, 4), 2048 * j))
            k("buffer_store_dwordx4 %s, %s, %s, 0 offen offset:%d sc1" % (v(A + 4, 4), v(12 + tt), s(S_HD, 4), 2048 * j + 1024))
    k.label(pre + "_nost")
    k("s_waitcnt vmcnt(0)")
    if "hpf" in OPT:
        for j in range(2):
            if j == 1:
                k("s_cmp_eq_u32 %s, 3" % s(S_W))
                k("s_cbranch_scc1 %s_nre" % pre)
            for tt in range(2):
                for u in range(2):
                    k("buffer_load_dwordx4 %s, %s, %s, 0 offen offset:%d sc1" % (v(16 + 8 * tt + 4 * u, 4), v(12 + tt), s(S_HD, 4), 2048 * j + 1024 * u))
        k.label(pre + "_nre")
    f1.handoff(k, pre)


def phase(k, pre):
    f1.phase_head(k, pre)
    loader(k, pre)
    k.label(pre + "_cmp")
    if "t22" in OPT:
        compute22(k, pre)
    else:
        compute(k, pre)
```

```python
import common
from common import *

OPT = set()
S_X, S_W2, S_WOP, S_B2, S_OUT, S_WS = 4, 6, 8, 10, 12, 14
S_HD, S_WD, S_XD, S_OD, S_BD = 16, 20, 28, 32, 52
S_W, S_RB, S_CB, S_T, S_T2, S_LB = 36, 37, 38, 39, 40, 41
S_XO0, S_XO1, S_WO, S_WRAP, S_LEFT, S_N, S_TRIP, S_RL = 42, 43, 44, 45, 46, 47, 48, 49
S_BX, S_BW, S_BWRAP = 56, 57, 58
D = 4
WSLOT = 2048
RING = D * WSLOT
VWS, VWR, VL16 = 4, 6, 3
XF, WF, ACC = 16, 48, 64
NA, NB = 28, 8


def setup(k):
    k("v_and_b32 v1, 31, v0")
    k("v_lshrrev_b32 v2, 5, v0")
    k("v_lshlrev_b32 v3, 4, v0")
    k("v_lshrrev_b32 v4, 3, v0")
    k("v_bfe_u32 v5, v0, 2, 1")
    k("v_bfe_u32 v6, v0, 4, 1")
    k("v_xor_b32 v5, v5, v6")
    k("v_and_b32 v6, 3, v0")
    k("v_lshlrev_b32 v6, 4, v6")
    k("v_lshl_add_u32 v5, v5, 6, v6")
    k("v_lshl_add_u32 v4, v4, 10, v5")
    k("v_bfe_u32 v12, v0, 2, 2")
    k("v_and_b32 v13, 3, v0")
    k("v_bfe_u32 v14, v0, 4, 1")
    k("v_lshl_add_u32 v13, v14, 2, v13")
    k("v_and_b32 v14, 1, v13")
    k("v_lshrrev_b32 v15, 1, v13")
    k("v_lshrrev_b32 v8, 1, v15")
    k("v_and_b32 v15, 1, v15")
    k("v_lshl_add_u32 v15, v14, 1, v15")
    k("v_lshl_add_u32 v13, v8, 2, v15")
    k("v_lshl_add_u32 v14, v2, 3, v12")
    k("v_lshlrev_b32 v14, 7, v14")
    k("v_lshl_add_u32 v14, v13, 3, v14")
    k("v_lshrrev_b32 v12, 1, v12")
    k("v_add_u32 v14, %s, v14" % s(S_LB))
    for ft in range(2):
        k("v_xor_b32 v15, %d, v12" % ft)
        k("v_lshl_add_u32 %s, v15, 6, v14" % v(VWR + ft))
    for j in range(64):
        k("v_mov_b32 %s, 0" % v(ACC + j))


def seg_params(k, n, kbase, dx, dw, dwrap):
    if "map84" in OPT:
        k("s_mul_i32 %s, %s, %d" % (s(S_T), s(S_RL), n))
        k("s_lshr_b32 %s, %s, 3" % (s(S_T), s(S_T)))
        k("s_and_b32 %s, %s, 3" % (s(S_T2), s(S_CB)))
        k("s_mul_i32 %s, %s, %d" % (s(S_T2), s(S_T2), n // 4))
    else:
        k("s_mul_i32 %s, %s, %d" % (s(S_T), s(S_RL), n // 4))
        k("s_mul_i32 %s, %s, %d" % (s(S_T2), s(S_CB), n))
        k("s_lshr_b32 %s, %s, 3" % (s(S_T2), s(S_T2)))
    k("s_add_u32 %s, %s, %s" % (s(S_T), s(S_T), s(S_T2)))
    k("s_cmp_ge_u32 %s, %d" % (s(S_T), n))
    k("s_cselect_b32 %s, %d, 0" % (s(S_T2), n))
    k("s_sub_u32 %s, %s, %s" % (s(S_T), s(S_T), s(S_T2)))
    k("s_sub_u32 %s, %d, %s" % (s(dwrap), n, s(S_T)))
    k("s_mul_i32 %s, %s, %d" % (s(S_T2), s(S_W), n))
    k("s_add_u32 %s, %s, %s" % (s(S_T), s(S_T), s(S_T2)))
    k("s_lshl_b32 %s, %s, 14" % (s(dw), s(S_T)))
    k("s_lshl_b32 %s, %s, 7" % (s(S_T2), s(S_CB)))
    k("s_add_u32 %s, %s, %s" % (s(dw), s(dw), s(S_T2)))
    k("s_add_u32 %s, %s, %d" % (s(S_T), s(S_T), kbase))
    k("s_lshl_b32 %s, %s, 10" % (s(S_T), s(S_T)))
    k("s_lshl_b32 %s, %s, 1" % (s(S_T2), s(S_RB)))
    k("s_mul_i32 %s, %s, %d" % (s(dx), s(S_T2), WS_HO_ROW))
    k("s_add_u32 %s, %s, %s" % (s(dx), s(dx), s(S_T)))
    k("s_add_u32 %s, %s, 0x%x" % (s(dx), s(dx), WS_HO))


XPROF = [False]
XSC = [""]


def issue_groups(slot):
    g = []
    g.append(["buffer_load_dwordx4 %s, v3, %s, %s offen%s" % (v(XF + 8 * slot, 4), s(S_HD, 4), s(S_XO0), XSC[0])])
    g.append(["s_add_u32 %s, %s, %d" % (s(S_XO1), s(S_XO0), WS_HO_ROW),
              "buffer_load_dwordx4 %s, v3, %s, %s offen%s" % (v(XF + 8 * slot + 4, 4), s(S_HD, 4), s(S_XO1), XSC[0])])
    g.append(["s_add_u32 m0, %s, %d" % (s(S_LB), slot * WSLOT),
              "s_add_u32 %s, %s, 8192" % (s(S_T), s(S_WO)),
              "buffer_load_dwordx4 v4, %s, %s offen lds" % (s(S_WD, 4), s(S_WO))])
    g.append(["s_add_u32 m0, m0, 1024", "s_nop 0",
              "buffer_load_dwordx4 v4, %s, %s offen lds" % (s(S_WD, 4), s(S_T))])
    if "nox" in OPT:
        g[0] = ["buffer_load_dwordx4 v4, %s, %s offen lds" % (s(S_WD, 4), s(S_WO))]
        g[1] = ["buffer_load_dwordx4 v4, %s, %s offen lds" % (s(S_WD, 4), s(S_WO))]
    if "now" in OPT:
        g[2] = ["buffer_load_dwordx4 %s, v3, %s, %s offen" % (v(XF + 8 * slot, 4), s(S_HD, 4), s(S_XO0))]
        g[3] = ["buffer_load_dwordx4 %s, v3, %s, %s offen" % (v(XF + 8 * slot + 4, 4), s(S_HD, 4), s(S_XO1))]
    return g


def advance(k, lab, two_segments):
    k("s_add_u32 %s, %s, 1024" % (s(S_XO0), s(S_XO0)))
    k("s_add_u32 %s, %s, 16384" % (s(S_WO), s(S_WO)))
    k("s_sub_u32 %s, %s, 1" % (s(S_WRAP), s(S_WRAP)))
    k("s_cmp_lg_u32 %s, 0" % s(S_WRAP))
    k("s_cbranch_scc1 %s_nw" % lab)
    k("s_lshl_b32 %s, %s, 10" % (s(S_T), s(S_N)))
    k("s_sub_u32 %s, %s, %s" % (s(S_XO0), s(S_XO0), s(S_T)))
    k("s_lshl_b32 %s, %s, 14" % (s(S_T), s(S_N)))
    k("s_sub_u32 %s, %s, %s" % (s(S_WO), s(S_WO), s(S_T)))
    k("s_mov_b32 %s, %s" % (s(S_WRAP), s(S_N)))
    k.label(lab + "_nw")
    if two_segments:
        k("s_sub_u32 %s, %s, 1" % (s(S_LEFT), s(S_LEFT)))
        k("s_cmp_lg_u32 %s, 0" % s(S_LEFT))
        k("s_cbranch_scc1 %s_ns" % lab)
        k("s_mov_b32 %s, %s" % (s(S_XO0), s(S_BX)))
        k("s_mov_b32 %s, %s" % (s(S_WO), s(S_BW)))
        k("s_mov_b32 %s, %s" % (s(S_WRAP), s(S_BWRAP)))
        k("s_mov_b32 %s, %d" % (s(S_N), NB))
        k("s_mov_b32 %s, %s" % (s(S_WD), s(S_WOP)))
        k("s_and_b32 %s, %s, 0xffff" % (s(S_WD + 1), s(S_WOP + 1)))
        k("s_mov_b32 %s, 0x%x" % (s(S_WD + 2), 512 * 1024))
        k.label(lab + "_ns")


def rd_w(k, slot, buf):
    for ft in range(2):
        for u in range(2):
            k("ds_read_b64_tr_b16 %s, %s offset:%d" % (v(WF + 8 * buf + 4 * ft + 2 * u, 2), v(VWR + ft), slot * WSLOT + u * 512))


def step(k, d, lab, issue, vm, two_segments, last=False):
    if not last:
        k("s_waitcnt vmcnt(%d)" % vm)
        rd_w(k, (d + 1) % D, (d + 1) & 1)
        k("s_waitcnt lgkmcnt(4)")
    else:
        k("s_waitcnt lgkmcnt(0)")
    g = issue_groups((d + D - 1) % D) if issue else [[], [], [], []]
    j = 0
    for tt in range(2):
        for ft in range(2):
            dd = v(ACC + 16 * (2 * tt + ft), 16)
            if "nomfma" not in OPT:
                k("v_mfma_f32_32x32x16_bf16 %s, %s, %s, %s" % (dd, v(WF + 8 * (d & 1) + 4 * ft, 4), v(XF + 8 * d + 4 * tt, 4), dd))
            for ins in g[j]:
                k(ins)
            j += 1
    if issue:
        advance(k, lab, two_segments)


def stream(k, pre, nsteps, two_segments, prio=None):
    for d in range(D - 1):
        for grp in issue_groups(d):
            for ins in grp:
                k(ins)
        advance(k, "%s_p%d" % (pre, d), two_segments)
    if "latep" in OPT:
        k("s_setprio %d" % (prio or 0))
    k("s_waitcnt vmcnt(8)")
    if prio and "latep" not in OPT:
        k("s_setprio %d" % prio)
    rd_w(k, 0, 0)
    ntrip = (nsteps - (D - 1)) // D
    k("s_mov_b32 %s, 0" % s(S_TRIP))
    k.label(pre + "_loop")
    for d in range(D):
        step(k, d, "%s_l%d" % (pre, d), True, 4, two_segments)
    k("s_add_u32 %s, %s, 1" % (s(S_TRIP), s(S_TRIP)))
    k("s_cmp_lt_u32 %s, %d" % (s(S_TRIP), ntrip))
    k("s_cbranch_scc1 %s_loop" % pre)
    for n in range(ntrip * D, nsteps):
        step(k, n % D, "%s_t%d" % (pre, n), n + D - 1 < nsteps, 4 if n + 2 < nsteps else 0, two_segments, last=(n == nsteps - 1))


DW = 8
S_WRAPW, S_NX, S_NW = 50, 51, 61


def stream2(k, pre, n, prio=None):
    k("s_mov_b32 %s, %s" % (s(S_WRAPW), s(S_WRAP)))
    k("s_mov_b32 %s, %d" % (s(S_NX), n * 1024))
    k("s_mov_b32 %s, %d" % (s(S_NW), n * 16384))

    def xg(slot):
        return [["buffer_load_dwordx4 %s, v3, %s, %s offen%s" % (v(XF + 8 * slot, 4), s(S_HD, 4), s(S_XO0), XSC[0])],
                ["s_add_u32 %s, %s, %d" % (s(S_XO1), s(S_XO0), WS_HO_ROW),
                 "buffer_load_dwordx4 %s, v3, %s, %s offen%s" % (v(XF + 8 * slot + 4, 4), s(S_HD, 4), s(S_XO1), XSC[0]),
                 "s_add_u32 %s, %s, 1024" % (s(S_XO0), s(S_XO0)),
                 "s_sub_u32 %s, %s, 1" % (s(S_WRAP), s(S_WRAP)),
                 "s_cmp_eq_u32 %s, 0" % s(S_WRAP),
                 "s_cselect_b32 %s, %s, 0" % (s(S_T), s(S_NX)),
                 "s_cselect_b32 %s, %d, %s" % (s(S_WRAP), n, s(S_WRAP)),
                 "s_sub_u32 %s, %s, %s" % (s(S_XO0), s(S_XO0), s(S_T))]]

    def wg(slot):
        return [["s_add_u32 m0, %s, %d" % (s(S_LB), slot * WSLOT),
                 "s_add_u32 %s, %s, 8192" % (s(S_T2), s(S_WO)),
                 "buffer_load_dwordx4 v4, %s, %s offen lds" % (s(S_WD, 4), s(S_WO))],
                ["s_add_u32 m0, m0, 1024",
                 "s_add_u32 %s, %s, 16384" % (s(S_WO), s(S_WO)),
                 "buffer_load_dwordx4 v4, %s, %s offen lds" % (s(S_WD, 4), s(S_T2)),
                 "s_sub_u32 %s, %s, 1" % (s(S_WRAPW), s(S_WRAPW)),
                 "s_cmp_eq_u32 %s, 0" % s(S_WRAPW),
                 "s_cselect_b32 %s, %s, 0" % (s(S_T), s(S_NW)),
                 "s_cselect_b32 %s, %d, %s" % (s(S_WRAPW), n, s(S_WRAPW)),
                 "s_sub_u32 %s, %s, %s" % (s(S_WO), s(S_WO), s(S_T))]]

    def emit(groups):
        for g in groups:
            for ins in g:
                k(ins)

    def rdw(slot, buf):
        for ft in range(2):
            for u in range(2):
                k("ds_read_b64_tr_b16 %s, %s offset:%d" % (v(WF + 8 * buf + 4 * ft + 2 * u, 2), v(VWR + ft), slot * WSLOT + u * 512))

    log = []
    for j in range(3):
        emit(wg(j)); log += [("W", j)] * 2
    for j in range(3):
        emit(xg(j)); log += [("X", j)] * 2
        emit(wg(3 + j)); log += [("W", 3 + j)] * 2

    def younger(kind, idx):
        last = max(i for i, e in enumerate(log) if e == (kind, idx))
        return len(log) - 1 - last

    if "latep" in OPT:
        k("s_setprio %d" % (prio or 0))
    k("s_waitcnt vmcnt(%d)" % younger("W", 0))
    if prio and "latep" not in OPT:
        k("s_setprio %d" % prio)
    rdw(0, 0)

    def one(sidx, static):
        xs, ws = sidx % 4, sidx % DW
        last = static and sidx == n - 1
        k("s_waitcnt vmcnt(%d)" % min(63, younger("X", sidx)))
        if not last:
            rdw((ws + 1) % DW, (sidx + 1) & 1)
            k("s_waitcnt lgkmcnt(4)")
        else:
            k("s_waitcnt lgkmcnt(0)")
        g = []
        if sidx + 3 < n:
            g += xg((sidx + 3) % 4)
            log.extend([("X", sidx + 3)] * 2)
        if sidx + 6 < n:
            g += wg((sidx + 6) % DW)
            log.extend([("W", sidx + 6)] * 2)
        g += [[]] * (4 - len(g))
        j = 0
        for tt in range(2):
            for ft in range(2):
                dd = v(ACC + 16 * (2 * tt + ft), 16)
                k("v_mfma_f32_32x32x16_bf16 %s, %s, %s, %s" % (dd, v(WF + 8 * (sidx & 1) + 4 * ft, 4), v(XF + 8 * xs + 4 * tt, 4), dd))
                for ins in g[j]:
                    k(ins)
                j += 1

    ntrip = (n - 6) // DW
    k("s_mov_b32 %s, 0" % s(S_TRIP))
    k.label(pre + "_loop")
    mark = len(k.lines)
    for d in range(DW):
        one(d, False)
    body_waits = [ln for ln in k.lines[mark:] if "vmcnt" in ln]
    assert len(set(body_waits)) == 1, body_waits
    k("s_add_u32 %s, %s, 1" % (s(S_TRIP), s(S_TRIP)))
    k("s_cmp_lt_u32 %s, %d" % (s(S_TRIP), ntrip))
    k("s_cbranch_scc1 %s_loop" % pre)
    for sidx in range(DW, ntrip * DW):
        log.extend([("X", sidx + 3)] * 2 + [("W", sidx + 6)] * 2)
    for sidx in range(ntrip * DW, n):
        one(sidx, True)


def pair_reduce(k, pre):
    k("s_nop 15")
    k("s_barrier")
    k("s_and_b32 %s, %s, 3" % (s(S_T), s(S_W)))
    k("s_lshl_b32 %s, %s, 14" % (s(S_T), s(S_T)))
    k("v_add_u32 v8, %s, v3" % s(S_T))
    k("s_cmp_ge_u32 %s, 4" % s(S_W))
    k("s_cbranch_scc0 %s_prr" % pre)
    for g in range(16):
        k("ds_write_b128 v8, %s offset:%d" % (v(ACC + 4 * g, 4), g * 1024))
    k("s_waitcnt lgkmcnt(0)")
    k("s_barrier")
    k("s_endpgm")
    k.label(pre + "_prr")
    k("s_barrier")
    for half in range(2):
        for g in range(8):
            k("ds_read_b128 %s, v8 offset:%d" % (v(XF + 4 * g, 4), (8 * half + g) * 1024))
        for g in range(8):
            k("s_waitcnt lgkmcnt(%d)" % (7 - g))
            for r in range(4):
                a_ = ACC + 32 * half + 4 * g + r
                k("v_add_f32 %s, %s, %s" % (v(a_), v(a_), v(XF + 4 * g + r)))


def reduce_and_store(k, pre):
    k("s_nop 15")
    k("s_barrier")
    for q in range(4):
        k("s_cmp_eq_u32 %s, %d" % (s(S_W), q))
        k("s_cbranch_scc1 %s_nw%d" % (pre, q))
        k("s_lshl_b32 %s, %s, 14" % (s(S_T), s(S_W)))
        k("v_add_u32 v8, %s, v3" % s(S_T))
        for g in range(4):
            k("ds_write_b128 v8, %s offset:%d" % (v(ACC + 16 * q + 4 * g, 4), q * 4096 + g * 1024))
        k.label("%s_nw%d" % (pre, q))
    for q in range(4):
        k("s_cmp_lg_u32 %s, %d" % (s(S_W), q))
        k("s_cbranch_scc1 %s_no%d" % (pre, q))
        for r in range(16):
            k("v_mov_b32 %s, %s" % (v(16 + r), v(ACC + 16 * q + r)))
        k.label("%s_no%d" % (pre, q))
    k("s_waitcnt lgkmcnt(0)")
    k("s_barrier")
    k("s_lshl_b32 %s, %s, 12" % (s(S_T2), s(S_W)))
    k("v_add_u32 v8, %s, v3" % s(S_T2))
    first = True
    for dq in range(1, 4):
        k("s_add_u32 %s, %s, %d" % (s(S_T2), s(S_W), dq))
        k("s_and_b32 %s, %s, 3" % (s(S_T2), s(S_T2)))
        k("s_lshl_b32 %s, %s, 14" % (s(S_T2), s(S_T2)))
        k("v_add_u32 v9, %s, v8" % s(S_T2))
        for g in range(4):
            k("ds_read_b128 %s, v9 offset:%d" % (v(64 + 16 * (dq - 1) + 4 * g, 4), g * 1024))
    for dq in range(1, 4):
        k("s_waitcnt lgkmcnt(%d)" % (4 * (3 - dq)))
        for r in range(16):
            k("v_add_f32 %s, %s, %s" % (v(16 + r), v(16 + r), v(64 + 16 * (dq - 1) + r)))


def resid_loads(k):
    k("s_lshr_b32 %s, %s, 1" % (s(S_T), s(S_W)))
    k("s_lshl_b32 %s, %s, 1" % (s(S_T2), s(S_RB)))
    k("s_add_u32 %s, %s, %s" % (s(S_T), s(S_T), s(S_T2)))
    k("s_lshl_b32 %s, %s, 15" % (s(S_T), s(S_T)))
    k("s_and_b32 %s, %s, 1" % (s(S_T2), s(S_W)))
    k("s_lshl_b32 %s, %s, 6" % (s(S_T2), s(S_T2)))
    k("s_lshl_b32 %s, %s, 7" % (s(S_N), s(S_CB)))
    k("s_add_u32 %s, %s, %s" % (s(S_BW), s(S_T2), s(S_N)))
    k("s_add_u32 %s, %s, %s" % (s(S_BX), s(S_T), s(S_BW)))
    k("v_lshlrev_b32 v10, 10, v1")
    k("v_lshl_add_u32 v10, v2, 4, v10")
    k("v_lshlrev_b32 v11, 4, v2")
    k("buffer_load_dwordx4 v[32:35], v10, %s, %s offen" % (s(S_XD, 4), s(S_BX)))
    k("buffer_load_dwordx4 v[36:39], v10, %s, %s offen offset:32" % (s(S_XD, 4), s(S_BX)))
    k("buffer_load_dwordx4 v[40:43], v11, %s, %s offen" % (s(S_BD, 4), s(S_BW)))
    k("buffer_load_dwordx4 v[44:47], v11, %s, %s offen offset:32" % (s(S_BD, 4), s(S_BW)))


def finish_tile(k):
    k("s_waitcnt vmcnt(0)")
    for half in range(2):
        for j in range(4):
            for src in (32, 40):
                r = src + 4 * half + j
                k("v_lshlrev_b32 v12, 16, %s" % v(r))
                k("v_and_b32 v13, 0xffff0000, %s" % v(r))
                k("v_add_f32 %s, %s, v12" % (v(16 + 8 * half + 2 * j), v(16 + 8 * half + 2 * j)))
                k("v_add_f32 %s, %s, v13" % (v(16 + 8 * half + 2 * j + 1), v(16 + 8 * half + 2 * j + 1)))
    for r in range(8):
        k("v_cvt_pk_bf16_f32 %s, %s, %s" % (v(16 + r), v(16 + 2 * r), v(17 + 2 * r)))
    k("buffer_store_dwordx4 v[16:19], v10, %s, %s offen" % (s(S_OD, 4), s(S_BX)))
    k("buffer_store_dwordx4 v[20:23], v10, %s, %s offen offset:32" % (s(S_OD, 4), s(S_BX)))


WS_BASE = 24 << 20


def ids(k, s_id):
    if "map84" in OPT:
        k("s_bfe_u32 %s, %s, 0x30003" % (s(S_RL), s_id))
        k("s_bfe_u32 %s, %s, 0x20001" % (s(S_RB), s_id))
        k("s_lshl_b32 %s, %s, 3" % (s(S_RB), s(S_RB)))
        k("s_add_u32 %s, %s, %s" % (s(S_RB), s(S_RB), s(S_RL)))
        k("s_and_b32 %s, %s, 1" % (s(S_CB), s_id))
        k("s_lshl_b32 %s, %s, 2" % (s(S_CB), s(S_CB)))
        k("s_lshr_b32 %s, %s, 6" % (s(S_T), s_id))
        k("s_and_b32 %s, %s, 3" % (s(S_T), s(S_T)))
        k("s_add_u32 %s, %s, %s" % (s(S_CB), s(S_CB), s(S_T)))
        return
    k("s_bfe_u32 %s, %s, 0x20003" % (s(S_RL), s_id))
    k("s_and_b32 %s, %s, 7" % (s(S_RB), s_id))
    k("s_lshl_b32 %s, %s, 2" % (s(S_RB), s(S_RB)))
    k("s_add_u32 %s, %s, %s" % (s(S_RB), s(S_RB), s(S_RL)))
    k("s_lshr_b32 %s, %s, 5" % (s(S_CB), s_id))


def resid_early_loads(k):
    k.srd(S_XD, S_X, 2048 * 1024)
    k.srd(S_BD, S_B2, 1024)
    k("s_lshr_b32 %s, %s, 1" % (s(S_T), s(S_W)))
    k("s_lshl_b32 %s, %s, 1" % (s(S_T2), s(S_RB)))
    k("s_add_u32 %s, %s, %s" % (s(S_T), s(S_T), s(S_T2)))
    k("s_lshl_b32 %s, %s, 15" % (s(S_T), s(S_T)))
    k("s_and_b32 %s, %s, 1" % (s(S_T2), s(S_W)))
    k("s_lshl_b32 %s, %s, 6" % (s(S_T2), s(S_T2)))
    k("s_lshl_b32 %s, %s, 7" % (s(S_BW), s(S_CB)))
    k("s_add_u32 %s, %s, %s" % (s(S_BW), s(S_BW), s(S_T2)))
    k("s_add_u32 %s, %s, %s" % (s(S_BX), s(S_T), s(S_BW)))
    k("v_lshlrev_b32 v10, 10, v1")
    k("v_lshl_add_u32 v10, v2, 4, v10")
    k("v_lshlrev_b32 v11, 4, v2")
    k("buffer_load_dwordx4 v[48:51], v10, %s, %s offen" % (s(S_XD, 4), s(S_BX)))
    k("buffer_load_dwordx4 v[52:55], v10, %s, %s offen offset:32" % (s(S_XD, 4), s(S_BX)))
    k("buffer_load_dwordx4 v[56:59], v11, %s, %s offen" % (s(S_BD, 4), s(S_BW)))
    k("buffer_load_dwordx4 v[60:63], v11, %s, %s offen offset:32" % (s(S_BD, 4), s(S_BW)))


def resid_into_acc(k, pre):
    k("s_waitcnt vmcnt(0)")
    for half in range(2):
        for j in range(4):
            rx, rb_ = 48 + 4 * half + j, 56 + 4 * half + j
            e = 16 + 8 * half + 2 * j
            k("v_lshlrev_b32 %s, 16, %s" % (v(e), v(rx)))
            k("v_and_b32 %s, 0xffff0000, %s" % (v(e + 1), v(rx)))
            k("v_lshlrev_b32 v12, 16, %s" % v(rb_))
            k("v_and_b32 v13, 0xffff0000, %s" % v(rb_))
            k("v_add_f32 %s, %s, v12" % (v(e), v(e)))
            k("v_add_f32 %s, %s, v13" % (v(e + 1), v(e + 1)))
    for q in range(4):
        k("s_cmp_lg_u32 %s, %d" % (s(S_W), q))
        k("s_cbranch_scc1 %s_ri%d" % (pre, q))
        for r in range(16):
            k("v_mov_b32 %s, %s" % (v(ACC + 16 * q + r), v(16 + r)))
        k.label("%s_ri%d" % (pre, q))


def add_resid(k):
    k("s_waitcnt vmcnt(0)")
    for half in range(2):
        for j in range(4):
            for src in (32, 40):
                r = src + 4 * half + j
                k("v_lshlrev_b32 v12, 16, %s" % v(r))
                k("v_and_b32 v13, 0xffff0000, %s" % v(r))
                k("v_add_f32 %s, %s, v12" % (v(16 + 8 * half + 2 * j), v(16 + 8 * half + 2 * j)))
                k("v_add_f32 %s, %s, v13" % (v(16 + 8 * half + 2 * j + 1), v(16 + 8 * half + 2 * j + 1)))


def gen_ffn2_role(k, pre, s_ws_size):
    k("v_lshrrev_b32 v1, 6, v0")
    k("v_and_b32 v0, 63, v0")
    k("v_readfirstlane_b32 %s, v1" % s(S_W))
    for r, off in ((S_WS, KA_WS), (S_W2, KA_W2), (S_X, KA_X), (S_B2, KA_B2)):
        k("s_load_dwordx2 %s, s[0:1], %d" % (s(r, 2), off))
    k("s_sub_u32 s3, s2, 256")
    k("s_cmp_ge_u32 %s, 4" % s(S_W))
    k("s_cbranch_scc1 %s_exit" % pre)
    ids(k, "s3")
    k("s_mul_i32 %s, %s, %d" % (s(S_LB), s(S_W), RING))
    seg_params(k, NA, 0, S_XO0, S_WO, S_WRAP)
    k("s_mov_b32 %s, %d" % (s(S_N), NA))
    setup(k)
    k("s_waitcnt lgkmcnt(0)")
    k.srd(S_HD, S_WS, s_ws_size)
    k.srd(S_WD, S_W2, 1792 * 1024)
    k.srd(S_XD, S_X, 2048 * 1024)
    k.srd(S_BD, S_B2, 1024)
    prof_mark(k, 2)
    stream(k, pre, NA, False, prio=(3 if "gp3" in OPT else (1 if "gp1" in OPT else 0)))
    prof_mark(k, 3)
    resid_loads(k)
    reduce_and_store(k, pre)
    add_resid(k)
    k("s_lshl_b32 %s, s3, 14" % s(S_T))
    k("s_lshl_b32 %s, %s, 12" % (s(S_T2), s(S_W)))
    k("s_add_u32 %s, %s, %s" % (s(S_T), s(S_T), s(S_T2)))
    k("s_add_u32 %s, %s, 0x%x" % (s(S_T), s(S_T), WS_BASE))
    for g in range(4):
        k("buffer_store_dwordx4 %s, v3, %s, %s offen offset:%d" % (v(16 + 4 * g, 4), s(S_HD, 4), s(S_T), 1024 * g))
    if "nopf" not in OPT:
        k("s_load_dwordx2 %s, s[0:1], %d" % (s(S_WOP, 2), KA_WO))
        k("s_waitcnt lgkmcnt(0)")
        k.srd(S_WD, S_WOP, 512 * 1024)
        k("s_lshl_b32 %s, %s, 17" % (s(S_T), s(S_W)))
        k("s_lshl_b32 %s, %s, 7" % (s(S_T2), s(S_CB)))
        k("s_add_u32 %s, %s, %s" % (s(S_T), s(S_T), s(S_T2)))
        for i in range(16):
            k("buffer_load_dwordx4 %s, v4, %s, %s offen" % (v(64 + 4 * i, 4), s(S_WD, 4), s(S_T)))
            k("s_add_u32 %s, %s, 8192" % (s(S_T), s(S_T)))
    k("s_waitcnt vmcnt(0)")
    prof_mark(k, 5)
    prof_rt(k, 6)
    prof_store(k, S_WS, S_W, 24)
    k.label(pre + "_exit")
    k("s_endpgm")


S_DBG = 60


def wait_flags(k, lab, s_off, n, far=True, pre_loaded=False):
    k("s_cmp_eq_u32 %s, 0" % s(S_W))
    k("s_cbranch_scc0 %s_go" % lab)
    k("v_min_u32 v8, %d, v0" % (n - 1))
    k("v_lshl_add_u32 v8, v8, 2, %s" % s(s_off))
    k("s_mov_b32 %s, 0" % s(S_TRIP))
    if pre_loaded:
        k("v_cmp_eq_u32 vcc, 0, v9")
        k("s_nop 1")
        k("s_cmp_eq_u64 vcc, 0")
        k("s_cbranch_scc1 %s_go" % lab)
    k.label(lab + "_poll")
    k("global_load_dword v9, v8, %s sc1" % s(S_WS, 2))
    k("s_add_u32 %s, %s, 1" % (s(S_TRIP), s(S_TRIP)))
    k("s_waitcnt vmcnt(0)")
    k("v_cmp_eq_u32 vcc, 0, v9")
    k("s_nop 1")
    k("s_cmp_eq_u64 vcc, 0")
    k("s_cbranch_scc1 %s_go" % lab)
    if far:
        k("s_cmp_eq_u64 vcc, exec")
        k("s_cbranch_scc0 %s_near" % lab)
        k("s_sleep %d" % (24 if "sl24" in OPT else 12))
        k.label(lab + "_near")
    k("s_sleep %d" % (8 if "sn8" in OPT else (3 if far else (4 if "hs4" in OPT else 1))))
    k("s_cmp_lt_u32 %s, 0x40000" % s(S_TRIP))
    k("s_cbranch_scc1 %s_poll" % lab)
    k.label(lab + "_go")
    k("s_barrier")


def dyn_tail(k, pre, OWN, OTH):
    XB, WB = 32, 48
    S_TODO, S_RDY, S_H, S_XBASE = 62, 63, 64, 68
    k("s_lshl_b32 %s, %s, 15" % (s(S_T), s(S_N)))
    k("v_add_u32 v14, %s, v12" % s(S_T))
    k("v_add_u32 v15, %s, v13" % s(S_T))
    k("s_lshr_b32 %s, %s, 1" % (s(S_T), s(S_W)))
    k("s_lshl_b32 %s, %s, 1" % (s(S_T2), s(S_RB)))
    k("s_add_u32 %s, %s, %s" % (s(S_T), s(S_T), s(S_T2)))
    k("s_mul_i32 %s, %s, %d" % (s(S_XBASE), s(S_T), WS_HO_ROW))
    k("s_lshl_b32 %s, %s, 14" % (s(S_T2), s(S_N)))
    k("s_add_u32 %s, %s, %s" % (s(S_XBASE), s(S_XBASE), s(S_T2)))
    k("s_add_u32 %s, %s, 0x%x" % (s(S_XBASE), s(S_XBASE), WS_HO + 112 * 1024))
    k("s_lshl_b32 %s, %s, 7" % (s(S_T), s(S_T)))
    k("s_lshl_b32 %s, %s, 6" % (s(S_T2), s(S_N)))
    k("s_add_u32 %s, %s, %s" % (s(S_T), s(S_T), s(S_T2)))
    k("s_add_u32 %s, %s, 0x%x" % (s(S_T), s(S_T), WS_FLAG + FLAG_O))
    k("v_and_b32 v8, 15, v0")
    k("v_lshl_add_u32 v8, v8, 2, %s" % s(S_T))
    k("s_mov_b32 %s, 0xffff" % s(S_TODO))
    k("s_mov_b32 %s, 0" % s(S_TRIP))
    k("s_waitcnt vmcnt(0)")
    k("s_barrier")
    k("s_setprio 3")
    prof_mark(k, 4)
    k.label(pre + "_dp")
    k("global_load_dword v9, v8, %s sc1" % s(S_WS, 2))
    k("s_add_u32 %s, %s, 1" % (s(S_TRIP), s(S_TRIP)))
    k("s_waitcnt vmcnt(0)")
    k("v_cmp_ne_u32 vcc, 0, v9")
    k("s_cmp_ge_u32 %s, 0x40000" % s(S_TRIP))
    k("s_cselect_b32 %s, %s, 0" % (s(S_T), s(S_TODO)))
    k("s_and_b32 %s, vcc_lo, %s" % (s(S_RDY), s(S_TODO)))
    k("s_or_b32 %s, %s, %s" % (s(S_RDY), s(S_RDY), s(S_T)))
    k("s_cmp_lg_u32 %s, 0" % s(S_RDY))
    k("s_cbranch_scc1 %s_db" % pre)
    k("s_cmp_eq_u32 %s, 0xffff" % s(S_TODO))
    k("s_cbranch_scc0 %s_dn" % pre)
    k("s_sleep 8")
    k.label(pre + "_dn")
    k("s_sleep 1")
    k("s_branch %s_dp" % pre)
    k.label(pre + "_db")
    for j in range(4):
        k("s_ff1_i32_b32 %s, %s" % (s(S_H + j), s(S_RDY)))
        if j:
            k("s_cmp_lt_i32 %s, 0" % s(S_H + j))
            k("s_cbranch_scc1 %s_dm%d" % (pre, j))
        k("s_bitset0_b32 %s, %s" % (s(S_RDY), s(S_H + j)))
        k("s_bitset0_b32 %s, %s" % (s(S_TODO), s(S_H + j)))
        k("s_lshl_b32 %s, %s, 10" % (s(S_T), s(S_H + j)))
        k("s_add_u32 %s, %s, %s" % (s(S_T), s(S_T), s(S_XBASE)))
        k("buffer_load_dwordx4 %s, v3, %s, %s offen sc1" % (v(XB + 4 * j, 4), s(S_HD, 4), s(S_T)))
        k("s_lshl_b32 %s, %s, 11" % (s(S_T), s(S_H + j)))
        k("v_add_u32 v10, %s, v14" % s(S_T))
        k("v_add_u32 v11, %s, v15" % s(S_T))
        for jj, a_ in ((0, 10), (1, 11)):
            for u in range(2):
                k("ds_read_b64_tr_b16 %s, %s offset:%d" % (v(WB + 8 * j + 4 * jj + 2 * u, 2), v(a_), u * 512))
    for n in (4, 1, 2, 3):
        k.label("%s_dm%d" % (pre, n))
        k("s_waitcnt vmcnt(0) lgkmcnt(0)")
        for j in range(n):
            for jj, acc in ((0, OWN), (1, OTH)):
                k("v_mfma_f32_32x32x16_bf16 %s, %s, %s, %s" % (v(acc, 16), v(WB + 8 * j + 4 * jj, 4), v(XB + 4 * j, 4), v(acc, 16)))
        if n != 3:
            k("s_branch %s_dq" % pre)
    k.label(pre + "_dq")
    k("s_cmp_lg_u32 %s, 0" % s(S_TODO))
    k("s_cbranch_scc1 %s_dp" % pre)


def wo_tail(k, pre):
    OWN, OTH, XB, WB = 16, 96, 32, 112
    VLO, VHI = 14, 6
    k("s_barrier")
    k.srd(S_WD, S_WOP, 512 * 1024)
    k("s_lshl_b32 %s, %s, 17" % (s(S_T), s(S_W)))
    k("s_lshl_b32 %s, %s, 7" % (s(S_T2), s(S_CB)))
    k("s_add_u32 %s, %s, %s" % (s(S_T), s(S_T), s(S_T2)))
    k("s_lshl_b32 m0, %s, 14" % s(S_W))
    if "fast" in OPT:
        k("s_nop 0")
        for j in range(16):
            k("buffer_load_dwordx4 v4, %s, %s offen lds" % (s(S_WD, 4), s(S_T)))
            if j < 15:
                k("s_add_u32 m0, m0, 1024")
                k("s_add_u32 %s, %s, 8192" % (s(S_T), s(S_T)))
        k("s_lshl_b32 %s, %s, 8" % (s(S_TRIP), s(S_RB)))
        k("s_add_u32 %s, %s, 0x%x" % (s(S_TRIP), s(S_TRIP), WS_FLAG + FLAG_O))
        k("v_lshl_add_u32 v8, v0, 2, %s" % s(S_TRIP))
        k("global_load_dword v9, v8, %s sc1" % s(S_WS, 2))
    else:
        k("s_mov_b32 %s, 16" % s(S_TRIP))
        k.label(pre + "_wst")
        k("buffer_load_dwordx4 v4, %s, %s offen lds" % (s(S_WD, 4), s(S_T)))
        k("s_add_u32 %s, %s, 8192" % (s(S_T), s(S_T)))
        k("s_add_u32 m0, m0, 1024")
        k("s_sub_u32 %s, %s, 1" % (s(S_TRIP), s(S_TRIP)))
        k("s_cmp_lg_u32 %s, 0" % s(S_TRIP))
        k("s_cbranch_scc1 %s_wst" % pre)
    k("s_and_b32 %s, %s, 1" % (s(S_N), s(S_W)))
    k("s_and_b32 %s, %s, 1" % (s(S_WRAP), s(S_CB)))
    k("s_lshl_b32 %s, %s, 3" % (s(S_WRAP), s(S_WRAP)))
    k("v_subrev_u32 v6, %s, v6" % s(S_LB))
    k("v_subrev_u32 v7, %s, v7" % s(S_LB))
    k("s_cmp_eq_u32 %s, 0" % s(S_N))
    k("s_cselect_b64 vcc, -1, 0")
    k("v_cndmask_b32 v12, v7, v6, vcc")
    k("v_cndmask_b32 v13, v6, v7, vcc")
    k("s_lshl_b32 %s, %s, 15" % (s(S_T), s(S_N)))
    k("s_lshl_b32 %s, %s, 11" % (s(S_T2), s(S_WRAP)))
    k("s_add_u32 %s, %s, %s" % (s(S_LEFT), s(S_T), s(S_T2)))
    k("v_add_u32 %s, %s, v12" % (v(VLO), s(S_LEFT)))
    k("v_add_u32 %s, %s, v13" % (v(VLO + 1), s(S_LEFT)))
    k("s_sub_u32 %s, %s, %s" % (s(S_LEFT), s(S_T), s(S_T2)))
    k("s_add_u32 %s, %s, %d" % (s(S_LEFT), s(S_LEFT), 8 * 2048))
    k("v_add_u32 %s, %s, v12" % (v(VHI), s(S_LEFT)))
    k("v_add_u32 %s, %s, v13" % (v(VHI + 1), s(S_LEFT)))
    for r in range(16):
        k("v_mov_b32 %s, 0" % v(OTH + r))
    k("s_lshr_b32 %s, %s, 1" % (s(S_T), s(S_W)))
    k("s_lshl_b32 %s, %s, 1" % (s(S_T2), s(S_RB)))
    k("s_add_u32 %s, %s, %s" % (s(S_T), s(S_T), s(S_T2)))
    k("s_mul_i32 %s, %s, %d" % (s(S_XO0), s(S_T), WS_HO_ROW))
    k("s_lshl_b32 %s, %s, 14" % (s(S_T), s(S_N)))
    k("s_add_u32 %s, %s, %s" % (s(S_XO0), s(S_XO0), s(S_T)))
    k("s_add_u32 %s, %s, 0x%x" % (s(S_XO0), s(S_XO0), WS_HO + 112 * 1024))
    k("s_lshl_b32 %s, %s, 10" % (s(S_T), s(S_WRAP)))
    k("s_add_u32 %s, %s, %s" % (s(S_XO1), s(S_XO0), s(S_T)))
    k("s_sub_u32 %s, %s, %s" % (s(S_XO0), s(S_XO0), s(S_T)))
    def xloads():
        k("s_mov_b32 %s, %s" % (s(S_T), s(S_XO1)))
        k("s_add_u32 %s, %s, 8192" % (s(S_T2), s(S_XO0)))
        for i in range(16):
            so = S_T if i < 8 else S_T2
            if i in (4, 12):
                k("s_add_u32 %s, %s, 4096" % (s(so), s(so)))
            k("buffer_load_dwordx4 %s, v3, %s, %s offen offset:%d sc1" % (v(XB + 4 * i, 4), s(S_HD, 4), s(so), (i % 4) * 1024))

    if "dyn" in OPT:
        dyn_tail(k, pre, OWN, OTH)
    else:
        if not XPROF[0]:
            prof_mark(k, 2)
        if "tagged" in OPT:
            k("s_waitcnt vmcnt(0)")
            k("s_barrier")
            k("s_setprio 0")
            k("s_lshl_b32 %s, %s, 10" % (s(S_T2), s(S_WRAP)))
            k("s_sub_u32 %s, %s, %s" % (s(S_LEFT), s(S_XO1), s(S_T2)))
            k("v_and_b32 v8, 15, v0")
            k("v_lshlrev_b32 v8, 10, v8")
            k("v_add_u32 v8, 1020, v8")
            k("s_mov_b32 %s, 0" % s(S_TRIP))
            k.label(pre + "_lp")
            k("buffer_load_dword v9, v8, %s, %s offen sc1" % (s(S_HD, 4), s(S_LEFT)))
            k("s_add_u32 %s, %s, 1" % (s(S_TRIP), s(S_TRIP)))
            k("s_waitcnt vmcnt(0)")
            k("v_cmp_eq_u32 vcc, -1, v9")
            k("s_nop 1")
            k("s_cmp_eq_u64 vcc, 0")
            k("s_cbranch_scc1 %s_full" % pre)
            k("s_cmp_eq_u64 vcc, exec")
            k("s_cbranch_scc0 %s_lnear" % pre)
            k("s_sleep 24")
            k("s_branch %s_lagain" % pre)
            k.label(pre + "_lnear")
            k("s_setprio 3")
            k("s_sleep 2")
            k.label(pre + "_lagain")
            k("s_cmp_lt_u32 %s, 0x8000" % s(S_TRIP))
            k("s_cbranch_scc1 %s_lp" % pre)
            k.label(pre + "_full")
            k("s_setprio 3")
            xloads()
            k("s_add_u32 %s, %s, 1" % (s(S_TRIP), s(S_TRIP)))
            for g in range(4):
                k("s_waitcnt vmcnt(%d)" % (12 - 4 * g))
                for r in range(0, 16, 2):
                    a_, b_ = XB + 16 * g + r, XB + 16 * g + r + 1
                    if g == 0 and r == 0:
                        k("v_max_u32 v9, %s, %s" % (v(a_), v(b_)))
                    else:
                        k("v_max3_u32 v9, v9, %s, %s" % (v(a_), v(b_)))
            k("v_cmp_eq_u32 vcc, -1, v9")
            k("s_nop 1")
            k("s_cmp_eq_u64 vcc, 0")
            k("s_cbranch_scc1 %s_got" % pre)
            k("s_cmp_lt_u32 %s, 0x8000" % s(S_TRIP))
            k("s_cbranch_scc1 %s_full" % pre)
            k.label(pre + "_got")
            prof_mark(k, 4)
        else:
            k("s_lshl_b32 %s, %s, 8" % (s(S_LEFT), s(S_RB)))
            k("s_add_u32 %s, %s, 0x%x" % (s(S_LEFT), s(S_LEFT), WS_FLAG + FLAG_O))
            k("s_waitcnt vmcnt(0)")
            k("s_setprio %d" % (0 if "pollp0" in OPT else 3))
            wait_flags(k, pre + "_w", S_LEFT, 64, pre_loaded="fast" in OPT)
            k("s_setprio 3") if "pollp0" in OPT else None
            if "fprof" not in OPT:
                prof_mark(k, 4)
            xloads()

        def rd(i):
            base = VLO if i < 8 else VHI
            for j in range(2):
                for u in range(2):
                    k("ds_read_b64_tr_b16 %s, %s offset:%d" % (v(WB + 8 * (i & 1) + 4 * j + 2 * u, 2), v(base + j), (i & 7) * 2048 + u * 512))

        rd(0)
        for i in range(16):
            if i < 15:
                rd(i + 1)
            if "tagged" in OPT:
                k("s_waitcnt lgkmcnt(%d)" % (4 if i < 15 else 0))
            else:
                k("s_waitcnt vmcnt(%d) lgkmcnt(%d)" % (15 - i, 4 if i < 15 else 0))
            for j, acc in ((0, OWN), (1, OTH)):
                k("v_mfma_f32_32x32x16_bf16 %s, %s, %s, %s" % (v(acc, 16), v(WB + 8 * (i & 1) + 4 * j, 4), v(XB + 4 * i, 4), v(acc, 16)))
    k("s_barrier")
    k("s_xor_b32 %s, %s, 1" % (s(S_T), s(S_W)))
    k("s_lshl_b32 %s, %s, 12" % (s(S_T), s(S_T)))
    k("v_add_u32 v12, %s, v3" % s(S_T))
    k("s_lshl_b32 %s, %s, 12" % (s(S_T), s(S_W)))
    k("v_add_u32 v13, %s, v3" % s(S_T))
    k("s_nop 7")
    for g in range(4):
        k("ds_write_b128 v12, %s offset:%d" % (v(OTH + 4 * g, 4), g * 1024))
    k("s_waitcnt lgkmcnt(0)")
    k("s_barrier")
    for g in range(4):
        k("ds_read_b128 %s, v13 offset:%d" % (v(XB + 4 * g, 4), g * 1024))
    k("v_lshlrev_b32 v10, 10, v1")
    k("v_lshl_add_u32 v10, v2, 4, v10")
    for g in range(4):
        k("s_waitcnt lgkmcnt(%d)" % (3 - g))
        for r in range(4):
            k("v_add_f32 %s, %s, %s" % (v(OWN + 4 * g + r), v(OWN + 4 * g + r), v(XB + 4 * g + r)))
    for r in range(8):
        k("v_cvt_pk_bf16_f32 %s, %s, %s" % (v(16 + r), v(16 + 2 * r), v(17 + 2 * r)))
    osc = " sc1" if "osc1" in OPT else (" nt" if "ont" in OPT else "")
    k("buffer_store_dwordx4 v[16:19], v10, %s, %s offen%s" % (s(S_OD, 4), s(S_BX), osc))
    k("buffer_store_dwordx4 v[20:23], v10, %s, %s offen offset:32%s" % (s(S_OD, 4), s(S_BX), osc))


def gen_g_role(k, pre, ffn1=None):
    k("v_lshrrev_b32 v1, 6, v0")
    k("v_and_b32 v0, 63, v0")
    k("v_readfirstlane_b32 %s, v1" % s(S_W))
    for r, off in ((S_WS, KA_WS), (S_W2, KA_W2), (S_WOP, KA_WO), (S_X, KA_X), (S_B2, KA_B2), (S_OUT, KA_OUT)):
        k("s_load_dwordx2 %s, s[0:1], %d" % (s(r, 2), off))
    k("s_sub_u32 s3, s2, 256")
    if ffn1:
        k("s_load_dwordx2 s[62:63], s[0:1], %d" % KA_W1)
        k("s_load_dwordx2 s[64:65], s[0:1], %d" % KA_B1)
        ids(k, "s3")
        k("v_and_b32 v1, 31, v0")
        k("v_lshrrev_b32 v2, 5, v0")
        k("s_waitcnt lgkmcnt(0)")
        k.srd(S_HD, S_WS, (20 << 20) + (2 << 20))
        for lvl in (1, 2, 3):
            if "fp%d" % lvl in OPT:
                k("s_setprio %d" % lvl)
        ffn1(k, pre + "f")
        prof_mark(k, 2)
        if "latep" not in OPT:
            k("s_setprio 0")
        XSC[0] = " sc1"
    else:
        k("s_cmp_ge_u32 %s, 4" % s(S_W))
        k("s_cbranch_scc1 %s_exit" % pre)
    ids(k, "s3")
    if "pfo" in OPT:
        k.srd(S_WD, S_WOP, 512 * 1024)
        k("v_lshrrev_b32 v12, 3, v0")
        k("v_and_b32 v13, 7, v0")
        k("v_lshlrev_b32 v13, 4, v13")
        k("v_lshl_add_u32 v12, v12, 10, v13")
        k("s_lshl_b32 %s, %s, 17" % (s(S_T), s(S_RL)))
        k("s_lshl_b32 %s, %s, 14" % (s(S_T2), s(S_W)))
        k("s_add_u32 %s, %s, %s" % (s(S_T), s(S_T), s(S_T2)))
        k("s_lshl_b32 %s, %s, 7" % (s(S_T2), s(S_CB)))
        k("s_add_u32 %s, %s, %s" % (s(S_T), s(S_T), s(S_T2)))
        k("buffer_load_dwordx4 v[48:51], v12, %s, %s offen" % (s(S_WD, 4), s(S_T)))
        k("s_add_u32 %s, %s, 8192" % (s(S_T), s(S_T)))
        k("buffer_load_dwordx4 v[48:51], v12, %s, %s offen" % (s(S_WD, 4), s(S_T)))
        k.srd(S_XD, S_X, 2048 * 1024)
        k("s_lshl_b32 %s, %s, 16" % (s(S_T), s(S_RB)))
        k("s_lshl_b32 %s, %s, 13" % (s(S_T2), s(S_W)))
        k("s_add_u32 %s, %s, %s" % (s(S_T), s(S_T), s(S_T2)))
        k("s_lshl_b32 %s, %s, 7" % (s(S_T2), s(S_CB)))
        k("s_add_u32 %s, %s, %s" % (s(S_T), s(S_T), s(S_T2)))
        k("buffer_load_dwordx4 v[48:51], v12, %s, %s offen" % (s(S_XD, 4), s(S_T)))
    na = NA // 2 if "w8" in OPT else NA
    k("s_mul_i32 %s, %s, %d" % (s(S_LB), s(S_W), DW * WSLOT if "deep" in OPT else RING))
    seg_params(k, na, 0, S_XO0, S_WO, S_WRAP)
    k("s_mov_b32 %s, %d" % (s(S_N), na))
    setup(k)
    k("s_waitcnt lgkmcnt(0)")
    k.srd(S_HD, S_WS, WS_END)
    k.srd(S_WD, S_W2, 1792 * 1024)
    k.srd(S_XD, S_X, 2048 * 1024)
    k.srd(S_OD, S_OUT, 2048 * 1024)
    k.srd(S_BD, S_B2, 1024)
    if "fast" in OPT:
        resid_into_acc(k, pre)
    gp = 3 if "gp3" in OPT else (1 if "gp1" in OPT else (2 if "gp2" in OPT else None))
    if "deep" in OPT:
        stream2(k, pre + "a", na, gp)
    else:
        stream(k, pre + "a", na, False, prio=gp)
    XSC[0] = ""
    if "fprof" not in OPT:
        prof_mark(k, 3)
    if "w8" in OPT:
        for lvl in (1, 2, 3):
            if "rp%d" % lvl in OPT:
                k("s_setprio %d" % lvl)
        pair_reduce(k, pre)
    if "stop" in OPT:
        prof_mark(k, 4)
        prof_mark(k, 5)
        prof_rt(k, 6)
        prof_store(k, S_WS, S_W, 24)
        k("s_endpgm")
    for lvl in (1, 2, 3):
        if "rp%d" % lvl in OPT:
            k("s_setprio %d" % lvl)
    if "fast" not in OPT:
        resid_loads(k)
    reduce_and_store(k, pre)
    if "fast" not in OPT:
        add_resid(k)
    wo_tail(k, pre)
    if "nowait" not in OPT or common.PROF or common.STAMP:
        k("s_waitcnt vmcnt(0)")
    if common.STAMP:
        k("s_cmp_eq_u32 s2, 256")
        k("s_cbranch_scc0 %s_ng" % pre)
        k("s_cmp_eq_u32 %s, 0" % s(S_W))
        k("s_cbranch_scc0 %s_ng" % pre)
        k("s_load_dwordx2 s[60:61], s[0:1], %d" % KA_DBG)
        k("s_memrealtime s[88:89]")
        k("s_waitcnt lgkmcnt(0)")
        k("v_lshrrev_b32 v8, 2, v0")
        k("v_mul_u32_u24 v8, %d, v8" % (65 * 32))
        k("v_and_b32 v9, 3, v0")
        k("v_lshl_add_u32 v8, v9, 2, v8")
        k("v_add_u32 v8, 0x%x, v8" % WS_STAMP)
        k("v_cmp_gt_u32 vcc, 15, v0")
        k("s_and_saveexec_b64 s[62:63], vcc")
        k("global_load_dword v9, v8, %s sc1" % s(S_WS, 2))
        k("s_waitcnt vmcnt(0)")
        k("s_mov_b64 exec, s[62:63]")
        k("v_mov_b32 v10, s88")
        k("v_cmp_eq_u32 vcc, 15, v0")
        k("s_nop 1")
        k("v_cndmask_b32 v9, v9, v10, vcc")
        k("v_lshlrev_b32 v8, 2, v0")
        k("v_cmp_gt_u32 vcc, 16, v0")
        k("s_and_saveexec_b64 s[62:63], vcc")
        k("global_store_dword v8, v9, s[60:61]")
        k("s_waitcnt vmcnt(0)")
        k("s_mov_b64 exec, s[62:63]")
        k.label(pre + "_ng")
    if "fprof" not in OPT:
        prof_mark(k, 5)
    prof_rt(k, 6)
    prof_store(k, S_WS, S_W, 24)
    k.label(pre + "_exit")
    k("s_endpgm")


def gen_wo(k, name, pre):
    k.kernel_begin(name)
    k("s_cmp_ge_u32 s2, 256")
    k("s_cbranch_scc1 %s_exit" % pre)
    prof_start(k)
    for r, off in ((S_WS, KA_WS), (S_WOP, KA_WO), (S_OUT, KA_OUT)):
        k("s_load_dwordx2 %s, s[0:1], %d" % (s(r, 2), off))
    ids(k, "s2")
    k("v_lshrrev_b32 v1, 6, v0")
    k("v_and_b32 v0, 63, v0")
    k("v_readfirstlane_b32 %s, v1" % s(S_W))
    k("s_nop 0")
    k("s_mul_i32 %s, %s, %d" % (s(S_LB), s(S_W), RING))
    seg_params(k, NB, 112, S_XO0, S_WO, S_WRAP)
    k("s_mov_b32 %s, %d" % (s(S_N), NB))
    setup(k)
    k("s_waitcnt lgkmcnt(0)")
    k.srd(S_HD, S_WS, WS_BASE + (4 << 20))
    k.srd(S_WD, S_WOP, 512 * 1024)
    k.srd(S_OD, S_OUT, 2048 * 1024)
    k("s_lshl_b32 %s, s2, 14" % s(S_T))
    k("s_lshl_b32 %s, %s, 12" % (s(S_T2), s(S_W)))
    k("s_add_u32 %s, %s, %s" % (s(S_T), s(S_T), s(S_T2)))
    k("s_add_u32 %s, %s, 0x%x" % (s(S_T), s(S_T), WS_BASE))
    for q in range(4):
        k("s_cmp_lg_u32 %s, %d" % (s(S_W), q))
        k("s_cbranch_scc1 %s_nb%d" % (pre, q))
        for g in range(4):
            k("buffer_load_dwordx4 %s, v3, %s, %s offen offset:%d" % (v(ACC + 16 * q + 4 * g, 4), s(S_HD, 4), s(S_T), 1024 * g))
        k.label("%s_nb%d" % (pre, q))
    prof_mark(k, 2)
    stream(k, pre, NB, False)
    prof_mark(k, 3)
    reduce_and_store(k, pre)
    k("s_lshr_b32 %s, %s, 1" % (s(S_T), s(S_W)))
    k("s_lshl_b32 %s, %s, 1" % (s(S_T2), s(S_RB)))
    k("s_add_u32 %s, %s, %s" % (s(S_T), s(S_T), s(S_T2)))
    k("s_lshl_b32 %s, %s, 15" % (s(S_T), s(S_T)))
    k("s_and_b32 %s, %s, 1" % (s(S_T2), s(S_W)))
    k("s_lshl_b32 %s, %s, 6" % (s(S_T2), s(S_T2)))
    k("s_add_u32 %s, %s, %s" % (s(S_T), s(S_T), s(S_T2)))
    k("s_lshl_b32 %s, %s, 7" % (s(S_T2), s(S_CB)))
    k("s_add_u32 %s, %s, %s" % (s(S_T), s(S_T), s(S_T2)))
    k("v_lshlrev_b32 v10, 10, v1")
    k("v_lshl_add_u32 v10, v2, 4, v10")
    for r in range(8):
        k("v_cvt_pk_bf16_f32 %s, %s, %s" % (v(16 + r), v(16 + 2 * r), v(17 + 2 * r)))
    k("buffer_store_dwordx4 v[16:19], v10, %s, %s offen" % (s(S_OD, 4), s(S_T)))
    k("buffer_store_dwordx4 v[20:23], v10, %s, %s offen offset:32" % (s(S_OD, 4), s(S_T)))
    k("s_waitcnt vmcnt(0)")
    prof_mark(k, 5)
    prof_rt(k, 6)
    prof_store(k, S_WS, S_W, 24)
    k.label(pre + "_exit")
    k.kernel_end(name, 128, 128)
    return 256, 65536


def gen_final(k, name, pre):
    k.kernel_begin(name)
    k("s_cmp_ge_u32 s2, 256")
    k("s_cbranch_scc1 %s_exit" % pre)
    prof_start(k)
    for r, off in ((S_WS, KA_WS), (S_W2, KA_W2), (S_WOP, KA_WO), (S_X, KA_X), (S_B2, KA_B2), (S_OUT, KA_OUT)):
        k("s_load_dwordx2 %s, s[0:1], %d" % (s(r, 2), off))
    k("s_bfe_u32 %s, s2, 0x20003" % s(S_RL))
    k("s_and_b32 %s, s2, 7" % s(S_RB))
    k("s_lshl_b32 %s, %s, 2" % (s(S_RB), s(S_RB)))
    k("s_add_u32 %s, %s, %s" % (s(S_RB), s(S_RB), s(S_RL)))
    k("s_lshr_b32 %s, s2, 5" % s(S_CB))
    k("v_lshrrev_b32 v1, 6, v0")
    k("v_and_b32 v0, 63, v0")
    k("v_readfirstlane_b32 %s, v1" % s(S_W))
    k("s_nop 0")
    k("s_mul_i32 %s, %s, %d" % (s(S_LB), s(S_W), RING))
    if "norot" in OPT:
        k("s_mov_b32 %s, 0" % s(S_RL))
    seg_params(k, NA, 0, S_XO0, S_WO, S_WRAP)
    seg_params(k, NB, 112, S_BX, S_BW, S_BWRAP)
    k("s_mov_b32 %s, %d" % (s(S_N), NA))
    k("s_mov_b32 %s, %d" % (s(S_LEFT), NA))
    setup(k)
    k("s_waitcnt lgkmcnt(0)")
    k.srd(S_HD, S_WS, WS_END)
    k.srd(S_WD, S_W2, 1792 * 1024)
    k.srd(S_XD, S_X, 2048 * 1024)
    k.srd(S_OD, S_OUT, 2048 * 1024)
    k.srd(S_BD, S_B2, 1024)
    prof_mark(k, 2)
    stream(k, pre, NA + NB, True)
    prof_mark(k, 3)
    resid_loads(k)
    reduce_and_store(k, pre)
    finish_tile(k)
    k("s_waitcnt vmcnt(0)")
    prof_mark(k, 5)
    prof_rt(k, 6)
    prof_store(k, S_WS, S_W, 24)
    k.label(pre + "_exit")
    k.kernel_end(name, 128, 128)
    return 256, 65536
```

```python
import common
from common import *

SA, SB, CI, P, KF, VF0, VF1, QF, OA = 16, 32, 48, 64, 72, 76, 80, 84, 96
V_LANE16, V_CUR, V_NXT, V_KOFF, V_VOFF, V_T0, V_T1, V_OOFF = 1, 2, 3, 4, 5, 6, 7, 8
SLOT = 24576
TILE = 3072
BIAS = 100.0
ONES = 0x3F803F80

S_WS, S_KV, S_HOS, S_W, S_HEAD, S_QB, S_T, S_C, S_SLOT, S_VM, S_TILE = 4, 8, 12, 16, 17, 18, 19, 20, 21, 22, 24
S_QS = 28
S_NSLOT = 32
S_DBG = 34
S_W2P, S_W2D, S_PFO = 36, 40, 44


OPT = set()


def mfma(k, d, A, B, C):
    k("v_mfma_f32_32x32x16_bf16 %s, %s, %s, %s" % (v(d, 16), v(A, 4), v(B, 4), C if isinstance(C, str) else v(C, 16)))


def dma_chunk(k):
    k("s_mul_i32 %s, %s, %d" % (s(S_T), s(S_W), TILE))
    k("s_add_u32 %s, %s, %s" % (s(S_T), s(S_T), s(S_NSLOT)))
    k("s_mov_b32 m0, %s" % s(S_T))
    k("s_lshl_b32 %s, %s, 11" % (s(S_T + 0), s(S_TILE)))
    k("buffer_load_dwordx4 %s, %s, %s offen lds" % (v(V_KOFF), s(S_KV, 4), s(S_T)))
    k("s_add_u32 m0, m0, 1024")
    k("s_mov_b64 exec, %s" % s(S_VM, 2))
    k("buffer_load_dwordx4 %s, %s, %s offen lds" % (v(V_VOFF), s(S_KV, 4), s(S_T)))
    k("s_add_u32 m0, m0, 512")
    k("s_nop 0")
    k("buffer_load_dwordx4 %s, %s, %s offen offset:512 lds" % (v(V_VOFF), s(S_KV, 4), s(S_T)))
    k("s_mov_b64 exec, -1")


KF2, VF02, VF12 = [KF, 88], [VF0, 92], [VF1, 112]


def tile_body2(k, i, cur, nxt):
    p, q = i & 1, (i + 1) & 1

    def e(j):
        k("v_exp_f32 %s, %s" % (v(cur + j), v(cur + j)))

    def c(j):
        k("v_cvt_pk_bf16_f32 %s, %s, %s" % (v(P + j), v(cur + 2 * j), v(cur + 2 * j + 1)))

    def rd(dst, tile, part):
        base = V_CUR if tile < 8 else V_NXT
        k("ds_read_b128 %s, %s offset:%d" % (v(dst, 4), v(base), (tile % 8) * TILE + part * 1024))

    k("s_waitcnt lgkmcnt(0)")
    mfma(k, nxt, KF2[p], QF, CI)
    rd(VF12[q], i, 2)
    e(0); e(1)
    rd(VF02[q], i + 1, 1)
    e(2); e(3)
    mfma(k, OA, VF12[p], P + 4, OA)
    rd(KF2[q], i + 2, 0)
    c(0); e(4); e(5); c(1); e(6); e(7); c(2); e(8); c(3); e(9); e(10)
    mfma(k, OA, VF02[p], P, OA)
    e(11); c(4); e(12); e(13); c(5); e(14); e(15); c(6); c(7)


def tile_body(k, i, cur, nxt):
    def e(j):
        if "expsep" in OPT:
            k("v_exp_f32 %s, %s" % (v(96 + j), v(cur + j)))
        else:
            k("v_exp_f32 %s, %s" % (v(cur + j), v(cur + j)))

    def c(j):
        k("v_cvt_pk_bf16_f32 %s, %s, %s" % (v(P + j), v(cur + 2 * j), v(cur + 2 * j + 1)))

    def rd(dst, tile, part):
        if "nolds" in OPT:
            return
        base = V_CUR if tile < 8 else V_NXT
        k("ds_read_b128 %s, %s offset:%d" % (v(dst, 4), v(base), (tile % 8) * TILE + part * 1024))

    def w():
        if "nowait" not in OPT:
            k("s_waitcnt lgkmcnt(2)")

    w()
    if "noqk" not in OPT:
        mfma(k, nxt, KF, QF, CI)
    rd(KF, i + 2, 0)
    e(0); e(1); e(2); e(3)
    w()
    if "nopv" not in OPT:
        mfma(k, OA, VF1, P + 4, OA)
    rd(VF1, i, 2)
    c(0); e(4); e(5); c(1); e(6); e(7); c(2); e(8); c(3); e(9); e(10)
    w()
    if "nopv" not in OPT:
        mfma(k, OA, VF0, P, OA)
    rd(VF0, i + 1, 1)
    e(11); c(4); e(12); e(13); c(5); e(14); e(15); c(6); c(7)


def gen_attn(k, name, standalone=True, second_role=None):
    if standalone:
        k.kernel_begin(name)
        k("s_cmp_ge_u32 s2, %d" % (512 if second_role else 256))
        k("s_cbranch_scc1 L_attn_exit")
        prof_start(k)
        if second_role:
            if "swap" in OPT:
                k("s_xor_b32 s2, s2, 256")
            k("s_cmp_ge_u32 s2, 256")
            k("s_cbranch_scc1 L_attn_role2")
        if "noattn" in OPT:
            k("s_endpgm")
        k("s_load_dwordx2 %s, s[0:1], %d" % (s(S_WS, 2), KA_WS))
        k("s_load_dwordx2 %s, s[0:1], %d" % (s(S_DBG, 2), KA_DBG))
        if "w2pf" in OPT:
            k("s_load_dwordx2 %s, s[0:1], %d" % (s(S_W2P, 2), KA_W2))
        if "wopf" in OPT:
            k("s_load_dwordx2 %s, s[0:1], %d" % (s(S_W2P, 2), KA_WO))
            k("s_load_dwordx2 s[46:47], s[0:1], %d" % KA_X)
    if "ap3" in OPT:
        k("s_setprio 3")
    k("s_and_b32 %s, s2, 7" % s(S_HEAD))
    k("s_lshl_b32 %s, %s, 2" % (s(S_HEAD), s(S_HEAD)))
    k("s_lshr_b32 %s, s2, 3" % s(S_T))
    k("s_and_b32 %s, %s, 3" % (s(S_T), s(S_T)))
    k("s_add_u32 %s, %s, %s" % (s(S_HEAD), s(S_HEAD), s(S_T)))
    k("s_lshr_b32 %s, s2, 5" % s(S_QB))
    k("v_lshrrev_b32 %s, 6, v0" % v(V_T0))
    k("v_and_b32 v0, 63, v0")
    k("v_readfirstlane_b32 %s, %s" % (s(S_W), v(V_T0)))
    k("v_lshlrev_b32 %s, 4, v0" % v(V_LANE16))
    k("v_mov_b32 %s, %s" % (v(V_KOFF), v(V_LANE16)))
    k("v_lshrrev_b32 %s, 5, v0" % v(V_T0))
    k("v_lshlrev_b32 %s, 8, %s" % (v(V_T0), v(V_T0)))
    k("v_and_b32 %s, 15, v0" % v(V_T1))
    k("v_lshlrev_b32 %s, 4, %s" % (v(V_T1), v(V_T1)))
    k("v_add3_u32 %s, %s, %s, 0" % (v(V_VOFF), v(V_T0), v(V_T1)))
    k("v_add_u32 %s, 1024, %s" % (v(V_VOFF), v(V_VOFF)))
    k("s_mov_b32 %s, 0x0000ffff" % s(S_VM))
    k("s_mov_b32 %s, 0x0000ffff" % s(S_VM + 1))
    k("s_waitcnt lgkmcnt(0)")
    stamp(k, 2, S_WS, S_W)
    k("s_lshl_b32 %s, %s, 17" % (s(S_T), s(S_HEAD)))
    k("s_add_u32 %s, %s, %s" % (s(S_KV), s(S_WS), s(S_T)))
    k("s_addc_u32 %s, %s, 0" % (s(S_KV + 1), s(S_WS + 1)))
    k("s_add_u32 %s, %s, 0x%x" % (s(S_KV), s(S_KV), WS_KV))
    k("s_addc_u32 %s, %s, 0" % (s(S_KV + 1), s(S_KV + 1)))
    k("s_and_b32 %s, %s, 0xffff" % (s(S_KV + 1), s(S_KV + 1)))
    k("s_mov_b32 %s, 0x20000" % s(S_KV + 2))
    k("s_mov_b32 %s, 0x20000" % s(S_KV + 3))
    if "w2pf" in OPT:
        k.srd(S_W2D, S_W2P, 1792 * 1024)
        k("s_lshr_b32 %s, s2, 3" % s(S_PFO))
        k("s_mul_i32 %s, %s, %d" % (s(S_PFO), s(S_PFO), 56 * 1024))
        k("s_lshl_b32 %s, %s, 11" % (s(S_T), s(S_W)))
        k("s_add_u32 %s, %s, %s" % (s(S_PFO), s(S_PFO), s(S_T)))
    k("s_mov_b32 %s, %s" % (s(S_TILE), s(S_W)))
    k("s_mov_b32 %s, 0" % s(S_NSLOT))
    dma_chunk(k)
    k.srd(S_HOS, S_WS, WS_END)
    k("s_lshl_b32 %s, %s, 6" % (s(S_T), s(S_HEAD)))
    k("s_lshl_b32 %s, %s, 3" % (s(S_QS), s(S_QB)))
    k("s_add_u32 %s, %s, %s" % (s(S_QS), s(S_QS), s(S_W)))
    k("s_add_u32 %s, %s, %s" % (s(S_T), s(S_T), s(S_QS)))
    k("s_lshl_b32 %s, %s, 10" % (s(S_T), s(S_T)))
    k("buffer_load_dwordx4 %s, %s, %s, %s offen" % (v(QF, 4), v(V_LANE16), s(S_HOS, 4), s(S_T)))
    k("s_mul_i32 %s, %s, 144" % (s(S_QS), s(S_QS)))
    k("s_add_u32 %s, %s, %s" % (s(S_QS), s(S_QS), s(S_HEAD)))
    k("s_add_u32 %s, %s, 112" % (s(S_QS), s(S_QS)))
    k("s_lshl_b32 %s, %s, 10" % (s(S_QS), s(S_QS)))
    k("s_add_u32 %s, %s, 0x%x" % (s(S_QS), s(S_QS), WS_HO))
    k("v_mov_b32 %s, 0x%x" % (v(P), ONES))
    k("v_mov_b32 %s, 0x%x" % (v(P + 1), ONES))
    k("v_mov_b32 %s, 0x%x" % (v(P + 2), ONES))
    k("v_mov_b32 %s, 0x%x" % (v(P + 3), ONES))
    k("s_mul_i32 %s, %s, %d" % (s(S_T), s(S_W), TILE))
    k("v_add_u32 %s, %s, %s" % (v(V_T0), s(S_T), v(V_LANE16)))
    if "zeropad" in OPT:
        k("v_and_b32 %s, 27, v0" % v(V_T1))
        k("v_cmp_eq_u32 vcc, 16, %s" % v(V_T1))
        k("s_nop 1")
        for j in range(4):
            k("v_cndmask_b32 %s, 0, %s, vcc" % (v(P + j), v(P + j)))
    k("s_mov_b32 exec_lo, 0xffff0000")
    k("s_mov_b32 exec_hi, 0xffff0000")
    for slot in range(3):
        for part in (1, 2):
            k("ds_write_b128 %s, %s offset:%d" % (v(V_T0), v(P, 4), slot * SLOT + part * 1024))
    k("s_mov_b64 exec, -1")
    if "late1" not in OPT:
        k("s_add_u32 %s, %s, 8" % (s(S_TILE), s(S_TILE)))
        k("s_mov_b32 %s, %d" % (s(S_NSLOT), SLOT))
        dma_chunk(k)
        k("s_waitcnt vmcnt(3) lgkmcnt(0)")
    else:
        k("s_waitcnt vmcnt(0) lgkmcnt(0)")
    k("s_barrier")
    prof_mark(k, 2)
    nt = 2 if "samp2" in OPT else 4
    bufs = (SA, SB, CI, OA)[:nt]
    frs = (KF, VF0, VF1, P)[:nt]
    for t in range(nt):
        k("ds_read_b128 %s, %s offset:%d" % (v(frs[t], 4), v(V_LANE16), t * TILE))
    for t in range(nt):
        k("s_waitcnt lgkmcnt(%d)" % (nt - 1 - t))
        mfma(k, bufs[t], frs[t], QF, "0")
    k("s_nop %d" % (7 if nt == 4 else 11))
    if nt == 2:
        k("s_nop 0")
    m = V_T0
    k("v_max3_f32 %s, %s, %s, %s" % (v(m), v(SA), v(SA + 1), v(SA + 2)))
    regs = [SA + j for j in range(3, 16)] + [b + j for b in bufs[1:] for j in range(16)]
    for j in range(0, len(regs) - 1, 2):
        k("v_max3_f32 %s, %s, %s, %s" % (v(m), v(m), v(regs[j]), v(regs[j + 1])))
    if len(regs) % 2:
        k("v_max_f32 %s, %s, %s" % (v(m), v(m), v(regs[-1])))
    k("v_mov_b32 %s, %s" % (v(V_T1), v(m)))
    k("s_nop 1")
    k("v_permlane32_swap_b32 %s, %s" % (v(V_T1), v(m)))
    k("s_nop 1")
    k("v_max_f32 %s, %s, %s" % (v(m), v(m), v(V_T1)))
    k("v_add_f32 %s, 0x%x, %s" % (v(m), f2u(BIAS), v(m)))
    for j in range(16):
        k("v_sub_f32 %s, 0, %s" % (v(CI + j), v(m)))
    for j in range(16):
        k("v_mov_b32 %s, 0" % v(OA + j))
    for j in range(4):
        k("v_mov_b32 %s, 0" % v(P + 4 + j))
        k("v_mov_b32 %s, 0" % v(VF1 + j))
    k("s_waitcnt lgkmcnt(0)")
    mfma(k, SA, KF, QF, CI)
    k("ds_read_b128 %s, %s offset:%d" % (v(KF, 4), v(V_LANE16), TILE))
    k("ds_read_b128 %s, %s offset:%d" % (v(VF0, 4), v(V_LANE16), 1024))
    k("v_mov_b32 %s, %s" % (v(V_CUR), v(V_LANE16)))
    k("v_add_u32 %s, %d, %s" % (v(V_NXT), SLOT, v(V_LANE16)))
    if "late1" in OPT:
        k("s_add_u32 %s, %s, 8" % (s(S_TILE), s(S_TILE)))
        k("s_mov_b32 %s, %d" % (s(S_NSLOT), SLOT))
        dma_chunk(k)
    k("s_mov_b32 %s, 0" % s(S_C))
    k("s_mov_b32 %s, %d" % (s(S_NSLOT), 2 * SLOT))
    k("s_waitcnt lgkmcnt(0)")
    k("s_nop 7")
    prof_mark(k, 3)
    k(".p2align 6")
    k.label("L_attn_chunk")
    for i in range(8):
        if i == 4:
            k("s_waitcnt vmcnt(0)")
            if "nobar" not in OPT:
                k("s_barrier")
            k("s_cmp_ge_u32 %s, 6" % s(S_C))
            k("s_cbranch_scc1 L_attn_nodma")
            k("s_add_u32 %s, %s, 8" % (s(S_TILE), s(S_TILE)))
            if "nodma" not in OPT:
                dma_chunk(k)
            if "wopf" in OPT:
                cpf = 4 if "wopf4" in OPT else 5
                k("s_cmp_eq_u32 %s, %d" % (s(S_C), cpf))
                k("s_cbranch_scc0 L_attn_nodma")
                k.srd(S_W2D, S_W2P, 512 * 1024)
                k("s_lshr_b32 %s, s2, 3" % s(S_PFO))
                k("s_lshl_b32 %s, %s, 3" % (s(S_PFO), s(S_PFO)))
                k("s_add_u32 %s, %s, %s" % (s(S_PFO), s(S_PFO), s(S_W)))
                k("s_lshl_b32 %s, %s, 11" % (s(S_T), s(S_PFO)))
                k("buffer_load_dwordx4 v[116:119], %s, %s, %s offen" % (v(V_LANE16), s(S_W2D, 4), s(S_T)))
                k("buffer_load_dwordx4 v[116:119], %s, %s, %s offen offset:1024" % (v(V_LANE16), s(S_W2D, 4), s(S_T)))
                k.srd(S_W2D, 46, 2048 * 1024)
                k("s_and_b32 %s, s2, 7" % s(S_T))
                k("s_lshl_b32 %s, %s, 8" % (s(S_T), s(S_T)))
                k("s_add_u32 %s, %s, %s" % (s(S_T), s(S_T), s(S_PFO)))
                k("s_lshl_b32 %s, %s, 10" % (s(S_T), s(S_T)))
                k("buffer_load_dwordx4 v[116:119], %s, %s, %s offen" % (v(V_LANE16), s(S_W2D, 4), s(S_T)))
            if "w2pf" in OPT:
                k("s_cmp_ge_u32 %s, 4" % s(S_C))
                k("s_cbranch_scc1 L_attn_nodma")
                k("buffer_load_dwordx4 v[116:119], %s, %s, %s offen" % (v(V_LANE16), s(S_W2D, 4), s(S_PFO)))
                k("buffer_load_dwordx4 v[116:119], %s, %s, %s offen offset:1024" % (v(V_LANE16), s(S_W2D, 4), s(S_PFO)))
                k("s_add_u32 %s, %s, 16384" % (s(S_PFO), s(S_PFO)))
            k.label("L_attn_nodma")
        if "prio2" in OPT and i % 2 == 0:
            k("s_setprio %d" % (3 - ((i - 4) % 8) // 2))
        if "prio4" in OPT:
            lad = [3, 3, 3, 2, 2, 1, 1, 1]
            r_ = (i - 4) % 8
            if r_ == 0 or lad[r_] != lad[r_ - 1]:
                k("s_setprio %d" % lad[r_])
        if "prio5" in OPT:
            lad = [2, 2, 2, 2, 1, 1, 1, 1]
            r_ = (i - 4) % 8
            if r_ == 0 or lad[r_] != lad[r_ - 1]:
                k("s_setprio %d" % lad[r_])
        if "prio3" in OPT and ((i - 4) % 8) in (0, 3, 6):
            k("s_setprio %d" % {0: 2, 3: 1, 6: 0}[(i - 4) % 8])
        if "prio1" in OPT:
            k("s_setprio %d" % (3 - ((i - 4) % 4)))
        if "prio1" in OPT and "bar4" in OPT and i == 0:
            k("s_barrier")
        (tile_body2 if "onewait" in OPT else tile_body)(k, i, SA if i % 2 == 0 else SB, SB if i % 2 == 0 else SA)
    k("v_mov_b32 %s, %s" % (v(V_CUR), v(V_NXT)))
    k("v_add_u32 %s, %s, %s" % (v(V_NXT), s(S_NSLOT), v(V_LANE16)))
    k("s_add_u32 %s, %s, %d" % (s(S_NSLOT), s(S_NSLOT), SLOT))
    k("s_cmp_ge_u32 %s, %d" % (s(S_NSLOT), 3 * SLOT))
    k("s_cselect_b32 %s, 0, %s" % (s(S_NSLOT), s(S_NSLOT)))
    k("s_add_u32 %s, %s, 1" % (s(S_C), s(S_C)))
    k("s_cmp_lt_u32 %s, 8" % s(S_C))
    k("s_cbranch_scc1 L_attn_chunk")
    k("s_waitcnt lgkmcnt(0)")
    prof_mark(k, 4)
    mfma(k, OA, VF1, P + 4, OA)
    k("s_nop 15")
    t = V_T0
    k("v_mul_f32 %s, 0, %s" % (v(t), v(OA)))
    for j in range(1, 8):
        k("v_fma_f32 %s, %s, 0, %s" % (v(t), v(OA + j), v(t)))
    k("s_mov_b32 %s, 0x%x" % (s(S_T), f2u(2.0 ** 110)))
    k("v_cmp_ngt_f32 vcc, %s, %s" % (s(S_T), v(OA + 8)))
    k("v_cmp_u_f32 %s, %s, %s" % (s(S_C, 2), v(t), v(t)))
    k("s_nop 1")
    k("s_or_b64 vcc, vcc, %s" % s(S_C, 2))
    k("s_cbranch_vccnz L_attn_slow")
    k.label("L_attn_fin")
    k("v_rcp_f32 %s, %s" % (v(t), v(OA + 8)))
    k("s_nop 0")
    for j in range(8):
        k("v_mul_f32 %s, %s, %s" % (v(OA + j), v(OA + j), v(t)))
    for j in range(4):
        k("v_cvt_pk_bf16_f32 %s, %s, %s" % (v(P + j), v(OA + 2 * j), v(OA + 2 * j + 1)))
    if "tagged" in OPT:
        k("buffer_store_dwordx4 %s, %s, %s, %s offen sc1" % (v(P, 4), v(V_LANE16), s(S_HOS, 4), s(S_QS)))
    elif "signal" in OPT:
        k("buffer_store_dwordx4 %s, %s, %s, %s offen sc1" % (v(P, 4), v(V_LANE16), s(S_HOS, 4), s(S_QS)))
        k("s_lshl_b32 %s, %s, 3" % (s(S_T), s(S_QB)))
        k("s_add_u32 %s, %s, %s" % (s(S_T), s(S_T), s(S_W)))
        k("s_lshl_b32 %s, %s, 5" % (s(S_T), s(S_T)))
        k("s_add_u32 %s, %s, %s" % (s(S_T), s(S_T), s(S_HEAD)))
        k("s_lshl_b32 %s, %s, 2" % (s(S_T), s(S_T)))
        k("s_add_u32 %s, %s, 0x%x" % (s(S_T), s(S_T), WS_FLAG + FLAG_O))
        k("v_mov_b32 %s, %s" % (v(V_T0), s(S_T)))
        k("v_mov_b32 %s, 1" % v(V_T1))
        k("s_waitcnt vmcnt(0)")
        k("s_mov_b64 exec, 1")
        k("global_store_dword %s, %s, %s sc1" % (v(V_T0), v(V_T1), s(S_WS, 2)))
        k("s_mov_b64 exec, -1")
        k.label("L_attn_nosig")
    else:
        k("buffer_store_dwordx4 %s, %s, %s, %s offen" % (v(P, 4), v(V_LANE16), s(S_HOS, 4), s(S_QS)))
    if "nowait" not in OPT or common.PROF or common.STAMP:
        k("s_waitcnt vmcnt(0)")
    stamp(k, 3, S_WS, S_W)
    prof_mark(k, 5)
    prof_rt(k, 6)
    prof_store(k, S_WS, S_W, 16)
    k("s_endpgm")
    k.label("L_attn_slow")
    k("v_mov_b32 %s, 0xff800000" % v(m))
    k("s_mov_b32 %s, 0" % s(S_C))
    k.label("L_attn_slow_max")
    k("buffer_load_dwordx4 %s, %s, %s, %s offen" % (v(KF, 4), v(V_KOFF), s(S_KV, 4), s(S_C)))
    k("s_waitcnt vmcnt(0)")
    mfma(k, SA, KF, QF, "0")
    k("s_nop 15")
    for j in range(0, 16, 2):
        k("v_max3_f32 %s, %s, %s, %s" % (v(m), v(m), v(SA + j), v(SA + j + 1)))
    k("s_add_u32 %s, %s, 2048" % (s(S_C), s(S_C)))
    k("s_cmp_lt_u32 %s, 0x20000" % s(S_C))
    k("s_cbranch_scc1 L_attn_slow_max")
    k("v_mov_b32 %s, %s" % (v(V_T1), v(m)))
    k("s_nop 1")
    k("v_permlane32_swap_b32 %s, %s" % (v(V_T1), v(m)))
    k("s_nop 1")
    k("v_max_f32 %s, %s, %s" % (v(m), v(m), v(V_T1)))
    for j in range(16):
        k("v_sub_f32 %s, 0, %s" % (v(CI + j), v(m)))
        k("v_mov_b32 %s, 0" % v(OA + j))
    for j in range(4):
        k("v_mov_b32 %s, 0x%x" % (v(VF0 + j), ONES))
        k("v_mov_b32 %s, 0x%x" % (v(VF1 + j), ONES))
    k("s_mov_b32 %s, 0" % s(S_C))
    k.label("L_attn_slow_pv")
    k("buffer_load_dwordx4 %s, %s, %s, %s offen" % (v(KF, 4), v(V_KOFF), s(S_KV, 4), s(S_C)))
    k("s_mov_b64 exec, %s" % s(S_VM, 2))
    k("buffer_load_dwordx4 %s, %s, %s, %s offen" % (v(VF0, 4), v(V_VOFF), s(S_KV, 4), s(S_C)))
    k("buffer_load_dwordx4 %s, %s, %s, %s offen offset:512" % (v(VF1, 4), v(V_VOFF), s(S_KV, 4), s(S_C)))
    k("s_mov_b64 exec, -1")
    k("s_waitcnt vmcnt(0)")
    mfma(k, SA, KF, QF, CI)
    k("s_nop 15")
    for j in range(16):
        k("v_exp_f32 %s, %s" % (v(SA + j), v(SA + j)))
    k("s_nop 0")
    for j in range(8):
        k("v_cvt_pk_bf16_f32 %s, %s, %s" % (v(P + j), v(SA + 2 * j), v(SA + 2 * j + 1)))
    k("s_nop 1")
    mfma(k, OA, VF0, P, OA)
    mfma(k, OA, VF1, P + 4, OA)
    k("s_add_u32 %s, %s, 2048" % (s(S_C), s(S_C)))
    k("s_cmp_lt_u32 %s, 0x20000" % s(S_C))
    k("s_cbranch_scc1 L_attn_slow_pv")
    k("s_nop 15")
    k("s_branch L_attn_fin")
    if second_role:
        k.label("L_attn_role2")
        second_role(k)
    if standalone:
        k.label("L_attn_exit")
        nv = 128 if (common.PROF or second_role) else 112
        k.kernel_end(name, nv, nv)


if __name__ == "__main__":
    import sys
    common.PROF = "prof" in sys.argv
    OPT.update(sys.argv[1:])
    k = Asm()
    k.lines.append(HEADER.rstrip())
    k.lines.append("; @launch kernel=attn_kernel grid=(256,1,1) block=(512,1,1) lds=%d" % (3 * SLOT))
    k('.amdgcn_target "amdgcn-amd-amdhsa--gfx950"')
    gen_attn(k, "attn_kernel")
    open("attn_%s.s" % "_".join(["v"] + [x for x in sys.argv[1:] if x != "prof"]), "w").write(k.text())
```

```python
import common
from common import *

SA, SB, CI, P, KF, VF0, VF1, QF, OA = 16, 32, 48, 64, 72, 76, 80, 84, 96
V_LANE16, V_CUR, V_NXT, V_KOFF, V_VOFF, V_T0, V_T1, V_OOFF = 1, 2, 3, 4, 5, 6, 7, 8
SLOT = 24576
TILE = 3072
BIAS = 100.0
ONES = 0x3F803F80

S_WS, S_KV, S_HOS, S_W, S_HEAD, S_QB, S_T, S_C, S_SLOT, S_VM, S_TILE = 4, 8, 12, 16, 17, 18, 19, 20, 21, 22, 24
S_QS = 28
S_NSLOT = 32
S_DBG = 34
S_W2P, S_W2D, S_PFO = 36, 40, 44


OPT = set()


def mfma(k, d, A, B, C):
    k("v_mfma_f32_32x32x16_bf16 %s, %s, %s, %s" % (v(d, 16), v(A, 4), v(B, 4), C if isinstance(C, str) else v(C, 16)))


def dma_chunk(k):
    k("s_mul_i32 %s, %s, %d" % (s(S_T), s(S_W), TILE))
    k("s_add_u32 %s, %s, %s" % (s(S_T), s(S_T), s(S_NSLOT)))
    k("s_mov_b32 m0, %s" % s(S_T))
    k("s_lshl_b32 %s, %s, 11" % (s(S_T + 0), s(S_TILE)))
    k("buffer_load_dwordx4 %s, %s, %s offen lds" % (v(V_KOFF), s(S_KV, 4), s(S_T)))
    k("s_add_u32 m0, m0, 1024")
    k("s_mov_b64 exec, %s" % s(S_VM, 2))
    k("buffer_load_dwordx4 %s, %s, %s offen lds" % (v(V_VOFF), s(S_KV, 4), s(S_T)))
    k("s_add_u32 m0, m0, 512")
    k("s_nop 0")
    k("buffer_load_dwordx4 %s, %s, %s offen offset:512 lds" % (v(V_VOFF), s(S_KV, 4), s(S_T)))
    k("s_mov_b64 exec, -1")


KF2, VF02, VF12 = [KF, 88], [VF0, 92], [VF1, 112]


def tile_body2(k, i, cur, nxt):
    p, q = i & 1, (i + 1) & 1

    def e(j):
        k("v_exp_f32 %s, %s" % (v(cur + j), v(cur + j)))

    def c(j):
        k("v_cvt_pk_bf16_f32 %s, %s, %s" % (v(P + j), v(cur + 2 * j), v(cur + 2 * j + 1)))

    def rd(dst, tile, part):
        base = V_CUR if tile < 8 else V_NXT
        k("ds_read_b128 %s, %s offset:%d" % (v(dst, 4), v(base), (tile % 8) * TILE + part * 1024))

    k("s_waitcnt lgkmcnt(0)")
    mfma(k, nxt, KF2[p], QF, CI)
    rd(VF12[q], i, 2)
    e(0); e(1)
    rd(VF02[q], i + 1, 1)
    e(2); e(3)
    mfma(k, OA, VF12[p], P + 4, OA)
    rd(KF2[q], i + 2, 0)
    c(0); e(4); e(5); c(1); e(6); e(7); c(2); e(8); c(3); e(9); e(10)
    mfma(k, OA, VF02[p], P, OA)
    e(11); c(4); e(12); e(13); c(5); e(14); e(15); c(6); c(7)


def tile_body(k, i, cur, nxt):
    def e(j):
        if "expsep" in OPT:
            k("v_exp_f32 %s, %s" % (v(96 + j), v(cur + j)))
        else:
            k("v_exp_f32 %s, %s" % (v(cur + j), v(cur + j)))

    def c(j):
        k("v_cvt_pk_bf16_f32 %s, %s, %s" % (v(P + j), v(cur + 2 * j), v(cur + 2 * j + 1)))

    def rd(dst, tile, part):
        if "nolds" in OPT:
            return
        base = V_CUR if tile < 8 else V_NXT
        k("ds_read_b128 %s, %s offset:%d" % (v(dst, 4), v(base), (tile % 8) * TILE + part * 1024))

    def w():
        if "nowait" not in OPT:
            k("s_waitcnt lgkmcnt(2)")

    w()
    if "noqk" not in OPT:
        mfma(k, nxt, KF, QF, CI)
    rd(KF, i + 2, 0)
    e(0); e(1); e(2); e(3)
    w()
    if "nopv" not in OPT:
        mfma(k, OA, VF1, P + 4, OA)
    rd(VF1, i, 2)
    c(0); e(4); e(5); c(1); e(6); e(7); c(2); e(8); c(3); e(9); e(10)
    w()
    if "nopv" not in OPT:
        mfma(k, OA, VF0, P, OA)
    rd(VF0, i + 1, 1)
    e(11); c(4); e(12); e(13); c(5); e(14); e(15); c(6); c(7)


def gen_attn(k, name, standalone=True, second_role=None):
    if standalone:
        k.kernel_begin(name)
        k("s_cmp_ge_u32 s2, %d" % (512 if second_role else 256))
        k("s_cbranch_scc1 L_attn_exit")
        prof_start(k)
        if second_role:
            if "swap" in OPT:
                k("s_xor_b32 s2, s2, 256")
            k("s_cmp_ge_u32 s2, 256")
            k("s_cbranch_scc1 L_attn_role2")
        if "noattn" in OPT:
            k("s_endpgm")
        k("s_load_dwordx2 %s, s[0:1], %d" % (s(S_WS, 2), KA_WS))
        k("s_load_dwordx2 %s, s[0:1], %d" % (s(S_DBG, 2), KA_DBG))
        if "w2pf" in OPT:
            k("s_load_dwordx2 %s, s[0:1], %d" % (s(S_W2P, 2), KA_W2))
        if "wopf" in OPT:
            k("s_load_dwordx2 %s, s[0:1], %d" % (s(S_W2P, 2), KA_WO))
            k("s_load_dwordx2 s[46:47], s[0:1], %d" % KA_X)
    if "ap3" in OPT:
        k("s_setprio 3")
    k("s_and_b32 %s, s2, 7" % s(S_HEAD))
    k("s_lshl_b32 %s, %s, 2" % (s(S_HEAD), s(S_HEAD)))
    k("s_lshr_b32 %s, s2, 3" % s(S_T))
    k("s_and_b32 %s, %s, 3" % (s(S_T), s(S_T)))
    k("s_add_u32 %s, %s, %s" % (s(S_HEAD), s(S_HEAD), s(S_T)))
    k("s_lshr_b32 %s, s2, 5" % s(S_QB))
    k("v_lshrrev_b32 %s, 6, v0" % v(V_T0))
    k("v_and_b32 v0, 63, v0")
    k("v_readfirstlane_b32 %s, %s" % (s(S_W), v(V_T0)))
    k("v_lshlrev_b32 %s, 4, v0" % v(V_LANE16))
    k("v_mov_b32 %s, %s" % (v(V_KOFF), v(V_LANE16)))
    k("v_lshrrev_b32 %s, 5, v0" % v(V_T0))
    k("v_lshlrev_b32 %s, 8, %s" % (v(V_T0), v(V_T0)))
    k("v_and_b32 %s, 15, v0" % v(V_T1))
    k("v_lshlrev_b32 %s, 4, %s" % (v(V_T1), v(V_T1)))
    k("v_add3_u32 %s, %s, %s, 0" % (v(V_VOFF), v(V_T0), v(V_T1)))
    k("v_add_u32 %s, 1024, %s" % (v(V_VOFF), v(V_VOFF)))
    k("s_mov_b32 %s, 0x0000ffff" % s(S_VM))
    k("s_mov_b32 %s, 0x0000ffff" % s(S_VM + 1))
    k("s_waitcnt lgkmcnt(0)")
    stamp(k, 2, S_WS, S_W)
    k("s_lshl_b32 %s, %s, 17" % (s(S_T), s(S_HEAD)))
    k("s_add_u32 %s, %s, %s" % (s(S_KV), s(S_WS), s(S_T)))
    k("s_addc_u32 %s, %s, 0" % (s(S_KV + 1), s(S_WS + 1)))
    k("s_add_u32 %s, %s, 0x%x" % (s(S_KV), s(S_KV), WS_KV))
    k("s_addc_u32 %s, %s, 0" % (s(S_KV + 1), s(S_KV + 1)))
    k("s_and_b32 %s, %s, 0xffff" % (s(S_KV + 1), s(S_KV + 1)))
    k("s_mov_b32 %s, 0x20000" % s(S_KV + 2))
    k("s_mov_b32 %s, 0x20000" % s(S_KV + 3))
    if "w2pf" in OPT:
        k.srd(S_W2D, S_W2P, 1792 * 1024)
        k("s_lshr_b32 %s, s2, 3" % s(S_PFO))
        k("s_mul_i32 %s, %s, %d" % (s(S_PFO), s(S_PFO), 56 * 1024))
        k("s_lshl_b32 %s, %s, 11" % (s(S_T), s(S_W)))
        k("s_add_u32 %s, %s, %s" % (s(S_PFO), s(S_PFO), s(S_T)))
    k("s_mov_b32 %s, %s" % (s(S_TILE), s(S_W)))
    k("s_mov_b32 %s, 0" % s(S_NSLOT))
    dma_chunk(k)
    k.srd(S_HOS, S_WS, WS_END)
    k("s_lshl_b32 %s, %s, 6" % (s(S_T), s(S_HEAD)))
    k("s_lshl_b32 %s, %s, 3" % (s(S_QS), s(S_QB)))
    k("s_add_u32 %s, %s, %s" % (s(S_QS), s(S_QS), s(S_W)))
    k("s_add_u32 %s, %s, %s" % (s(S_T), s(S_T), s(S_QS)))
    k("s_lshl_b32 %s, %s, 10" % (s(S_T), s(S_T)))
    k("buffer_load_dwordx4 %s, %s, %s, %s offen" % (v(QF, 4), v(V_LANE16), s(S_HOS, 4), s(S_T)))
    k("s_mul_i32 %s, %s, 144" % (s(S_QS), s(S_QS)))
    k("s_add_u32 %s, %s, %s" % (s(S_QS), s(S_QS), s(S_HEAD)))
    k("s_add_u32 %s, %s, 112" % (s(S_QS), s(S_QS)))
    k("s_lshl_b32 %s, %s, 10" % (s(S_QS), s(S_QS)))
    k("s_add_u32 %s, %s, 0x%x" % (s(S_QS), s(S_QS), WS_HO))
    k("v_mov_b32 %s, 0x%x" % (v(P), ONES))
    k("v_mov_b32 %s, 0x%x" % (v(P + 1), ONES))
    k("v_mov_b32 %s, 0x%x" % (v(P + 2), ONES))
    k("v_mov_b32 %s, 0x%x" % (v(P + 3), ONES))
    k("s_mul_i32 %s, %s, %d" % (s(S_T), s(S_W), TILE))
    k("v_add_u32 %s, %s, %s" % (v(V_T0), s(S_T), v(V_LANE16)))
    if "zeropad" in OPT:
        k("v_and_b32 %s, 27, v0" % v(V_T1))
        k("v_cmp_eq_u32 vcc, 16, %s" % v(V_T1))
        k("s_nop 1")
        for j in range(4):
            k("v_cndmask_b32 %s, 0, %s, vcc" % (v(P + j), v(P + j)))
    k("s_mov_b32 exec_lo, 0xffff0000")
    k("s_mov_b32 exec_hi, 0xffff0000")
    for slot in range(3):
        for part in (1, 2):
            k("ds_write_b128 %s, %s offset:%d" % (v(V_T0), v(P, 4), slot * SLOT + part * 1024))
    k("s_mov_b64 exec, -1")
    if "late1" not in OPT:
        k("s_add_u32 %s, %s, 8" % (s(S_TILE), s(S_TILE)))
        k("s_mov_b32 %s, %d" % (s(S_NSLOT), SLOT))
        dma_chunk(k)
        k("s_waitcnt vmcnt(3) lgkmcnt(0)")
    else:
        k("s_waitcnt vmcnt(0) lgkmcnt(0)")
    k("s_barrier")
    prof_mark(k, 2)
    nt = 2 if "samp2" in OPT else 4
    bufs = (SA, SB, CI, OA)[:nt]
    frs = (KF, VF0, VF1, P)[:nt]
    for t in range(nt):
        k("ds_read_b128 %s, %s offset:%d" % (v(frs[t], 4), v(V_LANE16), t * TILE))
    for t in range(nt):
        k("s_waitcnt lgkmcnt(%d)" % (nt - 1 - t))
        mfma(k, bufs[t], frs[t], QF, "0")
    k("s_nop %d" % (7 if nt == 4 else 11))
    if nt == 2:
        k("s_nop 0")
    m = V_T0
    k("v_max3_f32 %s, %s, %s, %s" % (v(m), v(SA), v(SA + 1), v(SA + 2)))
    regs = [SA + j for j in range(3, 16)] + [b + j for b in bufs[1:] for j in range(16)]
    for j in range(0, len(regs) - 1, 2):
        k("v_max3_f32 %s, %s, %s, %s" % (v(m), v(m), v(regs[j]), v(regs[j + 1])))
    if len(regs) % 2:
        k("v_max_f32 %s, %s, %s" % (v(m), v(m), v(regs[-1])))
    k("v_mov_b32 %s, %s" % (v(V_T1), v(m)))
    k("s_nop 1")
    k("v_permlane32_swap_b32 %s, %s" % (v(V_T1), v(m)))
    k("s_nop 1")
    k("v_max_f32 %s, %s, %s" % (v(m), v(m), v(V_T1)))
    k("v_add_f32 %s, 0x%x, %s" % (v(m), f2u(BIAS), v(m)))
    for j in range(16):
        k("v_sub_f32 %s, 0, %s" % (v(CI + j), v(m)))
    for j in range(16):
        k("v_mov_b32 %s, 0" % v(OA + j))
    for j in range(4):
        k("v_mov_b32 %s, 0" % v(P + 4 + j))
        k("v_mov_b32 %s, 0" % v(VF1 + j))
    k("s_waitcnt lgkmcnt(0)")
    mfma(k, SA, KF, QF, CI)
    k("ds_read_b128 %s, %s offset:%d" % (v(KF, 4), v(V_LANE16), TILE))
    k("ds_read_b128 %s, %s offset:%d" % (v(VF0, 4), v(V_LANE16), 1024))
    k("v_mov_b32 %s, %s" % (v(V_CUR), v(V_LANE16)))
    k("v_add_u32 %s, %d, %s" % (v(V_NXT), SLOT, v(V_LANE16)))
    if "late1" in OPT:
        k("s_add_u32 %s, %s, 8" % (s(S_TILE), s(S_TILE)))
        k("s_mov_b32 %s, %d" % (s(S_NSLOT), SLOT))
        dma_chunk(k)
    k("s_mov_b32 %s, 0" % s(S_C))
    k("s_mov_b32 %s, %d" % (s(S_NSLOT), 2 * SLOT))
    k("s_waitcnt lgkmcnt(0)")
    k("s_nop 7")
    prof_mark(k, 3)
    k(".p2align 6")
    k.label("L_attn_chunk")
    for i in range(8):
        if i == 4:
            k("s_waitcnt vmcnt(0)")
            if "nobar" not in OPT:
                k("s_barrier")
            k("s_cmp_ge_u32 %s, 6" % s(S_C))
            k("s_cbranch_scc1 L_attn_nodma")
            k("s_add_u32 %s, %s, 8" % (s(S_TILE), s(S_TILE)))
            if "nodma" not in OPT:
                dma_chunk(k)
            if "wopf" in OPT:
                cpf = 4 if "wopf4" in OPT else 5
                k("s_cmp_eq_u32 %s, %d" % (s(S_C), cpf))
                k("s_cbranch_scc0 L_attn_nodma")
                k.srd(S_W2D, S_W2P, 512 * 1024)
                k("s_lshr_b32 %s, s2, 3" % s(S_PFO))
                k("s_lshl_b32 %s, %s, 3" % (s(S_PFO), s(S_PFO)))
                k("s_add_u32 %s, %s, %s" % (s(S_PFO), s(S_PFO), s(S_W)))
                k("s_lshl_b32 %s, %s, 11" % (s(S_T), s(S_PFO)))
                k("buffer_load_dwordx4 v[116:119], %s, %s, %s offen" % (v(V_LANE16), s(S_W2D, 4), s(S_T)))
                k("buffer_load_dwordx4 v[116:119], %s, %s, %s offen offset:1024" % (v(V_LANE16), s(S_W2D, 4), s(S_T)))
                k.srd(S_W2D, 46, 2048 * 1024)
                k("s_and_b32 %s, s2, 7" % s(S_T))
                k("s_lshl_b32 %s, %s, 8" % (s(S_T), s(S_T)))
                k("s_add_u32 %s, %s, %s" % (s(S_T), s(S_T), s(S_PFO)))
                k("s_lshl_b32 %s, %s, 10" % (s(S_T), s(S_T)))
                k("buffer_load_dwordx4 v[116:119], %s, %s, %s offen" % (v(V_LANE16), s(S_W2D, 4), s(S_T)))
            if "w2pf" in OPT:
                k("s_cmp_ge_u32 %s, 4" % s(S_C))
                k("s_cbranch_scc1 L_attn_nodma")
                k("buffer_load_dwordx4 v[116:119], %s, %s, %s offen" % (v(V_LANE16), s(S_W2D, 4), s(S_PFO)))
                k("buffer_load_dwordx4 v[116:119], %s, %s, %s offen offset:1024" % (v(V_LANE16), s(S_W2D, 4), s(S_PFO)))
                k("s_add_u32 %s, %s, 16384" % (s(S_PFO), s(S_PFO)))
            k.label("L_attn_nodma")
        if "prio2" in OPT and i % 2 == 0:
            k("s_setprio %d" % (3 - ((i - 4) % 8) // 2))
        for o in OPT:
            if o.startswith("lad"):
                lad = [int(ch) for ch in o[3:]]
                r_ = (i - 4) % 8
                if r_ == 0 or lad[r_] != lad[r_ - 1]:
                    k("s_setprio %d" % lad[r_])
        if "prio4" in OPT:
            lad = [3, 3, 3, 2, 2, 1, 1, 1]
            r_ = (i - 4) % 8
            if r_ == 0 or lad[r_] != lad[r_ - 1]:
                k("s_setprio %d" % lad[r_])
        if "prio5" in OPT:
            lad = [2, 2, 2, 2, 1, 1, 1, 1]
            r_ = (i - 4) % 8
            if r_ == 0 or lad[r_] != lad[r_ - 1]:
                k("s_setprio %d" % lad[r_])
        if "prio3" in OPT and ((i - 4) % 8) in (0, 3, 6):
            k("s_setprio %d" % {0: 2, 3: 1, 6: 0}[(i - 4) % 8])
        if "prio1" in OPT:
            k("s_setprio %d" % (3 - ((i - 4) % 4)))
        if "prio1" in OPT and "bar4" in OPT and i == 0:
            k("s_barrier")
        (tile_body2 if "onewait" in OPT else tile_body)(k, i, SA if i % 2 == 0 else SB, SB if i % 2 == 0 else SA)
    k("v_mov_b32 %s, %s" % (v(V_CUR), v(V_NXT)))
    k("v_add_u32 %s, %s, %s" % (v(V_NXT), s(S_NSLOT), v(V_LANE16)))
    k("s_add_u32 %s, %s, %d" % (s(S_NSLOT), s(S_NSLOT), SLOT))
    k("s_cmp_ge_u32 %s, %d" % (s(S_NSLOT), 3 * SLOT))
    k("s_cselect_b32 %s, 0, %s" % (s(S_NSLOT), s(S_NSLOT)))
    k("s_add_u32 %s, %s, 1" % (s(S_C), s(S_C)))
    k("s_cmp_lt_u32 %s, 8" % s(S_C))
    k("s_cbranch_scc1 L_attn_chunk")
    k("s_waitcnt lgkmcnt(0)")
    prof_mark(k, 4)
    mfma(k, OA, VF1, P + 4, OA)
    k("s_nop 15")
    t = V_T0
    k("v_mul_f32 %s, 0, %s" % (v(t), v(OA)))
    for j in range(1, 8):
        k("v_fma_f32 %s, %s, 0, %s" % (v(t), v(OA + j), v(t)))
    k("s_mov_b32 %s, 0x%x" % (s(S_T), f2u(2.0 ** 110)))
    k("v_cmp_ngt_f32 vcc, %s, %s" % (s(S_T), v(OA + 8)))
    k("v_cmp_u_f32 %s, %s, %s" % (s(S_C, 2), v(t), v(t)))
    k("s_nop 1")
    k("s_or_b64 vcc, vcc, %s" % s(S_C, 2))
    k("s_cbranch_vccnz L_attn_slow")
    k.label("L_attn_fin")
    k("v_rcp_f32 %s, %s" % (v(t), v(OA + 8)))
    k("s_nop 0")
    for j in range(8):
        k("v_mul_f32 %s, %s, %s" % (v(OA + j), v(OA + j), v(t)))
    for j in range(4):
        k("v_cvt_pk_bf16_f32 %s, %s, %s" % (v(P + j), v(OA + 2 * j), v(OA + 2 * j + 1)))
    if "tagged" in OPT:
        k("buffer_store_dwordx4 %s, %s, %s, %s offen sc1" % (v(P, 4), v(V_LANE16), s(S_HOS, 4), s(S_QS)))
    elif "signal" in OPT:
        k("buffer_store_dwordx4 %s, %s, %s, %s offen sc1" % (v(P, 4), v(V_LANE16), s(S_HOS, 4), s(S_QS)))
        k("s_lshl_b32 %s, %s, 3" % (s(S_T), s(S_QB)))
        k("s_add_u32 %s, %s, %s" % (s(S_T), s(S_T), s(S_W)))
        k("s_lshl_b32 %s, %s, 5" % (s(S_T), s(S_T)))
        k("s_add_u32 %s, %s, %s" % (s(S_T), s(S_T), s(S_HEAD)))
        k("s_lshl_b32 %s, %s, 2" % (s(S_T), s(S_T)))
        k("s_add_u32 %s, %s, 0x%x" % (s(S_T), s(S_T), WS_FLAG + FLAG_O))
        k("v_mov_b32 %s, %s" % (v(V_T0), s(S_T)))
        k("v_mov_b32 %s, 1" % v(V_T1))
        if "hyb" not in OPT:
            k("s_waitcnt vmcnt(0)")
        k("s_mov_b64 exec, 1")
        k("global_store_dword %s, %s, %s sc1" % (v(V_T0), v(V_T1), s(S_WS, 2)))
        k("s_mov_b64 exec, -1")
        k.label("L_attn_nosig")
    else:
        k("buffer_store_dwordx4 %s, %s, %s, %s offen" % (v(P, 4), v(V_LANE16), s(S_HOS, 4), s(S_QS)))
    if "nowait" not in OPT or common.PROF or common.STAMP:
        k("s_waitcnt vmcnt(0)")
    stamp(k, 3, S_WS, S_W)
    prof_mark(k, 5)
    prof_rt(k, 6)
    prof_store(k, S_WS, S_W, 16)
    k("s_endpgm")
    k.label("L_attn_slow")
    k("v_mov_b32 %s, 0xff800000" % v(m))
    k("s_mov_b32 %s, 0" % s(S_C))
    k.label("L_attn_slow_max")
    k("buffer_load_dwordx4 %s, %s, %s, %s offen" % (v(KF, 4), v(V_KOFF), s(S_KV, 4), s(S_C)))
    k("s_waitcnt vmcnt(0)")
    mfma(k, SA, KF, QF, "0")
    k("s_nop 15")
    for j in range(0, 16, 2):
        k("v_max3_f32 %s, %s, %s, %s" % (v(m), v(m), v(SA + j), v(SA + j + 1)))
    k("s_add_u32 %s, %s, 2048" % (s(S_C), s(S_C)))
    k("s_cmp_lt_u32 %s, 0x20000" % s(S_C))
    k("s_cbranch_scc1 L_attn_slow_max")
    k("v_mov_b32 %s, %s" % (v(V_T1), v(m)))
    k("s_nop 1")
    k("v_permlane32_swap_b32 %s, %s" % (v(V_T1), v(m)))
    k("s_nop 1")
    k("v_max_f32 %s, %s, %s" % (v(m), v(m), v(V_T1)))
    for j in range(16):
        k("v_sub_f32 %s, 0, %s" % (v(CI + j), v(m)))
        k("v_mov_b32 %s, 0" % v(OA + j))
    for j in range(4):
        k("v_mov_b32 %s, 0x%x" % (v(VF0 + j), ONES))
        k("v_mov_b32 %s, 0x%x" % (v(VF1 + j), ONES))
    k("s_mov_b32 %s, 0" % s(S_C))
    k.label("L_attn_slow_pv")
    k("buffer_load_dwordx4 %s, %s, %s, %s offen" % (v(KF, 4), v(V_KOFF), s(S_KV, 4), s(S_C)))
    k("s_mov_b64 exec, %s" % s(S_VM, 2))
    k("buffer_load_dwordx4 %s, %s, %s, %s offen" % (v(VF0, 4), v(V_VOFF), s(S_KV, 4), s(S_C)))
    k("buffer_load_dwordx4 %s, %s, %s, %s offen offset:512" % (v(VF1, 4), v(V_VOFF), s(S_KV, 4), s(S_C)))
    k("s_mov_b64 exec, -1")
    k("s_waitcnt vmcnt(0)")
    mfma(k, SA, KF, QF, CI)
    k("s_nop 15")
    for j in range(16):
        k("v_exp_f32 %s, %s" % (v(SA + j), v(SA + j)))
    k("s_nop 0")
    for j in range(8):
        k("v_cvt_pk_bf16_f32 %s, %s, %s" % (v(P + j), v(SA + 2 * j), v(SA + 2 * j + 1)))
    k("s_nop 1")
    mfma(k, OA, VF0, P, OA)
    mfma(k, OA, VF1, P + 4, OA)
    k("s_add_u32 %s, %s, 2048" % (s(S_C), s(S_C)))
    k("s_cmp_lt_u32 %s, 0x20000" % s(S_C))
    k("s_cbranch_scc1 L_attn_slow_pv")
    k("s_nop 15")
    k("s_branch L_attn_fin")
    if second_role:
        k.label("L_attn_role2")
        second_role(k)
    if standalone:
        k.label("L_attn_exit")
        nv = 128 if (common.PROF or second_role) else 112
        k.kernel_end(name, nv, nv)


if __name__ == "__main__":
    import sys
    common.PROF = "prof" in sys.argv
    OPT.update(sys.argv[1:])
    k = Asm()
    k.lines.append(HEADER.rstrip())
    k.lines.append("; @launch kernel=attn_kernel grid=(256,1,1) block=(512,1,1) lds=%d" % (3 * SLOT))
    k('.amdgcn_target "amdgcn-amd-amdhsa--gfx950"')
    gen_attn(k, "attn_kernel")
    open("attn_%s.s" % "_".join(["v"] + [x for x in sys.argv[1:] if x != "prof"]), "w").write(k.text())
```

```python
import common
from common import *

OPT = set()
S_X, S_W2, S_WOP, S_B2, S_OUT, S_WS = 4, 6, 8, 10, 12, 14
S_HD, S_WD, S_XD, S_OD, S_BD = 16, 20, 28, 32, 52
S_W, S_RB, S_CB, S_T, S_T2, S_LB = 36, 37, 38, 39, 40, 41
S_XO0, S_XO1, S_WO, S_WRAP, S_LEFT, S_N, S_TRIP, S_RL = 42, 43, 44, 45, 46, 47, 48, 49
S_BX, S_BW, S_BWRAP = 56, 57, 58
D = 4
WSLOT = 2048
RING = D * WSLOT
VWS, VWR, VL16 = 4, 6, 3
XF, WF, ACC = 16, 48, 64
NA, NB = 28, 8


def setup(k):
    k("v_and_b32 v1, 31, v0")
    k("v_lshrrev_b32 v2, 5, v0")
    k("v_lshlrev_b32 v3, 4, v0")
    k("v_lshrrev_b32 v4, 3, v0")
    k("v_bfe_u32 v5, v0, 2, 1")
    k("v_bfe_u32 v6, v0, 4, 1")
    k("v_xor_b32 v5, v5, v6")
    k("v_and_b32 v6, 3, v0")
    k("v_lshlrev_b32 v6, 4, v6")
    k("v_lshl_add_u32 v5, v5, 6, v6")
    k("v_lshl_add_u32 v4, v4, 10, v5")
    k("v_bfe_u32 v12, v0, 2, 2")
    k("v_and_b32 v13, 3, v0")
    k("v_bfe_u32 v14, v0, 4, 1")
    k("v_lshl_add_u32 v13, v14, 2, v13")
    k("v_and_b32 v14, 1, v13")
    k("v_lshrrev_b32 v15, 1, v13")
    k("v_lshrrev_b32 v8, 1, v15")
    k("v_and_b32 v15, 1, v15")
    k("v_lshl_add_u32 v15, v14, 1, v15")
    k("v_lshl_add_u32 v13, v8, 2, v15")
    k("v_lshl_add_u32 v14, v2, 3, v12")
    k("v_lshlrev_b32 v14, 7, v14")
    k("v_lshl_add_u32 v14, v13, 3, v14")
    k("v_lshrrev_b32 v12, 1, v12")
    k("v_add_u32 v14, %s, v14" % s(S_LB))
    for ft in range(2):
        k("v_xor_b32 v15, %d, v12" % ft)
        k("v_lshl_add_u32 %s, v15, 6, v14" % v(VWR + ft))
    for j in range(64):
        k("v_mov_b32 %s, 0" % v(ACC + j))


def seg_params(k, n, kbase, dx, dw, dwrap):
    if "map84" in OPT:
        k("s_mul_i32 %s, %s, %d" % (s(S_T), s(S_RL), n))
        k("s_lshr_b32 %s, %s, 3" % (s(S_T), s(S_T)))
        k("s_and_b32 %s, %s, 3" % (s(S_T2), s(S_CB)))
        k("s_mul_i32 %s, %s, %d" % (s(S_T2), s(S_T2), n // 4))
    else:
        k("s_mul_i32 %s, %s, %d" % (s(S_T), s(S_RL), n // 4))
        k("s_mul_i32 %s, %s, %d" % (s(S_T2), s(S_CB), n))
        k("s_lshr_b32 %s, %s, 3" % (s(S_T2), s(S_T2)))
    k("s_add_u32 %s, %s, %s" % (s(S_T), s(S_T), s(S_T2)))
    k("s_cmp_ge_u32 %s, %d" % (s(S_T), n))
    k("s_cselect_b32 %s, %d, 0" % (s(S_T2), n))
    k("s_sub_u32 %s, %s, %s" % (s(S_T), s(S_T), s(S_T2)))
    k("s_sub_u32 %s, %d, %s" % (s(dwrap), n, s(S_T)))
    k("s_mul_i32 %s, %s, %d" % (s(S_T2), s(S_W), n))
    k("s_add_u32 %s, %s, %s" % (s(S_T), s(S_T), s(S_T2)))
    k("s_lshl_b32 %s, %s, 14" % (s(dw), s(S_T)))
    k("s_lshl_b32 %s, %s, 7" % (s(S_T2), s(S_CB)))
    k("s_add_u32 %s, %s, %s" % (s(dw), s(dw), s(S_T2)))
    k("s_add_u32 %s, %s, %d" % (s(S_T), s(S_T), kbase))
    k("s_lshl_b32 %s, %s, 10" % (s(S_T), s(S_T)))
    k("s_lshl_b32 %s, %s, 1" % (s(S_T2), s(S_RB)))
    k("s_mul_i32 %s, %s, %d" % (s(dx), s(S_T2), WS_HO_ROW))
    k("s_add_u32 %s, %s, %s" % (s(dx), s(dx), s(S_T)))
    k("s_add_u32 %s, %s, 0x%x" % (s(dx), s(dx), WS_HO))


XPROF = [False]
XSC = [""]


def issue_groups(slot):
    g = []
    g.append(["buffer_load_dwordx4 %s, v3, %s, %s offen%s" % (v(XF + 8 * slot, 4), s(S_HD, 4), s(S_XO0), XSC[0])])
    g.append(["s_add_u32 %s, %s, %d" % (s(S_XO1), s(S_XO0), WS_HO_ROW),
              "buffer_load_dwordx4 %s, v3, %s, %s offen%s" % (v(XF + 8 * slot + 4, 4), s(S_HD, 4), s(S_XO1), XSC[0])])
    g.append(["s_add_u32 m0, %s, %d" % (s(S_LB), slot * WSLOT),
              "s_add_u32 %s, %s, 8192" % (s(S_T), s(S_WO)),
              "buffer_load_dwordx4 v4, %s, %s offen lds" % (s(S_WD, 4), s(S_WO))])
    g.append(["s_add_u32 m0, m0, 1024", "s_nop 0",
              "buffer_load_dwordx4 v4, %s, %s offen lds" % (s(S_WD, 4), s(S_T))])
    if "nox" in OPT:
        g[0] = ["buffer_load_dwordx4 v4, %s, %s offen lds" % (s(S_WD, 4), s(S_WO))]
        g[1] = ["buffer_load_dwordx4 v4, %s, %s offen lds" % (s(S_WD, 4), s(S_WO))]
    if "now" in OPT:
        g[2] = ["buffer_load_dwordx4 %s, v3, %s, %s offen" % (v(XF + 8 * slot, 4), s(S_HD, 4), s(S_XO0))]
        g[3] = ["buffer_load_dwordx4 %s, v3, %s, %s offen" % (v(XF + 8 * slot + 4, 4), s(S_HD, 4), s(S_XO1))]
    return g


def advance(k, lab, two_segments):
    k("s_add_u32 %s, %s, 1024" % (s(S_XO0), s(S_XO0)))
    k("s_add_u32 %s, %s, 16384" % (s(S_WO), s(S_WO)))
    k("s_sub_u32 %s, %s, 1" % (s(S_WRAP), s(S_WRAP)))
    k("s_cmp_lg_u32 %s, 0" % s(S_WRAP))
    k("s_cbranch_scc1 %s_nw" % lab)
    k("s_lshl_b32 %s, %s, 10" % (s(S_T), s(S_N)))
    k("s_sub_u32 %s, %s, %s" % (s(S_XO0), s(S_XO0), s(S_T)))
    k("s_lshl_b32 %s, %s, 14" % (s(S_T), s(S_N)))
    k("s_sub_u32 %s, %s, %s" % (s(S_WO), s(S_WO), s(S_T)))
    k("s_mov_b32 %s, %s" % (s(S_WRAP), s(S_N)))
    k.label(lab + "_nw")
    if two_segments:
        k("s_sub_u32 %s, %s, 1" % (s(S_LEFT), s(S_LEFT)))
        k("s_cmp_lg_u32 %s, 0" % s(S_LEFT))
        k("s_cbranch_scc1 %s_ns" % lab)
        k("s_mov_b32 %s, %s" % (s(S_XO0), s(S_BX)))
        k("s_mov_b32 %s, %s" % (s(S_WO), s(S_BW)))
        k("s_mov_b32 %s, %s" % (s(S_WRAP), s(S_BWRAP)))
        k("s_mov_b32 %s, %d" % (s(S_N), NB))
        k("s_mov_b32 %s, %s" % (s(S_WD), s(S_WOP)))
        k("s_and_b32 %s, %s, 0xffff" % (s(S_WD + 1), s(S_WOP + 1)))
        k("s_mov_b32 %s, 0x%x" % (s(S_WD + 2), 512 * 1024))
        k.label(lab + "_ns")


def rd_w(k, slot, buf):
    for ft in range(2):
        for u in range(2):
            k("ds_read_b64_tr_b16 %s, %s offset:%d" % (v(WF + 8 * buf + 4 * ft + 2 * u, 2), v(VWR + ft), slot * WSLOT + u * 512))


def step(k, d, lab, issue, vm, two_segments, last=False):
    if not last:
        k("s_waitcnt vmcnt(%d)" % vm)
        rd_w(k, (d + 1) % D, (d + 1) & 1)
        k("s_waitcnt lgkmcnt(4)")
    else:
        k("s_waitcnt lgkmcnt(0)")
    g = issue_groups((d + D - 1) % D) if issue else [[], [], [], []]
    j = 0
    for tt in range(2):
        for ft in range(2):
            dd = v(ACC + 16 * (2 * tt + ft), 16)
            if "nomfma" not in OPT:
                k("v_mfma_f32_32x32x16_bf16 %s, %s, %s, %s" % (dd, v(WF + 8 * (d & 1) + 4 * ft, 4), v(XF + 8 * d + 4 * tt, 4), dd))
            for ins in g[j]:
                k(ins)
            j += 1
    if issue:
        advance(k, lab, two_segments)


def stream(k, pre, nsteps, two_segments, prio=None):
    for d in range(D - 1):
        for grp in issue_groups(d):
            for ins in grp:
                k(ins)
        advance(k, "%s_p%d" % (pre, d), two_segments)
    if "latep" in OPT:
        k("s_setprio %d" % (prio or 0))
    k("s_waitcnt vmcnt(8)")
    if prio and "latep" not in OPT:
        k("s_setprio %d" % prio)
    rd_w(k, 0, 0)
    ntrip = (nsteps - (D - 1)) // D
    k("s_mov_b32 %s, 0" % s(S_TRIP))
    k.label(pre + "_loop")
    for d in range(D):
        step(k, d, "%s_l%d" % (pre, d), True, 4, two_segments)
    k("s_add_u32 %s, %s, 1" % (s(S_TRIP), s(S_TRIP)))
    k("s_cmp_lt_u32 %s, %d" % (s(S_TRIP), ntrip))
    k("s_cbranch_scc1 %s_loop" % pre)
    for n in range(ntrip * D, nsteps):
        step(k, n % D, "%s_t%d" % (pre, n), n + D - 1 < nsteps, 4 if n + 2 < nsteps else 0, two_segments, last=(n == nsteps - 1))


DW = 8
S_WRAPW, S_NX, S_NW = 50, 51, 61


def stream2(k, pre, n, prio=None):
    k("s_mov_b32 %s, %s" % (s(S_WRAPW), s(S_WRAP)))
    k("s_mov_b32 %s, %d" % (s(S_NX), n * 1024))
    k("s_mov_b32 %s, %d" % (s(S_NW), n * 16384))

    def xg(slot):
        return [["buffer_load_dwordx4 %s, v3, %s, %s offen%s" % (v(XF + 8 * slot, 4), s(S_HD, 4), s(S_XO0), XSC[0])],
                ["s_add_u32 %s, %s, %d" % (s(S_XO1), s(S_XO0), WS_HO_ROW),
                 "buffer_load_dwordx4 %s, v3, %s, %s offen%s" % (v(XF + 8 * slot + 4, 4), s(S_HD, 4), s(S_XO1), XSC[0]),
                 "s_add_u32 %s, %s, 1024" % (s(S_XO0), s(S_XO0)),
                 "s_sub_u32 %s, %s, 1" % (s(S_WRAP), s(S_WRAP)),
                 "s_cmp_eq_u32 %s, 0" % s(S_WRAP),
                 "s_cselect_b32 %s, %s, 0" % (s(S_T), s(S_NX)),
                 "s_cselect_b32 %s, %d, %s" % (s(S_WRAP), n, s(S_WRAP)),
                 "s_sub_u32 %s, %s, %s" % (s(S_XO0), s(S_XO0), s(S_T))]]

    def wg(slot):
        return [["s_add_u32 m0, %s, %d" % (s(S_LB), slot * WSLOT),
                 "s_add_u32 %s, %s, 8192" % (s(S_T2), s(S_WO)),
                 "buffer_load_dwordx4 v4, %s, %s offen lds" % (s(S_WD, 4), s(S_WO))],
                ["s_add_u32 m0, m0, 1024",
                 "s_add_u32 %s, %s, 16384" % (s(S_WO), s(S_WO)),
                 "buffer_load_dwordx4 v4, %s, %s offen lds" % (s(S_WD, 4), s(S_T2)),
                 "s_sub_u32 %s, %s, 1" % (s(S_WRAPW), s(S_WRAPW)),
                 "s_cmp_eq_u32 %s, 0" % s(S_WRAPW),
                 "s_cselect_b32 %s, %s, 0" % (s(S_T), s(S_NW)),
                 "s_cselect_b32 %s, %d, %s" % (s(S_WRAPW), n, s(S_WRAPW)),
                 "s_sub_u32 %s, %s, %s" % (s(S_WO), s(S_WO), s(S_T))]]

    def emit(groups):
        for g in groups:
            for ins in g:
                k(ins)

    def rdw(slot, buf):
        for ft in range(2):
            for u in range(2):
                k("ds_read_b64_tr_b16 %s, %s offset:%d" % (v(WF + 8 * buf + 4 * ft + 2 * u, 2), v(VWR + ft), slot * WSLOT + u * 512))

    log = []
    for j in range(3):
        emit(wg(j)); log += [("W", j)] * 2
    for j in range(3):
        emit(xg(j)); log += [("X", j)] * 2
        emit(wg(3 + j)); log += [("W", 3 + j)] * 2

    def younger(kind, idx):
        last = max(i for i, e in enumerate(log) if e == (kind, idx))
        return len(log) - 1 - last

    if "latep" in OPT:
        k("s_setprio %d" % (prio or 0))
    k("s_waitcnt vmcnt(%d)" % younger("W", 0))
    if prio and "latep" not in OPT:
        k("s_setprio %d" % prio)
    rdw(0, 0)

    def one(sidx, static):
        xs, ws = sidx % 4, sidx % DW
        last = static and sidx == n - 1
        k("s_waitcnt vmcnt(%d)" % min(63, younger("X", sidx)))
        if not last:
            rdw((ws + 1) % DW, (sidx + 1) & 1)
            k("s_waitcnt lgkmcnt(4)")
        else:
            k("s_waitcnt lgkmcnt(0)")
        g = []
        if sidx + 3 < n:
            g += xg((sidx + 3) % 4)
            log.extend([("X", sidx + 3)] * 2)
        if sidx + 6 < n:
            g += wg((sidx + 6) % DW)
            log.extend([("W", sidx + 6)] * 2)
        g += [[]] * (4 - len(g))
        j = 0
        for tt in range(2):
            for ft in range(2):
                dd = v(ACC + 16 * (2 * tt + ft), 16)
                k("v_mfma_f32_32x32x16_bf16 %s, %s, %s, %s" % (dd, v(WF + 8 * (sidx & 1) + 4 * ft, 4), v(XF + 8 * xs + 4 * tt, 4), dd))
                for ins in g[j]:
                    k(ins)
                j += 1

    ntrip = (n - 6) // DW
    k("s_mov_b32 %s, 0" % s(S_TRIP))
    k.label(pre + "_loop")
    mark = len(k.lines)
    for d in range(DW):
        one(d, False)
    body_waits = [ln for ln in k.lines[mark:] if "vmcnt" in ln]
    assert len(set(body_waits)) == 1, body_waits
    k("s_add_u32 %s, %s, 1" % (s(S_TRIP), s(S_TRIP)))
    k("s_cmp_lt_u32 %s, %d" % (s(S_TRIP), ntrip))
    k("s_cbranch_scc1 %s_loop" % pre)
    for sidx in range(DW, ntrip * DW):
        log.extend([("X", sidx + 3)] * 2 + [("W", sidx + 6)] * 2)
    for sidx in range(ntrip * DW, n):
        one(sidx, True)


def pair_reduce(k, pre):
    k("s_nop 15")
    k("s_barrier")
    k("s_and_b32 %s, %s, 3" % (s(S_T), s(S_W)))
    k("s_lshl_b32 %s, %s, 14" % (s(S_T), s(S_T)))
    k("v_add_u32 v8, %s, v3" % s(S_T))
    k("s_cmp_ge_u32 %s, 4" % s(S_W))
    k("s_cbranch_scc0 %s_prr" % pre)
    for g in range(16):
        k("ds_write_b128 v8, %s offset:%d" % (v(ACC + 4 * g, 4), g * 1024))
    k("s_waitcnt lgkmcnt(0)")
    k("s_barrier")
    k("s_endpgm")
    k.label(pre + "_prr")
    k("s_barrier")
    for half in range(2):
        for g in range(8):
            k("ds_read_b128 %s, v8 offset:%d" % (v(XF + 4 * g, 4), (8 * half + g) * 1024))
        for g in range(8):
            k("s_waitcnt lgkmcnt(%d)" % (7 - g))
            for r in range(4):
                a_ = ACC + 32 * half + 4 * g + r
                k("v_add_f32 %s, %s, %s" % (v(a_), v(a_), v(XF + 4 * g + r)))


def reduce_and_store(k, pre):
    k("s_nop 15")
    k("s_barrier")
    for q in range(4):
        k("s_cmp_eq_u32 %s, %d" % (s(S_W), q))
        k("s_cbranch_scc1 %s_nw%d" % (pre, q))
        k("s_lshl_b32 %s, %s, 14" % (s(S_T), s(S_W)))
        k("v_add_u32 v8, %s, v3" % s(S_T))
        for g in range(4):
            k("ds_write_b128 v8, %s offset:%d" % (v(ACC + 16 * q + 4 * g, 4), q * 4096 + g * 1024))
        k.label("%s_nw%d" % (pre, q))
    for q in range(4):
        k("s_cmp_lg_u32 %s, %d" % (s(S_W), q))
        k("s_cbranch_scc1 %s_no%d" % (pre, q))
        for r in range(16):
            k("v_mov_b32 %s, %s" % (v(16 + r), v(ACC + 16 * q + r)))
        k.label("%s_no%d" % (pre, q))
    k("s_waitcnt lgkmcnt(0)")
    k("s_barrier")
    k("s_lshl_b32 %s, %s, 12" % (s(S_T2), s(S_W)))
    k("v_add_u32 v8, %s, v3" % s(S_T2))
    first = True
    for dq in range(1, 4):
        k("s_add_u32 %s, %s, %d" % (s(S_T2), s(S_W), dq))
        k("s_and_b32 %s, %s, 3" % (s(S_T2), s(S_T2)))
        k("s_lshl_b32 %s, %s, 14" % (s(S_T2), s(S_T2)))
        k("v_add_u32 v9, %s, v8" % s(S_T2))
        for g in range(4):
            k("ds_read_b128 %s, v9 offset:%d" % (v(64 + 16 * (dq - 1) + 4 * g, 4), g * 1024))
    for dq in range(1, 4):
        k("s_waitcnt lgkmcnt(%d)" % (4 * (3 - dq)))
        for r in range(16):
            k("v_add_f32 %s, %s, %s" % (v(16 + r), v(16 + r), v(64 + 16 * (dq - 1) + r)))


def resid_loads(k):
    k("s_lshr_b32 %s, %s, 1" % (s(S_T), s(S_W)))
    k("s_lshl_b32 %s, %s, 1" % (s(S_T2), s(S_RB)))
    k("s_add_u32 %s, %s, %s" % (s(S_T), s(S_T), s(S_T2)))
    k("s_lshl_b32 %s, %s, 15" % (s(S_T), s(S_T)))
    k("s_and_b32 %s, %s, 1" % (s(S_T2), s(S_W)))
    k("s_lshl_b32 %s, %s, 6" % (s(S_T2), s(S_T2)))
    k("s_lshl_b32 %s, %s, 7" % (s(S_N), s(S_CB)))
    k("s_add_u32 %s, %s, %s" % (s(S_BW), s(S_T2), s(S_N)))
    k("s_add_u32 %s, %s, %s" % (s(S_BX), s(S_T), s(S_BW)))
    k("v_lshlrev_b32 v10, 10, v1")
    k("v_lshl_add_u32 v10, v2, 4, v10")
    k("v_lshlrev_b32 v11, 4, v2")
    k("buffer_load_dwordx4 v[32:35], v10, %s, %s offen" % (s(S_XD, 4), s(S_BX)))
    k("buffer_load_dwordx4 v[36:39], v10, %s, %s offen offset:32" % (s(S_XD, 4), s(S_BX)))
    k("buffer_load_dwordx4 v[40:43], v11, %s, %s offen" % (s(S_BD, 4), s(S_BW)))
    k("buffer_load_dwordx4 v[44:47], v11, %s, %s offen offset:32" % (s(S_BD, 4), s(S_BW)))


def finish_tile(k):
    k("s_waitcnt vmcnt(0)")
    for half in range(2):
        for j in range(4):
            for src in (32, 40):
                r = src + 4 * half + j
                k("v_lshlrev_b32 v12, 16, %s" % v(r))
                k("v_and_b32 v13, 0xffff0000, %s" % v(r))
                k("v_add_f32 %s, %s, v12" % (v(16 + 8 * half + 2 * j), v(16 + 8 * half + 2 * j)))
                k("v_add_f32 %s, %s, v13" % (v(16 + 8 * half + 2 * j + 1), v(16 + 8 * half + 2 * j + 1)))
    for r in range(8):
        k("v_cvt_pk_bf16_f32 %s, %s, %s" % (v(16 + r), v(16 + 2 * r), v(17 + 2 * r)))
    k("buffer_store_dwordx4 v[16:19], v10, %s, %s offen" % (s(S_OD, 4), s(S_BX)))
    k("buffer_store_dwordx4 v[20:23], v10, %s, %s offen offset:32" % (s(S_OD, 4), s(S_BX)))


WS_BASE = 24 << 20


def ids(k, s_id):
    if "map84" in OPT:
        k("s_bfe_u32 %s, %s, 0x30003" % (s(S_RL), s_id))
        k("s_bfe_u32 %s, %s, 0x20001" % (s(S_RB), s_id))
        k("s_lshl_b32 %s, %s, 3" % (s(S_RB), s(S_RB)))
        k("s_add_u32 %s, %s, %s" % (s(S_RB), s(S_RB), s(S_RL)))
        k("s_and_b32 %s, %s, 1" % (s(S_CB), s_id))
        k("s_lshl_b32 %s, %s, 2" % (s(S_CB), s(S_CB)))
        k("s_lshr_b32 %s, %s, 6" % (s(S_T), s_id))
        k("s_and_b32 %s, %s, 3" % (s(S_T), s(S_T)))
        k("s_add_u32 %s, %s, %s" % (s(S_CB), s(S_CB), s(S_T)))
        return
    k("s_bfe_u32 %s, %s, 0x20003" % (s(S_RL), s_id))
    k("s_and_b32 %s, %s, 7" % (s(S_RB), s_id))
    k("s_lshl_b32 %s, %s, 2" % (s(S_RB), s(S_RB)))
    k("s_add_u32 %s, %s, %s" % (s(S_RB), s(S_RB), s(S_RL)))
    k("s_lshr_b32 %s, %s, 5" % (s(S_CB), s_id))


def resid_early_loads(k):
    k.srd(S_XD, S_X, 2048 * 1024)
    k.srd(S_BD, S_B2, 1024)
    k("s_lshr_b32 %s, %s, 1" % (s(S_T), s(S_W)))
    k("s_lshl_b32 %s, %s, 1" % (s(S_T2), s(S_RB)))
    k("s_add_u32 %s, %s, %s" % (s(S_T), s(S_T), s(S_T2)))
    k("s_lshl_b32 %s, %s, 15" % (s(S_T), s(S_T)))
    k("s_and_b32 %s, %s, 1" % (s(S_T2), s(S_W)))
    k("s_lshl_b32 %s, %s, 6" % (s(S_T2), s(S_T2)))
    k("s_lshl_b32 %s, %s, 7" % (s(S_BW), s(S_CB)))
    k("s_add_u32 %s, %s, %s" % (s(S_BW), s(S_BW), s(S_T2)))
    k("s_add_u32 %s, %s, %s" % (s(S_BX), s(S_T), s(S_BW)))
    k("v_lshlrev_b32 v10, 10, v1")
    k("v_lshl_add_u32 v10, v2, 4, v10")
    k("v_lshlrev_b32 v11, 4, v2")
    k("buffer_load_dwordx4 v[48:51], v10, %s, %s offen" % (s(S_XD, 4), s(S_BX)))
    k("buffer_load_dwordx4 v[52:55], v10, %s, %s offen offset:32" % (s(S_XD, 4), s(S_BX)))
    k("buffer_load_dwordx4 v[56:59], v11, %s, %s offen" % (s(S_BD, 4), s(S_BW)))
    k("buffer_load_dwordx4 v[60:63], v11, %s, %s offen offset:32" % (s(S_BD, 4), s(S_BW)))


def resid_into_acc(k, pre):
    k("s_waitcnt vmcnt(0)")
    for half in range(2):
        for j in range(4):
            rx, rb_ = 48 + 4 * half + j, 56 + 4 * half + j
            e = 16 + 8 * half + 2 * j
            k("v_lshlrev_b32 %s, 16, %s" % (v(e), v(rx)))
            k("v_and_b32 %s, 0xffff0000, %s" % (v(e + 1), v(rx)))
            k("v_lshlrev_b32 v12, 16, %s" % v(rb_))
            k("v_and_b32 v13, 0xffff0000, %s" % v(rb_))
            k("v_add_f32 %s, %s, v12" % (v(e), v(e)))
            k("v_add_f32 %s, %s, v13" % (v(e + 1), v(e + 1)))
    for q in range(4):
        k("s_cmp_lg_u32 %s, %d" % (s(S_W), q))
        k("s_cbranch_scc1 %s_ri%d" % (pre, q))
        for r in range(16):
            k("v_mov_b32 %s, %s" % (v(ACC + 16 * q + r), v(16 + r)))
        k.label("%s_ri%d" % (pre, q))


def add_resid(k):
    k("s_waitcnt vmcnt(0)")
    for half in range(2):
        for j in range(4):
            for src in (32, 40):
                r = src + 4 * half + j
                k("v_lshlrev_b32 v12, 16, %s" % v(r))
                k("v_and_b32 v13, 0xffff0000, %s" % v(r))
                k("v_add_f32 %s, %s, v12" % (v(16 + 8 * half + 2 * j), v(16 + 8 * half + 2 * j)))
                k("v_add_f32 %s, %s, v13" % (v(16 + 8 * half + 2 * j + 1), v(16 + 8 * half + 2 * j + 1)))


def gen_ffn2_role(k, pre, s_ws_size):
    k("v_lshrrev_b32 v1, 6, v0")
    k("v_and_b32 v0, 63, v0")
    k("v_readfirstlane_b32 %s, v1" % s(S_W))
    for r, off in ((S_WS, KA_WS), (S_W2, KA_W2), (S_X, KA_X), (S_B2, KA_B2)):
        k("s_load_dwordx2 %s, s[0:1], %d" % (s(r, 2), off))
    k("s_sub_u32 s3, s2, 256")
    k("s_cmp_ge_u32 %s, 4" % s(S_W))
    k("s_cbranch_scc1 %s_exit" % pre)
    ids(k, "s3")
    k("s_mul_i32 %s, %s, %d" % (s(S_LB), s(S_W), RING))
    seg_params(k, NA, 0, S_XO0, S_WO, S_WRAP)
    k("s_mov_b32 %s, %d" % (s(S_N), NA))
    setup(k)
    k("s_waitcnt lgkmcnt(0)")
    k.srd(S_HD, S_WS, s_ws_size)
    k.srd(S_WD, S_W2, 1792 * 1024)
    k.srd(S_XD, S_X, 2048 * 1024)
    k.srd(S_BD, S_B2, 1024)
    prof_mark(k, 2)
    stream(k, pre, NA, False, prio=(3 if "gp3" in OPT else (1 if "gp1" in OPT else 0)))
    prof_mark(k, 3)
    resid_loads(k)
    reduce_and_store(k, pre)
    add_resid(k)
    k("s_lshl_b32 %s, s3, 14" % s(S_T))
    k("s_lshl_b32 %s, %s, 12" % (s(S_T2), s(S_W)))
    k("s_add_u32 %s, %s, %s" % (s(S_T), s(S_T), s(S_T2)))
    k("s_add_u32 %s, %s, 0x%x" % (s(S_T), s(S_T), WS_BASE))
    for g in range(4):
        k("buffer_store_dwordx4 %s, v3, %s, %s offen offset:%d" % (v(16 + 4 * g, 4), s(S_HD, 4), s(S_T), 1024 * g))
    if "nopf" not in OPT:
        k("s_load_dwordx2 %s, s[0:1], %d" % (s(S_WOP, 2), KA_WO))
        k("s_waitcnt lgkmcnt(0)")
        k.srd(S_WD, S_WOP, 512 * 1024)
        k("s_lshl_b32 %s, %s, 17" % (s(S_T), s(S_W)))
        k("s_lshl_b32 %s, %s, 7" % (s(S_T2), s(S_CB)))
        k("s_add_u32 %s, %s, %s" % (s(S_T), s(S_T), s(S_T2)))
        for i in range(16):
            k("buffer_load_dwordx4 %s, v4, %s, %s offen" % (v(64 + 4 * i, 4), s(S_WD, 4), s(S_T)))
            k("s_add_u32 %s, %s, 8192" % (s(S_T), s(S_T)))
    k("s_waitcnt vmcnt(0)")
    prof_mark(k, 5)
    prof_rt(k, 6)
    prof_store(k, S_WS, S_W, 24)
    k.label(pre + "_exit")
    k("s_endpgm")


S_DBG = 60


def wait_flags(k, lab, s_off, n, far=True, pre_loaded=False):
    k("s_cmp_eq_u32 %s, 0" % s(S_W))
    k("s_cbranch_scc0 %s_go" % lab)
    k("v_min_u32 v8, %d, v0" % (n - 1))
    k("v_lshl_add_u32 v8, v8, 2, %s" % s(s_off))
    k("s_mov_b32 %s, 0" % s(S_TRIP))
    if pre_loaded:
        k("v_cmp_eq_u32 vcc, 0, v9")
        k("s_nop 1")
        k("s_cmp_eq_u64 vcc, 0")
        k("s_cbranch_scc1 %s_go" % lab)
    k.label(lab + "_poll")
    k("global_load_dword v9, v8, %s sc1" % s(S_WS, 2))
    k("s_add_u32 %s, %s, 1" % (s(S_TRIP), s(S_TRIP)))
    k("s_waitcnt vmcnt(0)")
    k("v_cmp_eq_u32 vcc, 0, v9")
    k("s_nop 1")
    k("s_cmp_eq_u64 vcc, 0")
    k("s_cbranch_scc1 %s_go" % lab)
    if far:
        k("s_cmp_eq_u64 vcc, exec")
        k("s_cbranch_scc0 %s_near" % lab)
        k("s_sleep %d" % (24 if "sl24" in OPT else 12))
        k.label(lab + "_near")
    k("s_sleep %d" % (8 if "sn8" in OPT else (3 if far else (4 if "hs4" in OPT else 1))))
    k("s_cmp_lt_u32 %s, 0x40000" % s(S_TRIP))
    k("s_cbranch_scc1 %s_poll" % lab)
    k.label(lab + "_go")
    k("s_barrier")


def dyn_tail(k, pre, OWN, OTH):
    XB, WB = 32, 48
    S_TODO, S_RDY, S_H, S_XBASE = 62, 63, 64, 68
    k("s_lshl_b32 %s, %s, 15" % (s(S_T), s(S_N)))
    k("v_add_u32 v14, %s, v12" % s(S_T))
    k("v_add_u32 v15, %s, v13" % s(S_T))
    k("s_lshr_b32 %s, %s, 1" % (s(S_T), s(S_W)))
    k("s_lshl_b32 %s, %s, 1" % (s(S_T2), s(S_RB)))
    k("s_add_u32 %s, %s, %s" % (s(S_T), s(S_T), s(S_T2)))
    k("s_mul_i32 %s, %s, %d" % (s(S_XBASE), s(S_T), WS_HO_ROW))
    k("s_lshl_b32 %s, %s, 14" % (s(S_T2), s(S_N)))
    k("s_add_u32 %s, %s, %s" % (s(S_XBASE), s(S_XBASE), s(S_T2)))
    k("s_add_u32 %s, %s, 0x%x" % (s(S_XBASE), s(S_XBASE), WS_HO + 112 * 1024))
    k("s_lshl_b32 %s, %s, 7" % (s(S_T), s(S_T)))
    k("s_lshl_b32 %s, %s, 6" % (s(S_T2), s(S_N)))
    k("s_add_u32 %s, %s, %s" % (s(S_T), s(S_T), s(S_T2)))
    k("s_add_u32 %s, %s, 0x%x" % (s(S_T), s(S_T), WS_FLAG + FLAG_O))
    k("v_and_b32 v8, 15, v0")
    k("v_lshl_add_u32 v8, v8, 2, %s" % s(S_T))
    k("s_mov_b32 %s, 0xffff" % s(S_TODO))
    k("s_mov_b32 %s, 0" % s(S_TRIP))
    k("s_waitcnt vmcnt(0)")
    k("s_barrier")
    k("s_setprio 3")
    prof_mark(k, 4)
    k.label(pre + "_dp")
    k("global_load_dword v9, v8, %s sc1" % s(S_WS, 2))
    k("s_add_u32 %s, %s, 1" % (s(S_TRIP), s(S_TRIP)))
    k("s_waitcnt vmcnt(0)")
    k("v_cmp_ne_u32 vcc, 0, v9")
    k("s_cmp_ge_u32 %s, 0x40000" % s(S_TRIP))
    k("s_cselect_b32 %s, %s, 0" % (s(S_T), s(S_TODO)))
    k("s_and_b32 %s, vcc_lo, %s" % (s(S_RDY), s(S_TODO)))
    k("s_or_b32 %s, %s, %s" % (s(S_RDY), s(S_RDY), s(S_T)))
    k("s_cmp_lg_u32 %s, 0" % s(S_RDY))
    k("s_cbranch_scc1 %s_db" % pre)
    k("s_cmp_eq_u32 %s, 0xffff" % s(S_TODO))
    k("s_cbranch_scc0 %s_dn" % pre)
    k("s_sleep 8")
    k.label(pre + "_dn")
    k("s_sleep 1")
    k("s_branch %s_dp" % pre)
    k.label(pre + "_db")
    for j in range(4):
        k("s_ff1_i32_b32 %s, %s" % (s(S_H + j), s(S_RDY)))
        if j:
            k("s_cmp_lt_i32 %s, 0" % s(S_H + j))
            k("s_cbranch_scc1 %s_dm%d" % (pre, j))
        k("s_bitset0_b32 %s, %s" % (s(S_RDY), s(S_H + j)))
        k("s_bitset0_b32 %s, %s" % (s(S_TODO), s(S_H + j)))
        k("s_lshl_b32 %s, %s, 10" % (s(S_T), s(S_H + j)))
        k("s_add_u32 %s, %s, %s" % (s(S_T), s(S_T), s(S_XBASE)))
        k("buffer_load_dwordx4 %s, v3, %s, %s offen sc1" % (v(XB + 4 * j, 4), s(S_HD, 4), s(S_T)))
        k("s_lshl_b32 %s, %s, 11" % (s(S_T), s(S_H + j)))
        k("v_add_u32 v10, %s, v14" % s(S_T))
        k("v_add_u32 v11, %s, v15" % s(S_T))
        for jj, a_ in ((0, 10), (1, 11)):
            for u in range(2):
                k("ds_read_b64_tr_b16 %s, %s offset:%d" % (v(WB + 8 * j + 4 * jj + 2 * u, 2), v(a_), u * 512))
    for n in (4, 1, 2, 3):
        k.label("%s_dm%d" % (pre, n))
        k("s_waitcnt vmcnt(0) lgkmcnt(0)")
        for j in range(n):
            for jj, acc in ((0, OWN), (1, OTH)):
                k("v_mfma_f32_32x32x16_bf16 %s, %s, %s, %s" % (v(acc, 16), v(WB + 8 * j + 4 * jj, 4), v(XB + 4 * j, 4), v(acc, 16)))
        if n != 3:
            k("s_branch %s_dq" % pre)
    k.label(pre + "_dq")
    k("s_cmp_lg_u32 %s, 0" % s(S_TODO))
    k("s_cbranch_scc1 %s_dp" % pre)


def wo_tail(k, pre):
    OWN, OTH, XB, WB = 16, 96, 32, 112
    VLO, VHI = 14, 6
    k("s_barrier")
    k.srd(S_WD, S_WOP, 512 * 1024)
    k("s_lshl_b32 %s, %s, 17" % (s(S_T), s(S_W)))
    k("s_lshl_b32 %s, %s, 7" % (s(S_T2), s(S_CB)))
    k("s_add_u32 %s, %s, %s" % (s(S_T), s(S_T), s(S_T2)))
    k("s_lshl_b32 m0, %s, 14" % s(S_W))
    if "fast" in OPT:
        k("s_nop 0")
        for j in range(16):
            k("buffer_load_dwordx4 v4, %s, %s offen lds" % (s(S_WD, 4), s(S_T)))
            if j < 15:
                k("s_add_u32 m0, m0, 1024")
                k("s_add_u32 %s, %s, 8192" % (s(S_T), s(S_T)))
        k("s_lshl_b32 %s, %s, 8" % (s(S_TRIP), s(S_RB)))
        k("s_add_u32 %s, %s, 0x%x" % (s(S_TRIP), s(S_TRIP), WS_FLAG + FLAG_O))
        k("v_lshl_add_u32 v8, v0, 2, %s" % s(S_TRIP))
        k("global_load_dword v9, v8, %s sc1" % s(S_WS, 2))
    else:
        k("s_mov_b32 %s, 16" % s(S_TRIP))
        k.label(pre + "_wst")
        k("buffer_load_dwordx4 v4, %s, %s offen lds" % (s(S_WD, 4), s(S_T)))
        k("s_add_u32 %s, %s, 8192" % (s(S_T), s(S_T)))
        k("s_add_u32 m0, m0, 1024")
        k("s_sub_u32 %s, %s, 1" % (s(S_TRIP), s(S_TRIP)))
        k("s_cmp_lg_u32 %s, 0" % s(S_TRIP))
        k("s_cbranch_scc1 %s_wst" % pre)
    k("s_and_b32 %s, %s, 1" % (s(S_N), s(S_W)))
    k("s_and_b32 %s, %s, 1" % (s(S_WRAP), s(S_CB)))
    k("s_lshl_b32 %s, %s, 3" % (s(S_WRAP), s(S_WRAP)))
    k("v_subrev_u32 v6, %s, v6" % s(S_LB))
    k("v_subrev_u32 v7, %s, v7" % s(S_LB))
    k("s_cmp_eq_u32 %s, 0" % s(S_N))
    k("s_cselect_b64 vcc, -1, 0")
    k("v_cndmask_b32 v12, v7, v6, vcc")
    k("v_cndmask_b32 v13, v6, v7, vcc")
    k("s_lshl_b32 %s, %s, 15" % (s(S_T), s(S_N)))
    k("s_lshl_b32 %s, %s, 11" % (s(S_T2), s(S_WRAP)))
    k("s_add_u32 %s, %s, %s" % (s(S_LEFT), s(S_T), s(S_T2)))
    k("v_add_u32 %s, %s, v12" % (v(VLO), s(S_LEFT)))
    k("v_add_u32 %s, %s, v13" % (v(VLO + 1), s(S_LEFT)))
    k("s_sub_u32 %s, %s, %s" % (s(S_LEFT), s(S_T), s(S_T2)))
    k("s_add_u32 %s, %s, %d" % (s(S_LEFT), s(S_LEFT), 8 * 2048))
    k("v_add_u32 %s, %s, v12" % (v(VHI), s(S_LEFT)))
    k("v_add_u32 %s, %s, v13" % (v(VHI + 1), s(S_LEFT)))
    for r in range(16):
        k("v_mov_b32 %s, 0" % v(OTH + r))
    k("s_lshr_b32 %s, %s, 1" % (s(S_T), s(S_W)))
    k("s_lshl_b32 %s, %s, 1" % (s(S_T2), s(S_RB)))
    k("s_add_u32 %s, %s, %s" % (s(S_T), s(S_T), s(S_T2)))
    k("s_mul_i32 %s, %s, %d" % (s(S_XO0), s(S_T), WS_HO_ROW))
    k("s_lshl_b32 %s, %s, 14" % (s(S_T), s(S_N)))
    k("s_add_u32 %s, %s, %s" % (s(S_XO0), s(S_XO0), s(S_T)))
    k("s_add_u32 %s, %s, 0x%x" % (s(S_XO0), s(S_XO0), WS_HO + 112 * 1024))
    k("s_lshl_b32 %s, %s, 10" % (s(S_T), s(S_WRAP)))
    k("s_add_u32 %s, %s, %s" % (s(S_XO1), s(S_XO0), s(S_T)))
    k("s_sub_u32 %s, %s, %s" % (s(S_XO0), s(S_XO0), s(S_T)))
    def xloads():
        k("s_mov_b32 %s, %s" % (s(S_T), s(S_XO1)))
        k("s_add_u32 %s, %s, 8192" % (s(S_T2), s(S_XO0)))
        for i in range(16):
            so = S_T if i < 8 else S_T2
            if i in (4, 12):
                k("s_add_u32 %s, %s, 4096" % (s(so), s(so)))
            k("buffer_load_dwordx4 %s, v3, %s, %s offen offset:%d sc1" % (v(XB + 4 * i, 4), s(S_HD, 4), s(so), (i % 4) * 1024))

    if "dyn" in OPT:
        dyn_tail(k, pre, OWN, OTH)
    else:
        if not XPROF[0]:
            prof_mark(k, 2)
        if "tagged" in OPT:
            k("s_waitcnt vmcnt(0)")
            k("s_barrier")
            k("s_setprio 0")
            k("s_lshl_b32 %s, %s, 10" % (s(S_T2), s(S_WRAP)))
            k("s_sub_u32 %s, %s, %s" % (s(S_LEFT), s(S_XO1), s(S_T2)))
            k("v_and_b32 v8, 15, v0")
            k("v_lshlrev_b32 v8, 10, v8")
            k("v_add_u32 v8, 1020, v8")
            k("s_mov_b32 %s, 0" % s(S_TRIP))
            k.label(pre + "_lp")
            k("buffer_load_dword v9, v8, %s, %s offen sc1" % (s(S_HD, 4), s(S_LEFT)))
            k("s_add_u32 %s, %s, 1" % (s(S_TRIP), s(S_TRIP)))
            k("s_waitcnt vmcnt(0)")
            k("v_cmp_eq_u32 vcc, -1, v9")
            k("s_nop 1")
            k("s_cmp_eq_u64 vcc, 0")
            k("s_cbranch_scc1 %s_full" % pre)
            k("s_cmp_eq_u64 vcc, exec")
            k("s_cbranch_scc0 %s_lnear" % pre)
            k("s_sleep 24")
            k("s_branch %s_lagain" % pre)
            k.label(pre + "_lnear")
            k("s_setprio 3")
            k("s_sleep 2")
            k.label(pre + "_lagain")
            k("s_cmp_lt_u32 %s, 0x8000" % s(S_TRIP))
            k("s_cbranch_scc1 %s_lp" % pre)
            k.label(pre + "_full")
            k("s_setprio 3")
            xloads()
            k("s_add_u32 %s, %s, 1" % (s(S_TRIP), s(S_TRIP)))
            for g in range(4):
                k("s_waitcnt vmcnt(%d)" % (12 - 4 * g))
                for r in range(0, 16, 2):
                    a_, b_ = XB + 16 * g + r, XB + 16 * g + r + 1
                    if g == 0 and r == 0:
                        k("v_max_u32 v9, %s, %s" % (v(a_), v(b_)))
                    else:
                        k("v_max3_u32 v9, v9, %s, %s" % (v(a_), v(b_)))
            k("v_cmp_eq_u32 vcc, -1, v9")
            k("s_nop 1")
            k("s_cmp_eq_u64 vcc, 0")
            k("s_cbranch_scc1 %s_got" % pre)
            k("s_cmp_lt_u32 %s, 0x8000" % s(S_TRIP))
            k("s_cbranch_scc1 %s_full" % pre)
            k.label(pre + "_got")
            prof_mark(k, 4)
        else:
            k("s_lshl_b32 %s, %s, 8" % (s(S_LEFT), s(S_RB)))
            k("s_add_u32 %s, %s, 0x%x" % (s(S_LEFT), s(S_LEFT), WS_FLAG + FLAG_O))
            k("s_waitcnt vmcnt(0)")
            k("s_setprio %d" % (0 if "pollp0" in OPT else 3))
            wait_flags(k, pre + "_w", S_LEFT, 64, pre_loaded="fast" in OPT)
            k("s_setprio 3") if "pollp0" in OPT else None
            if "fprof" not in OPT:
                prof_mark(k, 4)
            xloads()

        def rd(i):
            base = VLO if i < 8 else VHI
            for j in range(2):
                for u in range(2):
                    k("ds_read_b64_tr_b16 %s, %s offset:%d" % (v(WB + 8 * (i & 1) + 4 * j + 2 * u, 2), v(base + j), (i & 7) * 2048 + u * 512))

        rd(0)
        for i in range(16):
            if "hyb" in OPT and i % 4 == 0:
                g_ = i // 4
                k("s_waitcnt vmcnt(%d)" % (12 - 4 * g_))
                k("s_mov_b32 %s, 0" % s(S_TRIP))
                k.label("%s_hc%d" % (pre, g_))
                for r in range(0, 16, 2):
                    a_, b_ = XB + 16 * g_ + r, XB + 16 * g_ + r + 1
                    k(("v_max_u32 v9, %s, %s" if r == 0 else "v_max3_u32 v9, v9, %s, %s") % (v(a_), v(b_)))
                k("v_cmp_eq_u32 vcc, -1, v9")
                k("s_add_u32 %s, %s, 1" % (s(S_TRIP), s(S_TRIP)))
                k("s_cmp_ge_u32 %s, 0x8000" % s(S_TRIP))
                k("s_cselect_b64 s[62:63], 0, vcc")
                k("s_cmp_eq_u64 s[62:63], 0")
                k("s_cbranch_scc1 %s_ho%d" % (pre, g_))
                so = S_XO1 if g_ < 2 else S_XO0
                k("s_add_u32 %s, %s, %d" % (s(S_T), s(so), 4096 * g_))
                for j in range(4):
                    k("buffer_load_dwordx4 %s, v3, %s, %s offen offset:%d sc1" % (v(XB + 16 * g_ + 4 * j, 4), s(S_HD, 4), s(S_T), j * 1024))
                k("s_waitcnt vmcnt(0)")
                k("s_branch %s_hc%d" % (pre, g_))
                k.label("%s_ho%d" % (pre, g_))
            if i < 15:
                rd(i + 1)
            if "hyb" in OPT:
                k("s_waitcnt lgkmcnt(%d)" % (4 if i < 15 else 0))
            elif "tagged" in OPT:
                k("s_waitcnt lgkmcnt(%d)" % (4 if i < 15 else 0))
            else:
                k("s_waitcnt vmcnt(%d) lgkmcnt(%d)" % (15 - i, 4 if i < 15 else 0))
            for j, acc in ((0, OWN), (1, OTH)):
                k("v_mfma_f32_32x32x16_bf16 %s, %s, %s, %s" % (v(acc, 16), v(WB + 8 * (i & 1) + 4 * j, 4), v(XB + 4 * i, 4), v(acc, 16)))
    k("s_barrier")
    k("s_xor_b32 %s, %s, 1" % (s(S_T), s(S_W)))
    k("s_lshl_b32 %s, %s, 12" % (s(S_T), s(S_T)))
    k("v_add_u32 v12, %s, v3" % s(S_T))
    k("s_lshl_b32 %s, %s, 12" % (s(S_T), s(S_W)))
    k("v_add_u32 v13, %s, v3" % s(S_T))
    k("s_nop 7")
    for g in range(4):
        k("ds_write_b128 v12, %s offset:%d" % (v(OTH + 4 * g, 4), g * 1024))
    k("s_waitcnt lgkmcnt(0)")
    k("s_barrier")
    for g in range(4):
        k("ds_read_b128 %s, v13 offset:%d" % (v(XB + 4 * g, 4), g * 1024))
    k("v_lshlrev_b32 v10, 10, v1")
    k("v_lshl_add_u32 v10, v2, 4, v10")
    for g in range(4):
        k("s_waitcnt lgkmcnt(%d)" % (3 - g))
        for r in range(4):
            k("v_add_f32 %s, %s, %s" % (v(OWN + 4 * g + r), v(OWN + 4 * g + r), v(XB + 4 * g + r)))
    for r in range(8):
        k("v_cvt_pk_bf16_f32 %s, %s, %s" % (v(16 + r), v(16 + 2 * r), v(17 + 2 * r)))
    osc = " sc1" if "osc1" in OPT else (" nt" if "ont" in OPT else "")
    k("buffer_store_dwordx4 v[16:19], v10, %s, %s offen%s" % (s(S_OD, 4), s(S_BX), osc))
    k("buffer_store_dwordx4 v[20:23], v10, %s, %s offen offset:32%s" % (s(S_OD, 4), s(S_BX), osc))


def gen_g_role(k, pre, ffn1=None):
    k("v_lshrrev_b32 v1, 6, v0")
    k("v_and_b32 v0, 63, v0")
    k("v_readfirstlane_b32 %s, v1" % s(S_W))
    for r, off in ((S_WS, KA_WS), (S_W2, KA_W2), (S_WOP, KA_WO), (S_X, KA_X), (S_B2, KA_B2), (S_OUT, KA_OUT)):
        k("s_load_dwordx2 %s, s[0:1], %d" % (s(r, 2), off))
    k("s_sub_u32 s3, s2, 256")
    if ffn1:
        k("s_load_dwordx2 s[62:63], s[0:1], %d" % KA_W1)
        k("s_load_dwordx2 s[64:65], s[0:1], %d" % KA_B1)
        ids(k, "s3")
        k("v_and_b32 v1, 31, v0")
        k("v_lshrrev_b32 v2, 5, v0")
        k("s_waitcnt lgkmcnt(0)")
        k.srd(S_HD, S_WS, (20 << 20) + (2 << 20))
        for lvl in (1, 2, 3):
            if "fp%d" % lvl in OPT:
                k("s_setprio %d" % lvl)
        ffn1(k, pre + "f")
        prof_mark(k, 2)
        if "latep" not in OPT:
            k("s_setprio 0")
        XSC[0] = " sc1"
    else:
        k("s_cmp_ge_u32 %s, 4" % s(S_W))
        k("s_cbranch_scc1 %s_exit" % pre)
    ids(k, "s3")
    if "pfo" in OPT:
        k.srd(S_WD, S_WOP, 512 * 1024)
        k("v_lshrrev_b32 v12, 3, v0")
        k("v_and_b32 v13, 7, v0")
        k("v_lshlrev_b32 v13, 4, v13")
        k("v_lshl_add_u32 v12, v12, 10, v13")
        k("s_lshl_b32 %s, %s, 17" % (s(S_T), s(S_RL)))
        k("s_lshl_b32 %s, %s, 14" % (s(S_T2), s(S_W)))
        k("s_add_u32 %s, %s, %s" % (s(S_T), s(S_T), s(S_T2)))
        k("s_lshl_b32 %s, %s, 7" % (s(S_T2), s(S_CB)))
        k("s_add_u32 %s, %s, %s" % (s(S_T), s(S_T), s(S_T2)))
        k("buffer_load_dwordx4 v[48:51], v12, %s, %s offen" % (s(S_WD, 4), s(S_T)))
        k("s_add_u32 %s, %s, 8192" % (s(S_T), s(S_T)))
        k("buffer_load_dwordx4 v[48:51], v12, %s, %s offen" % (s(S_WD, 4), s(S_T)))
        k.srd(S_XD, S_X, 2048 * 1024)
        k("s_lshl_b32 %s, %s, 16" % (s(S_T), s(S_RB)))
        k("s_lshl_b32 %s, %s, 13" % (s(S_T2), s(S_W)))
        k("s_add_u32 %s, %s, %s" % (s(S_T), s(S_T), s(S_T2)))
        k("s_lshl_b32 %s, %s, 7" % (s(S_T2), s(S_CB)))
        k("s_add_u32 %s, %s, %s" % (s(S_T), s(S_T), s(S_T2)))
        k("buffer_load_dwordx4 v[48:51], v12, %s, %s offen" % (s(S_XD, 4), s(S_T)))
    na = NA // 2 if "w8" in OPT else NA
    k("s_mul_i32 %s, %s, %d" % (s(S_LB), s(S_W), DW * WSLOT if "deep" in OPT else RING))
    seg_params(k, na, 0, S_XO0, S_WO, S_WRAP)
    k("s_mov_b32 %s, %d" % (s(S_N), na))
    setup(k)
    k("s_waitcnt lgkmcnt(0)")
    k.srd(S_HD, S_WS, WS_END)
    k.srd(S_WD, S_W2, 1792 * 1024)
    k.srd(S_XD, S_X, 2048 * 1024)
    k.srd(S_OD, S_OUT, 2048 * 1024)
    k.srd(S_BD, S_B2, 1024)
    if "fast" in OPT:
        resid_into_acc(k, pre)
    gp = 3 if "gp3" in OPT else (1 if "gp1" in OPT else (2 if "gp2" in OPT else None))
    if "deep" in OPT:
        stream2(k, pre + "a", na, gp)
    else:
        stream(k, pre + "a", na, False, prio=gp)
    XSC[0] = ""
    if "fprof" not in OPT:
        prof_mark(k, 3)
    if "w8" in OPT:
        for lvl in (1, 2, 3):
            if "rp%d" % lvl in OPT:
                k("s_setprio %d" % lvl)
        pair_reduce(k, pre)
    if "stop" in OPT:
        prof_mark(k, 4)
        prof_mark(k, 5)
        prof_rt(k, 6)
        prof_store(k, S_WS, S_W, 24)
        k("s_endpgm")
    for lvl in (1, 2, 3):
        if "rp%d" % lvl in OPT:
            k("s_setprio %d" % lvl)
    if "fast" not in OPT:
        resid_loads(k)
    reduce_and_store(k, pre)
    if "fast" not in OPT:
        add_resid(k)
    wo_tail(k, pre)
    if "nowait" not in OPT or common.PROF or common.STAMP:
        k("s_waitcnt vmcnt(0)")
    if common.STAMP:
        k("s_cmp_eq_u32 s2, 256")
        k("s_cbranch_scc0 %s_ng" % pre)
        k("s_cmp_eq_u32 %s, 0" % s(S_W))
        k("s_cbranch_scc0 %s_ng" % pre)
        k("s_load_dwordx2 s[60:61], s[0:1], %d" % KA_DBG)
        k("s_memrealtime s[88:89]")
        k("s_waitcnt lgkmcnt(0)")
        k("v_lshrrev_b32 v8, 2, v0")
        k("v_mul_u32_u24 v8, %d, v8" % (65 * 32))
        k("v_and_b32 v9, 3, v0")
        k("v_lshl_add_u32 v8, v9, 2, v8")
        k("v_add_u32 v8, 0x%x, v8" % WS_STAMP)
        k("v_cmp_gt_u32 vcc, 15, v0")
        k("s_and_saveexec_b64 s[62:63], vcc")
        k("global_load_dword v9, v8, %s sc1" % s(S_WS, 2))
        k("s_waitcnt vmcnt(0)")
        k("s_mov_b64 exec, s[62:63]")
        k("v_mov_b32 v10, s88")
        k("v_cmp_eq_u32 vcc, 15, v0")
        k("s_nop 1")
        k("v_cndmask_b32 v9, v9, v10, vcc")
        k("v_lshlrev_b32 v8, 2, v0")
        k("v_cmp_gt_u32 vcc, 16, v0")
        k("s_and_saveexec_b64 s[62:63], vcc")
        k("global_store_dword v8, v9, s[60:61]")
        k("s_waitcnt vmcnt(0)")
        k("s_mov_b64 exec, s[62:63]")
        k.label(pre + "_ng")
    if "fprof" not in OPT:
        prof_mark(k, 5)
    prof_rt(k, 6)
    prof_store(k, S_WS, S_W, 24)
    k.label(pre + "_exit")
    k("s_endpgm")


def gen_wo(k, name, pre):
    k.kernel_begin(name)
    k("s_cmp_ge_u32 s2, 256")
    k("s_cbranch_scc1 %s_exit" % pre)
    prof_start(k)
    for r, off in ((S_WS, KA_WS), (S_WOP, KA_WO), (S_OUT, KA_OUT)):
        k("s_load_dwordx2 %s, s[0:1], %d" % (s(r, 2), off))
    ids(k, "s2")
    k("v_lshrrev_b32 v1, 6, v0")
    k("v_and_b32 v0, 63, v0")
    k("v_readfirstlane_b32 %s, v1" % s(S_W))
    k("s_nop 0")
    k("s_mul_i32 %s, %s, %d" % (s(S_LB), s(S_W), RING))
    seg_params(k, NB, 112, S_XO0, S_WO, S_WRAP)
    k("s_mov_b32 %s, %d" % (s(S_N), NB))
    setup(k)
    k("s_waitcnt lgkmcnt(0)")
    k.srd(S_HD, S_WS, WS_BASE + (4 << 20))
    k.srd(S_WD, S_WOP, 512 * 1024)
    k.srd(S_OD, S_OUT, 2048 * 1024)
    k("s_lshl_b32 %s, s2, 14" % s(S_T))
    k("s_lshl_b32 %s, %s, 12" % (s(S_T2), s(S_W)))
    k("s_add_u32 %s, %s, %s" % (s(S_T), s(S_T), s(S_T2)))
    k("s_add_u32 %s, %s, 0x%x" % (s(S_T), s(S_T), WS_BASE))
    for q in range(4):
        k("s_cmp_lg_u32 %s, %d" % (s(S_W), q))
        k("s_cbranch_scc1 %s_nb%d" % (pre, q))
        for g in range(4):
            k("buffer_load_dwordx4 %s, v3, %s, %s offen offset:%d" % (v(ACC + 16 * q + 4 * g, 4), s(S_HD, 4), s(S_T), 1024 * g))
        k.label("%s_nb%d" % (pre, q))
    prof_mark(k, 2)
    stream(k, pre, NB, False)
    prof_mark(k, 3)
    reduce_and_store(k, pre)
    k("s_lshr_b32 %s, %s, 1" % (s(S_T), s(S_W)))
    k("s_lshl_b32 %s, %s, 1" % (s(S_T2), s(S_RB)))
    k("s_add_u32 %s, %s, %s" % (s(S_T), s(S_T), s(S_T2)))
    k("s_lshl_b32 %s, %s, 15" % (s(S_T), s(S_T)))
    k("s_and_b32 %s, %s, 1" % (s(S_T2), s(S_W)))
    k("s_lshl_b32 %s, %s, 6" % (s(S_T2), s(S_T2)))
    k("s_add_u32 %s, %s, %s" % (s(S_T), s(S_T), s(S_T2)))
    k("s_lshl_b32 %s, %s, 7" % (s(S_T2), s(S_CB)))
    k("s_add_u32 %s, %s, %s" % (s(S_T), s(S_T), s(S_T2)))
    k("v_lshlrev_b32 v10, 10, v1")
    k("v_lshl_add_u32 v10, v2, 4, v10")
    for r in range(8):
        k("v_cvt_pk_bf16_f32 %s, %s, %s" % (v(16 + r), v(16 + 2 * r), v(17 + 2 * r)))
    k("buffer_store_dwordx4 v[16:19], v10, %s, %s offen" % (s(S_OD, 4), s(S_T)))
    k("buffer_store_dwordx4 v[20:23], v10, %s, %s offen offset:32" % (s(S_OD, 4), s(S_T)))
    k("s_waitcnt vmcnt(0)")
    prof_mark(k, 5)
    prof_rt(k, 6)
    prof_store(k, S_WS, S_W, 24)
    k.label(pre + "_exit")
    k.kernel_end(name, 128, 128)
    return 256, 65536


def gen_final(k, name, pre):
    k.kernel_begin(name)
    k("s_cmp_ge_u32 s2, 256")
    k("s_cbranch_scc1 %s_exit" % pre)
    prof_start(k)
    for r, off in ((S_WS, KA_WS), (S_W2, KA_W2), (S_WOP, KA_WO), (S_X, KA_X), (S_B2, KA_B2), (S_OUT, KA_OUT)):
        k("s_load_dwordx2 %s, s[0:1], %d" % (s(r, 2), off))
    k("s_bfe_u32 %s, s2, 0x20003" % s(S_RL))
    k("s_and_b32 %s, s2, 7" % s(S_RB))
    k("s_lshl_b32 %s, %s, 2" % (s(S_RB), s(S_RB)))
    k("s_add_u32 %s, %s, %s" % (s(S_RB), s(S_RB), s(S_RL)))
    k("s_lshr_b32 %s, s2, 5" % s(S_CB))
    k("v_lshrrev_b32 v1, 6, v0")
    k("v_and_b32 v0, 63, v0")
    k("v_readfirstlane_b32 %s, v1" % s(S_W))
    k("s_nop 0")
    k("s_mul_i32 %s, %s, %d" % (s(S_LB), s(S_W), RING))
    if "norot" in OPT:
        k("s_mov_b32 %s, 0" % s(S_RL))
    seg_params(k, NA, 0, S_XO0, S_WO, S_WRAP)
    seg_params(k, NB, 112, S_BX, S_BW, S_BWRAP)
    k("s_mov_b32 %s, %d" % (s(S_N), NA))
    k("s_mov_b32 %s, %d" % (s(S_LEFT), NA))
    setup(k)
    k("s_waitcnt lgkmcnt(0)")
    k.srd(S_HD, S_WS, WS_END)
    k.srd(S_WD, S_W2, 1792 * 1024)
    k.srd(S_XD, S_X, 2048 * 1024)
    k.srd(S_OD, S_OUT, 2048 * 1024)
    k.srd(S_BD, S_B2, 1024)
    prof_mark(k, 2)
    stream(k, pre, NA + NB, True)
    prof_mark(k, 3)
    resid_loads(k)
    reduce_and_store(k, pre)
    finish_tile(k)
    k("s_waitcnt vmcnt(0)")
    prof_mark(k, 5)
    prof_rt(k, 6)
    prof_store(k, S_WS, S_W, 24)
    k.label(pre + "_exit")
    k.kernel_end(name, 128, 128)
    return 256, 65536
```

```python
import common
from common import *

OPT = set()
XBYTES = 65536
L_PART = XBYTES
L_BI = L_PART + 2048
SLOT0 = XBYTES + 3072
SLOT = 16384
R = 5
SLOTE = SLOT0 + R * SLOT
LDS_BYTES = SLOTE
WS_XN = 20 << 20

S_X, S_WQ, S_WS, S_B1, S_W1 = 4, 6, 8, 10, 40
S_XD, S_WD, S_OD = 12, 16, 20
S_W, S_RB, S_CT, S_T, S_T2, S_C, S_SLOT, S_WO, S_LD = 24, 25, 26, 27, 28, 29, 30, 32, 33
S_RSLOT, S_T3, S_ROT, S_CK, S_KC, S_U, S_NCH, S_WEND, S_LD3, S_LD4 = 35, 36, 37, 38, 39, 42, 43, 44, 45, 46

VA0, VXA, NX, NS, NQ, NT = 4, 5, 16, 48, 50, 52
VWQ, VWF = 6, 7
VW2 = 11
VX = 19
XF = [20, 24]
WF = [28, 44]
ACC = 60
NV = 128
VQO, VFO = 6, 9


def entry(k, pre, name):
    k("s_cmp_ge_u32 s2, 256")
    k("s_cbranch_scc1 %s_exit" % pre)
    prof_start(k)
    k("s_load_dwordx2 %s, s[0:1], %d" % (s(S_X, 2), KA_X))
    k("s_load_dwordx2 %s, s[0:1], %d" % (s(S_WQ, 2), KA_WQKV))
    k("s_load_dwordx2 %s, s[0:1], %d" % (s(S_W1, 2), KA_W1))
    k("s_load_dwordx2 %s, s[0:1], %d" % (s(S_WS, 2), KA_WS))
    k("s_load_dwordx2 %s, s[0:1], %d" % (s(S_B1, 2), KA_B1))
    k("v_lshrrev_b32 v1, 6, v0")
    k("v_and_b32 v0, 63, v0")
    k("v_readfirstlane_b32 %s, v1" % s(S_W))
    if "nopf" not in OPT:
        k("s_getpc_b64 s[50:51]")
        k.label(pre + "_pc")
        k("s_sub_u32 s50, s50, %s_pc-%s" % (pre, name))
        k("s_subb_u32 s51, s51, 0")
        k("s_lshr_b32 s52, s2, 3")
        k("s_lshl_b32 s52, s52, 10")
        k("v_lshl_add_u32 v3, v0, 4, s52")
        k("v_cmp_gt_u32 vcc, L_text_end-%s-16, v3" % name)
        k("s_cmp_eq_u32 %s, 7" % s(S_W))
        k("s_cselect_b64 s[52:53], vcc, 0")
        k("s_and_saveexec_b64 s[54:55], s[52:53]")
        k("s_cbranch_execz %s_npf" % pre)
        k("global_load_dwordx4 v[112:115], v3, s[50:51]")
        k.label(pre + "_npf")
        k("s_mov_b64 exec, s[54:55]")
    if "mapx" in OPT:
        k("s_lshr_b32 %s, s2, 3" % s(S_RB))
        k("s_and_b32 %s, %s, 7" % (s(S_ROT), s(S_RB)))
        k("s_and_b32 %s, s2, 7" % s(S_CT))
        k("s_mov_b32 %s, 0" % s(S_T))
    else:
        k("s_lshr_b32 %s, s2, 3" % s(S_T))
        k("s_and_b32 %s, %s, 7" % (s(S_ROT), s(S_T)))
        k("s_and_b32 %s, s2, 3" % s(S_RB))
        k("s_lshl_b32 %s, %s, 3" % (s(S_RB), s(S_RB)))
        k("s_add_u32 %s, %s, %s" % (s(S_RB), s(S_RB), s(S_ROT)))
        k("s_lshr_b32 %s, %s, 3" % (s(S_T), s(S_T)))
        k("s_bfe_u32 %s, s2, 0x10002" % s(S_CT))
        k("s_lshl_b32 %s, %s, 2" % (s(S_CT), s(S_CT)))
        k("s_add_u32 %s, %s, %s" % (s(S_CT), s(S_CT), s(S_T)))
    if "n12" in OPT:
        k("s_add_u32 %s, %s, %s" % (s(S_ROT), s(S_ROT), s(S_T)))
        k("s_and_b32 %s, %s, 3" % (s(S_ROT), s(S_ROT)))
        k("s_lshl_b32 %s, %s, 2" % (s(S_ROT), s(S_ROT)))
    else:
        k("s_lshl_b32 %s, %s, 1" % (s(S_ROT), s(S_ROT)))
    k("s_lshl_b32 %s, %s, 1" % (s(S_T), s(S_T)))
    k("s_add_u32 %s, %s, %s" % (s(S_T), s(S_T), s(S_W)))
    k("s_and_b32 %s, %s, 7" % (s(S_T), s(S_T)))
    k("s_lshl_b32 %s, %s, 3" % (s(S_T3), s(S_T)))
    k("v_lshlrev_b32 v3, 4, v0")
    k("s_lshl_b32 %s, %s, 6" % (s(S_T), s(S_RB)))
    k("s_add_u32 %s, %s, %s" % (s(S_T), s(S_T), s(S_T3)))
    k("s_lshl_b32 %s, %s, 10" % (s(S_T2), s(S_T)))
    k("s_lshl_b32 m0, %s, 10" % s(S_T3))
    k("s_and_b32 %s, %s, 8" % (s(S_T3), s(S_T3)))
    k("s_waitcnt lgkmcnt(0)")
    stamp(k, 0, S_WS, S_W)
    k.srd(S_XD, S_X, 2048 * 1024)
    if "n12" in OPT:
        k("s_cmp_ge_u32 %s, 8" % s(S_W))
        k("s_cbranch_scc1 %s_nox" % pre)
    for i in range(8):
        k("s_add_u32 %s, %s, %d" % (s(S_T), s(S_T3), i))
        k("s_lshl_b32 %s, %s, 4" % (s(S_T), s(S_T)))
        k("v_xor_b32 v4, %s, v3" % s(S_T))
        k("buffer_load_dwordx4 v4, %s, %s offen lds" % (s(S_XD, 4), s(S_T2)))
        if i < 7:
            k("s_add_u32 m0, m0, 1024")
            k("s_add_u32 %s, %s, 1024" % (s(S_T2), s(S_T2)))
    if "n12" in OPT:
        k.label(pre + "_nox")
    if "p2" not in OPT and "p3" not in OPT:
        prof_mark(k, 2)
    k("v_and_b32 v1, 31, v0")
    k("v_lshrrev_b32 v2, 5, v0")
    k.srd(S_OD, S_WS, WS_END if "xn" not in OPT else WS_XN + (2 << 20))
    k.srd(S_WD, S_WQ, 512 * 3072)
    for r in range(6, 11):
        k("v_mov_b32 %s, 0" % v(r))
    if "poison" in OPT:
        k("s_lshr_b32 %s, s2, 2" % s(S_T))
        k("s_mul_i32 %s, %s, %d" % (s(S_T), s(S_T), WS_HO_ROW))
        k("s_and_b32 %s, s2, 3" % s(S_T2))
        k("s_lshl_b32 %s, %s, 3" % (s(S_T2), s(S_T2)))
        k("s_add_u32 %s, %s, %s" % (s(S_T2), s(S_T2), s(S_W)))
        k("s_lshl_b32 %s, %s, 10" % (s(S_T2), s(S_T2)))
        k("s_add_u32 %s, %s, %s" % (s(S_T), s(S_T), s(S_T2)))
        k("s_add_u32 %s, %s, 0x%x" % (s(S_T), s(S_T), WS_HO + 112 * 1024))
        k("v_lshlrev_b32 v4, 4, v0")
        for r in range(4):
            k("v_mov_b32 %s, -1" % v(12 + r))
        k("buffer_store_dwordx4 v[12:15], v4, %s, %s offen%s" % (s(S_OD, 4), s(S_T), " sc1" if "xsc1" in OPT else ""))
    k("s_cmp_lt_u32 s2, 48")
    k("s_cbranch_scc0 %s_nz" % pre)
    k("s_cmp_eq_u32 %s, 0" % s(S_W))
    k("s_cbranch_scc0 %s_nz" % pre)
    k("s_lshl_b32 %s, s2, 8" % s(S_T))
    k("s_add_u32 %s, %s, 0x%x" % (s(S_T), s(S_T), WS_FLAG))
    k("v_lshl_add_u32 v4, v0, 2, %s" % s(S_T))
    k("v_mov_b32 v5, 0")
    k("global_store_dword v4, v5, %s" % s(S_WS, 2))
    k.label(pre + "_nz")
    if "n12" in OPT:
        k("s_cmp_ge_u32 %s, 8" % s(S_W))
        k("s_cbranch_scc1 %s_norm" % pre)
    k("s_cmp_ge_u32 %s, 4" % s(S_W))
    k("s_cbranch_scc1 %s_loader" % pre)


def xaddr_base(k, s_tile):
    k("s_lshl_b32 %s, %s, 15" % (s(S_T), s(s_tile)))
    k("v_and_b32 v3, 15, v1")
    k("v_xor_b32 v3, v3, v2")
    k("v_lshlrev_b32 v3, 4, v3")
    k("v_lshl_add_u32 v3, v1, 10, v3")
    k("v_add_u32 %s, %s, v3" % (v(VA0), s(S_T)))


def normalise(k, pre, dma, younger):
    k("s_and_b32 %s, %s, 1" % (s(S_T2), s(S_W)))
    xaddr_base(k, S_T2)
    k("s_lshr_b32 %s, %s, 1" % (s(S_T3), s(S_W)))
    k("s_lshl_b32 %s, %s, 8" % (s(S_U), s(S_T3)))
    k("v_xor_b32 %s, %s, %s" % (v(VXA), s(S_U), v(VA0)))
    k("s_cmp_ge_u32 %s, 4" % s(S_W))
    k("s_cbranch_scc1 %s_nwl" % pre)
    k("s_waitcnt vmcnt(0)")
    k.label(pre + "_nwl")
    k("s_waitcnt vmcnt(%d)" % younger)
    k("s_barrier")
    if "n12" in OPT:
        k("s_cmp_ge_u32 %s, 8" % s(S_W))
        k("s_cbranch_scc1 %s_nosum" % pre)
    if "p2" not in OPT:
        prof_mark(k, 3)
    for i in range(8):
        k("v_xor_b32 %s, %d, %s" % (v(NT + 8 + i), 32 * i, v(VXA)))
    AD = NT + 8
    for i in range(8):
        k("ds_read_b128 %s, %s" % (v(NX + 4 * i, 4), v(AD + i)))
    for r in range(4):
        k("v_mov_b32 %s, 0" % v(NS + r))
    k("v_mov_b32 %s, 0x3f803f80" % v(NT))
    for i in range(8):
        k("s_waitcnt lgkmcnt(%d)" % (7 - i))
        for r in range(4):
            k("v_dot2c_f32_bf16 %s, %s, %s" % (v(NS + (r & 1)), v(NT), v(NX + 4 * i + r)))
            k("v_dot2c_f32_bf16 %s, %s, %s" % (v(NQ + (r & 1)), v(NX + 4 * i + r), v(NX + 4 * i + r)))
    k("s_nop 2")
    for r in (NS, NQ):
        k("v_add_f32 %s, %s, %s" % (v(r), v(r), v(r + 1)))
        k("v_mov_b32 %s, %s" % (v(r + 1), v(r)))
        k("s_nop 1")
        k("v_permlane32_swap_b32 %s, %s" % (v(r + 1), v(r)))
        k("s_nop 1")
        k("v_add_f32 %s, %s, %s" % (v(r), v(r), v(r + 1)))
    if "p3" in OPT:
        prof_mark(k, 2)

    def w1pf(first, n):
        k("s_lshr_b32 %s, s2, 3" % s(S_T))
        k("s_mul_i32 %s, %s, %d" % (s(S_T), s(S_T), 16 * 3584))
        k("s_mul_i32 %s, %s, 7168" % (s(S_T2), s(S_W)))
        k("s_add_u32 %s, %s, %s" % (s(S_T), s(S_T), s(S_T2)))
        k("v_lshlrev_b32 v3, 4, v0")
        for j in range(first, first + n):
            k("s_add_u32 %s, %s, %d" % (s(S_T2), s(S_T), j * 1024))
            k("buffer_load_dwordx4 v[112:115], v3, s[56:59], %s offen" % s(S_T2))

    if "w1n" in OPT:
        k.srd(56, S_W1, 512 * 3584)
        w1pf(0, 4)
    k("s_cmp_ge_u32 %s, 4" % s(S_W))
    k("s_cbranch_scc0 %s_nnd" % pre)
    for grp in dma:
        for ins in grp:
            k(ins)
    k.label(pre + "_nnd")
    k("v_mov_b32 %s, %s" % (v(NS + 1), v(NQ)))
    k("s_lshl_b32 %s, %s, 8" % (s(S_T), s(S_W)))
    k("s_add_u32 %s, %s, %d" % (s(S_T), s(S_T), L_PART))
    k("v_lshl_add_u32 v3, v1, 3, %s" % s(S_T))
    k("ds_write_b64 v3, %s" % v(NS, 2))
    if "n12" in OPT:
        k.label(pre + "_nosum")
    k("s_waitcnt lgkmcnt(0)")
    k("s_barrier")
    if "p3" in OPT:
        prof_mark(k, 4)
    if "k1p" in OPT:
        k("s_setprio 0")
        k("s_cmp_ge_u32 %s, 4" % s(S_W))
        k("s_cbranch_scc1 %s_np" % pre)
        k("s_setprio 3")
        k.label(pre + "_np")
    k("s_and_b32 %s, %s, 1" % (s(S_T), s(S_W)))
    k("s_lshl_b32 %s, %s, 8" % (s(S_T), s(S_T)))
    k("s_add_u32 %s, %s, %d" % (s(S_T), s(S_T), L_PART))
    k("v_lshl_add_u32 v3, v1, 3, %s" % s(S_T))
    PT = NT + 16
    for q in range(4):
        k("ds_read_b64 %s, v3 offset:%d" % (v(PT + 2 * q, 2), q * 512))
    k("s_waitcnt lgkmcnt(0)")
    k("v_add_f32 %s, %s, %s" % (v(PT), v(PT), v(PT + 2)))
    k("v_add_f32 %s, %s, %s" % (v(PT + 1), v(PT + 1), v(PT + 3)))
    k("v_add_f32 %s, %s, %s" % (v(PT + 4), v(PT + 4), v(PT + 6)))
    k("v_add_f32 %s, %s, %s" % (v(PT + 5), v(PT + 5), v(PT + 7)))
    k("v_add_f32 %s, %s, %s" % (v(NS), v(PT), v(PT + 4)))
    k("v_add_f32 %s, %s, %s" % (v(NQ), v(PT + 1), v(PT + 5)))
    k("v_mul_f32 %s, 0x%x, %s" % (v(NS), f2u(1.0 / 512), v(NS)))
    k("v_mul_f32 %s, 0x%x, %s" % (v(NQ), f2u(1.0 / 512), v(NQ)))
    k("v_fma_f32 %s, -%s, %s, %s" % (v(NQ), v(NS), v(NS), v(NQ)))
    k("v_max_f32 %s, 0, %s" % (v(NQ), v(NQ)))
    k("v_add_f32 %s, 0x%x, %s" % (v(NQ), f2u(1e-5), v(NQ)))
    k("v_rsq_f32 %s, %s" % (v(NQ), v(NQ)))
    MK, TP = NT + 24, NT + 26
    k("v_mov_b32 %s, 0xffff0000" % v(MK))
    k("v_mul_f32 %s, %s, %s" % (v(NS), v(NS), v(NQ)))
    k("v_mov_b32 %s, %s" % (v(NQ + 1), v(NQ)))
    k("v_sub_f32 %s, 0, %s" % (v(NS), v(NS)))
    k("v_mov_b32 %s, %s" % (v(NS + 1), v(NS)))
    if "n12" in OPT:
        def norm_frag(tag, n):
            k("s_lshl_b32 %s, %s, 5" % (s(S_T), s(S_KC)))
            k("v_xor_b32 %s, %s, %s" % (v(AD), s(S_T), v(VA0)))
            k("ds_read_b128 %s, %s" % (v(NX, 4), v(AD)))
            if n == 2:
                k("v_xor_b32 %s, 32, %s" % (v(AD + 1), v(AD)))
                k("ds_read_b128 %s, %s" % (v(NX + 4, 4), v(AD + 1)))
            for i in range(n):
                k("s_waitcnt lgkmcnt(%d)" % (n - 1 - i))
                for r in range(4):
                    x = NX + 4 * i + r
                    t = TP + 2 * (r & 1)
                    k("v_lshlrev_b32 %s, 16, %s" % (v(t), v(x)))
                    k("v_and_b32 %s, %s, %s" % (v(t + 1), v(MK), v(x)))
                    if r > 0:
                        tp = TP + 2 * ((r - 1) & 1)
                        k("v_cvt_pk_bf16_f32 %s, %s, %s" % (v(x - 1), v(tp), v(tp + 1)))
                    k("v_pk_fma_f32 %s, %s, %s, %s" % (v(t, 2), v(t, 2), v(NQ, 2), v(NS, 2)))
                k("v_cvt_pk_bf16_f32 %s, %s, %s" % (v(NX + 4 * i + 3), v(TP + 2), v(TP + 3)))
                k("ds_write_b128 %s, %s" % (v(AD + i), v(NX + 4 * i, 4)))
            k("s_lshr_b32 %s, %s, 2" % (s(S_T), s(S_KC)))
            k("s_cmp_eq_u32 %s, %s" % (s(S_T), s(S_CT)))
            k("s_cbranch_scc0 %s_nx%s" % (pre, tag))
            k("s_lshl_b32 %s, %s, 10" % (s(S_T), s(S_KC)))
            k("s_add_u32 %s, %s, %s" % (s(S_T), s(S_T), s(S_RSLOT)))
            for i in range(n):
                k("buffer_store_dwordx4 %s, v3, %s, %s offen offset:%d" % (v(NX + 4 * i, 4), s(S_OD, 4), s(S_T), 1024 * i))
            k.label("%s_nx%s" % (pre, tag))

        k("s_and_b32 %s, %s, 1" % (s(S_T), s(S_W)))
        k("s_lshl_b32 %s, %s, 1" % (s(S_T2), s(S_RB)))
        k("s_add_u32 %s, %s, %s" % (s(S_T), s(S_T), s(S_T2)))
        k("s_lshl_b32 %s, %s, 15" % (s(S_RSLOT), s(S_T)))
        k("s_add_u32 %s, %s, 0x%x" % (s(S_RSLOT), s(S_RSLOT), WS_XN))
        k("v_lshlrev_b32 v3, 4, v0")
        k("s_cmp_ge_u32 %s, 8" % s(S_W))
        k("s_cbranch_scc1 %s_nzr" % pre)
        k("s_lshl_b32 %s, %s, 1" % (s(S_KC), s(S_ROT)))
        k("s_and_b32 %s, %s, 6" % (s(S_T), s(S_W)))
        k("s_add_u32 %s, %s, %s" % (s(S_KC), s(S_KC), s(S_T)))
        norm_frag("a", 2)
        k("s_branch %s_ndone" % pre)
        k.label(pre + "_nzr")
        k("s_setprio 3")

        def step_of(f, dst):
            k("s_lshl_b32 %s, %s, 1" % (s(dst), s(S_ROT)))
            k("s_add_u32 %s, %s, %d" % (s(dst), s(dst), 8 * (1 + (f >> 2))))
            k("s_and_b32 %s, %s, 31" % (s(dst), s(dst)))
            k("s_add_u32 %s, %s, %s" % (s(dst), s(dst), s(S_U)))
            if f & 3:
                k("s_add_u32 %s, %s, %d" % (s(dst), s(dst), f & 3))

        k("s_and_b32 %s, %s, 2" % (s(S_U), s(S_W)))
        k("s_lshl_b32 %s, %s, 1" % (s(S_U), s(S_U)))

        def fetch(f):
            step_of(f, S_T2)
            k("s_lshl_b32 %s, %s, 5" % (s(S_T2), s(S_T2)))
            k("v_xor_b32 %s, %s, %s" % (v(AD + (f & 1)), s(S_T2), v(VA0)))
            k("ds_read_b128 %s, %s" % (v(NX + 4 * (f & 1), 4), v(AD + (f & 1))))

        fetch(0)
        for f in range(12):
            b = f & 1
            k("s_waitcnt lgkmcnt(0)")
            for r in range(4):
                x = NX + 4 * b + r
                t = TP + 2 * (r & 1)
                k("v_lshlrev_b32 %s, 16, %s" % (v(t), v(x)))
                k("v_and_b32 %s, %s, %s" % (v(t + 1), v(MK), v(x)))
                if r > 0:
                    tp = TP + 2 * ((r - 1) & 1)
                    k("v_cvt_pk_bf16_f32 %s, %s, %s" % (v(x - 1), v(tp), v(tp + 1)))
                k("v_pk_fma_f32 %s, %s, %s, %s" % (v(t, 2), v(t, 2), v(NQ, 2), v(NS, 2)))
            k("v_cvt_pk_bf16_f32 %s, %s, %s" % (v(NX + 4 * b + 3), v(TP + 2), v(TP + 3)))
            k("ds_write_b128 %s, %s" % (v(AD + b), v(NX + 4 * b, 4)))
            if f < 11:
                fetch(f + 1)
            step_of(f, S_KC)
            k("s_lshr_b32 %s, %s, 2" % (s(S_T), s(S_KC)))
            k("s_cmp_eq_u32 %s, %s" % (s(S_T), s(S_CT)))
            k("s_cbranch_scc0 %s_nxb%d" % (pre, f))
            k("s_lshl_b32 %s, %s, 10" % (s(S_T), s(S_KC)))
            k("s_add_u32 %s, %s, %s" % (s(S_T), s(S_T), s(S_RSLOT)))
            k("buffer_store_dwordx4 %s, v3, %s, %s offen" % (v(NX + 4 * b, 4), s(S_OD, 4), s(S_T)))
            k.label("%s_nxb%d" % (pre, f))
            k("s_barrier")
        k("s_waitcnt lgkmcnt(0)")
        for b in range(5):
            k("s_barrier")
        finish(k)
        k.label(pre + "_ndone")
    else:
        for i in range(8):
            for r in range(4):
                x = NX + 4 * i + r
                t = TP + 2 * (r & 1)
                k("v_lshlrev_b32 %s, 16, %s" % (v(t), v(x)))
                k("v_and_b32 %s, %s, %s" % (v(t + 1), v(MK), v(x)))
                if r > 0:
                    tp = TP + 2 * ((r - 1) & 1)
                    k("v_cvt_pk_bf16_f32 %s, %s, %s" % (v(x - 1), v(tp), v(tp + 1)))
                k("v_pk_fma_f32 %s, %s, %s, %s" % (v(t, 2), v(t, 2), v(NQ, 2), v(NS, 2)))
            tp = TP + 2
            k("v_cvt_pk_bf16_f32 %s, %s, %s" % (v(NX + 4 * i + 3), v(tp), v(tp + 1)))
            k("ds_write_b128 %s, %s" % (v(AD + i), v(NX + 4 * i, 4)))
    if "p3" in OPT:
        prof_mark(k, 5)
    if "xn" in OPT and "n12" not in OPT:
        k("s_lshr_b32 %s, %s, 1" % (s(S_T), s(S_CT)))
        k("s_lshr_b32 %s, %s, 1" % (s(S_T2), s(S_W)))
        k("s_cmp_eq_u32 %s, %s" % (s(S_T), s(S_T2)))
        k("s_cbranch_scc0 %s_noxn%s" % (pre, ""))
        k("s_and_b32 %s, %s, 1" % (s(S_T), s(S_W)))
        k("s_lshl_b32 %s, %s, 1" % (s(S_T2), s(S_RB)))
        k("s_add_u32 %s, %s, %s" % (s(S_T), s(S_T), s(S_T2)))
        k("s_lshl_b32 %s, %s, 15" % (s(S_T), s(S_T)))
        k("s_lshl_b32 %s, %s, 12" % (s(S_T2), s(S_CT)))
        k("s_add_u32 %s, %s, %s" % (s(S_T), s(S_T), s(S_T2)))
        k("s_add_u32 %s, %s, 0x%x" % (s(S_T), s(S_T), WS_XN))
        k("v_lshlrev_b32 v3, 4, v0")
        k("s_bitcmp1_b32 %s, 0" % s(S_CT))
        k("s_cbranch_scc1 %s_xnhi%s" % (pre, ""))
        xsc = " sc1" if "xsc1" in OPT else ""
        for i in range(4):
            k("buffer_store_dwordx4 %s, v3, %s, %s offen offset:%d%s" % (v(NX + 4 * i, 4), s(S_OD, 4), s(S_T), 1024 * i, xsc))
        k("s_branch %s_noxn%s" % (pre, ""))
        k.label("%s_xnhi%s" % (pre, ""))
        for i in range(4):
            k("buffer_store_dwordx4 %s, v3, %s, %s offen offset:%d%s" % (v(NX + 16 + 4 * i, 4), s(S_OD, 4), s(S_T), 1024 * i, xsc))
        k.label("%s_noxn%s" % (pre, ""))
    k("s_waitcnt lgkmcnt(0)")


def next_slot(k, r):
    k("s_add_u32 %s, %s, %d" % (s(r), s(r), SLOT))
    k("s_cmp_ge_u32 %s, %d" % (s(r), SLOTE))
    k("s_cselect_b32 %s, %d, %s" % (s(r), SLOT0, s(r)))


def wfrag_addr(k, t=ACC, q_only=False):
    r, b, h, g, x, y = t, t + 1, t + 2, t + 3, t + 4, t + 5
    k("s_lshr_b32 %s, %s, 1" % (s(S_T), s(S_W)))
    k("v_bfe_u32 %s, v0, 2, 2" % v(r))
    k("v_and_b32 %s, 3, v0" % v(b))
    k("v_bfe_u32 %s, v0, 4, 1" % v(h))
    k("v_lshl_add_u32 %s, %s, 2, %s" % (v(b), v(h), v(b)))
    k("v_and_b32 %s, 1, %s" % (v(h), v(b)))
    k("v_lshrrev_b32 %s, 1, %s" % (v(g), v(b)))
    k("v_lshl_add_u32 %s, v2, 3, %s" % (v(x), v(r)))
    k("v_lshl_add_u32 %s, %s, 2, %s" % (v(b), v(h), v(g)))
    k("v_mul_u32_u24 %s, 384, %s" % (v(y), v(x)))
    k("v_lshl_add_u32 %s, %s, 3, %s" % (v(y), v(b), v(y)))
    k("v_lshrrev_b32 %s, 1, %s" % (v(b), v(r)))
    k("v_xor_b32 %s, %s, %s" % (v(b), s(S_T), v(b)))
    k("v_lshl_add_u32 %s, %s, 6, %s" % (v(VWQ), v(b), v(y)))
    if q_only:
        return
    k("v_lshrrev_b32 %s, 1, %s" % (v(b), v(g)))
    k("v_and_b32 %s, 1, %s" % (v(g), v(g)))
    k("v_lshl_add_u32 %s, %s, 1, %s" % (v(g), v(h), v(g)))
    k("v_lshl_add_u32 %s, %s, 2, %s" % (v(b), v(b), v(g)))
    k("v_lshlrev_b32 %s, 9, %s" % (v(y), v(x)))
    k("v_lshl_add_u32 %s, %s, 3, %s" % (v(y), v(b), v(y)))
    k("s_lshl_b32 %s, %s, 8" % (s(S_T), s(S_T)))
    k("v_add_u32 %s, %s, %s" % (v(y), s(S_T), v(y)))
    for ft in range(4):
        k("v_xor_b32 %s, %d, %s" % (v(b), ft, v(r)))
        k("v_lshl_add_u32 %s, %s, 6, %s" % (v(VWF + ft), v(b), v(y)))


def compute_phase(k, pre, F):
    q = F == 3
    RB = 384 if q else 512
    NA = 1 if q else 4
    base = VWQ if q else VWF
    p = pre + ("Q" if q else "F")

    def wa(par, ft):
        return VW2 + 4 * par + (0 if q else ft)

    def slot_ops(par):
        return ["v_add_u32 %s, %s, %s" % (v(VW2 + 4 * par + j), s(S_SLOT), v(base + j)) for j in range(NA)]

    def x_ops(st):
        return ["v_xor_b32 %s, %s, %s" % (v(VX), s(S_U), v(VA0))] if st == 0 else ["v_xor_b32 %s, 32, %s" % (v(VX), v(VX))]

    def u_ops():
        return ["s_lshl_b32 %s, %s, 6" % (s(S_U), s(S_KC))]

    def kc_next():
        return ["s_add_u32 %s, %s, 1" % (s(S_KC), s(S_KC)), "s_and_b32 %s, %s, 15" % (s(S_KC), s(S_KC))]

    def rd_x(buf):
        return ["ds_read_b128 %s, %s" % (v(XF[buf], 4), v(VX))]

    def rd_w(par, st, buf, ft):
        off = st * 16 * RB + (ft * 128 if q else 0)
        return ["ds_read_b64_tr_b16 %s, %s offset:%d" % (v(WF[buf] + 4 * ft + 2 * u, 2), v(wa(par, ft)), off + u * 4 * RB) for u in range(2)]

    def mfma(buf, ft):
        d = v(ACC + 16 * ft, 16)
        if q and ft == 2:
            k("v_mfma_f32_32x32x16_bf16 %s, %s, %s, %s" % (d, v(XF[buf], 4), v(WF[buf] + 4 * ft, 4), d))
        else:
            k("v_mfma_f32_32x32x16_bf16 %s, %s, %s, %s" % (d, v(WF[buf] + 4 * ft, 4), v(XF[buf], 4), d))

    k("s_mov_b32 %s, %s" % (s(S_KC), s(S_ROT)))
    for ins in u_ops() + slot_ops(0) + x_ops(0) + rd_x(0) + sum((rd_w(0, 0, 0, ft) for ft in range(F)), []) + x_ops(1):
        k(ins)
    k("s_mov_b32 %s, 0" % s(S_C))
    k(".p2align 3")
    k.label(p + "_loop")
    VXN = VX + 0
    for par in range(2):
        for st in range(2):
            b, nb = st, 1 - st
            npar = par if st == 0 else 1 - par
            for ft in range(F):
                newer = 2 * (F - 1 - ft) + (0 if ft == 0 else 1 + 2 * ft)
                k("s_waitcnt lgkmcnt(%d)" % newer)
                mfma(b, ft)
                if ft == 0:
                    if st == 1:
                        k("s_barrier")
                    for ins in rd_x(nb):
                        k(ins)
                for ins in rd_w(npar, 1 - st, nb, ft):
                    k(ins)
                if ft == 0:
                    if st == 0:
                        for ins in kc_next() + u_ops() + x_ops(0):
                            k(ins)
                    else:
                        for ins in x_ops(1):
                            k(ins)
                if st == 0 and ft == 1:
                    next_slot(k, S_SLOT)
                if st == 0 and ft == F - 1:
                    for ins in slot_ops(1 - par):
                        k(ins)
    k("s_add_u32 %s, %s, 1" % (s(S_C), s(S_C)))
    k("s_cmp_lt_u32 %s, 8" % s(S_C))
    k("s_cbranch_scc1 %s_loop" % p)
    k("s_waitcnt lgkmcnt(0)")


def epilogue_q(k):
    cq = 0.25 * LOG2E
    a1, a2, a3, t1, t2 = 12, 13, 14, 15, 16
    k("s_lshl_b32 %s, %s, 1" % (s(S_T2), s(S_RB)))
    k("s_and_b32 %s, %s, 1" % (s(S_T), s(S_W)))
    k("s_add_u32 %s, %s, %s" % (s(S_T2), s(S_T2), s(S_T)))
    k("s_lshl_b32 %s, %s, 2" % (s(S_T3), s(S_CT)))
    k("s_and_b32 %s, %s, 2" % (s(S_T), s(S_W)))
    k("s_add_u32 %s, %s, %s" % (s(S_T3), s(S_T3), s(S_T)))
    k("v_add_u32 %s, %s, v2" % (v(t1), s(S_T3)))
    k("v_lshlrev_b32 %s, 4, v1" % v(t2))
    k("v_lshl_add_u32 %s, %s, 16, %s" % (v(a1), v(t1), v(t2)))
    k("s_lshl_b32 %s, %s, 10" % (s(S_T), s(S_T2)))
    k("v_add_u32 %s, %s, %s" % (v(a1), s(S_T), v(a1)))
    k("v_lshl_add_u32 %s, %s, 17, %s" % (v(a2), v(t1), v(t2)))
    k("s_lshl_b32 %s, %s, 11" % (s(S_T), s(S_T2)))
    k("s_add_u32 %s, %s, 0x%x" % (s(S_T), s(S_T), WS_KV))
    k("v_add_u32 %s, %s, %s" % (v(a2), s(S_T), v(a2)))
    k("v_bfe_u32 %s, v1, 2, 1" % v(t1))
    k("v_lshrrev_b32 %s, 3, v1" % v(t2))
    k("v_and_b32 %s, 3, v1" % v(a3))
    k("v_and_b32 v17, 1, %s" % v(t2))
    k("v_lshrrev_b32 %s, 1, %s" % (v(t2), v(t2)))
    k("v_lshl_add_u32 %s, %s, 2, %s" % (v(a3), v(t2), v(a3)))
    k("v_lshl_add_u32 %s, v17, 3, %s" % (v(a3), v(a3)))
    k("v_lshlrev_b32 %s, 4, %s" % (v(a3), v(a3)))
    k("v_add_u32 %s, %s, %s" % (v(t1), s(S_T3), v(t1)))
    k("v_lshl_add_u32 %s, %s, 17, %s" % (v(a3), v(t1), v(a3)))
    k("v_lshl_add_u32 %s, v2, 8, %s" % (v(a3), v(a3)))
    k("s_add_u32 %s, %s, 1024" % (s(S_T), s(S_T)))
    k("v_add_u32 %s, %s, %s" % (v(a3), s(S_T), v(a3)))
    sc = " sc1" if "sc1" in OPT else (" nt" if "nt" in OPT else "")
    for ft, dst in ((1, a2), (2, a3), (0, a1)):
        A = ACC + 16 * ft
        if ft == 0:
            for r in range(16):
                k("v_mul_f32 %s, 0x%x, %s" % (v(A + r), f2u(cq), v(A + r)))
        for r in range(8):
            k("v_cvt_pk_bf16_f32 %s, %s, %s" % (v(A + r), v(A + 2 * r), v(A + 2 * r + 1)))
        k("buffer_store_dwordx4 %s, %s, %s, 0 offen%s" % (v(A, 4), v(dst), s(S_OD, 4), sc))
        k("buffer_store_dwordx4 %s, %s, %s, 0 offen offset:512%s" % (v(A + 4, 4), v(dst), s(S_OD, 4), sc))


def epilogue_f(k):
    a1 = 12
    k("s_lshl_b32 %s, %s, 1" % (s(S_T2), s(S_RB)))
    k("s_and_b32 %s, %s, 1" % (s(S_T), s(S_W)))
    k("s_add_u32 %s, %s, %s" % (s(S_T2), s(S_T2), s(S_T)))
    k("s_mul_i32 %s, %s, %d" % (s(S_T), s(S_T2), WS_HO_ROW))
    k("s_lshl_b32 %s, %s, 14" % (s(S_T3), s(S_CT)))
    k("s_add_u32 %s, %s, %s" % (s(S_T), s(S_T), s(S_T3)))
    k("s_lshr_b32 %s, %s, 1" % (s(S_T3), s(S_W)))
    k("s_lshl_b32 %s, %s, 13" % (s(S_T3), s(S_T3)))
    k("s_add_u32 %s, %s, %s" % (s(S_T), s(S_T), s(S_T3)))
    k("s_add_u32 %s, %s, 0x%x" % (s(S_T), s(S_T), WS_HO))
    k("v_lshlrev_b32 %s, 4, v0" % v(a1))
    k("v_add_u32 %s, %s, %s" % (v(a1), s(S_T), v(a1)))
    B = WF[0]
    for ft in range(4):
        A = ACC + 16 * ft
        for r in range(16):
            k("v_max_f32 %s, 0, %s" % (v(B + r), v(A + r)))
        for r in range(16):
            k("v_mul_f32 %s, %s, %s" % (v(A + r), v(A + r), v(B + r)))
        for r in range(8):
            k("v_cvt_pk_bf16_f32 %s, %s, %s" % (v(A + r), v(A + 2 * r), v(A + 2 * r + 1)))
        sc = " sc1" if "sc1" in OPT else (" nt" if "nt" in OPT else "")
        k("buffer_store_dwordx4 %s, %s, %s, 0 offen offset:%d%s" % (v(A, 4), v(a1), s(S_OD, 4), 2048 * (ft & 1), sc))
        k("buffer_store_dwordx4 %s, %s, %s, 0 offen offset:%d%s" % (v(A + 4, 4), v(a1), s(S_OD, 4), 2048 * (ft & 1) + 1024, sc))
        if ft == 1:
            k("v_add_u32 %s, 4096, %s" % (v(a1), v(a1)))


def compute(k, pre, ffn):
    if "k1t" in OPT:
        for j in range(82 - ACC):
            k("v_mov_b32 %s, 0" % v(ACC + j))
    else:
        wfrag_addr(k)
        k("s_and_b32 %s, %s, 1" % (s(S_T2), s(S_W)))
        xaddr_base(k, S_T2)
        for j in range(48):
            k("v_mov_b32 %s, 0" % v(ACC + j))
    k("s_mov_b32 %s, %d" % (s(S_SLOT), SLOT0))
    k("s_setprio 2")
    k("s_barrier")
    if "p3" not in OPT:
        prof_mark(k, 4 if "p2" not in OPT else 2)
    compute_phase(k, pre, 3)
    if "p2" in OPT:
        prof_mark(k, 3)
    k("s_nop 7")
    epilogue_q(k)
    if ffn:
        k("s_cmp_eq_u32 %s, 7" % s(S_CT))
        k("s_cbranch_scc1 %s_cdone" % pre)
        k("s_lshr_b32 %s, %s, 1" % (s(S_T), s(S_W)))
        k("s_lshl_b32 %s, %s, 9" % (s(S_T), s(S_T)))
        k("s_add_u32 %s, %s, %d" % (s(S_T), s(S_T), L_BI))
        k("v_lshl_add_u32 v3, v2, 4, %s" % s(S_T))
        for ft in range(4):
            for g in range(4):
                k("ds_read_b128 %s, v3 offset:%d" % (v(ACC + 16 * ft + 4 * g, 4), ft * 128 + g * 32))
        k("s_waitcnt lgkmcnt(0)")
        if "p2" in OPT:
            prof_mark(k, 4)
        compute_phase(k, pre, 4)
        if "p2" in OPT:
            prof_mark(k, 5)
        k("s_nop 7")
        epilogue_f(k)
        k.label(pre + "_cdone")


class Groups:
    def __init__(self):
        self.groups = [[]]

    def __call__(self, txt):
        self.groups[-1].append(txt)
        if txt.startswith("buffer_load"):
            self.groups.append([])


def issue_chunk(k, q, c):
    n = 3 if q else 4
    wrow = 3072 if q else 3584
    k("s_add_u32 m0, %s, %d" % (s(S_LD3 if q else S_LD4), SLOT0 + (c % R) * SLOT))
    if not q:
        k("s_mov_b32 %s, %s" % (s(S_T2), s(S_WO)))
    else:
        k("s_nop 0")
    for i in range(n):
        k("buffer_load_dwordx4 %s, %s, %s offen lds" % (v(VQO + i) if q else v(VFO + (i & 1)), s(S_WD, 4), s(S_WO if q else S_T2)))
        if i < n - 1:
            k("s_add_u32 m0, m0, 1024")
            if q:
                k("s_nop 0")
            else:
                k("s_add_u32 %s, %s, %d" % (s(S_T2), s(S_T2), 2 * wrow))
    k("s_add_u32 %s, %s, %d" % (s(S_WO), s(S_WO), 32 * wrow))
    k("s_cmp_ge_u32 %s, %s" % (s(S_WO), s(S_WEND)))
    k("s_cselect_b32 %s, %d, 0" % (s(S_T), 512 * wrow))
    k("s_sub_u32 %s, %s, %s" % (s(S_WO), s(S_WO), s(S_T)))


def phase_base(k, q):
    wrow = 3072 if q else 3584
    k("s_mul_i32 %s, %s, %d" % (s(S_WO), s(S_LD), 8 * wrow))
    k("s_lshl_b32 %s, %s, %d" % (s(S_T), s(S_CT), 7 if q else 9))
    k("s_add_u32 %s, %s, %s" % (s(S_WO), s(S_WO), s(S_T)))
    k("s_add_u32 %s, %s, %d" % (s(S_WEND), s(S_WO), 512 * wrow))
    k("s_mul_i32 %s, %s, %d" % (s(S_T), s(S_ROT), 32 * wrow))
    k("s_add_u32 %s, %s, %s" % (s(S_WO), s(S_WO), s(S_T)))


def loader_pre(k, pre, ffn):
    k("s_setprio 3")
    k("s_sub_u32 %s, %s, 4" % (s(S_LD), s(S_W)))
    k("s_mov_b32 %s, 0x%x" % (s(S_T), (2 ** 32 + 383) // 384))
    for j in range(3):
        k("v_lshlrev_b32 v12, 4, v0")
        k("v_add_u32 v12, %d, v12" % (1024 * j))
        k("v_mul_hi_u32 v13, v12, %s" % s(S_T))
        k("v_mul_u32_u24 v14, 384, v13")
        k("v_sub_u32 v14, v12, v14")
        k("v_lshrrev_b32 v15, 7, v14")
        k("v_and_b32 v14, 127, v14")
        k("v_bfe_u32 v12, v13, 1, 1")
        k("v_lshlrev_b32 v12, 6, v12")
        k("v_xor_b32 v14, v14, v12")
        k("v_mul_u32_u24 v13, 3072, v13")
        k("v_lshl_add_u32 v13, v15, 10, v13")
        k("v_add_u32 %s, v13, v14" % v(VQO + j))
    k("s_mul_i32 %s, %s, 3072" % (s(S_LD3), s(S_LD)))
    k("s_lshl_b32 %s, %s, 12" % (s(S_LD4), s(S_LD)))
    phase_base(k, True)
    issue_chunk(k, True, 0)
    issue_chunk(k, True, 1)
    for p_ in range(2):
        k("v_lshrrev_b32 v12, 5, v0")
        k("v_add_u32 v12, %d, v12" % (2 * p_))
        k("v_bfe_u32 v13, v0, 2, 3")
        k("v_xor_b32 v13, v13, v12")
        k("v_lshlrev_b32 v13, 6, v13")
        k("v_and_b32 v14, 3, v0")
        k("v_lshl_add_u32 v13, v14, 4, v13")
        k("v_lshrrev_b32 v12, 5, v0")
        k("v_mul_u32_u24 v12, 3584, v12")
        k("v_add_u32 %s, v12, v13" % v(VFO + p_))
    if ffn:
        k("v_lshrrev_b32 v12, 3, v1")
        k("v_bfe_u32 v13, v1, 2, 1")
        k("v_and_b32 v14, 3, v1")
        k("v_lshrrev_b32 v15, 1, v12")
        k("v_and_b32 v12, 1, v12")
        k("v_lshl_add_u32 v14, v12, 2, v14")
        k("v_lshl_add_u32 v14, v13, 3, v14")
        k("v_lshl_add_u32 v14, v15, 4, v14")
        k("v_lshl_add_u32 v14, v2, 5, v14")
        k("s_lshl_b32 %s, %s, 8" % (s(S_T), s(S_CT)))
        k("s_lshl_b32 %s, %s, 6" % (s(S_T2), s(S_LD)))
        k("s_add_u32 %s, %s, %s" % (s(S_T), s(S_T), s(S_T2)))
        k("v_add_u32 v14, %s, v14" % s(S_T))
        k("v_lshlrev_b32 v14, 1, v14")
        k("v_min_u32 v14, 3582, v14")
        k("global_load_ushort v11, v14, %s" % s(S_B1, 2))


def loader_post(k, pre, ffn):
    npf = 4 if "w1n" in OPT else 0
    k("s_waitcnt vmcnt(%d)" % (6 if ffn else 9 + npf))
    if ffn:
        k("v_lshlrev_b32 v11, 16, v11")
        k("s_lshl_b32 %s, %s, 8" % (s(S_T), s(S_LD)))
        k("s_add_u32 %s, %s, %d" % (s(S_T), s(S_T), L_BI))
        k("v_lshl_add_u32 v12, v0, 2, %s" % s(S_T))
        k("ds_write_b32 v12, v11")
        k("s_waitcnt lgkmcnt(0)")
    k("s_barrier")
    k("s_setprio %d" % (3 if "lp3" in OPT else 1))

    def n_of(c):
        return 3 if c < 16 else 4

    def schedule(first, last, total):
        for c in range(first, last + 1):
            younger = sum(n_of(j) for j in (c + 1, c + 2) if j < total)
            if c == 1:
                younger += npf
            k("s_waitcnt vmcnt(%d)" % younger)
            k("s_barrier")
            if c + 3 < total:
                if c + 3 == 16:
                    k.srd(S_WD, S_W1, 512 * 3584)
                    phase_base(k, False)
                issue_chunk(k, c + 3 < 16, c + 3)

    if ffn:
        k("s_cmp_eq_u32 %s, 7" % s(S_CT))
        k("s_cbranch_scc1 %s_lq" % pre)
        schedule(1, 32, 32)
        k("s_branch %s_lend" % pre)
        k.label(pre + "_lq")
    schedule(1, 16, 16)
    k.label(pre + "_lend")
    if "w1pf" in OPT:
        k.srd(S_WD, S_W1, 512 * 3584)
        k("s_lshr_b32 %s, s2, 3" % s(S_T))
        k("s_lshl_b32 %s, %s, 2" % (s(S_T), s(S_T)))
        k("s_add_u32 %s, %s, %s" % (s(S_T), s(S_T), s(S_LD)))
        k("s_mul_i32 %s, %s, %d" % (s(S_T), s(S_T), 4 * 3584))
        k("v_lshlrev_b32 v12, 4, v0")
        for j in range(14):
            k("buffer_load_dwordx4 v[16:19], v12, %s, %s offen" % (s(S_WD, 4), s(S_T)))
            k("s_add_u32 %s, %s, 1024" % (s(S_T), s(S_T)))


def finish(k):
    if "nowait" not in OPT or common.PROF or common.STAMP:
        k("s_waitcnt vmcnt(0)")
    stamp(k, 1, S_WS, S_W)
    if "p2" not in OPT and "p3" not in OPT:
        prof_mark(k, 5)
    prof_rt(k, 6)
    prof_store(k, S_WS, S_W, 28)
    k("s_endpgm")


def gen(k, name, pre, ffn=True):
    k.kernel_begin(name)
    entry(k, pre, name)
    if "k1t" in OPT:
        wfrag_addr(k, 88, True)
        for j in range(82 - ACC, 48):
            k("v_mov_b32 %s, 0" % v(ACC + j))
    k("s_branch %s_norm" % pre)
    k.label(pre + "_loader")
    loader_pre(k, pre, ffn)
    k.label(pre + "_norm")
    g = Groups()
    issue_chunk(g, True, 2)
    issue_chunk(g, True, 3)
    normalise(k, pre, g.groups, 6 + (1 if ffn else 0))
    k("s_cmp_ge_u32 %s, 4" % s(S_W))
    k("s_cbranch_scc1 %s_lpost" % pre)
    compute(k, pre, ffn)
    finish(k)
    k.label(pre + "_lpost")
    loader_post(k, pre, ffn)
    if "w1pf" in OPT and not common.PROF:
        k("s_endpgm")
    finish(k)
    k.label(pre + "_exit")
    k.kernel_end(name, NV, NV)
    return 256, LDS_BYTES
```

```python
import common
from common import *

OPT = set()
XBYTES = 65536
L_PART = XBYTES
L_BI = L_PART + 2048
SLOT0 = XBYTES + 3072
SLOT = 16384
R = 5
SLOTE = SLOT0 + R * SLOT
LDS_BYTES = SLOTE
WS_XN = 20 << 20

S_X, S_WQ, S_WS, S_B1, S_W1 = 4, 6, 8, 10, 40
S_XD, S_WD, S_OD = 12, 16, 20
S_W, S_RB, S_CT, S_T, S_T2, S_C, S_SLOT, S_WO, S_LD = 24, 25, 26, 27, 28, 29, 30, 32, 33
S_RSLOT, S_T3, S_ROT, S_CK, S_KC, S_U, S_NCH, S_WEND, S_LD3, S_LD4 = 35, 36, 37, 38, 39, 42, 43, 44, 45, 46

VA0, VXA, NX, NS, NQ, NT = 4, 5, 16, 48, 50, 52
VWQ, VWF = 6, 7
VW2 = 11
VX = 19
XF = [20, 24]
WF = [28, 44]
ACC = 60
NV = 128
VQO, VFO = 6, 9


def entry(k, pre, name):
    k("s_cmp_ge_u32 s2, 256")
    k("s_cbranch_scc1 %s_exit" % pre)
    prof_start(k)
    k("s_load_dwordx2 %s, s[0:1], %d" % (s(S_X, 2), KA_X))
    k("s_load_dwordx2 %s, s[0:1], %d" % (s(S_WQ, 2), KA_WQKV))
    k("s_load_dwordx2 %s, s[0:1], %d" % (s(S_W1, 2), KA_W1))
    k("s_load_dwordx2 %s, s[0:1], %d" % (s(S_WS, 2), KA_WS))
    k("s_load_dwordx2 %s, s[0:1], %d" % (s(S_B1, 2), KA_B1))
    k("v_lshrrev_b32 v1, 6, v0")
    k("v_and_b32 v0, 63, v0")
    k("v_readfirstlane_b32 %s, v1" % s(S_W))
    if "nopf" not in OPT:
        k("s_getpc_b64 s[50:51]")
        k.label(pre + "_pc")
        k("s_sub_u32 s50, s50, %s_pc-%s" % (pre, name))
        k("s_subb_u32 s51, s51, 0")
        k("s_lshr_b32 s52, s2, 3")
        k("s_lshl_b32 s52, s52, 10")
        k("v_lshl_add_u32 v3, v0, 4, s52")
        k("v_cmp_gt_u32 vcc, L_text_end-%s-16, v3" % name)
        k("s_cmp_eq_u32 %s, 7" % s(S_W))
        k("s_cselect_b64 s[52:53], vcc, 0")
        k("s_and_saveexec_b64 s[54:55], s[52:53]")
        k("s_cbranch_execz %s_npf" % pre)
        k("global_load_dwordx4 v[112:115], v3, s[50:51]")
        k.label(pre + "_npf")
        k("s_mov_b64 exec, s[54:55]")
    if "mapx" in OPT:
        k("s_lshr_b32 %s, s2, 3" % s(S_RB))
        k("s_and_b32 %s, %s, 7" % (s(S_ROT), s(S_RB)))
        k("s_and_b32 %s, s2, 7" % s(S_CT))
        k("s_mov_b32 %s, 0" % s(S_T))
    else:
        k("s_lshr_b32 %s, s2, 3" % s(S_T))
        k("s_and_b32 %s, %s, 7" % (s(S_ROT), s(S_T)))
        k("s_and_b32 %s, s2, 3" % s(S_RB))
        k("s_lshl_b32 %s, %s, 3" % (s(S_RB), s(S_RB)))
        k("s_add_u32 %s, %s, %s" % (s(S_RB), s(S_RB), s(S_ROT)))
        k("s_lshr_b32 %s, %s, 3" % (s(S_T), s(S_T)))
        k("s_bfe_u32 %s, s2, 0x10002" % s(S_CT))
        k("s_lshl_b32 %s, %s, 2" % (s(S_CT), s(S_CT)))
        k("s_add_u32 %s, %s, %s" % (s(S_CT), s(S_CT), s(S_T)))
    if "n12" in OPT:
        k("s_add_u32 %s, %s, %s" % (s(S_ROT), s(S_ROT), s(S_T)))
        k("s_and_b32 %s, %s, 3" % (s(S_ROT), s(S_ROT)))
        k("s_lshl_b32 %s, %s, 2" % (s(S_ROT), s(S_ROT)))
    else:
        k("s_lshl_b32 %s, %s, 1" % (s(S_ROT), s(S_ROT)))
    k("s_lshl_b32 %s, %s, 1" % (s(S_T), s(S_T)))
    k("s_add_u32 %s, %s, %s" % (s(S_T), s(S_T), s(S_W)))
    k("s_and_b32 %s, %s, 7" % (s(S_T), s(S_T)))
    k("s_lshl_b32 %s, %s, 3" % (s(S_T3), s(S_T)))
    k("v_lshlrev_b32 v3, 4, v0")
    k("s_lshl_b32 %s, %s, 6" % (s(S_T), s(S_RB)))
    k("s_add_u32 %s, %s, %s" % (s(S_T), s(S_T), s(S_T3)))
    k("s_lshl_b32 %s, %s, 10" % (s(S_T2), s(S_T)))
    k("s_lshl_b32 m0, %s, 10" % s(S_T3))
    k("s_and_b32 %s, %s, 8" % (s(S_T3), s(S_T3)))
    k("s_waitcnt lgkmcnt(0)")
    stamp(k, 0, S_WS, S_W)
    k.srd(S_XD, S_X, 2048 * 1024)
    if "n12" in OPT:
        k("s_cmp_ge_u32 %s, 8" % s(S_W))
        k("s_cbranch_scc1 %s_nox" % pre)
    for i in range(8):
        k("s_add_u32 %s, %s, %d" % (s(S_T), s(S_T3), i))
        k("s_lshl_b32 %s, %s, 4" % (s(S_T), s(S_T)))
        k("v_xor_b32 v4, %s, v3" % s(S_T))
        k("buffer_load_dwordx4 v4, %s, %s offen lds" % (s(S_XD, 4), s(S_T2)))
        if i < 7:
            k("s_add_u32 m0, m0, 1024")
            k("s_add_u32 %s, %s, 1024" % (s(S_T2), s(S_T2)))
    if "n12" in OPT:
        k.label(pre + "_nox")
    if "p2" not in OPT and "p3" not in OPT:
        prof_mark(k, 2)
    k("v_and_b32 v1, 31, v0")
    k("v_lshrrev_b32 v2, 5, v0")
    k.srd(S_OD, S_WS, WS_END if "xn" not in OPT else WS_XN + (2 << 20))
    k.srd(S_WD, S_WQ, 512 * 3072)
    for r in list(range(6, 11)) + ([108, 109, 110] if "k1e" in OPT else []):
        k("v_mov_b32 %s, 0" % v(r))
    if "poison" in OPT:
        k("s_lshr_b32 %s, s2, 2" % s(S_T))
        k("s_mul_i32 %s, %s, %d" % (s(S_T), s(S_T), WS_HO_ROW))
        k("s_and_b32 %s, s2, 3" % s(S_T2))
        k("s_lshl_b32 %s, %s, 3" % (s(S_T2), s(S_T2)))
        k("s_add_u32 %s, %s, %s" % (s(S_T2), s(S_T2), s(S_W)))
        k("s_lshl_b32 %s, %s, 10" % (s(S_T2), s(S_T2)))
        k("s_add_u32 %s, %s, %s" % (s(S_T), s(S_T), s(S_T2)))
        k("s_add_u32 %s, %s, 0x%x" % (s(S_T), s(S_T), WS_HO + 112 * 1024))
        k("v_lshlrev_b32 v4, 4, v0")
        for r in range(4):
            k("v_mov_b32 %s, -1" % v(12 + r))
        k("buffer_store_dwordx4 v[12:15], v4, %s, %s offen%s" % (s(S_OD, 4), s(S_T), " sc1" if "xsc1" in OPT else ""))
    k("s_cmp_lt_u32 s2, 48")
    k("s_cbranch_scc0 %s_nz" % pre)
    k("s_cmp_eq_u32 %s, 0" % s(S_W))
    k("s_cbranch_scc0 %s_nz" % pre)
    k("s_lshl_b32 %s, s2, 8" % s(S_T))
    k("s_add_u32 %s, %s, 0x%x" % (s(S_T), s(S_T), WS_FLAG))
    k("v_lshl_add_u32 v4, v0, 2, %s" % s(S_T))
    k("v_mov_b32 v5, 0")
    k("global_store_dword v4, v5, %s" % s(S_WS, 2))
    k.label(pre + "_nz")
    if "n12" in OPT:
        k("s_cmp_ge_u32 %s, 8" % s(S_W))
        k("s_cbranch_scc1 %s_norm" % pre)
    k("s_cmp_ge_u32 %s, 4" % s(S_W))
    k("s_cbranch_scc1 %s_loader" % pre)


def xaddr_base(k, s_tile):
    k("s_lshl_b32 %s, %s, 15" % (s(S_T), s(s_tile)))
    k("v_and_b32 v3, 15, v1")
    k("v_xor_b32 v3, v3, v2")
    k("v_lshlrev_b32 v3, 4, v3")
    k("v_lshl_add_u32 v3, v1, 10, v3")
    k("v_add_u32 %s, %s, v3" % (v(VA0), s(S_T)))


def normalise(k, pre, dma, younger):
    k("s_and_b32 %s, %s, 1" % (s(S_T2), s(S_W)))
    xaddr_base(k, S_T2)
    k("s_lshr_b32 %s, %s, 1" % (s(S_T3), s(S_W)))
    k("s_lshl_b32 %s, %s, 8" % (s(S_U), s(S_T3)))
    k("v_xor_b32 %s, %s, %s" % (v(VXA), s(S_U), v(VA0)))
    k("s_cmp_ge_u32 %s, 4" % s(S_W))
    k("s_cbranch_scc1 %s_nwl" % pre)
    k("s_waitcnt vmcnt(0)")
    k.label(pre + "_nwl")
    k("s_waitcnt vmcnt(%d)" % younger)
    k("s_barrier")
    if "n12" in OPT:
        k("s_cmp_ge_u32 %s, 8" % s(S_W))
        k("s_cbranch_scc1 %s_nosum" % pre)
    if "p2" not in OPT:
        prof_mark(k, 3)
    for i in range(8):
        k("v_xor_b32 %s, %d, %s" % (v(NT + 8 + i), 32 * i, v(VXA)))
    AD = NT + 8
    for i in range(8):
        k("ds_read_b128 %s, %s" % (v(NX + 4 * i, 4), v(AD + i)))
    for r in range(4):
        k("v_mov_b32 %s, 0" % v(NS + r))
    k("v_mov_b32 %s, 0x3f803f80" % v(NT))
    for i in range(8):
        k("s_waitcnt lgkmcnt(%d)" % (7 - i))
        for r in range(4):
            k("v_dot2c_f32_bf16 %s, %s, %s" % (v(NS + (r & 1)), v(NT), v(NX + 4 * i + r)))
            k("v_dot2c_f32_bf16 %s, %s, %s" % (v(NQ + (r & 1)), v(NX + 4 * i + r), v(NX + 4 * i + r)))
    k("s_nop 2")
    for r in (NS, NQ):
        k("v_add_f32 %s, %s, %s" % (v(r), v(r), v(r + 1)))
        k("v_mov_b32 %s, %s" % (v(r + 1), v(r)))
        k("s_nop 1")
        k("v_permlane32_swap_b32 %s, %s" % (v(r + 1), v(r)))
        k("s_nop 1")
        k("v_add_f32 %s, %s, %s" % (v(r), v(r), v(r + 1)))
    if "p3" in OPT:
        prof_mark(k, 2)

    def w1pf(first, n):
        k("s_lshr_b32 %s, s2, 3" % s(S_T))
        k("s_mul_i32 %s, %s, %d" % (s(S_T), s(S_T), 16 * 3584))
        k("s_mul_i32 %s, %s, 7168" % (s(S_T2), s(S_W)))
        k("s_add_u32 %s, %s, %s" % (s(S_T), s(S_T), s(S_T2)))
        k("v_lshlrev_b32 v3, 4, v0")
        for j in range(first, first + n):
            k("s_add_u32 %s, %s, %d" % (s(S_T2), s(S_T), j * 1024))
            k("buffer_load_dwordx4 v[112:115], v3, s[56:59], %s offen" % s(S_T2))

    if "w1n" in OPT:
        k.srd(56, S_W1, 512 * 3584)
        w1pf(0, 4)
    k("s_cmp_ge_u32 %s, 4" % s(S_W))
    k("s_cbranch_scc0 %s_nnd" % pre)
    for grp in dma:
        for ins in grp:
            k(ins)
    k.label(pre + "_nnd")
    k("v_mov_b32 %s, %s" % (v(NS + 1), v(NQ)))
    k("s_lshl_b32 %s, %s, 8" % (s(S_T), s(S_W)))
    k("s_add_u32 %s, %s, %d" % (s(S_T), s(S_T), L_PART))
    k("v_lshl_add_u32 v3, v1, 3, %s" % s(S_T))
    k("ds_write_b64 v3, %s" % v(NS, 2))
    if "n12" in OPT:
        k.label(pre + "_nosum")
    k("s_waitcnt lgkmcnt(0)")
    k("s_barrier")
    if "p3" in OPT:
        prof_mark(k, 4)
    if "k1p" in OPT:
        k("s_setprio 0")
        k("s_cmp_ge_u32 %s, 4" % s(S_W))
        k("s_cbranch_scc1 %s_np" % pre)
        k("s_setprio 3")
        k.label(pre + "_np")
    k("s_and_b32 %s, %s, 1" % (s(S_T), s(S_W)))
    k("s_lshl_b32 %s, %s, 8" % (s(S_T), s(S_T)))
    k("s_add_u32 %s, %s, %d" % (s(S_T), s(S_T), L_PART))
    k("v_lshl_add_u32 v3, v1, 3, %s" % s(S_T))
    PT = NT + 16
    for q in range(4):
        k("ds_read_b64 %s, v3 offset:%d" % (v(PT + 2 * q, 2), q * 512))
    k("s_waitcnt lgkmcnt(0)")
    k("v_add_f32 %s, %s, %s" % (v(PT), v(PT), v(PT + 2)))
    k("v_add_f32 %s, %s, %s" % (v(PT + 1), v(PT + 1), v(PT + 3)))
    k("v_add_f32 %s, %s, %s" % (v(PT + 4), v(PT + 4), v(PT + 6)))
    k("v_add_f32 %s, %s, %s" % (v(PT + 5), v(PT + 5), v(PT + 7)))
    k("v_add_f32 %s, %s, %s" % (v(NS), v(PT), v(PT + 4)))
    k("v_add_f32 %s, %s, %s" % (v(NQ), v(PT + 1), v(PT + 5)))
    k("v_mul_f32 %s, 0x%x, %s" % (v(NS), f2u(1.0 / 512), v(NS)))
    k("v_mul_f32 %s, 0x%x, %s" % (v(NQ), f2u(1.0 / 512), v(NQ)))
    k("v_fma_f32 %s, -%s, %s, %s" % (v(NQ), v(NS), v(NS), v(NQ)))
    k("v_max_f32 %s, 0, %s" % (v(NQ), v(NQ)))
    k("v_add_f32 %s, 0x%x, %s" % (v(NQ), f2u(1e-5), v(NQ)))
    k("v_rsq_f32 %s, %s" % (v(NQ), v(NQ)))
    MK, TP = NT + 24, NT + 26
    k("v_mov_b32 %s, 0xffff0000" % v(MK))
    k("v_mul_f32 %s, %s, %s" % (v(NS), v(NS), v(NQ)))
    k("v_mov_b32 %s, %s" % (v(NQ + 1), v(NQ)))
    k("v_sub_f32 %s, 0, %s" % (v(NS), v(NS)))
    k("v_mov_b32 %s, %s" % (v(NS + 1), v(NS)))
    if "n12" in OPT:
        def norm_frag(tag, n):
            k("s_lshl_b32 %s, %s, 5" % (s(S_T), s(S_KC)))
            k("v_xor_b32 %s, %s, %s" % (v(AD), s(S_T), v(VA0)))
            k("ds_read_b128 %s, %s" % (v(NX, 4), v(AD)))
            if n == 2:
                k("v_xor_b32 %s, 32, %s" % (v(AD + 1), v(AD)))
                k("ds_read_b128 %s, %s" % (v(NX + 4, 4), v(AD + 1)))
            for i in range(n):
                k("s_waitcnt lgkmcnt(%d)" % (n - 1 - i))
                for r in range(4):
                    x = NX + 4 * i + r
                    t = TP + 2 * (r & 1)
                    k("v_lshlrev_b32 %s, 16, %s" % (v(t), v(x)))
                    k("v_and_b32 %s, %s, %s" % (v(t + 1), v(MK), v(x)))
                    if r > 0:
                        tp = TP + 2 * ((r - 1) & 1)
                        k("v_cvt_pk_bf16_f32 %s, %s, %s" % (v(x - 1), v(tp), v(tp + 1)))
                    k("v_pk_fma_f32 %s, %s, %s, %s" % (v(t, 2), v(t, 2), v(NQ, 2), v(NS, 2)))
                k("v_cvt_pk_bf16_f32 %s, %s, %s" % (v(NX + 4 * i + 3), v(TP + 2), v(TP + 3)))
                k("ds_write_b128 %s, %s" % (v(AD + i), v(NX + 4 * i, 4)))
            k("s_lshr_b32 %s, %s, 2" % (s(S_T), s(S_KC)))
            k("s_cmp_eq_u32 %s, %s" % (s(S_T), s(S_CT)))
            k("s_cbranch_scc0 %s_nx%s" % (pre, tag))
            k("s_lshl_b32 %s, %s, 10" % (s(S_T), s(S_KC)))
            k("s_add_u32 %s, %s, %s" % (s(S_T), s(S_T), s(S_RSLOT)))
            for i in range(n):
                k("buffer_store_dwordx4 %s, v3, %s, %s offen offset:%d" % (v(NX + 4 * i, 4), s(S_OD, 4), s(S_T), 1024 * i))
            k.label("%s_nx%s" % (pre, tag))

        k("s_and_b32 %s, %s, 1" % (s(S_T), s(S_W)))
        k("s_lshl_b32 %s, %s, 1" % (s(S_T2), s(S_RB)))
        k("s_add_u32 %s, %s, %s" % (s(S_T), s(S_T), s(S_T2)))
        k("s_lshl_b32 %s, %s, 15" % (s(S_RSLOT), s(S_T)))
        k("s_add_u32 %s, %s, 0x%x" % (s(S_RSLOT), s(S_RSLOT), WS_XN))
        k("v_lshlrev_b32 v3, 4, v0")
        k("s_cmp_ge_u32 %s, 8" % s(S_W))
        k("s_cbranch_scc1 %s_nzr" % pre)
        k("s_lshl_b32 %s, %s, 1" % (s(S_KC), s(S_ROT)))
        k("s_and_b32 %s, %s, 6" % (s(S_T), s(S_W)))
        k("s_add_u32 %s, %s, %s" % (s(S_KC), s(S_KC), s(S_T)))
        norm_frag("a", 2)
        k("s_branch %s_ndone" % pre)
        k.label(pre + "_nzr")
        k("s_setprio 3")

        def step_of(f, dst):
            k("s_lshl_b32 %s, %s, 1" % (s(dst), s(S_ROT)))
            k("s_add_u32 %s, %s, %d" % (s(dst), s(dst), 8 * (1 + (f >> 2))))
            k("s_and_b32 %s, %s, 31" % (s(dst), s(dst)))
            k("s_add_u32 %s, %s, %s" % (s(dst), s(dst), s(S_U)))
            if f & 3:
                k("s_add_u32 %s, %s, %d" % (s(dst), s(dst), f & 3))

        k("s_and_b32 %s, %s, 2" % (s(S_U), s(S_W)))
        k("s_lshl_b32 %s, %s, 1" % (s(S_U), s(S_U)))

        def fetch(f):
            step_of(f, S_T2)
            k("s_lshl_b32 %s, %s, 5" % (s(S_T2), s(S_T2)))
            k("v_xor_b32 %s, %s, %s" % (v(AD + (f & 1)), s(S_T2), v(VA0)))
            k("ds_read_b128 %s, %s" % (v(NX + 4 * (f & 1), 4), v(AD + (f & 1))))

        fetch(0)
        for f in range(12):
            b = f & 1
            k("s_waitcnt lgkmcnt(0)")
            for r in range(4):
                x = NX + 4 * b + r
                t = TP + 2 * (r & 1)
                k("v_lshlrev_b32 %s, 16, %s" % (v(t), v(x)))
                k("v_and_b32 %s, %s, %s" % (v(t + 1), v(MK), v(x)))
                if r > 0:
                    tp = TP + 2 * ((r - 1) & 1)
                    k("v_cvt_pk_bf16_f32 %s, %s, %s" % (v(x - 1), v(tp), v(tp + 1)))
                k("v_pk_fma_f32 %s, %s, %s, %s" % (v(t, 2), v(t, 2), v(NQ, 2), v(NS, 2)))
            k("v_cvt_pk_bf16_f32 %s, %s, %s" % (v(NX + 4 * b + 3), v(TP + 2), v(TP + 3)))
            k("ds_write_b128 %s, %s" % (v(AD + b), v(NX + 4 * b, 4)))
            if f < 11:
                fetch(f + 1)
            step_of(f, S_KC)
            k("s_lshr_b32 %s, %s, 2" % (s(S_T), s(S_KC)))
            k("s_cmp_eq_u32 %s, %s" % (s(S_T), s(S_CT)))
            k("s_cbranch_scc0 %s_nxb%d" % (pre, f))
            k("s_lshl_b32 %s, %s, 10" % (s(S_T), s(S_KC)))
            k("s_add_u32 %s, %s, %s" % (s(S_T), s(S_T), s(S_RSLOT)))
            k("buffer_store_dwordx4 %s, v3, %s, %s offen" % (v(NX + 4 * b, 4), s(S_OD, 4), s(S_T)))
            k.label("%s_nxb%d" % (pre, f))
            k("s_barrier")
        k("s_waitcnt lgkmcnt(0)")
        for b in range(5):
            k("s_barrier")
        finish(k)
        k.label(pre + "_ndone")
    else:
        for i in range(8):
            for r in range(4):
                x = NX + 4 * i + r
                t = TP + 2 * (r & 1)
                k("v_lshlrev_b32 %s, 16, %s" % (v(t), v(x)))
                k("v_and_b32 %s, %s, %s" % (v(t + 1), v(MK), v(x)))
                if r > 0:
                    tp = TP + 2 * ((r - 1) & 1)
                    k("v_cvt_pk_bf16_f32 %s, %s, %s" % (v(x - 1), v(tp), v(tp + 1)))
                k("v_pk_fma_f32 %s, %s, %s, %s" % (v(t, 2), v(t, 2), v(NQ, 2), v(NS, 2)))
            tp = TP + 2
            k("v_cvt_pk_bf16_f32 %s, %s, %s" % (v(NX + 4 * i + 3), v(tp), v(tp + 1)))
            k("ds_write_b128 %s, %s" % (v(AD + i), v(NX + 4 * i, 4)))
    if "p3" in OPT:
        prof_mark(k, 5)
    if "xn" in OPT and "n12" not in OPT:
        k("s_lshr_b32 %s, %s, 1" % (s(S_T), s(S_CT)))
        k("s_lshr_b32 %s, %s, 1" % (s(S_T2), s(S_W)))
        k("s_cmp_eq_u32 %s, %s" % (s(S_T), s(S_T2)))
        k("s_cbranch_scc0 %s_noxn%s" % (pre, ""))
        k("s_and_b32 %s, %s, 1" % (s(S_T), s(S_W)))
        k("s_lshl_b32 %s, %s, 1" % (s(S_T2), s(S_RB)))
        k("s_add_u32 %s, %s, %s" % (s(S_T), s(S_T), s(S_T2)))
        k("s_lshl_b32 %s, %s, 15" % (s(S_T), s(S_T)))
        k("s_lshl_b32 %s, %s, 12" % (s(S_T2), s(S_CT)))
        k("s_add_u32 %s, %s, %s" % (s(S_T), s(S_T), s(S_T2)))
        k("s_add_u32 %s, %s, 0x%x" % (s(S_T), s(S_T), WS_XN))
        k("v_lshlrev_b32 v3, 4, v0")
        k("s_bitcmp1_b32 %s, 0" % s(S_CT))
        k("s_cbranch_scc1 %s_xnhi%s" % (pre, ""))
        xsc = " sc1" if "xsc1" in OPT else ""
        for i in range(4):
            k("buffer_store_dwordx4 %s, v3, %s, %s offen offset:%d%s" % (v(NX + 4 * i, 4), s(S_OD, 4), s(S_T), 1024 * i, xsc))
        k("s_branch %s_noxn%s" % (pre, ""))
        k.label("%s_xnhi%s" % (pre, ""))
        for i in range(4):
            k("buffer_store_dwordx4 %s, v3, %s, %s offen offset:%d%s" % (v(NX + 16 + 4 * i, 4), s(S_OD, 4), s(S_T), 1024 * i, xsc))
        k.label("%s_noxn%s" % (pre, ""))
    k("s_waitcnt lgkmcnt(0)")


def next_slot(k, r):
    k("s_add_u32 %s, %s, %d" % (s(r), s(r), SLOT))
    k("s_cmp_ge_u32 %s, %d" % (s(r), SLOTE))
    k("s_cselect_b32 %s, %d, %s" % (s(r), SLOT0, s(r)))


def wfrag_addr(k, t=ACC, q_only=False):
    r, b, h, g, x, y = t, t + 1, t + 2, t + 3, t + 4, t + 5
    k("s_lshr_b32 %s, %s, 1" % (s(S_T), s(S_W)))
    k("v_bfe_u32 %s, v0, 2, 2" % v(r))
    k("v_and_b32 %s, 3, v0" % v(b))
    k("v_bfe_u32 %s, v0, 4, 1" % v(h))
    k("v_lshl_add_u32 %s, %s, 2, %s" % (v(b), v(h), v(b)))
    k("v_and_b32 %s, 1, %s" % (v(h), v(b)))
    k("v_lshrrev_b32 %s, 1, %s" % (v(g), v(b)))
    k("v_lshl_add_u32 %s, v2, 3, %s" % (v(x), v(r)))
    k("v_lshl_add_u32 %s, %s, 2, %s" % (v(b), v(h), v(g)))
    k("v_mul_u32_u24 %s, 384, %s" % (v(y), v(x)))
    k("v_lshl_add_u32 %s, %s, 3, %s" % (v(y), v(b), v(y)))
    k("v_lshrrev_b32 %s, 1, %s" % (v(b), v(r)))
    k("v_xor_b32 %s, %s, %s" % (v(b), s(S_T), v(b)))
    k("v_lshl_add_u32 %s, %s, 6, %s" % (v(VWQ), v(b), v(y)))
    if q_only:
        return
    k("v_lshrrev_b32 %s, 1, %s" % (v(b), v(g)))
    k("v_and_b32 %s, 1, %s" % (v(g), v(g)))
    k("v_lshl_add_u32 %s, %s, 1, %s" % (v(g), v(h), v(g)))
    k("v_lshl_add_u32 %s, %s, 2, %s" % (v(b), v(b), v(g)))
    k("v_lshlrev_b32 %s, 9, %s" % (v(y), v(x)))
    k("v_lshl_add_u32 %s, %s, 3, %s" % (v(y), v(b), v(y)))
    k("s_lshl_b32 %s, %s, 8" % (s(S_T), s(S_T)))
    k("v_add_u32 %s, %s, %s" % (v(y), s(S_T), v(y)))
    for ft in range(4):
        k("v_xor_b32 %s, %d, %s" % (v(b), ft, v(r)))
        k("v_lshl_add_u32 %s, %s, 6, %s" % (v(VWF + ft), v(b), v(y)))


def compute_phase(k, pre, F):
    q = F == 3
    RB = 384 if q else 512
    NA = 1 if q else 4
    base = VWQ if q else VWF
    p = pre + ("Q" if q else "F")

    def wa(par, ft):
        return VW2 + 4 * par + (0 if q else ft)

    def slot_ops(par):
        return ["v_add_u32 %s, %s, %s" % (v(VW2 + 4 * par + j), s(S_SLOT), v(base + j)) for j in range(NA)]

    def x_ops(st):
        return ["v_xor_b32 %s, %s, %s" % (v(VX), s(S_U), v(VA0))] if st == 0 else ["v_xor_b32 %s, 32, %s" % (v(VX), v(VX))]

    def u_ops():
        return ["s_lshl_b32 %s, %s, 6" % (s(S_U), s(S_KC))]

    def kc_next():
        return ["s_add_u32 %s, %s, 1" % (s(S_KC), s(S_KC)), "s_and_b32 %s, %s, 15" % (s(S_KC), s(S_KC))]

    def rd_x(buf):
        return ["ds_read_b128 %s, %s" % (v(XF[buf], 4), v(VX))]

    def rd_w(par, st, buf, ft):
        off = st * 16 * RB + (ft * 128 if q else 0)
        return ["ds_read_b64_tr_b16 %s, %s offset:%d" % (v(WF[buf] + 4 * ft + 2 * u, 2), v(wa(par, ft)), off + u * 4 * RB) for u in range(2)]

    def mfma(buf, ft):
        d = v(ACC + 16 * ft, 16)
        if q and ft == 2:
            k("v_mfma_f32_32x32x16_bf16 %s, %s, %s, %s" % (d, v(XF[buf], 4), v(WF[buf] + 4 * ft, 4), d))
        else:
            k("v_mfma_f32_32x32x16_bf16 %s, %s, %s, %s" % (d, v(WF[buf] + 4 * ft, 4), v(XF[buf], 4), d))

    k("s_mov_b32 %s, %s" % (s(S_KC), s(S_ROT)))
    for ins in u_ops() + slot_ops(0) + x_ops(0) + rd_x(0) + sum((rd_w(0, 0, 0, ft) for ft in range(F)), []) + x_ops(1):
        k(ins)
    k("s_mov_b32 %s, 0" % s(S_C))
    k(".p2align 3")
    k.label(p + "_loop")
    VXN = VX + 0
    for par in range(2):
        for st in range(2):
            b, nb = st, 1 - st
            npar = par if st == 0 else 1 - par
            for ft in range(F):
                newer = 2 * (F - 1 - ft) + (0 if ft == 0 else 1 + 2 * ft)
                k("s_waitcnt lgkmcnt(%d)" % newer)
                mfma(b, ft)
                if ft == 0:
                    if st == 1:
                        k("s_barrier")
                    for ins in rd_x(nb):
                        k(ins)
                for ins in rd_w(npar, 1 - st, nb, ft):
                    k(ins)
                if ft == 0:
                    if st == 0:
                        for ins in kc_next() + u_ops() + x_ops(0):
                            k(ins)
                    else:
                        for ins in x_ops(1):
                            k(ins)
                if st == 0 and ft == 1:
                    next_slot(k, S_SLOT)
                if st == 0 and ft == F - 1:
                    for ins in slot_ops(1 - par):
                        k(ins)
    k("s_add_u32 %s, %s, 1" % (s(S_C), s(S_C)))
    k("s_cmp_lt_u32 %s, 8" % s(S_C))
    k("s_cbranch_scc1 %s_loop" % p)
    k("s_waitcnt lgkmcnt(0)")


def epilogue_q(k, part="all"):
    cq = 0.25 * LOG2E
    a1, a2, a3, t1, t2 = 12, 13, 14, 15, 16
    if part != "all":
        a1, a2, a3, t1, t2 = 108, 109, 110, 111, 116
    if part != "store":
        epilogue_q_addr(k, a1, a2, a3, t1, t2)
    if part == "addr":
        return
    epilogue_q_store(k, a1, a2, a3, cq)


def epilogue_q_addr(k, a1, a2, a3, t1, t2):
    k("s_lshl_b32 %s, %s, 1" % (s(S_T2), s(S_RB)))
    k("s_and_b32 %s, %s, 1" % (s(S_T), s(S_W)))
    k("s_add_u32 %s, %s, %s" % (s(S_T2), s(S_T2), s(S_T)))
    k("s_lshl_b32 %s, %s, 2" % (s(S_T3), s(S_CT)))
    k("s_and_b32 %s, %s, 2" % (s(S_T), s(S_W)))
    k("s_add_u32 %s, %s, %s" % (s(S_T3), s(S_T3), s(S_T)))
    k("v_add_u32 %s, %s, v2" % (v(t1), s(S_T3)))
    k("v_lshlrev_b32 %s, 4, v1" % v(t2))
    k("v_lshl_add_u32 %s, %s, 16, %s" % (v(a1), v(t1), v(t2)))
    k("s_lshl_b32 %s, %s, 10" % (s(S_T), s(S_T2)))
    k("v_add_u32 %s, %s, %s" % (v(a1), s(S_T), v(a1)))
    k("v_lshl_add_u32 %s, %s, 17, %s" % (v(a2), v(t1), v(t2)))
    k("s_lshl_b32 %s, %s, 11" % (s(S_T), s(S_T2)))
    k("s_add_u32 %s, %s, 0x%x" % (s(S_T), s(S_T), WS_KV))
    k("v_add_u32 %s, %s, %s" % (v(a2), s(S_T), v(a2)))
    k("v_bfe_u32 %s, v1, 2, 1" % v(t1))
    k("v_lshrrev_b32 %s, 3, v1" % v(t2))
    k("v_and_b32 %s, 3, v1" % v(a3))
    k("v_and_b32 v117, 1, %s" % v(t2))
    k("v_lshrrev_b32 %s, 1, %s" % (v(t2), v(t2)))
    k("v_lshl_add_u32 %s, %s, 2, %s" % (v(a3), v(t2), v(a3)))
    k("v_lshl_add_u32 %s, v117, 3, %s" % (v(a3), v(a3)))
    k("v_lshlrev_b32 %s, 4, %s" % (v(a3), v(a3)))
    k("v_add_u32 %s, %s, %s" % (v(t1), s(S_T3), v(t1)))
    k("v_lshl_add_u32 %s, %s, 17, %s" % (v(a3), v(t1), v(a3)))
    k("v_lshl_add_u32 %s, v2, 8, %s" % (v(a3), v(a3)))
    k("s_add_u32 %s, %s, 1024" % (s(S_T), s(S_T)))
    k("v_add_u32 %s, %s, %s" % (v(a3), s(S_T), v(a3)))


def epilogue_q_store(k, a1, a2, a3, cq):
    sc = " sc1" if "sc1" in OPT else (" nt" if "nt" in OPT else "")
    for ft, dst in ((1, a2), (2, a3), (0, a1)):
        A = ACC + 16 * ft
        if ft == 0:
            for r in range(16):
                k("v_mul_f32 %s, 0x%x, %s" % (v(A + r), f2u(cq), v(A + r)))
        for r in range(8):
            k("v_cvt_pk_bf16_f32 %s, %s, %s" % (v(A + r), v(A + 2 * r), v(A + 2 * r + 1)))
        k("buffer_store_dwordx4 %s, %s, %s, 0 offen%s" % (v(A, 4), v(dst), s(S_OD, 4), sc))
        k("buffer_store_dwordx4 %s, %s, %s, 0 offen offset:512%s" % (v(A + 4, 4), v(dst), s(S_OD, 4), sc))


def epilogue_f(k):
    a1 = 12
    k("s_lshl_b32 %s, %s, 1" % (s(S_T2), s(S_RB)))
    k("s_and_b32 %s, %s, 1" % (s(S_T), s(S_W)))
    k("s_add_u32 %s, %s, %s" % (s(S_T2), s(S_T2), s(S_T)))
    k("s_mul_i32 %s, %s, %d" % (s(S_T), s(S_T2), WS_HO_ROW))
    k("s_lshl_b32 %s, %s, 14" % (s(S_T3), s(S_CT)))
    k("s_add_u32 %s, %s, %s" % (s(S_T), s(S_T), s(S_T3)))
    k("s_lshr_b32 %s, %s, 1" % (s(S_T3), s(S_W)))
    k("s_lshl_b32 %s, %s, 13" % (s(S_T3), s(S_T3)))
    k("s_add_u32 %s, %s, %s" % (s(S_T), s(S_T), s(S_T3)))
    k("s_add_u32 %s, %s, 0x%x" % (s(S_T), s(S_T), WS_HO))
    k("v_lshlrev_b32 %s, 4, v0" % v(a1))
    k("v_add_u32 %s, %s, %s" % (v(a1), s(S_T), v(a1)))
    B = WF[0]
    for ft in range(4):
        A = ACC + 16 * ft
        for r in range(16):
            k("v_max_f32 %s, 0, %s" % (v(B + r), v(A + r)))
        for r in range(16):
            k("v_mul_f32 %s, %s, %s" % (v(A + r), v(A + r), v(B + r)))
        for r in range(8):
            k("v_cvt_pk_bf16_f32 %s, %s, %s" % (v(A + r), v(A + 2 * r), v(A + 2 * r + 1)))
        sc = " sc1" if "sc1" in OPT else (" nt" if "nt" in OPT else "")
        k("buffer_store_dwordx4 %s, %s, %s, 0 offen offset:%d%s" % (v(A, 4), v(a1), s(S_OD, 4), 2048 * (ft & 1), sc))
        k("buffer_store_dwordx4 %s, %s, %s, 0 offen offset:%d%s" % (v(A + 4, 4), v(a1), s(S_OD, 4), 2048 * (ft & 1) + 1024, sc))
        if ft == 1:
            k("v_add_u32 %s, 4096, %s" % (v(a1), v(a1)))


def compute(k, pre, ffn):
    if "k1t" in OPT:
        for j in range(82 - ACC):
            k("v_mov_b32 %s, 0" % v(ACC + j))
    else:
        wfrag_addr(k)
        k("s_and_b32 %s, %s, 1" % (s(S_T2), s(S_W)))
        xaddr_base(k, S_T2)
        for j in range(48):
            k("v_mov_b32 %s, 0" % v(ACC + j))
    k("s_mov_b32 %s, %d" % (s(S_SLOT), SLOT0))
    k("s_setprio 2")
    k("s_barrier")
    if "p3" not in OPT:
        prof_mark(k, 4 if "p2" not in OPT else 2)
    compute_phase(k, pre, 3)
    if "p2" in OPT:
        prof_mark(k, 3)
    k("s_nop 7")
    if "k1e" in OPT:
        k("s_nop 3")
    epilogue_q(k, "store" if "k1e" in OPT else "all")
    if ffn:
        k("s_cmp_eq_u32 %s, 7" % s(S_CT))
        k("s_cbranch_scc1 %s_cdone" % pre)
        k("s_lshr_b32 %s, %s, 1" % (s(S_T), s(S_W)))
        k("s_lshl_b32 %s, %s, 9" % (s(S_T), s(S_T)))
        k("s_add_u32 %s, %s, %d" % (s(S_T), s(S_T), L_BI))
        k("v_lshl_add_u32 v3, v2, 4, %s" % s(S_T))
        for ft in range(4):
            for g in range(4):
                k("ds_read_b128 %s, v3 offset:%d" % (v(ACC + 16 * ft + 4 * g, 4), ft * 128 + g * 32))
        k("s_waitcnt lgkmcnt(0)")
        if "p2" in OPT:
            prof_mark(k, 4)
        compute_phase(k, pre, 4)
        if "p2" in OPT:
            prof_mark(k, 5)
        k("s_nop 7")
        epilogue_f(k)
        k.label(pre + "_cdone")


class Groups:
    def __init__(self):
        self.groups = [[]]

    def __call__(self, txt):
        self.groups[-1].append(txt)
        if txt.startswith("buffer_load"):
            self.groups.append([])


def issue_chunk(k, q, c):
    n = 3 if q else 4
    wrow = 3072 if q else 3584
    k("s_add_u32 m0, %s, %d" % (s(S_LD3 if q else S_LD4), SLOT0 + (c % R) * SLOT))
    if not q:
        k("s_mov_b32 %s, %s" % (s(S_T2), s(S_WO)))
    else:
        k("s_nop 0")
    for i in range(n):
        k("buffer_load_dwordx4 %s, %s, %s offen lds" % (v(VQO + i) if q else v(VFO + (i & 1)), s(S_WD, 4), s(S_WO if q else S_T2)))
        if i < n - 1:
            k("s_add_u32 m0, m0, 1024")
            if q:
                k("s_nop 0")
            else:
                k("s_add_u32 %s, %s, %d" % (s(S_T2), s(S_T2), 2 * wrow))
    k("s_add_u32 %s, %s, %d" % (s(S_WO), s(S_WO), 32 * wrow))
    k("s_cmp_ge_u32 %s, %s" % (s(S_WO), s(S_WEND)))
    k("s_cselect_b32 %s, %d, 0" % (s(S_T), 512 * wrow))
    k("s_sub_u32 %s, %s, %s" % (s(S_WO), s(S_WO), s(S_T)))


def phase_base(k, q):
    wrow = 3072 if q else 3584
    k("s_mul_i32 %s, %s, %d" % (s(S_WO), s(S_LD), 8 * wrow))
    k("s_lshl_b32 %s, %s, %d" % (s(S_T), s(S_CT), 7 if q else 9))
    k("s_add_u32 %s, %s, %s" % (s(S_WO), s(S_WO), s(S_T)))
    k("s_add_u32 %s, %s, %d" % (s(S_WEND), s(S_WO), 512 * wrow))
    k("s_mul_i32 %s, %s, %d" % (s(S_T), s(S_ROT), 32 * wrow))
    k("s_add_u32 %s, %s, %s" % (s(S_WO), s(S_WO), s(S_T)))


def loader_pre(k, pre, ffn):
    k("s_setprio 3")
    k("s_sub_u32 %s, %s, 4" % (s(S_LD), s(S_W)))
    k("s_mov_b32 %s, 0x%x" % (s(S_T), (2 ** 32 + 383) // 384))
    for j in range(3):
        k("v_lshlrev_b32 v12, 4, v0")
        k("v_add_u32 v12, %d, v12" % (1024 * j))
        k("v_mul_hi_u32 v13, v12, %s" % s(S_T))
        k("v_mul_u32_u24 v14, 384, v13")
        k("v_sub_u32 v14, v12, v14")
        k("v_lshrrev_b32 v15, 7, v14")
        k("v_and_b32 v14, 127, v14")
        k("v_bfe_u32 v12, v13, 1, 1")
        k("v_lshlrev_b32 v12, 6, v12")
        k("v_xor_b32 v14, v14, v12")
        k("v_mul_u32_u24 v13, 3072, v13")
        k("v_lshl_add_u32 v13, v15, 10, v13")
        k("v_add_u32 %s, v13, v14" % v(VQO + j))
    k("s_mul_i32 %s, %s, 3072" % (s(S_LD3), s(S_LD)))
    k("s_lshl_b32 %s, %s, 12" % (s(S_LD4), s(S_LD)))
    phase_base(k, True)
    issue_chunk(k, True, 0)
    issue_chunk(k, True, 1)
    for p_ in range(2):
        k("v_lshrrev_b32 v12, 5, v0")
        k("v_add_u32 v12, %d, v12" % (2 * p_))
        k("v_bfe_u32 v13, v0, 2, 3")
        k("v_xor_b32 v13, v13, v12")
        k("v_lshlrev_b32 v13, 6, v13")
        k("v_and_b32 v14, 3, v0")
        k("v_lshl_add_u32 v13, v14, 4, v13")
        k("v_lshrrev_b32 v12, 5, v0")
        k("v_mul_u32_u24 v12, 3584, v12")
        k("v_add_u32 %s, v12, v13" % v(VFO + p_))
    if ffn:
        k("v_lshrrev_b32 v12, 3, v1")
        k("v_bfe_u32 v13, v1, 2, 1")
        k("v_and_b32 v14, 3, v1")
        k("v_lshrrev_b32 v15, 1, v12")
        k("v_and_b32 v12, 1, v12")
        k("v_lshl_add_u32 v14, v12, 2, v14")
        k("v_lshl_add_u32 v14, v13, 3, v14")
        k("v_lshl_add_u32 v14, v15, 4, v14")
        k("v_lshl_add_u32 v14, v2, 5, v14")
        k("s_lshl_b32 %s, %s, 8" % (s(S_T), s(S_CT)))
        k("s_lshl_b32 %s, %s, 6" % (s(S_T2), s(S_LD)))
        k("s_add_u32 %s, %s, %s" % (s(S_T), s(S_T), s(S_T2)))
        k("v_add_u32 v14, %s, v14" % s(S_T))
        k("v_lshlrev_b32 v14, 1, v14")
        k("v_min_u32 v14, 3582, v14")
        k("global_load_ushort v11, v14, %s" % s(S_B1, 2))


def loader_post(k, pre, ffn):
    npf = 4 if "w1n" in OPT else 0
    k("s_waitcnt vmcnt(%d)" % (6 if ffn else 9 + npf))
    if ffn:
        k("v_lshlrev_b32 v11, 16, v11")
        k("s_lshl_b32 %s, %s, 8" % (s(S_T), s(S_LD)))
        k("s_add_u32 %s, %s, %d" % (s(S_T), s(S_T), L_BI))
        k("v_lshl_add_u32 v12, v0, 2, %s" % s(S_T))
        k("ds_write_b32 v12, v11")
        k("s_waitcnt lgkmcnt(0)")
    k("s_barrier")
    k("s_setprio %d" % (3 if "lp3" in OPT else 1))

    def n_of(c):
        return 3 if c < 16 else 4

    def schedule(first, last, total):
        for c in range(first, last + 1):
            younger = sum(n_of(j) for j in (c + 1, c + 2) if j < total)
            if c == 1:
                younger += npf
            k("s_waitcnt vmcnt(%d)" % younger)
            k("s_barrier")
            if c + 3 < total:
                if c + 3 == 16:
                    k.srd(S_WD, S_W1, 512 * 3584)
                    phase_base(k, False)
                issue_chunk(k, c + 3 < 16, c + 3)

    if ffn:
        k("s_cmp_eq_u32 %s, 7" % s(S_CT))
        k("s_cbranch_scc1 %s_lq" % pre)
        schedule(1, 32, 32)
        k("s_branch %s_lend" % pre)
        k.label(pre + "_lq")
    schedule(1, 16, 16)
    k.label(pre + "_lend")
    if "w1pf" in OPT:
        k.srd(S_WD, S_W1, 512 * 3584)
        k("s_lshr_b32 %s, s2, 3" % s(S_T))
        k("s_lshl_b32 %s, %s, 2" % (s(S_T), s(S_T)))
        k("s_add_u32 %s, %s, %s" % (s(S_T), s(S_T), s(S_LD)))
        k("s_mul_i32 %s, %s, %d" % (s(S_T), s(S_T), 4 * 3584))
        k("v_lshlrev_b32 v12, 4, v0")
        for j in range(14):
            k("buffer_load_dwordx4 v[16:19], v12, %s, %s offen" % (s(S_WD, 4), s(S_T)))
            k("s_add_u32 %s, %s, 1024" % (s(S_T), s(S_T)))


def finish(k):
    if "nowait" not in OPT or common.PROF or common.STAMP:
        k("s_waitcnt vmcnt(0)")
    stamp(k, 1, S_WS, S_W)
    if "p2" not in OPT and "p3" not in OPT:
        prof_mark(k, 5)
    prof_rt(k, 6)
    prof_store(k, S_WS, S_W, 28)
    k("s_endpgm")


def gen(k, name, pre, ffn=True):
    k.kernel_begin(name)
    entry(k, pre, name)
    if "k1t" in OPT:
        wfrag_addr(k, 88, True)
        if "k1e" in OPT:
            epilogue_q(k, "addr")
        for j in range(82 - ACC, 48):
            k("v_mov_b32 %s, 0" % v(ACC + j))
    k("s_branch %s_norm" % pre)
    k.label(pre + "_loader")
    loader_pre(k, pre, ffn)
    k.label(pre + "_norm")
    g = Groups()
    issue_chunk(g, True, 2)
    issue_chunk(g, True, 3)
    normalise(k, pre, g.groups, 6 + (1 if ffn else 0))
    k("s_cmp_ge_u32 %s, 4" % s(S_W))
    k("s_cbranch_scc1 %s_lpost" % pre)
    compute(k, pre, ffn)
    finish(k)
    k.label(pre + "_lpost")
    loader_post(k, pre, ffn)
    if "w1pf" in OPT and not common.PROF:
        k("s_endpgm")
    finish(k)
    k.label(pre + "_exit")
    k.kernel_end(name, NV, NV)
    return 256, LDS_BYTES
```
